```python
import torch

def _softmax(x, axis=-1):
    return torch.softmax(x, dim=axis)

def _gelu(x):
    return torch.nn.functional.gelu(x, approximate='tanh')

def _silu(x):
    return torch.nn.functional.silu(x)

def _sigmoid(x):
    return torch.sigmoid(x)

def _layernorm(x, axis=-1, eps=1e-05):
    m = x.mean(dim=axis, keepdim=True)
    v = x.var(dim=axis, keepdim=True, unbiased=False)
    return (x - m) / torch.sqrt(v + eps)

def _scatter_add(tgt, idx, src, axis=0):
    return tgt.clone().index_add_(axis, idx, src)

def _segment_sum(src, seg, n):
    out = torch.zeros((n,) + src.shape[1:], dtype=src.dtype)
    return out.index_add_(0, seg, src)

def _pad(x, pw):
    flat = tuple((v for pair in reversed(pw) for v in pair))
    return torch.nn.functional.pad(x, flat)
kernel_name = 'adaLN_cond__softmax_full_mha__mixer_gmlp__prompt'

def setup_inputs():

    _w = lambda a: (lambda t: t.to(torch.bfloat16) if t.is_floating_point() else t)(torch.as_tensor(a))

    def _A_setup():
        B, S, D = (1, 2048, 512)
        return {'x': _w((lambda *s: torch.randn(*s, dtype=torch.bfloat16) * 0.05)(B, S, D)), 'wqkv': _w((lambda *s: torch.randn(*s, dtype=torch.bfloat16) * 0.05)(D, 3 * D)), 'wo': _w((lambda *s: torch.randn(*s, dtype=torch.bfloat16) * 0.05)(D, D))}
    _A_in = _A_setup()

    def _B_setup():
        B, S, D, F = (1, 2048, 512, 1792)
        Fh = F // 2
        return {'x': _w((lambda *s: torch.randn(*s, dtype=torch.bfloat16) * 0.05)(B, S, D)), 'w_in': _w((lambda *s: torch.randn(*s, dtype=torch.bfloat16) * 0.4)(D, 2 * Fh)), 'w_sp': _w(0.01 * (lambda *s: torch.randn(*s, dtype=torch.bfloat16) * 0.4)(S, S)), 'b_sp': _w(1.0 + 0.01 * (lambda *s: torch.randn(*s, dtype=torch.bfloat16) * 0.05)(S)), 'w_out': _w((lambda *s: torch.randn(*s, dtype=torch.bfloat16) * 0.05)(Fh, D))}
    _B_in = _B_setup()
    return {'A_x': _A_in['x'], 'A_wqkv': _A_in['wqkv'], 'A_wo': _A_in['wo'], 'B_x': _B_in['x'], 'B_w_in': _B_in['w_in'], 'B_w_sp': _B_in['w_sp'], 'B_b_sp': _B_in['b_sp'], 'B_w_out': _B_in['w_out'], 'c': _w((lambda *s: torch.randn(*s, dtype=torch.bfloat16) * 0.1)(1, 512) * 8.0), 'w_mod': _w((lambda *s: torch.randn(*s, dtype=torch.bfloat16) * 0.1)(512, 6 * 512) * 512 ** (-0.5) * 8.0)}

def reference(A_x, A_wqkv, A_wo, B_x, B_w_in, B_w_sp, B_b_sp, B_w_out, c, w_mod):

    def _A_ref(x, wqkv, wo):
        B, S, D = x.shape
        H = 32
        Dh = D // H
        qkv = (lambda x, *d: x.permute(*d))((x @ wqkv).reshape(B, S, 3, H, Dh), 2, 0, 3, 1, 4)
        q, k, v = (qkv[0], qkv[1], qkv[2])
        scale = Dh ** (-0.5)
        scores = torch.einsum('bhqd,bhkd->bhqk', q, k) * scale
        p = _softmax(scores, axis=-1)
        o = torch.einsum('bhqk,bhkd->bhqd', p, v)
        return (lambda x, *d: x.permute(*d))(o, 0, 2, 1, 3).reshape(B, S, D) @ wo

    def _B_ref(x, w_in, w_sp, b_sp, w_out):
        B, S, D = x.shape
        F = w_in.shape[-1]
        Fh = F // 2
        z = _gelu(torch.einsum('bsd,df->bsf', x, w_in))
        z1 = z[..., :Fh].clone()
        z2 = _layernorm(z[..., Fh:], axis=-1)
        g = torch.einsum('ts,bsf->btf', w_sp, z2) + b_sp[None, :, None]
        return torch.einsum('bsf,fd->bsd', z1 * g, w_out)
    x = A_x
    mod = (_silu(c) @ w_mod).reshape(c.shape[0], 6, 1, -1)
    sa, ca, ga, sb, cb, gb = (mod[:, 0].clone(), mod[:, 1].clone(), mod[:, 2].clone(), mod[:, 3].clone(), mod[:, 4].clone(), mod[:, 5].clone())
    h = _layernorm(x, axis=-1) * (1 + ca) + sa
    x = x + ga * _A_ref(h, A_wqkv, A_wo)
    h = _layernorm(x, axis=-1) * (1 + cb) + sb
    x = x + gb * _B_ref(h, B_w_in, B_w_sp, B_b_sp, B_w_out)
    return x
```

```python
import re

def vr(a, n=1):
    return f"v{a}" if n == 1 else f"v[{a}:{a+n-1}]"
def sr(a, n=1):
    return f"s{a}" if n == 1 else f"s[{a}:{a+n-1}]"

_REG = re.compile(r'^(v|s|a)(\d+)$|^(v|s|a)\[(\d+):(\d+)\]$')
def regs_of(tok):
    tok = tok.strip()
    if tok.startswith('-'): tok = tok[1:]
    if tok.startswith('abs(') or tok.startswith('|'):
        tok = tok.replace('abs(', '').replace(')', '').replace('|', '')
    m = _REG.match(tok)
    if m:
        if m.group(1):
            return {(m.group(1), int(m.group(2)))}
        return {(m.group(3), i) for i in range(int(m.group(4)), int(m.group(5)) + 1)}
    if tok == 'vcc': return {('s', 106), ('s', 107)}
    if tok == 'vcc_lo': return {('s', 106)}
    if tok == 'vcc_hi': return {('s', 107)}
    if tok == 'exec': return {('s', 126), ('s', 127)}
    if tok == 'exec_lo': return {('s', 126)}
    if tok == 'exec_hi': return {('s', 127)}
    if tok == 'm0': return {('s', 124)}
    return set()

TRANS = ('v_exp_f32', 'v_log_f32', 'v_rcp_f32', 'v_rsq_f32', 'v_sqrt_f32', 'v_sin_f32', 'v_cos_f32', 'v_exp_f16', 'v_rcp_iflag_f32')
VCC = {('s', 106), ('s', 107)}
EXEC = {('s', 126), ('s', 127)}
M0 = {('s', 124)}

class Ins:
    __slots__ = ('text', 'op', 'kind', 'wr', 'rd', 'a', 'b', 'c', 'passes', 'dpp', 'sdwa', 'lds', 'store_data', 'nop', 'ops')
    def __init__(self, text):
        self.text = text
        t = text.split(';')[0].strip()
        parts = t.split(None, 1)
        self.op = parts[0]
        rest = parts[1] if len(parts) > 1 else ''
        ops = []; depth = 0; cur = ''
        for ch in rest:
            if ch == '[': depth += 1
            if ch == ']': depth -= 1
            if ch == ',' and depth == 0:
                ops.append(cur.strip()); cur = ''
            else:
                cur += ch
        if cur.strip(): ops.append(cur.strip())
        mods = ''
        if ops:
            sp = ops[-1].split(None, 1)
            ops[-1] = sp[0]
            mods = sp[1] if len(sp) > 1 else ''
        self.ops = ops
        op = self.op
        self.wr = set(); self.rd = set(); self.a = set(); self.b = set(); self.c = set()
        self.passes = 0; self.dpp = ('_dpp' in op) or ('quad_perm' in mods) or ('row_' in mods)
        self.sdwa = '_sdwa' in op or 'op_sel' in mods
        self.lds = False; self.store_data = set(); self.nop = 0
        R = [regs_of(o) for o in ops]
        if op == 's_nop':
            self.kind = 'nop'; self.nop = int(ops[0], 0) + 1
        elif op.startswith('v_mfma'):
            self.kind = 'mfma'
            self.wr = R[0]; self.a = R[1]; self.b = R[2]; self.c = R[3]
            self.rd = R[1] | R[2] | R[3]
            self.passes = 8 if '32x32' in op else 4
        elif op.startswith('v_cmp'):
            self.kind = 'valu'; self.wr = R[0]; self.rd = set().union(*R[1:])
        elif op.startswith('v_readfirstlane') or op.startswith('v_readlane'):
            self.kind = 'valu'; self.wr = R[0]; self.rd = set().union(*R[1:])
        elif op.startswith('v_permlane') and 'swap' in op:
            self.kind = 'valu'; self.wr = R[0] | R[1]; self.rd = R[0] | R[1]
        elif op.startswith('v_'):
            self.kind = 'valu'
            self.wr = set(R[0]); rd = set().union(*R[1:]) if len(R) > 1 else set()
            if op.startswith(('v_add_co', 'v_sub_co', 'v_addc_co', 'v_subb_co', 'v_subrev_co')):
                self.wr |= R[1]; rd = set().union(*R[2:])
            if op.startswith(('v_fmac', 'v_mac', 'v_dot2c', 'v_writelane')) or 'UNUSED_PRESERVE' in mods or self.dpp:
                rd |= R[0]
            if op.startswith('v_cndmask') and len(ops) == 3: rd |= VCC
            self.rd = rd
        elif op.startswith('buffer_') or op.startswith('global_'):
            self.kind = 'vmem'
            self.lds = (' lds' in (' ' + mods)) or op.startswith('global_load_lds')
            if op in ('buffer_inv', 'buffer_wbl2'):
                pass
            elif op.startswith('buffer_load') and self.lds:
                self.rd = set().union(*R) | M0
            elif op.startswith('buffer_load'):
                self.wr = R[0]; self.rd = set().union(*R[1:])
            elif op.startswith('buffer_store'):
                self.rd = set().union(*R);
                if 'x3' in op or 'x4' in op: self.store_data = R[0]
            elif op.startswith('buffer_atomic'):
                self.rd = set().union(*R)
                if 'sc0' in mods: self.wr = R[0]
            elif op.startswith('global_load') and not self.lds:
                self.wr = R[0]; self.rd = set().union(*R[1:])
            elif op.startswith('global_store'):
                self.rd = set().union(*R)
                if 'x3' in op or 'x4' in op: self.store_data = R[1]
            else:
                self.rd = set().union(*R)
        elif op.startswith('ds_'):
            self.kind = 'ds'
            if op.startswith(('ds_read', 'ds_bpermute', 'ds_permute', 'ds_swizzle')):
                self.wr = R[0]; self.rd = set().union(*R[1:])
            else:
                self.rd = set().union(*R)
        elif op.startswith('s_'):
            self.kind = 'salu'
            if op.startswith(('s_cmp', 's_bitcmp', 's_waitcnt', 's_barrier', 's_branch', 's_cbranch', 's_endpgm', 's_sleep', 's_setprio', 's_setreg')):
                self.rd = set().union(*R) if R else set()
            else:
                self.wr = R[0] if R else set()
                self.rd = set().union(*R[1:]) if len(R) > 1 else set()
                if 'saveexec' in op: self.wr |= EXEC; self.rd |= EXEC
        else:
            raise ValueError("unknown instr " + text)

def isv(s): return {r for r in s if r[0] in 'va'}
def iss(s): return {r for r in s if r[0] == 's'}

def need(p, c):
    n = 0
    if p.kind == 'valu':
        vw = isv(p.wr); sw = iss(p.wr)
        if c.kind == 'mfma' and vw & c.rd: n = max(n, 2)
        if c.kind == 'mfma' and (sw & EXEC): n = max(n, 4)
        if c.kind == 'valu':
            if c.dpp and vw & c.rd: n = max(n, 2)
            if c.op.startswith('v_permlane') and vw & c.rd: n = max(n, 2)
            if c.op.startswith(('v_readlane', 'v_readfirstlane')) and vw & c.rd: n = max(n, 1)
            if sw & iss(c.rd):
                n = max(n, 4 if c.op.startswith(('v_readlane', 'v_writelane')) else 2)
            if p.op.startswith(TRANS) and (vw & c.rd) : n = max(n, 1)
            if p.sdwa and (vw & (c.rd | c.wr)): n = max(n, 1)
            if (sw & EXEC) and c.dpp: n = max(n, 5)
        if c.kind == 'vmem' and sw & iss(c.rd): n = max(n, 5)
        if c.kind == 'salu' and sw & c.rd: n = max(n, 4)
        if p.op.startswith(TRANS) and c.kind in ('vmem', 'ds', 'mfma') and (vw & c.rd): n = max(n, 2)
    if p.kind == 'mfma':
        P = p.passes
        raw_valu = {4: 8, 8: 12}[P]; ab = {4: 8, 8: 12}[P]; cover = {4: 6, 8: 10}[P]; war = {4: 3, 8: 7}[P]
        if c.kind == 'mfma':
            if p.wr & (c.a | c.b): n = max(n, ab)
            if p.wr & c.c:
                if not (p.wr == c.c and p.passes == c.passes): n = max(n, cover)
            elif p.wr & c.wr:
                n = max(n, cover)
        elif c.kind == 'valu':
            if p.wr & (c.rd | c.wr): n = max(n, raw_valu)
            if p.c & isv(c.wr): n = max(n, war)
        elif c.kind in ('vmem', 'ds'):
            if p.wr & (c.rd | c.wr): n = max(n, raw_valu)
            if c.kind == 'ds' and p.c & c.wr: n = max(n, war)
    if p.kind == 'salu':
        if (p.wr & M0) and c.kind == 'vmem' and c.lds: n = max(n, 1)
    if p.kind == 'vmem' and p.store_data:
        if c.kind == 'valu' and p.store_data & c.wr: n = max(n, 2)
        elif (c.kind in ('ds', 'vmem', 'mfma')) and p.store_data & c.wr: n = max(n, 1)
    return n

WINDOW = 14

class Asm:
    def __init__(self):
        self.items = []
        self.uid = 0
        self.nop_inserted = 0
    def e(self, text):
        for line in text.split('\n'):
            line = line.strip()
            if not line or line.startswith(';'): continue
            if line.endswith(':'):
                self.items.append(('l', line[:-1]))
            elif line.startswith('.'):
                self.items.append(('r', line))
            else:
                self.items.append(('i', Ins(line)))
    def label(self, name): self.items.append(('l', name))
    def newlabel(self, base='L'):
        self.uid += 1
        return f"{base}_{self.uid}"
    def raw(self, s): self.items.append(('r', s))

    def fix_hazards(self, verbose=False):
        for rnd in range(10):
            n0 = self.nop_inserted
            self._pass(verbose)
            if self.nop_inserted == n0: break
        return self

    def _pass(self, verbose):
        items = self.items
        labels = {it[1]: i for i, it in enumerate(items) if it[0] == 'l'}
        out = []
        pos_of = {}
        br_src = {}
        for it in items:
            if it[0] == 'i' and it[1].op.startswith(('s_branch', 's_cbranch')):
                br_src.setdefault(it[1].ops[0], []).append(it[1])
        opos = {id(it[1]): i for i, it in enumerate(items) if it[0] == 'i'}
        def walk(lst, start, c, posmap, allow_back):
            best = 0
            stack = [(start, 0)]
            seen = set()
            while stack:
                j, dist = stack.pop()
                while j >= 0 and dist < WINDOW:
                    it = lst[j]
                    if it[0] == 'l':
                        for src in br_src.get(it[1], []):
                            if id(src) in posmap:
                                key = (id(src), dist)
                                if key not in seen:
                                    seen.add(key); stack.append((posmap[id(src)], dist))
                            elif allow_back:
                                key = (id(src), dist)
                                if key not in seen:
                                    seen.add(key)
                                    best = max(best, walk(items, opos[id(src)], c, opos, False) - dist)
                        k = j - 1
                        while k >= 0 and lst[k][0] == 'r': k -= 1
                        if k >= 0 and lst[k][0] == 'i' and lst[k][1].op in ('s_branch', 's_endpgm'):
                            break
                    elif it[0] == 'i':
                        p = it[1]
                        nn = need(p, c)
                        if nn > dist: best = max(best, nn - dist)
                        dist += p.nop if p.kind == 'nop' else 1
                    j -= 1
            return best
        for it in items:
            if it[0] == 'i' and it[1].kind != 'nop':
                ex = walk(out, len(out) - 1, it[1], pos_of, True)
                if ex > 0:
                    while ex > 0:
                        n = min(ex, 16)
                        out.append(('i', Ins(f"s_nop {n-1}"))); ex -= n
                    self.nop_inserted += 1
                    if verbose: print("  nop before", it[1].text)
            if it[0] == 'i': pos_of[id(it[1])] = len(out)
            out.append(it)
        self.items = out

    def text(self):
        out = []
        for it in self.items:
            if it[0] == 'l': out.append(it[1] + ':')
            elif it[0] == 'r': out.append(it[1])
            else: out.append('    ' + it[1].text)
        return '\n'.join(out) + '\n'
```

```python
import sys, math
from asmlib import Asm, vr, sr

NAME = "adaLN_cond__softmax_full_mha__mixer_gmlp__prompt"
MB = 1 << 20
WS_MOD = 0
WS_ST  = 0x10000
WS_QK  = 1 * MB
WS_V   = 5 * MB
WS_O   = 7 * MB
WS_X1  = 9 * MB
WS_Z1  = 11 * MB
WS_U   = 15 * MB
WS_Z2  = 19 * MB
WS_Y   = 23 * MB
P_X, P_WQKV, P_WO, P_BX, P_WIN, P_WSP, P_BSP, P_WOUT, P_C, P_WMOD, P_OUT, P_DBG, P_WS = [64 + 2*i for i in range(13)]
LOG2E = 1.4426950408889634

def f2u(x):
    import struct
    return struct.unpack('<I', struct.pack('<f', x))[0]
def fl(x): return f"0x{f2u(x):08x}"

class Gen:
    def __init__(self, st=""):
        self.a = Asm()
        self.st = st
    def e(self, s): self.a.e(s)
    def lab(self, b): return self.a.newlabel(b)

    def srd(self, d, ptr, off, size):
        e = self.e
        if off:
            e(f"s_add_u32 s{d}, s{ptr}, 0x{off:x}")
            e(f"s_addc_u32 s{d+1}, s{ptr+1}, 0")
        else:
            e(f"s_mov_b32 s{d}, s{ptr}")
            e(f"s_mov_b32 s{d+1}, s{ptr+1}")
        e(f"s_mov_b32 s{d+2}, 0x{size:x}")
        e(f"s_mov_b32 s{d+3}, 0x20000")

    def prologue(self, nwg, endlab):
        e = self.e
        e(f"s_cmp_ge_u32 s2, {nwg}")
        e(f"s_cbranch_scc1 {endlab}")
        e("s_load_dwordx16 s[64:79], s[0:1], 0")
        e("s_load_dwordx8 s[80:87], s[0:1], 64")
        e("s_load_dwordx2 s[88:89], s[0:1], 96")
        e("v_and_b32 v1, 63, v0")
        e("v_lshrrev_b32 v2, 6, v0")
        e("v_readfirstlane_b32 s3, v2")
        e("s_waitcnt lgkmcnt(0)")

    def bf16_round(self, d, s):
        self.e(f"v_cvt_pk_bf16_f32 v{d}, v{s}, v{s}")
        self.e(f"v_lshlrev_b32 v{d}, 16, v{d}")

    def dpp_reduce16(self, regs):
        for m in ("quad_perm:[1,0,3,2]", "quad_perm:[2,3,0,1]", "row_half_mirror", "row_mirror"):
            for r in regs:
                self.e(f"v_add_f32_dpp v{r}, v{r}, v{r} {m} row_mask:0xf bank_mask:0xf")

    def phase_mod(self):
        e = self.e
        done = self.lab("mod_done")
        e("s_cmp_ge_u32 s2, 96")
        e(f"s_cbranch_scc1 {done}")
        self.srd(8, P_WMOD, 0, 512*3072*2)
        self.srd(12, P_C, 0, 1024)
        self.srd(16, P_WS, WS_MOD, 12288)
        e("v_and_b32 v3, 3, v0")
        e("v_lshrrev_b32 v4, 2, v0")
        e("v_mul_u32_u24 v5, 6144, v4")
        e("v_lshl_add_u32 v5, v3, 4, v5")
        e("v_lshlrev_b32 v6, 1, v4")
        e("s_lshl_b32 s20, s2, 6")
        for i in range(4):
            e(f"buffer_load_ushort v{8+i}, v6, s[12:15], 0 offen offset:{256*i}")
        for i in range(4):
            e(f"s_add_u32 s{21+i}, s20, {i*128*6144}")
        for i in range(4):
            e(f"buffer_load_dwordx4 v[{16+4*i}:{19+4*i}], v5, s[8:11], s{21+i} offen")
        for j in range(8): e(f"v_mov_b32 v{40+j}, 0")
        e("s_waitcnt vmcnt(4)")
        for i in range(4):
            e(f"v_lshlrev_b32 v{8+i}, 16, v{8+i}")
            e(f"v_mul_f32 v12, {fl(-LOG2E)}, v{8+i}")
            e("v_exp_f32 v12, v12")
            e("v_add_f32 v12, 1.0, v12")
            e("v_rcp_f32 v12, v12")
            e(f"v_mul_f32 v{8+i}, v{8+i}, v12")
            self.bf16_round(8+i, 8+i)
        for i in range(4):
            e(f"s_waitcnt vmcnt({3-i})")
            for q in range(4):
                w = 16 + 4*i + q
                e(f"v_lshlrev_b32 v12, 16, v{w}")
                e(f"v_and_b32 v13, 0xffff0000, v{w}")
                e(f"v_fmac_f32 v{40+2*q}, v{8+i}, v12")
                e(f"v_fmac_f32 v{41+2*q}, v{8+i}, v13")
        for m in ("row_ror:4", "row_ror:8"):
            for j in range(8):
                e(f"v_add_f32_dpp v{40+j}, v{40+j}, v{40+j} {m} row_mask:0xf bank_mask:0xf")
        e("v_lshrrev_b32 v12, 4, v0")
        e("v_lshlrev_b32 v12, 7, v12")
        e("v_lshl_add_u32 v12, v3, 5, v12")
        e("v_and_b32 v13, 12, v1")
        e("v_cmp_eq_u32 vcc, 0, v13")
        e("s_and_saveexec_b64 s[26:27], vcc")
        e("ds_write_b128 v12, v[40:43]")
        e("ds_write_b128 v12, v[44:47] offset:16")
        e("s_mov_b64 exec, s[26:27]")
        e("s_waitcnt lgkmcnt(0)")
        e("s_barrier")
        e("s_cmp_lg_u32 s3, 0")
        e(f"s_cbranch_scc1 {done}")
        e("v_and_b32 v3, 31, v1")
        e("v_lshrrev_b32 v4, 5, v1")
        e("v_lshlrev_b32 v12, 11, v4")
        e("v_lshl_add_u32 v12, v3, 2, v12")
        for i in range(16):
            e(f"ds_read_b32 v{16+i}, v12 offset:{128*i}")
        e("s_waitcnt lgkmcnt(0)")
        for i in range(1, 16):
            e(f"v_add_f32 v16, v16, v{16+i}")
        e("v_mov_b32 v17, v16")
        e("v_permlane32_swap_b32 v16, v17")
        e("v_add_f32 v16, v16, v17")
        self.bf16_round(16, 16)
        skip = self.lab("mod_noone")
        e("s_lshr_b32 s20, s2, 4")
        e("s_cmp_eq_u32 s20, 1")
        e("s_cselect_b32 s21, 1, 0")
        e("s_cmp_eq_u32 s20, 4")
        e("s_cselect_b32 s21, 1, s21")
        e("s_cmp_eq_u32 s21, 0")
        e(f"s_cbranch_scc1 {skip}")
        e("v_add_f32 v16, 1.0, v16")
        self.bf16_round(16, 16)
        self.a.label(skip)
        e("s_lshl_b32 s20, s2, 7")
        e("v_lshlrev_b32 v3, 2, v3")
        e("v_cmp_gt_u32 vcc, 32, v1")
        e("s_and_saveexec_b64 s[26:27], vcc")
        e(f"buffer_store_dword v16, v3, s[16:19], s20 offen {self.st}")
        e("s_mov_b64 exec, s[26:27]")
        self.a.label(done)

    def ln_issue_loads(self, srd_x, s_rowoff, shift_chunk, scale_chunk, srd_mod):
        e = self.e
        e("v_lshrrev_b32 v3, 4, v1")
        e("v_and_b32 v4, 15, v1")
        e("s_lshl_b32 s20, s3, 3")
        e("v_add_u32 v5, s20, v3")
        e("v_lshlrev_b32 v5, 10, v5")
        e("v_lshl_add_u32 v5, v4, 4, v5")
        e(f"s_add_u32 s21, s{s_rowoff}, 4096")
        for a in range(2):
            so = s_rowoff if a == 0 else 21
            for j in range(4):
                b = 32 + 16*a + 4*j
                e(f"buffer_load_dwordx4 v[{b}:{b+3}], v5, {sr(srd_x,4)}, s{so} offen offset:{256*j}")
        e("v_lshlrev_b32 v6, 5, v4")
        for (base, chunk) in ((64, scale_chunk), (96, shift_chunk)):
            e(f"s_mov_b32 s22, {chunk*2048}")
            for j in range(4):
                for hh in range(2):
                    b = base + 8*j + 4*hh
                    e(f"buffer_load_dwordx4 v[{b}:{b+3}], v6, {sr(srd_mod,4)}, s22 offen offset:{512*j+16*hh}")

    def ln_compute(self, nyounger):
        e = self.e
        X = 128
        e(f"s_waitcnt vmcnt({16+nyounger})")
        for a in range(2):
            for q in range(16):
                s = 32 + 16*a + q
                e(f"v_lshlrev_b32 v{X+32*a+2*q}, 16, v{s}")
                e(f"v_and_b32 v{X+32*a+2*q+1}, 0xffff0000, v{s}")
        for a in range(2):
            e(f"v_add_f32 v{8+a}, v{X+32*a}, v{X+32*a+1}")
            e(f"v_add_f32 v{10+a}, v{X+32*a+2}, v{X+32*a+3}")
        for q in range(2, 16):
            for a in range(2):
                acc = (8 if q % 2 == 0 else 10) + a
                e(f"v_add_f32 v{acc}, v{acc}, v{X+32*a+2*q}")
                e(f"v_add_f32 v{acc}, v{acc}, v{X+32*a+2*q+1}")
        for a in range(2): e(f"v_add_f32 v{8+a}, v{8+a}, v{10+a}")
        self.dpp_reduce16([8, 9])
        for a in range(2): e(f"v_mul_f32 v{8+a}, {fl(1.0/512)}, v{8+a}")
        for a in range(2):
            e(f"v_mov_b32 v{10+a}, 0"); e(f"v_mov_b32 v{12+a}, 0")
        for q in range(32):
            for a in range(2):
                e(f"v_sub_f32 v{X+32*a+q}, v{X+32*a+q}, v{8+a}")
            for a in range(2):
                acc = (10 if q % 2 == 0 else 12) + a
                e(f"v_fmac_f32 v{acc}, v{X+32*a+q}, v{X+32*a+q}")
        for a in range(2): e(f"v_add_f32 v{10+a}, v{10+a}, v{12+a}")
        self.dpp_reduce16([10, 11])
        for a in range(2):
            e(f"v_mov_b32 v14, {fl(1e-5)}")
            e(f"v_fmac_f32 v14, {fl(1.0/512)}, v{10+a}")
            e(f"v_rsq_f32 v{10+a}, v14")
        e(f"s_waitcnt vmcnt({nyounger})")
        for a in range(2):
            e(f"s_lshl_b32 s20, s3, 3")
            e(f"s_add_u32 s20, s20, {4*a}")
            e(f"v_add_u32 v15, s20, v3")
            e(f"v_and_b32 v16, 15, v15")
            e(f"v_xor_b32 v16, v16, v4")
            e(f"v_lshlrev_b32 v15, 10, v15")
            e(f"v_lshl_add_u32 v{18+a}, v16, 4, v15")
        for a in range(2):
            for j in range(4):
                for q in range(8):
                    r = X + 32*a + 8*j + q
                    e(f"v_mul_f32 v{r}, v{r}, v{10+a}")
                    e(f"v_fma_f32 v{r}, v{r}, v{64+8*j+q}, v{96+8*j+q}")
                pk = 20 + 4*(j % 2)
                for q in range(4):
                    r = X + 32*a + 8*j + 2*q
                    e(f"v_cvt_pk_bf16_f32 v{pk+q}, v{r}, v{r+1}")
                e(f"ds_write_b128 v{18+a}, v[{pk}:{pk+3}] offset:{256*j}")

    def dma(self, voff, srd, soff, m0expr):
        self.e(m0expr)
        self.e("s_nop 0")
        self.e(f"buffer_load_dwordx4 v{voff}, {sr(srd,4)}, {soff} offen lds")

    def ring_loop(self, nst, nslot, init_cnt, prod_cnt, issue_stage, compute_stage, endlab, extra_cons_wait=None):
        e = self.e
        lp = self.lab("prod")
        e("s_cmp_ge_u32 s3, 4")
        e(f"s_cbranch_scc1 {lp}")
        for s in range(nst):
            if s < nslot:
                e(f"s_waitcnt vmcnt({init_cnt*(nslot-1-s)}) lgkmcnt(0)")
            e("s_barrier")
            compute_stage(s)
        lc = self.lab("cons_done")
        e(f"s_branch {lc}")
        self.a.label(lp)
        out = [(s, init_cnt) for s in range(nslot)]
        for s in range(nst):
            later = sum(c for (st, c) in out if st > s)
            e(f"s_waitcnt vmcnt({later}) lgkmcnt(0)")
            out = [(st, c) for (st, c) in out if st > s]
            e("s_barrier")
            nxt = s + nslot - 1
            if s >= 1 and nxt < nst:
                issue_stage(nxt)
                out.append((nxt, prod_cnt))
        e(f"s_branch {endlab}")
        self.a.label(lc)

    def phase_qkv(self):
        e = self.e
        end = self.lab("qkv_end")
        e("s_and_b32 s20, s2, 7")
        e("s_lshr_b32 s21, s2, 3")
        e("s_and_b32 s4, s20, 3")
        e("s_lshl_b32 s4, s4, 3")
        e("s_and_b32 s22, s21, 7")
        e("s_add_u32 s4, s4, s22")
        e("s_lshr_b32 s5, s20, 2")
        e("s_lshl_b32 s5, s5, 2")
        e("s_lshr_b32 s22, s21, 3")
        e("s_add_u32 s5, s5, s22")
        self.srd(8, P_X, 0, 2048*512*2)
        self.srd(12, P_WS, WS_MOD, 12288)
        self.srd(16, P_WQKV, 0, 512*1536*2)
        self.srd(24, P_WS, WS_QK, 4*MB)
        self.srd(28, P_WS, WS_V, 2*MB)
        e("s_lshl_b32 s6, s4, 16")
        self.ln_issue_loads(8, 6, 0, 1, 12)
        e("s_and_b32 s7, s3, 3")
        for m in range(6):
            d = 192 + m
            e(f"s_lshl_b32 s20, s7, 6")
            e(f"s_add_u32 s20, s20, {256*m}")
            e(f"v_add_u32 v200, s20, v1")
            e(f"v_mul_u32_u24 v201, 2731, v200")
            e(f"v_lshrrev_b32 v201, 16, v201")
            e(f"v_mul_u32_u24 v202, 24, v201")
            e(f"v_sub_u32 v202, v200, v202")
            e(f"v_bfe_u32 v203, v201, 1, 1")
            e(f"v_bfe_u32 v204, v201, 3, 1")
            e(f"v_lshl_or_b32 v203, v204, 1, v203")
            e(f"v_lshlrev_b32 v203, 1, v203")
            e(f"v_xor_b32 v202, v202, v203")
            e(f"v_lshlrev_b32 v203, 4, v202")
            e(f"s_lshl_b32 s20, s5, 8")
            e(f"v_add_u32 v204, s20, v203")
            e(f"s_lshl_b32 s20, s5, 7")
            e(f"s_add_u32 s20, s20, {2048-256}")
            e(f"v_add_u32 v205, s20, v203")
            e(f"v_cmp_gt_u32 vcc, 16, v202")
            e(f"v_cndmask_b32 v204, v205, v204, vcc")
            e(f"v_mul_u32_u24 v201, 3072, v201")
            e(f"v_add_u32 v{d}, v201, v204")
        e("s_lshl_b32 s7, s7, 10")
        e("s_add_u32 s7, s7, 65536")
        def issue(stage, ms):
            slot = stage % 4
            e(f"s_mov_b32 s23, {stage*64*3072}")
            for m in ms:
                self.dma(192+m, 16, "s23", f"s_add_u32 m0, s7, {slot*24576 + m*4096}")
        lodd = self.lab("qkv_iodd"); ljoin = self.lab("qkv_ijoin")
        e("s_cmp_ge_u32 s3, 4")
        e(f"s_cbranch_scc1 {lodd}")
        for st in range(4): issue(st, (0, 2, 4))
        e(f"s_branch {ljoin}")
        self.a.label(lodd)
        for st in range(4): issue(st, (1, 3, 5))
        self.a.label(ljoin)
        self.ln_compute(12)
        e("v_lshrrev_b32 v3, 4, v1")
        e("v_and_b32 v4, 15, v1")
        e("v_lshrrev_b32 v5, 2, v4")
        e("v_and_b32 v6, 3, v4")
        e("v_lshl_add_u32 v7, v3, 3, v5")
        e("v_mul_u32_u24 v7, 384, v7")
        e("v_lshl_add_u32 v7, v6, 3, v7")
        e("v_add_u32 v7, 65536, v7")
        e("v_bfe_u32 v8, v5, 1, 1")
        e("v_and_b32 v9, 1, v3")
        e("v_lshl_or_b32 v8, v9, 1, v8")
        e("s_bfe_u32 s20, s3, 0x10001")
        e("s_lshl_b32 s21, s20, 7")
        for c in range(4):
            e(f"v_xor_b32 v9, {c}, v8")
            e(f"v_lshl_add_u32 v{200+c}, v9, 5, v7")
            e(f"v_add_u32 v{200+c}, s21, v{200+c}")
        e("s_lshl_b32 s21, s20, 1")
        for c in range(2):
            e(f"s_add_u32 s22, s21, {c}")
            e(f"v_xor_b32 v9, s22, v8")
            e(f"v_lshl_add_u32 v{204+c}, v9, 5, v7")
            e(f"v_add_u32 v{204+c}, 256, v{204+c}")
        e("s_and_b32 s21, s3, 1")
        e("s_lshl_b32 s21, s21, 5")
        e("v_add_u32 v9, s21, v4")
        e("v_lshlrev_b32 v9, 10, v9")
        for m in range(4):
            e(f"v_add_u32 v10, {4*m}, v3")
            e(f"v_xor_b32 v10, v10, v4")
            e(f"v_lshl_add_u32 v{208+m}, v10, 4, v9")
        ACC = 128
        def zero_acc():
            for r in range(48): e(f"v_mov_b32 v{ACC+r}, 0")
        state = {'slot': 0}
        def compute(s):
            if s == 0: zero_acc()
            slot = s % 4
            if slot != state['slot']:
                d = (slot - state['slot']) * 24576
                for r in range(200, 206): e(f"v_add_u32 v{r}, 0x{d & 0xffffffff:x}, v{r}")
                state['slot'] = slot
            for ks in range(2):
                ksg = 2*s + ks
                for rt in range(2):
                    b = 32 + 8*ks + 4*rt
                    e(f"ds_read_b128 v[{b}:{b+3}], v{208 + (ksg & 3)} offset:{rt*16384 + (ksg >> 2)*256}")
                for c in range(6):
                    b = 48 + 24*ks + 4*c
                    for t in range(2):
                        e(f"ds_read_b64_tr_b16 v[{b+2*t}:{b+2*t+1}], v{200+c} offset:{(32*ks+4*t)*384}")
            for ks in range(2):
                e(f"s_waitcnt lgkmcnt({14 if ks == 0 else 0})")
                for c in range(6):
                    for rt in range(2):
                        acc = ACC + 4*(rt*6 + c)
                        x = 32 + 8*ks + 4*rt; w = 48 + 24*ks + 4*c
                        A, B = (w, x) if c < 4 else (x, w)
                        e(f"v_mfma_f32_16x16x32_bf16 v[{acc}:{acc+3}], v[{A}:{A+3}], v[{B}:{B+3}], v[{acc}:{acc+3}]")
        def issue_stage(st): issue(st, range(6))
        self.ring_loop(8, 4, 3, 6, issue_stage, compute, end)
        e("v_lshrrev_b32 v3, 4, v1")
        e("v_and_b32 v4, 15, v1")
        e("v_lshrrev_b32 v5, 1, v3")
        e("v_and_b32 v6, 1, v3")
        e("v_lshlrev_b32 v7, 4, v4")
        e("v_lshl_add_u32 v8, v5, 9, v7")
        e("v_lshl_add_u32 v8, v6, 3, v8")
        e("v_lshl_add_u32 v9, v6, 8, v7")
        e("v_lshl_add_u32 v9, v5, 3, v9")
        e("s_and_b32 s20, s3, 1")
        e("s_lshl_b32 s21, s4, 1")
        e("s_add_u32 s21, s21, s20")
        e("s_lshl_b32 s21, s21, 10")
        e("s_bfe_u32 s20, s3, 0x10001")
        e(f"s_mov_b32 s22, {fl(0.25*LOG2E)}")
        e("s_cmp_lt_u32 s5, 4")
        e("s_cselect_b32 s22, s22, 1.0")
        for c in range(6):
            if c < 4:
                e("s_lshl_b32 s23, s5, 3")
                e("s_lshl_b32 s6, s20, 2")
                e("s_add_u32 s23, s23, s6")
                e(f"s_add_u32 s23, s23, {c}")
            else:
                e("s_lshl_b32 s23, s5, 2")
                e("s_lshl_b32 s6, s20, 1")
                e("s_add_u32 s23, s23, s6")
                e(f"s_add_u32 s23, s23, {c-4}")
            e("s_lshl_b32 s23, s23, 16")
            e("s_add_u32 s23, s23, s21")
            for rt in range(2):
                acc = ACC + 4*(rt*6 + c)
                pk = 32 + 2*(rt + 2*(c % 2))
                if c < 4:
                    for q in range(4): e(f"v_mul_f32 v{acc+q}, s22, v{acc+q}")
                e(f"v_cvt_pk_bf16_f32 v{pk}, v{acc}, v{acc+1}")
                e(f"v_cvt_pk_bf16_f32 v{pk+1}, v{acc+2}, v{acc+3}")
                if c < 4:
                    e(f"buffer_store_dwordx2 v[{pk}:{pk+1}], v8, s[24:27], s23 offen offset:{rt*256} {self.st}")
                else:
                    e(f"buffer_store_dwordx2 v[{pk}:{pk+1}], v9, s[28:31], s23 offen offset:{rt*512} {self.st}")
        self.a.label(end)

    def phase_attn(self):
        e = self.e
        end = self.lab("att_end")
        e("s_and_b32 s4, s2, 7")
        e("s_lshl_b32 s4, s4, 2")
        e("s_bfe_u32 s20, s2, 0x20003")
        e("s_add_u32 s4, s4, s20")
        e("s_lshr_b32 s5, s2, 5")
        self.srd(8, P_WS, WS_QK, 4*MB)
        self.srd(12, P_WS, WS_V, 2*MB)
        self.srd(16, P_WS, WS_O, 2*MB)
        e("s_and_b32 s6, s3, 3")
        e("s_lshr_b32 s7, s3, 2")
        e("v_lshlrev_b32 v2, 4, v1")
        QA, QB = 8, 12
        e("s_lshl_b32 s20, s5, 3")
        e("s_lshl_b32 s21, s6, 1")
        e("s_add_u32 s20, s20, s21")
        e("s_lshl_b32 s20, s20, 10")
        e("s_lshl_b32 s21, s4, 16")
        e("s_add_u32 s20, s20, s21")
        e(f"buffer_load_dwordx4 v[{QA}:{QA+3}], v2, s[8:11], s20 offen")
        e(f"buffer_load_dwordx4 v[{QB}:{QB+3}], v2, s[8:11], s20 offen offset:1024")
        e("s_lshl_b32 s22, s4, 16")
        e(f"s_add_u32 s21, s22, {32*65536}")
        e("s_lshl_b32 s23, s3, 10")
        e("s_add_u32 s21, s21, s23")
        e("s_add_u32 s22, s22, s23")
        for c in range(4):
            for half in range(2):
                t = 8*c + 32*half
                e(f"s_add_u32 s20, s21, {t*1024}")
                self.dma(2, 8, "s20", f"s_add_u32 m0, s23, {t*1024}")
                e(f"s_add_u32 s20, s22, {t*1024}")
                self.dma(2, 12, "s20", f"s_add_u32 m0, s23, {65536 + t*1024}")
        FLAG = 131072 + 20480
        e(f"v_mov_b32 v3, {FLAG}")
        e("v_mov_b32 v4, 0")
        e("ds_write_b32 v3, v4")
        SA, SB = 32, 48
        PA, PB = 64, 72
        OA, OB = 80, 96
        CA, CB = 112, 128
        KF = 144
        VF = 152
        AK, AV = 4, 5
        e("v_and_b32 v6, 31, v1")
        e("v_and_b32 v7, 27, v6")
        e("v_cmp_eq_u32 vcc, 16, v7")
        e("v_mov_b32 v16, 0x3f803f80")
        e("v_cndmask_b32 v16, 0, v16, vcc")
        for r in range(16): e(f"v_mov_b32 v{VF+r}, v16")
        e("v_cmp_gt_u32 s[30:31], 16, v6")
        for r in range(16):
            e(f"v_mov_b32 v{CA+r}, 0"); e(f"v_mov_b32 v{CB+r}, 0")
        e("s_mov_b32 s33, 0")
        lrestart = self.lab("att_restart")
        self.a.label(lrestart)
        for r in range(16):
            e(f"v_mov_b32 v{OA+r}, 0"); e(f"v_mov_b32 v{OB+r}, 0")
        e("s_lshl_b32 s20, s7, 15")
        e(f"v_add_u32 v{AK}, s20, v2")
        e("v_lshrrev_b32 v6, 5, v1")
        e("v_and_b32 v7, 15, v1")
        e("v_lshlrev_b32 v7, 4, v7")
        e("v_lshl_add_u32 v7, v6, 8, v7")
        e("s_add_u32 s20, s20, 65536")
        e(f"v_add_u32 v{AV}, s20, v7")
        def rdK(buf, off): e(f"ds_read_b128 v[{KF+4*buf}:{KF+4*buf+3}], v{AK} offset:{off}")
        def rdV(buf, off):
            e("s_mov_b64 exec, s[30:31]")
            e(f"ds_read_b128 v[{VF+8*buf}:{VF+8*buf+3}], v{AV} offset:{off}")
            e(f"ds_read_b128 v[{VF+8*buf+4}:{VF+8*buf+7}], v{AV} offset:{off+512}")
            e("s_mov_b64 exec, -1")
        def qk(S, C, Q, buf): e(f"v_mfma_f32_32x32x16_bf16 v[{S}:{S+15}], v[{KF+4*buf}:{KF+4*buf+3}], v[{Q}:{Q+3}], v[{C}:{C+15}]")
        def pv(O, P, buf, mf): e(f"v_mfma_f32_32x32x16_bf16 v[{O}:{O+15}], v[{VF+8*buf+4*mf}:{VF+8*buf+4*mf+3}], v[{P+4*mf}:{P+4*mf+3}], v[{O}:{O+15}]")
        def step(S, P, first, mid1, mid2, pre=None):
            if pre: pre()
            first()
            k = 0
            for j in range(16):
                e(f"v_exp_f32 v{S+j}, v{S+j}")
                if j >= 3 and j % 2 == 1:
                    e(f"v_cvt_pk_bf16_f32 v{P+k}, v{S+2*k}, v{S+2*k+1}"); k += 1
                if j == 4 and mid1: mid1()
                if j == 10 and mid2: mid2()
            while k < 8:
                e(f"v_cvt_pk_bf16_f32 v{P+k}, v{S+2*k}, v{S+2*k+1}"); k += 1
        e("s_waitcnt vmcnt(12) lgkmcnt(0)")
        e("s_barrier")
        rdK(0, 0); rdV(0, 0)
        for r in range(8): e(f"v_mov_b32 v{PB+r}, 0")
        e("s_waitcnt lgkmcnt(0)")
        qk(SA, CA, QA, 0)
        e("s_mov_b64 exec, s[30:31]")
        for r in range(8): e(f"v_mov_b32 v{VF+8+r}, 0")
        e("s_mov_b64 exec, -1")
        e("s_mov_b32 s34, 0")
        loop = self.lab("att_loop")
        self.a.label(loop)
        nb = self.lab("att_nobar")
        e("s_and_b32 s20, s34, 3")
        e("s_cmp_lg_u32 s20, 3")
        e(f"s_cbranch_scc1 {nb}")
        w1 = self.lab("att_w1"); w2 = self.lab("att_w2")
        e("s_cmp_lg_u32 s34, 3")
        e(f"s_cbranch_scc1 {w1}")
        e("s_waitcnt vmcnt(8)")
        self.a.label(w1)
        e("s_cmp_lg_u32 s34, 7")
        e(f"s_cbranch_scc1 {w2}")
        e("s_waitcnt vmcnt(4)")
        self.a.label(w2)
        e("s_cmp_lt_u32 s34, 11")
        w3 = self.lab("att_w3")
        e(f"s_cbranch_scc1 {w3}")
        e("s_waitcnt vmcnt(0)")
        self.a.label(w3)
        e("s_barrier")
        self.a.label(nb)
        def preA0(): rdK(1, 1024)
        step(SA, PA, lambda: qk(SB, CB, QB, 0), lambda: pv(OB, PB, 1, 0), lambda: pv(OB, PB, 1, 1), pre=preA0)
        def preB0():
            rdV(1, 1024)
            e("s_waitcnt lgkmcnt(2)")
        step(SB, PB, lambda: qk(SA, CA, QA, 1), lambda: pv(OA, PA, 0, 0), lambda: pv(OA, PA, 0, 1), pre=preB0)
        def preA1():
            rdK(0, 2048)
        step(SA, PA, lambda: qk(SB, CB, QB, 1), lambda: pv(OB, PB, 0, 0), lambda: pv(OB, PB, 0, 1), pre=preA1)
        def preB1():
            rdV(0, 2048)
            e("s_waitcnt lgkmcnt(2)")
        step(SB, PB, lambda: qk(SA, CA, QA, 0), lambda: pv(OA, PA, 1, 0), lambda: pv(OA, PA, 1, 1), pre=preB1)
        e(f"v_add_u32 v{AK}, 2048, v{AK}")
        e(f"v_add_u32 v{AV}, 2048, v{AV}")
        e("s_add_u32 s34, s34, 1")
        e("s_cmp_lt_u32 s34, 16")
        e(f"s_cbranch_scc1 {loop}")
        pv(OB, PB, 1, 0); pv(OB, PB, 1, 1)
        SCR = 131072
        lk1 = self.lab("att_k1"); lflag = self.lab("att_flag")
        e("s_lshl_b32 s20, s6, 12")
        e("s_mul_i32 s20, s6, 5120")
        e(f"s_add_u32 s20, s20, {SCR}")
        e("v_lshlrev_b32 v6, 2, v1")
        e("v_add_u32 v6, s20, v6")
        e("s_cmp_eq_u32 s7, 0")
        e(f"s_cbranch_scc1 {lk1}")
        for r in range(9):
            e(f"ds_write_b32 v6, v{OA+r} offset:{256*r}")
            e(f"ds_write_b32 v6, v{OB+r} offset:{256*(9+r)}")
        e("s_waitcnt lgkmcnt(0)")
        e("s_barrier")
        e(f"s_branch {lflag}")
        self.a.label(lk1)
        e("s_barrier")
        for r in range(9):
            e(f"ds_read_b32 v{SA+r}, v6 offset:{256*r}")
            e(f"ds_read_b32 v{SB+r}, v6 offset:{256*(9+r)}")
        e("s_waitcnt lgkmcnt(0)")
        for r in range(9):
            e(f"v_add_f32 v{OA+r}, v{OA+r}, v{SA+r}")
            e(f"v_add_f32 v{OB+r}, v{OB+r}, v{SB+r}")
        e(f"v_mov_b32 v20, {fl(2.0**-24)}")
        e(f"v_mov_b32 v21, {fl(2.0**40)}")
        e(f"v_mov_b32 v22, 0x7f7fffff")
        e("s_mov_b64 s[36:37], -1")
        for O in (OA, OB):
            e(f"v_cmp_ge_f32 vcc, v{O+8}, v20"); e("s_and_b64 s[36:37], s[36:37], vcc")
            e(f"v_cmp_le_f32 vcc, v{O+8}, v21"); e("s_and_b64 s[36:37], s[36:37], vcc")
            for r in range(8):
                e(f"v_cmp_le_f32 vcc, |v{O+r}|, v22"); e("s_and_b64 s[36:37], s[36:37], vcc")
        lok = self.lab("att_ok")
        e("s_cmp_eq_u64 s[36:37], -1")
        e(f"s_cbranch_scc1 {lok}")
        e(f"v_mov_b32 v3, {FLAG}")
        e("v_mov_b32 v20, 1")
        e("ds_write_b32 v3, v20")
        self.a.label(lok)
        e("s_waitcnt lgkmcnt(0)")
        self.a.label(lflag)
        e("s_barrier")
        e(f"v_mov_b32 v3, {FLAG}")
        e("ds_read_b32 v20, v3")
        e("s_waitcnt lgkmcnt(0)")
        e("v_readfirstlane_b32 s20, v20")
        lfin = self.lab("att_fin"); lslow = self.lab("att_slow")
        e("s_cmp_eq_u32 s33, 1")
        e(f"s_cbranch_scc1 {lfin}")
        e("s_cmp_lg_u32 s20, 0")
        e(f"s_cbranch_scc1 {lslow}")
        self.a.label(lfin)
        e("s_cmp_lg_u32 s7, 0")
        e(f"s_cbranch_scc1 {end}")
        e("s_lshl_b32 s20, s5, 3")
        e("s_lshl_b32 s21, s6, 1")
        e("s_add_u32 s20, s20, s21")
        e("s_lshl_b32 s20, s20, 15")
        e("s_lshl_b32 s21, s4, 10")
        e("s_add_u32 s20, s20, s21")
        e("s_add_u32 s21, s20, 32768")
        for (O, so, pk) in ((OA, 20, 32), (OB, 21, 36)):
            e(f"v_rcp_f32 v20, v{O+8}")
            for r in range(8): e(f"v_mul_f32 v{O+r}, v{O+r}, v20")
            for q in range(4): e(f"v_cvt_pk_bf16_f32 v{pk+q}, v{O+2*q}, v{O+2*q+1}")
            e(f"buffer_store_dwordx4 v[{pk}:{pk+3}], v2, s[16:19], s{so} offen {self.st}")
        e(f"s_branch {end}")
        self.a.label(lslow)
        e("s_mov_b32 s33, 1")
        e("s_lshl_b32 s20, s7, 15")
        e(f"v_add_u32 v{AK}, s20, v2")
        e("v_mov_b32 v20, 0xff800000"); e("v_mov_b32 v21, 0xff800000")
        e("s_mov_b32 s34, 0")
        sl = self.lab("att_sl")
        self.a.label(sl)
        rdK(0, 0)
        e("s_waitcnt lgkmcnt(0)")
        e(f"v_mfma_f32_32x32x16_bf16 v[{SA}:{SA+15}], v[{KF}:{KF+3}], v[{QA}:{QA+3}], 0")
        e(f"v_mfma_f32_32x32x16_bf16 v[{SB}:{SB+15}], v[{KF}:{KF+3}], v[{QB}:{QB+3}], 0")
        for r in range(0, 16, 2):
            e(f"v_max3_f32 v20, v20, v{SA+r}, v{SA+r+1}")
        for r in range(0, 16, 2):
            e(f"v_max3_f32 v21, v21, v{SB+r}, v{SB+r+1}")
        e(f"v_add_u32 v{AK}, 1024, v{AK}")
        e("s_add_u32 s34, s34, 1")
        e("s_cmp_lt_u32 s34, 32")
        e(f"s_cbranch_scc1 {sl}")
        for r in (20, 21):
            e(f"v_mov_b32 v22, v{r}")
            e(f"v_permlane32_swap_b32 v{r}, v22")
            e(f"v_max_f32 v{r}, v{r}, v22")
        e("s_lshl_b32 s20, s3, 9")
        e(f"s_add_u32 s20, s20, {SCR}")
        e("v_lshlrev_b32 v6, 2, v1")
        e("v_add_u32 v7, s20, v6")
        e("s_barrier")
        e("ds_write_b32 v7, v20")
        e("ds_write_b32 v7, v21 offset:256")
        e("s_waitcnt lgkmcnt(0)")
        e("s_barrier")
        e("s_xor_b32 s20, s3, 4")
        e("s_lshl_b32 s20, s20, 9")
        e(f"s_add_u32 s20, s20, {SCR}")
        e("v_add_u32 v7, s20, v6")
        e("ds_read_b32 v22, v7")
        e("ds_read_b32 v23, v7 offset:256")
        e("s_waitcnt lgkmcnt(0)")
        e("v_max_f32 v20, v20, v22")
        e("v_max_f32 v21, v21, v23")
        for r in range(16):
            e(f"v_sub_f32 v{CA+r}, 0, v20"); e(f"v_sub_f32 v{CB+r}, 0, v21")
        e("s_barrier")
        e(f"s_branch {lrestart}")
        self.a.label(end)

    def phase_proj(self, which):
        e = self.e
        end = self.lab("proj_end")
        wo = which == 'wo'
        NK16 = 32 if wo else 56
        NCH = NK16 // 8
        NSLOT = 4
        e("s_and_b32 s20, s2, 7")
        e("s_lshr_b32 s21, s2, 3")
        e("s_and_b32 s4, s20, 3")
        e("s_lshl_b32 s4, s4, 3")
        e("s_and_b32 s22, s21, 7")
        e("s_add_u32 s4, s4, s22")
        e("s_lshr_b32 s5, s20, 2")
        e("s_lshl_b32 s5, s5, 2")
        e("s_lshr_b32 s22, s21, 3")
        e("s_add_u32 s5, s5, s22")
        if wo:
            self.srd(8, P_WS, WS_O, 2*MB)
            self.srd(12, P_WO, 0, 512*512*2)
            self.srd(16, P_X, 0, 2*MB)
            self.srd(24, P_WS, WS_X1, 2*MB)
        else:
            self.srd(8, P_WS, WS_Y, 64*56*1024)
            self.srd(12, P_WOUT, 0, 896*512*2)
            self.srd(16, P_WS, WS_X1, 2*MB)
            self.srd(24, P_OUT, 0, 2*MB)
        self.srd(28, P_WS, WS_MOD, 12288)
        e("v_lshlrev_b32 v2, 4, v1")
        e("v_lshrrev_b32 v3, 3, v1")
        e("v_and_b32 v4, 7, v1")
        e("v_bfe_u32 v5, v3, 1, 1")
        e("v_lshlrev_b32 v5, 2, v5")
        e("v_xor_b32 v4, v4, v5")
        e("v_lshlrev_b32 v3, 10, v3")
        e("v_lshl_add_u32 v3, v4, 4, v3")
        e("s_lshl_b32 s20, s5, 7")
        e("v_add_u32 v3, s20, v3")
        e(f"s_mul_i32 s6, s4, {2*NK16*1024}")
        def issue_piece(ch, p_expr_is_X, sidx, const_p):
            pass
        def issue(ch, plist, sreg):
            slot = ch % NSLOT
            for off in plist:
                if off < 16:
                    tt = off >> 3; ko = off & 7
                    e(f"s_lshl_b32 s21, s{sreg}, 10")
                    e(f"s_add_u32 s20, s21, s6")
                    e(f"s_add_u32 s20, s20, {tt*NK16*1024 + (ch*8+ko)*1024}")
                    self.dma(2, 8, "s20", f"s_add_u32 m0, s21, {slot*32768 + off*1024}")
                else:
                    e(f"s_lshl_b32 s21, s{sreg}, 10")
                    e(f"s_lshl_b32 s20, s{sreg}, 13")
                    e(f"s_add_u32 s20, s20, {(ch*128 + (off-16)*8)*1024}")
                    self.dma(3, 12, "s20", f"s_add_u32 m0, s21, {slot*32768 + off*1024}")
        for ch in range(NSLOT): issue(ch, (0, 8, 16, 24), 3)
        e("s_and_b32 s7, s3, 3")
        e("s_and_b32 s20, s3, 1")
        e("s_lshl_b32 s20, s20, 13")
        e("v_add_u32 v8, s20, v2")
        e("v_lshrrev_b32 v4, 4, v1")
        e("v_and_b32 v5, 15, v1")
        e("v_lshrrev_b32 v6, 2, v5")
        e("v_and_b32 v7, 3, v5")
        e("v_lshrrev_b32 v10, 1, v4")
        e("v_and_b32 v11, 1, v4")
        if wo: e("v_lshl_add_u32 v12, v10, 2, v6")
        else:  e("v_lshl_add_u32 v12, v10, 3, v6")
        e("v_lshlrev_b32 v12, 7, v12")
        e("v_bfe_u32 v13, v6, 1, 1")
        e("s_bfe_u32 s20, s3, 0x10001")
        e("v_xor_b32 v13, s20, v13")
        e("v_lshl_add_u32 v12, v13, 6, v12")
        e("v_lshl_add_u32 v12, v11, 5, v12")
        e("v_lshl_add_u32 v12, v7, 3, v12")
        e("v_add_u32 v9, 16384, v12")
        tstep = (8 if wo else 4) * 128
        ACC = 64
        state = {'slot': 0}
        def compute(ch):
            if ch == 0:
                for r in range(16): e(f"v_mov_b32 v{ACC+r}, 0")
            slot = ch % NSLOT
            if slot != state['slot']:
                d = (slot - state['slot']) * 32768
                e(f"v_add_u32 v8, 0x{d & 0xffffffff:x}, v8")
                e(f"v_add_u32 v9, 0x{d & 0xffffffff:x}, v9")
                state['slot'] = slot
            for ks in range(8):
                b = 96 + 8*ks
                e(f"ds_read_b128 v[{b}:{b+3}], v8 offset:{ks*1024}")
                e(f"ds_read_b64_tr_b16 v[{b+4}:{b+5}], v9 offset:{ks*2048}")
                e(f"ds_read_b64_tr_b16 v[{b+6}:{b+7}], v9 offset:{ks*2048+tstep}")
            for ks in range(8):
                b = 96 + 8*ks
                e(f"s_waitcnt lgkmcnt({min(15, 3*(7-ks))})")
                e(f"v_mfma_f32_32x32x16_bf16 v[{ACC}:{ACC+15}], v[{b+4}:{b+7}], v[{b}:{b+3}], v[{ACC}:{ACC+15}]")
        def issue_stage(ch): issue(ch, (0, 4, 8, 12, 16, 20, 24, 28), 7)
        self.ring_loop(NCH, NSLOT, 4, 8, issue_stage, compute, end)
        e("v_and_b32 v3, 31, v1")
        e("v_lshrrev_b32 v4, 5, v1")
        e("s_and_b32 s20, s3, 1")
        e("s_lshl_b32 s20, s20, 5")
        e("s_lshl_b32 s21, s4, 6")
        e("s_add_u32 s20, s20, s21")
        e("v_add_u32 v3, s20, v3")
        e("v_lshlrev_b32 v3, 10, v3")
        e("v_lshl_add_u32 v3, v4, 3, v3")
        e("s_bfe_u32 s20, s3, 0x10001")
        e("s_lshl_b32 s20, s20, 6")
        e("s_lshl_b32 s21, s5, 7")
        e("s_add_u32 s20, s20, s21")
        e("v_lshlrev_b32 v5, 4, v4")
        e("s_lshl_b32 s21, s20, 1")
        e(f"s_add_u32 s21, s21, {(2 if wo else 5)*2048}")
        for g in range(4):
            e(f"buffer_load_dwordx2 v[{32+2*g}:{33+2*g}], v3, s[16:19], s20 offen offset:{16*g}")
            e(f"buffer_load_dwordx4 v[{40+4*g}:{43+4*g}], v5, s[28:31], s21 offen offset:{32*g}")
        e("s_waitcnt vmcnt(0)")
        for g in range(4):
            for q in range(2):
                e(f"v_lshlrev_b32 v20, 16, v{32+2*g+q}")
                e(f"v_and_b32 v21, 0xffff0000, v{32+2*g+q}")
                e(f"v_fmac_f32 v20, v{40+4*g+2*q}, v{ACC+4*g+2*q}")
                e(f"v_fmac_f32 v21, v{41+4*g+2*q}, v{ACC+4*g+2*q+1}")
                e(f"v_cvt_pk_bf16_f32 v{32+2*g+q}, v20, v21")
            e(f"buffer_store_dwordx2 v[{32+2*g}:{33+2*g}], v3, s[24:27], s20 offen offset:{16*g} {self.st if wo else ''}")
        self.a.label(end)

    def phase_win(self):
        e = self.e
        end = self.lab("win_end")
        e("s_and_b32 s20, s2, 7")
        e("s_lshr_b32 s21, s2, 3")
        e("s_and_b32 s4, s20, 3")
        e("s_lshl_b32 s4, s4, 3")
        e("s_and_b32 s22, s21, 7")
        e("s_add_u32 s4, s4, s22")
        e("s_lshr_b32 s5, s20, 2")
        e("s_lshl_b32 s5, s5, 2")
        e("s_lshr_b32 s22, s21, 3")
        e("s_add_u32 s5, s5, s22")
        self.srd(8, P_WS, WS_X1, 2*MB)
        self.srd(12, P_WS, WS_MOD, 12288)
        self.srd(16, P_WIN, 0, 512*1792*2)
        self.srd(24, P_WS, WS_Z1, 128*56*512)
        self.srd(28, P_WS, WS_U, 56*64*1024)
        self.srd(36, P_WS, WS_ST, 2048*64)
        e("s_lshl_b32 s6, s4, 16")
        self.ln_issue_loads(8, 6, 3, 4, 12)
        e("s_and_b32 s7, s3, 3")
        for m in range(7):
            d = 192 + m
            e(f"s_lshl_b32 s20, s7, 6")
            e(f"s_add_u32 s20, s20, {256*m}")
            e(f"v_add_u32 v200, s20, v1")
            e(f"v_mul_u32_u24 v201, 2341, v200")
            e(f"v_lshrrev_b32 v201, 16, v201")
            e(f"v_mul_u32_u24 v202, 28, v201")
            e(f"v_sub_u32 v202, v200, v202")
            e(f"v_bfe_u32 v203, v201, 3, 1")
            e(f"v_lshlrev_b32 v203, 1, v203")
            e(f"v_xor_b32 v202, v202, v203")
            e(f"v_lshlrev_b32 v203, 4, v202")
            e(f"s_mul_i32 s20, s5, 224")
            e(f"s_add_u32 s21, s20, 1792")
            e(f"v_add_u32 v204, s21, v203")
            e(f"s_sub_u32 s21, s20, 224")
            e(f"v_add_u32 v205, s21, v203")
            e(f"v_cmp_gt_u32 vcc, 14, v202")
            e(f"v_cndmask_b32 v204, v205, v204, vcc")
            e(f"v_mul_u32_u24 v201, 3584, v201")
            e(f"v_add_u32 v{d}, v201, v204")
        e("s_lshl_b32 s7, s7, 10")
        e("s_add_u32 s7, s7, 65536")
        SL = 28672
        def issue(stage, ms):
            slot = stage % 3
            e(f"s_mov_b32 s23, {stage*64*3584}")
            for m in ms:
                self.dma(192+m, 16, "s23", f"s_add_u32 m0, s7, {slot*SL + m*4096}")
        lodd = self.lab("win_iodd"); ljoin = self.lab("win_ijoin")
        e("s_cmp_ge_u32 s3, 4")
        e(f"s_cbranch_scc1 {lodd}")
        for st in range(3): issue(st, (0, 2, 4, 6))
        e(f"s_branch {ljoin}")
        self.a.label(lodd)
        for st in range(3): issue(st, (1, 3, 5, 5))
        self.a.label(ljoin)
        self.ln_compute(12)
        e("v_lshrrev_b32 v3, 4, v1")
        e("v_and_b32 v4, 15, v1")
        e("v_lshrrev_b32 v5, 2, v4")
        e("v_and_b32 v6, 3, v4")
        e("v_lshl_add_u32 v7, v3, 3, v5")
        e("v_mul_u32_u24 v7, 448, v7")
        e("v_lshl_add_u32 v7, v6, 3, v7")
        e("v_add_u32 v7, 65536, v7")
        e("v_and_b32 v8, 1, v3")
        e("v_lshlrev_b32 v8, 5, v8")
        e("v_add_u32 v200, v7, v8")
        e("v_sub_u32 v201, v7, v8")
        e("s_and_b32 s21, s3, 1")
        e("s_lshl_b32 s21, s21, 5")
        e("v_add_u32 v9, s21, v4")
        e("v_lshlrev_b32 v9, 10, v9")
        for m in range(4):
            e(f"v_add_u32 v10, {4*m}, v3")
            e(f"v_xor_b32 v10, v10, v4")
            e(f"v_lshl_add_u32 v{208+m}, v10, 4, v9")
        ACC = 128
        state = {'slot': 0}
        def compute(s):
            if s == 0:
                for r in range(56): e(f"v_mov_b32 v{ACC+r}, 0")
            slot = s % 3
            if slot != state['slot']:
                d = (slot - state['slot']) * SL
                for r in (200, 201): e(f"v_add_u32 v{r}, 0x{d & 0xffffffff:x}, v{r}")
                state['slot'] = slot
            l1 = self.lab("win_z1"); l2 = self.lab("win_j")
            e("s_bitcmp1_b32 s3, 1")
            e(f"s_cbranch_scc1 {l1}")
            for jh in range(2):
                if jh == 1: self.a.label(l1)
                for ks in range(2):
                    ksg = 2*s + ks
                    for rt in range(2):
                        b = 32 + 8*ks + 4*rt
                        e(f"ds_read_b128 v[{b}:{b+3}], v{208 + (ksg & 3)} offset:{rt*16384 + (ksg >> 2)*256}")
                    for c in range(7):
                        sg = 7*jh + c
                        b = 48 + 28*ks + 4*c
                        for t in range(2):
                            e(f"ds_read_b64_tr_b16 v[{b+2*t}:{b+2*t+1}], v{200 + (sg & 1)} offset:{(32*ks+4*t)*448 + sg*32}")
                for ks in range(2):
                    e(f"s_waitcnt lgkmcnt({15 if ks == 0 else 0})")
                    if ks == 0: e("s_waitcnt lgkmcnt(15)")
                    for c in range(7):
                        for rt in range(2):
                            acc = ACC + 4*(rt*7 + c)
                            x = 32 + 8*ks + 4*rt; w = 48 + 28*ks + 4*c
                            A, B = (x, w) if jh == 0 else (w, x)
                            e(f"v_mfma_f32_16x16x32_bf16 v[{acc}:{acc+3}], v[{A}:{A+3}], v[{B}:{B+3}], v[{acc}:{acc+3}]")
                if jh == 0: e(f"s_branch {l2}")
            self.a.label(l2)
        def issue_stage(st): issue(st, range(7))
        self.ring_loop(8, 3, 4, 7, issue_stage, compute, end)
        c0 = -2.0*math.sqrt(2.0/math.pi)*LOG2E
        c1 = c0*0.044715
        e(f"s_mov_b32 s20, {fl(c1)}")
        e(f"v_mov_b32 v20, {fl(c0)}")
        for r in range(56):
            z = ACC + r
            t = 24 + (r % 4)
            e(f"v_mul_f32 v{t}, v{z}, v{z}")
            e(f"v_fma_f32 v{t}, v{t}, s20, v20")
            e(f"v_mul_f32 v{t}, v{t}, v{z}")
            e(f"v_exp_f32 v{t}, v{t}")
            e(f"v_add_f32 v{t}, 1.0, v{t}")
            e(f"v_rcp_f32 v{t}, v{t}")
            e(f"v_mul_f32 v{z}, v{z}, v{t}")
        e("v_lshrrev_b32 v3, 4, v1")
        e("v_and_b32 v4, 15, v1")
        lz1 = self.lab("win_ez1")
        e("s_bitcmp1_b32 s3, 1")
        e(f"s_cbranch_scc1 {lz1}")
        e("v_lshrrev_b32 v5, 1, v3")
        e("v_lshlrev_b32 v5, 8, v5")
        e("v_lshl_add_u32 v5, v4, 4, v5")
        e("v_and_b32 v6, 1, v3")
        e("v_lshl_add_u32 v5, v6, 3, v5")
        e("s_and_b32 s20, s3, 1")
        e("s_lshl_b32 s21, s4, 1")
        e("s_add_u32 s20, s20, s21")
        e("s_lshl_b32 s20, s20, 10")
        e("s_mul_i32 s21, s5, 0x70000")
        e("s_add_u32 s20, s20, s21")
        for c in range(7):
            e(f"s_add_u32 s21, s20, {c*65536}")
            for rt in range(2):
                acc = ACC + 4*(rt*7 + c)
                pk = 32 + 2*(rt + 2*(c % 2))
                e(f"v_cvt_pk_bf16_f32 v{pk}, v{acc}, v{acc+1}")
                e(f"v_cvt_pk_bf16_f32 v{pk+1}, v{acc+2}, v{acc+3}")
                e(f"buffer_store_dwordx2 v[{pk}:{pk+1}], v5, s[28:31], s21 offen offset:{rt*512} {self.st}")
        regs = []
        for rt in range(2):
            for r in range(4):
                sreg = 40 + 2*(rt*4 + r)
                a0 = ACC + 4*(rt*7) + r
                e(f"v_mov_b32 v{sreg}, v{a0}")
                e(f"v_mul_f32 v{sreg+1}, v{a0}, v{a0}")
                for c in range(1, 7):
                    a = ACC + 4*(rt*7 + c) + r
                    e(f"v_add_f32 v{sreg}, v{sreg}, v{a}")
                    e(f"v_fmac_f32 v{sreg+1}, v{a}, v{a}")
                regs += [sreg, sreg+1]
        self.dpp_reduce16(regs)
        e("s_and_b32 s20, s3, 1")
        e("s_lshl_b32 s20, s20, 5")
        e("s_lshl_b32 s21, s4, 6")
        e("s_add_u32 s20, s20, s21")
        e("s_lshl_b32 s20, s20, 6")
        e("s_lshl_b32 s21, s5, 3")
        e("s_add_u32 s20, s20, s21")
        e("v_lshlrev_b32 v5, 8, v3")
        e("v_cmp_eq_u32 vcc, 0, v4")
        e("s_and_saveexec_b64 s[40:41], vcc")
        for rt in range(2):
            for r in range(4):
                sreg = 40 + 2*(rt*4 + r)
                e(f"buffer_store_dwordx2 v[{sreg}:{sreg+1}], v5, s[36:39], s20 offen offset:{(16*rt+r)*64} {self.st}")
        e("s_mov_b64 exec, s[40:41]")
        e(f"s_branch {end}")
        self.a.label(lz1)
        e("v_lshlrev_b32 v5, 3, v1")
        e("s_and_b32 s20, s3, 1")
        e("s_lshl_b32 s20, s20, 1")
        e("s_lshl_b32 s21, s4, 2")
        e("s_add_u32 s20, s20, s21")
        e("s_mul_i32 s20, s20, 56")
        e("s_mul_i32 s21, s5, 7")
        e("s_add_u32 s20, s20, s21")
        e("s_lshl_b32 s20, s20, 9")
        e(f"s_add_u32 s21, s20, {56*512}")
        for c in range(7):
            for rt in range(2):
                acc = ACC + 4*(rt*7 + c)
                pk = 32 + 2*(rt + 2*(c % 2))
                e(f"v_cvt_pk_bf16_f32 v{pk}, v{acc}, v{acc+1}")
                e(f"v_cvt_pk_bf16_f32 v{pk+1}, v{acc+2}, v{acc+3}")
                e(f"buffer_store_dwordx2 v[{pk}:{pk+1}], v5, s[24:27], s{20+rt} offen offset:{c*512} {self.st}")
        self.a.label(end)

    def phase_norm(self):
        e = self.e
        end = self.lab("nrm_end")
        e("s_lshr_b32 s4, s2, 2")
        e("s_and_b32 s5, s2, 3")
        self.srd(8, P_WS, WS_U, 56*64*1024)
        self.srd(12, P_WS, WS_Z2, 56*64*1024)
        self.srd(16, P_WS, WS_ST, 2048*64)
        e("v_lshlrev_b32 v2, 4, v1")
        e("s_mul_i32 s20, s5, 14")
        e("s_add_u32 s20, s20, s3")
        e("s_lshl_b32 s20, s20, 16")
        e("s_lshl_b32 s21, s4, 10")
        e("s_add_u32 s20, s20, s21")
        e(f"s_add_u32 s21, s20, {8*65536}")
        e("buffer_load_dwordx4 v[8:11], v2, s[8:11], s20 offen")
        e("buffer_load_dwordx4 v[12:15], v2, s[8:11], s21 offen")
        e("v_lshlrev_b32 v3, 6, v0")
        e("s_lshl_b32 s22, s4, 11")
        lsk = self.lab("nrm_sk")
        e("s_cmp_lg_u32 s3, 0")
        e(f"s_cbranch_scc1 {lsk}")
        for i in range(4):
            e(f"buffer_load_dwordx4 v[{16+4*i}:{19+4*i}], v3, s[16:19], s22 offen offset:{16*i}")
        e("s_waitcnt vmcnt(0)")
        for i in range(1, 8):
            e(f"v_add_f32 v16, v16, v{16+2*i}")
            e(f"v_add_f32 v17, v17, v{17+2*i}")
        e(f"v_mul_f32 v16, {fl(1.0/896)}, v16")
        e(f"v_mul_f32 v17, {fl(1.0/896)}, v17")
        e("v_fma_f32 v17, -v16, v16, v17")
        e("v_max_f32 v17, 0, v17")
        e(f"v_add_f32 v17, {fl(1e-5)}, v17")
        e("v_rsq_f32 v17, v17")
        e("v_mul_f32 v16, v16, v17")
        e("v_sub_f32 v16, 0, v16")
        e("v_lshlrev_b32 v3, 3, v1")
        e("ds_write_b64 v3, v[16:17]")
        e("s_waitcnt lgkmcnt(0)")
        self.a.label(lsk)
        e("s_barrier")
        e("v_lshrrev_b32 v3, 4, v1")
        e("v_lshlrev_b32 v3, 6, v3")
        for i in range(4):
            e(f"ds_read_b128 v[{32+4*i}:{35+4*i}], v3 offset:{16*i}")
        e("s_waitcnt vmcnt(0) lgkmcnt(0)")
        for (src, so) in ((8, 20), (12, 21)):
            for q in range(4):
                e(f"v_lshlrev_b32 v20, 16, v{src+q}")
                e(f"v_and_b32 v21, 0xffff0000, v{src+q}")
                e(f"v_fma_f32 v20, v20, v{33+4*q}, v{32+4*q}")
                e(f"v_fma_f32 v21, v21, v{35+4*q}, v{34+4*q}")
                e(f"v_cvt_pk_bf16_f32 v{src+q}, v20, v21")
            if so == 21:
                e("s_cmp_ge_u32 s3, 6")
                e(f"s_cbranch_scc1 {end}")
            e(f"buffer_store_dwordx4 v[{src}:{src+3}], v2, s[12:15], s{so} offen {self.st}")
        self.a.label(end)

    def phase_sp(self):
        e = self.e
        end = self.lab("sp_end")
        e("s_and_b32 s20, s2, 7")
        e("s_lshr_b32 s21, s2, 3")
        e("s_and_b32 s4, s20, 3")
        e("s_lshl_b32 s4, s4, 3")
        e("s_and_b32 s22, s21, 7")
        e("s_add_u32 s4, s4, s22")
        e("s_lshr_b32 s5, s20, 2")
        e("s_lshl_b32 s5, s5, 2")
        e("s_lshr_b32 s22, s21, 3")
        e("s_add_u32 s5, s5, s22")
        self.srd(8, P_WSP, 0, 2048*2048*2)
        self.srd(12, P_WS, WS_Z2, 56*64*1024)
        self.srd(16, P_WS, WS_Z1, 128*56*512)
        self.srd(24, P_WS, WS_Y, 64*56*1024)
        self.srd(28, P_BSP, 0, 4096)
        SL = 45056
        NST = 16; NSLOT = 3
        e("v_lshlrev_b32 v2, 4, v1")
        e("s_and_b32 s7, s3, 3")
        e("v_lshrrev_b32 v3, 4, v1")
        e("v_and_b32 v4, 15, v1")
        for m in range(4):
            e(f"s_lshl_b32 s20, s7, 2")
            e(f"s_add_u32 s20, s20, {16*m}")
            e(f"v_add_u32 v5, s20, v3")
            e(f"v_and_b32 v6, 15, v5")
            e(f"v_xor_b32 v6, v6, v4")
            e(f"v_lshlrev_b32 v5, 12, v5")
            e(f"v_lshl_add_u32 v{192+m}, v6, 4, v5")
        e("s_lshl_b32 s6, s4, 18")
        e("s_mul_i32 s32, s5, 0x70000")
        e("s_lshl_b32 s33, s7, 10")
        e("s_add_u32 s32, s32, s33")
        def issue(stage, ms):
            slot = stage % NSLOT
            for m in ms:
                if m < 4:
                    e(f"s_add_u32 s23, s6, {stage*256}")
                    self.dma(192+m, 8, "s23", f"s_add_u32 m0, s33, {slot*SL + m*4096}")
                else:
                    ft = m - 4
                    e(f"s_add_u32 s23, s32, {ft*65536 + stage*4096}")
                    self.dma(2, 12, "s23", f"s_add_u32 m0, s33, {slot*SL + 16384 + ft*4096}")
        lodd = self.lab("sp_iodd"); ljoin = self.lab("sp_ijoin")
        e("s_cmp_ge_u32 s3, 4")
        e(f"s_cbranch_scc1 {lodd}")
        for st in range(NSLOT): issue(st, (0, 2, 4, 6, 8, 10))
        e(f"s_branch {ljoin}")
        self.a.label(lodd)
        for st in range(NSLOT): issue(st, (1, 3, 5, 7, 9, 9))
        self.a.label(ljoin)
        e("s_and_b32 s20, s3, 1")
        e("s_lshl_b32 s20, s20, 13")
        e("v_lshlrev_b32 v5, 8, v4")
        e("v_add_u32 v5, s20, v5")
        for ks in range(4):
            e(f"v_add_u32 v6, {4*ks}, v3")
            e(f"v_xor_b32 v6, v6, v4")
            e(f"v_lshl_add_u32 v{200+ks}, v6, 4, v5")
        e("s_bfe_u32 s20, s3, 0x10001")
        e("s_lshl_b32 s20, s20, 14")
        e("s_add_u32 s20, s20, 16384")
        e("v_add_u32 v204, s20, v2")
        ACC = 128
        state = {'slot': 0}
        def compute(s):
            if s == 0:
                for r in range(32): e(f"v_mov_b32 v{ACC+r}, 0")
            slot = s % NSLOT
            if slot != state['slot']:
                d = (slot - state['slot']) * SL
                for r in range(200, 205): e(f"v_add_u32 v{r}, 0x{d & 0xffffffff:x}, v{r}")
                state['slot'] = slot
            l1 = self.lab("sp_3"); l2 = self.lab("sp_j")
            e("s_bitcmp1_b32 s3, 1")
            e(f"s_cbranch_scc1 {l1}")
            for jj in range(2):
                nf = 4 if jj == 0 else 3
                if jj == 1: self.a.label(l1)
                for ks in range(4):
                    b = 32 + 24*ks
                    for tt in range(2):
                        e(f"ds_read_b128 v[{b+4*tt}:{b+4*tt+3}], v{200+ks} offset:{tt*4096}")
                    for f in range(nf):
                        e(f"ds_read_b128 v[{b+8+4*f}:{b+8+4*f+3}], v204 offset:{f*4096 + ks*1024}")
                n = 2 + nf
                for ks in range(4):
                    b = 32 + 24*ks
                    e(f"s_waitcnt lgkmcnt({min(15, n*(3-ks))})")
                    for f in range(nf):
                        for tt in range(2):
                            acc = ACC + 4*(tt*4 + f)
                            e(f"v_mfma_f32_16x16x32_bf16 v[{acc}:{acc+3}], v[{b+8+4*f}:{b+8+4*f+3}], v[{b+4*tt}:{b+4*tt+3}], v[{acc}:{acc+3}]")
                if jj == 0: e(f"s_branch {l2}")
            self.a.label(l2)
        def issue_stage(st): issue(st, range(11))
        self.ring_loop(NST, NSLOT, 6, 11, issue_stage, compute, end)
        e("v_lshrrev_b32 v3, 4, v1")
        e("v_and_b32 v4, 15, v1")
        e("s_and_b32 s20, s3, 1")
        e("s_lshl_b32 s21, s4, 2")
        e("s_lshl_b32 s22, s20, 1")
        e("s_add_u32 s21, s21, s22")
        e("v_lshlrev_b32 v5, 1, v4")
        e("s_lshl_b32 s22, s21, 5")
        e("buffer_load_ushort v20, v5, s[28:31], s22 offen")
        e("buffer_load_ushort v21, v5, s[28:31], s22 offen offset:32")
        e("s_bfe_u32 s23, s3, 0x10001")
        e("s_lshl_b32 s23, s23, 2")
        e("s_mul_i32 s6, s5, 7")
        e("s_add_u32 s23, s23, s6")
        e("s_mul_i32 s6, s21, 56")
        e("s_add_u32 s6, s6, s23")
        e("s_lshl_b32 s6, s6, 9")
        e(f"s_add_u32 s7, s6, {56*512}")
        e("v_lshlrev_b32 v6, 3, v1")
        for tt in range(2):
            for f in range(4):
                b = 32 + 2*(tt*4 + f)
                e(f"buffer_load_dwordx2 v[{b}:{b+1}], v6, s[16:19], s{6+tt} offen offset:{f*512}")
        e("v_lshrrev_b32 v7, 1, v3")
        e("v_lshlrev_b32 v7, 9, v7")
        e("v_lshl_add_u32 v7, v4, 4, v7")
        e("v_and_b32 v8, 1, v3")
        e("v_lshl_add_u32 v7, v8, 3, v7")
        e("s_lshl_b32 s21, s4, 1")
        e("s_add_u32 s21, s21, s20")
        e("s_mul_i32 s21, s21, 56")
        e("s_add_u32 s21, s21, s23")
        e("s_lshl_b32 s21, s21, 10")
        e("s_waitcnt vmcnt(0)")
        e("v_lshlrev_b32 v20, 16, v20")
        e("v_lshlrev_b32 v21, 16, v21")
        for f in range(4):
            if f == 3:
                e("s_bitcmp1_b32 s3, 1")
                e(f"s_cbranch_scc1 {end}")
            for tt in range(2):
                acc = ACC + 4*(tt*4 + f); b = 32 + 2*(tt*4 + f)
                for q in range(2):
                    e(f"v_lshlrev_b32 v22, 16, v{b+q}")
                    e(f"v_and_b32 v23, 0xffff0000, v{b+q}")
                    e(f"v_add_f32 v24, v{acc+2*q}, v{20+tt}")
                    e(f"v_add_f32 v25, v{acc+2*q+1}, v{20+tt}")
                    e(f"v_mul_f32 v22, v22, v24")
                    e(f"v_mul_f32 v23, v23, v25")
                    e(f"v_cvt_pk_bf16_f32 v{b+q}, v22, v23")
                e(f"buffer_store_dwordx2 v[{b}:{b+1}], v7, s[24:27], s21 offen offset:{f*1024 + tt*256} {self.st}")
        self.a.label(end)


KERNELS = [
    ("k0_mod_kernel", 96, 8192, lambda g: g.phase_mod()),
    ("k1_qkv_kernel", 256, 163840, lambda g: g.phase_qkv()),
    ("k2_att_kernel", 256, 163840, lambda g: g.phase_attn()),
    ("k3_wo_kernel", 256, 131072, lambda g: g.phase_proj('wo')),
    ("k4_win_kernel", 256, 151552, lambda g: g.phase_win()),
    ("k5_nrm_kernel", 256, 1024, lambda g: g.phase_norm()),
    ("k6_sp_kernel", 256, 135168, lambda g: g.phase_sp()),
    ("k7_out_kernel", 256, 131072, lambda g: g.phase_proj('wout')),
]

HEADER = open('cdna_kernels/' + NAME + '.s.ref').read().split('; Override launch geometry')[0]

def build(kernels=KERNELS, extra_empty=0):
    out = [HEADER]
    klist = list(kernels)
    for (name, nwg, lds, fn) in klist:
        out.append(f"; @launch kernel={name} grid=({nwg},1,1) block=(512,1,1) lds={lds}\n")
    for i in range(extra_empty):
        out.append(f"; @launch kernel=kx_empty_kernel grid=(256,1,1) block=(512,1,1) lds=0\n")
    out.append('.amdgcn_target "amdgcn-amd-amdhsa--gfx950"\n.text\n')
    names = []
    for (name, nwg, lds, fn) in klist:
        g = Gen()
        g.a.uid = 1000 * (len(names) + 1)
        endl = f"{name}_exit"
        g.prologue(nwg, endl)
        fn(g)
        g.a.label(endl)
        g.e("s_endpgm")
        g.a.fix_hazards()
        out.append(f".globl {name}\n.p2align 8\n.type {name},@function\n{name}:\n" + g.a.text())
        names.append(name)
    if extra_empty:
        out.append(".globl kx_empty_kernel\n.p2align 8\n.type kx_empty_kernel,@function\nkx_empty_kernel:\n    s_endpgm\n")
        names.append("kx_empty_kernel")
    out.append('.section .rodata,"a"\n')
    for name in names:
        out.append(f""".p2align 6
.amdhsa_kernel {name}
  .amdhsa_next_free_vgpr 256
  .amdhsa_next_free_sgpr 96
  .amdhsa_accum_offset 256
  .amdhsa_group_segment_fixed_size 0
  .amdhsa_kernarg_size 104
  .amdhsa_user_sgpr_count 2
  .amdhsa_user_sgpr_kernarg_segment_ptr 1
  .amdhsa_system_sgpr_workgroup_id_x 1
.end_amdhsa_kernel
""")
    return ''.join(out)

if __name__ == "__main__":
    extra = int(sys.argv[2]) if len(sys.argv) > 2 else 0
    txt = build(extra_empty=extra)
    path = sys.argv[1] if len(sys.argv) > 1 else 'cdna_kernels/' + NAME + '.s'
    open(path, 'w').write(txt)
    print("wrote", path, len(txt), "bytes")
```

```python
import sys, math, os
from asmlib import Asm, vr, sr

NAME = "adaLN_cond__softmax_full_mha__mixer_gmlp__prompt"
KNAME = NAME + "_kernel"
MB = 1 << 20
WS_MOD = 0
WS_ST  = 0x10000
WS_FLAG = 0x60000
WS_QK  = 1 * MB
WS_V   = 5 * MB
WS_O   = 7 * MB
WS_X1  = 9 * MB
WS_Z2  = 19 * MB
WS_Y   = 23 * MB
F0, F1, F2, F3, F4, F5 = 0x0, 0x1000, 0x3000, 0x4000, 0x5000, 0x6000
P_X, P_WQKV, P_WO, P_BX, P_WIN, P_WSP, P_BSP, P_WOUT, P_C, P_WMOD, P_OUT, P_DBG, P_WS = [64 + 2*i for i in range(13)]
LOG2E = 1.4426950408889634
S_QB, S_HEAD, S_NONCE, SRD_F = 57, 58, 59, 60
ST = "sc0 sc1"
SPIN_CAP = 1 << 17

def f2u(x):
    import struct
    return struct.unpack('<I', struct.pack('<f', x))[0]
def fl(x): return f"0x{f2u(x):08x}"

class Gen:
    STAMPS = False
    PREFETCH = True
    def __init__(self):
        self.a = Asm()
        self.nstamp = 0
    def e(self, s): self.a.e(s)
    def lab(self, b): return self.a.newlabel(b)

    def stamp(self, i):
        if not Gen.STAMPS: return
        e = self.e
        sk = self.lab("stamp")
        e("s_cmp_ge_u32 s2, 4"); e(f"s_cbranch_scc1 {sk}")
        e("s_and_b32 s46, s3, 3"); e("s_cmp_lg_u32 s46, 0"); e(f"s_cbranch_scc1 {sk}")
        e("s_memtime s[46:47]"); e("s_waitcnt lgkmcnt(0)")
        e("s_sub_u32 s46, s46, s90")
        e(f"v_writelane_b32 v255, s46, {i}")
        self.a.label(sk)

    def srd(self, d, ptr, off, size):
        e = self.e
        if off:
            e(f"s_add_u32 s{d}, s{ptr}, 0x{off:x}"); e(f"s_addc_u32 s{d+1}, s{ptr+1}, 0")
        else:
            e(f"s_mov_b32 s{d}, s{ptr}"); e(f"s_mov_b32 s{d+1}, s{ptr+1}")
        e(f"s_mov_b32 s{d+2}, 0x{size:x}"); e(f"s_mov_b32 s{d+3}, 0x20000")

    def bf16_round(self, d, s):
        self.e(f"v_cvt_pk_bf16_f32 v{d}, v{s}, v{s}")
        self.e(f"v_lshlrev_b32 v{d}, 16, v{d}")

    def dpp_reduce16(self, regs):
        for m in ("quad_perm:[1,0,3,2]", "quad_perm:[2,3,0,1]", "row_half_mirror", "row_mirror"):
            for r in regs:
                self.e(f"v_add_f32_dpp v{r}, v{r}, v{r} {m} row_mask:0xf bank_mask:0xf")

    def dma(self, voff, srd, soff, m0expr, width="dwordx4"):
        self.e(m0expr)
        self.e("s_nop 0")
        self.e(f"buffer_load_{width} v{voff}, {sr(srd,4)}, {soff} offen lds")

    def phase_end(self):
        self.e("s_waitcnt vmcnt(0) lgkmcnt(0)")
        self.e("s_barrier")

    def signal(self, soff_code, nrep=1, rep_stride=0):
        e = self.e
        sk = self.lab("sig")
        e("s_cmp_lg_u32 s3, 7"); e(f"s_cbranch_scc1 {sk}")
        soff_code()
        e(f"v_mov_b32 v250, s{S_NONCE}")
        e(f"v_mul_u32_u24 v251, {max(rep_stride,1)}, v1")
        e(f"s_mov_b64 exec, {(1 << nrep) - 1}")
        e(f"buffer_store_dword v250, v251, s[{SRD_F}:{SRD_F+3}], s46 offen {ST}")
        e("s_mov_b64 exec, -1")
        self.a.label(sk)

    def wait_flags(self, polls):
        e = self.e
        sk = self.lab("wf")
        e("s_cmp_lg_u32 s3, 7"); e(f"s_cbranch_scc1 {sk}")
        for (code, mask) in polls:
            code()
            e(f"s_mov_b32 s42, 0x{mask & 0xffffffff:x}"); e(f"s_mov_b32 s43, 0x{mask >> 32:x}")
            e("s_mov_b32 s47, 0")
            lp = self.lab("poll"); dn = self.lab("polled")
            self.a.label(lp)
            e(f"buffer_load_dword v250, v251, s[{SRD_F}:{SRD_F+3}], s46 offen {ST}")
            e("s_add_u32 s47, s47, 1")
            e(f"s_cmp_gt_u32 s47, {SPIN_CAP}")
            e(f"s_cbranch_scc1 {dn}")
            e("s_waitcnt vmcnt(0)")
            e(f"v_cmp_eq_u32 vcc, s{S_NONCE}, v250")
            e("s_and_b64 vcc, vcc, s[42:43]")
            e("s_cmp_eq_u64 vcc, s[42:43]")
            e(f"s_cbranch_scc0 {lp}")
            self.a.label(dn)
        self.a.label(sk)
        e("s_barrier")

    def prologue(self, endlab):
        e = self.e
        e("s_cmp_ge_u32 s2, 256"); e(f"s_cbranch_scc1 {endlab}")
        e("s_load_dwordx16 s[64:79], s[0:1], 0")
        e("s_load_dwordx8 s[80:87], s[0:1], 64")
        e("s_load_dwordx2 s[88:89], s[0:1], 96")
        e("v_and_b32 v1, 63, v0")
        e("v_lshrrev_b32 v2, 6, v0")
        e("v_readfirstlane_b32 s3, v2")
        if Gen.STAMPS:
            e("s_memtime s[90:91]"); e("v_mov_b32 v255, 0")
        e("s_and_b32 s20, s2, 7"); e("s_lshr_b32 s21, s2, 3")
        e("s_and_b32 s4, s20, 3"); e("s_lshl_b32 s4, s4, 3"); e("s_and_b32 s22, s21, 7"); e("s_add_u32 s4, s4, s22")
        e("s_lshr_b32 s5, s20, 2"); e("s_lshl_b32 s5, s5, 2"); e("s_lshr_b32 s22, s21, 3"); e("s_add_u32 s5, s5, s22")
        e(f"s_lshl_b32 s{S_HEAD}, s20, 2"); e("s_and_b32 s22, s21, 3"); e(f"s_add_u32 s{S_HEAD}, s{S_HEAD}, s22")
        e(f"s_lshr_b32 s{S_QB}, s21, 2")
        e("s_waitcnt lgkmcnt(0)")
        self.srd(SRD_F, P_WS, WS_FLAG, 0x10000)
        sk = self.lab("nn")
        e("s_cmp_lg_u32 s3, 7"); e(f"s_cbranch_scc1 {sk}")
        self.srd(8, P_DBG, 0, 256)
        e("v_mov_b32 v251, 0")
        g = self.lab("ng")
        e("s_cmp_lg_u32 s2, 0"); e(f"s_cbranch_scc1 {g}")
        e("s_memrealtime s[46:47]"); e("s_waitcnt lgkmcnt(0)")
        e("s_or_b32 s46, s46, 1")
        e("v_mov_b32 v250, s46")
        e("s_mov_b64 exec, 1")
        e(f"buffer_store_dword v250, v251, s[8:11], 0 offen {ST}")
        e("s_mov_b64 exec, -1")
        self.a.label(g)
        self.a.label(sk)

    def get_nonce(self):
        e = self.e
        sk = self.lab("gn")
        e("s_cmp_lg_u32 s3, 7"); e(f"s_cbranch_scc1 {sk}")
        self.srd(48, P_DBG, 0, 256)
        e("v_mov_b32 v251, 0"); e("s_mov_b32 s47, 0")
        lp = self.lab("gnp"); dn = self.lab("gnd")
        self.a.label(lp)
        e(f"buffer_load_dword v250, v251, s[48:51], 0 offen {ST}")
        e("s_add_u32 s47, s47, 1"); e(f"s_cmp_gt_u32 s47, {SPIN_CAP}"); e(f"s_cbranch_scc1 {dn}")
        e("s_waitcnt vmcnt(0)")
        e(f"v_readfirstlane_b32 s{S_NONCE}, v250")
        e(f"s_cmp_eq_u32 s{S_NONCE}, 0"); e(f"s_cbranch_scc1 {lp}")
        self.a.label(dn)
        self.a.label(sk)

    def ln_loads(self, srd_x, s_rowoff):
        e = self.e
        e("v_lshrrev_b32 v3, 4, v1"); e("v_and_b32 v4, 15, v1")
        e("s_lshl_b32 s20, s3, 3")
        e("v_add_u32 v5, s20, v3"); e("v_lshlrev_b32 v5, 10, v5"); e("v_lshl_add_u32 v5, v4, 4, v5")
        e(f"s_add_u32 s21, s{s_rowoff}, 4096")
        for a in range(2):
            so = s_rowoff if a == 0 else 21
            for j in range(4):
                b = 32 + 16*a + 4*j
                e(f"buffer_load_dwordx4 v[{b}:{b+3}], v5, {sr(srd_x,4)}, s{so} offen offset:{256*j}")

    def mod_dma(self, srd_mod, first_chunk, lds_off):
        e = self.e
        e("v_lshlrev_b32 v6, 2, v1")
        e("s_lshl_b32 s20, s3, 9")
        for q in range(2):
            e(f"s_add_u32 s22, s20, {first_chunk*2048 + q*256}")
            self.dma(6, srd_mod, "s22", f"s_add_u32 m0, s20, {lds_off + q*256}", "dword")

    def ln_stats(self, fillers):
        e = self.e
        X = 128
        it = iter(fillers)
        def fill():
            f = next(it, None)
            if f: f()
        for a in range(2):
            for q in range(16):
                s = 32 + 16*a + q
                e(f"v_lshlrev_b32 v{X+32*a+2*q}, 16, v{s}")
                e(f"v_and_b32 v{X+32*a+2*q+1}, 0xffff0000, v{s}")
            fill()
        A = lambda a, k: 8 + 8*a + 2*k
        for a in range(2):
            for k in range(4):
                e(f"v_pk_add_f32 v[{A(a,k)}:{A(a,k)+1}], v[{X+32*a+4*k}:{X+32*a+4*k+1}], v[{X+32*a+4*k+2}:{X+32*a+4*k+3}]")
        for q in range(8, 16):
            for a in range(2):
                k = q % 4
                e(f"v_pk_add_f32 v[{A(a,k)}:{A(a,k)+1}], v[{A(a,k)}:{A(a,k)+1}], v[{X+32*a+2*q}:{X+32*a+2*q+1}]")
        fill()
        for a in range(2):
            e(f"v_pk_add_f32 v[{A(a,0)}:{A(a,0)+1}], v[{A(a,0)}:{A(a,0)+1}], v[{A(a,1)}:{A(a,1)+1}]")
            e(f"v_pk_add_f32 v[{A(a,2)}:{A(a,2)+1}], v[{A(a,2)}:{A(a,2)+1}], v[{A(a,3)}:{A(a,3)+1}]")
        for a in range(2):
            e(f"v_pk_add_f32 v[{A(a,0)}:{A(a,0)+1}], v[{A(a,0)}:{A(a,0)+1}], v[{A(a,2)}:{A(a,2)+1}]")
        for a in range(2):
            e(f"v_add_f32 v{24+2*a}, v{A(a,0)}, v{A(a,0)+1}")
        self.dpp_reduce16([24, 26])
        for a in range(2):
            e(f"v_mul_f32 v{24+2*a}, {fl(-1.0/512)}, v{24+2*a}")
            e(f"v_mov_b32 v{25+2*a}, v{24+2*a}")
            for r in range(8): e(f"v_mov_b32 v{8+8*a+r}, 0")
        fill()
        for q in range(16):
            for a in range(2):
                r = X + 32*a + 2*q
                e(f"v_pk_add_f32 v[{r}:{r+1}], v[{r}:{r+1}], v[{24+2*a}:{25+2*a}]")
            if q > 0:
                for a in range(2):
                    r = X + 32*a + 2*(q-1); k = (q-1) % 4
                    e(f"v_pk_fma_f32 v[{A(a,k)}:{A(a,k)+1}], v[{r}:{r+1}], v[{r}:{r+1}], v[{A(a,k)}:{A(a,k)+1}]")
            if q % 4 == 3: fill()
        for a in range(2):
            r = X + 32*a + 30; k = 3
            e(f"v_pk_fma_f32 v[{A(a,k)}:{A(a,k)+1}], v[{r}:{r+1}], v[{r}:{r+1}], v[{A(a,k)}:{A(a,k)+1}]")
        for a in range(2):
            e(f"v_pk_add_f32 v[{A(a,0)}:{A(a,0)+1}], v[{A(a,0)}:{A(a,0)+1}], v[{A(a,1)}:{A(a,1)+1}]")
            e(f"v_pk_add_f32 v[{A(a,2)}:{A(a,2)+1}], v[{A(a,2)}:{A(a,2)+1}], v[{A(a,3)}:{A(a,3)+1}]")
        for a in range(2):
            e(f"v_pk_add_f32 v[{A(a,0)}:{A(a,0)+1}], v[{A(a,0)}:{A(a,0)+1}], v[{A(a,2)}:{A(a,2)+1}]")
        for a in range(2):
            e(f"v_add_f32 v{24+a}, v{A(a,0)}, v{A(a,0)+1}")
        self.dpp_reduce16([24, 25])
        for a in range(2):
            e(f"v_mov_b32 v14, {fl(1e-5)}")
            e(f"v_fmac_f32 v14, {fl(1.0/512)}, v{24+a}")
            e(f"v_rsq_f32 v{20+2*a}, v14")
        for a in range(2):
            e(f"v_mov_b32 v{21+2*a}, v{20+2*a}")
        for f in it: f()
        for a in range(2):
            for q in range(16):
                r = X + 32*a + 2*q
                e(f"v_pk_mul_f32 v[{r}:{r+1}], v[{r}:{r+1}], v[{20+2*a}:{21+2*a}]")

    def ln_finish(self, lds_mod):
        e = self.e
        X = 128
        e("v_lshrrev_b32 v3, 4, v1"); e("v_and_b32 v4, 15, v1")
        e("v_lshlrev_b32 v6, 5, v4")
        e(f"v_add_u32 v6, {lds_mod}, v6")
        for j in range(4):
            for hh in range(2):
                e(f"ds_read_b128 v[{64+8*j+4*hh}:{67+8*j+4*hh}], v6 offset:{2048 + 512*j + 16*hh}")
                e(f"ds_read_b128 v[{96+8*j+4*hh}:{99+8*j+4*hh}], v6 offset:{512*j + 16*hh}")
        for a in range(2):
            e(f"s_lshl_b32 s20, s3, 3"); e(f"s_add_u32 s20, s20, {4*a}")
            e(f"v_add_u32 v15, s20, v3"); e(f"v_and_b32 v16, 15, v15"); e(f"v_xor_b32 v16, v16, v4")
            e(f"v_lshlrev_b32 v15, 10, v15"); e(f"v_lshl_add_u32 v{18+a}, v16, 4, v15")
        for j in range(4):
            e(f"s_waitcnt lgkmcnt({4*(3-j) + 2*j if False else min(15, 4*(3-j) + 2*j)})" if False else f"s_waitcnt lgkmcnt({4*(3-j)})" if j == 0 else "s_waitcnt lgkmcnt(0)" if j == 1 else "s_nop 0")
            for a in range(2):
                for q in range(4):
                    r = X + 32*a + 8*j + 2*q
                    e(f"v_pk_fma_f32 v[{r}:{r+1}], v[{r}:{r+1}], v[{64+8*j+2*q}:{65+8*j+2*q}], v[{96+8*j+2*q}:{97+8*j+2*q}]")
                pk = 24 + 4*a
                for q in range(4):
                    r = X + 32*a + 8*j + 2*q
                    e(f"v_cvt_pk_bf16_f32 v{pk+q}, v{r}, v{r+1}")
                e(f"ds_write_b128 v{18+a}, v[{pk}:{pk+3}] offset:{256*j}")

    def p01(self):
        e = self.e
        RING = 65536; SL = 12288; D = 7; MODL = RING + D*SL
        MSCR = 155648
        self.srd(8, P_X, 0, 2048*512*2)
        self.srd(12, P_WS, WS_MOD, 12288)
        self.srd(16, P_WQKV, 0, 512*1536*2)
        self.srd(24, P_WS, WS_QK, 4*MB)
        self.srd(28, P_WS, WS_V, 2*MB)
        self.srd(32, P_WMOD, 0, 512*3072*2)
        self.srd(36, P_C, 0, 1024)
        nomod1 = self.lab("nomod")
        e("s_cmp_ge_u32 s2, 96"); e(f"s_cbranch_scc1 {nomod1}")
        e("v_and_b32 v72, 3, v0"); e("v_lshrrev_b32 v73, 2, v0")
        e("v_mul_u32_u24 v74, 6144, v73"); e("v_lshl_add_u32 v74, v72, 4, v74")
        e("v_lshlrev_b32 v75, 1, v73")
        e("s_lshl_b32 s20, s2, 6")
        for i in range(4): e(f"s_add_u32 s{40+i}, s20, {i*128*6144}")
        for i in range(4): e(f"buffer_load_dwordx4 v[{80+4*i}:{83+4*i}], v74, s[32:35], s{40+i} offen")
        for i in range(4): e(f"buffer_load_ushort v{76+i}, v75, s[36:39], 0 offen offset:{256*i}")
        self.a.label(nomod1)
        e("s_lshl_b32 s6, s4, 16")
        self.ln_loads(8, 6)
        tk = self.lab("touch")
        e("s_cmp_ge_u32 s3, 3"); e(f"s_cbranch_scc1 {tk}")
        e("s_and_b32 s20, s4, 7"); e("s_lshl_b32 s20, s20, 6")
        e("v_add_u32 v7, s20, v1"); e("v_mul_u32_u24 v7, 3072, v7")
        e("s_lshl_b32 s20, s5, 8"); e("s_lshl_b32 s21, s3, 7"); e("s_add_u32 s20, s20, s21")
        e("s_lshl_b32 s21, s5, 7"); e("s_add_u32 s21, s21, 2048")
        e("s_cmp_eq_u32 s3, 2"); e("s_cselect_b32 s20, s21, s20")
        e("buffer_load_dword v9, v7, s[16:19], s20 offen")
        self.a.label(tk)
        self.get_nonce()
        e("s_and_b32 s7, s3, 3")
        for m in range(3):
            d = 192 + m
            e(f"s_lshl_b32 s20, s7, 6"); e(f"s_add_u32 s20, s20, {256*m}")
            e(f"v_add_u32 v200, s20, v1")
            e(f"v_mul_u32_u24 v201, 2731, v200"); e(f"v_lshrrev_b32 v201, 16, v201")
            e(f"v_mul_u32_u24 v202, 24, v201"); e(f"v_sub_u32 v202, v200, v202")
            e(f"v_bfe_u32 v203, v201, 1, 1"); e(f"v_bfe_u32 v204, v201, 3, 1")
            e(f"v_lshl_or_b32 v203, v204, 1, v203"); e(f"v_lshlrev_b32 v203, 1, v203")
            e(f"v_xor_b32 v202, v202, v203"); e(f"v_lshlrev_b32 v203, 4, v202")
            e(f"s_lshl_b32 s20, s5, 8"); e(f"v_add_u32 v204, s20, v203")
            e(f"s_lshl_b32 s20, s5, 7"); e(f"s_add_u32 s20, s20, {2048-256}"); e(f"v_add_u32 v205, s20, v203")
            e(f"v_cmp_gt_u32 vcc, 16, v202"); e(f"v_cndmask_b32 v204, v205, v204, vcc")
            e(f"v_mul_u32_u24 v201, 3072, v201"); e(f"v_add_u32 v{d}, v201, v204")
        e("s_lshl_b32 s7, s7, 10"); e(f"s_add_u32 s7, s7, {RING}")
        e("s_lshr_b32 s32, s3, 2")
        nomod2 = self.lab("nomod")
        e("s_cmp_ge_u32 s2, 96"); e(f"s_cbranch_scc1 {nomod2}")
        self.srd(32, P_WMOD, 0, 512*3072*2) if False else None
        for j in range(8): e(f"v_mov_b32 v{64+j}, 0")
        e("s_waitcnt vmcnt(8)")
        for i in range(4):
            c = 76 + i
            e(f"v_lshlrev_b32 v{c}, 16, v{c}")
            e(f"v_mul_f32 v12, {fl(-LOG2E)}, v{c}"); e("v_exp_f32 v12, v12"); e("v_add_f32 v12, 1.0, v12"); e("v_rcp_f32 v12, v12")
            e(f"v_mul_f32 v{c}, v{c}, v12")
            self.bf16_round(c, c)
        for i in range(4):
            for q in range(4):
                w = 80 + 4*i + q
                e(f"v_lshlrev_b32 v12, 16, v{w}"); e(f"v_and_b32 v13, 0xffff0000, v{w}")
                e(f"v_fmac_f32 v{64+2*q}, v{76+i}, v12"); e(f"v_fmac_f32 v{65+2*q}, v{76+i}, v13")
        for m in ("row_ror:4", "row_ror:8"):
            for j in range(8): e(f"v_add_f32_dpp v{64+j}, v{64+j}, v{64+j} {m} row_mask:0xf bank_mask:0xf")
        e("v_lshrrev_b32 v12, 4, v0"); e("v_lshlrev_b32 v12, 7, v12"); e("v_lshl_add_u32 v12, v72, 5, v12")
        e(f"v_add_u32 v12, {MSCR}, v12")
        e("v_and_b32 v13, 12, v1"); e("v_cmp_eq_u32 vcc, 0, v13")
        e("s_and_saveexec_b64 s[26:27], vcc") if False else None
        e("s_and_saveexec_b64 s[44:45], vcc")
        e("ds_write_b128 v12, v[64:67]"); e("ds_write_b128 v12, v[68:71] offset:16")
        e("s_mov_b64 exec, s[44:45]")
        e("s_waitcnt lgkmcnt(0)"); e("s_barrier")
        mdone = self.lab("mdone")
        e("s_cmp_lg_u32 s3, 7"); e(f"s_cbranch_scc1 {mdone}")
        e("v_and_b32 v72, 31, v1"); e("v_lshrrev_b32 v73, 5, v1")
        e("v_lshlrev_b32 v12, 11, v73"); e("v_lshl_add_u32 v12, v72, 2, v12"); e(f"v_add_u32 v12, {MSCR}, v12")
        for i in range(16): e(f"ds_read_b32 v{80+i}, v12 offset:{128*i}")
        e("s_waitcnt lgkmcnt(0)")
        for i in range(1, 16): e(f"v_add_f32 v80, v80, v{80+i}")
        e("v_mov_b32 v81, v80"); e("v_permlane32_swap_b32 v80, v81"); e("v_add_f32 v80, v80, v81")
        self.bf16_round(80, 80)
        skip = self.lab("noone")
        e("s_lshr_b32 s20, s2, 4")
        e("s_cmp_eq_u32 s20, 1"); e("s_cselect_b32 s21, 1, 0"); e("s_cmp_eq_u32 s20, 4"); e("s_cselect_b32 s21, 1, s21")
        e("s_cmp_eq_u32 s21, 0"); e(f"s_cbranch_scc1 {skip}")
        e("v_add_f32 v80, 1.0, v80")
        self.bf16_round(80, 80)
        self.a.label(skip)
        e("s_lshl_b32 s20, s2, 7"); e("v_lshlrev_b32 v72, 2, v72")
        e("s_mov_b32 exec_hi, 0")
        e(f"buffer_store_dword v80, v72, s[12:15], s20 offen {ST}")
        e("s_mov_b64 exec, -1")
        e("s_waitcnt vmcnt(0)")
        self.signal(lambda: (e("s_lshl_b32 s46, s2, 2"), e(f"s_add_u32 s46, s46, {F0}")), nrep=8, rep_stride=512)
        self.a.label(mdone)
        self.a.label(nomod2)
        self.stamp(0)
        e(f"s_mul_i32 s33, s32, {32*3072}")
        e(f"s_mul_i32 s34, s32, {SL}"); e("s_add_u32 s34, s34, s7")
        def issue_pair(pairidx):
            def f():
                e(f"s_add_u32 s23, s33, {2*pairidx*32*3072}")
                for m in range(3):
                    self.dma(192+m, 16, "s23", f"s_add_u32 m0, s34, {2*pairidx*SL + m*4096}")
            return f
        issue_pair(0)()
        e("s_waitcnt vmcnt(3)")
        self.stamp(1)
        nop = lambda: None
        self.ln_stats([nop, nop, issue_pair(1), nop, nop, issue_pair(2)])
        self.stamp(2)
        def c0():
            e("s_and_b32 s46, s2, 7"); e("s_lshl_b32 s46, s46, 9"); e(f"s_add_u32 s46, s46, {F0}")
            e("v_lshlrev_b32 v251, 2, v1")
        self.wait_flags([(c0, 0xffffffff)])
        self.stamp(3)
        self.mod_dma(12, 0, MODL)
        e("v_lshrrev_b32 v3, 4, v1"); e("v_and_b32 v4, 15, v1")
        e("v_lshrrev_b32 v5, 2, v4"); e("v_and_b32 v6, 3, v4")
        e("v_lshl_add_u32 v7, v3, 3, v5"); e("v_mul_u32_u24 v7, 384, v7"); e("v_lshl_add_u32 v7, v6, 3, v7")
        e(f"v_add_u32 v7, {RING}, v7")
        e("v_bfe_u32 v8, v5, 1, 1"); e("v_and_b32 v9, 1, v3"); e("v_lshl_or_b32 v8, v9, 1, v8")
        e("s_lshr_b32 s20, s3, 1")
        for c in range(3):
            if c < 2: e(f"s_lshl_b32 s21, s20, 1"); e(f"s_add_u32 s21, s21, {c}")
            else: e(f"s_add_u32 s21, s20, 8")
            e("s_lshr_b32 s22, s21, 2"); e("s_lshl_b32 s22, s22, 7"); e("s_and_b32 s21, s21, 3")
            e(f"v_xor_b32 v9, s21, v8"); e(f"v_lshl_add_u32 v{200+c}, v9, 5, v7"); e(f"v_add_u32 v{200+c}, s22, v{200+c}")
            e(f"v_add_u32 v{204+c}, {5*SL}, v{200+c}")
        e("s_and_b32 s21, s3, 1"); e("s_lshl_b32 s21, s21, 5")
        e("v_add_u32 v9, s21, v4"); e("v_lshlrev_b32 v9, 10, v9")
        for m in range(4):
            e(f"v_add_u32 v10, {4*m}, v3"); e(f"v_xor_b32 v10, v10, v4"); e(f"v_lshl_add_u32 v{208+m}, v10, 4, v9")
        e("s_waitcnt vmcnt(0)")
        e("s_barrier")
        self.ln_finish(MODL)
        ACC = 128
        e("s_waitcnt lgkmcnt(0)")
        e("s_barrier")
        for r in range(24): e(f"v_mov_b32 v{192+8+r}, 0") if False else None
        ACC = 212
        for r in range(24): e(f"v_mov_b32 v{ACC+r}, 0")
        self.stamp(4)
        def reads_list(n):
            buf = n % 2; slot = n % D
            out = []
            for rt in range(2):
                b = 32 + 32*buf + 4*rt
                out.append(f"ds_read_b128 v[{b}:{b+3}], v{208 + (n & 3)} offset:{rt*16384 + (n >> 2)*256}")
            for c in range(3):
                b = 40 + 32*buf + 4*c
                areg, off = (200 + c, slot*SL) if slot < 5 else (204 + c, (slot-5)*SL)
                for t in range(2):
                    out.append(f"ds_read_b64_tr_b16 v[{b+2*t}:{b+2*t+1}], v{areg} offset:{off + 4*t*384}")
            return out
        def mfmas(n):
            buf = n % 2
            for c in range(3):
                for rt in range(2):
                    acc = ACC + 4*(rt*3 + c)
                    x = 32 + 32*buf + 4*rt; w = 40 + 32*buf + 4*c
                    A, B = (w, x) if c < 2 else (x, w)
                    yield f"v_mfma_f32_16x16x32_bf16 v[{acc}:{acc+3}], v[{A}:{A+3}], v[{B}:{B+3}], v[{acc}:{acc+3}]"
        NK = 16
        for r in reads_list(0): e(r)
        for n in range(NK):
            if n + 1 < NK:
                if n + 1 >= 6:
                    hi = min(n + 5, NK - 1)
                    cA = sum(1 for s in range(max(n+2, 6), hi+1) if s % 2 == 0); cB = sum(1 for s in range(max(n+2, 6), hi+1) if s % 2 == 1)
                    e(f"s_waitcnt vmcnt({3*min(cA, cB)})")
                e("s_barrier")
            e("s_waitcnt lgkmcnt(0)")
            ms = list(mfmas(n)); rs = reads_list(n + 1) if n + 1 < NK else []
            ri = 0
            for i, m in enumerate(ms):
                e(m)
                for _ in range(2 if i < 2 else 1):
                    if ri < len(rs): e(rs[ri]); ri += 1
            st = n + D - 1
            if st < NK:
                lsk = self.lab("qkv_sk")
                e(f"s_cmp_lg_u32 s32, {st & 1}"); e(f"s_cbranch_scc1 {lsk}")
                e(f"s_mov_b32 s23, {st*32*3072}")
                for m in range(3): self.dma(192+m, 16, "s23", f"s_add_u32 m0, s7, {(st % D)*SL + m*4096}")
                self.a.label(lsk)
        self.stamp(5)
        e("v_lshrrev_b32 v3, 4, v1"); e("v_and_b32 v4, 15, v1")
        e("v_lshrrev_b32 v5, 1, v3"); e("v_and_b32 v6, 1, v3"); e("v_lshlrev_b32 v7, 4, v4")
        e("v_lshl_add_u32 v8, v5, 9, v7"); e("v_lshl_add_u32 v8, v6, 3, v8")
        e("v_lshl_add_u32 v9, v6, 8, v7"); e("v_lshl_add_u32 v9, v5, 3, v9")
        e("s_and_b32 s20, s3, 1"); e("s_lshl_b32 s21, s4, 1"); e("s_add_u32 s21, s21, s20"); e("s_lshl_b32 s21, s21, 10")
        e("s_lshr_b32 s20, s3, 1")
        e(f"s_mov_b32 s22, {fl(0.25*LOG2E)}"); e("s_cmp_lt_u32 s5, 4"); e("s_cselect_b32 s22, s22, 1.0")
        for c in range(3):
            if c < 2:
                e("s_lshl_b32 s23, s5, 3"); e("s_lshl_b32 s6, s20, 1"); e("s_add_u32 s23, s23, s6"); e(f"s_add_u32 s23, s23, {c}")
            else:
                e("s_lshl_b32 s23, s5, 2"); e("s_add_u32 s23, s23, s20")
            e("s_lshl_b32 s23, s23, 16"); e("s_add_u32 s23, s23, s21")
            for rt in range(2):
                acc = ACC + 4*(rt*3 + c)
                pk = 32 + 2*(rt + 2*c)
                if c < 2:
                    for q in range(4): e(f"v_mul_f32 v{acc+q}, s22, v{acc+q}")
                e(f"v_cvt_pk_bf16_f32 v{pk}, v{acc}, v{acc+1}"); e(f"v_cvt_pk_bf16_f32 v{pk+1}, v{acc+2}, v{acc+3}")
                if c < 2: e(f"buffer_store_dwordx2 v[{pk}:{pk+1}], v8, s[24:27], s23 offen offset:{rt*256} {ST}")
                else:     e(f"buffer_store_dwordx2 v[{pk}:{pk+1}], v9, s[28:31], s23 offen offset:{rt*512} {ST}")
        self.phase_end()
        self.signal(lambda: (e("s_lshl_b32 s46, s5, 7"), e("s_lshl_b32 s47, s4, 2"), e("s_add_u32 s46, s46, s47"), e(f"s_add_u32 s46, s46, {F1}")),
                    nrep=8, rep_stride=1024)
        self.stamp(6)

    def l2_prefetch(self, vtmp, vdst):
        e = self.e
        e("s_and_b32 s20, s2, 7"); e("s_lshr_b32 s21, s2, 3")
        e(f"v_lshlrev_b32 v{vtmp}, 7, v1")
        self.srd(48, P_WSP, 0, 2048*2048*2)
        e("s_and_b32 s22, s20, 3"); e("s_lshl_b32 s22, s22, 21"); e("s_lshl_b32 s23, s21, 16"); e("s_add_u32 s22, s22, s23")
        e("s_lshl_b32 s23, s3, 13"); e("s_add_u32 s22, s22, s23")
        e(f"buffer_load_dword v{vdst}, v{vtmp}, s[48:51], s22 offen")
        self.srd(48, P_WIN, 0, 512*1792*2)
        e(f"v_lshrrev_b32 v{vdst+1}, 5, v1"); e(f"v_bfe_u32 v{vdst+2}, v1, 4, 1")
        e(f"v_and_b32 v{vdst+3}, 15, v1"); e(f"v_min_u32 v{vdst+3}, 7, v{vdst+3}")
        e(f"v_mul_u32_u24 v{vdst+1}, 3584, v{vdst+1}"); e(f"v_mul_u32_u24 v{vdst+2}, 1792, v{vdst+2}")
        e(f"v_add_u32 v{vdst+1}, v{vdst+1}, v{vdst+2}"); e(f"v_lshl_add_u32 v{vdst+1}, v{vdst+3}, 7, v{vdst+1}")
        e("s_lshr_b32 s22, s20, 2"); e("s_mul_i32 s22, s22, 896")
        e("s_lshl_b32 s23, s21, 4"); e("s_lshl_b32 s46, s3, 1"); e("s_add_u32 s23, s23, s46"); e("s_mul_i32 s23, s23, 3584")
        e("s_add_u32 s22, s22, s23")
        e(f"buffer_load_dword v{vdst+2}, v{vdst+1}, s[48:51], s22 offen")
        e(f"v_lshrrev_b32 v{vdst+1}, 2, v1"); e(f"v_and_b32 v{vdst+3}, 3, v1")
        e(f"v_lshlrev_b32 v{vdst+1}, 10, v{vdst+1}"); e(f"v_lshl_add_u32 v{vdst+1}, v{vdst+3}, 7, v{vdst+1}")
        e("s_lshr_b32 s22, s20, 2"); e("s_lshl_b32 s22, s22, 9")
        lw = self.lab("pf_w"); lx = self.lab("pf_x")
        e("s_cmp_ge_u32 s3, 2"); e(f"s_cbranch_scc1 {lw}")
        self.srd(48, P_WOUT, 0, 896*512*2)
        e("s_mul_i32 s23, s21, 28"); e("s_lshl_b32 s46, s3, 4"); e("s_add_u32 s23, s23, s46"); e("s_lshl_b32 s23, s23, 10")
        e("s_add_u32 s22, s22, s23")
        e(f"buffer_load_dword v{vdst+3}, v{vdst+1}, s[48:51], s22 offen")
        e(f"s_branch {lx}")
        self.a.label(lw)
        e("s_cmp_lg_u32 s3, 2"); e(f"s_cbranch_scc1 {lx}")
        self.srd(48, P_WO, 0, 512*512*2)
        e("s_lshl_b32 s23, s21, 14"); e("s_add_u32 s22, s22, s23")
        e(f"buffer_load_dword v{vdst+3}, v{vdst+1}, s[48:51], s22 offen")
        self.a.label(lx)

    def p2(self):
        e = self.e
        end = self.lab("att_end")
        H, QB_ = S_HEAD, S_QB
        self.srd(8, P_WS, WS_QK, 4*MB)
        self.srd(12, P_WS, WS_V, 2*MB)
        self.srd(16, P_WS, WS_O, 2*MB)
        e("s_and_b32 s6, s3, 3"); e("s_lshr_b32 s7, s3, 2")
        e("v_lshlrev_b32 v2, 4, v1")
        QA, QB = 8, 12
        SA, SB = 32, 48
        PA, PB = 64, 72
        OA, OB = 80, 96
        CA, CB = 112, 128
        KF = 144; VF = 152
        AK, AV = 4, 5
        FLAG = 131072 + 20480
        e(f"v_mov_b32 v3, {FLAG}"); e("v_mov_b32 v4, 0"); e("ds_write_b32 v3, v4")
        e("v_and_b32 v6, 31, v1"); e("v_and_b32 v7, 27, v6"); e("v_cmp_eq_u32 vcc, 16, v7")
        e("v_mov_b32 v16, 0x3f803f80"); e("v_cndmask_b32 v16, 0, v16, vcc")
        for r in range(16): e(f"v_mov_b32 v{VF+r}, v16")
        e("v_cmp_gt_u32 s[30:31], 16, v6")
        for r in range(16):
            e(f"v_mov_b32 v{CA+r}, 0"); e(f"v_mov_b32 v{CB+r}, 0")
        e("s_mov_b32 s33, 0")
        def cKV():
            e("s_and_b32 s46, s2, 7"); e("s_lshl_b32 s46, s46, 10"); e(f"s_add_u32 s46, s46, {F1}")
            e(f"s_lshr_b32 s44, s{H}, 3"); e("s_add_u32 s44, s44, 4"); e("s_lshl_b32 s44, s44, 7")
            e(f"s_lshr_b32 s45, s{H}, 2"); e("s_lshl_b32 s45, s45, 7")
            e("v_and_b32 v251, 31, v1"); e("v_lshlrev_b32 v251, 2, v251")
            e("v_mov_b32 v252, s44"); e("v_mov_b32 v253, s45")
            e("v_cmp_gt_u32 vcc, 32, v1"); e("v_cndmask_b32 v252, v253, v252, vcc")
            e("v_add_u32 v251, v251, v252")
        def cQ():
            e("s_and_b32 s46, s2, 7"); e("s_lshl_b32 s46, s46, 10"); e(f"s_add_u32 s46, s46, {F1}")
            e(f"s_lshr_b32 s44, s{H}, 3"); e("s_lshl_b32 s44, s44, 7"); e("s_add_u32 s46, s46, s44")
            e(f"s_lshl_b32 s44, s{QB_}, 4"); e("s_add_u32 s46, s46, s44")
            e("v_lshlrev_b32 v251, 2, v1")
        self.wait_flags([(cKV, (1 << 64) - 1), (cQ, 0xf)])
        self.stamp(7)
        e(f"s_lshl_b32 s20, s{QB_}, 3"); e("s_lshl_b32 s21, s6, 1"); e("s_add_u32 s20, s20, s21"); e("s_lshl_b32 s20, s20, 10")
        e(f"s_lshl_b32 s21, s{H}, 16"); e("s_add_u32 s20, s20, s21")
        e(f"buffer_load_dwordx4 v[{QA}:{QA+3}], v2, s[8:11], s20 offen")
        e(f"buffer_load_dwordx4 v[{QB}:{QB+3}], v2, s[8:11], s20 offen offset:1024")
        e(f"s_lshl_b32 s41, s{H}, 16"); e(f"s_add_u32 s40, s41, {32*65536}"); e("s_lshl_b32 s42, s3, 10")
        e("s_add_u32 s40, s40, s42"); e("s_add_u32 s41, s41, s42")
        def dma_half(half):
            e(f"s_add_u32 s20, s40, {32*half*1024}")
            self.dma(2, 8, "s20", f"s_add_u32 m0, s42, {32*half*1024}")
            e(f"s_add_u32 s20, s41, {32*half*1024}")
            self.dma(2, 12, "s20", f"s_add_u32 m0, s42, {65536 + 32*half*1024}")
        def next_chunk():
            e("s_add_u32 s40, s40, 8192"); e("s_add_u32 s41, s41, 8192"); e("s_add_u32 s42, s42, 8192")
        dma_half(0); dma_half(1); next_chunk()
        lrestart = self.lab("att_restart")
        self.a.label(lrestart)
        for r in range(16):
            e(f"v_mov_b32 v{OA+r}, 0"); e(f"v_mov_b32 v{OB+r}, 0")
        e("s_lshl_b32 s20, s7, 15"); e(f"v_add_u32 v{AK}, s20, v2")
        e("v_lshrrev_b32 v6, 5, v1"); e("v_and_b32 v7, 15, v1"); e("v_lshlrev_b32 v7, 4, v7"); e("v_lshl_add_u32 v7, v6, 8, v7")
        e("s_add_u32 s20, s20, 65536"); e(f"v_add_u32 v{AV}, s20, v7")
        for r in range(8): e(f"v_mov_b32 v{PB+r}, 0")
        e("s_mov_b64 exec, s[30:31]")
        for r in range(8): e(f"v_mov_b32 v{VF+8+r}, 0")
        e("s_mov_b64 exec, -1")
        def rdK(buf, off): e(f"ds_read_b128 v[{KF+4*buf}:{KF+4*buf+3}], v{AK} offset:{off}")
        def rdV(buf, off):
            e("s_mov_b64 exec, s[30:31]")
            e(f"ds_read_b128 v[{VF+8*buf}:{VF+8*buf+3}], v{AV} offset:{off}")
            e(f"ds_read_b128 v[{VF+8*buf+4}:{VF+8*buf+7}], v{AV} offset:{off+512}")
            e("s_mov_b64 exec, -1")
        def qk(S, C, Q, buf): e(f"v_mfma_f32_32x32x16_bf16 v[{S}:{S+15}], v[{KF+4*buf}:{KF+4*buf+3}], v[{Q}:{Q+3}], v[{C}:{C+15}]")
        def pv(O, P, buf, mf): e(f"v_mfma_f32_32x32x16_bf16 v[{O}:{O+15}], v[{VF+8*buf+4*mf}:{VF+8*buf+4*mf+3}], v[{P+4*mf}:{P+4*mf+3}], v[{O}:{O+15}]")
        def step(S, P, first, mid1, mid2, pre=None, extra=None):
            if pre: pre()
            first()
            k = 0
            for j in range(16):
                e(f"v_exp_f32 v{S+j}, v{S+j}")
                if j >= 3 and j % 2 == 1:
                    e(f"v_cvt_pk_bf16_f32 v{P+k}, v{S+2*k}, v{S+2*k+1}"); k += 1
                if j == 4 and mid1: mid1()
                if j == 7 and extra: extra()
                if j == 10 and mid2: mid2()
            while k < 8:
                e(f"v_cvt_pk_bf16_f32 v{P+k}, v{S+2*k}, v{S+2*k+1}"); k += 1
        e("s_waitcnt vmcnt(0) lgkmcnt(0)")
        e("s_barrier")
        self.stamp(8)
        rdK(0, 0); rdV(0, 0)
        e("s_waitcnt lgkmcnt(0)")
        qk(SA, CA, QA, 0)
        e("s_mov_b32 s34, 0")
        loop = self.lab("att_loop")
        self.a.label(loop)
        nb = self.lab("att_nobar")
        if self.PREFETCH:
            pf = self.lab("att_pf")
            e("s_add_u32 s20, s34, s33"); e("s_cmp_lg_u32 s20, 6"); e(f"s_cbranch_scc1 {pf}")
            self.l2_prefetch(170, 172)
            self.a.label(pf)
        e("s_and_b32 s20, s34, 3"); e("s_cmp_lg_u32 s20, 3"); e(f"s_cbranch_scc1 {nb}")
        w1 = self.lab("att_w1"); w2 = self.lab("att_w2"); w3 = self.lab("att_w3")
        e("s_cmp_lg_u32 s34, 3"); e(f"s_cbranch_scc1 {w1}")
        e("s_waitcnt vmcnt(2)"); e(f"s_branch {w2}")
        self.a.label(w1)
        e("s_cmp_lg_u32 s34, 7"); e(f"s_cbranch_scc1 {w3}")
        e("s_waitcnt vmcnt(4)"); e(f"s_branch {w2}")
        self.a.label(w3)
        e("s_waitcnt vmcnt(0)")
        self.a.label(w2)
        e("s_barrier")
        self.a.label(nb)
        def extra_dma():
            sk = self.lab("att_nd"); o1 = self.lab("att_d1")
            e("s_add_u32 s20, s34, s33"); e("s_cmp_ge_u32 s20, 6"); e(f"s_cbranch_scc1 {sk}")
            e("s_bitcmp1_b32 s34, 0"); e(f"s_cbranch_scc1 {o1}")
            dma_half(0); e(f"s_branch {sk}")
            self.a.label(o1)
            dma_half(1); next_chunk()
            self.a.label(sk)
        step(SA, PA, lambda: qk(SB, CB, QB, 0), lambda: pv(OB, PB, 1, 0), lambda: pv(OB, PB, 1, 1), pre=lambda: rdK(1, 1024), extra=extra_dma)
        def preB0(): rdV(1, 1024); e("s_waitcnt lgkmcnt(2)")
        step(SB, PB, lambda: qk(SA, CA, QA, 1), lambda: pv(OA, PA, 0, 0), lambda: pv(OA, PA, 0, 1), pre=preB0)
        step(SA, PA, lambda: qk(SB, CB, QB, 1), lambda: pv(OB, PB, 0, 0), lambda: pv(OB, PB, 0, 1), pre=lambda: rdK(0, 2048))
        def preB1(): rdV(0, 2048); e("s_waitcnt lgkmcnt(2)")
        step(SB, PB, lambda: qk(SA, CA, QA, 0), lambda: pv(OA, PA, 1, 0), lambda: pv(OA, PA, 1, 1), pre=preB1)
        e(f"v_add_u32 v{AK}, 2048, v{AK}"); e(f"v_add_u32 v{AV}, 2048, v{AV}")
        e("s_add_u32 s34, s34, 1"); e("s_cmp_lt_u32 s34, 16"); e(f"s_cbranch_scc1 {loop}")
        self.stamp(9)
        pv(OB, PB, 1, 0); pv(OB, PB, 1, 1)
        SCR = 131072
        e("s_mul_i32 s20, s3, 2560"); e(f"s_add_u32 s20, s20, {SCR}")
        e("v_add_u32 v6, s20, v2"); e("v_lshlrev_b32 v7, 2, v1"); e("v_add_u32 v7, s20, v7")
        lk1 = self.lab("att_k1"); lx = self.lab("att_x")
        e("s_cmp_eq_u32 s7, 0"); e(f"s_cbranch_scc1 {lk1}")
        e(f"ds_write_b128 v6, v[{OA}:{OA+3}]"); e(f"ds_write_b128 v6, v[{OA+4}:{OA+7}] offset:1024"); e(f"ds_write_b32 v7, v{OA+8} offset:2048")
        for r in range(9): e(f"v_mov_b32 v{OA+r}, v{OB+r}")
        e(f"s_branch {lx}")
        self.a.label(lk1)
        e(f"ds_write_b128 v6, v[{OB}:{OB+3}]"); e(f"ds_write_b128 v6, v[{OB+4}:{OB+7}] offset:1024"); e(f"ds_write_b32 v7, v{OB+8} offset:2048")
        self.a.label(lx)
        e("s_xor_b32 s21, s3, 4"); e("s_mul_i32 s21, s21, 2560"); e(f"s_add_u32 s21, s21, {SCR}")
        e("v_add_u32 v6, s21, v2"); e("v_lshlrev_b32 v7, 2, v1"); e("v_add_u32 v7, s21, v7")
        e("s_waitcnt lgkmcnt(0)"); e("s_barrier")
        e(f"ds_read_b128 v[{SA}:{SA+3}], v6"); e(f"ds_read_b128 v[{SA+4}:{SA+7}], v6 offset:1024"); e(f"ds_read_b32 v{SA+8}, v7 offset:2048")
        e(f"v_mov_b32 v20, {fl(2.0**-24)}"); e(f"v_mov_b32 v21, {fl(2.0**40)}"); e(f"v_mov_b32 v22, 0x7f7fffff")
        e("s_waitcnt lgkmcnt(0)")
        for r in range(9): e(f"v_add_f32 v{OA+r}, v{OA+r}, v{SA+r}")
        e(f"v_max3_f32 v23, |v{OA}|, |v{OA+1}|, |v{OA+2}|"); e(f"v_max3_f32 v23, v23, |v{OA+3}|, |v{OA+4}|")
        e(f"v_max3_f32 v23, v23, |v{OA+5}|, |v{OA+6}|"); e(f"v_max_f32 v23, v23, |v{OA+7}|")
        e(f"v_cmp_ge_f32 vcc, v{OA+8}, v20"); e(f"v_cmp_le_f32 s[36:37], v{OA+8}, v21"); e(f"v_cmp_le_f32 s[38:39], v23, v22")
        e("s_and_b64 s[36:37], s[36:37], vcc"); e("s_and_b64 s[36:37], s[36:37], s[38:39]")
        lok = self.lab("att_ok")
        e("s_cmp_eq_u64 s[36:37], -1"); e(f"s_cbranch_scc1 {lok}")
        e(f"v_mov_b32 v3, {FLAG}"); e("v_mov_b32 v20, 1"); e("ds_write_b32 v3, v20"); e("s_waitcnt lgkmcnt(0)")
        self.a.label(lok)
        e(f"v_rcp_f32 v20, v{OA+8}")
        for r in range(8): e(f"v_mul_f32 v{OA+r}, v{OA+r}, v20")
        for q in range(4): e(f"v_cvt_pk_bf16_f32 v{SB+q}, v{OA+2*q}, v{OA+2*q+1}")
        e("s_barrier")
        e(f"v_mov_b32 v3, {FLAG}"); e("ds_read_b32 v20, v3")
        e(f"s_lshl_b32 s20, s{QB_}, 3"); e("s_lshl_b32 s21, s6, 1"); e("s_add_u32 s20, s20, s21"); e("s_add_u32 s20, s20, s7")
        e("s_lshl_b32 s20, s20, 15"); e(f"s_lshl_b32 s21, s{H}, 10"); e("s_add_u32 s22, s20, s21")
        e("s_waitcnt lgkmcnt(0)")
        e("v_readfirstlane_b32 s20, v20")
        lfin = self.lab("att_fin"); lslow = self.lab("att_slow")
        e("s_cmp_lg_u32 s33, 0"); e(f"s_cbranch_scc1 {lfin}")
        e("s_cmp_lg_u32 s20, 0"); e(f"s_cbranch_scc1 {lslow}")
        self.a.label(lfin)
        e(f"buffer_store_dwordx4 v[{SB}:{SB+3}], v2, s[16:19], s22 offen {ST}")
        e(f"s_branch {end}")
        self.a.label(lslow)
        e("s_mov_b32 s33, 8")
        e("s_lshl_b32 s20, s7, 15"); e(f"v_add_u32 v{AK}, s20, v2")
        e("v_mov_b32 v20, 0xff800000"); e("v_mov_b32 v21, 0xff800000")
        e("s_mov_b32 s34, 0")
        sl = self.lab("att_sl")
        self.a.label(sl)
        rdK(0, 0); e("s_waitcnt lgkmcnt(0)")
        e(f"v_mfma_f32_32x32x16_bf16 v[{SA}:{SA+15}], v[{KF}:{KF+3}], v[{QA}:{QA+3}], 0")
        e(f"v_mfma_f32_32x32x16_bf16 v[{SB}:{SB+15}], v[{KF}:{KF+3}], v[{QB}:{QB+3}], 0")
        for r in range(0, 16, 2): e(f"v_max3_f32 v20, v20, v{SA+r}, v{SA+r+1}")
        for r in range(0, 16, 2): e(f"v_max3_f32 v21, v21, v{SB+r}, v{SB+r+1}")
        e(f"v_add_u32 v{AK}, 1024, v{AK}")
        e("s_add_u32 s34, s34, 1"); e("s_cmp_lt_u32 s34, 32"); e(f"s_cbranch_scc1 {sl}")
        for r in (20, 21):
            e(f"v_mov_b32 v22, v{r}"); e(f"v_permlane32_swap_b32 v{r}, v22"); e(f"v_max_f32 v{r}, v{r}, v22")
        e("s_lshl_b32 s20, s3, 9"); e(f"s_add_u32 s20, s20, {SCR}")
        e("v_lshlrev_b32 v6, 2, v1"); e("v_add_u32 v7, s20, v6")
        e("s_barrier")
        e("ds_write_b32 v7, v20"); e("ds_write_b32 v7, v21 offset:256"); e("s_waitcnt lgkmcnt(0)"); e("s_barrier")
        e("s_xor_b32 s20, s3, 4"); e("s_lshl_b32 s20, s20, 9"); e(f"s_add_u32 s20, s20, {SCR}"); e("v_add_u32 v7, s20, v6")
        e("ds_read_b32 v22, v7"); e("ds_read_b32 v23, v7 offset:256"); e("s_waitcnt lgkmcnt(0)")
        e("v_max_f32 v20, v20, v22"); e("v_max_f32 v21, v21, v23")
        for r in range(16):
            e(f"v_sub_f32 v{CA+r}, 0, v20"); e(f"v_sub_f32 v{CB+r}, 0, v21")
        e("s_barrier")
        e(f"s_branch {lrestart}")
        self.a.label(end)
        self.phase_end()
        self.signal(lambda: (e(f"s_lshl_b32 s46, s{QB_}, 7"), e(f"s_lshl_b32 s47, s{H}, 2"), e("s_add_u32 s46, s46, s47"), e(f"s_add_u32 s46, s46, {F2}")))
        self.stamp(10)

    def proj_wvoff(self):
        e = self.e
        e("v_lshlrev_b32 v2, 4, v1")
        e("v_lshrrev_b32 v3, 3, v1"); e("v_and_b32 v4, 7, v1"); e("v_bfe_u32 v5, v3, 1, 1"); e("v_lshlrev_b32 v5, 2, v5")
        e("v_xor_b32 v4, v4, v5"); e("v_lshlrev_b32 v3, 10, v3"); e("v_lshl_add_u32 v3, v4, 4, v3")
        e("s_lshl_b32 s20, s5, 7"); e("v_add_u32 v3, s20, v3")

    def proj_epi_loads(self, srd_res, gate_chunk):
        e = self.e
        e("v_lshrrev_b32 v14, 2, v1"); e("v_and_b32 v15, 3, v1")
        e("s_and_b32 s20, s3, 1"); e("s_lshl_b32 s20, s20, 5"); e("s_lshl_b32 s21, s4, 6"); e("s_add_u32 s20, s20, s21")
        e("v_add_u32 v16, s20, v14"); e("v_lshlrev_b32 v16, 10, v16"); e("v_lshl_add_u32 v16, v15, 4, v16")
        e("s_bfe_u32 s20, s3, 0x10001"); e("s_lshl_b32 s20, s20, 6"); e("s_lshl_b32 s21, s5, 7"); e("s_add_u32 s32, s20, s21")
        e("s_add_u32 s34, s32, 16384")
        e("v_lshlrev_b32 v17, 5, v15"); e("s_lshl_b32 s33, s32, 1"); e(f"s_add_u32 s33, s33, {gate_chunk*2048}")
        e(f"buffer_load_dwordx4 v[32:35], v16, {sr(srd_res,4)}, s32 offen")
        e(f"buffer_load_dwordx4 v[36:39], v16, {sr(srd_res,4)}, s34 offen")
        e("buffer_load_dwordx4 v[40:43], v17, s[28:31], s33 offen")
        e("buffer_load_dwordx4 v[44:47], v17, s[28:31], s33 offen offset:16")

    def proj_addr(self, natural, xbase, wbase):
        e = self.e
        e("s_and_b32 s20, s3, 1"); e("s_lshl_b32 s20, s20, 13"); e(f"s_add_u32 s20, s20, {xbase}"); e("v_add_u32 v8, s20, v2")
        e("v_lshrrev_b32 v4, 4, v1"); e("v_and_b32 v5, 15, v1"); e("v_lshrrev_b32 v6, 2, v5"); e("v_and_b32 v7, 3, v5")
        e("v_lshrrev_b32 v10, 1, v4"); e("v_and_b32 v11, 1, v4")
        e(f"v_lshl_add_u32 v12, v10, {3 if natural else 2}, v6"); e("v_lshlrev_b32 v12, 7, v12")
        e("v_bfe_u32 v13, v6, 1, 1"); e("s_bfe_u32 s20, s3, 0x10001"); e("v_xor_b32 v13, s20, v13")
        e("v_lshl_add_u32 v12, v13, 6, v12"); e("v_lshl_add_u32 v12, v11, 5, v12"); e("v_lshl_add_u32 v12, v7, 3, v12")
        e(f"v_add_u32 v9, {wbase}, v12")

    def proj_chunk(self, ACC, xoff, woff, natural):
        e = self.e
        tstep = (4 if natural else 8) * 128
        for ks in range(8):
            b = 96 + 8*ks
            e(f"ds_read_b128 v[{b}:{b+3}], v8 offset:{xoff + ks*1024}")
            e(f"ds_read_b64_tr_b16 v[{b+4}:{b+5}], v9 offset:{woff + ks*2048}")
            e(f"ds_read_b64_tr_b16 v[{b+6}:{b+7}], v9 offset:{woff + ks*2048 + tstep}")
        for ks in range(8):
            b = 96 + 8*ks
            e(f"s_waitcnt lgkmcnt({min(15, 3*(7-ks))})")
            e(f"v_mfma_f32_32x32x16_bf16 v[{ACC}:{ACC+15}], v[{b+4}:{b+7}], v[{b}:{b+3}], v[{ACC}:{ACC+15}]")

    def proj_epilogue(self, ACC, scr, srd_out, flags):
        e = self.e
        e("s_mul_i32 s20, s3, 4608"); e(f"s_add_u32 s20, s20, {scr}")
        e("v_and_b32 v18, 31, v1"); e("v_mul_u32_u24 v18, 144, v18"); e("v_lshrrev_b32 v19, 5, v1")
        e("v_lshl_add_u32 v18, v19, 4, v18"); e("v_add_u32 v18, s20, v18")
        for g in range(4): e(f"ds_write_b128 v18, v[{ACC+4*g}:{ACC+4*g+3}] offset:{32*g}")
        e("v_mul_u32_u24 v18, 144, v14"); e("v_lshl_add_u32 v18, v15, 5, v18"); e("v_add_u32 v18, s20, v18")
        e("s_waitcnt lgkmcnt(0)")
        for hh in range(2):
            e(f"ds_read_b128 v[{48+8*hh}:{51+8*hh}], v18 offset:{hh*16*144}")
            e(f"ds_read_b128 v[{52+8*hh}:{55+8*hh}], v18 offset:{hh*16*144+16}")
        e("s_waitcnt vmcnt(0) lgkmcnt(0)")
        for hh in range(2):
            for q in range(4):
                e(f"v_lshlrev_b32 v20, 16, v{32+4*hh+q}"); e(f"v_and_b32 v21, 0xffff0000, v{32+4*hh+q}")
                e(f"v_fmac_f32 v20, v{40+2*q}, v{48+8*hh+2*q}"); e(f"v_fmac_f32 v21, v{41+2*q}, v{48+8*hh+2*q+1}")
                e(f"v_cvt_pk_bf16_f32 v{32+4*hh+q}, v20, v21")
            e(f"buffer_store_dwordx4 v[{32+4*hh}:{35+4*hh}], v16, {sr(srd_out,4)}, s{32 if hh == 0 else 34} offen {flags}")

    def p3(self):
        e = self.e
        self.srd(8, P_WS, WS_O, 2*MB); self.srd(12, P_WO, 0, 512*512*2)
        self.srd(16, P_X, 0, 2*MB); self.srd(24, P_WS, WS_X1, 2*MB); self.srd(28, P_WS, WS_MOD, 12288)
        self.proj_wvoff()
        e("s_lshl_b32 s21, s3, 10")
        for m in range(8):
            e(f"s_lshl_b32 s20, s3, 13"); e(f"s_add_u32 s20, s20, {m*8*8*1024}")
            self.dma(3, 12, "s20", f"s_add_u32 m0, s21, {m*8192}")
        self.proj_addr(False, 65536, 0)
        def cO():
            e("s_lshr_b32 s46, s4, 2"); e("s_lshl_b32 s46, s46, 7"); e(f"s_add_u32 s46, s46, {F2}"); e("v_lshlrev_b32 v251, 2, v1")
        def cM():
            e("s_and_b32 s46, s2, 7"); e("s_lshl_b32 s46, s46, 9"); e(f"s_add_u32 s46, s46, {F0 + 128}"); e("v_lshlrev_b32 v251, 2, v1")
        self.wait_flags([(cM, (1 << 64) - 1), (cO, 0xffffffff)])
        self.stamp(11)
        e(f"s_mul_i32 s6, s4, {2*32*1024}"); e("s_lshl_b32 s21, s3, 10"); e("s_add_u32 s6, s6, s21")
        for c in range(4):
            for tt in range(2):
                e(f"s_add_u32 s20, s6, {tt*32*1024 + c*8*1024}")
                self.dma(2, 8, "s20", f"s_add_u32 m0, s21, {65536 + c*16384 + tt*8192}")
            if c < 3: e("s_barrier")
        lp = self.lab("p3_idle"); end = self.lab("p3_end")
        ACC = 64
        e("s_cmp_ge_u32 s3, 4"); e(f"s_cbranch_scc1 {lp}")
        self.proj_epi_loads(16, 2)
        for r in range(16): e(f"v_mov_b32 v{ACC+r}, 0")
        for c in range(4):
            e(f"s_waitcnt vmcnt({2*(3-c) + 4})"); e("s_barrier")
            self.proj_chunk(ACC, c*16384 if c < 3 else 3*16384, c*16384, False) if False else None
            self.proj_chunk(ACC, c*16384, c*16384, False)
        self.proj_epilogue(ACC, 131072, 24, ST)
        e(f"s_branch {end}")
        self.a.label(lp)
        for c in range(4):
            e(f"s_waitcnt vmcnt({2*(3-c)})"); e("s_barrier")
        self.a.label(end)
        self.phase_end()
        self.signal(lambda: (e("s_lshl_b32 s46, s4, 7"), e("s_lshl_b32 s47, s5, 2"), e("s_add_u32 s46, s46, s47"), e(f"s_add_u32 s46, s46, {F3}")))
        self.stamp(12)

    def p4(self):
        e = self.e
        RING = 65536; SL = 14336; D = 6; MODL = RING + D*SL
        PART = 155648
        Z1L = 135168
        self.srd(8, P_WS, WS_X1, 2*MB)
        self.srd(12, P_WS, WS_MOD, 12288)
        self.srd(16, P_WIN, 0, 512*1792*2)
        self.srd(28, P_WS, WS_Z2, 56*64*1024)
        self.srd(36, P_WS, WS_ST, 32*8*64*16)
        for m in range(2):
            d = 192 + m
            e(f"s_lshl_b32 s20, s3, 6"); e(f"s_add_u32 s20, s20, {512*m}")
            e(f"v_add_u32 v200, s20, v1")
            e(f"v_mul_u32_u24 v201, 2341, v200"); e(f"v_lshrrev_b32 v201, 16, v201")
            e(f"v_mul_u32_u24 v202, 28, v201"); e(f"v_sub_u32 v202, v200, v202")
            e(f"v_bfe_u32 v203, v201, 3, 1"); e(f"v_lshlrev_b32 v203, 1, v203"); e(f"v_xor_b32 v202, v202, v203")
            e(f"v_lshlrev_b32 v203, 4, v202")
            e(f"s_mul_i32 s20, s5, 224"); e(f"s_add_u32 s21, s20, 1792"); e(f"v_add_u32 v204, s21, v203")
            e(f"s_sub_u32 s21, s20, 224"); e(f"v_add_u32 v205, s21, v203")
            e(f"v_cmp_gt_u32 vcc, 14, v202"); e(f"v_cndmask_b32 v204, v205, v204, vcc")
            e(f"v_mul_u32_u24 v201, 3584, v201"); e(f"v_add_u32 v{d}, v201, v204")
        e("s_lshl_b32 s7, s3, 10"); e(f"s_add_u32 s7, s7, {RING}")
        e("s_cmp_ge_u32 s3, 6"); e("s_cselect_b64 vcc, -1, 0"); e("v_cndmask_b32 v194, v193, v192, vcc")
        e("s_cselect_b32 s35, 0, 8192"); e("s_add_u32 s35, s35, s7")
        def issue(stage, cnt):
            e(f"s_mov_b32 s23, {stage*32*3584}")
            for m in range(cnt):
                self.dma(192+m, 16, "s23", f"s_add_u32 m0, s7, {(stage % D)*SL + m*8192}")
        for st in range(D-1):
            e(f"s_mov_b32 s23, {st*32*3584}")
            self.dma(192, 16, "s23", f"s_add_u32 m0, s7, {st*SL}")
            self.dma(194, 16, "s23", f"s_add_u32 m0, s35, {st*SL}")
        self.mod_dma(12, 3, MODL)
        e("v_lshrrev_b32 v3, 4, v1"); e("v_and_b32 v4, 15, v1"); e("v_lshrrev_b32 v5, 2, v4"); e("v_and_b32 v6, 3, v4")
        e("v_lshl_add_u32 v7, v3, 3, v5"); e("v_mul_u32_u24 v7, 448, v7"); e("v_lshl_add_u32 v7, v6, 3, v7"); e(f"v_add_u32 v7, {RING}, v7")
        e("v_and_b32 v8, 1, v3"); e("v_lshlrev_b32 v8, 5, v8")
        e("v_add_u32 v200, v7, v8"); e("v_sub_u32 v201, v7, v8")
        e(f"v_add_u32 v202, {4*SL}, v200"); e(f"v_add_u32 v203, {4*SL}, v201")
        e("s_and_b32 s21, s3, 1"); e("s_lshl_b32 s21, s21, 5"); e("v_add_u32 v9, s21, v4"); e("v_lshlrev_b32 v9, 10, v9")
        for m in range(4):
            e(f"v_add_u32 v10, {4*m}, v3"); e(f"v_xor_b32 v10, v10, v4"); e(f"v_lshl_add_u32 v{208+m}, v10, 4, v9")
        def cX():
            e("s_lshl_b32 s46, s4, 7"); e(f"s_add_u32 s46, s46, {F3}"); e("v_lshlrev_b32 v251, 2, v1")
        self.wait_flags([(cX, 0xff)])
        self.stamp(13)
        e("s_lshl_b32 s6, s4, 16")
        self.ln_loads(8, 6)
        e("s_waitcnt vmcnt(0)")
        self.stamp(14)
        self.ln_stats([])
        e("s_barrier")
        self.ln_finish(MODL)
        ACC = 212
        for r in range(32): e(f"v_mov_b32 v{ACC+r}, 0")
        e("s_waitcnt lgkmcnt(0)"); e("s_barrier")
        self.stamp(15)
        NK = 16
        c0 = -2.0*math.sqrt(2.0/math.pi)*LOG2E
        c1 = c0*0.044715
        variants = [self.lab("win_v") for _ in range(4)]
        join = self.lab("win_join")
        e("s_lshr_b32 s20, s3, 1")
        for cg in (1, 2, 3):
            e(f"s_cmp_eq_u32 s20, {cg}"); e(f"s_cbranch_scc1 {variants[cg]}")
        for cg in range(4):
            self.a.label(variants[cg])
            z2 = (cg % 2 == 0)
            nt = 4 if cg < 2 else 3
            t0 = 0 if cg < 2 else 4
            sg0 = (0 if z2 else 7) + t0
            cnt = 1 if cg == 3 else 2
            def reads(n):
                buf = n % 2; slot = n % D
                out = []
                for rt in range(2):
                    b = 32 + 32*buf + 4*rt
                    out.append(f"ds_read_b128 v[{b}:{b+3}], v{208 + (n & 3)} offset:{rt*16384 + (n >> 2)*256}")
                for c in range(nt):
                    sg = sg0 + c
                    b = 40 + 32*buf + 4*c
                    areg, off = (200 + (sg & 1), slot*SL) if slot < 4 else (202 + (sg & 1), (slot-4)*SL)
                    for t in range(2):
                        out.append(f"ds_read_b64_tr_b16 v[{b+2*t}:{b+2*t+1}], v{areg} offset:{off + 4*t*448 + sg*32}")
                return out
            for r in reads(0): e(r)
            for n in range(NK):
                if n + 1 < NK:
                    if n + 1 >= D - 1:
                        allowed = cnt * len([s for s in range(max(n+2, D-1), min(n+D-1, NK))])
                        e(f"s_waitcnt vmcnt({allowed})")
                    e("s_barrier")
                e("s_waitcnt lgkmcnt(0)")
                buf = n % 2
                ms = []
                for c in range(nt):
                    for rt in range(2):
                        acc = ACC + 4*(rt*4 + c)
                        x = 32 + 32*buf + 4*rt; w = 40 + 32*buf + 4*c
                        A, B = (x, w) if z2 else (w, x)
                        ms.append(f"v_mfma_f32_16x16x32_bf16 v[{acc}:{acc+3}], v[{A}:{A+3}], v[{B}:{B+3}], v[{acc}:{acc+3}]")
                rs = reads(n + 1) if n + 1 < NK else []
                ri = 0
                for i, m in enumerate(ms):
                    e(m)
                    for _ in range(2 if i < 3 else 1):
                        if ri < len(rs): e(rs[ri]); ri += 1
                while ri < len(rs): e(rs[ri]); ri += 1
                st = n + D - 1
                if st < NK: issue(st, cnt)
            e(f"s_mov_b32 s20, {fl(c1)}"); e(f"v_mov_b32 v20, {fl(c0)}")
            accs = [ACC + 4*(rt*4 + c) + r for c in range(nt) for rt in range(2) for r in range(4)]
            for i0 in range(0, len(accs), 4):
                grp = accs[i0:i0+4]
                for k, z in enumerate(grp): e(f"v_mul_f32 v{24+k}, v{z}, v{z}")
                for k, z in enumerate(grp): e(f"v_fma_f32 v{24+k}, v{24+k}, s20, v20")
                for k, z in enumerate(grp): e(f"v_mul_f32 v{24+k}, v{24+k}, v{z}")
                for k, z in enumerate(grp): e(f"v_exp_f32 v{24+k}, v{24+k}")
                for k, z in enumerate(grp): e(f"v_add_f32 v{24+k}, 1.0, v{24+k}")
                for k, z in enumerate(grp): e(f"v_rcp_f32 v{24+k}, v{24+k}")
                for k, z in enumerate(grp): e(f"v_mul_f32 v{z}, v{z}, v{24+k}")
            e("v_lshrrev_b32 v3, 4, v1"); e("v_and_b32 v4, 15, v1")
            if z2:
                regs = []
                for rt in range(2):
                    for r in range(4):
                        sreg = 64 + 2*(rt*4 + r)
                        a0 = ACC + 4*(rt*4) + r
                        e(f"v_mov_b32 v{sreg}, v{a0}"); e(f"v_mul_f32 v{sreg+1}, v{a0}, v{a0}")
                        for c in range(1, nt):
                            a = ACC + 4*(rt*4 + c) + r
                            e(f"v_add_f32 v{sreg}, v{sreg}, v{a}"); e(f"v_fmac_f32 v{sreg+1}, v{a}, v{a}")
                        regs += [sreg, sreg+1]
                self.dpp_reduce16(regs)
                e("s_and_b32 s20, s3, 1"); e("s_lshl_b32 s20, s20, 8")
                e(f"s_add_u32 s20, s20, {PART + (cg>>1)*512}")
                e("v_lshlrev_b32 v5, 5, v3"); e("v_add_u32 v5, s20, v5")
                e("v_cmp_eq_u32 vcc, 0, v4"); e("s_and_saveexec_b64 s[40:41], vcc")
                for rt in range(2):
                    e(f"ds_write_b128 v5, v[{64+8*rt}:{67+8*rt}] offset:{rt*128}")
                    e(f"ds_write_b128 v5, v[{68+8*rt}:{71+8*rt}] offset:{rt*128+16}")
                e("s_mov_b64 exec, s[40:41]")
                e("s_waitcnt lgkmcnt(0)"); e("s_barrier")
            else:
                e("s_barrier")
                e("s_and_b32 s20, s3, 1"); e(f"s_mul_i32 s20, s20, {2*7*512}"); e(f"s_add_u32 s20, s20, {Z1L + t0*512}")
                e("v_lshlrev_b32 v5, 3, v1"); e("v_add_u32 v5, s20, v5")
                for c in range(nt):
                    for rt in range(2):
                        acc = ACC + 4*(rt*4 + c); pk = 32 + 2*(rt + 2*c)
                        e(f"v_cvt_pk_bf16_f32 v{pk}, v{acc}, v{acc+1}"); e(f"v_cvt_pk_bf16_f32 v{pk+1}, v{acc+2}, v{acc+3}")
                        e(f"ds_write_b64 v5, v[{pk}:{pk+1}] offset:{rt*7*512 + c*512}")
            if cg == 3:
                nx = self.lab("win_nx")
                e("s_cmp_lg_u32 s3, 7"); e(f"s_cbranch_scc1 {nx}")
                e("v_lshlrev_b32 v5, 3, v1"); e(f"v_add_u32 v5, {PART}, v5")
                e("ds_read_b64 v[64:65], v5"); e("ds_read_b64 v[66:67], v5 offset:512")
                e("s_waitcnt lgkmcnt(0)")
                e("v_add_f32 v64, v64, v66"); e("v_add_f32 v65, v65, v67")
                e(f"v_mov_b32 v66, s{S_NONCE}"); e(f"v_mov_b32 v67, s{S_NONCE}")
                e("v_lshlrev_b32 v6, 4, v1")
                e("s_lshl_b32 s20, s4, 13"); e("s_lshl_b32 s21, s5, 10"); e("s_add_u32 s21, s21, s20")
                e(f"buffer_store_dwordx4 v[64:67], v6, s[36:39], s21 offen {ST}")
                e("s_mov_b32 s47, 0")
                lp = self.lab("stp"); dn = self.lab("std")
                self.a.label(lp)
                for jj in range(8):
                    e(f"s_add_u32 s21, s20, {jj*1024}")
                    e(f"buffer_load_dwordx4 v[{72+4*jj}:{75+4*jj}], v6, s[36:39], s21 offen {ST}")
                e("s_add_u32 s47, s47, 1"); e(f"s_cmp_gt_u32 s47, {SPIN_CAP}"); e(f"s_cbranch_scc1 {dn}")
                e("s_waitcnt vmcnt(0)")
                e("s_mov_b64 s[42:43], -1")
                for jj in range(8):
                    e(f"v_cmp_eq_u32 vcc, s{S_NONCE}, v{74+4*jj}"); e("s_and_b64 s[42:43], s[42:43], vcc")
                    e(f"v_cmp_eq_u32 vcc, s{S_NONCE}, v{75+4*jj}"); e("s_and_b64 s[42:43], s[42:43], vcc")
                e("s_cmp_eq_u64 s[42:43], -1"); e(f"s_cbranch_scc0 {lp}")
                self.a.label(dn)
                e("s_waitcnt vmcnt(0)")
                for jj in range(1, 8):
                    e(f"v_add_f32 v72, v72, v{72+4*jj}"); e(f"v_add_f32 v73, v73, v{73+4*jj}")
                e(f"v_mul_f32 v72, {fl(1.0/896)}, v72"); e(f"v_mul_f32 v73, {fl(1.0/896)}, v73")
                e("v_fma_f32 v73, -v72, v72, v73"); e("v_max_f32 v73, 0, v73"); e(f"v_add_f32 v73, {fl(1e-5)}, v73")
                e("v_rsq_f32 v75, v73"); e("v_mul_f32 v74, v72, v75"); e("v_sub_f32 v74, 0, v74")
                e(f"ds_write_b64 v5, v[74:75] offset:1024")
                self.a.label(nx)
            e("s_waitcnt lgkmcnt(0)"); e("s_barrier")
            if z2:
                e("s_and_b32 s20, s3, 1"); e("s_lshl_b32 s20, s20, 8"); e(f"s_add_u32 s20, s20, {PART + 1024}")
                e("v_lshlrev_b32 v5, 5, v3"); e("v_add_u32 v5, s20, v5")
                for rt in range(2):
                    e(f"ds_read_b128 v[{64+8*rt}:{67+8*rt}], v5 offset:{rt*128}")
                    e(f"ds_read_b128 v[{68+8*rt}:{71+8*rt}], v5 offset:{rt*128+16}")
                e("v_lshrrev_b32 v5, 1, v3"); e("v_lshlrev_b32 v5, 8, v5"); e("v_lshl_add_u32 v5, v4, 4, v5")
                e("v_and_b32 v6, 1, v3"); e("v_lshl_add_u32 v5, v6, 3, v5")
                e("s_and_b32 s20, s3, 1"); e("s_lshl_b32 s21, s4, 1"); e("s_add_u32 s20, s20, s21"); e("s_lshl_b32 s20, s20, 10")
                e("s_mul_i32 s21, s5, 0x70000"); e("s_add_u32 s20, s20, s21")
                e("s_waitcnt lgkmcnt(0)")
                for c in range(nt):
                    e(f"s_add_u32 s21, s20, {(t0+c)*65536}")
                    for rt in range(2):
                        acc = ACC + 4*(rt*4 + c); pk = 32 + 2*(rt + 2*c)
                        for r in range(4):
                            e(f"v_fma_f32 v{acc+r}, v{acc+r}, v{64+8*rt+2*r+1}, v{64+8*rt+2*r}")
                        e(f"v_cvt_pk_bf16_f32 v{pk}, v{acc}, v{acc+1}"); e(f"v_cvt_pk_bf16_f32 v{pk+1}, v{acc+2}, v{acc+3}")
                        e(f"buffer_store_dwordx2 v[{pk}:{pk+1}], v5, s[28:31], s21 offen offset:{rt*512} {ST}")
            if cg < 3: e(f"s_branch {join}")
        self.a.label(join)
        self.phase_end()
        self.signal(lambda: (e("s_lshl_b32 s46, s5, 7"), e("s_lshl_b32 s47, s4, 2"), e("s_add_u32 s46, s46, s47"), e(f"s_add_u32 s46, s46, {F4}")))
        self.stamp(16)

    def p5(self):
        e = self.e
        end = self.lab("sp_end")
        Z1L = 135168
        self.srd(8, P_WSP, 0, 2048*2048*2)
        self.srd(12, P_WS, WS_Z2, 56*64*1024)
        self.srd(24, P_WS, WS_Y, 64*56*1024)
        self.srd(28, P_BSP, 0, 4096)
        SL = 22528; D = 6; NST = 32
        e(f"s_mov_b32 s44, {(-(D-1)*SL) & 0xffffffff}"); e(f"s_mov_b32 s45, {SL}")
        e("v_lshlrev_b32 v2, 4, v1"); e("v_lshrrev_b32 v3, 4, v1"); e("v_and_b32 v4, 15, v1")
        def cZ():
            e("s_lshl_b32 s46, s5, 7"); e(f"s_add_u32 s46, s46, {F4}"); e("v_lshlrev_b32 v251, 2, v1")
        lp = self.lab("sp_prod")
        e("s_cmp_ge_u32 s3, 4"); e(f"s_cbranch_scc1 {lp}")
        e("s_and_b32 s20, s3, 1"); e("s_lshl_b32 s21, s4, 2"); e("s_lshl_b32 s22, s20, 1"); e("s_add_u32 s21, s21, s22")
        e("v_lshlrev_b32 v5, 1, v4"); e("s_lshl_b32 s22, s21, 5")
        e("buffer_load_ushort v20, v5, s[28:31], s22 offen"); e("buffer_load_ushort v21, v5, s[28:31], s22 offen offset:32")
        e("s_bfe_u32 s23, s3, 0x10001"); e("s_lshl_b32 s23, s23, 2")
        e("v_lshrrev_b32 v7, 1, v3"); e("v_lshlrev_b32 v7, 9, v7"); e("v_lshl_add_u32 v7, v4, 4, v7")
        e("v_and_b32 v8, 1, v3"); e("v_lshl_add_u32 v7, v8, 3, v7")
        e("s_lshl_b32 s21, s4, 1"); e("s_add_u32 s21, s21, s20"); e("s_mul_i32 s21, s21, 56")
        e("s_mul_i32 s6, s5, 7"); e("s_add_u32 s21, s21, s6"); e("s_add_u32 s21, s21, s23"); e("s_lshl_b32 s35, s21, 10")
        e(f"s_mul_i32 s6, s20, {2*7*512}"); e("s_lshl_b32 s21, s23, 9"); e("s_add_u32 s6, s6, s21"); e(f"s_add_u32 s6, s6, {Z1L}")
        e("v_lshlrev_b32 v9, 3, v1"); e("v_add_u32 v9, s6, v9")
        e("s_and_b32 s20, s3, 1"); e("s_lshl_b32 s20, s20, 12"); e("v_lshlrev_b32 v5, 7, v4"); e("v_add_u32 v5, s20, v5")
        e("v_lshrrev_b32 v8, 1, v4")
        for ks in range(2):
            e(f"v_add_u32 v6, {4*ks}, v3"); e(f"v_xor_b32 v6, v6, v8"); e(f"v_lshl_add_u32 v{200+ks}, v6, 4, v5")
        e("s_bfe_u32 s20, s3, 0x10001"); e("s_lshl_b32 s20, s20, 13"); e("s_add_u32 s20, s20, 8192"); e("v_add_u32 v202, s20, v2")
        ACC = 128
        for r in range(32): e(f"v_mov_b32 v{ACC+r}, 0")
        e("s_barrier")
        l3 = self.lab("sp_3"); lepi = self.lab("sp_epi")
        e("s_barrier")
        self.stamp(18)
        e("s_bitcmp1_b32 s3, 1"); e(f"s_cbranch_scc1 {l3}")
        for jj in range(2):
            nf = 4 if jj == 0 else 3
            if jj == 1: self.a.label(l3)
            def reads(ks, buf, nxt):
                b = 32 + 24*buf; ab = 203 if nxt else 200
                for tt in range(2): yield f"ds_read_b128 v[{b+4*tt}:{b+4*tt+3}], v{ab+ks} offset:{tt*2048}"
                for f in range(nf): yield f"ds_read_b128 v[{b+8+4*f}:{b+8+4*f+3}], v{ab+2} offset:{f*2048 + ks*1024}"
            def mf(buf):
                b = 32 + 24*buf
                for f in range(nf):
                    for tt in range(2):
                        acc = ACC + 4*(tt*4 + f)
                        yield f"v_mfma_f32_16x16x32_bf16 v[{acc}:{acc+3}], v[{b+8+4*f}:{b+8+4*f+3}], v[{b+4*tt}:{b+4*tt+3}], v[{acc}:{acc+3}]"
            def interleave(ms, rs):
                ms = list(ms); rs = list(rs)
                for i, m in enumerate(ms):
                    e(m)
                    if i < len(rs): e(rs[i])
                for r in rs[len(ms):]: e(r)
            for r in reads(0, 0, False): e(r)
            e("s_mov_b32 s36, 0"); e(f"s_mov_b32 s37, {SL}"); e("s_mov_b32 s38, 1")
            loop = self.lab("sp_loop")
            self.a.label(loop)
            e("s_barrier")
            for k in range(3): e(f"v_add_u32 v{203+k}, s37, v{200+k}")
            e(f"s_waitcnt lgkmcnt(0)")
            interleave(mf(0), reads(1, 1, False))
            e(f"s_waitcnt lgkmcnt(0)")
            interleave(mf(1), reads(0, 0, True))
            for k in range(3): e(f"v_mov_b32 v{200+k}, v{203+k}")
            e("s_add_u32 s38, s38, 1"); e(f"s_cmp_eq_u32 s38, {D}")
            e(f"s_cselect_b32 s37, s44, s45"); e(f"s_cselect_b32 s38, 0, s38")
            e("s_add_u32 s36, s36, 1"); e(f"s_cmp_lt_u32 s36, {NST}"); e(f"s_cbranch_scc1 {loop}")
            if jj == 0: e(f"s_branch {lepi}")
        self.a.label(lepi)
        self.stamp(19)
        ZR = 176
        for tt in range(2):
            for f in range(4):
                b = ZR + 2*(tt*4 + f)
                e(f"ds_read_b64 v[{b}:{b+1}], v9 offset:{tt*7*512 + f*512}")
        e("s_waitcnt vmcnt(0) lgkmcnt(0)")
        e("v_lshlrev_b32 v20, 16, v20"); e("v_lshlrev_b32 v21, 16, v21")
        for f in range(4):
            if f == 3:
                e("s_bitcmp1_b32 s3, 1"); e(f"s_cbranch_scc1 {end}")
            for tt in range(2):
                acc = ACC + 4*(tt*4 + f); b = ZR + 2*(tt*4 + f)
                for q in range(2):
                    e(f"v_lshlrev_b32 v22, 16, v{b+q}"); e(f"v_and_b32 v23, 0xffff0000, v{b+q}")
                    e(f"v_add_f32 v24, v{acc+2*q}, v{20+tt}"); e(f"v_add_f32 v25, v{acc+2*q+1}, v{20+tt}")
                    e(f"v_mul_f32 v22, v22, v24"); e(f"v_mul_f32 v23, v23, v25")
                    e(f"v_cvt_pk_bf16_f32 v{b+q}, v22, v23")
                e(f"buffer_store_dwordx2 v[{b}:{b+1}], v7, s[24:27], s35 offen offset:{f*1024 + tt*256} {ST}")
        e(f"s_branch {end}")
        self.a.label(lp)
        e("s_and_b32 s7, s3, 3")
        e("v_lshrrev_b32 v5, 3, v1"); e("v_and_b32 v6, 7, v1")
        for m in range(2):
            e(f"s_lshl_b32 s20, s7, 3"); e(f"s_add_u32 s20, s20, {32*m}")
            e(f"v_add_u32 v8, s20, v5"); e(f"v_bfe_u32 v9, v8, 1, 3"); e(f"v_xor_b32 v9, v9, v6")
            e(f"v_lshlrev_b32 v8, 12, v8"); e(f"v_lshl_add_u32 v{192+m}, v9, 4, v8")
        e("s_lshl_b32 s6, s4, 18")
        e("s_mul_i32 s32, s5, 0x70000"); e("s_lshr_b32 s20, s7, 1"); e("s_lshl_b32 s20, s20, 16"); e("s_add_u32 s32, s32, s20")
        e("s_and_b32 s20, s7, 1"); e("s_lshl_b32 s20, s20, 10"); e("s_add_u32 s32, s32, s20")
        e("s_lshl_b32 s33, s7, 10")
        e("s_mov_b32 s34, s33")
        for st in range(D-1):
            for m in range(2): self.dma(192+m, 8, "s6", f"s_add_u32 m0, s34, {st*SL + m*4096}")
            e("s_add_u32 s6, s6, 128")
        self.wait_flags([(cZ, 0xffffffff)])
        self.stamp(17)
        l5 = self.lab("sp_p5")
        e("s_cmp_ge_u32 s7, 2"); e(f"s_cbranch_scc1 {l5}")
        for var in range(2):
            nz = 4 if var == 0 else 3
            cnt = 2 + nz
            if var == 1: self.a.label(l5)
            def issue_z():
                for m in range(nz):
                    e(f"s_add_u32 s23, s32, {2*m*65536}")
                    self.dma(2, 12, "s23", f"s_add_u32 m0, s34, {8192 + m*4096}")
                e("s_add_u32 s32, s32, 2048")
            def issue():
                for m in range(2): self.dma(192+m, 8, "s6", f"s_add_u32 m0, s34, {m*4096}")
                e("s_add_u32 s6, s6, 128")
                issue_z()
            for st in range(D-1):
                issue_z(); e(f"s_add_u32 s34, s34, {SL}")
            e(f"s_waitcnt vmcnt({nz*(D-2)})"); e("s_barrier")
            e("s_mov_b32 s36, 0"); e(f"s_mov_b32 s38, {D-1}")
            loop = self.lab("sp_ploop"); lni = self.lab("sp_ni"); lw = self.lab("sp_w"); le = self.lab("sp_e"); lb = self.lab("sp_b")
            self.a.label(loop)
            e(f"s_cmp_ge_u32 s36, {NST-D+2}"); e(f"s_cbranch_scc1 {lw}")
            e(f"s_cmp_lt_u32 s36, 3"); e(f"s_cbranch_scc1 {le}")
            e(f"s_waitcnt vmcnt({cnt*(D-3)})"); e(f"s_branch {lb}")
            self.a.label(le)
            e(f"s_waitcnt vmcnt({nz*(D-3)})")
            self.a.label(lb)
            e("s_barrier")
            e(f"s_cmp_ge_u32 s36, {NST-D+1}"); e(f"s_cbranch_scc1 {lni}")
            issue()
            e("s_add_u32 s38, s38, 1"); e(f"s_cmp_eq_u32 s38, {D}"); e(f"s_cselect_b32 s39, s44, s45"); e(f"s_cselect_b32 s38, 0, s38")
            e("s_add_u32 s34, s34, s39"); e(f"s_branch {lni}")
            self.a.label(lw)
            e("s_waitcnt vmcnt(0)"); e("s_barrier")
            self.a.label(lni)
            e("s_add_u32 s36, s36, 1"); e(f"s_cmp_lt_u32 s36, {NST}"); e(f"s_cbranch_scc1 {loop}")
            if var == 0: e(f"s_branch {end}")
        self.a.label(end)
        self.phase_end()
        self.signal(lambda: (e("s_lshl_b32 s46, s4, 7"), e("s_lshl_b32 s47, s5, 2"), e("s_add_u32 s46, s46, s47"), e(f"s_add_u32 s46, s46, {F5}")))
        self.stamp(20)

    def p6(self):
        e = self.e
        self.srd(8, P_WS, WS_Y, 64*56*1024); self.srd(12, P_WOUT, 0, 896*512*2)
        self.srd(16, P_WS, WS_X1, 2*MB); self.srd(24, P_OUT, 0, 2*MB); self.srd(28, P_WS, WS_MOD, 12288)
        XR = 114688; XS = 16384; NCH = 7; NSLOT = 3
        self.proj_wvoff()
        e("s_lshl_b32 s21, s3, 10")
        for m in range(14):
            e(f"s_lshl_b32 s20, s3, 13"); e(f"s_add_u32 s20, s20, {m*65536}")
            self.dma(3, 12, "s20", f"s_add_u32 m0, s21, {m*8192}")
        self.proj_addr(True, XR, 0)
        e("v_add_u32 v10, 0x10000, v9")
        def cY():
            e("s_lshl_b32 s46, s4, 7"); e(f"s_add_u32 s46, s46, {F5}"); e("v_lshlrev_b32 v251, 2, v1")
        self.wait_flags([(cY, 0xff)])
        self.stamp(21)
        e(f"s_mul_i32 s6, s4, {2*56*1024}")
        def issue_x(ch, sreg, offs):
            slot = ch % NSLOT
            for off in offs:
                tt = off >> 3; ko = off & 7
                e(f"s_lshl_b32 s21, s{sreg}, 10"); e("s_add_u32 s20, s21, s6")
                e(f"s_add_u32 s20, s20, {tt*56*1024 + (ch*8+ko)*1024}")
                self.dma(2, 8, "s20", f"s_add_u32 m0, s21, {XR + slot*XS + off*1024}")
        for ch in range(NSLOT):
            issue_x(ch, 3, (0, 8))
            if ch < NSLOT-1: e("s_barrier")
        e("s_and_b32 s7, s3, 3")
        lp = self.lab("p6_prod"); end = self.lab("p6_end")
        ACC = 64
        e("s_cmp_ge_u32 s3, 4"); e(f"s_cbranch_scc1 {lp}")
        self.proj_epi_loads(16, 5)
        for r in range(16): e(f"v_mov_b32 v{ACC+r}, 0")
        tstep = 4*128
        for ch in range(NCH):
            if ch < NSLOT: e(f"s_waitcnt vmcnt({2*(NSLOT-1-ch) + 4})")
            e("s_barrier")
            slot = ch % NSLOT
            wreg, woff = (9, ch*16384) if ch < 4 else (10, ch*16384 - 65536)
            for ks in range(8):
                b = 96 + 8*ks
                e(f"ds_read_b128 v[{b}:{b+3}], v8 offset:{slot*XS + ks*1024}")
                e(f"ds_read_b64_tr_b16 v[{b+4}:{b+5}], v{wreg} offset:{woff + ks*2048}")
                e(f"ds_read_b64_tr_b16 v[{b+6}:{b+7}], v{wreg} offset:{woff + ks*2048 + tstep}")
            for ks in range(8):
                b = 96 + 8*ks
                e(f"s_waitcnt lgkmcnt({min(15, 3*(7-ks))})")
                e(f"v_mfma_f32_32x32x16_bf16 v[{ACC}:{ACC+15}], v[{b+4}:{b+7}], v[{b}:{b+3}], v[{ACC}:{ACC+15}]")
        e("s_barrier")
        self.proj_epilogue(ACC, 0, 24, "")
        e(f"s_branch {end}")
        self.a.label(lp)
        out = [(s, 2) for s in range(NSLOT)]
        for ch in range(NCH):
            later = sum(c for (st, c) in out if st > ch)
            e(f"s_waitcnt vmcnt({later})")
            out = [(st, c) for (st, c) in out if st > ch]
            e("s_barrier")
            nxt = ch + NSLOT - 1
            if ch >= 1 and nxt < NCH:
                issue_x(nxt, 7, (0, 4, 8, 12)); out.append((nxt, 4))
        e("s_barrier")
        self.a.label(end)
        self.stamp(22)


HEADER = open('cdna_kernels/' + NAME + '.s.ref').read().split('; Override launch geometry')[0]

def build(stamps=False):
    Gen.STAMPS = stamps
    g = Gen()
    endl = "L_exit"
    g.prologue(endl)
    g.p01(); g.p2(); g.p3(); g.p4(); g.p5(); g.p6()
    if stamps:
        e = g.e
        sk = g.lab("stst")
        e("s_cmp_ge_u32 s2, 4"); e(f"s_cbranch_scc1 {sk}")
        e("s_and_b32 s46, s3, 3"); e("s_cmp_lg_u32 s46, 0"); e(f"s_cbranch_scc1 {sk}")
        e("s_waitcnt vmcnt(0)")
        g.stamp(23)
        g.srd(8, P_DBG, 0, 4096)
        e("s_lshl_b32 s20, s2, 1"); e("s_lshr_b32 s21, s3, 2"); e("s_add_u32 s20, s20, s21"); e("s_lshl_b32 s20, s20, 8"); e("s_add_u32 s20, s20, 256")
        e("v_lshlrev_b32 v4, 2, v1")
        e("buffer_store_dword v255, v4, s[8:11], s20 offen")
        g.a.label(sk)
    g.a.label(endl)
    g.e("s_endpgm")
    g.a.fix_hazards()
    out = [HEADER, "; @launch grid=(256,1,1) block=(512,1,1) lds=163840\n",
           '.amdgcn_target "amdgcn-amd-amdhsa--gfx950"\n.text\n',
           f".globl {KNAME}\n.p2align 8\n.type {KNAME},@function\n{KNAME}:\n", g.a.text(),
           '.section .rodata,"a"\n', f""".p2align 6
.amdhsa_kernel {KNAME}
  .amdhsa_next_free_vgpr 256
  .amdhsa_next_free_sgpr 102
  .amdhsa_accum_offset 256
  .amdhsa_group_segment_fixed_size 0
  .amdhsa_kernarg_size 104
  .amdhsa_user_sgpr_count 2
  .amdhsa_user_sgpr_kernarg_segment_ptr 1
  .amdhsa_system_sgpr_workgroup_id_x 1
.end_amdhsa_kernel
"""]
    return ''.join(out)

if __name__ == "__main__":
    for k in ("PREFETCH",):
        if k in os.environ: setattr(Gen, k, int(os.environ[k]))
    txt = build(stamps=(len(sys.argv) > 2))
    path = sys.argv[1] if len(sys.argv) > 1 else 'cdna_kernels/' + NAME + '.s'
    open(path, 'w').write(txt)
    print("wrote", path, len(txt), "bytes")
```

```python
import sys, math, os
from asmlib import Asm, vr, sr

NAME = "adaLN_cond__softmax_full_mha__mixer_gmlp__prompt"
KNAME = NAME + "_kernel"
MB = 1 << 20
WS_MOD = 0
WS_ST  = 0x10000
WS_FLAG = 0x60000
WS_QK  = 1 * MB
WS_V   = 5 * MB
WS_O   = 7 * MB
WS_X1  = 9 * MB
WS_Z2  = 19 * MB
WS_Y   = 23 * MB
F0, F1, F2, F3, F4, F5 = 0x0, 0x1000, 0x3000, 0x4000, 0x5000, 0x6000
P_X, P_WQKV, P_WO, P_BX, P_WIN, P_WSP, P_BSP, P_WOUT, P_C, P_WMOD, P_OUT, P_DBG, P_WS = [64 + 2*i for i in range(13)]
LOG2E = 1.4426950408889634
S_QB, S_HEAD, S_NONCE, SRD_F = 57, 58, 59, 60
ST = "sc0 sc1"
SPIN_CAP = 1 << 17

def f2u(x):
    import struct
    return struct.unpack('<I', struct.pack('<f', x))[0]
def fl(x): return f"0x{f2u(x):08x}"

class Gen:
    STAMPS = False
    PREFETCH = True
    def __init__(self):
        self.a = Asm()
        self.nstamp = 0
    def e(self, s): self.a.e(s)
    def lab(self, b): return self.a.newlabel(b)

    def stamp(self, i):
        if not Gen.STAMPS: return
        e = self.e
        sk = self.lab("stamp")
        e("s_cmp_ge_u32 s2, 4"); e(f"s_cbranch_scc1 {sk}")
        e("s_and_b32 s46, s3, 3"); e("s_cmp_lg_u32 s46, 0"); e(f"s_cbranch_scc1 {sk}")
        e("s_memtime s[46:47]"); e("s_waitcnt lgkmcnt(0)")
        e("s_sub_u32 s46, s46, s90")
        e(f"v_writelane_b32 v255, s46, {i}")
        self.a.label(sk)

    def srd(self, d, ptr, off, size):
        e = self.e
        if off:
            e(f"s_add_u32 s{d}, s{ptr}, 0x{off:x}"); e(f"s_addc_u32 s{d+1}, s{ptr+1}, 0")
        else:
            e(f"s_mov_b32 s{d}, s{ptr}"); e(f"s_mov_b32 s{d+1}, s{ptr+1}")
        e(f"s_mov_b32 s{d+2}, 0x{size:x}"); e(f"s_mov_b32 s{d+3}, 0x20000")

    def bf16_round(self, d, s):
        self.e(f"v_cvt_pk_bf16_f32 v{d}, v{s}, v{s}")
        self.e(f"v_lshlrev_b32 v{d}, 16, v{d}")

    def dpp_reduce16(self, regs):
        for m in ("quad_perm:[1,0,3,2]", "quad_perm:[2,3,0,1]", "row_half_mirror", "row_mirror"):
            for r in regs:
                self.e(f"v_add_f32_dpp v{r}, v{r}, v{r} {m} row_mask:0xf bank_mask:0xf")

    def dma(self, voff, srd, soff, m0expr, width="dwordx4"):
        self.e(m0expr)
        self.e("s_nop 0")
        self.e(f"buffer_load_{width} v{voff}, {sr(srd,4)}, {soff} offen lds")

    def phase_end(self):
        self.e("s_waitcnt vmcnt(0) lgkmcnt(0)")
        self.e("s_barrier")

    def signal(self, soff_code, nrep=1, rep_stride=0):
        e = self.e
        sk = self.lab("sig")
        e("s_cmp_lg_u32 s3, 7"); e(f"s_cbranch_scc1 {sk}")
        soff_code()
        e(f"v_mov_b32 v250, s{S_NONCE}")
        e(f"v_mul_u32_u24 v251, {max(rep_stride,1)}, v1")
        e(f"s_mov_b64 exec, {(1 << nrep) - 1}")
        e(f"buffer_store_dword v250, v251, s[{SRD_F}:{SRD_F+3}], s46 offen {ST}")
        e("s_mov_b64 exec, -1")
        self.a.label(sk)

    def wait_flags(self, polls):
        e = self.e
        sk = self.lab("wf")
        e("s_cmp_lg_u32 s3, 7"); e(f"s_cbranch_scc1 {sk}")
        for (code, mask) in polls:
            code()
            e(f"s_mov_b32 s42, 0x{mask & 0xffffffff:x}"); e(f"s_mov_b32 s43, 0x{mask >> 32:x}")
            e("s_mov_b32 s47, 0")
            lp = self.lab("poll"); dn = self.lab("polled")
            self.a.label(lp)
            e(f"buffer_load_dword v250, v251, s[{SRD_F}:{SRD_F+3}], s46 offen {ST}")
            e("s_add_u32 s47, s47, 1")
            e(f"s_cmp_gt_u32 s47, {SPIN_CAP}")
            e(f"s_cbranch_scc1 {dn}")
            e("s_waitcnt vmcnt(0)")
            e(f"v_cmp_eq_u32 vcc, s{S_NONCE}, v250")
            e("s_and_b64 vcc, vcc, s[42:43]")
            e("s_cmp_eq_u64 vcc, s[42:43]")
            e(f"s_cbranch_scc0 {lp}")
            self.a.label(dn)
        self.a.label(sk)
        e("s_barrier")

    def prologue(self, endlab):
        e = self.e
        e("s_cmp_ge_u32 s2, 256"); e(f"s_cbranch_scc1 {endlab}")
        e("s_load_dwordx16 s[64:79], s[0:1], 0")
        e("s_load_dwordx8 s[80:87], s[0:1], 64")
        e("s_load_dwordx2 s[88:89], s[0:1], 96")
        e("v_and_b32 v1, 63, v0")
        e("v_lshrrev_b32 v2, 6, v0")
        e("v_readfirstlane_b32 s3, v2")
        if Gen.STAMPS:
            e("s_memtime s[90:91]"); e("v_mov_b32 v255, 0")
        e("s_and_b32 s20, s2, 7"); e("s_lshr_b32 s21, s2, 3")
        e("s_and_b32 s4, s20, 3"); e("s_lshl_b32 s4, s4, 3"); e("s_and_b32 s22, s21, 7"); e("s_add_u32 s4, s4, s22")
        e("s_lshr_b32 s5, s20, 2"); e("s_lshl_b32 s5, s5, 2"); e("s_lshr_b32 s22, s21, 3"); e("s_add_u32 s5, s5, s22")
        e(f"s_lshl_b32 s{S_HEAD}, s20, 2"); e("s_and_b32 s22, s21, 3"); e(f"s_add_u32 s{S_HEAD}, s{S_HEAD}, s22")
        e(f"s_lshr_b32 s{S_QB}, s21, 2")
        e("s_waitcnt lgkmcnt(0)")
        self.srd(SRD_F, P_WS, WS_FLAG, 0x10000)
        sk = self.lab("nn")
        e("s_cmp_lg_u32 s3, 7"); e(f"s_cbranch_scc1 {sk}")
        self.srd(8, P_DBG, 0, 256)
        e("v_mov_b32 v251, 0")
        g = self.lab("ng")
        e("s_cmp_lg_u32 s2, 0"); e(f"s_cbranch_scc1 {g}")
        e("s_memrealtime s[46:47]"); e("s_waitcnt lgkmcnt(0)")
        e("s_or_b32 s46, s46, 1")
        e("v_mov_b32 v250, s46")
        e("s_mov_b64 exec, 1")
        e(f"buffer_store_dword v250, v251, s[8:11], 0 offen {ST}")
        e("s_mov_b64 exec, -1")
        self.a.label(g)
        self.a.label(sk)

    def get_nonce(self):
        e = self.e
        sk = self.lab("gn")
        e("s_cmp_lg_u32 s3, 7"); e(f"s_cbranch_scc1 {sk}")
        self.srd(48, P_DBG, 0, 256)
        e("v_mov_b32 v251, 0"); e("s_mov_b32 s47, 0")
        lp = self.lab("gnp"); dn = self.lab("gnd")
        self.a.label(lp)
        e(f"buffer_load_dword v250, v251, s[48:51], 0 offen {ST}")
        e("s_add_u32 s47, s47, 1"); e(f"s_cmp_gt_u32 s47, {SPIN_CAP}"); e(f"s_cbranch_scc1 {dn}")
        e("s_waitcnt vmcnt(0)")
        e(f"v_readfirstlane_b32 s{S_NONCE}, v250")
        e(f"s_cmp_eq_u32 s{S_NONCE}, 0"); e(f"s_cbranch_scc1 {lp}")
        self.a.label(dn)
        self.a.label(sk)

    def ln_loads(self, srd_x, s_rowoff):
        e = self.e
        e("v_lshrrev_b32 v3, 4, v1"); e("v_and_b32 v4, 15, v1")
        e("s_lshl_b32 s20, s3, 3")
        e("v_add_u32 v5, s20, v3"); e("v_lshlrev_b32 v5, 10, v5"); e("v_lshl_add_u32 v5, v4, 4, v5")
        e(f"s_add_u32 s21, s{s_rowoff}, 4096")
        for a in range(2):
            so = s_rowoff if a == 0 else 21
            for j in range(4):
                b = 32 + 16*a + 4*j
                e(f"buffer_load_dwordx4 v[{b}:{b+3}], v5, {sr(srd_x,4)}, s{so} offen offset:{256*j}")

    def mod_dma(self, srd_mod, first_chunk, lds_off):
        e = self.e
        e("v_lshlrev_b32 v6, 2, v1")
        e("s_lshl_b32 s20, s3, 9")
        for q in range(2):
            e(f"s_add_u32 s22, s20, {first_chunk*2048 + q*256}")
            self.dma(6, srd_mod, "s22", f"s_add_u32 m0, s20, {lds_off + q*256}", "dword")

    def ln_stats(self, fillers):
        e = self.e
        X = 128
        it = iter(fillers)
        def fill():
            f = next(it, None)
            if f: f()
        for a in range(2):
            for q in range(16):
                s = 32 + 16*a + q
                e(f"v_lshlrev_b32 v{X+32*a+2*q}, 16, v{s}")
                e(f"v_and_b32 v{X+32*a+2*q+1}, 0xffff0000, v{s}")
            fill()
        A = lambda a, k: 8 + 8*a + 2*k
        for a in range(2):
            for k in range(4):
                e(f"v_pk_add_f32 v[{A(a,k)}:{A(a,k)+1}], v[{X+32*a+4*k}:{X+32*a+4*k+1}], v[{X+32*a+4*k+2}:{X+32*a+4*k+3}]")
        for q in range(8, 16):
            for a in range(2):
                k = q % 4
                e(f"v_pk_add_f32 v[{A(a,k)}:{A(a,k)+1}], v[{A(a,k)}:{A(a,k)+1}], v[{X+32*a+2*q}:{X+32*a+2*q+1}]")
        fill()
        for a in range(2):
            e(f"v_pk_add_f32 v[{A(a,0)}:{A(a,0)+1}], v[{A(a,0)}:{A(a,0)+1}], v[{A(a,1)}:{A(a,1)+1}]")
            e(f"v_pk_add_f32 v[{A(a,2)}:{A(a,2)+1}], v[{A(a,2)}:{A(a,2)+1}], v[{A(a,3)}:{A(a,3)+1}]")
        for a in range(2):
            e(f"v_pk_add_f32 v[{A(a,0)}:{A(a,0)+1}], v[{A(a,0)}:{A(a,0)+1}], v[{A(a,2)}:{A(a,2)+1}]")
        for a in range(2):
            e(f"v_add_f32 v{24+2*a}, v{A(a,0)}, v{A(a,0)+1}")
        self.dpp_reduce16([24, 26])
        for a in range(2):
            e(f"v_mul_f32 v{24+2*a}, {fl(-1.0/512)}, v{24+2*a}")
            e(f"v_mov_b32 v{25+2*a}, v{24+2*a}")
            for r in range(8): e(f"v_mov_b32 v{8+8*a+r}, 0")
        fill()
        for q in range(16):
            for a in range(2):
                r = X + 32*a + 2*q
                e(f"v_pk_add_f32 v[{r}:{r+1}], v[{r}:{r+1}], v[{24+2*a}:{25+2*a}]")
            if q > 0:
                for a in range(2):
                    r = X + 32*a + 2*(q-1); k = (q-1) % 4
                    e(f"v_pk_fma_f32 v[{A(a,k)}:{A(a,k)+1}], v[{r}:{r+1}], v[{r}:{r+1}], v[{A(a,k)}:{A(a,k)+1}]")
            if q % 4 == 3: fill()
        for a in range(2):
            r = X + 32*a + 30; k = 3
            e(f"v_pk_fma_f32 v[{A(a,k)}:{A(a,k)+1}], v[{r}:{r+1}], v[{r}:{r+1}], v[{A(a,k)}:{A(a,k)+1}]")
        for a in range(2):
            e(f"v_pk_add_f32 v[{A(a,0)}:{A(a,0)+1}], v[{A(a,0)}:{A(a,0)+1}], v[{A(a,1)}:{A(a,1)+1}]")
            e(f"v_pk_add_f32 v[{A(a,2)}:{A(a,2)+1}], v[{A(a,2)}:{A(a,2)+1}], v[{A(a,3)}:{A(a,3)+1}]")
        for a in range(2):
            e(f"v_pk_add_f32 v[{A(a,0)}:{A(a,0)+1}], v[{A(a,0)}:{A(a,0)+1}], v[{A(a,2)}:{A(a,2)+1}]")
        for a in range(2):
            e(f"v_add_f32 v{24+a}, v{A(a,0)}, v{A(a,0)+1}")
        self.dpp_reduce16([24, 25])
        for a in range(2):
            e(f"v_mov_b32 v14, {fl(1e-5)}")
            e(f"v_fmac_f32 v14, {fl(1.0/512)}, v{24+a}")
            e(f"v_rsq_f32 v{20+2*a}, v14")
        for a in range(2):
            e(f"v_mov_b32 v{21+2*a}, v{20+2*a}")
        for f in it: f()
        for a in range(2):
            for q in range(16):
                r = X + 32*a + 2*q
                e(f"v_pk_mul_f32 v[{r}:{r+1}], v[{r}:{r+1}], v[{20+2*a}:{21+2*a}]")

    def ln_finish(self, lds_mod):
        e = self.e
        X = 128
        e("v_lshrrev_b32 v3, 4, v1"); e("v_and_b32 v4, 15, v1")
        e("v_lshlrev_b32 v6, 5, v4")
        e(f"v_add_u32 v6, {lds_mod}, v6")
        for j in range(4):
            for hh in range(2):
                e(f"ds_read_b128 v[{64+8*j+4*hh}:{67+8*j+4*hh}], v6 offset:{2048 + 512*j + 16*hh}")
                e(f"ds_read_b128 v[{96+8*j+4*hh}:{99+8*j+4*hh}], v6 offset:{512*j + 16*hh}")
        for a in range(2):
            e(f"s_lshl_b32 s20, s3, 3"); e(f"s_add_u32 s20, s20, {4*a}")
            e(f"v_add_u32 v15, s20, v3"); e(f"v_and_b32 v16, 15, v15"); e(f"v_xor_b32 v16, v16, v4")
            e(f"v_lshlrev_b32 v15, 10, v15"); e(f"v_lshl_add_u32 v{18+a}, v16, 4, v15")
        for j in range(4):
            e(f"s_waitcnt lgkmcnt({4*(3-j) + 2*j if False else min(15, 4*(3-j) + 2*j)})" if False else f"s_waitcnt lgkmcnt({4*(3-j)})" if j == 0 else "s_waitcnt lgkmcnt(0)" if j == 1 else "s_nop 0")
            for a in range(2):
                for q in range(4):
                    r = X + 32*a + 8*j + 2*q
                    e(f"v_pk_fma_f32 v[{r}:{r+1}], v[{r}:{r+1}], v[{64+8*j+2*q}:{65+8*j+2*q}], v[{96+8*j+2*q}:{97+8*j+2*q}]")
                pk = 24 + 4*a
                for q in range(4):
                    r = X + 32*a + 8*j + 2*q
                    e(f"v_cvt_pk_bf16_f32 v{pk+q}, v{r}, v{r+1}")
                e(f"ds_write_b128 v{18+a}, v[{pk}:{pk+3}] offset:{256*j}")

    def p01(self):
        e = self.e
        RING = 65536; SL = 12288; D = 7; MODL = RING + D*SL
        MSCR = 155648
        self.srd(8, P_X, 0, 2048*512*2)
        self.srd(12, P_WS, WS_MOD, 12288)
        self.srd(16, P_WQKV, 0, 512*1536*2)
        self.srd(24, P_WS, WS_QK, 4*MB)
        self.srd(28, P_WS, WS_V, 2*MB)
        self.srd(32, P_WMOD, 0, 512*3072*2)
        self.srd(36, P_C, 0, 1024)
        nomod1 = self.lab("nomod")
        e("s_cmp_ge_u32 s2, 96"); e(f"s_cbranch_scc1 {nomod1}")
        e("v_and_b32 v72, 3, v0"); e("v_lshrrev_b32 v73, 2, v0")
        e("v_mul_u32_u24 v74, 6144, v73"); e("v_lshl_add_u32 v74, v72, 4, v74")
        e("v_lshlrev_b32 v75, 1, v73")
        e("s_lshl_b32 s20, s2, 6")
        for i in range(4): e(f"s_add_u32 s{40+i}, s20, {i*128*6144}")
        for i in range(4): e(f"buffer_load_dwordx4 v[{80+4*i}:{83+4*i}], v74, s[32:35], s{40+i} offen")
        for i in range(4): e(f"buffer_load_ushort v{76+i}, v75, s[36:39], 0 offen offset:{256*i}")
        self.a.label(nomod1)
        e("s_lshl_b32 s6, s4, 16")
        self.ln_loads(8, 6)
        tk = self.lab("touch")
        e("s_cmp_ge_u32 s3, 3"); e(f"s_cbranch_scc1 {tk}")
        e("s_and_b32 s20, s4, 7"); e("s_lshl_b32 s20, s20, 6")
        e("v_add_u32 v7, s20, v1"); e("v_mul_u32_u24 v7, 3072, v7")
        e("s_lshl_b32 s20, s5, 8"); e("s_lshl_b32 s21, s3, 7"); e("s_add_u32 s20, s20, s21")
        e("s_lshl_b32 s21, s5, 7"); e("s_add_u32 s21, s21, 2048")
        e("s_cmp_eq_u32 s3, 2"); e("s_cselect_b32 s20, s21, s20")
        e("buffer_load_dword v9, v7, s[16:19], s20 offen")
        self.a.label(tk)
        self.get_nonce()
        e("s_and_b32 s7, s3, 3")
        for m in range(3):
            d = 192 + m
            e(f"s_lshl_b32 s20, s7, 6"); e(f"s_add_u32 s20, s20, {256*m}")
            e(f"v_add_u32 v200, s20, v1")
            e(f"v_mul_u32_u24 v201, 2731, v200"); e(f"v_lshrrev_b32 v201, 16, v201")
            e(f"v_mul_u32_u24 v202, 24, v201"); e(f"v_sub_u32 v202, v200, v202")
            e(f"v_bfe_u32 v203, v201, 1, 1"); e(f"v_bfe_u32 v204, v201, 3, 1")
            e(f"v_lshl_or_b32 v203, v204, 1, v203"); e(f"v_lshlrev_b32 v203, 1, v203")
            e(f"v_xor_b32 v202, v202, v203"); e(f"v_lshlrev_b32 v203, 4, v202")
            e(f"s_lshl_b32 s20, s5, 8"); e(f"v_add_u32 v204, s20, v203")
            e(f"s_lshl_b32 s20, s5, 7"); e(f"s_add_u32 s20, s20, {2048-256}"); e(f"v_add_u32 v205, s20, v203")
            e(f"v_cmp_gt_u32 vcc, 16, v202"); e(f"v_cndmask_b32 v204, v205, v204, vcc")
            e(f"v_mul_u32_u24 v201, 3072, v201"); e(f"v_add_u32 v{d}, v201, v204")
        e("s_lshl_b32 s7, s7, 10"); e(f"s_add_u32 s7, s7, {RING}")
        e("s_lshr_b32 s32, s3, 2")
        nomod2 = self.lab("nomod")
        e("s_cmp_ge_u32 s2, 96"); e(f"s_cbranch_scc1 {nomod2}")
        self.srd(32, P_WMOD, 0, 512*3072*2) if False else None
        for j in range(8): e(f"v_mov_b32 v{64+j}, 0")
        e("s_waitcnt vmcnt(8)")
        for i in range(4):
            c = 76 + i
            e(f"v_lshlrev_b32 v{c}, 16, v{c}")
            e(f"v_mul_f32 v12, {fl(-LOG2E)}, v{c}"); e("v_exp_f32 v12, v12"); e("v_add_f32 v12, 1.0, v12"); e("v_rcp_f32 v12, v12")
            e(f"v_mul_f32 v{c}, v{c}, v12")
            self.bf16_round(c, c)
        for i in range(4):
            for q in range(4):
                w = 80 + 4*i + q
                e(f"v_lshlrev_b32 v12, 16, v{w}"); e(f"v_and_b32 v13, 0xffff0000, v{w}")
                e(f"v_fmac_f32 v{64+2*q}, v{76+i}, v12"); e(f"v_fmac_f32 v{65+2*q}, v{76+i}, v13")
        for m in ("row_ror:4", "row_ror:8"):
            for j in range(8): e(f"v_add_f32_dpp v{64+j}, v{64+j}, v{64+j} {m} row_mask:0xf bank_mask:0xf")
        e("v_lshrrev_b32 v12, 4, v0"); e("v_lshlrev_b32 v12, 7, v12"); e("v_lshl_add_u32 v12, v72, 5, v12")
        e(f"v_add_u32 v12, {MSCR}, v12")
        e("v_and_b32 v13, 12, v1"); e("v_cmp_eq_u32 vcc, 0, v13")
        e("s_and_saveexec_b64 s[26:27], vcc") if False else None
        e("s_and_saveexec_b64 s[44:45], vcc")
        e("ds_write_b128 v12, v[64:67]"); e("ds_write_b128 v12, v[68:71] offset:16")
        e("s_mov_b64 exec, s[44:45]")
        e("s_waitcnt lgkmcnt(0)"); e("s_barrier")
        mdone = self.lab("mdone")
        e("s_cmp_lg_u32 s3, 7"); e(f"s_cbranch_scc1 {mdone}")
        e("v_and_b32 v72, 31, v1"); e("v_lshrrev_b32 v73, 5, v1")
        e("v_lshlrev_b32 v12, 11, v73"); e("v_lshl_add_u32 v12, v72, 2, v12"); e(f"v_add_u32 v12, {MSCR}, v12")
        for i in range(16): e(f"ds_read_b32 v{80+i}, v12 offset:{128*i}")
        e("s_waitcnt lgkmcnt(0)")
        for i in range(1, 16): e(f"v_add_f32 v80, v80, v{80+i}")
        e("v_mov_b32 v81, v80"); e("v_permlane32_swap_b32 v80, v81"); e("v_add_f32 v80, v80, v81")
        self.bf16_round(80, 80)
        skip = self.lab("noone")
        e("s_lshr_b32 s20, s2, 4")
        e("s_cmp_eq_u32 s20, 1"); e("s_cselect_b32 s21, 1, 0"); e("s_cmp_eq_u32 s20, 4"); e("s_cselect_b32 s21, 1, s21")
        e("s_cmp_eq_u32 s21, 0"); e(f"s_cbranch_scc1 {skip}")
        e("v_add_f32 v80, 1.0, v80")
        self.bf16_round(80, 80)
        self.a.label(skip)
        e("s_lshl_b32 s20, s2, 7"); e("v_lshlrev_b32 v72, 2, v72")
        e("s_mov_b32 exec_hi, 0")
        e(f"buffer_store_dword v80, v72, s[12:15], s20 offen {ST}")
        e("s_mov_b64 exec, -1")
        e("s_waitcnt vmcnt(0)")
        self.signal(lambda: (e("s_lshl_b32 s46, s2, 2"), e(f"s_add_u32 s46, s46, {F0}")), nrep=8, rep_stride=512)
        self.a.label(mdone)
        self.a.label(nomod2)
        self.stamp(0)
        e(f"s_mul_i32 s33, s32, {32*3072}")
        e(f"s_mul_i32 s34, s32, {SL}"); e("s_add_u32 s34, s34, s7")
        def issue_pair(pairidx):
            def f():
                e(f"s_add_u32 s23, s33, {2*pairidx*32*3072}")
                for m in range(3):
                    self.dma(192+m, 16, "s23", f"s_add_u32 m0, s34, {2*pairidx*SL + m*4096}")
            return f
        issue_pair(0)()
        e("s_waitcnt vmcnt(3)")
        self.stamp(1)
        nop = lambda: None
        self.ln_stats([nop, nop, issue_pair(1), nop, nop, issue_pair(2)])
        self.stamp(2)
        def c0():
            e("s_and_b32 s46, s2, 7"); e("s_lshl_b32 s46, s46, 9"); e(f"s_add_u32 s46, s46, {F0}")
            e("v_lshlrev_b32 v251, 2, v1")
        self.wait_flags([(c0, 0xffffffff)])
        self.stamp(3)
        self.mod_dma(12, 0, MODL)
        e("v_lshrrev_b32 v3, 4, v1"); e("v_and_b32 v4, 15, v1")
        e("v_lshrrev_b32 v5, 2, v4"); e("v_and_b32 v6, 3, v4")
        e("v_lshl_add_u32 v7, v3, 3, v5"); e("v_mul_u32_u24 v7, 384, v7"); e("v_lshl_add_u32 v7, v6, 3, v7")
        e(f"v_add_u32 v7, {RING}, v7")
        e("v_bfe_u32 v8, v5, 1, 1"); e("v_and_b32 v9, 1, v3"); e("v_lshl_or_b32 v8, v9, 1, v8")
        e("s_lshr_b32 s20, s3, 1")
        for c in range(3):
            if c < 2: e(f"s_lshl_b32 s21, s20, 1"); e(f"s_add_u32 s21, s21, {c}")
            else: e(f"s_add_u32 s21, s20, 8")
            e("s_lshr_b32 s22, s21, 2"); e("s_lshl_b32 s22, s22, 7"); e("s_and_b32 s21, s21, 3")
            e(f"v_xor_b32 v9, s21, v8"); e(f"v_lshl_add_u32 v{200+c}, v9, 5, v7"); e(f"v_add_u32 v{200+c}, s22, v{200+c}")
            e(f"v_add_u32 v{204+c}, {5*SL}, v{200+c}")
        e("s_and_b32 s21, s3, 1"); e("s_lshl_b32 s21, s21, 5")
        e("v_add_u32 v9, s21, v4"); e("v_lshlrev_b32 v9, 10, v9")
        for m in range(4):
            e(f"v_add_u32 v10, {4*m}, v3"); e(f"v_xor_b32 v10, v10, v4"); e(f"v_lshl_add_u32 v{208+m}, v10, 4, v9")
        e("s_waitcnt vmcnt(0)")
        e("s_barrier")
        self.ln_finish(MODL)
        ACC = 128
        e("s_waitcnt lgkmcnt(0)")
        e("s_barrier")
        for r in range(24): e(f"v_mov_b32 v{192+8+r}, 0") if False else None
        ACC = 212
        for r in range(24): e(f"v_mov_b32 v{ACC+r}, 0")
        self.stamp(4)
        def reads_list(n):
            buf = n % 2; slot = n % D
            out = []
            for rt in range(2):
                b = 32 + 32*buf + 4*rt
                out.append(f"ds_read_b128 v[{b}:{b+3}], v{208 + (n & 3)} offset:{rt*16384 + (n >> 2)*256}")
            for c in range(3):
                b = 40 + 32*buf + 4*c
                areg, off = (200 + c, slot*SL) if slot < 5 else (204 + c, (slot-5)*SL)
                for t in range(2):
                    out.append(f"ds_read_b64_tr_b16 v[{b+2*t}:{b+2*t+1}], v{areg} offset:{off + 4*t*384}")
            return out
        def mfmas(n):
            buf = n % 2
            for c in range(3):
                for rt in range(2):
                    acc = ACC + 4*(rt*3 + c)
                    x = 32 + 32*buf + 4*rt; w = 40 + 32*buf + 4*c
                    A, B = (w, x) if c < 2 else (x, w)
                    yield f"v_mfma_f32_16x16x32_bf16 v[{acc}:{acc+3}], v[{A}:{A+3}], v[{B}:{B+3}], v[{acc}:{acc+3}]"
        NK = 16
        for r in reads_list(0): e(r)
        for n in range(NK):
            if n + 1 < NK:
                if n + 1 >= 6:
                    hi = min(n + 5, NK - 1)
                    cA = sum(1 for s in range(max(n+2, 6), hi+1) if s % 2 == 0); cB = sum(1 for s in range(max(n+2, 6), hi+1) if s % 2 == 1)
                    e(f"s_waitcnt vmcnt({3*min(cA, cB)})")
                e("s_barrier")
            e("s_waitcnt lgkmcnt(0)")
            ms = list(mfmas(n)); rs = reads_list(n + 1) if n + 1 < NK else []
            ri = 0
            for i, m in enumerate(ms):
                e(m)
                for _ in range(2 if i < 2 else 1):
                    if ri < len(rs): e(rs[ri]); ri += 1
            st = n + D - 1
            if st < NK:
                lsk = self.lab("qkv_sk")
                e(f"s_cmp_lg_u32 s32, {st & 1}"); e(f"s_cbranch_scc1 {lsk}")
                e(f"s_mov_b32 s23, {st*32*3072}")
                for m in range(3): self.dma(192+m, 16, "s23", f"s_add_u32 m0, s7, {(st % D)*SL + m*4096}")
                self.a.label(lsk)
        self.stamp(5)
        e("v_lshrrev_b32 v3, 4, v1"); e("v_and_b32 v4, 15, v1")
        e("v_lshrrev_b32 v5, 1, v3"); e("v_and_b32 v6, 1, v3"); e("v_lshlrev_b32 v7, 4, v4")
        e("v_lshl_add_u32 v8, v5, 9, v7"); e("v_lshl_add_u32 v8, v6, 3, v8")
        e("v_lshl_add_u32 v9, v6, 8, v7"); e("v_lshl_add_u32 v9, v5, 3, v9")
        e("s_and_b32 s20, s3, 1"); e("s_lshl_b32 s21, s4, 1"); e("s_add_u32 s21, s21, s20"); e("s_lshl_b32 s21, s21, 10")
        e("s_lshr_b32 s20, s3, 1")
        e(f"s_mov_b32 s22, {fl(0.25*LOG2E)}"); e("s_cmp_lt_u32 s5, 4"); e("s_cselect_b32 s22, s22, 1.0")
        for c in range(3):
            if c < 2:
                e("s_lshl_b32 s23, s5, 3"); e("s_lshl_b32 s6, s20, 1"); e("s_add_u32 s23, s23, s6"); e(f"s_add_u32 s23, s23, {c}")
            else:
                e("s_lshl_b32 s23, s5, 2"); e("s_add_u32 s23, s23, s20")
            e("s_lshl_b32 s23, s23, 16"); e("s_add_u32 s23, s23, s21")
            for rt in range(2):
                acc = ACC + 4*(rt*3 + c)
                pk = 32 + 2*(rt + 2*c)
                if c < 2:
                    for q in range(4): e(f"v_mul_f32 v{acc+q}, s22, v{acc+q}")
                e(f"v_cvt_pk_bf16_f32 v{pk}, v{acc}, v{acc+1}"); e(f"v_cvt_pk_bf16_f32 v{pk+1}, v{acc+2}, v{acc+3}")
                if c < 2: e(f"buffer_store_dwordx2 v[{pk}:{pk+1}], v8, s[24:27], s23 offen offset:{rt*256} {ST}")
                else:     e(f"buffer_store_dwordx2 v[{pk}:{pk+1}], v9, s[28:31], s23 offen offset:{rt*512} {ST}")
        self.phase_end()
        self.signal(lambda: (e("s_lshl_b32 s46, s5, 7"), e("s_lshl_b32 s47, s4, 2"), e("s_add_u32 s46, s46, s47"), e(f"s_add_u32 s46, s46, {F1}")),
                    nrep=8, rep_stride=1024)
        self.stamp(6)

    def l2_prefetch(self, vtmp, vdst):
        e = self.e
        e("s_and_b32 s20, s2, 7"); e("s_lshr_b32 s21, s2, 3")
        e(f"v_lshlrev_b32 v{vtmp}, 7, v1")
        self.srd(48, P_WSP, 0, 2048*2048*2)
        e("s_and_b32 s22, s20, 3"); e("s_lshl_b32 s22, s22, 21"); e("s_lshl_b32 s23, s21, 16"); e("s_add_u32 s22, s22, s23")
        e("s_lshl_b32 s23, s3, 13"); e("s_add_u32 s22, s22, s23")
        e(f"buffer_load_dword v{vdst}, v{vtmp}, s[48:51], s22 offen")
        self.srd(48, P_WIN, 0, 512*1792*2)
        e(f"v_lshrrev_b32 v{vdst+1}, 5, v1"); e(f"v_bfe_u32 v{vdst+2}, v1, 4, 1")
        e(f"v_and_b32 v{vdst+3}, 15, v1"); e(f"v_min_u32 v{vdst+3}, 7, v{vdst+3}")
        e(f"v_mul_u32_u24 v{vdst+1}, 3584, v{vdst+1}"); e(f"v_mul_u32_u24 v{vdst+2}, 1792, v{vdst+2}")
        e(f"v_add_u32 v{vdst+1}, v{vdst+1}, v{vdst+2}"); e(f"v_lshl_add_u32 v{vdst+1}, v{vdst+3}, 7, v{vdst+1}")
        e("s_lshr_b32 s22, s20, 2"); e("s_mul_i32 s22, s22, 896")
        e("s_lshl_b32 s23, s21, 4"); e("s_lshl_b32 s46, s3, 1"); e("s_add_u32 s23, s23, s46"); e("s_mul_i32 s23, s23, 3584")
        e("s_add_u32 s22, s22, s23")
        e(f"buffer_load_dword v{vdst+2}, v{vdst+1}, s[48:51], s22 offen")
        e(f"v_lshrrev_b32 v{vdst+1}, 2, v1"); e(f"v_and_b32 v{vdst+3}, 3, v1")
        e(f"v_lshlrev_b32 v{vdst+1}, 10, v{vdst+1}"); e(f"v_lshl_add_u32 v{vdst+1}, v{vdst+3}, 7, v{vdst+1}")
        e("s_lshr_b32 s22, s20, 2"); e("s_lshl_b32 s22, s22, 9")
        lw = self.lab("pf_w"); lx = self.lab("pf_x")
        e("s_cmp_ge_u32 s3, 2"); e(f"s_cbranch_scc1 {lw}")
        self.srd(48, P_WOUT, 0, 896*512*2)
        e("s_mul_i32 s23, s21, 28"); e("s_lshl_b32 s46, s3, 4"); e("s_add_u32 s23, s23, s46"); e("s_lshl_b32 s23, s23, 10")
        e("s_add_u32 s22, s22, s23")
        e(f"buffer_load_dword v{vdst+3}, v{vdst+1}, s[48:51], s22 offen")
        e(f"s_branch {lx}")
        self.a.label(lw)
        e("s_cmp_lg_u32 s3, 2"); e(f"s_cbranch_scc1 {lx}")
        self.srd(48, P_WO, 0, 512*512*2)
        e("s_lshl_b32 s23, s21, 14"); e("s_add_u32 s22, s22, s23")
        e(f"buffer_load_dword v{vdst+3}, v{vdst+1}, s[48:51], s22 offen")
        self.a.label(lx)

    def p2(self):
        e = self.e
        end = self.lab("att_end")
        H, QB_ = S_HEAD, S_QB
        self.srd(8, P_WS, WS_QK, 4*MB)
        self.srd(12, P_WS, WS_V, 2*MB)
        self.srd(16, P_WS, WS_O, 2*MB)
        e("s_and_b32 s6, s3, 3"); e("s_lshr_b32 s7, s3, 2")
        e("v_lshlrev_b32 v2, 4, v1")
        QA, QB = 8, 12
        SA, SB = 32, 48
        PA, PB = 64, 72
        OA, OB = 80, 96
        CA, CB = 112, 128
        KF = 144; VF = 152
        AK, AV = 4, 5
        FLAG = 131072 + 20480
        e(f"v_mov_b32 v3, {FLAG}"); e("v_mov_b32 v4, 0"); e("ds_write_b32 v3, v4")
        e("v_and_b32 v6, 31, v1"); e("v_and_b32 v7, 27, v6"); e("v_cmp_eq_u32 vcc, 16, v7")
        e("v_mov_b32 v16, 0x3f803f80"); e("v_cndmask_b32 v16, 0, v16, vcc")
        for r in range(16): e(f"v_mov_b32 v{VF+r}, v16")
        e("v_cmp_gt_u32 s[30:31], 16, v6")
        for r in range(16):
            e(f"v_mov_b32 v{CA+r}, 0"); e(f"v_mov_b32 v{CB+r}, 0")
        e("s_mov_b32 s33, 0")
        def cKV():
            e("s_and_b32 s46, s2, 7"); e("s_lshl_b32 s46, s46, 10"); e(f"s_add_u32 s46, s46, {F1}")
            e(f"s_lshr_b32 s44, s{H}, 3"); e("s_add_u32 s44, s44, 4"); e("s_lshl_b32 s44, s44, 7")
            e(f"s_lshr_b32 s45, s{H}, 2"); e("s_lshl_b32 s45, s45, 7")
            e("v_and_b32 v251, 31, v1"); e("v_lshlrev_b32 v251, 2, v251")
            e("v_mov_b32 v252, s44"); e("v_mov_b32 v253, s45")
            e("v_cmp_gt_u32 vcc, 32, v1"); e("v_cndmask_b32 v252, v253, v252, vcc")
            e("v_add_u32 v251, v251, v252")
        def cQ():
            e("s_and_b32 s46, s2, 7"); e("s_lshl_b32 s46, s46, 10"); e(f"s_add_u32 s46, s46, {F1}")
            e(f"s_lshr_b32 s44, s{H}, 3"); e("s_lshl_b32 s44, s44, 7"); e("s_add_u32 s46, s46, s44")
            e(f"s_lshl_b32 s44, s{QB_}, 4"); e("s_add_u32 s46, s46, s44")
            e("v_lshlrev_b32 v251, 2, v1")
        self.wait_flags([(cKV, (1 << 64) - 1), (cQ, 0xf)])
        self.stamp(7)
        e(f"s_lshl_b32 s20, s{QB_}, 3"); e("s_lshl_b32 s21, s6, 1"); e("s_add_u32 s20, s20, s21"); e("s_lshl_b32 s20, s20, 10")
        e(f"s_lshl_b32 s21, s{H}, 16"); e("s_add_u32 s20, s20, s21")
        e(f"buffer_load_dwordx4 v[{QA}:{QA+3}], v2, s[8:11], s20 offen")
        e(f"buffer_load_dwordx4 v[{QB}:{QB+3}], v2, s[8:11], s20 offen offset:1024")
        e(f"s_lshl_b32 s41, s{H}, 16"); e(f"s_add_u32 s40, s41, {32*65536}"); e("s_lshl_b32 s42, s3, 10")
        e("s_add_u32 s40, s40, s42"); e("s_add_u32 s41, s41, s42")
        def dma_half(half):
            e(f"s_add_u32 s20, s40, {32*half*1024}")
            self.dma(2, 8, "s20", f"s_add_u32 m0, s42, {32*half*1024}")
            e(f"s_add_u32 s20, s41, {32*half*1024}")
            self.dma(2, 12, "s20", f"s_add_u32 m0, s42, {65536 + 32*half*1024}")
        def next_chunk():
            e("s_add_u32 s40, s40, 8192"); e("s_add_u32 s41, s41, 8192"); e("s_add_u32 s42, s42, 8192")
        dma_half(0); dma_half(1); next_chunk()
        lrestart = self.lab("att_restart")
        self.a.label(lrestart)
        for r in range(16):
            e(f"v_mov_b32 v{OA+r}, 0"); e(f"v_mov_b32 v{OB+r}, 0")
        e("s_lshl_b32 s20, s7, 15"); e(f"v_add_u32 v{AK}, s20, v2")
        e("v_lshrrev_b32 v6, 5, v1"); e("v_and_b32 v7, 15, v1"); e("v_lshlrev_b32 v7, 4, v7"); e("v_lshl_add_u32 v7, v6, 8, v7")
        e("s_add_u32 s20, s20, 65536"); e(f"v_add_u32 v{AV}, s20, v7")
        for r in range(8): e(f"v_mov_b32 v{PB+r}, 0")
        e("s_mov_b64 exec, s[30:31]")
        for r in range(8): e(f"v_mov_b32 v{VF+8+r}, 0")
        e("s_mov_b64 exec, -1")
        def rdK(buf, off): e(f"ds_read_b128 v[{KF+4*buf}:{KF+4*buf+3}], v{AK} offset:{off}")
        def rdV(buf, off):
            e("s_mov_b64 exec, s[30:31]")
            e(f"ds_read_b128 v[{VF+8*buf}:{VF+8*buf+3}], v{AV} offset:{off}")
            e(f"ds_read_b128 v[{VF+8*buf+4}:{VF+8*buf+7}], v{AV} offset:{off+512}")
            e("s_mov_b64 exec, -1")
        def qk(S, C, Q, buf): e(f"v_mfma_f32_32x32x16_bf16 v[{S}:{S+15}], v[{KF+4*buf}:{KF+4*buf+3}], v[{Q}:{Q+3}], v[{C}:{C+15}]")
        def pv(O, P, buf, mf): e(f"v_mfma_f32_32x32x16_bf16 v[{O}:{O+15}], v[{VF+8*buf+4*mf}:{VF+8*buf+4*mf+3}], v[{P+4*mf}:{P+4*mf+3}], v[{O}:{O+15}]")
        def step(S, P, first, mid1, mid2, pre=None, extra=None):
            if pre: pre()
            first()
            k = 0
            for j in range(16):
                e(f"v_exp_f32 v{S+j}, v{S+j}")
                if j >= 3 and j % 2 == 1:
                    e(f"v_cvt_pk_bf16_f32 v{P+k}, v{S+2*k}, v{S+2*k+1}"); k += 1
                if j == 4 and mid1: mid1()
                if j == 7 and extra: extra()
                if j == 10 and mid2: mid2()
            while k < 8:
                e(f"v_cvt_pk_bf16_f32 v{P+k}, v{S+2*k}, v{S+2*k+1}"); k += 1
        e("s_waitcnt vmcnt(0) lgkmcnt(0)")
        e("s_barrier")
        self.stamp(8)
        rdK(0, 0); rdV(0, 0)
        e("s_waitcnt lgkmcnt(0)")
        qk(SA, CA, QA, 0)
        e("s_mov_b32 s34, 0")
        loop = self.lab("att_loop")
        self.a.label(loop)
        nb = self.lab("att_nobar")
        if self.PREFETCH:
            pf = self.lab("att_pf")
            e("s_add_u32 s20, s34, s33"); e("s_cmp_lg_u32 s20, 6"); e(f"s_cbranch_scc1 {pf}")
            self.l2_prefetch(170, 172)
            self.a.label(pf)
        e("s_and_b32 s20, s34, 3"); e("s_cmp_lg_u32 s20, 3"); e(f"s_cbranch_scc1 {nb}")
        w1 = self.lab("att_w1"); w2 = self.lab("att_w2"); w3 = self.lab("att_w3")
        e("s_cmp_lg_u32 s34, 3"); e(f"s_cbranch_scc1 {w1}")
        e("s_waitcnt vmcnt(2)"); e(f"s_branch {w2}")
        self.a.label(w1)
        e("s_cmp_lg_u32 s34, 7"); e(f"s_cbranch_scc1 {w3}")
        e("s_waitcnt vmcnt(4)"); e(f"s_branch {w2}")
        self.a.label(w3)
        e("s_waitcnt vmcnt(0)")
        self.a.label(w2)
        e("s_barrier")
        self.a.label(nb)
        def extra_dma():
            sk = self.lab("att_nd"); o1 = self.lab("att_d1")
            e("s_add_u32 s20, s34, s33"); e("s_cmp_ge_u32 s20, 6"); e(f"s_cbranch_scc1 {sk}")
            e("s_bitcmp1_b32 s34, 0"); e(f"s_cbranch_scc1 {o1}")
            dma_half(0); e(f"s_branch {sk}")
            self.a.label(o1)
            dma_half(1); next_chunk()
            self.a.label(sk)
        step(SA, PA, lambda: qk(SB, CB, QB, 0), lambda: pv(OB, PB, 1, 0), lambda: pv(OB, PB, 1, 1), pre=lambda: rdK(1, 1024), extra=extra_dma)
        def preB0(): rdV(1, 1024); e("s_waitcnt lgkmcnt(2)")
        step(SB, PB, lambda: qk(SA, CA, QA, 1), lambda: pv(OA, PA, 0, 0), lambda: pv(OA, PA, 0, 1), pre=preB0)
        step(SA, PA, lambda: qk(SB, CB, QB, 1), lambda: pv(OB, PB, 0, 0), lambda: pv(OB, PB, 0, 1), pre=lambda: rdK(0, 2048))
        def preB1(): rdV(0, 2048); e("s_waitcnt lgkmcnt(2)")
        step(SB, PB, lambda: qk(SA, CA, QA, 0), lambda: pv(OA, PA, 1, 0), lambda: pv(OA, PA, 1, 1), pre=preB1)
        e(f"v_add_u32 v{AK}, 2048, v{AK}"); e(f"v_add_u32 v{AV}, 2048, v{AV}")
        e("s_add_u32 s34, s34, 1"); e("s_cmp_lt_u32 s34, 16"); e(f"s_cbranch_scc1 {loop}")
        self.stamp(9)
        pv(OB, PB, 1, 0); pv(OB, PB, 1, 1)
        SCR = 131072
        e("s_mul_i32 s20, s3, 2560"); e(f"s_add_u32 s20, s20, {SCR}")
        e("v_add_u32 v6, s20, v2"); e("v_lshlrev_b32 v7, 2, v1"); e("v_add_u32 v7, s20, v7")
        lk1 = self.lab("att_k1"); lx = self.lab("att_x")
        e("s_cmp_eq_u32 s7, 0"); e(f"s_cbranch_scc1 {lk1}")
        e(f"ds_write_b128 v6, v[{OA}:{OA+3}]"); e(f"ds_write_b128 v6, v[{OA+4}:{OA+7}] offset:1024"); e(f"ds_write_b32 v7, v{OA+8} offset:2048")
        for r in range(9): e(f"v_mov_b32 v{OA+r}, v{OB+r}")
        e(f"s_branch {lx}")
        self.a.label(lk1)
        e(f"ds_write_b128 v6, v[{OB}:{OB+3}]"); e(f"ds_write_b128 v6, v[{OB+4}:{OB+7}] offset:1024"); e(f"ds_write_b32 v7, v{OB+8} offset:2048")
        self.a.label(lx)
        e("s_xor_b32 s21, s3, 4"); e("s_mul_i32 s21, s21, 2560"); e(f"s_add_u32 s21, s21, {SCR}")
        e("v_add_u32 v6, s21, v2"); e("v_lshlrev_b32 v7, 2, v1"); e("v_add_u32 v7, s21, v7")
        e("s_waitcnt lgkmcnt(0)"); e("s_barrier")
        e(f"ds_read_b128 v[{SA}:{SA+3}], v6"); e(f"ds_read_b128 v[{SA+4}:{SA+7}], v6 offset:1024"); e(f"ds_read_b32 v{SA+8}, v7 offset:2048")
        e(f"v_mov_b32 v20, {fl(2.0**-24)}"); e(f"v_mov_b32 v21, {fl(2.0**40)}"); e(f"v_mov_b32 v22, 0x7f7fffff")
        e("s_waitcnt lgkmcnt(0)")
        for r in range(9): e(f"v_add_f32 v{OA+r}, v{OA+r}, v{SA+r}")
        e(f"v_max3_f32 v23, |v{OA}|, |v{OA+1}|, |v{OA+2}|"); e(f"v_max3_f32 v23, v23, |v{OA+3}|, |v{OA+4}|")
        e(f"v_max3_f32 v23, v23, |v{OA+5}|, |v{OA+6}|"); e(f"v_max_f32 v23, v23, |v{OA+7}|")
        e(f"v_cmp_ge_f32 vcc, v{OA+8}, v20"); e(f"v_cmp_le_f32 s[36:37], v{OA+8}, v21"); e(f"v_cmp_le_f32 s[38:39], v23, v22")
        e("s_and_b64 s[36:37], s[36:37], vcc"); e("s_and_b64 s[36:37], s[36:37], s[38:39]")
        lok = self.lab("att_ok")
        e("s_cmp_eq_u64 s[36:37], -1"); e(f"s_cbranch_scc1 {lok}")
        e(f"v_mov_b32 v3, {FLAG}"); e("v_mov_b32 v20, 1"); e("ds_write_b32 v3, v20"); e("s_waitcnt lgkmcnt(0)")
        self.a.label(lok)
        e(f"v_rcp_f32 v20, v{OA+8}")
        for r in range(8): e(f"v_mul_f32 v{OA+r}, v{OA+r}, v20")
        for q in range(4): e(f"v_cvt_pk_bf16_f32 v{SB+q}, v{OA+2*q}, v{OA+2*q+1}")
        e("s_barrier")
        e(f"v_mov_b32 v3, {FLAG}"); e("ds_read_b32 v20, v3")
        e(f"s_lshl_b32 s20, s{QB_}, 3"); e("s_lshl_b32 s21, s6, 1"); e("s_add_u32 s20, s20, s21"); e("s_add_u32 s20, s20, s7")
        e("s_lshl_b32 s20, s20, 15"); e(f"s_lshl_b32 s21, s{H}, 10"); e("s_add_u32 s22, s20, s21")
        e("s_waitcnt lgkmcnt(0)")
        e("v_readfirstlane_b32 s20, v20")
        lfin = self.lab("att_fin"); lslow = self.lab("att_slow")
        e("s_cmp_lg_u32 s33, 0"); e(f"s_cbranch_scc1 {lfin}")
        e("s_cmp_lg_u32 s20, 0"); e(f"s_cbranch_scc1 {lslow}")
        self.a.label(lfin)
        e(f"buffer_store_dwordx4 v[{SB}:{SB+3}], v2, s[16:19], s22 offen {ST}")
        e(f"s_branch {end}")
        self.a.label(lslow)
        e("s_mov_b32 s33, 8")
        e("s_lshl_b32 s20, s7, 15"); e(f"v_add_u32 v{AK}, s20, v2")
        e("v_mov_b32 v20, 0xff800000"); e("v_mov_b32 v21, 0xff800000")
        e("s_mov_b32 s34, 0")
        sl = self.lab("att_sl")
        self.a.label(sl)
        rdK(0, 0); e("s_waitcnt lgkmcnt(0)")
        e(f"v_mfma_f32_32x32x16_bf16 v[{SA}:{SA+15}], v[{KF}:{KF+3}], v[{QA}:{QA+3}], 0")
        e(f"v_mfma_f32_32x32x16_bf16 v[{SB}:{SB+15}], v[{KF}:{KF+3}], v[{QB}:{QB+3}], 0")
        for r in range(0, 16, 2): e(f"v_max3_f32 v20, v20, v{SA+r}, v{SA+r+1}")
        for r in range(0, 16, 2): e(f"v_max3_f32 v21, v21, v{SB+r}, v{SB+r+1}")
        e(f"v_add_u32 v{AK}, 1024, v{AK}")
        e("s_add_u32 s34, s34, 1"); e("s_cmp_lt_u32 s34, 32"); e(f"s_cbranch_scc1 {sl}")
        for r in (20, 21):
            e(f"v_mov_b32 v22, v{r}"); e(f"v_permlane32_swap_b32 v{r}, v22"); e(f"v_max_f32 v{r}, v{r}, v22")
        e("s_lshl_b32 s20, s3, 9"); e(f"s_add_u32 s20, s20, {SCR}")
        e("v_lshlrev_b32 v6, 2, v1"); e("v_add_u32 v7, s20, v6")
        e("s_barrier")
        e("ds_write_b32 v7, v20"); e("ds_write_b32 v7, v21 offset:256"); e("s_waitcnt lgkmcnt(0)"); e("s_barrier")
        e("s_xor_b32 s20, s3, 4"); e("s_lshl_b32 s20, s20, 9"); e(f"s_add_u32 s20, s20, {SCR}"); e("v_add_u32 v7, s20, v6")
        e("ds_read_b32 v22, v7"); e("ds_read_b32 v23, v7 offset:256"); e("s_waitcnt lgkmcnt(0)")
        e("v_max_f32 v20, v20, v22"); e("v_max_f32 v21, v21, v23")
        for r in range(16):
            e(f"v_sub_f32 v{CA+r}, 0, v20"); e(f"v_sub_f32 v{CB+r}, 0, v21")
        e("s_barrier")
        e(f"s_branch {lrestart}")
        self.a.label(end)
        self.phase_end()
        self.signal(lambda: (e(f"s_lshl_b32 s46, s{QB_}, 7"), e(f"s_lshl_b32 s47, s{H}, 2"), e("s_add_u32 s46, s46, s47"), e(f"s_add_u32 s46, s46, {F2}")))
        self.stamp(10)

    def proj_wvoff(self):
        e = self.e
        e("v_lshlrev_b32 v2, 4, v1")
        e("v_lshrrev_b32 v3, 3, v1"); e("v_and_b32 v4, 7, v1"); e("v_bfe_u32 v5, v3, 1, 1"); e("v_lshlrev_b32 v5, 2, v5")
        e("v_xor_b32 v4, v4, v5"); e("v_lshlrev_b32 v3, 10, v3"); e("v_lshl_add_u32 v3, v4, 4, v3")
        e("s_lshl_b32 s20, s5, 7"); e("v_add_u32 v3, s20, v3")

    def proj_epi_loads(self, srd_res, gate_chunk):
        e = self.e
        e("v_lshrrev_b32 v14, 2, v1"); e("v_and_b32 v15, 3, v1")
        e("s_and_b32 s20, s3, 1"); e("s_lshl_b32 s20, s20, 5"); e("s_lshl_b32 s21, s4, 6"); e("s_add_u32 s20, s20, s21")
        e("v_add_u32 v16, s20, v14"); e("v_lshlrev_b32 v16, 10, v16"); e("v_lshl_add_u32 v16, v15, 4, v16")
        e("s_bfe_u32 s20, s3, 0x10001"); e("s_lshl_b32 s20, s20, 6"); e("s_lshl_b32 s21, s5, 7"); e("s_add_u32 s32, s20, s21")
        e("s_add_u32 s34, s32, 16384")
        e("v_lshlrev_b32 v17, 5, v15"); e("s_lshl_b32 s33, s32, 1"); e(f"s_add_u32 s33, s33, {gate_chunk*2048}")
        e(f"buffer_load_dwordx4 v[32:35], v16, {sr(srd_res,4)}, s32 offen")
        e(f"buffer_load_dwordx4 v[36:39], v16, {sr(srd_res,4)}, s34 offen")
        e("buffer_load_dwordx4 v[40:43], v17, s[28:31], s33 offen")
        e("buffer_load_dwordx4 v[44:47], v17, s[28:31], s33 offen offset:16")

    def proj_addr(self, natural, xbase, wbase):
        e = self.e
        e("s_and_b32 s20, s3, 1"); e("s_lshl_b32 s20, s20, 13"); e(f"s_add_u32 s20, s20, {xbase}"); e("v_add_u32 v8, s20, v2")
        e("v_lshrrev_b32 v4, 4, v1"); e("v_and_b32 v5, 15, v1"); e("v_lshrrev_b32 v6, 2, v5"); e("v_and_b32 v7, 3, v5")
        e("v_lshrrev_b32 v10, 1, v4"); e("v_and_b32 v11, 1, v4")
        e(f"v_lshl_add_u32 v12, v10, {3 if natural else 2}, v6"); e("v_lshlrev_b32 v12, 7, v12")
        e("v_bfe_u32 v13, v6, 1, 1"); e("s_bfe_u32 s20, s3, 0x10001"); e("v_xor_b32 v13, s20, v13")
        e("v_lshl_add_u32 v12, v13, 6, v12"); e("v_lshl_add_u32 v12, v11, 5, v12"); e("v_lshl_add_u32 v12, v7, 3, v12")
        e(f"v_add_u32 v9, {wbase}, v12")

    def proj_chunk(self, ACC, xoff, woff, natural):
        e = self.e
        tstep = (4 if natural else 8) * 128
        for ks in range(8):
            b = 96 + 8*ks
            e(f"ds_read_b128 v[{b}:{b+3}], v8 offset:{xoff + ks*1024}")
            e(f"ds_read_b64_tr_b16 v[{b+4}:{b+5}], v9 offset:{woff + ks*2048}")
            e(f"ds_read_b64_tr_b16 v[{b+6}:{b+7}], v9 offset:{woff + ks*2048 + tstep}")
        for ks in range(8):
            b = 96 + 8*ks
            e(f"s_waitcnt lgkmcnt({min(15, 3*(7-ks))})")
            e(f"v_mfma_f32_32x32x16_bf16 v[{ACC}:{ACC+15}], v[{b+4}:{b+7}], v[{b}:{b+3}], v[{ACC}:{ACC+15}]")

    def proj_epilogue(self, ACC, scr, srd_out, flags):
        e = self.e
        e("s_mul_i32 s20, s3, 4608"); e(f"s_add_u32 s20, s20, {scr}")
        e("v_and_b32 v18, 31, v1"); e("v_mul_u32_u24 v18, 144, v18"); e("v_lshrrev_b32 v19, 5, v1")
        e("v_lshl_add_u32 v18, v19, 4, v18"); e("v_add_u32 v18, s20, v18")
        for g in range(4): e(f"ds_write_b128 v18, v[{ACC+4*g}:{ACC+4*g+3}] offset:{32*g}")
        e("v_mul_u32_u24 v18, 144, v14"); e("v_lshl_add_u32 v18, v15, 5, v18"); e("v_add_u32 v18, s20, v18")
        e("s_waitcnt lgkmcnt(0)")
        for hh in range(2):
            e(f"ds_read_b128 v[{48+8*hh}:{51+8*hh}], v18 offset:{hh*16*144}")
            e(f"ds_read_b128 v[{52+8*hh}:{55+8*hh}], v18 offset:{hh*16*144+16}")
        e("s_waitcnt vmcnt(0) lgkmcnt(0)")
        for hh in range(2):
            for q in range(4):
                e(f"v_lshlrev_b32 v20, 16, v{32+4*hh+q}"); e(f"v_and_b32 v21, 0xffff0000, v{32+4*hh+q}")
                e(f"v_fmac_f32 v20, v{40+2*q}, v{48+8*hh+2*q}"); e(f"v_fmac_f32 v21, v{41+2*q}, v{48+8*hh+2*q+1}")
                e(f"v_cvt_pk_bf16_f32 v{32+4*hh+q}, v20, v21")
            e(f"buffer_store_dwordx4 v[{32+4*hh}:{35+4*hh}], v16, {sr(srd_out,4)}, s{32 if hh == 0 else 34} offen {flags}")

    def p3(self):
        e = self.e
        self.srd(8, P_WS, WS_O, 2*MB); self.srd(12, P_WO, 0, 512*512*2)
        self.srd(16, P_X, 0, 2*MB); self.srd(24, P_WS, WS_X1, 2*MB); self.srd(28, P_WS, WS_MOD, 12288)
        self.proj_wvoff()
        e("s_lshl_b32 s21, s3, 10")
        for m in range(8):
            e(f"s_lshl_b32 s20, s3, 13"); e(f"s_add_u32 s20, s20, {m*8*8*1024}")
            self.dma(3, 12, "s20", f"s_add_u32 m0, s21, {m*8192}")
        self.proj_addr(False, 65536, 0)
        def cO():
            e("s_lshr_b32 s46, s4, 2"); e("s_lshl_b32 s46, s46, 7"); e(f"s_add_u32 s46, s46, {F2}"); e("v_lshlrev_b32 v251, 2, v1")
        def cM():
            e("s_and_b32 s46, s2, 7"); e("s_lshl_b32 s46, s46, 9"); e(f"s_add_u32 s46, s46, {F0 + 128}"); e("v_lshlrev_b32 v251, 2, v1")
        self.wait_flags([(cM, (1 << 64) - 1), (cO, 0xffffffff)])
        self.stamp(11)
        e(f"s_mul_i32 s6, s4, {2*32*1024}"); e("s_lshl_b32 s21, s3, 10"); e("s_add_u32 s6, s6, s21")
        for c in range(4):
            for tt in range(2):
                e(f"s_add_u32 s20, s6, {tt*32*1024 + c*8*1024}")
                self.dma(2, 8, "s20", f"s_add_u32 m0, s21, {65536 + c*16384 + tt*8192}")
            if c < 3: e("s_barrier")
        lp = self.lab("p3_idle"); end = self.lab("p3_end")
        ACC = 64
        e("s_cmp_ge_u32 s3, 4"); e(f"s_cbranch_scc1 {lp}")
        self.proj_epi_loads(16, 2)
        for r in range(16): e(f"v_mov_b32 v{ACC+r}, 0")
        for c in range(4):
            e(f"s_waitcnt vmcnt({2*(3-c) + 4})"); e("s_barrier")
            self.proj_chunk(ACC, c*16384 if c < 3 else 3*16384, c*16384, False) if False else None
            self.proj_chunk(ACC, c*16384, c*16384, False)
        self.proj_epilogue(ACC, 131072, 24, ST)
        e(f"s_branch {end}")
        self.a.label(lp)
        for c in range(4):
            e(f"s_waitcnt vmcnt({2*(3-c)})"); e("s_barrier")
        self.a.label(end)
        self.phase_end()
        self.signal(lambda: (e("s_lshl_b32 s46, s4, 7"), e("s_lshl_b32 s47, s5, 2"), e("s_add_u32 s46, s46, s47"), e(f"s_add_u32 s46, s46, {F3}")))
        self.stamp(12)

    def p4(self):
        e = self.e
        RING = 65536; SL = 14336; D = 6; MODL = RING + D*SL
        PART = 155648
        Z1L = 135168
        self.srd(8, P_WS, WS_X1, 2*MB)
        self.srd(12, P_WS, WS_MOD, 12288)
        self.srd(16, P_WIN, 0, 512*1792*2)
        self.srd(28, P_WS, WS_Z2, 56*64*1024)
        self.srd(36, P_WS, WS_ST, 32*8*64*16)
        for m in range(2):
            d = 192 + m
            e(f"s_lshl_b32 s20, s3, 6"); e(f"s_add_u32 s20, s20, {512*m}")
            e(f"v_add_u32 v200, s20, v1")
            e(f"v_mul_u32_u24 v201, 2341, v200"); e(f"v_lshrrev_b32 v201, 16, v201")
            e(f"v_mul_u32_u24 v202, 28, v201"); e(f"v_sub_u32 v202, v200, v202")
            e(f"v_bfe_u32 v203, v201, 3, 1"); e(f"v_lshlrev_b32 v203, 1, v203"); e(f"v_xor_b32 v202, v202, v203")
            e(f"v_lshlrev_b32 v203, 4, v202")
            e(f"s_mul_i32 s20, s5, 224"); e(f"s_add_u32 s21, s20, 1792"); e(f"v_add_u32 v204, s21, v203")
            e(f"s_sub_u32 s21, s20, 224"); e(f"v_add_u32 v205, s21, v203")
            e(f"v_cmp_gt_u32 vcc, 14, v202"); e(f"v_cndmask_b32 v204, v205, v204, vcc")
            e(f"v_mul_u32_u24 v201, 3584, v201"); e(f"v_add_u32 v{d}, v201, v204")
        e("s_lshl_b32 s7, s3, 10"); e(f"s_add_u32 s7, s7, {RING}")
        e("s_cmp_ge_u32 s3, 6"); e("s_cselect_b64 vcc, -1, 0"); e("v_cndmask_b32 v194, v193, v192, vcc")
        e("s_cselect_b32 s35, 0, 8192"); e("s_add_u32 s35, s35, s7")
        def issue(stage, cnt):
            e(f"s_mov_b32 s23, {stage*32*3584}")
            for m in range(cnt):
                self.dma(192+m, 16, "s23", f"s_add_u32 m0, s7, {(stage % D)*SL + m*8192}")
        for st in range(D-1):
            e(f"s_mov_b32 s23, {st*32*3584}")
            self.dma(192, 16, "s23", f"s_add_u32 m0, s7, {st*SL}")
            self.dma(194, 16, "s23", f"s_add_u32 m0, s35, {st*SL}")
        self.mod_dma(12, 3, MODL)
        e("v_lshrrev_b32 v3, 4, v1"); e("v_and_b32 v4, 15, v1"); e("v_lshrrev_b32 v5, 2, v4"); e("v_and_b32 v6, 3, v4")
        e("v_lshl_add_u32 v7, v3, 3, v5"); e("v_mul_u32_u24 v7, 448, v7"); e("v_lshl_add_u32 v7, v6, 3, v7"); e(f"v_add_u32 v7, {RING}, v7")
        e("v_and_b32 v8, 1, v3"); e("v_lshlrev_b32 v8, 5, v8")
        e("v_add_u32 v200, v7, v8"); e("v_sub_u32 v201, v7, v8")
        e(f"v_add_u32 v202, {4*SL}, v200"); e(f"v_add_u32 v203, {4*SL}, v201")
        e("s_and_b32 s21, s3, 1"); e("s_lshl_b32 s21, s21, 5"); e("v_add_u32 v9, s21, v4"); e("v_lshlrev_b32 v9, 10, v9")
        for m in range(4):
            e(f"v_add_u32 v10, {4*m}, v3"); e(f"v_xor_b32 v10, v10, v4"); e(f"v_lshl_add_u32 v{208+m}, v10, 4, v9")
        def cX():
            e("s_lshl_b32 s46, s4, 7"); e(f"s_add_u32 s46, s46, {F3}"); e("v_lshlrev_b32 v251, 2, v1")
        self.wait_flags([(cX, 0xff)])
        self.stamp(13)
        e("s_lshl_b32 s6, s4, 16")
        self.ln_loads(8, 6)
        e("s_waitcnt vmcnt(0)")
        self.stamp(14)
        self.ln_stats([])
        e("s_barrier")
        self.ln_finish(MODL)
        ACC = 212
        for r in range(32): e(f"v_mov_b32 v{ACC+r}, 0")
        e("s_waitcnt lgkmcnt(0)"); e("s_barrier")
        self.stamp(15)
        NK = 16
        c0 = -2.0*math.sqrt(2.0/math.pi)*LOG2E
        c1 = c0*0.044715
        variants = [self.lab("win_v") for _ in range(4)]
        join = self.lab("win_join")
        e("s_lshr_b32 s20, s3, 1")
        for cg in (1, 2, 3):
            e(f"s_cmp_eq_u32 s20, {cg}"); e(f"s_cbranch_scc1 {variants[cg]}")
        for cg in range(4):
            self.a.label(variants[cg])
            z2 = (cg % 2 == 0)
            nt = 4 if cg < 2 else 3
            t0 = 0 if cg < 2 else 4
            sg0 = (0 if z2 else 7) + t0
            cnt = 1 if cg == 3 else 2
            def reads(n):
                buf = n % 2; slot = n % D
                out = []
                for rt in range(2):
                    b = 32 + 32*buf + 4*rt
                    out.append(f"ds_read_b128 v[{b}:{b+3}], v{208 + (n & 3)} offset:{rt*16384 + (n >> 2)*256}")
                for c in range(nt):
                    sg = sg0 + c
                    b = 40 + 32*buf + 4*c
                    areg, off = (200 + (sg & 1), slot*SL) if slot < 4 else (202 + (sg & 1), (slot-4)*SL)
                    for t in range(2):
                        out.append(f"ds_read_b64_tr_b16 v[{b+2*t}:{b+2*t+1}], v{areg} offset:{off + 4*t*448 + sg*32}")
                return out
            for r in reads(0): e(r)
            for n in range(NK):
                if n + 1 < NK:
                    if n + 1 >= D - 1:
                        allowed = cnt * len([s for s in range(max(n+2, D-1), min(n+D-1, NK))])
                        e(f"s_waitcnt vmcnt({allowed})")
                    e("s_barrier")
                e("s_waitcnt lgkmcnt(0)")
                buf = n % 2
                ms = []
                for c in range(nt):
                    for rt in range(2):
                        acc = ACC + 4*(rt*4 + c)
                        x = 32 + 32*buf + 4*rt; w = 40 + 32*buf + 4*c
                        A, B = (x, w) if z2 else (w, x)
                        ms.append(f"v_mfma_f32_16x16x32_bf16 v[{acc}:{acc+3}], v[{A}:{A+3}], v[{B}:{B+3}], v[{acc}:{acc+3}]")
                rs = reads(n + 1) if n + 1 < NK else []
                ri = 0
                for i, m in enumerate(ms):
                    e(m)
                    for _ in range(2 if i < 3 else 1):
                        if ri < len(rs): e(rs[ri]); ri += 1
                while ri < len(rs): e(rs[ri]); ri += 1
                st = n + D - 1
                if st < NK: issue(st, cnt)
            e(f"s_mov_b32 s20, {fl(c1)}"); e(f"v_mov_b32 v20, {fl(c0)}")
            accs = [ACC + 4*(rt*4 + c) + r for c in range(nt) for rt in range(2) for r in range(4)]
            for i0 in range(0, len(accs), 4):
                grp = accs[i0:i0+4]
                for k, z in enumerate(grp): e(f"v_mul_f32 v{24+k}, v{z}, v{z}")
                for k, z in enumerate(grp): e(f"v_fma_f32 v{24+k}, v{24+k}, s20, v20")
                for k, z in enumerate(grp): e(f"v_mul_f32 v{24+k}, v{24+k}, v{z}")
                for k, z in enumerate(grp): e(f"v_exp_f32 v{24+k}, v{24+k}")
                for k, z in enumerate(grp): e(f"v_add_f32 v{24+k}, 1.0, v{24+k}")
                for k, z in enumerate(grp): e(f"v_rcp_f32 v{24+k}, v{24+k}")
                for k, z in enumerate(grp): e(f"v_mul_f32 v{z}, v{z}, v{24+k}")
            e("v_lshrrev_b32 v3, 4, v1"); e("v_and_b32 v4, 15, v1")
            if z2:
                regs = []
                for rt in range(2):
                    for r in range(4):
                        sreg = 64 + 2*(rt*4 + r)
                        a0 = ACC + 4*(rt*4) + r
                        e(f"v_mov_b32 v{sreg}, v{a0}"); e(f"v_mul_f32 v{sreg+1}, v{a0}, v{a0}")
                        for c in range(1, nt):
                            a = ACC + 4*(rt*4 + c) + r
                            e(f"v_add_f32 v{sreg}, v{sreg}, v{a}"); e(f"v_fmac_f32 v{sreg+1}, v{a}, v{a}")
                        regs += [sreg, sreg+1]
                self.dpp_reduce16(regs)
                e("s_and_b32 s20, s3, 1"); e("s_lshl_b32 s20, s20, 8")
                e(f"s_add_u32 s20, s20, {PART + (cg>>1)*512}")
                e("v_lshlrev_b32 v5, 5, v3"); e("v_add_u32 v5, s20, v5")
                e("v_cmp_eq_u32 vcc, 0, v4"); e("s_and_saveexec_b64 s[40:41], vcc")
                for rt in range(2):
                    e(f"ds_write_b128 v5, v[{64+8*rt}:{67+8*rt}] offset:{rt*128}")
                    e(f"ds_write_b128 v5, v[{68+8*rt}:{71+8*rt}] offset:{rt*128+16}")
                e("s_mov_b64 exec, s[40:41]")
                e("s_waitcnt lgkmcnt(0)"); e("s_barrier")
            else:
                e("s_barrier")
                e("s_and_b32 s20, s3, 1"); e(f"s_mul_i32 s20, s20, {2*7*512}"); e(f"s_add_u32 s20, s20, {Z1L + t0*512}")
                e("v_lshlrev_b32 v5, 3, v1"); e("v_add_u32 v5, s20, v5")
                for c in range(nt):
                    for rt in range(2):
                        acc = ACC + 4*(rt*4 + c); pk = 32 + 2*(rt + 2*c)
                        e(f"v_cvt_pk_bf16_f32 v{pk}, v{acc}, v{acc+1}"); e(f"v_cvt_pk_bf16_f32 v{pk+1}, v{acc+2}, v{acc+3}")
                        e(f"ds_write_b64 v5, v[{pk}:{pk+1}] offset:{rt*7*512 + c*512}")
            if cg == 3:
                nx = self.lab("win_nx")
                e("s_cmp_lg_u32 s3, 7"); e(f"s_cbranch_scc1 {nx}")
                e("v_lshlrev_b32 v5, 3, v1"); e(f"v_add_u32 v5, {PART}, v5")
                e("ds_read_b64 v[64:65], v5"); e("ds_read_b64 v[66:67], v5 offset:512")
                e("s_waitcnt lgkmcnt(0)")
                e("v_add_f32 v64, v64, v66"); e("v_add_f32 v65, v65, v67")
                e(f"v_mov_b32 v66, s{S_NONCE}"); e(f"v_mov_b32 v67, s{S_NONCE}")
                e("v_lshlrev_b32 v6, 4, v1")
                e("s_lshl_b32 s20, s4, 13"); e("s_lshl_b32 s21, s5, 10"); e("s_add_u32 s21, s21, s20")
                e(f"buffer_store_dwordx4 v[64:67], v6, s[36:39], s21 offen {ST}")
                e("s_mov_b32 s47, 0")
                lp = self.lab("stp"); dn = self.lab("std")
                self.a.label(lp)
                for jj in range(8):
                    e(f"s_add_u32 s21, s20, {jj*1024}")
                    e(f"buffer_load_dwordx4 v[{72+4*jj}:{75+4*jj}], v6, s[36:39], s21 offen {ST}")
                e("s_add_u32 s47, s47, 1"); e(f"s_cmp_gt_u32 s47, {SPIN_CAP}"); e(f"s_cbranch_scc1 {dn}")
                e("s_waitcnt vmcnt(0)")
                e("s_mov_b64 s[42:43], -1")
                for jj in range(8):
                    e(f"v_cmp_eq_u32 vcc, s{S_NONCE}, v{74+4*jj}"); e("s_and_b64 s[42:43], s[42:43], vcc")
                    e(f"v_cmp_eq_u32 vcc, s{S_NONCE}, v{75+4*jj}"); e("s_and_b64 s[42:43], s[42:43], vcc")
                e("s_cmp_eq_u64 s[42:43], -1"); e(f"s_cbranch_scc0 {lp}")
                self.a.label(dn)
                e("s_waitcnt vmcnt(0)")
                for jj in range(1, 8):
                    e(f"v_add_f32 v72, v72, v{72+4*jj}"); e(f"v_add_f32 v73, v73, v{73+4*jj}")
                e(f"v_mul_f32 v72, {fl(1.0/896)}, v72"); e(f"v_mul_f32 v73, {fl(1.0/896)}, v73")
                e("v_fma_f32 v73, -v72, v72, v73"); e("v_max_f32 v73, 0, v73"); e(f"v_add_f32 v73, {fl(1e-5)}, v73")
                e("v_rsq_f32 v75, v73"); e("v_mul_f32 v74, v72, v75"); e("v_sub_f32 v74, 0, v74")
                e(f"ds_write_b64 v5, v[74:75] offset:1024")
                self.a.label(nx)
            e("s_waitcnt lgkmcnt(0)"); e("s_barrier")
            if z2:
                e("s_and_b32 s20, s3, 1"); e("s_lshl_b32 s20, s20, 8"); e(f"s_add_u32 s20, s20, {PART + 1024}")
                e("v_lshlrev_b32 v5, 5, v3"); e("v_add_u32 v5, s20, v5")
                for rt in range(2):
                    e(f"ds_read_b128 v[{64+8*rt}:{67+8*rt}], v5 offset:{rt*128}")
                    e(f"ds_read_b128 v[{68+8*rt}:{71+8*rt}], v5 offset:{rt*128+16}")
                e("v_lshrrev_b32 v5, 1, v3"); e("v_lshlrev_b32 v5, 8, v5"); e("v_lshl_add_u32 v5, v4, 4, v5")
                e("v_and_b32 v6, 1, v3"); e("v_lshl_add_u32 v5, v6, 3, v5")
                e("s_and_b32 s20, s3, 1"); e("s_lshl_b32 s21, s4, 1"); e("s_add_u32 s20, s20, s21"); e("s_lshl_b32 s20, s20, 10")
                e("s_mul_i32 s21, s5, 0x70000"); e("s_add_u32 s20, s20, s21")
                e("s_waitcnt lgkmcnt(0)")
                for c in range(nt):
                    e(f"s_add_u32 s21, s20, {(t0+c)*65536}")
                    for rt in range(2):
                        acc = ACC + 4*(rt*4 + c); pk = 32 + 2*(rt + 2*c)
                        for r in range(4):
                            e(f"v_fma_f32 v{acc+r}, v{acc+r}, v{64+8*rt+2*r+1}, v{64+8*rt+2*r}")
                        e(f"v_cvt_pk_bf16_f32 v{pk}, v{acc}, v{acc+1}"); e(f"v_cvt_pk_bf16_f32 v{pk+1}, v{acc+2}, v{acc+3}")
                        e(f"buffer_store_dwordx2 v[{pk}:{pk+1}], v5, s[28:31], s21 offen offset:{rt*512} {ST}")
            if cg < 3: e(f"s_branch {join}")
        self.a.label(join)
        self.phase_end()
        self.signal(lambda: (e("s_lshl_b32 s46, s5, 7"), e("s_lshl_b32 s47, s4, 2"), e("s_add_u32 s46, s46, s47"), e(f"s_add_u32 s46, s46, {F4}")))
        self.stamp(16)

    def p5(self):
        e = self.e
        end = self.lab("sp_end")
        Z1L = 135168
        self.srd(8, P_WSP, 0, 2048*2048*2)
        self.srd(12, P_WS, WS_Z2, 56*64*1024)
        self.srd(24, P_WS, WS_Y, 64*56*1024)
        self.srd(28, P_BSP, 0, 4096)
        SL = 22528; D = 6; NST = 32
        e(f"s_mov_b32 s44, {(-(D-1)*SL) & 0xffffffff}"); e(f"s_mov_b32 s45, {SL}")
        e("v_lshlrev_b32 v2, 4, v1"); e("v_lshrrev_b32 v3, 4, v1"); e("v_and_b32 v4, 15, v1")
        def cZ():
            e("s_lshl_b32 s46, s5, 7"); e(f"s_add_u32 s46, s46, {F4}"); e("v_lshlrev_b32 v251, 2, v1")
        lp = self.lab("sp_prod")
        e("s_cmp_ge_u32 s3, 4"); e(f"s_cbranch_scc1 {lp}")
        e("s_and_b32 s20, s3, 1"); e("s_lshl_b32 s21, s4, 2"); e("s_lshl_b32 s22, s20, 1"); e("s_add_u32 s21, s21, s22")
        e("v_lshlrev_b32 v5, 1, v4"); e("s_lshl_b32 s22, s21, 5")
        e("buffer_load_ushort v20, v5, s[28:31], s22 offen"); e("buffer_load_ushort v21, v5, s[28:31], s22 offen offset:32")
        e("s_bfe_u32 s23, s3, 0x10001"); e("s_lshl_b32 s23, s23, 2")
        e("v_lshrrev_b32 v7, 1, v3"); e("v_lshlrev_b32 v7, 9, v7"); e("v_lshl_add_u32 v7, v4, 4, v7")
        e("v_and_b32 v8, 1, v3"); e("v_lshl_add_u32 v7, v8, 3, v7")
        e("s_lshl_b32 s21, s4, 1"); e("s_add_u32 s21, s21, s20"); e("s_mul_i32 s21, s21, 56")
        e("s_mul_i32 s6, s5, 7"); e("s_add_u32 s21, s21, s6"); e("s_add_u32 s21, s21, s23"); e("s_lshl_b32 s35, s21, 10")
        e(f"s_mul_i32 s6, s20, {2*7*512}"); e("s_lshl_b32 s21, s23, 9"); e("s_add_u32 s6, s6, s21"); e(f"s_add_u32 s6, s6, {Z1L}")
        e("v_lshlrev_b32 v9, 3, v1"); e("v_add_u32 v9, s6, v9")
        e("s_and_b32 s20, s3, 1"); e("s_lshl_b32 s20, s20, 12"); e("v_lshlrev_b32 v5, 7, v4"); e("v_add_u32 v5, s20, v5")
        e("v_lshrrev_b32 v8, 1, v4")
        for ks in range(2):
            e(f"v_add_u32 v6, {4*ks}, v3"); e(f"v_xor_b32 v6, v6, v8"); e(f"v_lshl_add_u32 v{200+ks}, v6, 4, v5")
        e("s_bfe_u32 s20, s3, 0x10001"); e("s_lshl_b32 s20, s20, 13"); e("s_add_u32 s20, s20, 8192"); e("v_add_u32 v202, s20, v2")
        ACC = 128
        for r in range(32): e(f"v_mov_b32 v{ACC+r}, 0")
        e("s_barrier")
        l3 = self.lab("sp_3"); lepi = self.lab("sp_epi")
        e("s_barrier")
        self.stamp(18)
        e("s_bitcmp1_b32 s3, 1"); e(f"s_cbranch_scc1 {l3}")
        for jj in range(2):
            nf = 4 if jj == 0 else 3
            if jj == 1: self.a.label(l3)
            def reads(ks, buf, nxt):
                b = 32 + 24*buf; ab = 203 if nxt else 200
                for tt in range(2): yield f"ds_read_b128 v[{b+4*tt}:{b+4*tt+3}], v{ab+ks} offset:{tt*2048}"
                for f in range(nf): yield f"ds_read_b128 v[{b+8+4*f}:{b+8+4*f+3}], v{ab+2} offset:{f*2048 + ks*1024}"
            def mf(buf):
                b = 32 + 24*buf
                for f in range(nf):
                    for tt in range(2):
                        acc = ACC + 4*(tt*4 + f)
                        yield f"v_mfma_f32_16x16x32_bf16 v[{acc}:{acc+3}], v[{b+8+4*f}:{b+8+4*f+3}], v[{b+4*tt}:{b+4*tt+3}], v[{acc}:{acc+3}]"
            def interleave(ms, rs):
                ms = list(ms); rs = list(rs)
                for i, m in enumerate(ms):
                    e(m)
                    if i < len(rs): e(rs[i])
                for r in rs[len(ms):]: e(r)
            for r in reads(0, 0, False): e(r)
            e("s_mov_b32 s36, 0"); e(f"s_mov_b32 s37, {SL}"); e("s_mov_b32 s38, 1")
            loop = self.lab("sp_loop")
            self.a.label(loop)
            e("s_barrier")
            for k in range(3): e(f"v_add_u32 v{203+k}, s37, v{200+k}")
            e(f"s_waitcnt lgkmcnt(0)")
            interleave(mf(0), reads(1, 1, False))
            e(f"s_waitcnt lgkmcnt(0)")
            interleave(mf(1), reads(0, 0, True))
            for k in range(3): e(f"v_mov_b32 v{200+k}, v{203+k}")
            e("s_add_u32 s38, s38, 1"); e(f"s_cmp_eq_u32 s38, {D}")
            e(f"s_cselect_b32 s37, s44, s45"); e(f"s_cselect_b32 s38, 0, s38")
            e("s_add_u32 s36, s36, 1"); e(f"s_cmp_lt_u32 s36, {NST}"); e(f"s_cbranch_scc1 {loop}")
            if jj == 0: e(f"s_branch {lepi}")
        self.a.label(lepi)
        self.stamp(19)
        ZR = 176
        for tt in range(2):
            for f in range(4):
                b = ZR + 2*(tt*4 + f)
                e(f"ds_read_b64 v[{b}:{b+1}], v9 offset:{tt*7*512 + f*512}")
        e("s_waitcnt vmcnt(0) lgkmcnt(0)")
        e("v_lshlrev_b32 v20, 16, v20"); e("v_lshlrev_b32 v21, 16, v21")
        for f in range(4):
            if f == 3:
                e("s_bitcmp1_b32 s3, 1"); e(f"s_cbranch_scc1 {end}")
            for tt in range(2):
                acc = ACC + 4*(tt*4 + f); b = ZR + 2*(tt*4 + f)
                for q in range(2):
                    e(f"v_lshlrev_b32 v22, 16, v{b+q}"); e(f"v_and_b32 v23, 0xffff0000, v{b+q}")
                    e(f"v_add_f32 v24, v{acc+2*q}, v{20+tt}"); e(f"v_add_f32 v25, v{acc+2*q+1}, v{20+tt}")
                    e(f"v_mul_f32 v22, v22, v24"); e(f"v_mul_f32 v23, v23, v25")
                    e(f"v_cvt_pk_bf16_f32 v{b+q}, v22, v23")
                e(f"buffer_store_dwordx2 v[{b}:{b+1}], v7, s[24:27], s35 offen offset:{f*1024 + tt*256} {ST}")
        e(f"s_branch {end}")
        self.a.label(lp)
        e("s_and_b32 s7, s3, 3")
        e("v_lshrrev_b32 v5, 3, v1"); e("v_and_b32 v6, 7, v1")
        for m in range(2):
            e(f"s_lshl_b32 s20, s7, 3"); e(f"s_add_u32 s20, s20, {32*m}")
            e(f"v_add_u32 v8, s20, v5"); e(f"v_bfe_u32 v9, v8, 1, 3"); e(f"v_xor_b32 v9, v9, v6")
            e(f"v_lshlrev_b32 v8, 12, v8"); e(f"v_lshl_add_u32 v{192+m}, v9, 4, v8")
        e("s_lshl_b32 s6, s4, 18")
        e("s_mul_i32 s32, s5, 0x70000"); e("s_lshr_b32 s20, s7, 1"); e("s_lshl_b32 s20, s20, 16"); e("s_add_u32 s32, s32, s20")
        e("s_and_b32 s20, s7, 1"); e("s_lshl_b32 s20, s20, 10"); e("s_add_u32 s32, s32, s20")
        e("s_lshl_b32 s33, s7, 10")
        e("s_mov_b32 s34, s33")
        for st in range(D-1):
            for m in range(2): self.dma(192+m, 8, "s6", f"s_add_u32 m0, s34, {st*SL + m*4096}")
            e("s_add_u32 s6, s6, 128")
        self.wait_flags([(cZ, 0xffffffff)])
        self.stamp(17)
        l5 = self.lab("sp_p5")
        e("s_cmp_ge_u32 s7, 2"); e(f"s_cbranch_scc1 {l5}")
        for var in range(2):
            nz = 4 if var == 0 else 3
            cnt = 2 + nz
            if var == 1: self.a.label(l5)
            def issue_z():
                for m in range(nz):
                    e(f"s_add_u32 s23, s32, {2*m*65536}")
                    self.dma(2, 12, "s23", f"s_add_u32 m0, s34, {8192 + m*4096}")
                e("s_add_u32 s32, s32, 2048")
            def issue():
                for m in range(2): self.dma(192+m, 8, "s6", f"s_add_u32 m0, s34, {m*4096}")
                e("s_add_u32 s6, s6, 128")
                issue_z()
            for st in range(D-1):
                issue_z(); e(f"s_add_u32 s34, s34, {SL}")
            e(f"s_waitcnt vmcnt({nz*(D-2)})"); e("s_barrier")
            e("s_mov_b32 s36, 0"); e(f"s_mov_b32 s38, {D-1}")
            loop = self.lab("sp_ploop"); lni = self.lab("sp_ni"); lw = self.lab("sp_w"); le = self.lab("sp_e"); lb = self.lab("sp_b")
            self.a.label(loop)
            e(f"s_cmp_ge_u32 s36, {NST-D+2}"); e(f"s_cbranch_scc1 {lw}")
            e(f"s_cmp_lt_u32 s36, 3"); e(f"s_cbranch_scc1 {le}")
            e(f"s_waitcnt vmcnt({cnt*(D-3)})"); e(f"s_branch {lb}")
            self.a.label(le)
            e(f"s_waitcnt vmcnt({nz*(D-3)})")
            self.a.label(lb)
            e("s_barrier")
            e(f"s_cmp_ge_u32 s36, {NST-D+1}"); e(f"s_cbranch_scc1 {lni}")
            issue()
            e("s_add_u32 s38, s38, 1"); e(f"s_cmp_eq_u32 s38, {D}"); e(f"s_cselect_b32 s39, s44, s45"); e(f"s_cselect_b32 s38, 0, s38")
            e("s_add_u32 s34, s34, s39"); e(f"s_branch {lni}")
            self.a.label(lw)
            e("s_waitcnt vmcnt(0)"); e("s_barrier")
            self.a.label(lni)
            e("s_add_u32 s36, s36, 1"); e(f"s_cmp_lt_u32 s36, {NST}"); e(f"s_cbranch_scc1 {loop}")
            if var == 0: e(f"s_branch {end}")
        self.a.label(end)
        self.phase_end()
        self.signal(lambda: (e("s_lshl_b32 s46, s4, 7"), e("s_lshl_b32 s47, s5, 2"), e("s_add_u32 s46, s46, s47"), e(f"s_add_u32 s46, s46, {F5}")))
        self.stamp(20)

    def p6(self):
        e = self.e
        self.srd(8, P_WS, WS_Y, 64*56*1024); self.srd(12, P_WOUT, 0, 896*512*2)
        self.srd(16, P_WS, WS_X1, 2*MB); self.srd(24, P_OUT, 0, 2*MB); self.srd(28, P_WS, WS_MOD, 12288)
        XR = 114688; XS = 16384; NCH = 7; NSLOT = 3
        self.proj_wvoff()
        e("s_lshl_b32 s21, s3, 10")
        for m in range(14):
            e(f"s_lshl_b32 s20, s3, 13"); e(f"s_add_u32 s20, s20, {m*65536}")
            self.dma(3, 12, "s20", f"s_add_u32 m0, s21, {m*8192}")
        self.proj_addr(True, XR, 0)
        e("v_add_u32 v10, 0x10000, v9")
        def cY():
            e("s_lshl_b32 s46, s4, 7"); e(f"s_add_u32 s46, s46, {F5}"); e("v_lshlrev_b32 v251, 2, v1")
        self.wait_flags([(cY, 0xff)])
        self.stamp(21)
        e(f"s_mul_i32 s6, s4, {2*56*1024}")
        def issue_x(ch, sreg, offs):
            slot = ch % NSLOT
            for off in offs:
                tt = off >> 3; ko = off & 7
                e(f"s_lshl_b32 s21, s{sreg}, 10"); e("s_add_u32 s20, s21, s6")
                e(f"s_add_u32 s20, s20, {tt*56*1024 + (ch*8+ko)*1024}")
                self.dma(2, 8, "s20", f"s_add_u32 m0, s21, {XR + slot*XS + off*1024}")
        for ch in range(NSLOT):
            issue_x(ch, 3, (0, 8))
            if ch < NSLOT-1: e("s_barrier")
        e("s_and_b32 s7, s3, 3")
        lp = self.lab("p6_prod"); end = self.lab("p6_end")
        ACC = 64
        e("s_cmp_ge_u32 s3, 4"); e(f"s_cbranch_scc1 {lp}")
        self.proj_epi_loads(16, 5)
        for r in range(16): e(f"v_mov_b32 v{ACC+r}, 0")
        tstep = 4*128
        for ch in range(NCH):
            if ch < NSLOT: e(f"s_waitcnt vmcnt({2*(NSLOT-1-ch) + 4})")
            e("s_barrier")
            slot = ch % NSLOT
            wreg, woff = (9, ch*16384) if ch < 4 else (10, ch*16384 - 65536)
            for ks in range(8):
                b = 96 + 8*ks
                e(f"ds_read_b128 v[{b}:{b+3}], v8 offset:{slot*XS + ks*1024}")
                e(f"ds_read_b64_tr_b16 v[{b+4}:{b+5}], v{wreg} offset:{woff + ks*2048}")
                e(f"ds_read_b64_tr_b16 v[{b+6}:{b+7}], v{wreg} offset:{woff + ks*2048 + tstep}")
            for ks in range(8):
                b = 96 + 8*ks
                e(f"s_waitcnt lgkmcnt({min(15, 3*(7-ks))})")
                e(f"v_mfma_f32_32x32x16_bf16 v[{ACC}:{ACC+15}], v[{b+4}:{b+7}], v[{b}:{b+3}], v[{ACC}:{ACC+15}]")
        e("s_barrier")
        self.proj_epilogue(ACC, 0, 24, "")
        e(f"s_branch {end}")
        self.a.label(lp)
        out = [(s, 2) for s in range(NSLOT)]
        for ch in range(NCH):
            later = sum(c for (st, c) in out if st > ch)
            e(f"s_waitcnt vmcnt({later})")
            out = [(st, c) for (st, c) in out if st > ch]
            e("s_barrier")
            nxt = ch + NSLOT - 1
            if ch >= 1 and nxt < NCH:
                issue_x(nxt, 7, (0, 4, 8, 12)); out.append((nxt, 4))
        e("s_barrier")
        self.a.label(end)
        self.stamp(22)


HEADER = open('cdna_kernels/' + NAME + '.s.ref').read().split('; Override launch geometry')[0]

def build(stamps=False, hstamp=-1):
    Gen.STAMPS = stamps
    g = Gen()
    endl = "L_exit"
    g.prologue(endl)
    g.p01(); g.p2(); g.p3(); g.p4(); g.p5(); g.p6()
    if stamps:
        e = g.e
        sk = g.lab("stst")
        e("s_cmp_ge_u32 s2, 4"); e(f"s_cbranch_scc1 {sk}")
        e("s_and_b32 s46, s3, 3"); e("s_cmp_lg_u32 s46, 0"); e(f"s_cbranch_scc1 {sk}")
        e("s_waitcnt vmcnt(0)")
        g.stamp(23)
        if hstamp >= 0: e(f"s_branch {sk}")
        g.srd(8, P_DBG, 0, 4096)
        e("s_lshl_b32 s20, s2, 1"); e("s_lshr_b32 s21, s3, 2"); e("s_add_u32 s20, s20, s21"); e("s_lshl_b32 s20, s20, 8"); e("s_add_u32 s20, s20, 256")
        e("v_lshlrev_b32 v4, 2, v1")
        e("buffer_store_dword v255, v4, s[8:11], s20 offen")
        g.a.label(sk)
    if hstamp >= 0:
        e = g.e
        sk = g.lab("hst")
        e(f"s_cmp_lg_u32 s2, {hstamp}"); e(f"s_cbranch_scc1 {sk}")
        e("s_cmp_lg_u32 s3, 0"); e(f"s_cbranch_scc1 {sk}")
        e("v_lshrrev_b32 v4, 2, v255")
        e("v_lshlrev_b32 v5, 16, v4")
        e("v_mov_b32_dpp v6, v5 row_shl:1 row_mask:0xf bank_mask:0xf")
        e("v_or_b32 v4, v4, v6")
        g.srd(8, P_DBG, 0, 256)
        e("v_lshrrev_b32 v7, 1, v1"); e("v_lshlrev_b32 v7, 2, v7"); e("v_add_u32 v7, 4, v7")
        e("v_and_b32 v8, 1, v1"); e("v_cmp_eq_u32 vcc, 0, v8"); e("v_cmp_gt_u32 s[40:41], 24, v1"); e("s_and_b64 vcc, vcc, s[40:41]")
        e("s_and_saveexec_b64 s[40:41], vcc")
        e("buffer_store_dword v4, v7, s[8:11], 0 offen")
        g.a.label(sk)
    g.a.label(endl)
    g.e("s_endpgm")
    g.a.fix_hazards()
    out = [HEADER, "; @launch grid=(256,1,1) block=(512,1,1) lds=163840\n",
           '.amdgcn_target "amdgcn-amd-amdhsa--gfx950"\n.text\n',
           f".globl {KNAME}\n.p2align 8\n.type {KNAME},@function\n{KNAME}:\n", g.a.text(),
           '.section .rodata,"a"\n', f""".p2align 6
.amdhsa_kernel {KNAME}
  .amdhsa_next_free_vgpr 256
  .amdhsa_next_free_sgpr 102
  .amdhsa_accum_offset 256
  .amdhsa_group_segment_fixed_size 0
  .amdhsa_kernarg_size 104
  .amdhsa_user_sgpr_count 2
  .amdhsa_user_sgpr_kernarg_segment_ptr 1
  .amdhsa_system_sgpr_workgroup_id_x 1
.end_amdhsa_kernel
"""]
    return ''.join(out)

if __name__ == "__main__":
    for k in ("PREFETCH",):
        if k in os.environ: setattr(Gen, k, int(os.environ[k]))
    txt = build(stamps=(len(sys.argv) > 2), hstamp=int(os.environ.get("HSTAMP", "-1")))
    path = sys.argv[1] if len(sys.argv) > 1 else 'cdna_kernels/' + NAME + '.s'
    open(path, 'w').write(txt)
    print("wrote", path, len(txt), "bytes")
```

```python
import sys, math, os
from asmlib import Asm, vr, sr

NAME = "adaLN_cond__softmax_full_mha__mixer_gmlp__prompt"
KNAME = NAME + "_kernel"
MB = 1 << 20
WS_MOD = 0
WS_ST  = 0x10000
WS_FLAG = 0x60000
WS_STX = 0x70000
WS_QK  = 1 * MB
WS_V   = 5 * MB
WS_O   = 7 * MB
WS_X1  = 9 * MB
WS_Z2  = 19 * MB
WS_Y   = 23 * MB
F0, F1, F2, F3, F4, F5 = 0x0, 0x2000, 0x4000, 0x5000, 0x6000, 0x7000
P_X, P_WQKV, P_WO, P_BX, P_WIN, P_WSP, P_BSP, P_WOUT, P_C, P_WMOD, P_OUT, P_DBG, P_WS = [64 + 2*i for i in range(13)]
LOG2E = 1.4426950408889634
S_QB, S_HEAD, S_NONCE, SRD_F = 57, 58, 59, 60
ST = "sc0 sc1"
SPIN_CAP = 1 << 17

def f2u(x):
    import struct
    return struct.unpack('<I', struct.pack('<f', x))[0]
def fl(x): return f"0x{f2u(x):08x}"

class Gen:
    STAMPS = False
    PREFETCH = True
    STAMP_WG0 = 0
    STAMP_W = 0
    CODEPF = False
    NOHOP = False
    BALANCE = True
    ZTOUCH = False
    GSTAMP = False
    GSTAMP_W = 0
    def __init__(self):
        self.a = Asm()
        self.nstamp = 0
    def e(self, s): self.a.e(s)
    def lab(self, b): return self.a.newlabel(b)

    def stamp(self, i):
        if not Gen.STAMPS: return
        e = self.e
        sk = self.lab("stamp")
        if Gen.GSTAMP:
            e(f"s_cmp_lg_u32 s3, {Gen.GSTAMP_W}"); e(f"s_cbranch_scc1 {sk}")
            e("s_memrealtime s[46:47]"); e("s_waitcnt lgkmcnt(0)")
            e(f"v_writelane_b32 v255, s46, {i}")
            self.a.label(sk)
            return
        e(f"s_sub_u32 s46, s2, {Gen.STAMP_WG0}"); e("s_cmp_ge_u32 s46, 4"); e(f"s_cbranch_scc1 {sk}")
        e("s_and_b32 s46, s3, 3"); e(f"s_cmp_lg_u32 s46, {Gen.STAMP_W}"); e(f"s_cbranch_scc1 {sk}")
        e("s_memtime s[46:47]"); e("s_waitcnt lgkmcnt(0)")
        e("s_sub_u32 s46, s46, s90")
        e(f"v_writelane_b32 v255, s46, {i}")
        self.a.label(sk)

    def srd(self, d, ptr, off, size):
        e = self.e
        if off:
            e(f"s_add_u32 s{d}, s{ptr}, 0x{off:x}"); e(f"s_addc_u32 s{d+1}, s{ptr+1}, 0")
        else:
            e(f"s_mov_b32 s{d}, s{ptr}"); e(f"s_mov_b32 s{d+1}, s{ptr+1}")
        e(f"s_mov_b32 s{d+2}, 0x{size:x}"); e(f"s_mov_b32 s{d+3}, 0x20000")

    def bf16_round(self, d, s):
        self.e(f"v_cvt_pk_bf16_f32 v{d}, v{s}, v{s}")
        self.e(f"v_lshlrev_b32 v{d}, 16, v{d}")

    def dpp_reduce16(self, regs):
        for m in ("quad_perm:[1,0,3,2]", "quad_perm:[2,3,0,1]", "row_half_mirror", "row_mirror"):
            for r in regs:
                self.e(f"v_add_f32_dpp v{r}, v{r}, v{r} {m} row_mask:0xf bank_mask:0xf")

    def dma(self, voff, srd, soff, m0expr, width="dwordx4"):
        self.e(m0expr)
        self.e("s_nop 0")
        self.e(f"buffer_load_{width} v{voff}, {sr(srd,4)}, {soff} offen lds")

    def phase_end(self):
        self.e("s_waitcnt lgkmcnt(0)" if Gen.NOHOP else "s_waitcnt vmcnt(0) lgkmcnt(0)")
        self.e("s_barrier")

    def signal(self, soff_code, nrep=1, rep_stride=0):
        e = self.e
        sk = self.lab("sig")
        e("s_cmp_lg_u32 s3, 7"); e(f"s_cbranch_scc1 {sk}")
        soff_code()
        e(f"v_mov_b32 v250, s{S_NONCE}")
        e(f"v_mul_u32_u24 v251, {max(rep_stride,1)}, v1")
        e(f"s_mov_b64 exec, {(1 << nrep) - 1}")
        e(f"buffer_store_dword v250, v251, s[{SRD_F}:{SRD_F+3}], s46 offen {ST}")
        e("s_mov_b64 exec, -1")
        self.a.label(sk)

    def wait_flags(self, polls, keep=False, pre=None):
        e = self.e
        sk = self.lab("wf"); p7 = self.lab("wf7")
        e("s_cmp_eq_u32 s3, 7"); e(f"s_cbranch_scc1 {p7}")
        if pre: pre()
        e(f"s_branch {sk}")
        self.a.label(p7)
        for (code, mask) in ([] if (Gen.NOHOP and not keep) else polls):
            code()
            e(f"s_mov_b32 s42, 0x{mask & 0xffffffff:x}"); e(f"s_mov_b32 s43, 0x{mask >> 32:x}")
            e("s_mov_b32 s47, 0")
            lp = self.lab("poll"); dn = self.lab("polled")
            self.a.label(lp)
            e(f"buffer_load_dword v250, v251, s[{SRD_F}:{SRD_F+3}], s46 offen {ST}")
            e("s_add_u32 s47, s47, 1")
            e(f"s_cmp_gt_u32 s47, {SPIN_CAP}")
            e(f"s_cbranch_scc1 {dn}")
            e("s_waitcnt vmcnt(0)")
            e(f"v_cmp_eq_u32 vcc, s{S_NONCE}, v250")
            e("s_and_b64 vcc, vcc, s[42:43]")
            e("s_cmp_eq_u64 vcc, s[42:43]")
            e(f"s_cbranch_scc0 {lp}")
            self.a.label(dn)
        if pre: pre()
        self.a.label(sk)
        e("s_barrier")

    def prologue(self, endlab):
        e = self.e
        e("s_cmp_ge_u32 s2, 256"); e(f"s_cbranch_scc1 {endlab}")
        e("s_load_dwordx16 s[64:79], s[0:1], 0")
        e("s_load_dwordx8 s[80:87], s[0:1], 64")
        e("s_load_dwordx2 s[88:89], s[0:1], 96")
        e("v_and_b32 v1, 63, v0")
        e("v_lshrrev_b32 v2, 6, v0")
        e("v_readfirstlane_b32 s3, v2")
        if Gen.STAMPS:
            e("s_memtime s[90:91]"); e("v_mov_b32 v255, 0")
        e("s_and_b32 s20, s2, 7"); e("s_lshr_b32 s21, s2, 3")
        e("s_and_b32 s4, s20, 3"); e("s_lshl_b32 s4, s4, 3"); e("s_and_b32 s22, s21, 7"); e("s_add_u32 s4, s4, s22")
        e("s_lshr_b32 s5, s20, 2"); e("s_lshl_b32 s5, s5, 2"); e("s_lshr_b32 s22, s21, 3"); e("s_add_u32 s5, s5, s22")
        e(f"s_lshl_b32 s{S_HEAD}, s20, 2"); e("s_and_b32 s22, s21, 3"); e(f"s_add_u32 s{S_HEAD}, s{S_HEAD}, s22")
        e(f"s_lshr_b32 s{S_QB}, s21, 2")
        e("s_waitcnt lgkmcnt(0)")
        self.stamp(24)
        self.srd(SRD_F, P_WS, WS_FLAG, 0x10000)
        sk = self.lab("nn")
        e("s_cmp_lg_u32 s3, 7"); e(f"s_cbranch_scc1 {sk}")
        self.srd(8, P_DBG, 0, 256)
        e("v_mov_b32 v251, 0")
        g = self.lab("ng")
        e("s_cmp_lg_u32 s2, 0"); e(f"s_cbranch_scc1 {g}")
        e("s_memrealtime s[46:47]"); e("s_waitcnt lgkmcnt(0)")
        e("s_or_b32 s46, s46, 1")
        e("v_mov_b32 v250, s46")
        e("s_mov_b64 exec, 1")
        e(f"buffer_store_dword v250, v251, s[8:11], 0 offen {ST}")
        e("s_mov_b64 exec, -1")
        self.a.label(g)
        self.a.label(sk)

    def get_nonce(self):
        e = self.e
        sk = self.lab("gn")
        e("s_cmp_lg_u32 s3, 7"); e(f"s_cbranch_scc1 {sk}")
        self.srd(48, P_DBG, 0, 256)
        e("v_mov_b32 v251, 0"); e("s_mov_b32 s47, 0")
        lp = self.lab("gnp"); dn = self.lab("gnd")
        self.a.label(lp)
        e(f"buffer_load_dword v250, v251, s[48:51], 0 offen {ST}")
        e("s_add_u32 s47, s47, 1"); e(f"s_cmp_gt_u32 s47, {SPIN_CAP}"); e(f"s_cbranch_scc1 {dn}")
        e("s_waitcnt vmcnt(0)")
        e(f"v_readfirstlane_b32 s{S_NONCE}, v250")
        e(f"s_cmp_eq_u32 s{S_NONCE}, 0"); e(f"s_cbranch_scc1 {lp}")
        self.a.label(dn)
        e("ds_write_b32 v251, v250")
        e("s_waitcnt lgkmcnt(0)")
        self.a.label(sk)

    def ln_loads(self, srd_x, s_rowoff):
        e = self.e
        e("v_lshrrev_b32 v3, 4, v1"); e("v_and_b32 v4, 15, v1")
        e("s_lshl_b32 s20, s3, 3")
        e("v_add_u32 v5, s20, v3"); e("v_lshlrev_b32 v5, 10, v5"); e("v_lshl_add_u32 v5, v4, 4, v5")
        e(f"s_add_u32 s21, s{s_rowoff}, 4096")
        for a in range(2):
            so = s_rowoff if a == 0 else 21
            for j in range(4):
                b = 32 + 16*a + 4*j
                e(f"buffer_load_dwordx4 v[{b}:{b+3}], v5, {sr(srd_x,4)}, s{so} offen offset:{256*j}")

    def mod_issue(self, srd_mod, first_chunk):
        e = self.e
        e("v_lshlrev_b32 v248, 3, v0")
        for kq in range(4):
            e(f"s_mov_b32 s22, {kq*12288 + first_chunk*2048}")
            e(f"buffer_load_dwordx2 v[{240+2*kq}:{241+2*kq}], v248, {sr(srd_mod,4)}, s22 offen")

    def mod_finish(self, lds_off):
        e = self.e
        e("v_pk_add_f32 v[240:241], v[240:241], v[242:243]"); e("v_pk_add_f32 v[244:245], v[244:245], v[246:247]")
        e("v_pk_add_f32 v[240:241], v[240:241], v[244:245]")
        e("v_cvt_pk_bf16_f32 v242, v240, v241")
        e("v_lshlrev_b32 v240, 16, v242"); e("v_and_b32 v241, 0xffff0000, v242")
        sk = self.lab("mf")
        e("s_cmp_lt_u32 s3, 4"); e(f"s_cbranch_scc1 {sk}")
        e("v_add_f32 v240, 1.0, v240"); e("v_add_f32 v241, 1.0, v241")
        e("v_cvt_pk_bf16_f32 v242, v240, v241")
        e("v_lshlrev_b32 v240, 16, v242"); e("v_and_b32 v241, 0xffff0000, v242")
        self.a.label(sk)
        e(f"v_add_u32 v248, {lds_off}, v248")
        e("ds_write_b64 v248, v[240:241]")

    def ln_stats(self, fillers):
        e = self.e
        X = 128
        it = iter(fillers)
        def fill():
            f = next(it, None)
            if f: f()
        for a in range(2):
            for q in range(16):
                s = 32 + 16*a + q
                e(f"v_lshlrev_b32 v{X+32*a+2*q}, 16, v{s}")
                e(f"v_and_b32 v{X+32*a+2*q+1}, 0xffff0000, v{s}")
            fill()
        A = lambda a, k: 8 + 8*a + 2*k
        for a in range(2):
            for k in range(4):
                e(f"v_pk_add_f32 v[{A(a,k)}:{A(a,k)+1}], v[{X+32*a+4*k}:{X+32*a+4*k+1}], v[{X+32*a+4*k+2}:{X+32*a+4*k+3}]")
        for q in range(8, 16):
            for a in range(2):
                k = q % 4
                e(f"v_pk_add_f32 v[{A(a,k)}:{A(a,k)+1}], v[{A(a,k)}:{A(a,k)+1}], v[{X+32*a+2*q}:{X+32*a+2*q+1}]")
        fill()
        for a in range(2):
            e(f"v_pk_add_f32 v[{A(a,0)}:{A(a,0)+1}], v[{A(a,0)}:{A(a,0)+1}], v[{A(a,1)}:{A(a,1)+1}]")
            e(f"v_pk_add_f32 v[{A(a,2)}:{A(a,2)+1}], v[{A(a,2)}:{A(a,2)+1}], v[{A(a,3)}:{A(a,3)+1}]")
        for a in range(2):
            e(f"v_pk_add_f32 v[{A(a,0)}:{A(a,0)+1}], v[{A(a,0)}:{A(a,0)+1}], v[{A(a,2)}:{A(a,2)+1}]")
        for a in range(2):
            e(f"v_add_f32 v{24+2*a}, v{A(a,0)}, v{A(a,0)+1}")
        self.dpp_reduce16([24, 26])
        for a in range(2):
            e(f"v_mul_f32 v{24+2*a}, {fl(-1.0/512)}, v{24+2*a}")
            e(f"v_mov_b32 v{25+2*a}, v{24+2*a}")
            for r in range(8): e(f"v_mov_b32 v{8+8*a+r}, 0")
        fill()
        for q in range(16):
            for a in range(2):
                r = X + 32*a + 2*q
                e(f"v_pk_add_f32 v[{r}:{r+1}], v[{r}:{r+1}], v[{24+2*a}:{25+2*a}]")
            if q > 0:
                for a in range(2):
                    r = X + 32*a + 2*(q-1); k = (q-1) % 4
                    e(f"v_pk_fma_f32 v[{A(a,k)}:{A(a,k)+1}], v[{r}:{r+1}], v[{r}:{r+1}], v[{A(a,k)}:{A(a,k)+1}]")
            if q % 4 == 3: fill()
        for a in range(2):
            r = X + 32*a + 30; k = 3
            e(f"v_pk_fma_f32 v[{A(a,k)}:{A(a,k)+1}], v[{r}:{r+1}], v[{r}:{r+1}], v[{A(a,k)}:{A(a,k)+1}]")
        for a in range(2):
            e(f"v_pk_add_f32 v[{A(a,0)}:{A(a,0)+1}], v[{A(a,0)}:{A(a,0)+1}], v[{A(a,1)}:{A(a,1)+1}]")
            e(f"v_pk_add_f32 v[{A(a,2)}:{A(a,2)+1}], v[{A(a,2)}:{A(a,2)+1}], v[{A(a,3)}:{A(a,3)+1}]")
        for a in range(2):
            e(f"v_pk_add_f32 v[{A(a,0)}:{A(a,0)+1}], v[{A(a,0)}:{A(a,0)+1}], v[{A(a,2)}:{A(a,2)+1}]")
        for a in range(2):
            e(f"v_add_f32 v{24+a}, v{A(a,0)}, v{A(a,0)+1}")
        self.dpp_reduce16([24, 25])
        for a in range(2):
            e(f"v_mov_b32 v14, {fl(1e-5)}")
            e(f"v_fmac_f32 v14, {fl(1.0/512)}, v{24+a}")
            e(f"v_rsq_f32 v{20+2*a}, v14")
        for a in range(2):
            e(f"v_mov_b32 v{21+2*a}, v{20+2*a}")
        for f in it: f()
        for a in range(2):
            for q in range(16):
                r = X + 32*a + 2*q
                e(f"v_pk_mul_f32 v[{r}:{r+1}], v[{r}:{r+1}], v[{20+2*a}:{21+2*a}]")

    def ln2_prepare(self):
        e = self.e
        X = 128
        for a in range(2):
            e(f"v_mov_b32 v{12+a}, v{8+2*a}")
        self.dpp_reduce16([12, 13])
        for a in range(2):
            e(f"v_mul_f32 v{12+a}, {fl(1.0/16)}, v{12+a}")
            e(f"v_sub_f32 v{14+a}, v{8+2*a}, v{12+a}")
            e(f"v_mul_f32 v{14+a}, v{14+a}, v{14+a}")
            e(f"v_fmac_f32 v{9+2*a}, {fl(32.0)}, v{14+a}")
        self.dpp_reduce16([9, 11])
        for a in range(2):
            e(f"v_mov_b32 v14, {fl(1e-5)}")
            e(f"v_fmac_f32 v14, {fl(1.0/512)}, v{9+2*a}")
            e(f"v_rsq_f32 v{20+4*a}, v14")
        for a in range(2):
            e(f"v_mov_b32 v{21+4*a}, v{20+4*a}")
            e(f"v_mul_f32 v{22+4*a}, v{12+a}, v{20+4*a}"); e(f"v_sub_f32 v{22+4*a}, 0, v{22+4*a}"); e(f"v_mov_b32 v{23+4*a}, v{22+4*a}")
        for a in range(2):
            for q in range(16):
                s_ = 32 + 16*a + q; r = X + 32*a + 2*q
                e(f"v_lshlrev_b32 v{r}, 16, v{s_}"); e(f"v_and_b32 v{r+1}, 0xffff0000, v{s_}")
        for a in range(2):
            for q in range(16):
                r = X + 32*a + 2*q
                e(f"v_pk_fma_f32 v[{r}:{r+1}], v[{r}:{r+1}], v[{20+4*a}:{21+4*a}], v[{22+4*a}:{23+4*a}]")

    def ln_finish(self, lds_mod):
        e = self.e
        X = 128
        e("v_lshrrev_b32 v3, 4, v1"); e("v_and_b32 v4, 15, v1")
        e("v_lshlrev_b32 v6, 5, v4")
        e(f"v_add_u32 v6, {lds_mod}, v6")
        for j in range(4):
            for hh in range(2):
                e(f"ds_read_b128 v[{64+8*j+4*hh}:{67+8*j+4*hh}], v6 offset:{2048 + 512*j + 16*hh}")
                e(f"ds_read_b128 v[{96+8*j+4*hh}:{99+8*j+4*hh}], v6 offset:{512*j + 16*hh}")
        for a in range(2):
            e(f"s_lshl_b32 s20, s3, 3"); e(f"s_add_u32 s20, s20, {4*a}")
            e(f"v_add_u32 v15, s20, v3"); e(f"v_and_b32 v16, 15, v15"); e(f"v_xor_b32 v16, v16, v4")
            e(f"v_lshlrev_b32 v15, 10, v15"); e(f"v_lshl_add_u32 v{18+a}, v16, 4, v15")
        for j in range(4):
            e(f"s_waitcnt lgkmcnt({4*(3-j) + 2*j if False else min(15, 4*(3-j) + 2*j)})" if False else f"s_waitcnt lgkmcnt({4*(3-j)})" if j == 0 else "s_waitcnt lgkmcnt(0)" if j == 1 else "s_nop 0")
            for a in range(2):
                for q in range(4):
                    r = X + 32*a + 8*j + 2*q
                    e(f"v_pk_fma_f32 v[{r}:{r+1}], v[{r}:{r+1}], v[{64+8*j+2*q}:{65+8*j+2*q}], v[{96+8*j+2*q}:{97+8*j+2*q}]")
                pk = 24 + 4*a
                for q in range(4):
                    r = X + 32*a + 8*j + 2*q
                    e(f"v_cvt_pk_bf16_f32 v{pk+q}, v{r}, v{r+1}")
                e(f"ds_write_b128 v{18+a}, v[{pk}:{pk+3}] offset:{256*j}")

    def p01(self):
        e = self.e
        RING = 65536; SL = 12288; D = 7; MODL = RING + D*SL
        MSCR = 155648
        self.srd(8, P_X, 0, 2048*512*2)
        self.srd(12, P_WS, WS_MOD, 49152)
        self.srd(16, P_WQKV, 0, 512*1536*2)
        self.srd(24, P_WS, WS_QK, 4*MB)
        self.srd(28, P_WS, WS_V, 2*MB)
        self.srd(32, P_WMOD, 0, 512*3072*2)
        self.srd(36, P_C, 0, 1024)
        nomod1 = self.lab("nomod")
        e("s_cmp_ge_u32 s2, 192"); e(f"s_cbranch_scc1 {nomod1}")
        e("v_and_b32 v72, 7, v0"); e("v_lshrrev_b32 v73, 3, v0")
        e("v_mul_u32_u24 v74, 6144, v73"); e("v_lshl_add_u32 v74, v72, 4, v74")
        e("v_lshlrev_b32 v75, 1, v73")
        e("s_and_b32 s20, s2, 3"); e("s_lshr_b32 s21, s2, 2")
        e(f"s_mul_i32 s40, s20, {128*6144}"); e("s_lshl_b32 s21, s21, 7"); e("s_add_u32 s40, s40, s21"); e(f"s_add_u32 s41, s40, {64*6144}")
        e("s_lshl_b32 s42, s20, 8")
        e("buffer_load_dwordx4 v[80:83], v74, s[32:35], s40 offen")
        e("buffer_load_dwordx4 v[84:87], v74, s[32:35], s41 offen")
        e("buffer_load_ushort v76, v75, s[36:39], s42 offen")
        e("buffer_load_ushort v77, v75, s[36:39], s42 offen offset:128")
        e("s_barrier")
        self.a.label(nomod1)
        self.get_nonce()
        self.stamp(25)
        e("s_lshl_b32 s6, s4, 16")
        self.ln_loads(8, 6)
        self.stamp(26)
        tk = self.lab("touch")
        e("s_cmp_ge_u32 s3, 3"); e(f"s_cbranch_scc1 {tk}")
        e("s_and_b32 s20, s4, 7"); e("s_lshl_b32 s20, s20, 6")
        e("v_add_u32 v7, s20, v1"); e("v_mul_u32_u24 v7, 3072, v7")
        e("s_lshl_b32 s20, s5, 8"); e("s_lshl_b32 s21, s3, 7"); e("s_add_u32 s20, s20, s21")
        e("s_lshl_b32 s21, s5, 7"); e("s_add_u32 s21, s21, 2048")
        e("s_cmp_eq_u32 s3, 2"); e("s_cselect_b32 s20, s21, s20")
        e("buffer_load_dword v9, v7, s[16:19], s20 offen")
        self.a.label(tk)
        self.stamp(27)
        e("s_and_b32 s7, s3, 3")
        for m in range(3):
            d = 192 + m
            e(f"s_lshl_b32 s20, s7, 6"); e(f"s_add_u32 s20, s20, {256*m}")
            e(f"v_add_u32 v200, s20, v1")
            e(f"v_mul_u32_u24 v201, 2731, v200"); e(f"v_lshrrev_b32 v201, 16, v201")
            e(f"v_mul_u32_u24 v202, 24, v201"); e(f"v_sub_u32 v202, v200, v202")
            e(f"v_bfe_u32 v203, v201, 1, 1"); e(f"v_bfe_u32 v204, v201, 3, 1")
            e(f"v_lshl_or_b32 v203, v204, 1, v203"); e(f"v_lshlrev_b32 v203, 1, v203")
            e(f"v_xor_b32 v202, v202, v203"); e(f"v_lshlrev_b32 v203, 4, v202")
            e(f"s_lshl_b32 s20, s5, 8"); e(f"v_add_u32 v204, s20, v203")
            e(f"s_lshl_b32 s20, s5, 7"); e(f"s_add_u32 s20, s20, {2048-256}"); e(f"v_add_u32 v205, s20, v203")
            e(f"v_cmp_gt_u32 vcc, 16, v202"); e(f"v_cndmask_b32 v204, v205, v204, vcc")
            e(f"v_mul_u32_u24 v201, 3072, v201"); e(f"v_add_u32 v{d}, v201, v204")
        e("s_lshl_b32 s7, s7, 10"); e(f"s_add_u32 s7, s7, {RING}")
        e("s_lshr_b32 s32, s3, 2")
        self.stamp(28)
        nomod2 = self.lab("nomod")
        e("s_cmp_ge_u32 s2, 192"); e(f"s_cbranch_scc1 {nomod2}")
        for j in range(8): e(f"v_mov_b32 v{64+j}, 0")
        e("s_waitcnt vmcnt(8)")
        self.stamp(29)
        for i in range(2):
            c = 76 + i
            e(f"v_lshlrev_b32 v{c}, 16, v{c}")
            e(f"v_mul_f32 v12, {fl(-LOG2E)}, v{c}"); e("v_exp_f32 v12, v12"); e("v_add_f32 v12, 1.0, v12"); e("v_rcp_f32 v12, v12")
            e(f"v_mul_f32 v{c}, v{c}, v12")
            self.bf16_round(c, c)
        for i in range(2):
            for q in range(4):
                w = 80 + 4*i + q
                e(f"v_lshlrev_b32 v12, 16, v{w}"); e(f"v_and_b32 v13, 0xffff0000, v{w}")
                e(f"v_fmac_f32 v{64+2*q}, v{76+i}, v12"); e(f"v_fmac_f32 v{65+2*q}, v{76+i}, v13")
        for j in range(8): e(f"v_add_f32_dpp v{64+j}, v{64+j}, v{64+j} row_ror:8 row_mask:0xf bank_mask:0xf")
        e("v_lshrrev_b32 v12, 4, v0"); e("v_lshlrev_b32 v12, 8, v12"); e("v_lshl_add_u32 v12, v72, 5, v12")
        e(f"v_add_u32 v12, {MSCR}, v12")
        e("v_and_b32 v13, 8, v1"); e("v_cmp_eq_u32 vcc, 0, v13")
        e("s_and_saveexec_b64 s[44:45], vcc")
        e("ds_write_b128 v12, v[64:67]"); e("ds_write_b128 v12, v[68:71] offset:16")
        e("s_mov_b64 exec, s[44:45]")
        e("s_waitcnt lgkmcnt(0)")
        self.stamp(30)
        e("s_barrier")
        mdone = self.lab("mdone")
        e("s_cmp_lg_u32 s3, 7"); e(f"s_cbranch_scc1 {mdone}")
        e("v_lshlrev_b32 v72, 2, v1"); e(f"v_add_u32 v12, {MSCR}, v72")
        for i in range(32): e(f"ds_read_b32 v{80+i}, v12 offset:{256*i}")
        for lo in (0, 16):
            e(f"s_waitcnt lgkmcnt({15 if lo == 0 else 0})")
            if lo == 0: e("s_waitcnt lgkmcnt(15)")
        e("s_waitcnt lgkmcnt(0)")
        for st in (16, 8, 4, 2, 1):
            for i in range(st): e(f"v_add_f32 v{80+i}, v{80+i}, v{80+i+st}")
        e("s_and_b32 s20, s2, 3"); e("s_mul_i32 s20, s20, 12288"); e("s_lshr_b32 s21, s2, 2"); e("s_lshl_b32 s21, s21, 8"); e("s_add_u32 s20, s20, s21")
        e(f"buffer_store_dword v80, v72, s[12:15], s20 offen {ST}")
        e("s_waitcnt vmcnt(0)")
        self.signal(lambda: (e("s_lshl_b32 s46, s2, 2"), e(f"s_add_u32 s46, s46, {F0}")), nrep=8, rep_stride=1024)
        self.a.label(mdone)
        self.a.label(nomod2)
        self.stamp(0)
        e(f"s_mul_i32 s33, s32, {32*3072}")
        e(f"s_mul_i32 s34, s32, {SL}"); e("s_add_u32 s34, s34, s7")
        def issue_pair(pairidx):
            def f():
                e(f"s_add_u32 s23, s33, {2*pairidx*32*3072}")
                for m in range(3):
                    self.dma(192+m, 16, "s23", f"s_add_u32 m0, s34, {2*pairidx*SL + m*4096}")
            return f
        issue_pair(0)()
        e("s_waitcnt vmcnt(3)")
        self.stamp(1)
        nop = lambda: None
        self.ln_stats([nop, nop, issue_pair(1), nop, nop, issue_pair(2)])
        self.stamp(2)
        def c0():
            e("s_and_b32 s46, s2, 7"); e("s_lshl_b32 s46, s46, 10"); e(f"s_add_u32 s46, s46, {F0}")
            e("v_lshlrev_b32 v251, 2, v1")
        self.wait_flags([(c0, (1 << 64) - 1)], keep=True)
        self.stamp(3)
        self.mod_issue(12, 0)
        e("v_mov_b32 v249, 0"); e("ds_read_b32 v249, v249"); e("s_waitcnt lgkmcnt(0)"); e(f"v_readfirstlane_b32 s{S_NONCE}, v249")
        e("v_lshrrev_b32 v3, 4, v1"); e("v_and_b32 v4, 15, v1")
        e("v_lshrrev_b32 v5, 2, v4"); e("v_and_b32 v6, 3, v4")
        e("v_lshl_add_u32 v7, v3, 3, v5"); e("v_mul_u32_u24 v7, 384, v7"); e("v_lshl_add_u32 v7, v6, 3, v7")
        e(f"v_add_u32 v7, {RING}, v7")
        e("v_bfe_u32 v8, v5, 1, 1"); e("v_and_b32 v9, 1, v3"); e("v_lshl_or_b32 v8, v9, 1, v8")
        e("s_lshr_b32 s20, s3, 1")
        for c in range(3):
            if c < 2: e(f"s_lshl_b32 s21, s20, 1"); e(f"s_add_u32 s21, s21, {c}")
            else: e(f"s_add_u32 s21, s20, 8")
            e("s_lshr_b32 s22, s21, 2"); e("s_lshl_b32 s22, s22, 7"); e("s_and_b32 s21, s21, 3")
            e(f"v_xor_b32 v9, s21, v8"); e(f"v_lshl_add_u32 v{200+c}, v9, 5, v7"); e(f"v_add_u32 v{200+c}, s22, v{200+c}")
            e(f"v_add_u32 v{204+c}, {5*SL}, v{200+c}")
        e("s_and_b32 s21, s3, 1"); e("s_lshl_b32 s21, s21, 5")
        e("v_add_u32 v9, s21, v4"); e("v_lshlrev_b32 v9, 10, v9")
        for m in range(4):
            e(f"v_add_u32 v10, {4*m}, v3"); e(f"v_xor_b32 v10, v10, v4"); e(f"v_lshl_add_u32 v{208+m}, v10, 4, v9")
        e("s_waitcnt vmcnt(0)")
        self.mod_finish(MODL)
        e("s_waitcnt lgkmcnt(0)")
        e("s_barrier")
        self.ln_finish(MODL)
        ACC = 128
        e("s_waitcnt lgkmcnt(0)")
        e("s_barrier")
        for r in range(24): e(f"v_mov_b32 v{192+8+r}, 0") if False else None
        ACC = 212
        for r in range(24): e(f"v_mov_b32 v{ACC+r}, 0")
        self.stamp(4)
        def reads_list(n):
            buf = n % 2; slot = n % D
            out = []
            for rt in range(2):
                b = 32 + 32*buf + 4*rt
                out.append(f"ds_read_b128 v[{b}:{b+3}], v{208 + (n & 3)} offset:{rt*16384 + (n >> 2)*256}")
            for c in range(3):
                b = 40 + 32*buf + 4*c
                areg, off = (200 + c, slot*SL) if slot < 5 else (204 + c, (slot-5)*SL)
                for t in range(2):
                    out.append(f"ds_read_b64_tr_b16 v[{b+2*t}:{b+2*t+1}], v{areg} offset:{off + 4*t*384}")
            return out
        def mfmas(n):
            buf = n % 2
            for c in range(3):
                for rt in range(2):
                    acc = ACC + 4*(rt*3 + c)
                    x = 32 + 32*buf + 4*rt; w = 40 + 32*buf + 4*c
                    A, B = (w, x) if c < 2 else (x, w)
                    yield f"v_mfma_f32_16x16x32_bf16 v[{acc}:{acc+3}], v[{A}:{A+3}], v[{B}:{B+3}], v[{acc}:{acc+3}]"
        NK = 16
        for r in reads_list(0): e(r)
        for n in range(NK):
            if n + 1 < NK:
                if n + 1 >= 6:
                    hi = min(n + 5, NK - 1)
                    cA = sum(1 for s in range(max(n+2, 6), hi+1) if s % 2 == 0); cB = sum(1 for s in range(max(n+2, 6), hi+1) if s % 2 == 1)
                    e(f"s_waitcnt vmcnt({3*min(cA, cB)})")
                e("s_barrier")
            e("s_waitcnt lgkmcnt(0)")
            ms = list(mfmas(n)); rs = reads_list(n + 1) if n + 1 < NK else []
            ri = 0
            for i, m in enumerate(ms):
                e(m)
                for _ in range(2 if i < 2 else 1):
                    if ri < len(rs): e(rs[ri]); ri += 1
            st = n + D - 1
            if st < NK:
                lsk = self.lab("qkv_sk")
                e(f"s_cmp_lg_u32 s32, {st & 1}"); e(f"s_cbranch_scc1 {lsk}")
                e(f"s_mov_b32 s23, {st*32*3072}")
                for m in range(3): self.dma(192+m, 16, "s23", f"s_add_u32 m0, s7, {(st % D)*SL + m*4096}")
                self.a.label(lsk)
        self.stamp(5)
        e("v_lshrrev_b32 v3, 4, v1"); e("v_and_b32 v4, 15, v1")
        e("v_lshrrev_b32 v5, 1, v3"); e("v_and_b32 v6, 1, v3"); e("v_lshlrev_b32 v7, 4, v4")
        e("v_lshl_add_u32 v8, v5, 9, v7"); e("v_lshl_add_u32 v8, v6, 3, v8")
        e("v_lshl_add_u32 v9, v6, 8, v7"); e("v_lshl_add_u32 v9, v5, 3, v9")
        e("s_and_b32 s20, s3, 1"); e("s_lshl_b32 s21, s4, 1"); e("s_add_u32 s21, s21, s20"); e("s_lshl_b32 s21, s21, 10")
        e("s_lshr_b32 s20, s3, 1")
        e(f"s_mov_b32 s22, {fl(0.25*LOG2E)}"); e("s_cmp_lt_u32 s5, 4"); e("s_cselect_b32 s22, s22, 1.0")
        for c in range(3):
            if c < 2:
                e("s_lshl_b32 s23, s5, 3"); e("s_lshl_b32 s6, s20, 1"); e("s_add_u32 s23, s23, s6"); e(f"s_add_u32 s23, s23, {c}")
            else:
                e("s_lshl_b32 s23, s5, 2"); e("s_add_u32 s23, s23, s20")
            e("s_lshl_b32 s23, s23, 16"); e("s_add_u32 s23, s23, s21")
            for rt in range(2):
                acc = ACC + 4*(rt*3 + c)
                pk = 32 + 2*(rt + 2*c)
                if c < 2:
                    for q in range(4): e(f"v_mul_f32 v{acc+q}, s22, v{acc+q}")
                e(f"v_cvt_pk_bf16_f32 v{pk}, v{acc}, v{acc+1}"); e(f"v_cvt_pk_bf16_f32 v{pk+1}, v{acc+2}, v{acc+3}")
                if c < 2: e(f"buffer_store_dwordx2 v[{pk}:{pk+1}], v8, s[24:27], s23 offen offset:{rt*256} {ST}")
                else:     e(f"buffer_store_dwordx2 v[{pk}:{pk+1}], v9, s[28:31], s23 offen offset:{rt*512} {ST}")
        self.phase_end()
        self.signal(lambda: (e("s_lshl_b32 s46, s5, 7"), e("s_lshl_b32 s47, s4, 2"), e("s_add_u32 s46, s46, s47"), e(f"s_add_u32 s46, s46, {F1}")),
                    nrep=8, rep_stride=1024)
        self.stamp(6)

    def l2_prefetch(self, vtmp, vdst):
        e = self.e
        e("s_and_b32 s20, s2, 7"); e("s_lshr_b32 s21, s2, 3")
        e(f"v_lshlrev_b32 v{vtmp}, 7, v1")
        self.srd(48, P_WSP, 0, 2048*2048*2)
        e("s_and_b32 s22, s20, 3"); e("s_lshl_b32 s22, s22, 21"); e("s_lshl_b32 s23, s21, 16"); e("s_add_u32 s22, s22, s23")
        e("s_lshl_b32 s23, s3, 13"); e("s_add_u32 s22, s22, s23")
        e(f"buffer_load_dword v{vdst}, v{vtmp}, s[48:51], s22 offen")
        self.srd(48, P_WIN, 0, 512*1792*2)
        e(f"v_lshrrev_b32 v{vdst+1}, 5, v1"); e(f"v_bfe_u32 v{vdst+2}, v1, 4, 1")
        e(f"v_and_b32 v{vdst+3}, 15, v1"); e(f"v_min_u32 v{vdst+3}, 7, v{vdst+3}")
        e(f"v_mul_u32_u24 v{vdst+1}, 3584, v{vdst+1}"); e(f"v_mul_u32_u24 v{vdst+2}, 1792, v{vdst+2}")
        e(f"v_add_u32 v{vdst+1}, v{vdst+1}, v{vdst+2}"); e(f"v_lshl_add_u32 v{vdst+1}, v{vdst+3}, 7, v{vdst+1}")
        e("s_lshr_b32 s22, s20, 2"); e("s_mul_i32 s22, s22, 896")
        e("s_lshl_b32 s23, s21, 4"); e("s_lshl_b32 s46, s3, 1"); e("s_add_u32 s23, s23, s46"); e("s_mul_i32 s23, s23, 3584")
        e("s_add_u32 s22, s22, s23")
        e(f"buffer_load_dword v{vdst+2}, v{vdst+1}, s[48:51], s22 offen")
        e(f"v_lshrrev_b32 v{vdst+1}, 2, v1"); e(f"v_and_b32 v{vdst+3}, 3, v1")
        e(f"v_lshlrev_b32 v{vdst+1}, 10, v{vdst+1}"); e(f"v_lshl_add_u32 v{vdst+1}, v{vdst+3}, 7, v{vdst+1}")
        e("s_lshr_b32 s22, s20, 2"); e("s_lshl_b32 s22, s22, 9")
        lw = self.lab("pf_w"); lx = self.lab("pf_x")
        e("s_cmp_ge_u32 s3, 2"); e(f"s_cbranch_scc1 {lw}")
        self.srd(48, P_WOUT, 0, 896*512*2)
        e("s_mul_i32 s23, s21, 28"); e("s_lshl_b32 s46, s3, 4"); e("s_add_u32 s23, s23, s46"); e("s_lshl_b32 s23, s23, 10")
        e("s_add_u32 s22, s22, s23")
        e(f"buffer_load_dword v{vdst+3}, v{vdst+1}, s[48:51], s22 offen")
        e(f"s_branch {lx}")
        self.a.label(lw)
        e("s_cmp_lg_u32 s3, 2"); e(f"s_cbranch_scc1 {lx}")
        self.srd(48, P_WO, 0, 512*512*2)
        e("s_lshl_b32 s23, s21, 14"); e("s_add_u32 s22, s22, s23")
        e(f"buffer_load_dword v{vdst+3}, v{vdst+1}, s[48:51], s22 offen")
        self.a.label(lx)

    def p2(self):
        e = self.e
        end = self.lab("att_end")
        H, QB_ = S_HEAD, S_QB
        self.srd(8, P_WS, WS_QK, 4*MB)
        self.srd(12, P_WS, WS_V, 2*MB)
        self.srd(16, P_WS, WS_O, 2*MB)
        e("s_and_b32 s6, s3, 3"); e("s_lshr_b32 s7, s3, 2")
        e("v_lshlrev_b32 v2, 4, v1")
        QA, QB = 8, 12
        SA, SB = 32, 48
        PA, PB = 64, 72
        OA, OB = 80, 96
        CA, CB = 112, 128
        KF = 144; VF = 152
        AK, AV = 4, 5
        FLAG = 131072 + 20480
        e(f"v_mov_b32 v3, {FLAG}"); e("v_mov_b32 v4, 0"); e("ds_write_b32 v3, v4")
        e("v_and_b32 v6, 31, v1"); e("v_and_b32 v7, 27, v6"); e("v_cmp_eq_u32 vcc, 16, v7")
        e("v_mov_b32 v16, 0x3f803f80"); e("v_cndmask_b32 v16, 0, v16, vcc")
        for r in range(16): e(f"v_mov_b32 v{VF+r}, v16")
        e("v_cmp_gt_u32 s[30:31], 16, v6")
        for r in range(16):
            e(f"v_mov_b32 v{CA+r}, 0"); e(f"v_mov_b32 v{CB+r}, 0")
        e("s_mov_b32 s33, 0")
        def cKV():
            e("s_and_b32 s46, s2, 7"); e("s_lshl_b32 s46, s46, 10"); e(f"s_add_u32 s46, s46, {F1}")
            e(f"s_lshr_b32 s44, s{H}, 3"); e("s_add_u32 s44, s44, 4"); e("s_lshl_b32 s44, s44, 7")
            e(f"s_lshr_b32 s45, s{H}, 2"); e("s_lshl_b32 s45, s45, 7")
            e("v_and_b32 v251, 31, v1"); e("v_lshlrev_b32 v251, 2, v251")
            e("v_mov_b32 v252, s44"); e("v_mov_b32 v253, s45")
            e("v_cmp_gt_u32 vcc, 32, v1"); e("v_cndmask_b32 v252, v253, v252, vcc")
            e("v_add_u32 v251, v251, v252")
        def cQ():
            e("s_and_b32 s46, s2, 7"); e("s_lshl_b32 s46, s46, 10"); e(f"s_add_u32 s46, s46, {F1}")
            e(f"s_lshr_b32 s44, s{H}, 3"); e("s_lshl_b32 s44, s44, 7"); e("s_add_u32 s46, s46, s44")
            e(f"s_lshl_b32 s44, s{QB_}, 4"); e("s_add_u32 s46, s46, s44")
            e("v_lshlrev_b32 v251, 2, v1")
        self.wait_flags([(cKV, (1 << 64) - 1), (cQ, 0xf)])
        self.stamp(7)
        e(f"s_lshl_b32 s20, s{QB_}, 3"); e("s_lshl_b32 s21, s6, 1"); e("s_add_u32 s20, s20, s21"); e("s_lshl_b32 s20, s20, 10")
        e(f"s_lshl_b32 s21, s{H}, 16"); e("s_add_u32 s20, s20, s21")
        e(f"buffer_load_dwordx4 v[{QA}:{QA+3}], v2, s[8:11], s20 offen")
        e(f"buffer_load_dwordx4 v[{QB}:{QB+3}], v2, s[8:11], s20 offen offset:1024")
        e(f"s_lshl_b32 s41, s{H}, 16"); e(f"s_add_u32 s40, s41, {32*65536}"); e("s_lshl_b32 s42, s3, 10")
        e("s_add_u32 s40, s40, s42"); e("s_add_u32 s41, s41, s42")
        def dma_half(half):
            e(f"s_add_u32 s20, s40, {32*half*1024}")
            self.dma(2, 8, "s20", f"s_add_u32 m0, s42, {32*half*1024}")
            e(f"s_add_u32 s20, s41, {32*half*1024}")
            self.dma(2, 12, "s20", f"s_add_u32 m0, s42, {65536 + 32*half*1024}")
        def next_chunk():
            e("s_add_u32 s40, s40, 8192"); e("s_add_u32 s41, s41, 8192"); e("s_add_u32 s42, s42, 8192")
        dma_half(0); dma_half(1); next_chunk()
        lrestart = self.lab("att_restart")
        self.a.label(lrestart)
        for r in range(16):
            e(f"v_mov_b32 v{OA+r}, 0"); e(f"v_mov_b32 v{OB+r}, 0")
        e("s_lshl_b32 s20, s7, 15"); e(f"v_add_u32 v{AK}, s20, v2")
        e("v_lshrrev_b32 v6, 5, v1"); e("v_and_b32 v7, 15, v1"); e("v_lshlrev_b32 v7, 4, v7"); e("v_lshl_add_u32 v7, v6, 8, v7")
        e("s_add_u32 s20, s20, 65536"); e(f"v_add_u32 v{AV}, s20, v7")
        for r in range(8): e(f"v_mov_b32 v{PB+r}, 0")
        if self.BALANCE:
            e("s_lshl_b32 s20, s3, 2"); e(f"s_add_u32 s20, s20, {131072 + 24576}"); e("v_mov_b32 v17, s20")
            e("s_xor_b32 s20, s20, 16"); e("v_mov_b32 v18, s20")
            e("v_mov_b32 v19, 0"); e("ds_write_b32 v17, v19")
        e("s_mov_b64 exec, s[30:31]")
        for r in range(8): e(f"v_mov_b32 v{VF+8+r}, 0")
        e("s_mov_b64 exec, -1")
        def rdK(buf, off): e(f"ds_read_b128 v[{KF+4*buf}:{KF+4*buf+3}], v{AK} offset:{off}")
        def rdV(buf, off):
            e("s_mov_b64 exec, s[30:31]")
            e(f"ds_read_b128 v[{VF+8*buf}:{VF+8*buf+3}], v{AV} offset:{off}")
            e(f"ds_read_b128 v[{VF+8*buf+4}:{VF+8*buf+7}], v{AV} offset:{off+512}")
            e("s_mov_b64 exec, -1")
        def qk(S, C, Q, buf): e(f"v_mfma_f32_32x32x16_bf16 v[{S}:{S+15}], v[{KF+4*buf}:{KF+4*buf+3}], v[{Q}:{Q+3}], v[{C}:{C+15}]")
        def pv(O, P, buf, mf): e(f"v_mfma_f32_32x32x16_bf16 v[{O}:{O+15}], v[{VF+8*buf+4*mf}:{VF+8*buf+4*mf+3}], v[{P+4*mf}:{P+4*mf+3}], v[{O}:{O+15}]")
        def step(S, P, first, mid1, mid2, pre=None, extra=None):
            if pre: pre()
            first()
            k = 0
            for j in range(16):
                e(f"v_exp_f32 v{S+j}, v{S+j}")
                if j >= 3 and j % 2 == 1:
                    e(f"v_cvt_pk_bf16_f32 v{P+k}, v{S+2*k}, v{S+2*k+1}"); k += 1
                if j == 4 and mid1: mid1()
                if j == 7 and extra: extra()
                if j == 10 and mid2: mid2()
            while k < 8:
                e(f"v_cvt_pk_bf16_f32 v{P+k}, v{S+2*k}, v{S+2*k+1}"); k += 1
        e("s_waitcnt vmcnt(0) lgkmcnt(0)")
        e("s_barrier")
        self.stamp(8)
        rdK(0, 0); rdV(0, 0)
        e("s_waitcnt lgkmcnt(0)")
        qk(SA, CA, QA, 0)
        e("s_mov_b32 s34, 0")
        loop = self.lab("att_loop")
        self.a.label(loop)
        nb = self.lab("att_nobar")
        e("s_add_u32 s35, s34, s33")
        if self.PREFETCH:
            pf = self.lab("att_pf")
            e("s_cmp_lg_u32 s35, 4"); e(f"s_cbranch_scc1 {pf}")
            self.l2_prefetch(170, 172)
            self.a.label(pf)
        e("s_cmp_lg_u32 s35, 3"); e(f"s_cbranch_scc1 {nb}")
        e("s_waitcnt vmcnt(0)")
        e("s_barrier")
        self.a.label(nb)
        def extra_dma():
            sk = self.lab("att_nd")
            e("s_cmp_ge_u32 s35, 3"); e(f"s_cbranch_scc1 {sk}")
            dma_half(0); dma_half(1); next_chunk()
            self.a.label(sk)
        step(SA, PA, lambda: qk(SB, CB, QB, 0), lambda: pv(OB, PB, 1, 0), lambda: pv(OB, PB, 1, 1), pre=lambda: rdK(1, 1024), extra=extra_dma)
        def preB0():
            rdV(1, 1024); e("s_waitcnt lgkmcnt(2)")
            if self.BALANCE:
                e("v_mov_b32 v19, s34")
                e("ds_write_b32 v17, v19")
                e("ds_read_b32 v24, v18")
        step(SB, PB, lambda: qk(SA, CA, QA, 1), lambda: pv(OA, PA, 0, 0), lambda: pv(OA, PA, 0, 1), pre=preB0)
        step(SA, PA, lambda: qk(SB, CB, QB, 1), lambda: pv(OB, PB, 0, 0), lambda: pv(OB, PB, 0, 1), pre=lambda: rdK(0, 2048))
        def preB1():
            rdV(0, 2048); e("s_waitcnt lgkmcnt(2)")
            if self.BALANCE:
                hi = self.lab("att_hi"); dn_ = self.lab("att_pd")
                e("v_readfirstlane_b32 s20, v24")
                e("s_cmp_gt_u32 s34, s20"); e(f"s_cbranch_scc0 {hi}")
                e("s_setprio 0"); e(f"s_branch {dn_}")
                self.a.label(hi)
                e("s_setprio 1")
                self.a.label(dn_)
        step(SB, PB, lambda: qk(SA, CA, QA, 0), lambda: pv(OA, PA, 1, 0), lambda: pv(OA, PA, 1, 1), pre=preB1)
        e(f"v_add_u32 v{AK}, 2048, v{AK}"); e(f"v_add_u32 v{AV}, 2048, v{AV}")
        e("s_add_u32 s34, s34, 1"); e("s_cmp_lt_u32 s34, 16"); e(f"s_cbranch_scc1 {loop}")
        if self.BALANCE:
            e("v_mov_b32 v19, 64"); e("ds_write_b32 v17, v19"); e("s_setprio 0")
        self.stamp(9)
        pv(OB, PB, 1, 0); pv(OB, PB, 1, 1)
        SCR = 131072
        e("s_mul_i32 s20, s3, 2560"); e(f"s_add_u32 s20, s20, {SCR}")
        e("v_add_u32 v6, s20, v2"); e("v_lshlrev_b32 v7, 2, v1"); e("v_add_u32 v7, s20, v7")
        lk1 = self.lab("att_k1"); lx = self.lab("att_x")
        e("s_cmp_eq_u32 s7, 0"); e(f"s_cbranch_scc1 {lk1}")
        e(f"ds_write_b128 v6, v[{OA}:{OA+3}]"); e(f"ds_write_b128 v6, v[{OA+4}:{OA+7}] offset:1024"); e(f"ds_write_b32 v7, v{OA+8} offset:2048")
        for r in range(9): e(f"v_mov_b32 v{OA+r}, v{OB+r}")
        e(f"s_branch {lx}")
        self.a.label(lk1)
        e(f"ds_write_b128 v6, v[{OB}:{OB+3}]"); e(f"ds_write_b128 v6, v[{OB+4}:{OB+7}] offset:1024"); e(f"ds_write_b32 v7, v{OB+8} offset:2048")
        self.a.label(lx)
        e("s_xor_b32 s21, s3, 4"); e("s_mul_i32 s21, s21, 2560"); e(f"s_add_u32 s21, s21, {SCR}")
        e("v_add_u32 v6, s21, v2"); e("v_lshlrev_b32 v7, 2, v1"); e("v_add_u32 v7, s21, v7")
        e("s_waitcnt lgkmcnt(0)"); e("s_barrier")
        e(f"ds_read_b128 v[{SA}:{SA+3}], v6"); e(f"ds_read_b128 v[{SA+4}:{SA+7}], v6 offset:1024"); e(f"ds_read_b32 v{SA+8}, v7 offset:2048")
        e(f"v_mov_b32 v20, {fl(2.0**-24)}"); e(f"v_mov_b32 v21, {fl(2.0**40)}"); e(f"v_mov_b32 v22, 0x7f7fffff")
        e("s_waitcnt lgkmcnt(0)")
        for r in range(9): e(f"v_add_f32 v{OA+r}, v{OA+r}, v{SA+r}")
        e(f"v_max3_f32 v23, |v{OA}|, |v{OA+1}|, |v{OA+2}|"); e(f"v_max3_f32 v23, v23, |v{OA+3}|, |v{OA+4}|")
        e(f"v_max3_f32 v23, v23, |v{OA+5}|, |v{OA+6}|"); e(f"v_max_f32 v23, v23, |v{OA+7}|")
        e(f"v_cmp_ge_f32 vcc, v{OA+8}, v20"); e(f"v_cmp_le_f32 s[36:37], v{OA+8}, v21"); e(f"v_cmp_le_f32 s[38:39], v23, v22")
        e("s_and_b64 s[36:37], s[36:37], vcc"); e("s_and_b64 s[36:37], s[36:37], s[38:39]")
        lok = self.lab("att_ok")
        e("s_cmp_eq_u64 s[36:37], -1"); e(f"s_cbranch_scc1 {lok}")
        e(f"v_mov_b32 v3, {FLAG}"); e("v_mov_b32 v20, 1"); e("ds_write_b32 v3, v20"); e("s_waitcnt lgkmcnt(0)")
        self.a.label(lok)
        e(f"v_rcp_f32 v20, v{OA+8}")
        for r in range(8): e(f"v_mul_f32 v{OA+r}, v{OA+r}, v20")
        for q in range(4): e(f"v_cvt_pk_bf16_f32 v{SB+q}, v{OA+2*q}, v{OA+2*q+1}")
        e("s_barrier")
        e(f"v_mov_b32 v3, {FLAG}"); e("ds_read_b32 v20, v3")
        e(f"s_lshl_b32 s20, s{QB_}, 3"); e("s_lshl_b32 s21, s6, 1"); e("s_add_u32 s20, s20, s21"); e("s_add_u32 s20, s20, s7")
        e("s_lshl_b32 s20, s20, 15"); e(f"s_lshl_b32 s21, s{H}, 10"); e("s_add_u32 s22, s20, s21")
        e("s_waitcnt lgkmcnt(0)")
        e("v_readfirstlane_b32 s20, v20")
        lfin = self.lab("att_fin"); lslow = self.lab("att_slow")
        e("s_cmp_lg_u32 s33, 0"); e(f"s_cbranch_scc1 {lfin}")
        e("s_cmp_lg_u32 s20, 0"); e(f"s_cbranch_scc1 {lslow}")
        self.a.label(lfin)
        e(f"buffer_store_dwordx4 v[{SB}:{SB+3}], v2, s[16:19], s22 offen {ST}")
        e(f"s_branch {end}")
        self.a.label(lslow)
        e("s_mov_b32 s33, 8")
        e("s_lshl_b32 s20, s7, 15"); e(f"v_add_u32 v{AK}, s20, v2")
        e("v_mov_b32 v20, 0xff800000"); e("v_mov_b32 v21, 0xff800000")
        e("s_mov_b32 s34, 0")
        sl = self.lab("att_sl")
        self.a.label(sl)
        rdK(0, 0); e("s_waitcnt lgkmcnt(0)")
        e(f"v_mfma_f32_32x32x16_bf16 v[{SA}:{SA+15}], v[{KF}:{KF+3}], v[{QA}:{QA+3}], 0")
        e(f"v_mfma_f32_32x32x16_bf16 v[{SB}:{SB+15}], v[{KF}:{KF+3}], v[{QB}:{QB+3}], 0")
        for r in range(0, 16, 2): e(f"v_max3_f32 v20, v20, v{SA+r}, v{SA+r+1}")
        for r in range(0, 16, 2): e(f"v_max3_f32 v21, v21, v{SB+r}, v{SB+r+1}")
        e(f"v_add_u32 v{AK}, 1024, v{AK}")
        e("s_add_u32 s34, s34, 1"); e("s_cmp_lt_u32 s34, 32"); e(f"s_cbranch_scc1 {sl}")
        for r in (20, 21):
            e(f"v_mov_b32 v22, v{r}"); e(f"v_permlane32_swap_b32 v{r}, v22"); e(f"v_max_f32 v{r}, v{r}, v22")
        e("s_lshl_b32 s20, s3, 9"); e(f"s_add_u32 s20, s20, {SCR}")
        e("v_lshlrev_b32 v6, 2, v1"); e("v_add_u32 v7, s20, v6")
        e("s_barrier")
        e("ds_write_b32 v7, v20"); e("ds_write_b32 v7, v21 offset:256"); e("s_waitcnt lgkmcnt(0)"); e("s_barrier")
        e("s_xor_b32 s20, s3, 4"); e("s_lshl_b32 s20, s20, 9"); e(f"s_add_u32 s20, s20, {SCR}"); e("v_add_u32 v7, s20, v6")
        e("ds_read_b32 v22, v7"); e("ds_read_b32 v23, v7 offset:256"); e("s_waitcnt lgkmcnt(0)")
        e("v_max_f32 v20, v20, v22"); e("v_max_f32 v21, v21, v23")
        for r in range(16):
            e(f"v_sub_f32 v{CA+r}, 0, v20"); e(f"v_sub_f32 v{CB+r}, 0, v21")
        e("s_barrier")
        e(f"s_branch {lrestart}")
        self.a.label(end)
        self.phase_end()
        self.signal(lambda: (e(f"s_lshl_b32 s46, s{QB_}, 7"), e(f"s_lshl_b32 s47, s{H}, 2"), e("s_add_u32 s46, s46, s47"), e(f"s_add_u32 s46, s46, {F2}")))
        self.stamp(10)

    def proj_wvoff(self):
        e = self.e
        e("v_lshlrev_b32 v2, 4, v1")
        e("v_lshrrev_b32 v3, 3, v1"); e("v_and_b32 v4, 7, v1"); e("v_bfe_u32 v5, v3, 1, 1"); e("v_lshlrev_b32 v5, 2, v5")
        e("v_xor_b32 v4, v4, v5"); e("v_lshlrev_b32 v3, 10, v3"); e("v_lshl_add_u32 v3, v4, 4, v3")
        e("s_lshl_b32 s20, s5, 7"); e("v_add_u32 v3, s20, v3")

    def proj_epi_addr(self):
        e = self.e
        e("v_lshrrev_b32 v14, 2, v1"); e("v_and_b32 v15, 3, v1")
        e("s_and_b32 s20, s3, 1"); e("s_lshl_b32 s20, s20, 5"); e("s_lshl_b32 s21, s4, 6"); e("s_add_u32 s20, s20, s21")
        e("s_lshr_b32 s21, s3, 2"); e("s_lshl_b32 s21, s21, 4"); e("s_add_u32 s36, s20, s21")
        e("v_add_u32 v16, s36, v14"); e("v_lshlrev_b32 v16, 10, v16"); e("v_lshl_add_u32 v16, v15, 4, v16")
        e("s_bfe_u32 s20, s3, 0x10001"); e("s_lshl_b32 s20, s20, 6"); e("s_lshl_b32 s21, s5, 7"); e("s_add_u32 s32, s20, s21")
        e("v_lshlrev_b32 v17, 5, v15"); e("s_lshl_b32 s33, s32, 1")

    def proj_gate_loads(self, gate_chunk):
        e = self.e
        for kq in range(4):
            e(f"s_add_u32 s20, s33, {kq*12288 + gate_chunk*2048}")
            for hh in range(2):
                e(f"buffer_load_dwordx4 v[{160+8*kq+4*hh}:{163+8*kq+4*hh}], v17, s[28:31], s20 offen offset:{16*hh}")

    def proj_addr(self, natural, xbase, wbase):
        e = self.e
        e("s_and_b32 s20, s3, 1"); e("s_lshl_b32 s20, s20, 13"); e("s_lshr_b32 s21, s3, 2"); e("s_lshl_b32 s22, s21, 12")
        e("s_add_u32 s20, s20, s22"); e(f"s_add_u32 s20, s20, {xbase}"); e("v_add_u32 v8, s20, v2")
        e("v_lshrrev_b32 v4, 4, v1"); e("v_and_b32 v5, 15, v1"); e("v_lshrrev_b32 v6, 2, v5"); e("v_and_b32 v7, 3, v5")
        e("v_lshrrev_b32 v10, 1, v4"); e("v_and_b32 v11, 1, v4")
        e(f"v_lshl_add_u32 v12, v10, {3 if natural else 2}, v6"); e("v_lshlrev_b32 v12, 7, v12")
        e("v_bfe_u32 v13, v6, 1, 1"); e("s_bfe_u32 s20, s3, 0x10001"); e("v_xor_b32 v13, s20, v13")
        e("v_lshl_add_u32 v12, v13, 6, v12"); e("v_lshl_add_u32 v12, v11, 5, v12"); e("v_lshl_add_u32 v12, v7, 3, v12")
        e("s_lshl_b32 s22, s21, 13"); e(f"s_add_u32 s22, s22, {wbase}"); e("v_add_u32 v9, s22, v12")

    def proj_chunk(self, ACC, xoff, wreg, woff, natural):
        e = self.e
        tstep = (4 if natural else 8) * 128
        for ks in range(4):
            b = 96 + 8*ks
            e(f"ds_read_b128 v[{b}:{b+3}], v8 offset:{xoff + ks*1024}")
            e(f"ds_read_b64_tr_b16 v[{b+4}:{b+5}], v{wreg} offset:{woff + ks*2048}")
            e(f"ds_read_b64_tr_b16 v[{b+6}:{b+7}], v{wreg} offset:{woff + ks*2048 + tstep}")
        for ks in range(4):
            b = 96 + 8*ks
            e(f"s_waitcnt lgkmcnt({3*(3-ks)})")
            e(f"v_mfma_f32_32x32x16_bf16 v[{ACC}:{ACC+15}], v[{b+4}:{b+7}], v[{b}:{b+3}], v[{ACC}:{ACC+15}]")

    def proj_epilogue(self, ACC, srd_out, flags, stats):
        e = self.e
        e("s_barrier")
        e("s_mul_i32 s20, s3, 4608")
        e("v_and_b32 v18, 31, v1"); e("v_mul_u32_u24 v18, 144, v18"); e("v_lshrrev_b32 v19, 5, v1")
        e("v_lshl_add_u32 v18, v19, 4, v18"); e("v_add_u32 v18, s20, v18")
        for g in range(4): e(f"ds_write_b128 v18, v[{ACC+4*g}:{ACC+4*g+3}] offset:{32*g}")
        e("s_waitcnt vmcnt(0)")
        for q in range(4):
            for kq in (1,):
                e(f"v_pk_add_f32 v[{160+2*q}:{161+2*q}], v[{160+2*q}:{161+2*q}], v[{168+2*q}:{169+2*q}]")
                e(f"v_pk_add_f32 v[{176+2*q}:{177+2*q}], v[{176+2*q}:{177+2*q}], v[{184+2*q}:{185+2*q}]")
        for q in range(4):
            e(f"v_pk_add_f32 v[{160+2*q}:{161+2*q}], v[{160+2*q}:{161+2*q}], v[{176+2*q}:{177+2*q}]")
        for q in range(4):
            e(f"v_cvt_pk_bf16_f32 v{168+q}, v{160+2*q}, v{161+2*q}")
        for q in range(4):
            e(f"v_lshlrev_b32 v{160+2*q}, 16, v{168+q}"); e(f"v_and_b32 v{161+2*q}, 0xffff0000, v{168+q}")
        e("s_and_b32 s20, s3, 3"); e("s_mul_i32 s20, s20, 4608"); e("s_lshr_b32 s21, s3, 2"); e(f"s_mul_i32 s21, s21, {16*144}")
        e("s_add_u32 s20, s20, s21")
        e("v_mul_u32_u24 v18, 144, v14"); e("v_lshl_add_u32 v18, v15, 5, v18"); e("v_add_u32 v18, s20, v18")
        e("s_waitcnt lgkmcnt(0)"); e("s_barrier")
        e("ds_read_b128 v[48:51], v18"); e("ds_read_b128 v[52:55], v18 offset:16")
        e(f"ds_read_b128 v[56:59], v18 offset:{4*4608}"); e(f"ds_read_b128 v[60:63], v18 offset:{4*4608+16}")
        e("s_waitcnt lgkmcnt(0)")
        for q in range(4):
            e(f"v_pk_add_f32 v[{48+2*q}:{49+2*q}], v[{48+2*q}:{49+2*q}], v[{56+2*q}:{57+2*q}]")
        for q in range(4):
            e(f"v_lshlrev_b32 v{56+2*q}, 16, v{32+q}"); e(f"v_and_b32 v{57+2*q}, 0xffff0000, v{32+q}")
        for q in range(4):
            e(f"v_pk_fma_f32 v[{56+2*q}:{57+2*q}], v[{160+2*q}:{161+2*q}], v[{48+2*q}:{49+2*q}], v[{56+2*q}:{57+2*q}]")
        for q in range(4):
            e(f"v_cvt_pk_bf16_f32 v{32+q}, v{56+2*q}, v{57+2*q}")
        e(f"buffer_store_dwordx4 v[32:35], v16, {sr(srd_out,4)}, s32 offen {flags}")
        if stats:
            e("v_pk_add_f32 v[48:49], v[56:57], v[58:59]"); e("v_pk_add_f32 v[50:51], v[60:61], v[62:63]")
            e("v_pk_add_f32 v[48:49], v[48:49], v[50:51]"); e("v_add_f32 v48, v48, v49")
            for m in ("quad_perm:[1,0,3,2]", "quad_perm:[2,3,0,1]"):
                e(f"v_add_f32_dpp v48, v48, v48 {m} row_mask:0xf bank_mask:0xf")
            e(f"v_mul_f32 v48, {fl(1.0/32)}, v48")
            e("v_sub_f32 v50, 0, v48"); e("v_mov_b32 v51, v50")
            for q in range(4): e(f"v_pk_add_f32 v[{56+2*q}:{57+2*q}], v[{56+2*q}:{57+2*q}], v[50:51]")
            e("v_pk_mul_f32 v[52:53], v[56:57], v[56:57]")
            for q in range(1, 4): e(f"v_pk_fma_f32 v[52:53], v[{56+2*q}:{57+2*q}], v[{56+2*q}:{57+2*q}], v[52:53]")
            e("v_add_f32 v49, v52, v53")
            for m in ("quad_perm:[1,0,3,2]", "quad_perm:[2,3,0,1]"):
                e(f"v_add_f32_dpp v49, v49, v49 {m} row_mask:0xf bank_mask:0xf")
            self.srd(40, P_WS, WS_STX, 2048*128)
            e("v_add_u32 v18, s36, v14"); e("v_lshlrev_b32 v18, 7, v18")
            e("s_bfe_u32 s20, s3, 0x10001"); e("s_lshl_b32 s21, s5, 1"); e("s_add_u32 s20, s20, s21"); e("s_lshl_b32 s20, s20, 3")
            e("v_cmp_eq_u32 vcc, 0, v15"); e("s_and_saveexec_b64 s[44:45], vcc")
            e(f"buffer_store_dwordx2 v[48:49], v18, s[40:43], s20 offen {ST}")
            e("s_mov_b64 exec, s[44:45]")

    def p3(self):
        e = self.e
        self.srd(8, P_WS, WS_O, 2*MB); self.srd(12, P_WO, 0, 512*512*2)
        self.srd(16, P_X, 0, 2*MB); self.srd(24, P_WS, WS_X1, 2*MB); self.srd(28, P_WS, WS_MOD, 49152)
        self.proj_wvoff()
        self.proj_addr(False, 65536, 0)
        self.proj_epi_addr()
        def pre3():
            e("s_lshl_b32 s21, s3, 10")
            for m in range(8):
                e(f"s_lshl_b32 s20, s3, 13"); e(f"s_add_u32 s20, s20, {m*8*8*1024}")
                self.dma(3, 12, "s20", f"s_add_u32 m0, s21, {m*8192}")
            e("buffer_load_dwordx4 v[32:35], v16, s[16:19], s32 offen")
        def cO():
            e("s_lshr_b32 s46, s4, 2"); e("s_lshl_b32 s46, s46, 7"); e(f"s_add_u32 s46, s46, {F2}"); e("v_lshlrev_b32 v251, 2, v1")
        def cM(k):
            def f():
                e("s_and_b32 s46, s2, 7"); e("s_lshl_b32 s46, s46, 10"); e(f"s_add_u32 s46, s46, {F0 + 256*k}"); e("v_lshlrev_b32 v251, 2, v1")
            return f
        self.wait_flags([(cM(1), (1 << 64) - 1), (cM(2), (1 << 64) - 1), (cO, 0xffffffff)], pre=pre3)
        self.stamp(11)
        e(f"s_mul_i32 s6, s4, {2*32*1024}"); e("s_lshl_b32 s21, s3, 10"); e("s_add_u32 s6, s6, s21")
        for c in range(4):
            for tt in range(2):
                e(f"s_add_u32 s20, s6, {tt*32*1024 + c*8*1024}")
                self.dma(2, 8, "s20", f"s_add_u32 m0, s21, {65536 + c*16384 + tt*8192}")
            if c < 3: e("s_barrier")
        self.proj_gate_loads(2)
        ACC = 64
        for r in range(16): e(f"v_mov_b32 v{ACC+r}, 0")
        for c in range(4):
            e(f"s_waitcnt vmcnt({2*(3-c) + 8})"); e("s_barrier")
            if c == 0: self.stamp(35)
            self.proj_chunk(ACC, c*16384, 9, c*16384, False)
        self.stamp(36)
        self.proj_epilogue(ACC, 24, ST, True)
        self.stamp(37)
        self.phase_end()
        self.signal(lambda: (e("s_lshl_b32 s46, s4, 7"), e("s_lshl_b32 s47, s5, 2"), e("s_add_u32 s46, s46, s47"), e(f"s_add_u32 s46, s46, {F3}")))
        self.stamp(12)

    def p4(self):
        e = self.e
        RING = 65536; SL = 14336; D = 6; MODL = RING + D*SL
        PART = 155648
        Z1L = 135168
        self.srd(8, P_WS, WS_X1, 2*MB)
        self.srd(12, P_WS, WS_MOD, 49152)
        self.srd(16, P_WIN, 0, 512*1792*2)
        self.srd(28, P_WS, WS_Z2, 56*64*1024)
        self.srd(36, P_WS, WS_ST, 32*8*64*16)
        for m in range(2):
            d = 192 + m
            e(f"s_lshl_b32 s20, s3, 6"); e(f"s_add_u32 s20, s20, {512*m}")
            e(f"v_add_u32 v200, s20, v1")
            e(f"v_mul_u32_u24 v201, 2341, v200"); e(f"v_lshrrev_b32 v201, 16, v201")
            e(f"v_mul_u32_u24 v202, 28, v201"); e(f"v_sub_u32 v202, v200, v202")
            e(f"v_bfe_u32 v203, v201, 3, 1"); e(f"v_lshlrev_b32 v203, 1, v203"); e(f"v_xor_b32 v202, v202, v203")
            e(f"v_lshlrev_b32 v203, 4, v202")
            e(f"s_mul_i32 s20, s5, 224"); e(f"s_add_u32 s21, s20, 1792"); e(f"v_add_u32 v204, s21, v203")
            e(f"s_sub_u32 s21, s20, 224"); e(f"v_add_u32 v205, s21, v203")
            e(f"v_cmp_gt_u32 vcc, 14, v202"); e(f"v_cndmask_b32 v204, v205, v204, vcc")
            e(f"v_mul_u32_u24 v201, 3584, v201"); e(f"v_add_u32 v{d}, v201, v204")
        e("s_lshl_b32 s7, s3, 10"); e(f"s_add_u32 s7, s7, {RING}")
        e("s_cmp_ge_u32 s3, 6"); e("s_cselect_b64 vcc, -1, 0"); e("v_cndmask_b32 v194, v193, v192, vcc")
        e("s_cselect_b32 s35, 0, 8192"); e("s_add_u32 s35, s35, s7")
        def issue(stage, cnt):
            e(f"s_mov_b32 s23, {stage*32*3584}")
            for m in range(cnt):
                self.dma(192+m, 16, "s23", f"s_add_u32 m0, s7, {(stage % D)*SL + m*8192}")
        def pre4():
            self.mod_issue(12, 3)
            for st in range(D-1):
                e(f"s_mov_b32 s23, {st*32*3584}")
                self.dma(192, 16, "s23", f"s_add_u32 m0, s7, {st*SL}")
                self.dma(194, 16, "s23", f"s_add_u32 m0, s35, {st*SL}")
            e(f"s_waitcnt vmcnt({2*(D-1)})")
            self.mod_finish(MODL)
        e("v_lshrrev_b32 v3, 4, v1"); e("v_and_b32 v4, 15, v1"); e("v_lshrrev_b32 v5, 2, v4"); e("v_and_b32 v6, 3, v4")
        e("v_lshl_add_u32 v7, v3, 3, v5"); e("v_mul_u32_u24 v7, 448, v7"); e("v_lshl_add_u32 v7, v6, 3, v7"); e(f"v_add_u32 v7, {RING}, v7")
        e("v_and_b32 v8, 1, v3"); e("v_lshlrev_b32 v8, 5, v8")
        e("v_add_u32 v200, v7, v8"); e("v_sub_u32 v201, v7, v8")
        e(f"v_add_u32 v202, {4*SL}, v200"); e(f"v_add_u32 v203, {4*SL}, v201")
        e("s_and_b32 s21, s3, 1"); e("s_lshl_b32 s21, s21, 5"); e("v_add_u32 v9, s21, v4"); e("v_lshlrev_b32 v9, 10, v9")
        for m in range(4):
            e(f"v_add_u32 v10, {4*m}, v3"); e(f"v_xor_b32 v10, v10, v4"); e(f"v_lshl_add_u32 v{208+m}, v10, 4, v9")
        e(f"v_mov_b32 v5, {PART + 2048}"); e("v_mov_b32 v6, 0"); e("ds_write_b32 v5, v6")
        def cX():
            e("s_lshl_b32 s46, s4, 7"); e(f"s_add_u32 s46, s46, {F3}"); e("v_lshlrev_b32 v251, 2, v1")
        self.wait_flags([(cX, 0xff)], pre=lambda: (pre4(), e("s_waitcnt lgkmcnt(0)")))
        self.stamp(13)
        e("s_lshl_b32 s6, s4, 16")
        self.ln_loads(8, 6)
        self.srd(40, P_WS, WS_STX, 2048*128)
        e("s_lshl_b32 s20, s4, 6"); e("s_lshl_b32 s21, s3, 3"); e("s_add_u32 s20, s20, s21"); e("s_lshl_b32 s20, s20, 7")
        e("v_lshlrev_b32 v6, 7, v3"); e("v_lshl_add_u32 v6, v4, 3, v6")
        e("buffer_load_dwordx2 v[8:9], v6, s[40:43], s20 offen")
        e("buffer_load_dwordx2 v[10:11], v6, s[40:43], s20 offen offset:512")
        e("s_waitcnt vmcnt(0)")
        self.stamp(14)
        self.ln2_prepare()
        e("s_barrier")
        self.ln_finish(MODL)
        ACC = 212
        for r in range(32): e(f"v_mov_b32 v{ACC+r}, 0")
        e("s_waitcnt lgkmcnt(0)"); e("s_barrier")
        self.stamp(15)
        NK = 16
        c0 = -2.0*math.sqrt(2.0/math.pi)*LOG2E
        c1 = c0*0.044715
        variants = [self.lab("win_v") for _ in range(4)]
        join = self.lab("win_join")
        e("s_lshr_b32 s20, s3, 1")
        for cg in (1, 2, 3):
            e(f"s_cmp_eq_u32 s20, {cg}"); e(f"s_cbranch_scc1 {variants[cg]}")
        for cg in range(4):
            self.a.label(variants[cg])
            z2 = cg < 2
            nt = (4, 3, 3, 4)[cg]
            t0 = (0, 4, 4, 0)[cg]
            sg0 = (0 if z2 else 7) + t0
            cnt = 1 if cg == 3 else 2
            def reads(n):
                buf = n % 2; slot = n % D
                out = []
                for rt in range(2):
                    b = 32 + 32*buf + 4*rt
                    out.append(f"ds_read_b128 v[{b}:{b+3}], v{208 + (n & 3)} offset:{rt*16384 + (n >> 2)*256}")
                for c in range(nt):
                    sg = sg0 + c
                    b = 40 + 32*buf + 4*c
                    areg, off = (200 + (sg & 1), slot*SL) if slot < 4 else (202 + (sg & 1), (slot-4)*SL)
                    for t in range(2):
                        out.append(f"ds_read_b64_tr_b16 v[{b+2*t}:{b+2*t+1}], v{areg} offset:{off + 4*t*448 + sg*32}")
                return out
            for r in reads(0): e(r)
            for n in range(NK):
                if n + 1 < NK:
                    if n + 1 >= D - 1:
                        allowed = cnt * len([s for s in range(max(n+2, D-1), min(n+D-1, NK))])
                        e(f"s_waitcnt vmcnt({allowed})")
                    e("s_barrier")
                e("s_waitcnt lgkmcnt(0)")
                buf = n % 2
                ms = []
                for c in range(nt):
                    for rt in range(2):
                        acc = ACC + 4*(rt*4 + c)
                        x = 32 + 32*buf + 4*rt; w = 40 + 32*buf + 4*c
                        A, B = (x, w) if z2 else (w, x)
                        ms.append(f"v_mfma_f32_16x16x32_bf16 v[{acc}:{acc+3}], v[{A}:{A+3}], v[{B}:{B+3}], v[{acc}:{acc+3}]")
                rs = reads(n + 1) if n + 1 < NK else []
                ri = 0
                for i, m in enumerate(ms):
                    e(m)
                    for _ in range(2 if i < 3 else 1):
                        if ri < len(rs): e(rs[ri]); ri += 1
                while ri < len(rs): e(rs[ri]); ri += 1
                st = n + D - 1
                if st < NK: issue(st, cnt)
            self.stamp(31)
            if z2: e("s_setprio 2")
            e(f"s_mov_b32 s20, {fl(c1)}"); e(f"v_mov_b32 v20, {fl(c0)}")
            accs = [ACC + 4*(rt*4 + c) + r for c in range(nt) for rt in range(2) for r in range(4)]
            for i0 in range(0, len(accs), 4):
                grp = accs[i0:i0+4]
                for k, z in enumerate(grp): e(f"v_mul_f32 v{24+k}, v{z}, v{z}")
                for k, z in enumerate(grp): e(f"v_fma_f32 v{24+k}, v{24+k}, s20, v20")
                for k, z in enumerate(grp): e(f"v_mul_f32 v{24+k}, v{24+k}, v{z}")
                for k, z in enumerate(grp): e(f"v_exp_f32 v{24+k}, v{24+k}")
                for k, z in enumerate(grp): e(f"v_add_f32 v{24+k}, 1.0, v{24+k}")
                for k, z in enumerate(grp): e(f"v_rcp_f32 v{24+k}, v{24+k}")
                for k, z in enumerate(grp): e(f"v_mul_f32 v{z}, v{z}, v{24+k}")
            self.stamp(32)
            e("v_lshrrev_b32 v3, 4, v1"); e("v_and_b32 v4, 15, v1")
            if z2:
                regs = []
                for rt in range(2):
                    for r in range(4):
                        sreg = 64 + 2*(rt*4 + r)
                        a0 = ACC + 4*(rt*4) + r
                        e(f"v_mov_b32 v{sreg}, v{a0}"); e(f"v_mul_f32 v{sreg+1}, v{a0}, v{a0}")
                        for c in range(1, nt):
                            a = ACC + 4*(rt*4 + c) + r
                            e(f"v_add_f32 v{sreg}, v{sreg}, v{a}"); e(f"v_fmac_f32 v{sreg+1}, v{a}, v{a}")
                        regs += [sreg, sreg+1]
                self.dpp_reduce16(regs)
                e("s_and_b32 s20, s3, 1"); e("s_lshl_b32 s20, s20, 8")
                e(f"s_add_u32 s20, s20, {PART + cg*512}")
                e("v_lshlrev_b32 v5, 5, v3"); e("v_add_u32 v5, s20, v5")
                e("v_cmp_eq_u32 vcc, 0, v4"); e("s_and_saveexec_b64 s[40:41], vcc")
                for rt in range(2):
                    e(f"ds_write_b128 v5, v[{64+8*rt}:{67+8*rt}] offset:{rt*128}")
                    e(f"ds_write_b128 v5, v[{68+8*rt}:{71+8*rt}] offset:{rt*128+16}")
                e("s_waitcnt lgkmcnt(0)")
                e(f"v_mov_b32 v5, {PART + 2048}"); e("v_mov_b32 v6, 1")
                e("s_mov_b64 exec, 1")
                e("ds_add_u32 v5, v6")
                e("s_mov_b64 exec, -1")
                self.stamp(33)
                if cg == 0:
                    nx = self.lab("win_nx")
                    e("s_cmp_lg_u32 s3, 0"); e(f"s_cbranch_scc1 {nx}")
                    sp = self.lab("win_sp")
                    e("s_mov_b32 s47, 0")
                    self.a.label(sp)
                    e("ds_read_b32 v6, v5"); e("s_add_u32 s47, s47, 1"); e("s_waitcnt lgkmcnt(0)")
                    e("v_readfirstlane_b32 s20, v6")
                    spd = self.lab("win_spd")
                    e(f"s_cmp_gt_u32 s47, {SPIN_CAP}"); e(f"s_cbranch_scc1 {spd}")
                    e("s_cmp_lt_u32 s20, 4"); e(f"s_cbranch_scc1 {sp}")
                    self.a.label(spd)
                    e("v_lshlrev_b32 v5, 3, v1"); e(f"v_add_u32 v5, {PART}, v5")
                    e("ds_read_b64 v[64:65], v5"); e("ds_read_b64 v[66:67], v5 offset:512")
                    e("s_waitcnt lgkmcnt(0)")
                    e("v_add_f32 v64, v64, v66"); e("v_add_f32 v65, v65, v67")
                    e(f"v_mov_b32 v66, s{S_NONCE}"); e(f"v_mov_b32 v67, s{S_NONCE}")
                    e("v_lshlrev_b32 v6, 4, v1")
                    e("s_lshl_b32 s20, s4, 13"); e("s_lshl_b32 s21, s5, 10"); e("s_add_u32 s21, s21, s20")
                    e(f"buffer_store_dwordx4 v[64:67], v6, s[36:39], s21 offen {ST}")
                    e("s_mov_b32 s47, 0")
                    lp = self.lab("stp"); dn = self.lab("std")
                    self.a.label(lp)
                    for jj in range(8):
                        e(f"s_add_u32 s21, s20, {jj*1024}")
                        e(f"buffer_load_dwordx4 v[{72+4*jj}:{75+4*jj}], v6, s[36:39], s21 offen {ST}")
                    e("s_add_u32 s47, s47, 1"); e(f"s_cmp_gt_u32 s47, {SPIN_CAP}"); e(f"s_cbranch_scc1 {dn}")
                    e("s_waitcnt vmcnt(0)")
                    e("s_mov_b64 s[42:43], -1")
                    for jj in range(8):
                        e(f"v_cmp_eq_u32 vcc, s{S_NONCE}, v{74+4*jj}"); e("s_and_b64 s[42:43], s[42:43], vcc")
                        e(f"v_cmp_eq_u32 vcc, s{S_NONCE}, v{75+4*jj}"); e("s_and_b64 s[42:43], s[42:43], vcc")
                    e("s_cmp_eq_u64 s[42:43], -1")
                    if not Gen.NOHOP: e(f"s_cbranch_scc0 {lp}")
                    self.a.label(dn)
                    e("s_waitcnt vmcnt(0)")
                    for jj in range(1, 8):
                        e(f"v_add_f32 v72, v72, v{72+4*jj}"); e(f"v_add_f32 v73, v73, v{73+4*jj}")
                    e(f"v_mul_f32 v72, {fl(1.0/896)}, v72"); e(f"v_mul_f32 v73, {fl(1.0/896)}, v73")
                    e("v_fma_f32 v73, -v72, v72, v73"); e("v_max_f32 v73, 0, v73"); e(f"v_add_f32 v73, {fl(1e-5)}, v73")
                    e("v_rsq_f32 v75, v73"); e("v_mul_f32 v74, v72, v75"); e("v_sub_f32 v74, 0, v74")
                    e(f"ds_write_b64 v5, v[74:75] offset:1024")
                    self.a.label(nx)
                e("s_setprio 0")
            else:
                e("s_and_b32 s22, s3, 1"); e(f"s_mul_i32 s22, s22, {2*7*512}"); e(f"s_add_u32 s22, s22, {Z1L + t0*512}")
                e("v_lshlrev_b32 v7, 3, v1"); e("v_add_u32 v7, s22, v7")
                for c in range(nt):
                    for rt in range(2):
                        acc = ACC + 4*(rt*4 + c); pk = 32 + 2*(rt + 2*c)
                        e(f"v_cvt_pk_bf16_f32 v{pk}, v{acc}, v{acc+1}"); e(f"v_cvt_pk_bf16_f32 v{pk+1}, v{acc+2}, v{acc+3}")
                        e(f"ds_write_b64 v7, v[{pk}:{pk+1}] offset:{rt*7*512 + c*512}")
            e("s_waitcnt lgkmcnt(0)"); e("s_barrier")
            self.stamp(34)
            if z2:
                e("s_and_b32 s20, s3, 1"); e("s_lshl_b32 s20, s20, 8"); e(f"s_add_u32 s20, s20, {PART + 1024}")
                e("v_lshlrev_b32 v5, 5, v3"); e("v_add_u32 v5, s20, v5")
                for rt in range(2):
                    e(f"ds_read_b128 v[{64+8*rt}:{67+8*rt}], v5 offset:{rt*128}")
                    e(f"ds_read_b128 v[{68+8*rt}:{71+8*rt}], v5 offset:{rt*128+16}")
                e("v_lshrrev_b32 v5, 1, v3"); e("v_lshlrev_b32 v5, 8, v5"); e("v_lshl_add_u32 v5, v4, 4, v5")
                e("v_and_b32 v6, 1, v3"); e("v_lshl_add_u32 v5, v6, 3, v5")
                e("s_and_b32 s20, s3, 1"); e("s_lshl_b32 s21, s4, 1"); e("s_add_u32 s20, s20, s21"); e("s_lshl_b32 s20, s20, 10")
                e("s_mul_i32 s21, s5, 0x70000"); e("s_add_u32 s20, s20, s21")
                e("s_waitcnt lgkmcnt(0)")
                for c in range(nt):
                    e(f"s_add_u32 s21, s20, {(t0+c)*65536}")
                    for rt in range(2):
                        acc = ACC + 4*(rt*4 + c); pk = 32 + 2*(rt + 2*c)
                        for r in range(4):
                            e(f"v_fma_f32 v{acc+r}, v{acc+r}, v{64+8*rt+2*r+1}, v{64+8*rt+2*r}")
                        e(f"v_cvt_pk_bf16_f32 v{pk}, v{acc}, v{acc+1}"); e(f"v_cvt_pk_bf16_f32 v{pk+1}, v{acc+2}, v{acc+3}")
                        e(f"buffer_store_dwordx2 v[{pk}:{pk+1}], v5, s[28:31], s21 offen offset:{rt*512} {ST}")
            if cg < 3: e(f"s_branch {join}")
        self.a.label(join)
        self.phase_end()
        self.signal(lambda: (e("s_lshl_b32 s46, s5, 7"), e("s_lshl_b32 s47, s4, 2"), e("s_add_u32 s46, s46, s47"), e(f"s_add_u32 s46, s46, {F4}")))
        self.stamp(16)

    def p5(self):
        e = self.e
        end = self.lab("sp_end")
        Z1L = 135168
        self.srd(8, P_WSP, 0, 2048*2048*2)
        self.srd(12, P_WS, WS_Z2, 56*64*1024)
        self.srd(24, P_WS, WS_Y, 64*56*1024)
        self.srd(28, P_BSP, 0, 4096)
        SL = 22528; D = 6; NST = 32
        e(f"s_mov_b32 s44, {(-(D-1)*SL) & 0xffffffff}"); e(f"s_mov_b32 s45, {SL}")
        e("v_lshlrev_b32 v2, 4, v1"); e("v_lshrrev_b32 v3, 4, v1"); e("v_and_b32 v4, 15, v1")
        def cZ():
            e("s_lshl_b32 s46, s5, 7"); e(f"s_add_u32 s46, s46, {F4}"); e("v_lshlrev_b32 v251, 2, v1")
        lp = self.lab("sp_prod")
        e("s_cmp_ge_u32 s3, 4"); e(f"s_cbranch_scc1 {lp}")
        e("s_and_b32 s20, s3, 1"); e("s_lshl_b32 s21, s4, 2"); e("s_lshl_b32 s22, s20, 1"); e("s_add_u32 s21, s21, s22")
        e("v_lshlrev_b32 v5, 1, v4"); e("s_lshl_b32 s22, s21, 5")
        e("buffer_load_ushort v20, v5, s[28:31], s22 offen"); e("buffer_load_ushort v21, v5, s[28:31], s22 offen offset:32")
        e("s_bfe_u32 s23, s3, 0x10001"); e("s_lshl_b32 s23, s23, 2")
        e("v_lshrrev_b32 v7, 1, v3"); e("v_lshlrev_b32 v7, 9, v7"); e("v_lshl_add_u32 v7, v4, 4, v7")
        e("v_and_b32 v8, 1, v3"); e("v_lshl_add_u32 v7, v8, 3, v7")
        e("s_lshl_b32 s21, s4, 1"); e("s_add_u32 s21, s21, s20"); e("s_mul_i32 s21, s21, 56")
        e("s_mul_i32 s6, s5, 7"); e("s_add_u32 s21, s21, s6"); e("s_add_u32 s21, s21, s23"); e("s_lshl_b32 s35, s21, 10")
        e(f"s_mul_i32 s6, s20, {2*7*512}"); e("s_lshl_b32 s21, s23, 9"); e("s_add_u32 s6, s6, s21"); e(f"s_add_u32 s6, s6, {Z1L}")
        e("v_lshlrev_b32 v9, 3, v1"); e("v_add_u32 v9, s6, v9")
        e("s_and_b32 s20, s3, 1"); e("s_lshl_b32 s20, s20, 12"); e("v_lshlrev_b32 v5, 7, v4"); e("v_add_u32 v5, s20, v5")
        e("v_lshrrev_b32 v8, 1, v4")
        for ks in range(2):
            e(f"v_add_u32 v6, {4*ks}, v3"); e(f"v_xor_b32 v6, v6, v8"); e(f"v_lshl_add_u32 v{200+ks}, v6, 4, v5")
        e("s_bfe_u32 s20, s3, 0x10001"); e("s_lshl_b32 s20, s20, 13"); e("s_add_u32 s20, s20, 8192"); e("v_add_u32 v202, s20, v2")
        ACC = 128
        for r in range(32): e(f"v_mov_b32 v{ACC+r}, 0")
        e("s_barrier")
        if self.ZTOUCH:
            e("s_and_b32 s20, s4, 7"); e("s_mul_i32 s20, s20, 14"); e("v_add_u32 v196, s20, v1")
            e("v_lshrrev_b32 v197, 4, v196"); e("v_lshlrev_b32 v197, 16, v197")
            e("v_bfe_u32 v198, v196, 3, 1"); e("v_lshl_add_u32 v197, v198, 10, v197")
            e("v_and_b32 v198, 7, v196"); e("v_lshl_add_u32 v196, v198, 7, v197")
            e("s_mul_i32 s40, s5, 0x70000"); e("s_lshl_b32 s20, s3, 11"); e("s_add_u32 s40, s40, s20"); e(f"s_add_u32 s40, s40, {(D-1)*2048}")
            e("s_mov_b64 exec, 0x3fff")
            for i in range(7):
                e(f"s_add_u32 s20, s40, {i*4*2048}")
                e("buffer_load_dword v199, v196, s[12:15], s20 offen")
            e("s_mov_b64 exec, -1")
        l3 = self.lab("sp_3"); lepi = self.lab("sp_epi")
        e("s_barrier")
        self.stamp(18)
        e("s_bitcmp1_b32 s3, 1"); e(f"s_cbranch_scc1 {l3}")
        for jj in range(2):
            nf = 4 if jj == 0 else 3
            if jj == 1: self.a.label(l3)
            def reads(ks, buf, nxt):
                b = 32 + 24*buf; ab = 203 if nxt else 200
                for tt in range(2): yield f"ds_read_b128 v[{b+4*tt}:{b+4*tt+3}], v{ab+ks} offset:{tt*2048}"
                for f in range(nf): yield f"ds_read_b128 v[{b+8+4*f}:{b+8+4*f+3}], v{ab+2} offset:{f*2048 + ks*1024}"
            def mf(buf):
                b = 32 + 24*buf
                for f in range(nf):
                    for tt in range(2):
                        acc = ACC + 4*(tt*4 + f)
                        yield f"v_mfma_f32_16x16x32_bf16 v[{acc}:{acc+3}], v[{b+8+4*f}:{b+8+4*f+3}], v[{b+4*tt}:{b+4*tt+3}], v[{acc}:{acc+3}]"
            def interleave(ms, rs):
                ms = list(ms); rs = list(rs)
                for i, m in enumerate(ms):
                    e(m)
                    if i < len(rs): e(rs[i])
                for r in rs[len(ms):]: e(r)
            for r in reads(0, 0, False): e(r)
            e("s_mov_b32 s36, 0"); e(f"s_mov_b32 s37, {SL}"); e("s_mov_b32 s38, 1")
            loop = self.lab("sp_loop")
            self.a.label(loop)
            e("s_barrier")
            for k in range(3): e(f"v_add_u32 v{203+k}, s37, v{200+k}")
            e(f"s_waitcnt lgkmcnt(0)")
            interleave(mf(0), reads(1, 1, False))
            e(f"s_waitcnt lgkmcnt(0)")
            interleave(mf(1), reads(0, 0, True))
            for k in range(3): e(f"v_mov_b32 v{200+k}, v{203+k}")
            e("s_add_u32 s38, s38, 1"); e(f"s_cmp_eq_u32 s38, {D}")
            e(f"s_cselect_b32 s37, s44, s45"); e(f"s_cselect_b32 s38, 0, s38")
            e("s_add_u32 s36, s36, 1"); e(f"s_cmp_lt_u32 s36, {NST}"); e(f"s_cbranch_scc1 {loop}")
            if jj == 0: e(f"s_branch {lepi}")
        self.a.label(lepi)
        self.stamp(19)
        ZR = 176
        for tt in range(2):
            for f in range(4):
                b = ZR + 2*(tt*4 + f)
                e(f"ds_read_b64 v[{b}:{b+1}], v9 offset:{tt*7*512 + f*512}")
        e("s_waitcnt vmcnt(0) lgkmcnt(0)")
        e("v_lshlrev_b32 v20, 16, v20"); e("v_lshlrev_b32 v21, 16, v21")
        for f in range(4):
            if f == 3:
                e("s_bitcmp1_b32 s3, 1"); e(f"s_cbranch_scc1 {end}")
            for tt in range(2):
                acc = ACC + 4*(tt*4 + f); b = ZR + 2*(tt*4 + f)
                for q in range(2):
                    e(f"v_lshlrev_b32 v22, 16, v{b+q}"); e(f"v_and_b32 v23, 0xffff0000, v{b+q}")
                    e(f"v_add_f32 v24, v{acc+2*q}, v{20+tt}"); e(f"v_add_f32 v25, v{acc+2*q+1}, v{20+tt}")
                    e(f"v_mul_f32 v22, v22, v24"); e(f"v_mul_f32 v23, v23, v25")
                    e(f"v_cvt_pk_bf16_f32 v{b+q}, v22, v23")
                e(f"buffer_store_dwordx2 v[{b}:{b+1}], v7, s[24:27], s35 offen offset:{f*1024 + tt*256} {ST}")
        e(f"s_branch {end}")
        self.a.label(lp)
        e("s_and_b32 s7, s3, 3")
        e("v_lshrrev_b32 v5, 3, v1"); e("v_and_b32 v6, 7, v1")
        for m in range(2):
            e(f"s_lshl_b32 s20, s7, 3"); e(f"s_add_u32 s20, s20, {32*m}")
            e(f"v_add_u32 v8, s20, v5"); e(f"v_bfe_u32 v9, v8, 1, 3"); e(f"v_xor_b32 v9, v9, v6")
            e(f"v_lshlrev_b32 v8, 12, v8"); e(f"v_lshl_add_u32 v{192+m}, v9, 4, v8")
        e("s_lshl_b32 s6, s4, 18")
        e("s_mul_i32 s32, s5, 0x70000"); e("s_lshr_b32 s20, s7, 1"); e("s_lshl_b32 s20, s20, 16"); e("s_add_u32 s32, s32, s20")
        e("s_and_b32 s20, s7, 1"); e("s_lshl_b32 s20, s20, 10"); e("s_add_u32 s32, s32, s20")
        e("s_lshl_b32 s33, s7, 10")
        e("s_mov_b32 s34, s33")
        def pre5():
            for st in range(D-1):
                for m in range(2): self.dma(192+m, 8, "s6", f"s_add_u32 m0, s34, {st*SL + m*4096}")
                e("s_add_u32 s6, s6, 128")
        self.wait_flags([(cZ, 0xffffffff)], pre=pre5)
        self.stamp(17)
        l5 = self.lab("sp_p5")
        e("s_cmp_ge_u32 s7, 2"); e(f"s_cbranch_scc1 {l5}")
        for var in range(2):
            nz = 4 if var == 0 else 3
            cnt = 2 + nz
            if var == 1: self.a.label(l5)
            def issue_z():
                for m in range(nz):
                    e(f"s_add_u32 s23, s32, {2*m*65536}")
                    self.dma(2, 12, "s23", f"s_add_u32 m0, s34, {8192 + m*4096}")
                e("s_add_u32 s32, s32, 2048")
            def issue():
                for m in range(2): self.dma(192+m, 8, "s6", f"s_add_u32 m0, s34, {m*4096}")
                e("s_add_u32 s6, s6, 128")
                issue_z()
            for st in range(D-1):
                issue_z(); e(f"s_add_u32 s34, s34, {SL}")
            e(f"s_waitcnt vmcnt({nz*(D-2)})"); e("s_barrier")
            e("s_mov_b32 s36, 0"); e(f"s_mov_b32 s38, {D-1}")
            loop = self.lab("sp_ploop"); lni = self.lab("sp_ni"); lw = self.lab("sp_w"); le = self.lab("sp_e"); lb = self.lab("sp_b")
            self.a.label(loop)
            e(f"s_cmp_ge_u32 s36, {NST-D+2}"); e(f"s_cbranch_scc1 {lw}")
            e(f"s_cmp_lt_u32 s36, 3"); e(f"s_cbranch_scc1 {le}")
            e(f"s_waitcnt vmcnt({cnt*(D-3)})"); e(f"s_branch {lb}")
            self.a.label(le)
            e(f"s_waitcnt vmcnt({nz*(D-3)})")
            self.a.label(lb)
            e("s_barrier")
            e(f"s_cmp_ge_u32 s36, {NST-D+1}"); e(f"s_cbranch_scc1 {lni}")
            issue()
            e("s_add_u32 s38, s38, 1"); e(f"s_cmp_eq_u32 s38, {D}"); e(f"s_cselect_b32 s39, s44, s45"); e(f"s_cselect_b32 s38, 0, s38")
            e("s_add_u32 s34, s34, s39"); e(f"s_branch {lni}")
            self.a.label(lw)
            e("s_waitcnt vmcnt(0)"); e("s_barrier")
            self.a.label(lni)
            e("s_add_u32 s36, s36, 1"); e(f"s_cmp_lt_u32 s36, {NST}"); e(f"s_cbranch_scc1 {loop}")
            if var == 0: e(f"s_branch {end}")
        self.a.label(end)
        self.phase_end()
        self.signal(lambda: (e("s_lshl_b32 s46, s4, 7"), e("s_lshl_b32 s47, s5, 2"), e("s_add_u32 s46, s46, s47"), e(f"s_add_u32 s46, s46, {F5}")))
        self.stamp(20)

    def p6(self):
        e = self.e
        self.srd(8, P_WS, WS_Y, 64*56*1024); self.srd(12, P_WOUT, 0, 896*512*2)
        self.srd(16, P_WS, WS_X1, 2*MB); self.srd(24, P_OUT, 0, 2*MB); self.srd(28, P_WS, WS_MOD, 49152)
        XR = 114688; XS = 16384; NCH = 7; NSLOT = 3
        self.proj_wvoff()
        self.proj_addr(True, XR, 0)
        e("v_add_u32 v10, 0x10000, v9")
        self.proj_epi_addr()
        def pre6():
            e("s_lshl_b32 s21, s3, 10")
            for m in range(14):
                e(f"s_lshl_b32 s20, s3, 13"); e(f"s_add_u32 s20, s20, {m*65536}")
                self.dma(3, 12, "s20", f"s_add_u32 m0, s21, {m*8192}")
            e("buffer_load_dwordx4 v[32:35], v16, s[16:19], s32 offen")
            self.proj_gate_loads(5)
        def cY():
            e("s_lshl_b32 s46, s4, 7"); e(f"s_add_u32 s46, s46, {F5}"); e("v_lshlrev_b32 v251, 2, v1")
        self.wait_flags([(cY, 0xff)], pre=pre6)
        self.stamp(21)
        e(f"s_mul_i32 s6, s4, {2*56*1024}"); e("s_lshl_b32 s21, s3, 10"); e("s_add_u32 s6, s6, s21")
        def issue_x(ch):
            for tt in range(2):
                e(f"s_add_u32 s20, s6, {tt*56*1024 + ch*8*1024}")
                self.dma(2, 8, "s20", f"s_add_u32 m0, s21, {XR + (ch % NSLOT)*XS + tt*8192}")
        issue_x(0); e("s_barrier"); issue_x(1); e("s_barrier"); issue_x(2)
        ACC = 64
        for r in range(16): e(f"v_mov_b32 v{ACC+r}, 0")
        for ch in range(NCH):
            issued = min(NCH - 1, max(2, ch + 1))
            e(f"s_waitcnt vmcnt({2*(issued - ch)})")
            e("s_barrier")
            if ch == 0: self.stamp(38)
            if ch >= 1 and ch + 2 < NCH: issue_x(ch + 2)
            wreg, woff = (9, ch*16384) if ch < 3 else (10, ch*16384 - 65536) if ch >= 4 else (9, ch*16384)
            self.proj_chunk(ACC, (ch % NSLOT)*XS, wreg, woff, True)
        self.stamp(39)
        self.proj_epilogue(ACC, 24, "", False)
        self.stamp(22)


HEADER = open('cdna_kernels/' + NAME + '.s.ref').read().split('; Override launch geometry')[0]

def build(stamps=False, hstamp=-1):
    Gen.STAMPS = stamps
    g = Gen()
    endl = "L_exit"
    g.prologue(endl)
    g.p01(); g.p2(); g.p3(); g.p4(); g.p5(); g.p6()
    if stamps and Gen.GSTAMP:
        e = g.e
        sk = g.lab("stst")
        e(f"s_cmp_lg_u32 s3, {Gen.GSTAMP_W}"); e(f"s_cbranch_scc1 {sk}")
        e("s_waitcnt vmcnt(0)")
        g.stamp(23)
        g.srd(8, P_DBG, 0, 0x20000)
        e("s_lshl_b32 s20, s2, 8"); e("s_add_u32 s20, s20, 4096")
        e("v_lshlrev_b32 v4, 2, v1")
        e("buffer_store_dword v255, v4, s[8:11], s20 offen")
        g.a.label(sk)
    elif stamps:
        e = g.e
        sk = g.lab("stst")
        e(f"s_sub_u32 s46, s2, {Gen.STAMP_WG0}"); e("s_cmp_ge_u32 s46, 4"); e(f"s_cbranch_scc1 {sk}")
        e("s_and_b32 s46, s3, 3"); e(f"s_cmp_lg_u32 s46, {Gen.STAMP_W}"); e(f"s_cbranch_scc1 {sk}")
        e("s_waitcnt vmcnt(0)")
        g.stamp(23)
        if hstamp >= 0: e(f"s_branch {sk}")
        g.srd(8, P_DBG, 0, 4096)
        e(f"s_sub_u32 s20, s2, {Gen.STAMP_WG0}"); e("s_lshl_b32 s20, s20, 1"); e("s_lshr_b32 s21, s3, 2"); e("s_add_u32 s20, s20, s21"); e("s_lshl_b32 s20, s20, 8"); e("s_add_u32 s20, s20, 256")
        e("v_lshlrev_b32 v4, 2, v1")
        e("buffer_store_dword v255, v4, s[8:11], s20 offen")
        g.a.label(sk)
    if hstamp >= 0:
        e = g.e
        sk = g.lab("hst")
        e(f"s_cmp_lg_u32 s2, {hstamp}"); e(f"s_cbranch_scc1 {sk}")
        e("s_cmp_lg_u32 s3, 0"); e(f"s_cbranch_scc1 {sk}")
        e("v_lshrrev_b32 v4, 2, v255")
        e("v_lshlrev_b32 v5, 16, v4")
        e("v_mov_b32_dpp v6, v5 row_shl:1 row_mask:0xf bank_mask:0xf")
        e("v_or_b32 v4, v4, v6")
        g.srd(8, P_DBG, 0, 256)
        e("v_lshrrev_b32 v7, 1, v1"); e("v_lshlrev_b32 v7, 2, v7"); e("v_add_u32 v7, 4, v7")
        e("v_and_b32 v8, 1, v1"); e("v_cmp_eq_u32 vcc, 0, v8"); e("v_cmp_gt_u32 s[40:41], 24, v1"); e("s_and_b64 vcc, vcc, s[40:41]")
        e("s_and_saveexec_b64 s[40:41], vcc")
        e("buffer_store_dword v4, v7, s[8:11], 0 offen")
        g.a.label(sk)
    g.a.label(endl)
    g.e("s_endpgm")
    g.a.fix_hazards()
    out = [HEADER, "; @launch grid=(256,1,1) block=(512,1,1) lds=163840\n",
           '.amdgcn_target "amdgcn-amd-amdhsa--gfx950"\n.text\n',
           f".globl {KNAME}\n.p2align 8\n.type {KNAME},@function\n{KNAME}:\n", g.a.text(),
           '.section .rodata,"a"\n', f""".p2align 6
.amdhsa_kernel {KNAME}
  .amdhsa_next_free_vgpr 256
  .amdhsa_next_free_sgpr 102
  .amdhsa_accum_offset 256
  .amdhsa_group_segment_fixed_size 0
  .amdhsa_kernarg_size 104
  .amdhsa_user_sgpr_count 2
  .amdhsa_user_sgpr_kernarg_segment_ptr 1
  .amdhsa_system_sgpr_workgroup_id_x 1
.end_amdhsa_kernel
"""]
    return ''.join(out)

if __name__ == "__main__":
    for k in ("PREFETCH", "STAMP_WG0", "STAMP_W", "CODEPF", "NOHOP", "BALANCE", "ZTOUCH", "GSTAMP", "GSTAMP_W"):
        if k in os.environ: setattr(Gen, k, int(os.environ[k]))
    txt = build(stamps=(len(sys.argv) > 2), hstamp=int(os.environ.get("HSTAMP", "-1")))
    path = sys.argv[1] if len(sys.argv) > 1 else 'cdna_kernels/' + NAME + '.s'
    open(path, 'w').write(txt)
    print("wrote", path, len(txt), "bytes")
```

```python
import sys, math, os
from asmlib import Asm, vr, sr

NAME = "adaLN_cond__softmax_full_mha__mixer_gmlp__prompt"
KNAME = NAME + "_kernel"
MB = 1 << 20
WS_MOD = 0
WS_ST  = 0x10000
WS_FLAG = 0x60000
WS_STX = 0x70000
WS_MODG = 0xB0000
WS_QK  = 1 * MB
WS_V   = 5 * MB
WS_O   = 7 * MB
WS_X1  = 9 * MB
WS_Z2  = 19 * MB
WS_Y   = 23 * MB
F0, F1, F2, F3, F4, F5 = 0x0, 0x2000, 0x4000, 0x5000, 0x6000, 0x7000
P_X, P_WQKV, P_WO, P_BX, P_WIN, P_WSP, P_BSP, P_WOUT, P_C, P_WMOD, P_OUT, P_DBG, P_WS = [64 + 2*i for i in range(13)]
LOG2E = 1.4426950408889634
S_QB, S_HEAD, S_NONCE, SRD_F = 57, 58, 59, 60
ST = "sc0 sc1"
SPIN_CAP = 1 << 17

def f2u(x):
    import struct
    return struct.unpack('<I', struct.pack('<f', x))[0]
def fl(x): return f"0x{f2u(x):08x}"

class Gen:
    STAMPS = False
    PREFETCH = True
    STAMP_WG0 = 0
    STAMP_W = 0
    CODEPF = False
    NOHOP = False
    BALANCE = True
    ZTOUCH = False
    ZLOOK = 9
    RPG = 2
    X_NOMFMA = False
    X_NOREAD = False
    X_NODMA = False
    GSTAMP = False
    GSTAMP_W = 0
    def __init__(self):
        self.a = Asm()
        self.nstamp = 0
    def e(self, s): self.a.e(s)
    def lab(self, b): return self.a.newlabel(b)

    def stamp(self, i):
        if not Gen.STAMPS: return
        e = self.e
        sk = self.lab("stamp")
        if Gen.GSTAMP:
            e(f"s_cmp_lg_u32 s3, {Gen.GSTAMP_W}"); e(f"s_cbranch_scc1 {sk}")
            e("s_memtime s[46:47]" if Gen.GSTAMP == 2 else "s_memrealtime s[46:47]"); e("s_waitcnt lgkmcnt(0)")
            e(f"v_writelane_b32 v255, s46, {i}")
            self.a.label(sk)
            return
        e(f"s_sub_u32 s46, s2, {Gen.STAMP_WG0}"); e("s_cmp_ge_u32 s46, 4"); e(f"s_cbranch_scc1 {sk}")
        e("s_and_b32 s46, s3, 3"); e(f"s_cmp_lg_u32 s46, {Gen.STAMP_W}"); e(f"s_cbranch_scc1 {sk}")
        e("s_memtime s[46:47]"); e("s_waitcnt lgkmcnt(0)")
        e("s_sub_u32 s46, s46, s90")
        e(f"v_writelane_b32 v255, s46, {i}")
        self.a.label(sk)

    def srd(self, d, ptr, off, size):
        e = self.e
        if off:
            e(f"s_add_u32 s{d}, s{ptr}, 0x{off:x}"); e(f"s_addc_u32 s{d+1}, s{ptr+1}, 0")
        else:
            e(f"s_mov_b32 s{d}, s{ptr}"); e(f"s_mov_b32 s{d+1}, s{ptr+1}")
        e(f"s_mov_b32 s{d+2}, 0x{size:x}"); e(f"s_mov_b32 s{d+3}, 0x20000")

    def bf16_round(self, d, s):
        self.e(f"v_cvt_pk_bf16_f32 v{d}, v{s}, v{s}")
        self.e(f"v_lshlrev_b32 v{d}, 16, v{d}")

    def dpp_reduce16(self, regs):
        for m in ("quad_perm:[1,0,3,2]", "quad_perm:[2,3,0,1]", "row_half_mirror", "row_mirror"):
            for r in regs:
                self.e(f"v_add_f32_dpp v{r}, v{r}, v{r} {m} row_mask:0xf bank_mask:0xf")

    def dma(self, voff, srd, soff, m0expr, width="dwordx4"):
        self.e(m0expr)
        self.e("s_nop 0")
        self.e(f"buffer_load_{width} v{voff}, {sr(srd,4)}, {soff} offen lds")

    def phase_end(self):
        self.e("s_waitcnt lgkmcnt(0)" if Gen.NOHOP else "s_waitcnt vmcnt(0) lgkmcnt(0)")
        self.e("s_barrier")

    def signal(self, soff_code, nrep=1, rep_stride=0):
        e = self.e
        sk = self.lab("sig")
        e("s_cmp_lg_u32 s3, 7"); e(f"s_cbranch_scc1 {sk}")
        soff_code()
        e(f"v_mov_b32 v250, s{S_NONCE}")
        e(f"v_mul_u32_u24 v251, {max(rep_stride,1)}, v1")
        e(f"s_mov_b64 exec, {(1 << nrep) - 1}")
        e(f"buffer_store_dword v250, v251, s[{SRD_F}:{SRD_F+3}], s46 offen {ST}")
        e("s_mov_b64 exec, -1")
        self.a.label(sk)

    def wait_flags(self, polls, keep=False, pre=None, w7_after=True):
        e = self.e
        sk = self.lab("wf"); p7 = self.lab("wf7")
        e("s_cmp_eq_u32 s3, 7"); e(f"s_cbranch_scc1 {p7}")
        if pre: pre()
        e(f"s_branch {sk}")
        self.a.label(p7)
        for (code, mask) in ([] if (Gen.NOHOP and not keep) else polls):
            code()
            e(f"s_mov_b32 s42, 0x{mask & 0xffffffff:x}"); e(f"s_mov_b32 s43, 0x{mask >> 32:x}")
            e("s_mov_b32 s47, 0")
            lp = self.lab("poll"); dn = self.lab("polled")
            self.a.label(lp)
            e(f"buffer_load_dword v250, v251, s[{SRD_F}:{SRD_F+3}], s46 offen {ST}")
            e("s_add_u32 s47, s47, 1")
            e(f"s_cmp_gt_u32 s47, {SPIN_CAP}")
            e(f"s_cbranch_scc1 {dn}")
            e("s_waitcnt vmcnt(0)")
            e(f"v_cmp_eq_u32 vcc, s{S_NONCE}, v250")
            e("s_and_b64 vcc, vcc, s[42:43]")
            e("s_cmp_eq_u64 vcc, s[42:43]")
            e(f"s_cbranch_scc0 {lp}")
            self.a.label(dn)
        if pre and w7_after: pre()
        self.a.label(sk)
        e("s_barrier")

    def prologue(self, endlab):
        e = self.e
        e("s_cmp_ge_u32 s2, 256"); e(f"s_cbranch_scc1 {endlab}")
        e("s_load_dwordx16 s[64:79], s[0:1], 0")
        e("s_load_dwordx8 s[80:87], s[0:1], 64")
        e("s_load_dwordx2 s[88:89], s[0:1], 96")
        e("v_and_b32 v1, 63, v0")
        e("v_lshrrev_b32 v2, 6, v0")
        e("v_readfirstlane_b32 s3, v2")
        if Gen.STAMPS:
            e("s_memtime s[90:91]"); e("v_mov_b32 v255, 0")
        e("s_and_b32 s20, s2, 7"); e("s_lshr_b32 s21, s2, 3")
        e("s_and_b32 s4, s20, 3"); e("s_lshl_b32 s4, s4, 3"); e("s_and_b32 s22, s21, 7"); e("s_add_u32 s4, s4, s22")
        e("s_lshr_b32 s5, s20, 2"); e("s_lshl_b32 s5, s5, 2"); e("s_lshr_b32 s22, s21, 3"); e("s_add_u32 s5, s5, s22")
        e(f"s_lshl_b32 s{S_HEAD}, s20, 2"); e("s_and_b32 s22, s21, 3"); e(f"s_add_u32 s{S_HEAD}, s{S_HEAD}, s22")
        e(f"s_lshr_b32 s{S_QB}, s21, 2")
        e("s_waitcnt lgkmcnt(0)")
        self.stamp(24)
        self.srd(SRD_F, P_WS, WS_FLAG, 0x10000)
        sk = self.lab("nn")
        e("s_cmp_lg_u32 s3, 7"); e(f"s_cbranch_scc1 {sk}")
        self.srd(8, P_DBG, 0, 256)
        e("v_mov_b32 v251, 0")
        g = self.lab("ng")
        e("s_cmp_lg_u32 s2, 0"); e(f"s_cbranch_scc1 {g}")
        e("s_memrealtime s[46:47]"); e("s_waitcnt lgkmcnt(0)")
        e("s_or_b32 s46, s46, 1")
        e("v_mov_b32 v250, s46")
        e("s_mov_b64 exec, 1")
        e(f"buffer_store_dword v250, v251, s[8:11], 0 offen {ST}")
        e("s_mov_b64 exec, -1")
        self.a.label(g)
        self.a.label(sk)

    def get_nonce(self):
        e = self.e
        sk = self.lab("gn")
        e("s_cmp_lg_u32 s3, 7"); e(f"s_cbranch_scc1 {sk}")
        self.srd(48, P_DBG, 0, 256)
        e("v_mov_b32 v251, 0"); e("s_mov_b32 s47, 0")
        lp = self.lab("gnp"); dn = self.lab("gnd")
        self.a.label(lp)
        e(f"buffer_load_dword v250, v251, s[48:51], 0 offen {ST}")
        e("s_add_u32 s47, s47, 1"); e(f"s_cmp_gt_u32 s47, {SPIN_CAP}"); e(f"s_cbranch_scc1 {dn}")
        e("s_waitcnt vmcnt(0)")
        e(f"v_readfirstlane_b32 s{S_NONCE}, v250")
        e(f"s_cmp_eq_u32 s{S_NONCE}, 0"); e(f"s_cbranch_scc1 {lp}")
        self.a.label(dn)
        e("ds_write_b32 v251, v250")
        e("s_waitcnt lgkmcnt(0)")
        self.a.label(sk)

    def ln_loads(self, srd_x, s_rowoff):
        e = self.e
        e("v_lshrrev_b32 v3, 4, v1"); e("v_and_b32 v4, 15, v1")
        e("s_lshl_b32 s20, s3, 3")
        e("v_add_u32 v5, s20, v3"); e("v_lshlrev_b32 v5, 10, v5"); e("v_lshl_add_u32 v5, v4, 4, v5")
        e(f"s_add_u32 s21, s{s_rowoff}, 4096")
        for a in range(2):
            so = s_rowoff if a == 0 else 21
            for j in range(4):
                b = 32 + 16*a + 4*j
                e(f"buffer_load_dwordx4 v[{b}:{b+3}], v5, {sr(srd_x,4)}, s{so} offen offset:{256*j}")

    def mod_issue(self, srd_mod, first_chunk):
        e = self.e
        e("v_lshlrev_b32 v248, 3, v0")
        for kq in range(4):
            e(f"s_mov_b32 s22, {kq*12288 + first_chunk*2048}")
            e(f"buffer_load_dwordx2 v[{240+2*kq}:{241+2*kq}], v248, {sr(srd_mod,4)}, s22 offen")

    def mod_finish(self, lds_off):
        e = self.e
        e("v_pk_add_f32 v[240:241], v[240:241], v[242:243]"); e("v_pk_add_f32 v[244:245], v[244:245], v[246:247]")
        e("v_pk_add_f32 v[240:241], v[240:241], v[244:245]")
        e("v_cvt_pk_bf16_f32 v242, v240, v241")
        e("v_lshlrev_b32 v240, 16, v242"); e("v_and_b32 v241, 0xffff0000, v242")
        sk = self.lab("mf")
        e("s_cmp_lt_u32 s3, 4"); e(f"s_cbranch_scc1 {sk}")
        e("v_add_f32 v240, 1.0, v240"); e("v_add_f32 v241, 1.0, v241")
        e("v_cvt_pk_bf16_f32 v242, v240, v241")
        e("v_lshlrev_b32 v240, 16, v242"); e("v_and_b32 v241, 0xffff0000, v242")
        self.a.label(sk)
        e(f"v_add_u32 v248, {lds_off}, v248")
        e("ds_write_b64 v248, v[240:241]")

    def ln_stats(self, fillers):
        e = self.e
        X = 128
        it = iter(fillers)
        def fill():
            f = next(it, None)
            if f: f()
        for a in range(2):
            for q in range(16):
                s = 32 + 16*a + q
                e(f"v_lshlrev_b32 v{X+32*a+2*q}, 16, v{s}")
                e(f"v_and_b32 v{X+32*a+2*q+1}, 0xffff0000, v{s}")
            fill()
        A = lambda a, k: 8 + 8*a + 2*k
        for a in range(2):
            for k in range(4):
                e(f"v_pk_add_f32 v[{A(a,k)}:{A(a,k)+1}], v[{X+32*a+4*k}:{X+32*a+4*k+1}], v[{X+32*a+4*k+2}:{X+32*a+4*k+3}]")
        for q in range(8, 16):
            for a in range(2):
                k = q % 4
                e(f"v_pk_add_f32 v[{A(a,k)}:{A(a,k)+1}], v[{A(a,k)}:{A(a,k)+1}], v[{X+32*a+2*q}:{X+32*a+2*q+1}]")
        fill()
        for a in range(2):
            e(f"v_pk_add_f32 v[{A(a,0)}:{A(a,0)+1}], v[{A(a,0)}:{A(a,0)+1}], v[{A(a,1)}:{A(a,1)+1}]")
            e(f"v_pk_add_f32 v[{A(a,2)}:{A(a,2)+1}], v[{A(a,2)}:{A(a,2)+1}], v[{A(a,3)}:{A(a,3)+1}]")
        for a in range(2):
            e(f"v_pk_add_f32 v[{A(a,0)}:{A(a,0)+1}], v[{A(a,0)}:{A(a,0)+1}], v[{A(a,2)}:{A(a,2)+1}]")
        for a in range(2):
            e(f"v_add_f32 v{24+2*a}, v{A(a,0)}, v{A(a,0)+1}")
        self.dpp_reduce16([24, 26])
        for a in range(2):
            e(f"v_mul_f32 v{24+2*a}, {fl(-1.0/512)}, v{24+2*a}")
            e(f"v_mov_b32 v{25+2*a}, v{24+2*a}")
            for r in range(8): e(f"v_mov_b32 v{8+8*a+r}, 0")
        fill()
        for q in range(16):
            for a in range(2):
                r = X + 32*a + 2*q
                e(f"v_pk_add_f32 v[{r}:{r+1}], v[{r}:{r+1}], v[{24+2*a}:{25+2*a}]")
            if q > 0:
                for a in range(2):
                    r = X + 32*a + 2*(q-1); k = (q-1) % 4
                    e(f"v_pk_fma_f32 v[{A(a,k)}:{A(a,k)+1}], v[{r}:{r+1}], v[{r}:{r+1}], v[{A(a,k)}:{A(a,k)+1}]")
            if q % 4 == 3: fill()
        for a in range(2):
            r = X + 32*a + 30; k = 3
            e(f"v_pk_fma_f32 v[{A(a,k)}:{A(a,k)+1}], v[{r}:{r+1}], v[{r}:{r+1}], v[{A(a,k)}:{A(a,k)+1}]")
        for a in range(2):
            e(f"v_pk_add_f32 v[{A(a,0)}:{A(a,0)+1}], v[{A(a,0)}:{A(a,0)+1}], v[{A(a,1)}:{A(a,1)+1}]")
            e(f"v_pk_add_f32 v[{A(a,2)}:{A(a,2)+1}], v[{A(a,2)}:{A(a,2)+1}], v[{A(a,3)}:{A(a,3)+1}]")
        for a in range(2):
            e(f"v_pk_add_f32 v[{A(a,0)}:{A(a,0)+1}], v[{A(a,0)}:{A(a,0)+1}], v[{A(a,2)}:{A(a,2)+1}]")
        for a in range(2):
            e(f"v_add_f32 v{24+a}, v{A(a,0)}, v{A(a,0)+1}")
        self.dpp_reduce16([24, 25])
        for a in range(2):
            e(f"v_mov_b32 v14, {fl(1e-5)}")
            e(f"v_fmac_f32 v14, {fl(1.0/512)}, v{24+a}")
            e(f"v_rsq_f32 v{20+2*a}, v14")
        for a in range(2):
            e(f"v_mov_b32 v{21+2*a}, v{20+2*a}")
        for f in it: f()
        for a in range(2):
            for q in range(16):
                r = X + 32*a + 2*q
                e(f"v_pk_mul_f32 v[{r}:{r+1}], v[{r}:{r+1}], v[{20+2*a}:{21+2*a}]")

    def ln2_prepare(self):
        e = self.e
        X = 128
        for a in range(2):
            e(f"v_mov_b32 v{12+a}, v{8+2*a}")
        self.dpp_reduce16([12, 13])
        for a in range(2):
            e(f"v_mul_f32 v{12+a}, {fl(1.0/16)}, v{12+a}")
            e(f"v_sub_f32 v{14+a}, v{8+2*a}, v{12+a}")
            e(f"v_mul_f32 v{14+a}, v{14+a}, v{14+a}")
            e(f"v_fmac_f32 v{9+2*a}, {fl(32.0)}, v{14+a}")
        self.dpp_reduce16([9, 11])
        for a in range(2):
            e(f"v_mov_b32 v14, {fl(1e-5)}")
            e(f"v_fmac_f32 v14, {fl(1.0/512)}, v{9+2*a}")
            e(f"v_rsq_f32 v{20+4*a}, v14")
        for a in range(2):
            e(f"v_mov_b32 v{21+4*a}, v{20+4*a}")
            e(f"v_mul_f32 v{22+4*a}, v{12+a}, v{20+4*a}"); e(f"v_sub_f32 v{22+4*a}, 0, v{22+4*a}"); e(f"v_mov_b32 v{23+4*a}, v{22+4*a}")
        for a in range(2):
            for q in range(16):
                s_ = 32 + 16*a + q; r = X + 32*a + 2*q
                e(f"v_lshlrev_b32 v{r}, 16, v{s_}"); e(f"v_and_b32 v{r+1}, 0xffff0000, v{s_}")
        for a in range(2):
            for q in range(16):
                r = X + 32*a + 2*q
                e(f"v_pk_fma_f32 v[{r}:{r+1}], v[{r}:{r+1}], v[{20+4*a}:{21+4*a}], v[{22+4*a}:{23+4*a}]")

    def ln_finish(self, lds_mod):
        e = self.e
        X = 128
        e("v_lshrrev_b32 v3, 4, v1"); e("v_and_b32 v4, 15, v1")
        e("v_lshlrev_b32 v6, 5, v4")
        e(f"v_add_u32 v6, {lds_mod}, v6")
        for j in range(4):
            for hh in range(2):
                e(f"ds_read_b128 v[{64+8*j+4*hh}:{67+8*j+4*hh}], v6 offset:{2048 + 512*j + 16*hh}")
                e(f"ds_read_b128 v[{96+8*j+4*hh}:{99+8*j+4*hh}], v6 offset:{512*j + 16*hh}")
        for a in range(2):
            e(f"s_lshl_b32 s20, s3, 3"); e(f"s_add_u32 s20, s20, {4*a}")
            e(f"v_add_u32 v15, s20, v3"); e(f"v_and_b32 v16, 15, v15"); e(f"v_xor_b32 v16, v16, v4")
            e(f"v_lshlrev_b32 v15, 10, v15"); e(f"v_lshl_add_u32 v{18+a}, v16, 4, v15")
        for j in range(4):
            e(f"s_waitcnt lgkmcnt({4*(3-j) + 2*j if False else min(15, 4*(3-j) + 2*j)})" if False else f"s_waitcnt lgkmcnt({4*(3-j)})" if j == 0 else "s_waitcnt lgkmcnt(0)" if j == 1 else "s_nop 0")
            for a in range(2):
                for q in range(4):
                    r = X + 32*a + 8*j + 2*q
                    e(f"v_pk_fma_f32 v[{r}:{r+1}], v[{r}:{r+1}], v[{64+8*j+2*q}:{65+8*j+2*q}], v[{96+8*j+2*q}:{97+8*j+2*q}]")
                pk = 24 + 4*a
                for q in range(4):
                    r = X + 32*a + 8*j + 2*q
                    e(f"v_cvt_pk_bf16_f32 v{pk+q}, v{r}, v{r+1}")
                e(f"ds_write_b128 v{18+a}, v[{pk}:{pk+3}] offset:{256*j}")

    def p01(self):
        e = self.e
        RING = 65536; SL = 12288; D = 7; MODL = RING + D*SL
        MSCR = 155648
        self.srd(8, P_X, 0, 2048*512*2)
        self.srd(12, P_WS, WS_MOD, 49152)
        self.srd(16, P_WQKV, 0, 512*1536*2)
        self.srd(24, P_WS, WS_QK, 4*MB)
        self.srd(28, P_WS, WS_V, 2*MB)
        self.srd(32, P_WMOD, 0, 512*3072*2)
        self.srd(36, P_C, 0, 1024)
        nomod1 = self.lab("nomod")
        e("s_cmp_ge_u32 s2, 192"); e(f"s_cbranch_scc1 {nomod1}")
        e("v_and_b32 v72, 7, v0"); e("v_lshrrev_b32 v73, 3, v0")
        e("v_mul_u32_u24 v74, 6144, v73"); e("v_lshl_add_u32 v74, v72, 4, v74")
        e("v_lshlrev_b32 v75, 1, v73")
        e("s_and_b32 s20, s2, 3"); e("s_lshr_b32 s21, s2, 2")
        e(f"s_mul_i32 s40, s20, {128*6144}"); e("s_lshl_b32 s21, s21, 7"); e("s_add_u32 s40, s40, s21"); e(f"s_add_u32 s41, s40, {64*6144}")
        e("s_lshl_b32 s42, s20, 8")
        e("buffer_load_dwordx4 v[80:83], v74, s[32:35], s40 offen")
        e("buffer_load_dwordx4 v[84:87], v74, s[32:35], s41 offen")
        e("buffer_load_ushort v76, v75, s[36:39], s42 offen")
        e("buffer_load_ushort v77, v75, s[36:39], s42 offen offset:128")
        e("s_barrier")
        self.a.label(nomod1)
        self.get_nonce()
        self.stamp(25)
        e("s_lshl_b32 s6, s4, 16")
        self.ln_loads(8, 6)
        self.stamp(26)
        tk = self.lab("touch")
        e("s_cmp_ge_u32 s3, 3"); e(f"s_cbranch_scc1 {tk}")
        e("s_and_b32 s20, s4, 7"); e("s_lshl_b32 s20, s20, 6")
        e("v_add_u32 v7, s20, v1"); e("v_mul_u32_u24 v7, 3072, v7")
        e("s_lshl_b32 s20, s5, 8"); e("s_lshl_b32 s21, s3, 7"); e("s_add_u32 s20, s20, s21")
        e("s_lshl_b32 s21, s5, 7"); e("s_add_u32 s21, s21, 2048")
        e("s_cmp_eq_u32 s3, 2"); e("s_cselect_b32 s20, s21, s20")
        e("buffer_load_dword v9, v7, s[16:19], s20 offen")
        self.a.label(tk)
        self.stamp(27)
        e("s_and_b32 s7, s3, 3")
        for m in range(3):
            d = 192 + m
            e(f"s_lshl_b32 s20, s7, 6"); e(f"s_add_u32 s20, s20, {256*m}")
            e(f"v_add_u32 v200, s20, v1")
            e(f"v_mul_u32_u24 v201, 2731, v200"); e(f"v_lshrrev_b32 v201, 16, v201")
            e(f"v_mul_u32_u24 v202, 24, v201"); e(f"v_sub_u32 v202, v200, v202")
            e(f"v_bfe_u32 v203, v201, 1, 1"); e(f"v_bfe_u32 v204, v201, 3, 1")
            e(f"v_lshl_or_b32 v203, v204, 1, v203"); e(f"v_lshlrev_b32 v203, 1, v203")
            e(f"v_xor_b32 v202, v202, v203"); e(f"v_lshlrev_b32 v203, 4, v202")
            e(f"s_lshl_b32 s20, s5, 8"); e(f"v_add_u32 v204, s20, v203")
            e(f"s_lshl_b32 s20, s5, 7"); e(f"s_add_u32 s20, s20, {2048-256}"); e(f"v_add_u32 v205, s20, v203")
            e(f"v_cmp_gt_u32 vcc, 16, v202"); e(f"v_cndmask_b32 v204, v205, v204, vcc")
            e(f"v_mul_u32_u24 v201, 3072, v201"); e(f"v_add_u32 v{d}, v201, v204")
        e("s_lshl_b32 s7, s7, 10"); e(f"s_add_u32 s7, s7, {RING}")
        e("s_lshr_b32 s32, s3, 2")
        self.stamp(28)
        nomod2 = self.lab("nomod")
        e("s_cmp_ge_u32 s2, 192"); e(f"s_cbranch_scc1 {nomod2}")
        for j in range(8): e(f"v_mov_b32 v{64+j}, 0")
        e("s_waitcnt vmcnt(8)")
        self.stamp(29)
        for i in range(2):
            c = 76 + i
            e(f"v_lshlrev_b32 v{c}, 16, v{c}")
            e(f"v_mul_f32 v12, {fl(-LOG2E)}, v{c}"); e("v_exp_f32 v12, v12"); e("v_add_f32 v12, 1.0, v12"); e("v_rcp_f32 v12, v12")
            e(f"v_mul_f32 v{c}, v{c}, v12")
            self.bf16_round(c, c)
        for i in range(2):
            for q in range(4):
                w = 80 + 4*i + q
                e(f"v_lshlrev_b32 v12, 16, v{w}"); e(f"v_and_b32 v13, 0xffff0000, v{w}")
                e(f"v_fmac_f32 v{64+2*q}, v{76+i}, v12"); e(f"v_fmac_f32 v{65+2*q}, v{76+i}, v13")
        for j in range(8): e(f"v_add_f32_dpp v{64+j}, v{64+j}, v{64+j} row_ror:8 row_mask:0xf bank_mask:0xf")
        e("v_lshrrev_b32 v12, 4, v0"); e("v_lshlrev_b32 v12, 8, v12"); e("v_lshl_add_u32 v12, v72, 5, v12")
        e(f"v_add_u32 v12, {MSCR}, v12")
        e("v_and_b32 v13, 8, v1"); e("v_cmp_eq_u32 vcc, 0, v13")
        e("s_and_saveexec_b64 s[44:45], vcc")
        e("ds_write_b128 v12, v[64:67]"); e("ds_write_b128 v12, v[68:71] offset:16")
        e("s_mov_b64 exec, s[44:45]")
        e("s_waitcnt lgkmcnt(0)")
        self.stamp(30)
        e("s_barrier")
        mdone = self.lab("mdone")
        e("s_cmp_lg_u32 s3, 7"); e(f"s_cbranch_scc1 {mdone}")
        e("v_lshlrev_b32 v72, 2, v1"); e(f"v_add_u32 v12, {MSCR}, v72")
        for i in range(32): e(f"ds_read_b32 v{80+i}, v12 offset:{256*i}")
        for lo in (0, 16):
            e(f"s_waitcnt lgkmcnt({15 if lo == 0 else 0})")
            if lo == 0: e("s_waitcnt lgkmcnt(15)")
        e("s_waitcnt lgkmcnt(0)")
        for st in (16, 8, 4, 2, 1):
            for i in range(st): e(f"v_add_f32 v{80+i}, v{80+i}, v{80+i+st}")
        e("s_and_b32 s20, s2, 3"); e("s_mul_i32 s20, s20, 12288"); e("s_lshr_b32 s21, s2, 2"); e("s_lshl_b32 s21, s21, 8"); e("s_add_u32 s20, s20, s21")
        ng = self.lab("nogran")
        e("s_cmp_ge_u32 s2, 64"); e(f"s_cbranch_scc1 {ng}")
        self.srd(48, P_WS, WS_MODG, 32768)
        e(f"v_mov_b32 v81, s{S_NONCE}"); e("v_lshlrev_b32 v82, 3, v1")
        e("s_and_b32 s21, s2, 3"); e("s_lshl_b32 s21, s21, 13"); e("s_lshr_b32 s22, s2, 2"); e("s_lshl_b32 s22, s22, 9"); e("s_add_u32 s21, s21, s22")
        e(f"buffer_store_dwordx2 v[80:81], v82, s[48:51], s21 offen {ST}")
        self.a.label(ng)
        e(f"buffer_store_dword v80, v72, s[12:15], s20 offen {ST}")
        e("s_waitcnt vmcnt(0)")
        self.signal(lambda: (e("s_lshl_b32 s46, s2, 2"), e(f"s_add_u32 s46, s46, {F0}")), nrep=8, rep_stride=1024)
        self.a.label(mdone)
        self.a.label(nomod2)
        self.stamp(0)
        e(f"s_mul_i32 s33, s32, {32*3072}")
        e(f"s_mul_i32 s34, s32, {SL}"); e("s_add_u32 s34, s34, s7")
        def issue_pair(pairidx):
            def f():
                e(f"s_add_u32 s23, s33, {2*pairidx*32*3072}")
                for m in range(3):
                    self.dma(192+m, 16, "s23", f"s_add_u32 m0, s34, {2*pairidx*SL + m*4096}")
            return f
        issue_pair(0)()
        e("s_waitcnt vmcnt(3)")
        self.stamp(1)
        nop = lambda: None
        self.ln_stats([nop, nop, issue_pair(1), nop, nop, issue_pair(2)])
        self.stamp(2)
        e("s_barrier")
        e("v_mov_b32 v249, 0"); e("ds_read_b32 v249, v249"); e("s_waitcnt lgkmcnt(0)"); e(f"v_readfirstlane_b32 s{S_NONCE}, v249")
        self.srd(48, P_WS, WS_MODG, 32768)
        e("v_lshlrev_b32 v248, 4, v0")
        e("s_mov_b32 s47, 0")
        mp = self.lab("modp"); md = self.lab("modd")
        self.a.label(mp)
        for kq in range(4):
            e(f"s_mov_b32 s22, {kq*8192}")
            e(f"buffer_load_dwordx4 v[{232+4*kq}:{235+4*kq}], v248, s[48:51], s22 offen sc1")
        e("s_add_u32 s47, s47, 1"); e(f"s_cmp_gt_u32 s47, {SPIN_CAP}"); e(f"s_cbranch_scc1 {md}")
        e("s_waitcnt vmcnt(0)")
        e("s_mov_b64 s[42:43], -1")
        for kq in range(4):
            for k in (1, 3):
                e(f"v_cmp_eq_u32 vcc, s{S_NONCE}, v{232+4*kq+k}"); e("s_and_b64 s[42:43], s[42:43], vcc")
        e("s_cmp_eq_u64 s[42:43], -1"); e(f"s_cbranch_scc0 {mp}")
        self.a.label(md)
        e("s_waitcnt vmcnt(0)")
        self.stamp(3)
        for kq in range(4):
            e(f"v_mov_b32 v{224+2*kq}, v{232+4*kq}"); e(f"v_mov_b32 v{225+2*kq}, v{234+4*kq}")
        for r in range(8): e(f"v_mov_b32 v{240+r}, v{224+r}")
        e("v_lshlrev_b32 v248, 3, v0")
        e("v_lshrrev_b32 v3, 4, v1"); e("v_and_b32 v4, 15, v1")
        e("v_lshrrev_b32 v5, 2, v4"); e("v_and_b32 v6, 3, v4")
        e("v_lshl_add_u32 v7, v3, 3, v5"); e("v_mul_u32_u24 v7, 384, v7"); e("v_lshl_add_u32 v7, v6, 3, v7")
        e(f"v_add_u32 v7, {RING}, v7")
        e("v_bfe_u32 v8, v5, 1, 1"); e("v_and_b32 v9, 1, v3"); e("v_lshl_or_b32 v8, v9, 1, v8")
        e("s_lshr_b32 s20, s3, 1")
        for c in range(3):
            if c < 2: e(f"s_lshl_b32 s21, s20, 1"); e(f"s_add_u32 s21, s21, {c}")
            else: e(f"s_add_u32 s21, s20, 8")
            e("s_lshr_b32 s22, s21, 2"); e("s_lshl_b32 s22, s22, 7"); e("s_and_b32 s21, s21, 3")
            e(f"v_xor_b32 v9, s21, v8"); e(f"v_lshl_add_u32 v{200+c}, v9, 5, v7"); e(f"v_add_u32 v{200+c}, s22, v{200+c}")
            e(f"v_add_u32 v{204+c}, {5*SL}, v{200+c}")
        e("s_and_b32 s21, s3, 1"); e("s_lshl_b32 s21, s21, 5")
        e("v_add_u32 v9, s21, v4"); e("v_lshlrev_b32 v9, 10, v9")
        for m in range(4):
            e(f"v_add_u32 v10, {4*m}, v3"); e(f"v_xor_b32 v10, v10, v4"); e(f"v_lshl_add_u32 v{208+m}, v10, 4, v9")
        self.mod_finish(MODL)
        e("s_waitcnt lgkmcnt(0)")
        e("s_barrier")
        self.ln_finish(MODL)
        ACC = 128
        e("s_waitcnt lgkmcnt(0)")
        e("s_barrier")
        for r in range(24): e(f"v_mov_b32 v{192+8+r}, 0") if False else None
        ACC = 212
        for r in range(24): e(f"v_mov_b32 v{ACC+r}, 0")
        self.stamp(4)
        def reads_list(n):
            buf = n % 2; slot = n % D
            out = []
            for rt in range(2):
                b = 32 + 32*buf + 4*rt
                out.append(f"ds_read_b128 v[{b}:{b+3}], v{208 + (n & 3)} offset:{rt*16384 + (n >> 2)*256}")
            for c in range(3):
                b = 40 + 32*buf + 4*c
                areg, off = (200 + c, slot*SL) if slot < 5 else (204 + c, (slot-5)*SL)
                for t in range(2):
                    out.append(f"ds_read_b64_tr_b16 v[{b+2*t}:{b+2*t+1}], v{areg} offset:{off + 4*t*384}")
            return out
        def mfmas(n):
            buf = n % 2
            for c in range(3):
                for rt in range(2):
                    acc = ACC + 4*(rt*3 + c)
                    x = 32 + 32*buf + 4*rt; w = 40 + 32*buf + 4*c
                    A, B = (w, x) if c < 2 else (x, w)
                    yield f"v_mfma_f32_16x16x32_bf16 v[{acc}:{acc+3}], v[{A}:{A+3}], v[{B}:{B+3}], v[{acc}:{acc+3}]"
        NK = 16
        for r in reads_list(0): e(r)
        for n in range(NK):
            if n + 1 < NK:
                if n + 1 >= 6:
                    hi = min(n + 5, NK - 1)
                    cA = sum(1 for s in range(max(n+2, 6), hi+1) if s % 2 == 0); cB = sum(1 for s in range(max(n+2, 6), hi+1) if s % 2 == 1)
                    e(f"s_waitcnt vmcnt({3*min(cA, cB)})")
                e("s_barrier")
            e("s_waitcnt lgkmcnt(0)")
            ms = list(mfmas(n)); rs = reads_list(n + 1) if n + 1 < NK else []
            ri = 0
            for i, m in enumerate(ms):
                e(m)
                for _ in range(2 if i < 2 else 1):
                    if ri < len(rs): e(rs[ri]); ri += 1
            st = n + D - 1
            if st < NK:
                lsk = self.lab("qkv_sk")
                e(f"s_cmp_lg_u32 s32, {st & 1}"); e(f"s_cbranch_scc1 {lsk}")
                e(f"s_mov_b32 s23, {st*32*3072}")
                for m in range(3): self.dma(192+m, 16, "s23", f"s_add_u32 m0, s7, {(st % D)*SL + m*4096}")
                self.a.label(lsk)
        self.stamp(5)
        e("v_lshlrev_b32 v8, 4, v1")
        e("s_and_b32 s20, s3, 1"); e("s_lshl_b32 s21, s4, 1"); e("s_add_u32 s21, s21, s20"); e("s_lshl_b32 s21, s21, 10")
        e("s_lshr_b32 s20, s3, 1")
        e(f"s_mov_b32 s22, {fl(0.25*LOG2E)}"); e("s_cmp_lt_u32 s5, 4"); e("s_cselect_b32 s22, s22, 1.0")
        for c in range(3):
            if c < 2:
                e("s_lshl_b32 s23, s5, 3"); e("s_lshl_b32 s6, s20, 1"); e("s_add_u32 s23, s23, s6"); e(f"s_add_u32 s23, s23, {c}")
            else:
                e("s_lshl_b32 s23, s5, 2"); e("s_add_u32 s23, s23, s20")
            e("s_lshl_b32 s23, s23, 16"); e("s_add_u32 s23, s23, s21")
            pk = 32 + 4*c
            for rt in range(2):
                acc = ACC + 4*(rt*3 + c)
                if c < 2:
                    for q in range(4): e(f"v_mul_f32 v{acc+q}, s22, v{acc+q}")
                e(f"v_cvt_pk_bf16_f32 v{pk+2*rt}, v{acc}, v{acc+1}"); e(f"v_cvt_pk_bf16_f32 v{pk+2*rt+1}, v{acc+2}, v{acc+3}")
            sw = "v_permlane16_swap_b32" if c < 2 else "v_permlane32_swap_b32"
            e(f"{sw} v{pk}, v{pk+2}"); e(f"{sw} v{pk+1}, v{pk+3}")
            e(f"buffer_store_dwordx4 v[{pk}:{pk+3}], v8, {'s[24:27]' if c < 2 else 's[28:31]'}, s23 offen {ST}")
        self.phase_end()
        self.signal(lambda: (e("s_lshl_b32 s46, s5, 7"), e("s_lshl_b32 s47, s4, 2"), e("s_add_u32 s46, s46, s47"), e(f"s_add_u32 s46, s46, {F1}")),
                    nrep=8, rep_stride=1024)
        self.stamp(6)

    def l2_prefetch(self, vtmp, vdst):
        e = self.e
        e("s_and_b32 s20, s2, 7"); e("s_lshr_b32 s21, s2, 3")
        e(f"v_lshlrev_b32 v{vtmp}, 7, v1")
        self.srd(48, P_WSP, 0, 2048*2048*2)
        e("s_and_b32 s22, s20, 3"); e("s_lshl_b32 s22, s22, 21"); e("s_lshl_b32 s23, s21, 16"); e("s_add_u32 s22, s22, s23")
        e("s_lshl_b32 s23, s3, 13"); e("s_add_u32 s22, s22, s23")
        e(f"buffer_load_dword v{vdst}, v{vtmp}, s[48:51], s22 offen")
        self.srd(48, P_WIN, 0, 512*1792*2)
        e(f"v_lshrrev_b32 v{vdst+1}, 5, v1"); e(f"v_bfe_u32 v{vdst+2}, v1, 4, 1")
        e(f"v_and_b32 v{vdst+3}, 15, v1"); e(f"v_min_u32 v{vdst+3}, 7, v{vdst+3}")
        e(f"v_mul_u32_u24 v{vdst+1}, 3584, v{vdst+1}"); e(f"v_mul_u32_u24 v{vdst+2}, 1792, v{vdst+2}")
        e(f"v_add_u32 v{vdst+1}, v{vdst+1}, v{vdst+2}"); e(f"v_lshl_add_u32 v{vdst+1}, v{vdst+3}, 7, v{vdst+1}")
        e("s_lshr_b32 s22, s20, 2"); e("s_mul_i32 s22, s22, 896")
        e("s_lshl_b32 s23, s21, 4"); e("s_lshl_b32 s46, s3, 1"); e("s_add_u32 s23, s23, s46"); e("s_mul_i32 s23, s23, 3584")
        e("s_add_u32 s22, s22, s23")
        e(f"buffer_load_dword v{vdst+2}, v{vdst+1}, s[48:51], s22 offen")
        e(f"v_lshrrev_b32 v{vdst+1}, 2, v1"); e(f"v_and_b32 v{vdst+3}, 3, v1")
        e(f"v_lshlrev_b32 v{vdst+1}, 10, v{vdst+1}"); e(f"v_lshl_add_u32 v{vdst+1}, v{vdst+3}, 7, v{vdst+1}")
        e("s_lshr_b32 s22, s20, 2"); e("s_lshl_b32 s22, s22, 9")
        lw = self.lab("pf_w"); lx = self.lab("pf_x")
        e("s_cmp_ge_u32 s3, 2"); e(f"s_cbranch_scc1 {lw}")
        self.srd(48, P_WOUT, 0, 896*512*2)
        e("s_mul_i32 s23, s21, 28"); e("s_lshl_b32 s46, s3, 4"); e("s_add_u32 s23, s23, s46"); e("s_lshl_b32 s23, s23, 10")
        e("s_add_u32 s22, s22, s23")
        e(f"buffer_load_dword v{vdst+3}, v{vdst+1}, s[48:51], s22 offen")
        e(f"s_branch {lx}")
        self.a.label(lw)
        e("s_cmp_lg_u32 s3, 2"); e(f"s_cbranch_scc1 {lx}")
        self.srd(48, P_WO, 0, 512*512*2)
        e("s_lshl_b32 s23, s21, 14"); e("s_add_u32 s22, s22, s23")
        e(f"buffer_load_dword v{vdst+3}, v{vdst+1}, s[48:51], s22 offen")
        self.a.label(lx)

    def p2(self):
        e = self.e
        end = self.lab("att_end")
        H, QB_ = S_HEAD, S_QB
        self.srd(8, P_WS, WS_QK, 4*MB)
        self.srd(12, P_WS, WS_V, 2*MB)
        self.srd(16, P_WS, WS_O, 2*MB)
        e("s_and_b32 s6, s3, 3"); e("s_lshr_b32 s7, s3, 2")
        e("v_lshlrev_b32 v2, 4, v1")
        QA, QB = 8, 12
        SA, SB = 32, 48
        PA, PB = 64, 72
        OA, OB = 80, 96
        CA, CB = 112, 128
        KF = 144; VF = 152
        AK, AV = 4, 5
        FLAG = 131072 + 20480
        e(f"v_mov_b32 v3, {FLAG}"); e("v_mov_b32 v4, 0"); e("ds_write_b32 v3, v4")
        e("v_and_b32 v6, 31, v1"); e("v_and_b32 v7, 27, v6"); e("v_cmp_eq_u32 vcc, 16, v7")
        e("v_mov_b32 v16, 0x3f803f80"); e("v_cndmask_b32 v16, 0, v16, vcc")
        for r in range(16): e(f"v_mov_b32 v{VF+r}, v16")
        e("v_cmp_gt_u32 s[30:31], 16, v6")
        for r in range(16):
            e(f"v_mov_b32 v{CA+r}, 0"); e(f"v_mov_b32 v{CB+r}, 0")
        e("s_mov_b32 s33, 0")
        def cKV():
            e("s_and_b32 s46, s2, 7"); e("s_lshl_b32 s46, s46, 10"); e(f"s_add_u32 s46, s46, {F1}")
            e(f"s_lshr_b32 s44, s{H}, 3"); e("s_add_u32 s44, s44, 4"); e("s_lshl_b32 s44, s44, 7")
            e(f"s_lshr_b32 s45, s{H}, 2"); e("s_lshl_b32 s45, s45, 7")
            e("v_and_b32 v251, 31, v1"); e("v_lshlrev_b32 v251, 2, v251")
            e("v_mov_b32 v252, s44"); e("v_mov_b32 v253, s45")
            e("v_cmp_gt_u32 vcc, 32, v1"); e("v_cndmask_b32 v252, v253, v252, vcc")
            e("v_add_u32 v251, v251, v252")
        def cQ():
            e("s_and_b32 s46, s2, 7"); e("s_lshl_b32 s46, s46, 10"); e(f"s_add_u32 s46, s46, {F1}")
            e(f"s_lshr_b32 s44, s{H}, 3"); e("s_lshl_b32 s44, s44, 7"); e("s_add_u32 s46, s46, s44")
            e(f"s_lshl_b32 s44, s{QB_}, 4"); e("s_add_u32 s46, s46, s44")
            e("v_lshlrev_b32 v251, 2, v1")
        self.wait_flags([(cKV, (1 << 64) - 1), (cQ, 0xf)])
        self.stamp(7)
        e(f"s_lshl_b32 s20, s{QB_}, 3"); e("s_lshl_b32 s21, s6, 1"); e("s_add_u32 s20, s20, s21"); e("s_lshl_b32 s20, s20, 10")
        e(f"s_lshl_b32 s21, s{H}, 16"); e("s_add_u32 s20, s20, s21")
        e(f"buffer_load_dwordx4 v[{QA}:{QA+3}], v2, s[8:11], s20 offen")
        e(f"buffer_load_dwordx4 v[{QB}:{QB+3}], v2, s[8:11], s20 offen offset:1024")
        e(f"s_lshl_b32 s41, s{H}, 16"); e(f"s_add_u32 s40, s41, {32*65536}"); e("s_lshl_b32 s42, s3, 10")
        e("s_add_u32 s40, s40, s42"); e("s_add_u32 s41, s41, s42")
        def dma_half(half):
            e(f"s_add_u32 s20, s40, {32*half*1024}")
            self.dma(2, 8, "s20", f"s_add_u32 m0, s42, {32*half*1024}")
            e(f"s_add_u32 s20, s41, {32*half*1024}")
            self.dma(2, 12, "s20", f"s_add_u32 m0, s42, {65536 + 32*half*1024}")
        def next_chunk():
            e("s_add_u32 s40, s40, 8192"); e("s_add_u32 s41, s41, 8192"); e("s_add_u32 s42, s42, 8192")
        dma_half(0); dma_half(1); next_chunk()
        lrestart = self.lab("att_restart")
        self.a.label(lrestart)
        for r in range(16):
            e(f"v_mov_b32 v{OA+r}, 0"); e(f"v_mov_b32 v{OB+r}, 0")
        e("s_lshl_b32 s20, s7, 15"); e(f"v_add_u32 v{AK}, s20, v2")
        e("v_lshrrev_b32 v6, 5, v1"); e("v_and_b32 v7, 15, v1"); e("v_lshlrev_b32 v7, 4, v7"); e("v_lshl_add_u32 v7, v6, 8, v7")
        e("s_add_u32 s20, s20, 65536"); e(f"v_add_u32 v{AV}, s20, v7")
        for r in range(8): e(f"v_mov_b32 v{PB+r}, 0")
        if self.BALANCE:
            e("s_lshl_b32 s20, s3, 2"); e(f"s_add_u32 s20, s20, {131072 + 24576}"); e("v_mov_b32 v17, s20")
            e("s_xor_b32 s20, s20, 16"); e("v_mov_b32 v18, s20")
            e("v_mov_b32 v19, 0"); e("ds_write_b32 v17, v19")
        e("s_mov_b64 exec, s[30:31]")
        for r in range(8): e(f"v_mov_b32 v{VF+8+r}, 0")
        e("s_mov_b64 exec, -1")
        def rdK(buf, off): e(f"ds_read_b128 v[{KF+4*buf}:{KF+4*buf+3}], v{AK} offset:{off}")
        def rdV(buf, off):
            e("s_mov_b64 exec, s[30:31]")
            e(f"ds_read_b128 v[{VF+8*buf}:{VF+8*buf+3}], v{AV} offset:{off}")
            e(f"ds_read_b128 v[{VF+8*buf+4}:{VF+8*buf+7}], v{AV} offset:{off+512}")
            e("s_mov_b64 exec, -1")
        def qk(S, C, Q, buf): e(f"v_mfma_f32_32x32x16_bf16 v[{S}:{S+15}], v[{KF+4*buf}:{KF+4*buf+3}], v[{Q}:{Q+3}], v[{C}:{C+15}]")
        def pv(O, P, buf, mf): e(f"v_mfma_f32_32x32x16_bf16 v[{O}:{O+15}], v[{VF+8*buf+4*mf}:{VF+8*buf+4*mf+3}], v[{P+4*mf}:{P+4*mf+3}], v[{O}:{O+15}]")
        def step(S, P, first, mid1, mid2, pre=None, extra=None):
            if pre: pre()
            first()
            k = 0
            for j in range(16):
                e(f"v_exp_f32 v{S+j}, v{S+j}")
                if j >= 3 and j % 2 == 1:
                    e(f"v_cvt_pk_bf16_f32 v{P+k}, v{S+2*k}, v{S+2*k+1}"); k += 1
                if j == 4 and mid1: mid1()
                if j == 7 and extra: extra()
                if j == 10 and mid2: mid2()
            while k < 8:
                e(f"v_cvt_pk_bf16_f32 v{P+k}, v{S+2*k}, v{S+2*k+1}"); k += 1
        e("s_waitcnt vmcnt(0) lgkmcnt(0)")
        e("s_barrier")
        self.stamp(8)
        rdK(0, 0); rdV(0, 0)
        e("s_waitcnt lgkmcnt(0)")
        qk(SA, CA, QA, 0)
        e("s_mov_b32 s34, 0")
        loop = self.lab("att_loop")
        self.a.label(loop)
        nb = self.lab("att_nobar")
        e("s_add_u32 s35, s34, s33")
        if self.PREFETCH:
            pf = self.lab("att_pf")
            e("s_cmp_lg_u32 s35, 4"); e(f"s_cbranch_scc1 {pf}")
            self.l2_prefetch(170, 172)
            self.a.label(pf)
        e("s_cmp_lg_u32 s35, 3"); e(f"s_cbranch_scc1 {nb}")
        e("s_waitcnt vmcnt(0)")
        e("s_barrier")
        self.a.label(nb)
        def extra_dma():
            sk = self.lab("att_nd")
            e("s_cmp_ge_u32 s35, 3"); e(f"s_cbranch_scc1 {sk}")
            dma_half(0); dma_half(1); next_chunk()
            self.a.label(sk)
        step(SA, PA, lambda: qk(SB, CB, QB, 0), lambda: pv(OB, PB, 1, 0), lambda: pv(OB, PB, 1, 1), pre=lambda: rdK(1, 1024), extra=extra_dma)
        def preB0():
            rdV(1, 1024); e("s_waitcnt lgkmcnt(2)")
            if self.BALANCE:
                e("v_mov_b32 v19, s34")
                e("ds_write_b32 v17, v19")
                e("ds_read_b32 v24, v18")
        step(SB, PB, lambda: qk(SA, CA, QA, 1), lambda: pv(OA, PA, 0, 0), lambda: pv(OA, PA, 0, 1), pre=preB0)
        step(SA, PA, lambda: qk(SB, CB, QB, 1), lambda: pv(OB, PB, 0, 0), lambda: pv(OB, PB, 0, 1), pre=lambda: rdK(0, 2048))
        def preB1():
            rdV(0, 2048); e("s_waitcnt lgkmcnt(2)")
            if self.BALANCE:
                hi = self.lab("att_hi"); dn_ = self.lab("att_pd")
                e("v_readfirstlane_b32 s20, v24")
                e("s_cmp_gt_u32 s34, s20"); e(f"s_cbranch_scc0 {hi}")
                e("s_setprio 0"); e(f"s_branch {dn_}")
                self.a.label(hi)
                e("s_setprio 1")
                self.a.label(dn_)
        step(SB, PB, lambda: qk(SA, CA, QA, 0), lambda: pv(OA, PA, 1, 0), lambda: pv(OA, PA, 1, 1), pre=preB1)
        e(f"v_add_u32 v{AK}, 2048, v{AK}"); e(f"v_add_u32 v{AV}, 2048, v{AV}")
        e("s_add_u32 s34, s34, 1"); e("s_cmp_lt_u32 s34, 16"); e(f"s_cbranch_scc1 {loop}")
        if self.BALANCE:
            e("v_mov_b32 v19, 64"); e("ds_write_b32 v17, v19"); e("s_setprio 0")
        self.stamp(9)
        pv(OB, PB, 1, 0); pv(OB, PB, 1, 1)
        SCR = 131072
        e("s_mul_i32 s20, s3, 2560"); e(f"s_add_u32 s20, s20, {SCR}")
        e("v_add_u32 v6, s20, v2"); e("v_lshlrev_b32 v7, 2, v1"); e("v_add_u32 v7, s20, v7")
        lk1 = self.lab("att_k1"); lx = self.lab("att_x")
        e("s_cmp_eq_u32 s7, 0"); e(f"s_cbranch_scc1 {lk1}")
        e(f"ds_write_b128 v6, v[{OA}:{OA+3}]"); e(f"ds_write_b128 v6, v[{OA+4}:{OA+7}] offset:1024"); e(f"ds_write_b32 v7, v{OA+8} offset:2048")
        for r in range(9): e(f"v_mov_b32 v{OA+r}, v{OB+r}")
        e(f"s_branch {lx}")
        self.a.label(lk1)
        e(f"ds_write_b128 v6, v[{OB}:{OB+3}]"); e(f"ds_write_b128 v6, v[{OB+4}:{OB+7}] offset:1024"); e(f"ds_write_b32 v7, v{OB+8} offset:2048")
        self.a.label(lx)
        e("s_xor_b32 s21, s3, 4"); e("s_mul_i32 s21, s21, 2560"); e(f"s_add_u32 s21, s21, {SCR}")
        e("v_add_u32 v6, s21, v2"); e("v_lshlrev_b32 v7, 2, v1"); e("v_add_u32 v7, s21, v7")
        e("s_waitcnt lgkmcnt(0)"); e("s_barrier")
        e(f"ds_read_b128 v[{SA}:{SA+3}], v6"); e(f"ds_read_b128 v[{SA+4}:{SA+7}], v6 offset:1024"); e(f"ds_read_b32 v{SA+8}, v7 offset:2048")
        e(f"v_mov_b32 v20, {fl(2.0**-24)}"); e(f"v_mov_b32 v21, {fl(2.0**40)}"); e(f"v_mov_b32 v22, 0x7f7fffff")
        e("s_waitcnt lgkmcnt(0)")
        for r in range(9): e(f"v_add_f32 v{OA+r}, v{OA+r}, v{SA+r}")
        e(f"v_max3_f32 v23, |v{OA}|, |v{OA+1}|, |v{OA+2}|"); e(f"v_max3_f32 v23, v23, |v{OA+3}|, |v{OA+4}|")
        e(f"v_max3_f32 v23, v23, |v{OA+5}|, |v{OA+6}|"); e(f"v_max_f32 v23, v23, |v{OA+7}|")
        e(f"v_cmp_ge_f32 vcc, v{OA+8}, v20"); e(f"v_cmp_le_f32 s[36:37], v{OA+8}, v21"); e(f"v_cmp_le_f32 s[38:39], v23, v22")
        e("s_and_b64 s[36:37], s[36:37], vcc"); e("s_and_b64 s[36:37], s[36:37], s[38:39]")
        lok = self.lab("att_ok")
        e("s_cmp_eq_u64 s[36:37], -1"); e(f"s_cbranch_scc1 {lok}")
        e(f"v_mov_b32 v3, {FLAG}"); e("v_mov_b32 v20, 1"); e("ds_write_b32 v3, v20"); e("s_waitcnt lgkmcnt(0)")
        self.a.label(lok)
        e(f"v_rcp_f32 v20, v{OA+8}")
        for r in range(8): e(f"v_mul_f32 v{OA+r}, v{OA+r}, v20")
        for q in range(4): e(f"v_cvt_pk_bf16_f32 v{SB+q}, v{OA+2*q}, v{OA+2*q+1}")
        e("s_barrier")
        e(f"v_mov_b32 v3, {FLAG}"); e("ds_read_b32 v20, v3")
        e(f"s_lshl_b32 s20, s{QB_}, 3"); e("s_lshl_b32 s21, s6, 1"); e("s_add_u32 s20, s20, s21"); e("s_add_u32 s20, s20, s7")
        e("s_lshl_b32 s20, s20, 15"); e(f"s_lshl_b32 s21, s{H}, 10"); e("s_add_u32 s22, s20, s21")
        e("s_waitcnt lgkmcnt(0)")
        e("v_readfirstlane_b32 s20, v20")
        lfin = self.lab("att_fin"); lslow = self.lab("att_slow")
        e("s_cmp_lg_u32 s33, 0"); e(f"s_cbranch_scc1 {lfin}")
        e("s_cmp_lg_u32 s20, 0"); e(f"s_cbranch_scc1 {lslow}")
        self.a.label(lfin)
        e(f"buffer_store_dwordx4 v[{SB}:{SB+3}], v2, s[16:19], s22 offen {ST}")
        e(f"s_branch {end}")
        self.a.label(lslow)
        e("s_mov_b32 s33, 8")
        e("s_lshl_b32 s20, s7, 15"); e(f"v_add_u32 v{AK}, s20, v2")
        e("v_mov_b32 v20, 0xff800000"); e("v_mov_b32 v21, 0xff800000")
        e("s_mov_b32 s34, 0")
        sl = self.lab("att_sl")
        self.a.label(sl)
        rdK(0, 0); e("s_waitcnt lgkmcnt(0)")
        e(f"v_mfma_f32_32x32x16_bf16 v[{SA}:{SA+15}], v[{KF}:{KF+3}], v[{QA}:{QA+3}], 0")
        e(f"v_mfma_f32_32x32x16_bf16 v[{SB}:{SB+15}], v[{KF}:{KF+3}], v[{QB}:{QB+3}], 0")
        for r in range(0, 16, 2): e(f"v_max3_f32 v20, v20, v{SA+r}, v{SA+r+1}")
        for r in range(0, 16, 2): e(f"v_max3_f32 v21, v21, v{SB+r}, v{SB+r+1}")
        e(f"v_add_u32 v{AK}, 1024, v{AK}")
        e("s_add_u32 s34, s34, 1"); e("s_cmp_lt_u32 s34, 32"); e(f"s_cbranch_scc1 {sl}")
        for r in (20, 21):
            e(f"v_mov_b32 v22, v{r}"); e(f"v_permlane32_swap_b32 v{r}, v22"); e(f"v_max_f32 v{r}, v{r}, v22")
        e("s_lshl_b32 s20, s3, 9"); e(f"s_add_u32 s20, s20, {SCR}")
        e("v_lshlrev_b32 v6, 2, v1"); e("v_add_u32 v7, s20, v6")
        e("s_barrier")
        e("ds_write_b32 v7, v20"); e("ds_write_b32 v7, v21 offset:256"); e("s_waitcnt lgkmcnt(0)"); e("s_barrier")
        e("s_xor_b32 s20, s3, 4"); e("s_lshl_b32 s20, s20, 9"); e(f"s_add_u32 s20, s20, {SCR}"); e("v_add_u32 v7, s20, v6")
        e("ds_read_b32 v22, v7"); e("ds_read_b32 v23, v7 offset:256"); e("s_waitcnt lgkmcnt(0)")
        e("v_max_f32 v20, v20, v22"); e("v_max_f32 v21, v21, v23")
        for r in range(16):
            e(f"v_sub_f32 v{CA+r}, 0, v20"); e(f"v_sub_f32 v{CB+r}, 0, v21")
        e("s_barrier")
        e(f"s_branch {lrestart}")
        self.a.label(end)
        self.phase_end()
        self.signal(lambda: (e(f"s_lshl_b32 s46, s{QB_}, 7"), e(f"s_lshl_b32 s47, s{H}, 2"), e("s_add_u32 s46, s46, s47"), e(f"s_add_u32 s46, s46, {F2}")))
        self.stamp(10)

    def proj_wvoff(self):
        e = self.e
        e("v_lshlrev_b32 v2, 4, v1")
        e("v_lshrrev_b32 v3, 3, v1"); e("v_and_b32 v4, 7, v1"); e("v_bfe_u32 v5, v3, 1, 1"); e("v_lshlrev_b32 v5, 2, v5")
        e("v_xor_b32 v4, v4, v5"); e("v_lshlrev_b32 v3, 10, v3"); e("v_lshl_add_u32 v3, v4, 4, v3")
        e("s_lshl_b32 s20, s5, 7"); e("v_add_u32 v3, s20, v3")

    def proj_epi_addr(self):
        e = self.e
        e("v_lshrrev_b32 v14, 2, v1"); e("v_and_b32 v15, 3, v1")
        e("s_and_b32 s20, s3, 1"); e("s_lshl_b32 s20, s20, 5"); e("s_lshl_b32 s21, s4, 6"); e("s_add_u32 s20, s20, s21")
        e("s_lshr_b32 s21, s3, 2"); e("s_lshl_b32 s21, s21, 4"); e("s_add_u32 s36, s20, s21")
        e("v_add_u32 v16, s36, v14"); e("v_lshlrev_b32 v16, 10, v16"); e("v_lshl_add_u32 v16, v15, 4, v16")
        e("s_bfe_u32 s20, s3, 0x10001"); e("s_lshl_b32 s20, s20, 6"); e("s_lshl_b32 s21, s5, 7"); e("s_add_u32 s32, s20, s21")
        e("v_lshlrev_b32 v17, 5, v15"); e("s_lshl_b32 s33, s32, 1")

    def proj_gate_loads(self, gate_chunk):
        e = self.e
        for kq in range(4):
            e(f"s_add_u32 s20, s33, {kq*12288 + gate_chunk*2048}")
            for hh in range(2):
                e(f"buffer_load_dwordx4 v[{160+8*kq+4*hh}:{163+8*kq+4*hh}], v17, s[28:31], s20 offen offset:{16*hh}")

    def proj_addr(self, natural, xbase, wbase):
        e = self.e
        e("s_and_b32 s20, s3, 1"); e("s_lshl_b32 s20, s20, 13"); e("s_lshr_b32 s21, s3, 2"); e("s_lshl_b32 s22, s21, 12")
        e("s_add_u32 s20, s20, s22"); e(f"s_add_u32 s20, s20, {xbase}"); e("v_add_u32 v8, s20, v2")
        e("v_lshrrev_b32 v4, 4, v1"); e("v_and_b32 v5, 15, v1"); e("v_lshrrev_b32 v6, 2, v5"); e("v_and_b32 v7, 3, v5")
        e("v_lshrrev_b32 v10, 1, v4"); e("v_and_b32 v11, 1, v4")
        e(f"v_lshl_add_u32 v12, v10, {3 if natural else 2}, v6"); e("v_lshlrev_b32 v12, 7, v12")
        e("v_bfe_u32 v13, v6, 1, 1"); e("s_bfe_u32 s20, s3, 0x10001"); e("v_xor_b32 v13, s20, v13")
        e("v_lshl_add_u32 v12, v13, 6, v12"); e("v_lshl_add_u32 v12, v11, 5, v12"); e("v_lshl_add_u32 v12, v7, 3, v12")
        e("s_lshl_b32 s22, s21, 13"); e(f"s_add_u32 s22, s22, {wbase}"); e("v_add_u32 v9, s22, v12")

    def proj_chunk(self, ACC, xoff, wreg, woff, natural):
        e = self.e
        tstep = (4 if natural else 8) * 128
        for ks in range(4):
            b = 96 + 8*ks
            e(f"ds_read_b128 v[{b}:{b+3}], v8 offset:{xoff + ks*1024}")
            e(f"ds_read_b64_tr_b16 v[{b+4}:{b+5}], v{wreg} offset:{woff + ks*2048}")
            e(f"ds_read_b64_tr_b16 v[{b+6}:{b+7}], v{wreg} offset:{woff + ks*2048 + tstep}")
        for ks in range(4):
            b = 96 + 8*ks
            e(f"s_waitcnt lgkmcnt({3*(3-ks)})")
            e(f"v_mfma_f32_32x32x16_bf16 v[{ACC}:{ACC+15}], v[{b+4}:{b+7}], v[{b}:{b+3}], v[{ACC}:{ACC+15}]")

    def proj_epilogue(self, ACC, srd_out, flags, stats):
        e = self.e
        e("s_barrier")
        e("s_mul_i32 s20, s3, 4608")
        e("v_and_b32 v18, 31, v1"); e("v_mul_u32_u24 v18, 144, v18"); e("v_lshrrev_b32 v19, 5, v1")
        e("v_lshl_add_u32 v18, v19, 4, v18"); e("v_add_u32 v18, s20, v18")
        for g in range(4): e(f"ds_write_b128 v18, v[{ACC+4*g}:{ACC+4*g+3}] offset:{32*g}")
        e("s_waitcnt vmcnt(0)")
        for q in range(4):
            for kq in (1,):
                e(f"v_pk_add_f32 v[{160+2*q}:{161+2*q}], v[{160+2*q}:{161+2*q}], v[{168+2*q}:{169+2*q}]")
                e(f"v_pk_add_f32 v[{176+2*q}:{177+2*q}], v[{176+2*q}:{177+2*q}], v[{184+2*q}:{185+2*q}]")
        for q in range(4):
            e(f"v_pk_add_f32 v[{160+2*q}:{161+2*q}], v[{160+2*q}:{161+2*q}], v[{176+2*q}:{177+2*q}]")
        for q in range(4):
            e(f"v_cvt_pk_bf16_f32 v{168+q}, v{160+2*q}, v{161+2*q}")
        for q in range(4):
            e(f"v_lshlrev_b32 v{160+2*q}, 16, v{168+q}"); e(f"v_and_b32 v{161+2*q}, 0xffff0000, v{168+q}")
        e("s_and_b32 s20, s3, 3"); e("s_mul_i32 s20, s20, 4608"); e("s_lshr_b32 s21, s3, 2"); e(f"s_mul_i32 s21, s21, {16*144}")
        e("s_add_u32 s20, s20, s21")
        e("v_mul_u32_u24 v18, 144, v14"); e("v_lshl_add_u32 v18, v15, 5, v18"); e("v_add_u32 v18, s20, v18")
        e("s_waitcnt lgkmcnt(0)"); e("s_barrier")
        e("ds_read_b128 v[48:51], v18"); e("ds_read_b128 v[52:55], v18 offset:16")
        e(f"ds_read_b128 v[56:59], v18 offset:{4*4608}"); e(f"ds_read_b128 v[60:63], v18 offset:{4*4608+16}")
        e("s_waitcnt lgkmcnt(0)")
        for q in range(4):
            e(f"v_pk_add_f32 v[{48+2*q}:{49+2*q}], v[{48+2*q}:{49+2*q}], v[{56+2*q}:{57+2*q}]")
        for q in range(4):
            e(f"v_lshlrev_b32 v{56+2*q}, 16, v{32+q}"); e(f"v_and_b32 v{57+2*q}, 0xffff0000, v{32+q}")
        for q in range(4):
            e(f"v_pk_fma_f32 v[{56+2*q}:{57+2*q}], v[{160+2*q}:{161+2*q}], v[{48+2*q}:{49+2*q}], v[{56+2*q}:{57+2*q}]")
        for q in range(4):
            e(f"v_cvt_pk_bf16_f32 v{32+q}, v{56+2*q}, v{57+2*q}")
        e(f"buffer_store_dwordx4 v[32:35], v16, {sr(srd_out,4)}, s32 offen {flags}")
        if stats:
            e("v_pk_add_f32 v[48:49], v[56:57], v[58:59]"); e("v_pk_add_f32 v[50:51], v[60:61], v[62:63]")
            e("v_pk_add_f32 v[48:49], v[48:49], v[50:51]"); e("v_add_f32 v48, v48, v49")
            for m in ("quad_perm:[1,0,3,2]", "quad_perm:[2,3,0,1]"):
                e(f"v_add_f32_dpp v48, v48, v48 {m} row_mask:0xf bank_mask:0xf")
            e(f"v_mul_f32 v48, {fl(1.0/32)}, v48")
            e("v_sub_f32 v50, 0, v48"); e("v_mov_b32 v51, v50")
            for q in range(4): e(f"v_pk_add_f32 v[{56+2*q}:{57+2*q}], v[{56+2*q}:{57+2*q}], v[50:51]")
            e("v_pk_mul_f32 v[52:53], v[56:57], v[56:57]")
            for q in range(1, 4): e(f"v_pk_fma_f32 v[52:53], v[{56+2*q}:{57+2*q}], v[{56+2*q}:{57+2*q}], v[52:53]")
            e("v_add_f32 v49, v52, v53")
            for m in ("quad_perm:[1,0,3,2]", "quad_perm:[2,3,0,1]"):
                e(f"v_add_f32_dpp v49, v49, v49 {m} row_mask:0xf bank_mask:0xf")
            self.srd(40, P_WS, WS_STX, 2048*128)
            e("v_add_u32 v18, s36, v14"); e("v_lshlrev_b32 v18, 7, v18")
            e("s_bfe_u32 s20, s3, 0x10001"); e("s_lshl_b32 s21, s5, 1"); e("s_add_u32 s20, s20, s21"); e("s_lshl_b32 s20, s20, 3")
            e("v_cmp_eq_u32 vcc, 0, v15"); e("s_and_saveexec_b64 s[44:45], vcc")
            e(f"buffer_store_dwordx2 v[48:49], v18, s[40:43], s20 offen {ST}")
            e("s_mov_b64 exec, s[44:45]")

    def p3(self):
        e = self.e
        self.srd(8, P_WS, WS_O, 2*MB); self.srd(12, P_WO, 0, 512*512*2)
        self.srd(16, P_X, 0, 2*MB); self.srd(24, P_WS, WS_X1, 2*MB); self.srd(28, P_WS, WS_MOD, 49152)
        self.proj_wvoff()
        self.proj_addr(False, 65536, 0)
        self.proj_epi_addr()
        def pre3():
            for m in range(10):
                sk = None
                if m == 9:
                    sk = self.lab("p3w"); e("s_cmp_lg_u32 s3, 0"); e(f"s_cbranch_scc1 {sk}")
                e(f"s_add_u32 s21, s3, {7*m}"); e("s_lshl_b32 s20, s21, 13"); e("s_lshl_b32 s21, s21, 10")
                self.dma(3, 12, "s20", "s_mov_b32 m0, s21")
                if sk: self.a.label(sk)
        def cO():
            e("s_lshr_b32 s46, s4, 2"); e("s_lshl_b32 s46, s46, 7"); e(f"s_add_u32 s46, s46, {F2}"); e("v_lshlrev_b32 v251, 2, v1")
        def cM(k):
            def f():
                e("s_and_b32 s46, s2, 7"); e("s_lshl_b32 s46, s46, 10"); e(f"s_add_u32 s46, s46, {F0 + 256*k}"); e("v_lshlrev_b32 v251, 2, v1")
            return f
        self.wait_flags([(cM(1), (1 << 64) - 1), (cM(2), (1 << 64) - 1), (cO, 0xffffffff)], pre=pre3, w7_after=False)
        self.stamp(11)
        e(f"s_mul_i32 s6, s4, {2*32*1024}"); e("s_lshl_b32 s21, s3, 10"); e("s_add_u32 s6, s6, s21")
        for c in range(4):
            for tt in range(2):
                e(f"s_add_u32 s20, s6, {tt*32*1024 + c*8*1024}")
                self.dma(2, 8, "s20", f"s_add_u32 m0, s21, {65536 + c*16384 + tt*8192}")
            if c < 3: e("s_barrier")
        e("buffer_load_dwordx4 v[32:35], v16, s[16:19], s32 offen")
        self.proj_gate_loads(2)
        ACC = 64
        for r in range(16): e(f"v_mov_b32 v{ACC+r}, 0")
        for c in range(4):
            e(f"s_waitcnt vmcnt({2*(3-c) + 9})"); e("s_barrier")
            if c == 0: self.stamp(35)
            self.proj_chunk(ACC, c*16384, 9, c*16384, False)
        self.stamp(36)
        self.proj_epilogue(ACC, 24, ST, True)
        self.stamp(37)
        self.phase_end()
        self.signal(lambda: (e("s_lshl_b32 s46, s4, 7"), e("s_lshl_b32 s47, s5, 2"), e("s_add_u32 s46, s46, s47"), e(f"s_add_u32 s46, s46, {F3}")))
        self.stamp(12)

    def p4(self):
        e = self.e
        RING = 65536; SL = 14336; D = 6; MODL = RING + D*SL
        PART = 155648
        Z1L = 135168
        self.srd(8, P_WS, WS_X1, 2*MB)
        self.srd(12, P_WS, WS_MOD, 49152)
        self.srd(16, P_WIN, 0, 512*1792*2)
        self.srd(28, P_WS, WS_Z2, 56*64*1024)
        self.srd(36, P_WS, WS_ST, 32*8*64*16)
        for m in range(2):
            d = 192 + m
            e(f"s_lshl_b32 s20, s3, 6"); e(f"s_add_u32 s20, s20, {512*m}")
            e(f"v_add_u32 v200, s20, v1")
            e(f"v_mul_u32_u24 v201, 2341, v200"); e(f"v_lshrrev_b32 v201, 16, v201")
            e(f"v_mul_u32_u24 v202, 28, v201"); e(f"v_sub_u32 v202, v200, v202")
            e(f"v_bfe_u32 v203, v201, 3, 1"); e(f"v_lshlrev_b32 v203, 1, v203"); e(f"v_xor_b32 v202, v202, v203")
            e(f"v_lshlrev_b32 v203, 4, v202")
            e(f"s_mul_i32 s20, s5, 224"); e(f"s_add_u32 s21, s20, 1792"); e(f"v_add_u32 v204, s21, v203")
            e(f"s_sub_u32 s21, s20, 224"); e(f"v_add_u32 v205, s21, v203")
            e(f"v_cmp_gt_u32 vcc, 14, v202"); e(f"v_cndmask_b32 v204, v205, v204, vcc")
            e(f"v_mul_u32_u24 v201, 3584, v201"); e(f"v_add_u32 v{d}, v201, v204")
        e("s_lshl_b32 s7, s3, 10"); e(f"s_add_u32 s7, s7, {RING}")
        e("s_cmp_ge_u32 s3, 6"); e("s_cselect_b64 vcc, -1, 0"); e("v_cndmask_b32 v194, v193, v192, vcc")
        e("s_cselect_b32 s35, 0, 8192"); e("s_add_u32 s35, s35, s7")
        def issue(stage, cnt):
            e(f"s_mov_b32 s23, {stage*32*3584}")
            for m in range(cnt):
                self.dma(192+m, 16, "s23", f"s_add_u32 m0, s7, {(stage % D)*SL + m*8192}")
        def pre4():
            self.mod_issue(12, 3)
            for st in range(D-1):
                e(f"s_mov_b32 s23, {st*32*3584}")
                self.dma(192, 16, "s23", f"s_add_u32 m0, s7, {st*SL}")
                self.dma(194, 16, "s23", f"s_add_u32 m0, s35, {st*SL}")
            e(f"s_waitcnt vmcnt({2*(D-1)})")
            self.mod_finish(MODL)
        e("v_lshrrev_b32 v3, 4, v1"); e("v_and_b32 v4, 15, v1"); e("v_lshrrev_b32 v5, 2, v4"); e("v_and_b32 v6, 3, v4")
        e("v_lshl_add_u32 v7, v3, 3, v5"); e("v_mul_u32_u24 v7, 448, v7"); e("v_lshl_add_u32 v7, v6, 3, v7"); e(f"v_add_u32 v7, {RING}, v7")
        e("v_and_b32 v8, 1, v3"); e("v_lshlrev_b32 v8, 5, v8")
        e("v_add_u32 v200, v7, v8"); e("v_sub_u32 v201, v7, v8")
        e(f"v_add_u32 v202, {4*SL}, v200"); e(f"v_add_u32 v203, {4*SL}, v201")
        e("s_and_b32 s21, s3, 1"); e("s_lshl_b32 s21, s21, 5"); e("v_add_u32 v9, s21, v4"); e("v_lshlrev_b32 v9, 10, v9")
        for m in range(4):
            e(f"v_add_u32 v10, {4*m}, v3"); e(f"v_xor_b32 v10, v10, v4"); e(f"v_lshl_add_u32 v{208+m}, v10, 4, v9")
        e(f"v_mov_b32 v5, {PART + 2048}"); e("v_mov_b32 v6, 0"); e("ds_write_b32 v5, v6")
        def cX():
            e("s_lshl_b32 s46, s4, 7"); e(f"s_add_u32 s46, s46, {F3}"); e("v_lshlrev_b32 v251, 2, v1")
        self.wait_flags([(cX, 0xff)], pre=lambda: (pre4(), e("s_waitcnt lgkmcnt(0)")))
        self.stamp(13)
        e("s_lshl_b32 s6, s4, 16")
        self.ln_loads(8, 6)
        self.srd(40, P_WS, WS_STX, 2048*128)
        e("s_lshl_b32 s20, s4, 6"); e("s_lshl_b32 s21, s3, 3"); e("s_add_u32 s20, s20, s21"); e("s_lshl_b32 s20, s20, 7")
        e("v_lshlrev_b32 v6, 7, v3"); e("v_lshl_add_u32 v6, v4, 3, v6")
        e("buffer_load_dwordx2 v[8:9], v6, s[40:43], s20 offen")
        e("buffer_load_dwordx2 v[10:11], v6, s[40:43], s20 offen offset:512")
        e("s_waitcnt vmcnt(0)")
        self.stamp(14)
        self.ln2_prepare()
        e("s_barrier")
        self.ln_finish(MODL)
        ACC = 212
        for r in range(32): e(f"v_mov_b32 v{ACC+r}, 0")
        e("s_waitcnt lgkmcnt(0)"); e("s_barrier")
        self.stamp(15)
        NK = 16
        c0 = -2.0*math.sqrt(2.0/math.pi)*LOG2E
        c1 = c0*0.044715
        variants = [self.lab("win_v") for _ in range(4)]
        join = self.lab("win_join")
        e("s_lshr_b32 s20, s3, 1")
        for cg in (1, 2, 3):
            e(f"s_cmp_eq_u32 s20, {cg}"); e(f"s_cbranch_scc1 {variants[cg]}")
        for cg in range(4):
            self.a.label(variants[cg])
            z2 = cg < 2
            nt = (4, 3, 3, 4)[cg]
            t0 = (0, 4, 4, 0)[cg]
            sg0 = (0 if z2 else 7) + t0
            cnt = 1 if cg == 3 else 2
            def reads(n):
                buf = n % 2; slot = n % D
                out = []
                for rt in range(2):
                    b = 32 + 32*buf + 4*rt
                    out.append(f"ds_read_b128 v[{b}:{b+3}], v{208 + (n & 3)} offset:{rt*16384 + (n >> 2)*256}")
                for c in range(nt):
                    sg = sg0 + c
                    b = 40 + 32*buf + 4*c
                    areg, off = (200 + (sg & 1), slot*SL) if slot < 4 else (202 + (sg & 1), (slot-4)*SL)
                    for t in range(2):
                        out.append(f"ds_read_b64_tr_b16 v[{b+2*t}:{b+2*t+1}], v{areg} offset:{off + 4*t*448 + sg*32}")
                return out
            for r in reads(0): e(r)
            for n in range(NK):
                if n + 1 < NK:
                    if n + 1 >= D - 1:
                        allowed = cnt * len([s for s in range(max(n+2, D-1), min(n+D-1, NK))])
                        e(f"s_waitcnt vmcnt({allowed})")
                    e("s_barrier")
                e("s_waitcnt lgkmcnt(0)")
                buf = n % 2
                ms = []
                for c in range(nt):
                    for rt in range(2):
                        acc = ACC + 4*(rt*4 + c)
                        x = 32 + 32*buf + 4*rt; w = 40 + 32*buf + 4*c
                        A, B = (x, w) if z2 else (w, x)
                        ms.append(f"v_mfma_f32_16x16x32_bf16 v[{acc}:{acc+3}], v[{A}:{A+3}], v[{B}:{B+3}], v[{acc}:{acc+3}]")
                rs = reads(n + 1) if n + 1 < NK else []
                ri = 0
                for i, m in enumerate(ms):
                    e(m)
                    for _ in range(2 if i < 3 else 1):
                        if ri < len(rs): e(rs[ri]); ri += 1
                while ri < len(rs): e(rs[ri]); ri += 1
                st = n + D - 1
                if st < NK: issue(st, cnt)
            self.stamp(31)
            if z2: e("s_setprio 2")
            e(f"s_mov_b32 s20, {fl(c1)}"); e(f"v_mov_b32 v20, {fl(c0)}")
            accs = [ACC + 4*(rt*4 + c) + r for c in range(nt) for rt in range(2) for r in range(4)]
            for i0 in range(0, len(accs), 4):
                grp = accs[i0:i0+4]
                for k, z in enumerate(grp): e(f"v_mul_f32 v{24+k}, v{z}, v{z}")
                for k, z in enumerate(grp): e(f"v_fma_f32 v{24+k}, v{24+k}, s20, v20")
                for k, z in enumerate(grp): e(f"v_mul_f32 v{24+k}, v{24+k}, v{z}")
                for k, z in enumerate(grp): e(f"v_exp_f32 v{24+k}, v{24+k}")
                for k, z in enumerate(grp): e(f"v_add_f32 v{24+k}, 1.0, v{24+k}")
                for k, z in enumerate(grp): e(f"v_rcp_f32 v{24+k}, v{24+k}")
                for k, z in enumerate(grp): e(f"v_mul_f32 v{z}, v{z}, v{24+k}")
            self.stamp(32)
            e("v_lshrrev_b32 v3, 4, v1"); e("v_and_b32 v4, 15, v1")
            if z2:
                regs = []
                for rt in range(2):
                    for r in range(4):
                        sreg = 64 + 2*(rt*4 + r)
                        a0 = ACC + 4*(rt*4) + r
                        e(f"v_mov_b32 v{sreg}, v{a0}"); e(f"v_mul_f32 v{sreg+1}, v{a0}, v{a0}")
                        for c in range(1, nt):
                            a = ACC + 4*(rt*4 + c) + r
                            e(f"v_add_f32 v{sreg}, v{sreg}, v{a}"); e(f"v_fmac_f32 v{sreg+1}, v{a}, v{a}")
                        regs += [sreg, sreg+1]
                self.dpp_reduce16(regs)
                e("s_and_b32 s20, s3, 1"); e("s_lshl_b32 s20, s20, 8")
                e(f"s_add_u32 s20, s20, {PART + cg*512}")
                e("v_lshlrev_b32 v5, 5, v3"); e("v_add_u32 v5, s20, v5")
                e("v_cmp_eq_u32 vcc, 0, v4"); e("s_and_saveexec_b64 s[40:41], vcc")
                for rt in range(2):
                    e(f"ds_write_b128 v5, v[{64+8*rt}:{67+8*rt}] offset:{rt*128}")
                    e(f"ds_write_b128 v5, v[{68+8*rt}:{71+8*rt}] offset:{rt*128+16}")
                e("s_waitcnt lgkmcnt(0)")
                e(f"v_mov_b32 v5, {PART + 2048}"); e("v_mov_b32 v6, 1")
                e("s_mov_b64 exec, 1")
                e("ds_add_u32 v5, v6")
                e("s_mov_b64 exec, -1")
                self.stamp(33)
                if cg == 0:
                    nx = self.lab("win_nx")
                    e("s_cmp_lg_u32 s3, 0"); e(f"s_cbranch_scc1 {nx}")
                    sp = self.lab("win_sp")
                    e("s_mov_b32 s47, 0")
                    self.a.label(sp)
                    e("ds_read_b32 v6, v5"); e("s_add_u32 s47, s47, 1"); e("s_waitcnt lgkmcnt(0)")
                    e("v_readfirstlane_b32 s20, v6")
                    spd = self.lab("win_spd")
                    e(f"s_cmp_gt_u32 s47, {SPIN_CAP}"); e(f"s_cbranch_scc1 {spd}")
                    e("s_cmp_lt_u32 s20, 4"); e(f"s_cbranch_scc1 {sp}")
                    self.a.label(spd)
                    e("v_lshlrev_b32 v5, 3, v1"); e(f"v_add_u32 v5, {PART}, v5")
                    e("ds_read_b64 v[64:65], v5"); e("ds_read_b64 v[66:67], v5 offset:512")
                    e("s_waitcnt lgkmcnt(0)")
                    e("v_add_f32 v64, v64, v66"); e("v_add_f32 v65, v65, v67")
                    e(f"v_mov_b32 v66, s{S_NONCE}"); e(f"v_mov_b32 v67, s{S_NONCE}")
                    e("v_lshlrev_b32 v6, 4, v1")
                    e("s_lshl_b32 s20, s4, 13"); e("s_lshl_b32 s21, s5, 10"); e("s_add_u32 s21, s21, s20")
                    e(f"buffer_store_dwordx4 v[64:67], v6, s[36:39], s21 offen {ST}")
                    e("s_mov_b32 s47, 0")
                    lp = self.lab("stp"); dn = self.lab("std")
                    self.a.label(lp)
                    for jj in range(8):
                        e(f"s_add_u32 s21, s20, {jj*1024}")
                        e(f"buffer_load_dwordx4 v[{72+4*jj}:{75+4*jj}], v6, s[36:39], s21 offen {ST}")
                    e("s_add_u32 s47, s47, 1"); e(f"s_cmp_gt_u32 s47, {SPIN_CAP}"); e(f"s_cbranch_scc1 {dn}")
                    e("s_waitcnt vmcnt(0)")
                    e("s_mov_b64 s[42:43], -1")
                    for jj in range(8):
                        e(f"v_cmp_eq_u32 vcc, s{S_NONCE}, v{74+4*jj}"); e("s_and_b64 s[42:43], s[42:43], vcc")
                        e(f"v_cmp_eq_u32 vcc, s{S_NONCE}, v{75+4*jj}"); e("s_and_b64 s[42:43], s[42:43], vcc")
                    e("s_cmp_eq_u64 s[42:43], -1")
                    if not Gen.NOHOP: e(f"s_cbranch_scc0 {lp}")
                    self.a.label(dn)
                    e("s_waitcnt vmcnt(0)")
                    for jj in range(1, 8):
                        e(f"v_add_f32 v72, v72, v{72+4*jj}"); e(f"v_add_f32 v73, v73, v{73+4*jj}")
                    e(f"v_mul_f32 v72, {fl(1.0/896)}, v72"); e(f"v_mul_f32 v73, {fl(1.0/896)}, v73")
                    e("v_fma_f32 v73, -v72, v72, v73"); e("v_max_f32 v73, 0, v73"); e(f"v_add_f32 v73, {fl(1e-5)}, v73")
                    e("v_rsq_f32 v75, v73"); e("v_mul_f32 v74, v72, v75"); e("v_sub_f32 v74, 0, v74")
                    e(f"ds_write_b64 v5, v[74:75] offset:1024")
                    self.a.label(nx)
                e("s_setprio 0")
            else:
                e("s_and_b32 s22, s3, 1"); e(f"s_mul_i32 s22, s22, {2*7*512}"); e(f"s_add_u32 s22, s22, {Z1L + t0*512}")
                e("v_lshlrev_b32 v7, 3, v1"); e("v_add_u32 v7, s22, v7")
                for c in range(nt):
                    for rt in range(2):
                        acc = ACC + 4*(rt*4 + c); pk = 32 + 2*(rt + 2*c)
                        e(f"v_cvt_pk_bf16_f32 v{pk}, v{acc}, v{acc+1}"); e(f"v_cvt_pk_bf16_f32 v{pk+1}, v{acc+2}, v{acc+3}")
                        e(f"ds_write_b64 v7, v[{pk}:{pk+1}] offset:{rt*7*512 + c*512}")
            e("s_waitcnt lgkmcnt(0)"); e("s_barrier")
            self.stamp(34)
            if z2:
                e("s_and_b32 s20, s3, 1"); e("s_lshl_b32 s20, s20, 8"); e(f"s_add_u32 s20, s20, {PART + 1024}")
                e("v_lshlrev_b32 v5, 5, v3"); e("v_add_u32 v5, s20, v5")
                for rt in range(2):
                    e(f"ds_read_b128 v[{64+8*rt}:{67+8*rt}], v5 offset:{rt*128}")
                    e(f"ds_read_b128 v[{68+8*rt}:{71+8*rt}], v5 offset:{rt*128+16}")
                e("v_and_b32 v6, 1, v3"); e("v_lshlrev_b32 v5, 9, v6"); e("v_lshrrev_b32 v6, 1, v3"); e("v_lshl_add_u32 v5, v6, 8, v5")
                e("v_lshl_add_u32 v5, v4, 4, v5")
                e("s_and_b32 s20, s3, 1"); e("s_lshl_b32 s21, s4, 1"); e("s_add_u32 s20, s20, s21"); e("s_lshl_b32 s20, s20, 10")
                e("s_mul_i32 s21, s5, 0x70000"); e("s_add_u32 s20, s20, s21")
                e("s_waitcnt lgkmcnt(0)")
                for c in range(nt):
                    e(f"s_add_u32 s21, s20, {(t0+c)*65536}")
                    pk = 32 + 4*c
                    for rt in range(2):
                        acc = ACC + 4*(rt*4 + c)
                        for r in range(4):
                            e(f"v_fma_f32 v{acc+r}, v{acc+r}, v{64+8*rt+2*r+1}, v{64+8*rt+2*r}")
                        e(f"v_cvt_pk_bf16_f32 v{pk+2*rt}, v{acc}, v{acc+1}"); e(f"v_cvt_pk_bf16_f32 v{pk+2*rt+1}, v{acc+2}, v{acc+3}")
                    e(f"v_permlane16_swap_b32 v{pk}, v{pk+2}"); e(f"v_permlane16_swap_b32 v{pk+1}, v{pk+3}")
                    e(f"buffer_store_dwordx4 v[{pk}:{pk+3}], v5, s[28:31], s21 offen {ST}")
            if cg < 3: e(f"s_branch {join}")
        self.a.label(join)
        self.phase_end()
        self.signal(lambda: (e("s_lshl_b32 s46, s5, 7"), e("s_lshl_b32 s47, s4, 2"), e("s_add_u32 s46, s46, s47"), e(f"s_add_u32 s46, s46, {F4}")))
        self.stamp(16)

    def p5(self):
        e = self.e
        end = self.lab("sp_end")
        Z1L = 135168
        self.srd(8, P_WSP, 0, 2048*2048*2)
        self.srd(12, P_WS, WS_Z2, 56*64*1024)
        self.srd(24, P_WS, WS_Y, 64*56*1024)
        self.srd(28, P_BSP, 0, 4096)
        SL = 22528; D = 6; NST = 32
        e(f"s_mov_b32 s44, {(-(D-1)*SL) & 0xffffffff}"); e(f"s_mov_b32 s45, {SL}")
        e("v_lshlrev_b32 v2, 4, v1"); e("v_lshrrev_b32 v3, 4, v1"); e("v_and_b32 v4, 15, v1")
        def cZ():
            e("s_lshl_b32 s46, s5, 7"); e(f"s_add_u32 s46, s46, {F4}"); e("v_lshlrev_b32 v251, 2, v1")
        lp = self.lab("sp_prod")
        e("s_cmp_ge_u32 s3, 4"); e(f"s_cbranch_scc1 {lp}")
        e("s_and_b32 s20, s3, 1"); e("s_lshl_b32 s21, s4, 2"); e("s_lshl_b32 s22, s20, 1"); e("s_add_u32 s21, s21, s22")
        e("v_lshlrev_b32 v5, 1, v4"); e("s_lshl_b32 s22, s21, 5")
        e("buffer_load_ushort v20, v5, s[28:31], s22 offen"); e("buffer_load_ushort v21, v5, s[28:31], s22 offen offset:32")
        e("s_bfe_u32 s23, s3, 0x10001"); e("s_lshl_b32 s23, s23, 2")
        e("v_lshrrev_b32 v7, 1, v3"); e("v_lshlrev_b32 v7, 9, v7"); e("v_lshl_add_u32 v7, v4, 4, v7")
        e("v_and_b32 v8, 1, v3"); e("v_lshl_add_u32 v7, v8, 3, v7")
        e("s_lshl_b32 s21, s4, 1"); e("s_add_u32 s21, s21, s20"); e("s_mul_i32 s21, s21, 56")
        e("s_mul_i32 s6, s5, 7"); e("s_add_u32 s21, s21, s6"); e("s_add_u32 s21, s21, s23"); e("s_lshl_b32 s35, s21, 10")
        e(f"s_mul_i32 s6, s20, {2*7*512}"); e("s_lshl_b32 s21, s23, 9"); e("s_add_u32 s6, s6, s21"); e(f"s_add_u32 s6, s6, {Z1L}")
        e("v_lshlrev_b32 v9, 3, v1"); e("v_add_u32 v9, s6, v9")
        e("s_and_b32 s20, s3, 1"); e("s_lshl_b32 s20, s20, 12"); e("v_lshlrev_b32 v5, 7, v4"); e("v_add_u32 v5, s20, v5")
        e("v_lshrrev_b32 v8, 1, v4")
        for ks in range(2):
            e(f"v_add_u32 v6, {4*ks}, v3"); e(f"v_xor_b32 v6, v6, v8"); e(f"v_lshl_add_u32 v{200+ks}, v6, 4, v5")
        e("s_bfe_u32 s20, s3, 0x10001"); e("s_lshl_b32 s20, s20, 13"); e("s_add_u32 s20, s20, 8192"); e("v_add_u32 v202, s20, v2")
        ACC = 128
        for r in range(32): e(f"v_mov_b32 v{ACC+r}, 0")
        e("s_barrier")
        LOOK = self.ZLOOK
        if self.ZTOUCH:
            e("s_and_b32 s20, s4, 7"); e("s_mul_i32 s20, s20, 14"); e("v_add_u32 v196, s20, v1")
            e("v_lshrrev_b32 v197, 4, v196"); e("v_lshlrev_b32 v197, 16, v197")
            e("v_bfe_u32 v198, v196, 3, 1"); e("v_lshl_add_u32 v197, v198, 10, v197")
            e("v_and_b32 v198, 7, v196"); e("v_lshl_add_u32 v196, v198, 7, v197")
            e("s_mul_i32 s43, s5, 0x70000"); e(f"s_add_u32 s43, s43, {(D-1)*2048}")
            e("s_cmp_eq_u32 s3, 0"); e("s_cselect_b32 s42, 0x3fff, 0")
            tk = self.lab("sp_tk")
            e("s_cmp_lg_u32 s3, 0"); e(f"s_cbranch_scc1 {tk}")
            e("s_mov_b64 exec, 0x3fff")
            for i in range(LOOK - (D-1)):
                e(f"s_add_u32 s20, s43, {i*2048}")
                e("buffer_load_dword v199, v196, s[12:15], s20 offen")
            e("s_mov_b64 exec, -1")
            self.a.label(tk)
            e(f"s_add_u32 s43, s43, {(LOOK-(D-1))*2048}")
        l3 = self.lab("sp_3"); lepi = self.lab("sp_epi")
        e("s_barrier")
        self.stamp(18)
        e("s_bitcmp1_b32 s3, 1"); e(f"s_cbranch_scc1 {l3}")
        for jj in range(2):
            nf = 4 if jj == 0 else 3
            if jj == 1: self.a.label(l3)
            def reads(ks, buf, nxt):
                b = 32 + 24*buf; ab = 203 if nxt else 200
                for tt in range(2): yield f"ds_read_b128 v[{b+4*tt}:{b+4*tt+3}], v{ab+ks} offset:{tt*2048}"
                for f in range(nf): yield f"ds_read_b128 v[{b+8+4*f}:{b+8+4*f+3}], v{ab+2} offset:{f*2048 + ks*1024}"
            def mf(buf):
                b = 32 + 24*buf
                for f in range(nf):
                    for tt in range(2):
                        acc = ACC + 4*(tt*4 + f)
                        yield f"v_mfma_f32_16x16x32_bf16 v[{acc}:{acc+3}], v[{b+8+4*f}:{b+8+4*f+3}], v[{b+4*tt}:{b+4*tt+3}], v[{acc}:{acc+3}]"
            def interleave(ms, rs):
                ms = list(ms); rs = list(rs)
                if self.X_NOMFMA: ms = []
                if self.X_NOREAD: rs = []
                ri = 0
                for i, m in enumerate(ms):
                    e(m)
                    for _ in range(self.RPG):
                        if ri < len(rs): e(rs[ri]); ri += 1
                for r in rs[ri:]: e(r)
            for r in reads(0, 0, False): e(r)
            e("s_mov_b32 s36, 0"); e(f"s_mov_b32 s37, {SL}"); e("s_mov_b32 s38, 1")
            loop = self.lab("sp_loop")
            self.a.label(loop)
            e("s_barrier")
            for k in range(3): e(f"v_add_u32 v{203+k}, s37, v{200+k}")
            if self.ZTOUCH and jj == 0:
                tk2 = self.lab("sp_tk2")
                e("s_cmp_lg_u32 s3, 0"); e(f"s_cbranch_scc1 {tk2}")
                e(f"s_cmp_ge_u32 s36, {NST} - {LOOK}".replace(f"{NST} - {LOOK}", str(NST - LOOK))); e(f"s_cbranch_scc1 {tk2}")
                e("s_mov_b64 exec, 0x3fff")
                e("buffer_load_dword v199, v196, s[12:15], s43 offen")
                e("s_mov_b64 exec, -1")
                e("s_add_u32 s43, s43, 2048")
                self.a.label(tk2)
            e(f"s_waitcnt lgkmcnt(0)")
            interleave(mf(0), reads(1, 1, False))
            e(f"s_waitcnt lgkmcnt(0)")
            interleave(mf(1), reads(0, 0, True))
            for k in range(3): e(f"v_mov_b32 v{200+k}, v{203+k}")
            e("s_add_u32 s38, s38, 1"); e(f"s_cmp_eq_u32 s38, {D}")
            e(f"s_cselect_b32 s37, s44, s45"); e(f"s_cselect_b32 s38, 0, s38")
            e("s_add_u32 s36, s36, 1"); e(f"s_cmp_lt_u32 s36, {NST}"); e(f"s_cbranch_scc1 {loop}")
            if jj == 0: e(f"s_branch {lepi}")
        self.a.label(lepi)
        self.stamp(19)
        ZR = 176
        for tt in range(2):
            for f in range(4):
                b = ZR + 2*(tt*4 + f)
                e(f"ds_read_b64 v[{b}:{b+1}], v9 offset:{tt*7*512 + f*512}")
        e("s_waitcnt vmcnt(0) lgkmcnt(0)")
        e("v_lshlrev_b32 v20, 16, v20"); e("v_lshlrev_b32 v21, 16, v21")
        for f in range(4):
            if f == 3:
                e("s_bitcmp1_b32 s3, 1"); e(f"s_cbranch_scc1 {end}")
            pk = 32 + 4*f
            for tt in range(2):
                acc = ACC + 4*(tt*4 + f); b = ZR + 2*(tt*4 + f)
                for q in range(2):
                    e(f"v_lshlrev_b32 v22, 16, v{b+q}"); e(f"v_and_b32 v23, 0xffff0000, v{b+q}")
                    e(f"v_add_f32 v24, v{acc+2*q}, v{20+tt}"); e(f"v_add_f32 v25, v{acc+2*q+1}, v{20+tt}")
                    e(f"v_mul_f32 v22, v22, v24"); e(f"v_mul_f32 v23, v23, v25")
                    e(f"v_cvt_pk_bf16_f32 v{pk+2*tt+q}, v22, v23")
            e(f"v_permlane16_swap_b32 v{pk}, v{pk+2}"); e(f"v_permlane16_swap_b32 v{pk+1}, v{pk+3}")
            e(f"buffer_store_dwordx4 v[{pk}:{pk+3}], v2, s[24:27], s35 offen offset:{f*1024} {ST}")
        e(f"s_branch {end}")
        self.a.label(lp)
        e("s_and_b32 s7, s3, 3")
        e("v_lshrrev_b32 v5, 3, v1"); e("v_and_b32 v6, 7, v1")
        for m in range(2):
            e(f"s_lshl_b32 s20, s7, 3"); e(f"s_add_u32 s20, s20, {32*m}")
            e(f"v_add_u32 v8, s20, v5"); e(f"v_bfe_u32 v9, v8, 1, 3"); e(f"v_xor_b32 v9, v9, v6")
            e(f"v_lshlrev_b32 v8, 12, v8"); e(f"v_lshl_add_u32 v{192+m}, v9, 4, v8")
        e("s_lshl_b32 s6, s4, 18")
        e("s_mul_i32 s32, s5, 0x70000"); e("s_lshr_b32 s20, s7, 1"); e("s_lshl_b32 s20, s20, 16"); e("s_add_u32 s32, s32, s20")
        e("s_and_b32 s20, s7, 1"); e("s_lshl_b32 s20, s20, 10"); e("s_add_u32 s32, s32, s20")
        e("s_lshl_b32 s33, s7, 10")
        e("s_mov_b32 s34, s33")
        def pre5():
            for st in range(D-1):
                for m in range(2): self.dma(192+m, 8, "s6", f"s_add_u32 m0, s34, {st*SL + m*4096}")
                e("s_add_u32 s6, s6, 128")
        self.wait_flags([(cZ, 0xffffffff)], pre=pre5)
        self.stamp(17)
        l5 = self.lab("sp_p5")
        e("s_cmp_ge_u32 s7, 2"); e(f"s_cbranch_scc1 {l5}")
        for var in range(2):
            nz = 4 if var == 0 else 3
            cnt = 2 + nz
            if var == 1: self.a.label(l5)
            def issue_z():
                for m in range(nz):
                    e(f"s_add_u32 s23, s32, {2*m*65536}")
                    self.dma(2, 12, "s23", f"s_add_u32 m0, s34, {8192 + m*4096}")
                e("s_add_u32 s32, s32, 2048")
            def issue():
                if self.X_NODMA: return
                for m in range(2): self.dma(192+m, 8, "s6", f"s_add_u32 m0, s34, {m*4096}")
                e("s_add_u32 s6, s6, 128")
                issue_z()
            for st in range(D-1):
                issue_z(); e(f"s_add_u32 s34, s34, {SL}")
            e(f"s_waitcnt vmcnt({nz*(D-2)})"); e("s_barrier")
            e("s_mov_b32 s36, 0"); e(f"s_mov_b32 s38, {D-1}")
            loop = self.lab("sp_ploop"); lni = self.lab("sp_ni"); lw = self.lab("sp_w"); le = self.lab("sp_e"); lb = self.lab("sp_b")
            self.a.label(loop)
            e(f"s_cmp_ge_u32 s36, {NST-D+2}"); e(f"s_cbranch_scc1 {lw}")
            e(f"s_cmp_lt_u32 s36, 3"); e(f"s_cbranch_scc1 {le}")
            e(f"s_waitcnt vmcnt({cnt*(D-3)})"); e(f"s_branch {lb}")
            self.a.label(le)
            e(f"s_waitcnt vmcnt({nz*(D-3)})")
            self.a.label(lb)
            e("s_barrier")
            e(f"s_cmp_ge_u32 s36, {NST-D+1}"); e(f"s_cbranch_scc1 {lni}")
            issue()
            e("s_add_u32 s38, s38, 1"); e(f"s_cmp_eq_u32 s38, {D}"); e(f"s_cselect_b32 s39, s44, s45"); e(f"s_cselect_b32 s38, 0, s38")
            e("s_add_u32 s34, s34, s39"); e(f"s_branch {lni}")
            self.a.label(lw)
            e("s_waitcnt vmcnt(0)"); e("s_barrier")
            self.a.label(lni)
            e("s_add_u32 s36, s36, 1"); e(f"s_cmp_lt_u32 s36, {NST}"); e(f"s_cbranch_scc1 {loop}")
            if var == 0: e(f"s_branch {end}")
        self.a.label(end)
        self.phase_end()
        self.signal(lambda: (e("s_lshl_b32 s46, s4, 7"), e("s_lshl_b32 s47, s5, 2"), e("s_add_u32 s46, s46, s47"), e(f"s_add_u32 s46, s46, {F5}")))
        self.stamp(20)

    def p6(self):
        e = self.e
        self.srd(8, P_WS, WS_Y, 64*56*1024); self.srd(12, P_WOUT, 0, 896*512*2)
        self.srd(16, P_WS, WS_X1, 2*MB); self.srd(24, P_OUT, 0, 2*MB); self.srd(28, P_WS, WS_MOD, 49152)
        XR = 114688; XS = 16384; NCH = 7; NSLOT = 3
        self.proj_wvoff()
        self.proj_addr(True, XR, 0)
        e("v_add_u32 v10, 0x10000, v9")
        self.proj_epi_addr()
        def pre6():
            for m in range(16):
                e(f"s_add_u32 s21, s3, {7*m}"); e("s_lshl_b32 s20, s21, 13"); e("s_lshl_b32 s21, s21, 10")
                self.dma(3, 12, "s20", "s_mov_b32 m0, s21")
        def cY():
            e("s_lshl_b32 s46, s4, 7"); e(f"s_add_u32 s46, s46, {F5}"); e("v_lshlrev_b32 v251, 2, v1")
        self.wait_flags([(cY, 0xff)], pre=pre6, w7_after=False)
        self.stamp(21)
        e(f"s_mul_i32 s6, s4, {2*56*1024}"); e("s_lshl_b32 s21, s3, 10"); e("s_add_u32 s6, s6, s21")
        def issue_x(ch):
            for tt in range(2):
                e(f"s_add_u32 s20, s6, {tt*56*1024 + ch*8*1024}")
                self.dma(2, 8, "s20", f"s_add_u32 m0, s21, {XR + (ch % NSLOT)*XS + tt*8192}")
        issue_x(0); e("s_barrier"); issue_x(1); e("s_barrier"); issue_x(2)
        e("buffer_load_dwordx4 v[32:35], v16, s[16:19], s32 offen")
        self.proj_gate_loads(5)
        ACC = 64
        for r in range(16): e(f"v_mov_b32 v{ACC+r}, 0")
        for ch in range(NCH):
            w = {0: 4 + 9, 1: 2 + 9, 2: 9 + 2}.get(ch, 2*(min(NCH - 1, ch + 1) - ch))
            e(f"s_waitcnt vmcnt({w})")
            e("s_barrier")
            if ch == 0: self.stamp(38)
            if ch >= 1 and ch + 2 < NCH: issue_x(ch + 2)
            wreg, woff = (9, ch*16384) if ch < 3 else (10, ch*16384 - 65536) if ch >= 4 else (9, ch*16384)
            self.proj_chunk(ACC, (ch % NSLOT)*XS, wreg, woff, True)
        self.stamp(39)
        self.proj_epilogue(ACC, 24, "", False)
        self.stamp(22)


HEADER = open('cdna_kernels/' + NAME + '.s.ref').read().split('; Override launch geometry')[0]

def build(stamps=False, hstamp=-1):
    Gen.STAMPS = stamps
    g = Gen()
    endl = "L_exit"
    g.prologue(endl)
    g.p01(); g.p2(); g.p3(); g.p4(); g.p5(); g.p6()
    if stamps and Gen.GSTAMP:
        e = g.e
        sk = g.lab("stst")
        e(f"s_cmp_lg_u32 s3, {Gen.GSTAMP_W}"); e(f"s_cbranch_scc1 {sk}")
        e("s_waitcnt vmcnt(0)")
        g.stamp(23)
        g.srd(8, P_DBG, 0, 0x20000)
        e("s_lshl_b32 s20, s2, 8"); e("s_add_u32 s20, s20, 4096")
        e("v_lshlrev_b32 v4, 2, v1")
        e("buffer_store_dword v255, v4, s[8:11], s20 offen")
        g.a.label(sk)
    elif stamps:
        e = g.e
        sk = g.lab("stst")
        e(f"s_sub_u32 s46, s2, {Gen.STAMP_WG0}"); e("s_cmp_ge_u32 s46, 4"); e(f"s_cbranch_scc1 {sk}")
        e("s_and_b32 s46, s3, 3"); e(f"s_cmp_lg_u32 s46, {Gen.STAMP_W}"); e(f"s_cbranch_scc1 {sk}")
        e("s_waitcnt vmcnt(0)")
        g.stamp(23)
        if hstamp >= 0: e(f"s_branch {sk}")
        g.srd(8, P_DBG, 0, 4096)
        e(f"s_sub_u32 s20, s2, {Gen.STAMP_WG0}"); e("s_lshl_b32 s20, s20, 1"); e("s_lshr_b32 s21, s3, 2"); e("s_add_u32 s20, s20, s21"); e("s_lshl_b32 s20, s20, 8"); e("s_add_u32 s20, s20, 256")
        e("v_lshlrev_b32 v4, 2, v1")
        e("buffer_store_dword v255, v4, s[8:11], s20 offen")
        g.a.label(sk)
    if hstamp >= 0:
        e = g.e
        sk = g.lab("hst")
        e(f"s_cmp_lg_u32 s2, {hstamp}"); e(f"s_cbranch_scc1 {sk}")
        e("s_cmp_lg_u32 s3, 0"); e(f"s_cbranch_scc1 {sk}")
        e("v_lshrrev_b32 v4, 2, v255")
        e("v_lshlrev_b32 v5, 16, v4")
        e("v_mov_b32_dpp v6, v5 row_shl:1 row_mask:0xf bank_mask:0xf")
        e("v_or_b32 v4, v4, v6")
        g.srd(8, P_DBG, 0, 256)
        e("v_lshrrev_b32 v7, 1, v1"); e("v_lshlrev_b32 v7, 2, v7"); e("v_add_u32 v7, 4, v7")
        e("v_and_b32 v8, 1, v1"); e("v_cmp_eq_u32 vcc, 0, v8"); e("v_cmp_gt_u32 s[40:41], 24, v1"); e("s_and_b64 vcc, vcc, s[40:41]")
        e("s_and_saveexec_b64 s[40:41], vcc")
        e("buffer_store_dword v4, v7, s[8:11], 0 offen")
        g.a.label(sk)
    g.a.label(endl)
    g.e("s_endpgm")
    g.a.fix_hazards()
    out = [HEADER, "; @launch grid=(256,1,1) block=(512,1,1) lds=163840\n",
           '.amdgcn_target "amdgcn-amd-amdhsa--gfx950"\n.text\n',
           f".globl {KNAME}\n.p2align 8\n.type {KNAME},@function\n{KNAME}:\n", g.a.text(),
           '.section .rodata,"a"\n', f""".p2align 6
.amdhsa_kernel {KNAME}
  .amdhsa_next_free_vgpr 256
  .amdhsa_next_free_sgpr 102
  .amdhsa_accum_offset 256
  .amdhsa_group_segment_fixed_size 0
  .amdhsa_kernarg_size 104
  .amdhsa_user_sgpr_count 2
  .amdhsa_user_sgpr_kernarg_segment_ptr 1
  .amdhsa_system_sgpr_workgroup_id_x 1
.end_amdhsa_kernel
"""]
    return ''.join(out)

if __name__ == "__main__":
    for k in ("PREFETCH", "STAMP_WG0", "STAMP_W", "CODEPF", "NOHOP", "BALANCE", "ZTOUCH", "GSTAMP", "GSTAMP_W", "ZLOOK", "RPG", "X_NOMFMA", "X_NOREAD", "X_NODMA"):
        if k in os.environ: setattr(Gen, k, int(os.environ[k]))
    txt = build(stamps=(len(sys.argv) > 2), hstamp=int(os.environ.get("HSTAMP", "-1")))
    path = sys.argv[1] if len(sys.argv) > 1 else 'cdna_kernels/' + NAME + '.s'
    open(path, 'w').write(txt)
    print("wrote", path, len(txt), "bytes")
```

```python
import sys, math, os
from asmlib import Asm, vr, sr

NAME = "adaLN_cond__softmax_full_mha__mixer_gmlp__prompt"
KNAME = NAME + "_kernel"
MB = 1 << 20
WS_MOD = 0
WS_ST  = 0x10000
WS_FLAG = 0x60000
WS_STX = 0x70000
WS_MODG = 0xB0000
WS_QK  = 1 * MB
WS_V   = 5 * MB
WS_O   = 7 * MB
WS_X1  = 9 * MB
WS_Z2  = 19 * MB
WS_Y   = 23 * MB
WS_WINP = 27 * MB
F0, F1, F2, F3, F4, F5, FR = 0x0, 0x2000, 0x4000, 0x5000, 0x6000, 0x7000, 0x8000
P_X, P_WQKV, P_WO, P_BX, P_WIN, P_WSP, P_BSP, P_WOUT, P_C, P_WMOD, P_OUT, P_DBG, P_WS = [64 + 2*i for i in range(13)]
LOG2E = 1.4426950408889634
S_QB, S_HEAD, S_NONCE, SRD_F = 57, 58, 59, 60
ST = "sc0 sc1"
SPIN_CAP = 1 << 17

def f2u(x):
    import struct
    return struct.unpack('<I', struct.pack('<f', x))[0]
def fl(x): return f"0x{f2u(x):08x}"

class Gen:
    STAMPS = False
    PREFETCH = True
    STAMP_WG0 = 0
    STAMP_W = 0
    CODEPF = False
    NOHOP = False
    BALANCE = True
    ZTOUCH = False
    ZLOOK = 9
    REPACK = False
    M1 = 3
    M2 = 9
    RPG = 2
    X_NOMFMA = False
    X_NOREAD = False
    X_NODMA = False
    GSTAMP = False
    GSTAMP_W = 0
    def __init__(self):
        self.a = Asm()
        self.nstamp = 0
    def e(self, s): self.a.e(s)
    def lab(self, b): return self.a.newlabel(b)

    def stamp(self, i):
        if not Gen.STAMPS: return
        e = self.e
        sk = self.lab("stamp")
        if Gen.GSTAMP:
            e(f"s_cmp_lg_u32 s3, {Gen.GSTAMP_W}"); e(f"s_cbranch_scc1 {sk}")
            e("s_memtime s[46:47]" if Gen.GSTAMP == 2 else "s_memrealtime s[46:47]"); e("s_waitcnt lgkmcnt(0)")
            e(f"v_writelane_b32 v255, s46, {i}")
            self.a.label(sk)
            return
        e(f"s_sub_u32 s46, s2, {Gen.STAMP_WG0}"); e("s_cmp_ge_u32 s46, 4"); e(f"s_cbranch_scc1 {sk}")
        e("s_and_b32 s46, s3, 3"); e(f"s_cmp_lg_u32 s46, {Gen.STAMP_W}"); e(f"s_cbranch_scc1 {sk}")
        e("s_memtime s[46:47]"); e("s_waitcnt lgkmcnt(0)")
        e("s_sub_u32 s46, s46, s90")
        e(f"v_writelane_b32 v255, s46, {i}")
        self.a.label(sk)

    def srd(self, d, ptr, off, size):
        e = self.e
        if off:
            e(f"s_add_u32 s{d}, s{ptr}, 0x{off:x}"); e(f"s_addc_u32 s{d+1}, s{ptr+1}, 0")
        else:
            e(f"s_mov_b32 s{d}, s{ptr}"); e(f"s_mov_b32 s{d+1}, s{ptr+1}")
        e(f"s_mov_b32 s{d+2}, 0x{size:x}"); e(f"s_mov_b32 s{d+3}, 0x20000")

    def bf16_round(self, d, s):
        self.e(f"v_cvt_pk_bf16_f32 v{d}, v{s}, v{s}")
        self.e(f"v_lshlrev_b32 v{d}, 16, v{d}")

    def dpp_reduce16(self, regs):
        for m in ("quad_perm:[1,0,3,2]", "quad_perm:[2,3,0,1]", "row_half_mirror", "row_mirror"):
            for r in regs:
                self.e(f"v_add_f32_dpp v{r}, v{r}, v{r} {m} row_mask:0xf bank_mask:0xf")

    def dma(self, voff, srd, soff, m0expr, width="dwordx4"):
        self.e(m0expr)
        self.e("s_nop 0")
        self.e(f"buffer_load_{width} v{voff}, {sr(srd,4)}, {soff} offen lds")

    def phase_end(self):
        self.e("s_waitcnt lgkmcnt(0)" if Gen.NOHOP else "s_waitcnt vmcnt(0) lgkmcnt(0)")
        self.e("s_barrier")

    def signal(self, soff_code, nrep=1, rep_stride=0):
        e = self.e
        sk = self.lab("sig")
        e("s_cmp_lg_u32 s3, 7"); e(f"s_cbranch_scc1 {sk}")
        soff_code()
        e(f"v_mov_b32 v250, s{S_NONCE}")
        e(f"v_mul_u32_u24 v251, {max(rep_stride,1)}, v1")
        e(f"s_mov_b64 exec, {(1 << nrep) - 1}")
        e(f"buffer_store_dword v250, v251, s[{SRD_F}:{SRD_F+3}], s46 offen {ST}")
        e("s_mov_b64 exec, -1")
        self.a.label(sk)

    def wait_flags(self, polls, keep=False, pre=None, w7_after=True):
        e = self.e
        sk = self.lab("wf"); p7 = self.lab("wf7")
        e("s_cmp_eq_u32 s3, 7"); e(f"s_cbranch_scc1 {p7}")
        if pre: pre()
        e(f"s_branch {sk}")
        self.a.label(p7)
        for (code, mask) in ([] if (Gen.NOHOP and not keep) else polls):
            code()
            e(f"s_mov_b32 s42, 0x{mask & 0xffffffff:x}"); e(f"s_mov_b32 s43, 0x{mask >> 32:x}")
            e("s_mov_b32 s47, 0")
            lp = self.lab("poll"); dn = self.lab("polled")
            self.a.label(lp)
            e(f"buffer_load_dword v250, v251, s[{SRD_F}:{SRD_F+3}], s46 offen {ST}")
            e("s_add_u32 s47, s47, 1")
            e(f"s_cmp_gt_u32 s47, {SPIN_CAP}")
            e(f"s_cbranch_scc1 {dn}")
            e("s_waitcnt vmcnt(0)")
            e(f"v_cmp_eq_u32 vcc, s{S_NONCE}, v250")
            e("s_and_b64 vcc, vcc, s[42:43]")
            e("s_cmp_eq_u64 vcc, s[42:43]")
            e(f"s_cbranch_scc0 {lp}")
            self.a.label(dn)
        if pre and w7_after: pre()
        self.a.label(sk)
        e("s_barrier")

    def prologue(self, endlab):
        e = self.e
        e("s_cmp_ge_u32 s2, 256"); e(f"s_cbranch_scc1 {endlab}")
        e("s_load_dwordx16 s[64:79], s[0:1], 0")
        e("s_load_dwordx8 s[80:87], s[0:1], 64")
        e("s_load_dwordx2 s[88:89], s[0:1], 96")
        e("v_and_b32 v1, 63, v0")
        e("v_lshrrev_b32 v2, 6, v0")
        e("v_readfirstlane_b32 s3, v2")
        if Gen.STAMPS:
            e("s_memtime s[90:91]"); e("v_mov_b32 v255, 0")
        e("s_and_b32 s20, s2, 7"); e("s_lshr_b32 s21, s2, 3")
        e("s_and_b32 s4, s20, 3"); e("s_lshl_b32 s4, s4, 3"); e("s_and_b32 s22, s21, 7"); e("s_add_u32 s4, s4, s22")
        e("s_lshr_b32 s5, s20, 2"); e("s_lshl_b32 s5, s5, 2"); e("s_lshr_b32 s22, s21, 3"); e("s_add_u32 s5, s5, s22")
        e(f"s_lshl_b32 s{S_HEAD}, s20, 2"); e("s_and_b32 s22, s21, 3"); e(f"s_add_u32 s{S_HEAD}, s{S_HEAD}, s22")
        e(f"s_lshr_b32 s{S_QB}, s21, 2")
        e("s_waitcnt lgkmcnt(0)")
        self.stamp(24)
        self.srd(SRD_F, P_WS, WS_FLAG, 0x10000)
        sk = self.lab("nn")
        e("s_cmp_lg_u32 s3, 7"); e(f"s_cbranch_scc1 {sk}")
        self.srd(8, P_DBG, 0, 256)
        e("v_mov_b32 v251, 0")
        g = self.lab("ng")
        e("s_cmp_lg_u32 s2, 0"); e(f"s_cbranch_scc1 {g}")
        e("s_memrealtime s[46:47]"); e("s_waitcnt lgkmcnt(0)")
        e("s_or_b32 s46, s46, 1")
        e("v_mov_b32 v250, s46")
        e("s_mov_b64 exec, 1")
        e(f"buffer_store_dword v250, v251, s[8:11], 0 offen {ST}")
        e("s_mov_b64 exec, -1")
        self.a.label(g)
        self.a.label(sk)

    def get_nonce(self):
        e = self.e
        sk = self.lab("gn")
        e("s_cmp_lg_u32 s3, 7"); e(f"s_cbranch_scc1 {sk}")
        self.srd(48, P_DBG, 0, 256)
        e("v_mov_b32 v251, 0"); e("s_mov_b32 s47, 0")
        lp = self.lab("gnp"); dn = self.lab("gnd")
        self.a.label(lp)
        e(f"buffer_load_dword v250, v251, s[48:51], 0 offen {ST}")
        e("s_add_u32 s47, s47, 1"); e(f"s_cmp_gt_u32 s47, {SPIN_CAP}"); e(f"s_cbranch_scc1 {dn}")
        e("s_waitcnt vmcnt(0)")
        e(f"v_readfirstlane_b32 s{S_NONCE}, v250")
        e(f"s_cmp_eq_u32 s{S_NONCE}, 0"); e(f"s_cbranch_scc1 {lp}")
        self.a.label(dn)
        e("ds_write_b32 v251, v250")
        e("s_waitcnt lgkmcnt(0)")
        self.a.label(sk)

    def ln_loads(self, srd_x, s_rowoff):
        e = self.e
        e("v_lshrrev_b32 v3, 4, v1"); e("v_and_b32 v4, 15, v1")
        e("s_lshl_b32 s20, s3, 3")
        e("v_add_u32 v5, s20, v3"); e("v_lshlrev_b32 v5, 10, v5"); e("v_lshl_add_u32 v5, v4, 4, v5")
        e(f"s_add_u32 s21, s{s_rowoff}, 4096")
        for a in range(2):
            so = s_rowoff if a == 0 else 21
            for j in range(4):
                b = 32 + 16*a + 4*j
                e(f"buffer_load_dwordx4 v[{b}:{b+3}], v5, {sr(srd_x,4)}, s{so} offen offset:{256*j}")

    def mod_issue(self, srd_mod, first_chunk):
        e = self.e
        e("v_lshlrev_b32 v248, 3, v0")
        for kq in range(4):
            e(f"s_mov_b32 s22, {kq*12288 + first_chunk*2048}")
            e(f"buffer_load_dwordx2 v[{240+2*kq}:{241+2*kq}], v248, {sr(srd_mod,4)}, s22 offen")

    def mod_finish(self, lds_off):
        e = self.e
        e("v_pk_add_f32 v[240:241], v[240:241], v[242:243]"); e("v_pk_add_f32 v[244:245], v[244:245], v[246:247]")
        e("v_pk_add_f32 v[240:241], v[240:241], v[244:245]")
        e("v_cvt_pk_bf16_f32 v242, v240, v241")
        e("v_lshlrev_b32 v240, 16, v242"); e("v_and_b32 v241, 0xffff0000, v242")
        sk = self.lab("mf")
        e("s_cmp_lt_u32 s3, 4"); e(f"s_cbranch_scc1 {sk}")
        e("v_add_f32 v240, 1.0, v240"); e("v_add_f32 v241, 1.0, v241")
        e("v_cvt_pk_bf16_f32 v242, v240, v241")
        e("v_lshlrev_b32 v240, 16, v242"); e("v_and_b32 v241, 0xffff0000, v242")
        self.a.label(sk)
        e("v_and_b32 v242, 255, v0"); e("v_lshlrev_b32 v242, 1, v242")
        e("v_lshrrev_b32 v243, 7, v242"); e("v_lshlrev_b32 v248, 9, v243")
        e("v_bfe_u32 v243, v242, 2, 1"); e("v_lshl_add_u32 v248, v243, 8, v248")
        e("v_bfe_u32 v243, v242, 3, 4"); e("v_lshl_add_u32 v248, v243, 4, v248")
        e("v_and_b32 v243, 3, v242"); e("v_lshl_add_u32 v248, v243, 2, v248")
        e("v_lshrrev_b32 v243, 8, v0"); e("v_lshl_add_u32 v248, v243, 11, v248")
        e(f"v_add_u32 v248, {lds_off}, v248")
        e("ds_write_b64 v248, v[240:241]")

    def ln_stats(self, fillers):
        e = self.e
        X = 128
        it = iter(fillers)
        def fill():
            f = next(it, None)
            if f: f()
        for a in range(2):
            for q in range(16):
                s = 32 + 16*a + q
                e(f"v_lshlrev_b32 v{X+32*a+2*q}, 16, v{s}")
                e(f"v_and_b32 v{X+32*a+2*q+1}, 0xffff0000, v{s}")
            fill()
        A = lambda a, k: 8 + 8*a + 2*k
        for a in range(2):
            for k in range(4):
                e(f"v_pk_add_f32 v[{A(a,k)}:{A(a,k)+1}], v[{X+32*a+4*k}:{X+32*a+4*k+1}], v[{X+32*a+4*k+2}:{X+32*a+4*k+3}]")
        for q in range(8, 16):
            for a in range(2):
                k = q % 4
                e(f"v_pk_add_f32 v[{A(a,k)}:{A(a,k)+1}], v[{A(a,k)}:{A(a,k)+1}], v[{X+32*a+2*q}:{X+32*a+2*q+1}]")
        fill()
        for a in range(2):
            e(f"v_pk_add_f32 v[{A(a,0)}:{A(a,0)+1}], v[{A(a,0)}:{A(a,0)+1}], v[{A(a,1)}:{A(a,1)+1}]")
            e(f"v_pk_add_f32 v[{A(a,2)}:{A(a,2)+1}], v[{A(a,2)}:{A(a,2)+1}], v[{A(a,3)}:{A(a,3)+1}]")
        for a in range(2):
            e(f"v_pk_add_f32 v[{A(a,0)}:{A(a,0)+1}], v[{A(a,0)}:{A(a,0)+1}], v[{A(a,2)}:{A(a,2)+1}]")
        for a in range(2):
            e(f"v_add_f32 v{24+2*a}, v{A(a,0)}, v{A(a,0)+1}")
        self.dpp_reduce16([24, 26])
        for a in range(2):
            e(f"v_mul_f32 v{24+2*a}, {fl(-1.0/512)}, v{24+2*a}")
            e(f"v_mov_b32 v{25+2*a}, v{24+2*a}")
            for r in range(8): e(f"v_mov_b32 v{8+8*a+r}, 0")
        fill()
        for q in range(16):
            for a in range(2):
                r = X + 32*a + 2*q
                e(f"v_pk_add_f32 v[{r}:{r+1}], v[{r}:{r+1}], v[{24+2*a}:{25+2*a}]")
            if q > 0:
                for a in range(2):
                    r = X + 32*a + 2*(q-1); k = (q-1) % 4
                    e(f"v_pk_fma_f32 v[{A(a,k)}:{A(a,k)+1}], v[{r}:{r+1}], v[{r}:{r+1}], v[{A(a,k)}:{A(a,k)+1}]")
            if q % 4 == 3: fill()
        for a in range(2):
            r = X + 32*a + 30; k = 3
            e(f"v_pk_fma_f32 v[{A(a,k)}:{A(a,k)+1}], v[{r}:{r+1}], v[{r}:{r+1}], v[{A(a,k)}:{A(a,k)+1}]")
        for a in range(2):
            e(f"v_pk_add_f32 v[{A(a,0)}:{A(a,0)+1}], v[{A(a,0)}:{A(a,0)+1}], v[{A(a,1)}:{A(a,1)+1}]")
            e(f"v_pk_add_f32 v[{A(a,2)}:{A(a,2)+1}], v[{A(a,2)}:{A(a,2)+1}], v[{A(a,3)}:{A(a,3)+1}]")
        for a in range(2):
            e(f"v_pk_add_f32 v[{A(a,0)}:{A(a,0)+1}], v[{A(a,0)}:{A(a,0)+1}], v[{A(a,2)}:{A(a,2)+1}]")
        for a in range(2):
            e(f"v_add_f32 v{24+a}, v{A(a,0)}, v{A(a,0)+1}")
        self.dpp_reduce16([24, 25])
        for a in range(2):
            e(f"v_mov_b32 v14, {fl(1e-5)}")
            e(f"v_fmac_f32 v14, {fl(1.0/512)}, v{24+a}")
            e(f"v_rsq_f32 v{20+2*a}, v14")
        for a in range(2):
            e(f"v_mov_b32 v{21+2*a}, v{20+2*a}")
        for f in it: f()
        for a in range(2):
            for q in range(16):
                r = X + 32*a + 2*q
                e(f"v_pk_mul_f32 v[{r}:{r+1}], v[{r}:{r+1}], v[{20+2*a}:{21+2*a}]")

    def ln2_prepare(self):
        e = self.e
        X = 128
        for a in range(2):
            e(f"v_mov_b32 v{12+a}, v{8+2*a}")
        self.dpp_reduce16([12, 13])
        for a in range(2):
            e(f"v_mul_f32 v{12+a}, {fl(1.0/16)}, v{12+a}")
            e(f"v_sub_f32 v{14+a}, v{8+2*a}, v{12+a}")
            e(f"v_mul_f32 v{14+a}, v{14+a}, v{14+a}")
            e(f"v_fmac_f32 v{9+2*a}, {fl(32.0)}, v{14+a}")
        self.dpp_reduce16([9, 11])
        for a in range(2):
            e(f"v_mov_b32 v14, {fl(1e-5)}")
            e(f"v_fmac_f32 v14, {fl(1.0/512)}, v{9+2*a}")
            e(f"v_rsq_f32 v{20+4*a}, v14")
        for a in range(2):
            e(f"v_mov_b32 v{21+4*a}, v{20+4*a}")
            e(f"v_mul_f32 v{22+4*a}, v{12+a}, v{20+4*a}"); e(f"v_sub_f32 v{22+4*a}, 0, v{22+4*a}"); e(f"v_mov_b32 v{23+4*a}, v{22+4*a}")
        for a in range(2):
            for q in range(16):
                s_ = 32 + 16*a + q; r = X + 32*a + 2*q
                e(f"v_lshlrev_b32 v{r}, 16, v{s_}"); e(f"v_and_b32 v{r+1}, 0xffff0000, v{s_}")
        for a in range(2):
            for q in range(16):
                r = X + 32*a + 2*q
                e(f"v_pk_fma_f32 v[{r}:{r+1}], v[{r}:{r+1}], v[{20+4*a}:{21+4*a}], v[{22+4*a}:{23+4*a}]")

    def ln_finish(self, lds_mod):
        e = self.e
        X = 128
        e("v_lshrrev_b32 v3, 4, v1"); e("v_and_b32 v4, 15, v1")
        e("v_lshlrev_b32 v6, 4, v4")
        e(f"v_add_u32 v6, {lds_mod}, v6")
        for j in range(4):
            for hh in range(2):
                e(f"ds_read_b128 v[{64+8*j+4*hh}:{67+8*j+4*hh}], v6 offset:{2048 + 512*j + 256*hh}")
                e(f"ds_read_b128 v[{96+8*j+4*hh}:{99+8*j+4*hh}], v6 offset:{512*j + 256*hh}")
        for a in range(2):
            e(f"s_lshl_b32 s20, s3, 3"); e(f"s_add_u32 s20, s20, {4*a}")
            e(f"v_add_u32 v15, s20, v3"); e(f"v_and_b32 v16, 15, v15"); e(f"v_xor_b32 v16, v16, v4")
            e(f"v_lshlrev_b32 v15, 10, v15"); e(f"v_lshl_add_u32 v{18+a}, v16, 4, v15")
        for j in range(4):
            e(f"s_waitcnt lgkmcnt({4*(3-j) + 2*j if False else min(15, 4*(3-j) + 2*j)})" if False else f"s_waitcnt lgkmcnt({4*(3-j)})" if j == 0 else "s_waitcnt lgkmcnt(0)" if j == 1 else "s_nop 0")
            for a in range(2):
                for q in range(4):
                    r = X + 32*a + 8*j + 2*q
                    e(f"v_pk_fma_f32 v[{r}:{r+1}], v[{r}:{r+1}], v[{64+8*j+2*q}:{65+8*j+2*q}], v[{96+8*j+2*q}:{97+8*j+2*q}]")
                pk = 24 + 4*a
                for q in range(4):
                    r = X + 32*a + 8*j + 2*q
                    e(f"v_cvt_pk_bf16_f32 v{pk+q}, v{r}, v{r+1}")
                e(f"ds_write_b128 v{18+a}, v[{pk}:{pk+3}] offset:{256*j}")

    def repack_issue(self):
        e = self.e
        self.srd(48, P_WIN, 0, 512*1792*2)
        e("v_cmp_le_u32 vcc, 224, v0"); e("v_mov_b32 v223, 1"); e("v_cndmask_b32 v226, 0, v223, vcc")
        e("v_mul_u32_u24 v225, 224, v226"); e("v_sub_u32 v225, v0, v225")
        e("s_lshl_b32 s20, s2, 1"); e("v_add_u32 v226, s20, v226")
        e("v_mul_u32_u24 v224, 3584, v226"); e("v_lshl_add_u32 v224, v225, 4, v224")
        e("buffer_load_dwordx4 v[228:231], v224, s[48:51], 0 offen")
        e("v_cmp_le_u32 vcc, 112, v225"); e("v_mov_b32 v223, 112"); e("v_cndmask_b32 v224, 0, v223, vcc"); e("v_sub_u32 v225, v225, v224")
        e("v_mov_b32 v223, 0"); e("v_cndmask_b32 v224, 14, v223, vcc")
        e("v_mul_u32_u24 v227, 4682, v225"); e("v_lshrrev_b32 v227, 16, v227")
        e("v_mul_u32_u24 v223, 14, v227"); e("v_sub_u32 v225, v225, v223"); e("v_add_u32 v225, v225, v224")
        e("v_bfe_u32 v223, v226, 3, 1"); e("v_lshlrev_b32 v223, 1, v223"); e("v_xor_b32 v225, v225, v223")
        e(f"v_mul_u32_u24 v227, {512*448}, v227"); e("v_mul_u32_u24 v223, 448, v226"); e("v_add_u32 v227, v227, v223")
        e("v_lshl_add_u32 v227, v225, 4, v227")

    def repack_store(self):
        e = self.e
        self.srd(48, P_WS, WS_WINP, 8*512*448)
        sk = self.lab("rps")
        e("s_cmp_eq_u32 s3, 7"); e(f"s_cbranch_scc1 {sk}")
        e(f"buffer_store_dwordx4 v[228:231], v227, s[48:51], 0 offen {ST}")
        self.a.label(sk)

    def p01(self):
        e = self.e
        RING = 65536; SL = 12288; D = 7; MODL = RING + D*SL
        MSCR = 155648
        self.srd(8, P_X, 0, 2048*512*2)
        self.srd(12, P_WS, WS_MOD, 49152)
        self.srd(16, P_WQKV, 0, 512*1536*2)
        self.srd(24, P_WS, WS_QK, 4*MB)
        self.srd(28, P_WS, WS_V, 2*MB)
        self.srd(32, P_WMOD, 0, 512*3072*2)
        self.srd(36, P_C, 0, 1024)
        nomod1 = self.lab("nomod")
        e("s_cmp_ge_u32 s2, 192"); e(f"s_cbranch_scc1 {nomod1}")
        e("v_and_b32 v72, 7, v0"); e("v_lshrrev_b32 v73, 3, v0")
        e("v_mul_u32_u24 v74, 6144, v73"); e("v_lshl_add_u32 v74, v72, 4, v74")
        e("v_lshlrev_b32 v75, 1, v73")
        e("s_and_b32 s20, s2, 3"); e("s_lshr_b32 s21, s2, 2")
        e(f"s_mul_i32 s40, s20, {128*6144}"); e("s_lshl_b32 s21, s21, 7"); e("s_add_u32 s40, s40, s21"); e(f"s_add_u32 s41, s40, {64*6144}")
        e("s_lshl_b32 s42, s20, 8")
        e("buffer_load_dwordx4 v[80:83], v74, s[32:35], s40 offen")
        e("buffer_load_dwordx4 v[84:87], v74, s[32:35], s41 offen")
        e("buffer_load_ushort v76, v75, s[36:39], s42 offen")
        e("buffer_load_ushort v77, v75, s[36:39], s42 offen offset:128")
        e("s_barrier")
        self.a.label(nomod1)
        self.get_nonce()
        self.stamp(25)
        e("s_lshl_b32 s6, s4, 16")
        self.ln_loads(8, 6)
        self.stamp(26)
        tk = self.lab("touch")
        e("s_cmp_ge_u32 s3, 3"); e(f"s_cbranch_scc1 {tk}")
        e("s_and_b32 s20, s4, 7"); e("s_lshl_b32 s20, s20, 6")
        e("v_add_u32 v7, s20, v1"); e("v_mul_u32_u24 v7, 3072, v7")
        e("s_lshl_b32 s20, s5, 8"); e("s_lshl_b32 s21, s3, 7"); e("s_add_u32 s20, s20, s21")
        e("s_lshl_b32 s21, s5, 7"); e("s_add_u32 s21, s21, 2048")
        e("s_cmp_eq_u32 s3, 2"); e("s_cselect_b32 s20, s21, s20")
        e("buffer_load_dword v9, v7, s[16:19], s20 offen")
        self.a.label(tk)
        self.stamp(27)
        e("s_and_b32 s7, s3, 3")
        for m in range(3):
            d = 192 + m
            e(f"s_lshl_b32 s20, s7, 6"); e(f"s_add_u32 s20, s20, {256*m}")
            e(f"v_add_u32 v200, s20, v1")
            e(f"v_mul_u32_u24 v201, 2731, v200"); e(f"v_lshrrev_b32 v201, 16, v201")
            e(f"v_mul_u32_u24 v202, 24, v201"); e(f"v_sub_u32 v202, v200, v202")
            e(f"v_bfe_u32 v203, v201, 1, 1"); e(f"v_bfe_u32 v204, v201, 3, 1")
            e(f"v_lshl_or_b32 v203, v204, 1, v203"); e(f"v_lshlrev_b32 v203, 1, v203")
            e(f"v_xor_b32 v202, v202, v203"); e(f"v_lshlrev_b32 v203, 4, v202")
            e(f"s_lshl_b32 s20, s5, 8"); e(f"v_add_u32 v204, s20, v203")
            e(f"s_lshl_b32 s20, s5, 7"); e(f"s_add_u32 s20, s20, {2048-256}"); e(f"v_add_u32 v205, s20, v203")
            e(f"v_cmp_gt_u32 vcc, 16, v202"); e(f"v_cndmask_b32 v204, v205, v204, vcc")
            e(f"v_mul_u32_u24 v201, 3072, v201"); e(f"v_add_u32 v{d}, v201, v204")
        e("s_lshl_b32 s7, s7, 10"); e(f"s_add_u32 s7, s7, {RING}")
        e("s_lshr_b32 s32, s3, 2")
        self.stamp(28)
        nomod2 = self.lab("nomod")
        e("s_cmp_ge_u32 s2, 192"); e(f"s_cbranch_scc1 {nomod2}")
        for j in range(8): e(f"v_mov_b32 v{64+j}, 0")
        e("s_waitcnt vmcnt(8)")
        self.stamp(29)
        for i in range(2):
            c = 76 + i
            e(f"v_lshlrev_b32 v{c}, 16, v{c}")
            e(f"v_mul_f32 v12, {fl(-LOG2E)}, v{c}"); e("v_exp_f32 v12, v12"); e("v_add_f32 v12, 1.0, v12"); e("v_rcp_f32 v12, v12")
            e(f"v_mul_f32 v{c}, v{c}, v12")
            self.bf16_round(c, c)
        for i in range(2):
            for q in range(4):
                w = 80 + 4*i + q
                e(f"v_lshlrev_b32 v12, 16, v{w}"); e(f"v_and_b32 v13, 0xffff0000, v{w}")
                e(f"v_fmac_f32 v{64+2*q}, v{76+i}, v12"); e(f"v_fmac_f32 v{65+2*q}, v{76+i}, v13")
        for j in range(8): e(f"v_add_f32_dpp v{64+j}, v{64+j}, v{64+j} row_ror:8 row_mask:0xf bank_mask:0xf")
        e("v_lshrrev_b32 v12, 4, v0"); e("v_lshlrev_b32 v12, 8, v12"); e("v_lshl_add_u32 v12, v72, 5, v12")
        e(f"v_add_u32 v12, {MSCR}, v12")
        e("v_and_b32 v13, 8, v1"); e("v_cmp_eq_u32 vcc, 0, v13")
        e("s_and_saveexec_b64 s[44:45], vcc")
        e("ds_write_b128 v12, v[64:67]"); e("ds_write_b128 v12, v[68:71] offset:16")
        e("s_mov_b64 exec, s[44:45]")
        e("s_waitcnt lgkmcnt(0)")
        self.stamp(30)
        e("s_barrier")
        mdone = self.lab("mdone")
        e("s_cmp_lg_u32 s3, 7"); e(f"s_cbranch_scc1 {mdone}")
        e("v_lshlrev_b32 v72, 2, v1"); e(f"v_add_u32 v12, {MSCR}, v72")
        for i in range(32): e(f"ds_read_b32 v{80+i}, v12 offset:{256*i}")
        for lo in (0, 16):
            e(f"s_waitcnt lgkmcnt({15 if lo == 0 else 0})")
            if lo == 0: e("s_waitcnt lgkmcnt(15)")
        e("s_waitcnt lgkmcnt(0)")
        for st in (16, 8, 4, 2, 1):
            for i in range(st): e(f"v_add_f32 v{80+i}, v{80+i}, v{80+i+st}")
        e("s_and_b32 s20, s2, 3"); e("s_mul_i32 s20, s20, 12288"); e("s_lshr_b32 s21, s2, 2"); e("s_lshl_b32 s21, s21, 8"); e("s_add_u32 s20, s20, s21")
        ng = self.lab("nogran")
        e("s_cmp_ge_u32 s2, 64"); e(f"s_cbranch_scc1 {ng}")
        self.srd(48, P_WS, WS_MODG, 32768)
        e(f"v_mov_b32 v81, s{S_NONCE}"); e("v_lshlrev_b32 v82, 3, v1")
        e("s_and_b32 s21, s2, 3"); e("s_lshl_b32 s21, s21, 13"); e("s_lshr_b32 s22, s2, 2"); e("s_lshl_b32 s22, s22, 9"); e("s_add_u32 s21, s21, s22")
        e(f"buffer_store_dwordx2 v[80:81], v82, s[48:51], s21 offen {ST}")
        self.a.label(ng)
        e(f"buffer_store_dword v80, v72, s[12:15], s20 offen {ST}")
        e("s_waitcnt vmcnt(0)")
        self.signal(lambda: (e("s_lshl_b32 s46, s2, 2"), e(f"s_add_u32 s46, s46, {F0}")), nrep=8, rep_stride=1024)
        self.a.label(mdone)
        self.a.label(nomod2)
        self.stamp(0)
        e(f"s_mul_i32 s33, s32, {32*3072}")
        e(f"s_mul_i32 s34, s32, {SL}"); e("s_add_u32 s34, s34, s7")
        def issue_pair(pairidx):
            def f():
                e(f"s_add_u32 s23, s33, {2*pairidx*32*3072}")
                for m in range(3):
                    self.dma(192+m, 16, "s23", f"s_add_u32 m0, s34, {2*pairidx*SL + m*4096}")
            return f
        issue_pair(0)()
        e("s_waitcnt vmcnt(3)")
        self.stamp(1)
        nop = lambda: None
        self.ln_stats([nop, nop, issue_pair(1), nop, nop, issue_pair(2)])
        self.stamp(2)
        e("s_barrier")
        e("v_mov_b32 v249, 0"); e("ds_read_b32 v249, v249"); e("s_waitcnt lgkmcnt(0)"); e(f"v_readfirstlane_b32 s{S_NONCE}, v249")
        self.srd(48, P_WS, WS_MODG, 32768)
        e("v_lshlrev_b32 v248, 4, v0")
        e("s_mov_b32 s47, 0")
        mp = self.lab("modp"); md = self.lab("modd")
        self.a.label(mp)
        for kq in range(4):
            e(f"s_mov_b32 s22, {kq*8192}")
            e(f"buffer_load_dwordx4 v[{232+4*kq}:{235+4*kq}], v248, s[48:51], s22 offen sc1")
        e("s_add_u32 s47, s47, 1"); e(f"s_cmp_gt_u32 s47, {SPIN_CAP}"); e(f"s_cbranch_scc1 {md}")
        e("s_waitcnt vmcnt(0)")
        e("s_mov_b64 s[42:43], -1")
        for kq in range(4):
            for k in (1, 3):
                e(f"v_cmp_eq_u32 vcc, s{S_NONCE}, v{232+4*kq+k}"); e("s_and_b64 s[42:43], s[42:43], vcc")
        e("s_cmp_eq_u64 s[42:43], -1"); e(f"s_cbranch_scc0 {mp}")
        self.a.label(md)
        e("s_waitcnt vmcnt(0)")
        self.stamp(3)
        for kq in range(4):
            e(f"v_mov_b32 v{224+2*kq}, v{232+4*kq}"); e(f"v_mov_b32 v{225+2*kq}, v{234+4*kq}")
        for r in range(8): e(f"v_mov_b32 v{240+r}, v{224+r}")
        e("v_lshlrev_b32 v248, 3, v0")
        e("v_lshrrev_b32 v3, 4, v1"); e("v_and_b32 v4, 15, v1")
        e("v_lshrrev_b32 v5, 2, v4"); e("v_and_b32 v6, 3, v4")
        e("v_lshl_add_u32 v7, v3, 3, v5"); e("v_mul_u32_u24 v7, 384, v7"); e("v_lshl_add_u32 v7, v6, 3, v7")
        e(f"v_add_u32 v7, {RING}, v7")
        e("v_bfe_u32 v8, v5, 1, 1"); e("v_and_b32 v9, 1, v3"); e("v_lshl_or_b32 v8, v9, 1, v8")
        e("s_lshr_b32 s20, s3, 1")
        for c in range(3):
            if c < 2: e(f"s_lshl_b32 s21, s20, 1"); e(f"s_add_u32 s21, s21, {c}")
            else: e(f"s_add_u32 s21, s20, 8")
            e("s_lshr_b32 s22, s21, 2"); e("s_lshl_b32 s22, s22, 7"); e("s_and_b32 s21, s21, 3")
            e(f"v_xor_b32 v9, s21, v8"); e(f"v_lshl_add_u32 v{200+c}, v9, 5, v7"); e(f"v_add_u32 v{200+c}, s22, v{200+c}")
            e(f"v_add_u32 v{204+c}, {5*SL}, v{200+c}")
        e("s_and_b32 s21, s3, 1"); e("s_lshl_b32 s21, s21, 5")
        e("v_add_u32 v9, s21, v4"); e("v_lshlrev_b32 v9, 10, v9")
        for m in range(4):
            e(f"v_add_u32 v10, {4*m}, v3"); e(f"v_xor_b32 v10, v10, v4"); e(f"v_lshl_add_u32 v{208+m}, v10, 4, v9")
        self.mod_finish(MODL)
        e("s_waitcnt lgkmcnt(0)")
        e("s_barrier")
        self.ln_finish(MODL)
        ACC = 128
        e("s_waitcnt lgkmcnt(0)")
        e("s_barrier")
        for r in range(24): e(f"v_mov_b32 v{192+8+r}, 0") if False else None
        ACC = 212
        for r in range(24): e(f"v_mov_b32 v{ACC+r}, 0")
        self.stamp(4)
        def reads_list(n):
            buf = n % 2; slot = n % D
            out = []
            for rt in range(2):
                b = 32 + 32*buf + 4*rt
                out.append(f"ds_read_b128 v[{b}:{b+3}], v{208 + (n & 3)} offset:{rt*16384 + (n >> 2)*256}")
            for c in range(3):
                b = 40 + 32*buf + 4*c
                areg, off = (200 + c, slot*SL) if slot < 5 else (204 + c, (slot-5)*SL)
                for t in range(2):
                    out.append(f"ds_read_b64_tr_b16 v[{b+2*t}:{b+2*t+1}], v{areg} offset:{off + 4*t*384}")
            return out
        def mfmas(n):
            buf = n % 2
            for c in range(3):
                for rt in range(2):
                    acc = ACC + 4*(rt*3 + c)
                    x = 32 + 32*buf + 4*rt; w = 40 + 32*buf + 4*c
                    A, B = (w, x) if c < 2 else (x, w)
                    yield f"v_mfma_f32_16x16x32_bf16 v[{acc}:{acc+3}], v[{A}:{A+3}], v[{B}:{B+3}], v[{acc}:{acc+3}]"
        NK = 16
        for r in reads_list(0): e(r)
        for n in range(NK):
            if n + 1 < NK:
                if n + 1 >= 6:
                    hi = min(n + 5, NK - 1)
                    cA = sum(1 for s in range(max(n+2, 6), hi+1) if s % 2 == 0); cB = sum(1 for s in range(max(n+2, 6), hi+1) if s % 2 == 1)
                    e(f"s_waitcnt vmcnt({3*min(cA, cB)})")
                e("s_barrier")
            e("s_waitcnt lgkmcnt(0)")
            ms = list(mfmas(n)); rs = reads_list(n + 1) if n + 1 < NK else []
            ri = 0
            for i, m in enumerate(ms):
                e(m)
                for _ in range(2 if i < 2 else 1):
                    if ri < len(rs): e(rs[ri]); ri += 1
            st = n + D - 1
            if st < NK:
                lsk = self.lab("qkv_sk")
                e(f"s_cmp_lg_u32 s32, {st & 1}"); e(f"s_cbranch_scc1 {lsk}")
                e(f"s_mov_b32 s23, {st*32*3072}")
                for m in range(3): self.dma(192+m, 16, "s23", f"s_add_u32 m0, s7, {(st % D)*SL + m*4096}")
                self.a.label(lsk)
        self.stamp(5)
        e("v_lshlrev_b32 v8, 4, v1")
        e("s_and_b32 s20, s3, 1"); e("s_lshl_b32 s21, s4, 1"); e("s_add_u32 s21, s21, s20"); e("s_lshl_b32 s21, s21, 10")
        e("s_lshr_b32 s20, s3, 1")
        e(f"s_mov_b32 s22, {fl(0.25*LOG2E)}"); e("s_cmp_lt_u32 s5, 4"); e("s_cselect_b32 s22, s22, 1.0")
        for c in range(3):
            if c < 2:
                e("s_lshl_b32 s23, s5, 3"); e("s_lshl_b32 s6, s20, 1"); e("s_add_u32 s23, s23, s6"); e(f"s_add_u32 s23, s23, {c}")
            else:
                e("s_lshl_b32 s23, s5, 2"); e("s_add_u32 s23, s23, s20")
            e("s_lshl_b32 s23, s23, 16"); e("s_add_u32 s23, s23, s21")
            pk = 32 + 4*c
            for rt in range(2):
                acc = ACC + 4*(rt*3 + c)
                if c < 2:
                    for q in range(4): e(f"v_mul_f32 v{acc+q}, s22, v{acc+q}")
                e(f"v_cvt_pk_bf16_f32 v{pk+2*rt}, v{acc}, v{acc+1}"); e(f"v_cvt_pk_bf16_f32 v{pk+2*rt+1}, v{acc+2}, v{acc+3}")
            sw = "v_permlane16_swap_b32" if c < 2 else "v_permlane32_swap_b32"
            e(f"{sw} v{pk}, v{pk+2}"); e(f"{sw} v{pk+1}, v{pk+3}")
            e(f"buffer_store_dwordx4 v[{pk}:{pk+3}], v8, {'s[24:27]' if c < 2 else 's[28:31]'}, s23 offen {ST}")
        self.phase_end()
        self.signal(lambda: (e("s_lshl_b32 s46, s5, 7"), e("s_lshl_b32 s47, s4, 2"), e("s_add_u32 s46, s46, s47"), e(f"s_add_u32 s46, s46, {F1}")),
                    nrep=8, rep_stride=1024)
        if self.REPACK:
            rpi = self.lab("rpi")
            e("s_cmp_eq_u32 s3, 7"); e(f"s_cbranch_scc1 {rpi}")
            self.repack_issue()
            self.a.label(rpi)
        self.stamp(6)

    def l2_prefetch(self, vtmp, vdst):
        e = self.e
        e("s_and_b32 s20, s2, 7"); e("s_lshr_b32 s21, s2, 3")
        e(f"v_lshlrev_b32 v{vtmp}, 7, v1")
        self.srd(48, P_WSP, 0, 2048*2048*2)
        e("s_and_b32 s22, s20, 3"); e("s_lshl_b32 s22, s22, 21"); e("s_lshl_b32 s23, s21, 16"); e("s_add_u32 s22, s22, s23")
        e("s_lshl_b32 s23, s3, 13"); e("s_add_u32 s22, s22, s23")
        e(f"buffer_load_dword v{vdst}, v{vtmp}, s[48:51], s22 offen")
        if self.REPACK:
            self.srd(48, P_WS, WS_WINP, 8*512*448)
            e("s_lshr_b32 s22, s20, 2"); e(f"s_mul_i32 s22, s22, {4*512*448}")
            e(f"s_mul_i32 s23, s21, {224*128}"); e("s_add_u32 s22, s22, s23")
            e("s_lshl_b32 s23, s3, 13"); e("s_add_u32 s22, s22, s23")
            pw4 = self.lab("pf4")
            e("s_cmp_ge_u32 s3, 4"); e(f"s_cbranch_scc1 {pw4}")
            e(f"buffer_load_dword v{vdst+2}, v{vtmp}, s[48:51], s22 offen")
            self.a.label(pw4)
        else:
            self.srd(48, P_WIN, 0, 512*1792*2)
            e(f"v_lshrrev_b32 v{vdst+1}, 5, v1"); e(f"v_bfe_u32 v{vdst+2}, v1, 4, 1")
            e(f"v_and_b32 v{vdst+3}, 15, v1"); e(f"v_min_u32 v{vdst+3}, 7, v{vdst+3}")
            e(f"v_mul_u32_u24 v{vdst+1}, 3584, v{vdst+1}"); e(f"v_mul_u32_u24 v{vdst+2}, 1792, v{vdst+2}")
            e(f"v_add_u32 v{vdst+1}, v{vdst+1}, v{vdst+2}"); e(f"v_lshl_add_u32 v{vdst+1}, v{vdst+3}, 7, v{vdst+1}")
            e("s_lshr_b32 s22, s20, 2"); e("s_mul_i32 s22, s22, 896")
            e("s_lshl_b32 s23, s21, 4"); e("s_lshl_b32 s46, s3, 1"); e("s_add_u32 s23, s23, s46"); e("s_mul_i32 s23, s23, 3584")
            e("s_add_u32 s22, s22, s23")
            e(f"buffer_load_dword v{vdst+2}, v{vdst+1}, s[48:51], s22 offen")
        e(f"v_lshrrev_b32 v{vdst+1}, 2, v1"); e(f"v_and_b32 v{vdst+3}, 3, v1")
        e(f"v_lshlrev_b32 v{vdst+1}, 10, v{vdst+1}"); e(f"v_lshl_add_u32 v{vdst+1}, v{vdst+3}, 7, v{vdst+1}")
        e("s_lshr_b32 s22, s20, 2"); e("s_lshl_b32 s22, s22, 9")
        lw = self.lab("pf_w"); lx = self.lab("pf_x")
        e("s_cmp_ge_u32 s3, 2"); e(f"s_cbranch_scc1 {lw}")
        self.srd(48, P_WOUT, 0, 896*512*2)
        e("s_mul_i32 s23, s21, 28"); e("s_lshl_b32 s46, s3, 4"); e("s_add_u32 s23, s23, s46"); e("s_lshl_b32 s23, s23, 10")
        e("s_add_u32 s22, s22, s23")
        e(f"buffer_load_dword v{vdst+3}, v{vdst+1}, s[48:51], s22 offen")
        e(f"s_branch {lx}")
        self.a.label(lw)
        e("s_cmp_lg_u32 s3, 2"); e(f"s_cbranch_scc1 {lx}")
        self.srd(48, P_WO, 0, 512*512*2)
        e("s_lshl_b32 s23, s21, 14"); e("s_add_u32 s22, s22, s23")
        e(f"buffer_load_dword v{vdst+3}, v{vdst+1}, s[48:51], s22 offen")
        self.a.label(lx)

    def p2(self):
        e = self.e
        end = self.lab("att_end")
        H, QB_ = S_HEAD, S_QB
        self.srd(8, P_WS, WS_QK, 4*MB)
        self.srd(12, P_WS, WS_V, 2*MB)
        self.srd(16, P_WS, WS_O, 2*MB)
        e("s_and_b32 s6, s3, 3"); e("s_lshr_b32 s7, s3, 2")
        e("v_lshlrev_b32 v2, 4, v1")
        QA, QB = 8, 12
        SA, SB = 32, 48
        PA, PB = 64, 72
        OA, OB = 80, 96
        CA, CB = 112, 128
        KF = 144; VF = 152
        AK, AV = 4, 5
        FLAG = 131072 + 20480
        e(f"v_mov_b32 v3, {FLAG}"); e("v_mov_b32 v4, 0"); e("ds_write_b32 v3, v4")
        e("v_and_b32 v6, 31, v1"); e("v_and_b32 v7, 27, v6"); e("v_cmp_eq_u32 vcc, 16, v7")
        e("v_mov_b32 v16, 0x3f803f80"); e("v_cndmask_b32 v16, 0, v16, vcc")
        for r in range(16): e(f"v_mov_b32 v{VF+r}, v16")
        e("v_cmp_gt_u32 s[30:31], 16, v6")
        for r in range(16):
            e(f"v_mov_b32 v{CA+r}, 0"); e(f"v_mov_b32 v{CB+r}, 0")
        e("s_mov_b32 s33, 0")
        def cKV():
            e("s_and_b32 s46, s2, 7"); e("s_lshl_b32 s46, s46, 10"); e(f"s_add_u32 s46, s46, {F1}")
            e(f"s_lshr_b32 s44, s{H}, 3"); e("s_add_u32 s44, s44, 4"); e("s_lshl_b32 s44, s44, 7")
            e(f"s_lshr_b32 s45, s{H}, 2"); e("s_lshl_b32 s45, s45, 7")
            e("v_and_b32 v251, 31, v1"); e("v_lshlrev_b32 v251, 2, v251")
            e("v_mov_b32 v252, s44"); e("v_mov_b32 v253, s45")
            e("v_cmp_gt_u32 vcc, 32, v1"); e("v_cndmask_b32 v252, v253, v252, vcc")
            e("v_add_u32 v251, v251, v252")
        def cQ():
            e("s_and_b32 s46, s2, 7"); e("s_lshl_b32 s46, s46, 10"); e(f"s_add_u32 s46, s46, {F1}")
            e(f"s_lshr_b32 s44, s{H}, 3"); e("s_lshl_b32 s44, s44, 7"); e("s_add_u32 s46, s46, s44")
            e(f"s_lshl_b32 s44, s{QB_}, 4"); e("s_add_u32 s46, s46, s44")
            e("v_lshlrev_b32 v251, 2, v1")
        self.wait_flags([(cKV, (1 << 64) - 1), (cQ, 0xf)])
        self.stamp(7)
        e(f"s_lshl_b32 s20, s{QB_}, 3"); e("s_lshl_b32 s21, s6, 1"); e("s_add_u32 s20, s20, s21"); e("s_lshl_b32 s20, s20, 10")
        e(f"s_lshl_b32 s21, s{H}, 16"); e("s_add_u32 s20, s20, s21")
        e(f"buffer_load_dwordx4 v[{QA}:{QA+3}], v2, s[8:11], s20 offen")
        e(f"buffer_load_dwordx4 v[{QB}:{QB+3}], v2, s[8:11], s20 offen offset:1024")
        e(f"s_lshl_b32 s41, s{H}, 16"); e(f"s_add_u32 s40, s41, {32*65536}"); e("s_lshl_b32 s42, s3, 10")
        e("s_add_u32 s40, s40, s42"); e("s_add_u32 s41, s41, s42")
        def dma_half(half):
            e(f"s_add_u32 s20, s40, {32*half*1024}")
            self.dma(2, 8, "s20", f"s_add_u32 m0, s42, {32*half*1024}")
            e(f"s_add_u32 s20, s41, {32*half*1024}")
            self.dma(2, 12, "s20", f"s_add_u32 m0, s42, {65536 + 32*half*1024}")
        def next_chunk():
            e("s_add_u32 s40, s40, 8192"); e("s_add_u32 s41, s41, 8192"); e("s_add_u32 s42, s42, 8192")
        dma_half(0); dma_half(1); next_chunk()
        lrestart = self.lab("att_restart")
        self.a.label(lrestart)
        for r in range(16):
            e(f"v_mov_b32 v{OA+r}, 0"); e(f"v_mov_b32 v{OB+r}, 0")
        e("s_lshl_b32 s20, s7, 15"); e(f"v_add_u32 v{AK}, s20, v2")
        e("v_lshrrev_b32 v6, 5, v1"); e("v_and_b32 v7, 15, v1"); e("v_lshlrev_b32 v7, 4, v7"); e("v_lshl_add_u32 v7, v6, 8, v7")
        e("s_add_u32 s20, s20, 65536"); e(f"v_add_u32 v{AV}, s20, v7")
        for r in range(8): e(f"v_mov_b32 v{PB+r}, 0")
        if self.BALANCE:
            e("s_lshl_b32 s20, s3, 2"); e(f"s_add_u32 s20, s20, {131072 + 24576}"); e("v_mov_b32 v17, s20")
            e("s_xor_b32 s20, s20, 16"); e("v_mov_b32 v18, s20")
            e("v_mov_b32 v19, 0"); e("ds_write_b32 v17, v19")
        e("s_mov_b64 exec, s[30:31]")
        for r in range(8): e(f"v_mov_b32 v{VF+8+r}, 0")
        e("s_mov_b64 exec, -1")
        def rdK(buf, off): e(f"ds_read_b128 v[{KF+4*buf}:{KF+4*buf+3}], v{AK} offset:{off}")
        def rdV(buf, off):
            e("s_mov_b64 exec, s[30:31]")
            e(f"ds_read_b128 v[{VF+8*buf}:{VF+8*buf+3}], v{AV} offset:{off}")
            e(f"ds_read_b128 v[{VF+8*buf+4}:{VF+8*buf+7}], v{AV} offset:{off+512}")
            e("s_mov_b64 exec, -1")
        def qk(S, C, Q, buf): e(f"v_mfma_f32_32x32x16_bf16 v[{S}:{S+15}], v[{KF+4*buf}:{KF+4*buf+3}], v[{Q}:{Q+3}], v[{C}:{C+15}]")
        def pv(O, P, buf, mf): e(f"v_mfma_f32_32x32x16_bf16 v[{O}:{O+15}], v[{VF+8*buf+4*mf}:{VF+8*buf+4*mf+3}], v[{P+4*mf}:{P+4*mf+3}], v[{O}:{O+15}]")
        def step(S, P, first, mid1, mid2, pre=None, extra=None):
            if pre: pre()
            first()
            k = 0
            for j in range(16):
                e(f"v_exp_f32 v{S+j}, v{S+j}")
                if j >= 3 and j % 2 == 1:
                    e(f"v_cvt_pk_bf16_f32 v{P+k}, v{S+2*k}, v{S+2*k+1}"); k += 1
                if j == self.M1 and mid1: mid1()
                if j == 7 and extra: extra()
                if j == self.M2 and mid2: mid2()
            while k < 8:
                e(f"v_cvt_pk_bf16_f32 v{P+k}, v{S+2*k}, v{S+2*k+1}"); k += 1
        e("s_waitcnt vmcnt(0) lgkmcnt(0)")
        e("s_barrier")
        self.stamp(8)
        if self.REPACK:
            rps = self.lab("att_rps")
            e("s_cmp_lg_u32 s33, 0"); e(f"s_cbranch_scc1 {rps}")
            self.repack_store()
            self.a.label(rps)
        rdK(0, 0); rdV(0, 0)
        e("s_waitcnt lgkmcnt(0)")
        qk(SA, CA, QA, 0)
        e("s_mov_b32 s34, 0")
        loop = self.lab("att_loop")
        self.a.label(loop)
        nb = self.lab("att_nobar")
        e("s_add_u32 s35, s34, s33")
        if self.PREFETCH:
            pf = self.lab("att_pf")
            e(f"s_cmp_lg_u32 s34, {11 if self.REPACK else 4}"); e(f"s_cbranch_scc1 {pf}"); e("s_cmp_lg_u32 s33, 0"); e(f"s_cbranch_scc1 {pf}")
            self.l2_prefetch(170, 172)
            self.a.label(pf)
        if self.REPACK:
            fr = self.lab("att_fr")
            e("s_cmp_lg_u32 s3, 7"); e(f"s_cbranch_scc1 {fr}")
            e("s_cmp_lg_u32 s33, 0"); e(f"s_cbranch_scc1 {fr}")
            e("s_cmp_lg_u32 s34, 10"); e(f"s_cbranch_scc1 {fr}")
            e("s_and_b32 s21, s2, 7"); e("s_lshl_b32 s21, s21, 10"); e(f"s_add_u32 s21, s21, {FR}")
            e("v_lshlrev_b32 v238, 4, v1"); e("s_mov_b32 s47, 0")
            frl = self.lab("att_frl"); frd = self.lab("att_frd")
            self.a.label(frl)
            e(f"buffer_load_dwordx4 v[240:243], v238, s[{SRD_F}:{SRD_F+3}], s21 offen sc1")
            e("s_add_u32 s47, s47, 1"); e(f"s_cmp_gt_u32 s47, {SPIN_CAP}"); e(f"s_cbranch_scc1 {frd}")
            e("s_waitcnt vmcnt(0)")
            e("s_mov_b64 s[36:37], -1")
            for r in range(240, 244):
                e(f"v_cmp_eq_u32 vcc, s{S_NONCE}, v{r}"); e("s_and_b64 s[36:37], s[36:37], vcc")
            e("s_cmp_eq_u64 s[36:37], -1"); e(f"s_cbranch_scc0 {frl}")
            self.a.label(frd)
            e("s_waitcnt vmcnt(0)")
            self.a.label(fr)
        e("s_cmp_lg_u32 s35, 3"); e(f"s_cbranch_scc1 {nb}")
        e("s_waitcnt vmcnt(0)")
        e("s_barrier")
        if self.REPACK: self.signal(lambda: (e("s_lshl_b32 s46, s2, 2"), e(f"s_add_u32 s46, s46, {FR}")), nrep=8, rep_stride=1024)
        self.a.label(nb)
        def extra_dma():
            sk = self.lab("att_nd")
            e("s_cmp_ge_u32 s35, 3"); e(f"s_cbranch_scc1 {sk}")
            dma_half(0); dma_half(1); next_chunk()
            self.a.label(sk)
        step(SA, PA, lambda: qk(SB, CB, QB, 0), lambda: pv(OB, PB, 1, 0), lambda: pv(OB, PB, 1, 1), pre=lambda: rdK(1, 1024), extra=extra_dma)
        def preB0():
            rdV(1, 1024); e("s_waitcnt lgkmcnt(2)")
            if self.BALANCE:
                e("v_mov_b32 v19, s34")
                e("ds_write_b32 v17, v19")
                e("ds_read_b32 v24, v18")
        step(SB, PB, lambda: qk(SA, CA, QA, 1), lambda: pv(OA, PA, 0, 0), lambda: pv(OA, PA, 0, 1), pre=preB0)
        step(SA, PA, lambda: qk(SB, CB, QB, 1), lambda: pv(OB, PB, 0, 0), lambda: pv(OB, PB, 0, 1), pre=lambda: rdK(0, 2048))
        def preB1():
            rdV(0, 2048); e("s_waitcnt lgkmcnt(2)")
            if self.BALANCE:
                hi = self.lab("att_hi"); dn_ = self.lab("att_pd")
                e("v_readfirstlane_b32 s20, v24")
                e("s_cmp_gt_u32 s34, s20"); e(f"s_cbranch_scc0 {hi}")
                e("s_setprio 0"); e(f"s_branch {dn_}")
                self.a.label(hi)
                e("s_setprio 1")
                self.a.label(dn_)
        step(SB, PB, lambda: qk(SA, CA, QA, 0), lambda: pv(OA, PA, 1, 0), lambda: pv(OA, PA, 1, 1), pre=preB1)
        e(f"v_add_u32 v{AK}, 2048, v{AK}"); e(f"v_add_u32 v{AV}, 2048, v{AV}")
        e("s_add_u32 s34, s34, 1"); e("s_cmp_lt_u32 s34, 16"); e(f"s_cbranch_scc1 {loop}")
        if self.BALANCE:
            e("v_mov_b32 v19, 64"); e("ds_write_b32 v17, v19"); e("s_setprio 0")
        self.stamp(9)
        pv(OB, PB, 1, 0); pv(OB, PB, 1, 1)
        SCR = 131072
        e("s_mul_i32 s20, s3, 2560"); e(f"s_add_u32 s20, s20, {SCR}")
        e("v_add_u32 v6, s20, v2"); e("v_lshlrev_b32 v7, 2, v1"); e("v_add_u32 v7, s20, v7")
        lk1 = self.lab("att_k1"); lx = self.lab("att_x")
        e("s_cmp_eq_u32 s7, 0"); e(f"s_cbranch_scc1 {lk1}")
        e(f"ds_write_b128 v6, v[{OA}:{OA+3}]"); e(f"ds_write_b128 v6, v[{OA+4}:{OA+7}] offset:1024"); e(f"ds_write_b32 v7, v{OA+8} offset:2048")
        for r in range(9): e(f"v_mov_b32 v{OA+r}, v{OB+r}")
        e(f"s_branch {lx}")
        self.a.label(lk1)
        e(f"ds_write_b128 v6, v[{OB}:{OB+3}]"); e(f"ds_write_b128 v6, v[{OB+4}:{OB+7}] offset:1024"); e(f"ds_write_b32 v7, v{OB+8} offset:2048")
        self.a.label(lx)
        e("s_xor_b32 s21, s3, 4"); e("s_mul_i32 s21, s21, 2560"); e(f"s_add_u32 s21, s21, {SCR}")
        e("v_add_u32 v6, s21, v2"); e("v_lshlrev_b32 v7, 2, v1"); e("v_add_u32 v7, s21, v7")
        e("s_waitcnt lgkmcnt(0)"); e("s_barrier")
        e(f"ds_read_b128 v[{SA}:{SA+3}], v6"); e(f"ds_read_b128 v[{SA+4}:{SA+7}], v6 offset:1024"); e(f"ds_read_b32 v{SA+8}, v7 offset:2048")
        e(f"v_mov_b32 v20, {fl(2.0**-24)}"); e(f"v_mov_b32 v21, {fl(2.0**40)}"); e(f"v_mov_b32 v22, 0x7f7fffff")
        e("s_waitcnt lgkmcnt(0)")
        for r in range(9): e(f"v_add_f32 v{OA+r}, v{OA+r}, v{SA+r}")
        e(f"v_max3_f32 v23, |v{OA}|, |v{OA+1}|, |v{OA+2}|"); e(f"v_max3_f32 v23, v23, |v{OA+3}|, |v{OA+4}|")
        e(f"v_max3_f32 v23, v23, |v{OA+5}|, |v{OA+6}|"); e(f"v_max_f32 v23, v23, |v{OA+7}|")
        e(f"v_cmp_ge_f32 vcc, v{OA+8}, v20"); e(f"v_cmp_le_f32 s[36:37], v{OA+8}, v21"); e(f"v_cmp_le_f32 s[38:39], v23, v22")
        e("s_and_b64 s[36:37], s[36:37], vcc"); e("s_and_b64 s[36:37], s[36:37], s[38:39]")
        lok = self.lab("att_ok")
        e("s_cmp_eq_u64 s[36:37], -1"); e(f"s_cbranch_scc1 {lok}")
        e(f"v_mov_b32 v3, {FLAG}"); e("v_mov_b32 v20, 1"); e("ds_write_b32 v3, v20"); e("s_waitcnt lgkmcnt(0)")
        self.a.label(lok)
        e(f"v_rcp_f32 v20, v{OA+8}")
        for r in range(8): e(f"v_mul_f32 v{OA+r}, v{OA+r}, v20")
        for q in range(4): e(f"v_cvt_pk_bf16_f32 v{SB+q}, v{OA+2*q}, v{OA+2*q+1}")
        e("s_barrier")
        e(f"v_mov_b32 v3, {FLAG}"); e("ds_read_b32 v20, v3")
        e(f"s_lshl_b32 s20, s{QB_}, 3"); e("s_lshl_b32 s21, s6, 1"); e("s_add_u32 s20, s20, s21"); e("s_add_u32 s20, s20, s7")
        e("s_lshl_b32 s20, s20, 15"); e(f"s_lshl_b32 s21, s{H}, 10"); e("s_add_u32 s22, s20, s21")
        e("s_waitcnt lgkmcnt(0)")
        e("v_readfirstlane_b32 s20, v20")
        lfin = self.lab("att_fin"); lslow = self.lab("att_slow")
        e("s_cmp_lg_u32 s33, 0"); e(f"s_cbranch_scc1 {lfin}")
        e("s_cmp_lg_u32 s20, 0"); e(f"s_cbranch_scc1 {lslow}")
        self.a.label(lfin)
        e(f"buffer_store_dwordx4 v[{SB}:{SB+3}], v2, s[16:19], s22 offen {ST}")
        e(f"s_branch {end}")
        self.a.label(lslow)
        e("s_mov_b32 s33, 8")
        e("s_lshl_b32 s20, s7, 15"); e(f"v_add_u32 v{AK}, s20, v2")
        e("v_mov_b32 v20, 0xff800000"); e("v_mov_b32 v21, 0xff800000")
        e("s_mov_b32 s34, 0")
        sl = self.lab("att_sl")
        self.a.label(sl)
        rdK(0, 0); e("s_waitcnt lgkmcnt(0)")
        e(f"v_mfma_f32_32x32x16_bf16 v[{SA}:{SA+15}], v[{KF}:{KF+3}], v[{QA}:{QA+3}], 0")
        e(f"v_mfma_f32_32x32x16_bf16 v[{SB}:{SB+15}], v[{KF}:{KF+3}], v[{QB}:{QB+3}], 0")
        for r in range(0, 16, 2): e(f"v_max3_f32 v20, v20, v{SA+r}, v{SA+r+1}")
        for r in range(0, 16, 2): e(f"v_max3_f32 v21, v21, v{SB+r}, v{SB+r+1}")
        e(f"v_add_u32 v{AK}, 1024, v{AK}")
        e("s_add_u32 s34, s34, 1"); e("s_cmp_lt_u32 s34, 32"); e(f"s_cbranch_scc1 {sl}")
        for r in (20, 21):
            e(f"v_mov_b32 v22, v{r}"); e(f"v_permlane32_swap_b32 v{r}, v22"); e(f"v_max_f32 v{r}, v{r}, v22")
        e("s_lshl_b32 s20, s3, 9"); e(f"s_add_u32 s20, s20, {SCR}")
        e("v_lshlrev_b32 v6, 2, v1"); e("v_add_u32 v7, s20, v6")
        e("s_barrier")
        e("ds_write_b32 v7, v20"); e("ds_write_b32 v7, v21 offset:256"); e("s_waitcnt lgkmcnt(0)"); e("s_barrier")
        e("s_xor_b32 s20, s3, 4"); e("s_lshl_b32 s20, s20, 9"); e(f"s_add_u32 s20, s20, {SCR}"); e("v_add_u32 v7, s20, v6")
        e("ds_read_b32 v22, v7"); e("ds_read_b32 v23, v7 offset:256"); e("s_waitcnt lgkmcnt(0)")
        e("v_max_f32 v20, v20, v22"); e("v_max_f32 v21, v21, v23")
        for r in range(16):
            e(f"v_sub_f32 v{CA+r}, 0, v20"); e(f"v_sub_f32 v{CB+r}, 0, v21")
        e("s_barrier")
        e(f"s_branch {lrestart}")
        self.a.label(end)
        self.phase_end()
        self.signal(lambda: (e(f"s_lshl_b32 s46, s{QB_}, 7"), e(f"s_lshl_b32 s47, s{H}, 2"), e("s_add_u32 s46, s46, s47"), e(f"s_add_u32 s46, s46, {F2}")))
        self.stamp(10)

    def proj_wvoff(self):
        e = self.e
        e("v_lshlrev_b32 v2, 4, v1")
        e("v_lshrrev_b32 v3, 3, v1"); e("v_and_b32 v4, 7, v1"); e("v_bfe_u32 v5, v3, 1, 1"); e("v_lshlrev_b32 v5, 2, v5")
        e("v_xor_b32 v4, v4, v5"); e("v_lshlrev_b32 v3, 10, v3"); e("v_lshl_add_u32 v3, v4, 4, v3")
        e("s_lshl_b32 s20, s5, 7"); e("v_add_u32 v3, s20, v3")

    def proj_epi_addr(self):
        e = self.e
        e("v_lshrrev_b32 v14, 2, v1"); e("v_and_b32 v15, 3, v1")
        e("s_and_b32 s20, s3, 1"); e("s_lshl_b32 s20, s20, 5"); e("s_lshl_b32 s21, s4, 6"); e("s_add_u32 s20, s20, s21")
        e("s_lshr_b32 s21, s3, 2"); e("s_lshl_b32 s21, s21, 4"); e("s_add_u32 s36, s20, s21")
        e("v_add_u32 v16, s36, v14"); e("v_lshlrev_b32 v16, 10, v16"); e("v_lshl_add_u32 v16, v15, 4, v16")
        e("s_bfe_u32 s20, s3, 0x10001"); e("s_lshl_b32 s20, s20, 6"); e("s_lshl_b32 s21, s5, 7"); e("s_add_u32 s32, s20, s21")
        e("v_lshlrev_b32 v17, 5, v15"); e("s_lshl_b32 s33, s32, 1")

    def proj_gate_loads(self, gate_chunk):
        e = self.e
        for kq in range(4):
            e(f"s_add_u32 s20, s33, {kq*12288 + gate_chunk*2048}")
            for hh in range(2):
                e(f"buffer_load_dwordx4 v[{160+8*kq+4*hh}:{163+8*kq+4*hh}], v17, s[28:31], s20 offen offset:{16*hh}")

    def proj_addr(self, natural, xbase, wbase):
        e = self.e
        e("s_and_b32 s20, s3, 1"); e("s_lshl_b32 s20, s20, 13"); e("s_lshr_b32 s21, s3, 2"); e("s_lshl_b32 s22, s21, 12")
        e("s_add_u32 s20, s20, s22"); e(f"s_add_u32 s20, s20, {xbase}"); e("v_add_u32 v8, s20, v2")
        e("v_lshrrev_b32 v4, 4, v1"); e("v_and_b32 v5, 15, v1"); e("v_lshrrev_b32 v6, 2, v5"); e("v_and_b32 v7, 3, v5")
        e("v_lshrrev_b32 v10, 1, v4"); e("v_and_b32 v11, 1, v4")
        e(f"v_lshl_add_u32 v12, v10, {3 if natural else 2}, v6"); e("v_lshlrev_b32 v12, 7, v12")
        e("v_bfe_u32 v13, v6, 1, 1"); e("s_bfe_u32 s20, s3, 0x10001"); e("v_xor_b32 v13, s20, v13")
        e("v_lshl_add_u32 v12, v13, 6, v12"); e("v_lshl_add_u32 v12, v11, 5, v12"); e("v_lshl_add_u32 v12, v7, 3, v12")
        e("s_lshl_b32 s22, s21, 13"); e(f"s_add_u32 s22, s22, {wbase}"); e("v_add_u32 v9, s22, v12")

    def proj_chunk(self, ACC, xoff, wreg, woff, natural):
        e = self.e
        tstep = (4 if natural else 8) * 128
        for ks in range(4):
            b = 96 + 8*ks
            e(f"ds_read_b128 v[{b}:{b+3}], v8 offset:{xoff + ks*1024}")
            e(f"ds_read_b64_tr_b16 v[{b+4}:{b+5}], v{wreg} offset:{woff + ks*2048}")
            e(f"ds_read_b64_tr_b16 v[{b+6}:{b+7}], v{wreg} offset:{woff + ks*2048 + tstep}")
        for ks in range(4):
            b = 96 + 8*ks
            e(f"s_waitcnt lgkmcnt({3*(3-ks)})")
            e(f"v_mfma_f32_32x32x16_bf16 v[{ACC}:{ACC+15}], v[{b+4}:{b+7}], v[{b}:{b+3}], v[{ACC}:{ACC+15}]")

    def proj_epilogue(self, ACC, srd_out, flags, stats):
        e = self.e
        e("s_barrier")
        e("s_mul_i32 s20, s3, 4608")
        e("v_and_b32 v18, 31, v1"); e("v_mul_u32_u24 v18, 144, v18"); e("v_lshrrev_b32 v19, 5, v1")
        e("v_lshl_add_u32 v18, v19, 4, v18"); e("v_add_u32 v18, s20, v18")
        for g in range(4): e(f"ds_write_b128 v18, v[{ACC+4*g}:{ACC+4*g+3}] offset:{32*g}")
        e("s_waitcnt vmcnt(0)")
        for q in range(4):
            for kq in (1,):
                e(f"v_pk_add_f32 v[{160+2*q}:{161+2*q}], v[{160+2*q}:{161+2*q}], v[{168+2*q}:{169+2*q}]")
                e(f"v_pk_add_f32 v[{176+2*q}:{177+2*q}], v[{176+2*q}:{177+2*q}], v[{184+2*q}:{185+2*q}]")
        for q in range(4):
            e(f"v_pk_add_f32 v[{160+2*q}:{161+2*q}], v[{160+2*q}:{161+2*q}], v[{176+2*q}:{177+2*q}]")
        for q in range(4):
            e(f"v_cvt_pk_bf16_f32 v{168+q}, v{160+2*q}, v{161+2*q}")
        for q in range(4):
            e(f"v_lshlrev_b32 v{160+2*q}, 16, v{168+q}"); e(f"v_and_b32 v{161+2*q}, 0xffff0000, v{168+q}")
        e("s_and_b32 s20, s3, 3"); e("s_mul_i32 s20, s20, 4608"); e("s_lshr_b32 s21, s3, 2"); e(f"s_mul_i32 s21, s21, {16*144}")
        e("s_add_u32 s20, s20, s21")
        e("v_mul_u32_u24 v18, 144, v14"); e("v_lshl_add_u32 v18, v15, 5, v18"); e("v_add_u32 v18, s20, v18")
        e("s_waitcnt lgkmcnt(0)"); e("s_barrier")
        e("ds_read_b128 v[48:51], v18"); e("ds_read_b128 v[52:55], v18 offset:16")
        e(f"ds_read_b128 v[56:59], v18 offset:{4*4608}"); e(f"ds_read_b128 v[60:63], v18 offset:{4*4608+16}")
        e("s_waitcnt lgkmcnt(0)")
        for q in range(4):
            e(f"v_pk_add_f32 v[{48+2*q}:{49+2*q}], v[{48+2*q}:{49+2*q}], v[{56+2*q}:{57+2*q}]")
        for q in range(4):
            e(f"v_lshlrev_b32 v{56+2*q}, 16, v{32+q}"); e(f"v_and_b32 v{57+2*q}, 0xffff0000, v{32+q}")
        for q in range(4):
            e(f"v_pk_fma_f32 v[{56+2*q}:{57+2*q}], v[{160+2*q}:{161+2*q}], v[{48+2*q}:{49+2*q}], v[{56+2*q}:{57+2*q}]")
        for q in range(4):
            e(f"v_cvt_pk_bf16_f32 v{32+q}, v{56+2*q}, v{57+2*q}")
        e(f"buffer_store_dwordx4 v[32:35], v16, {sr(srd_out,4)}, s32 offen {flags}")
        if stats:
            e("v_pk_add_f32 v[48:49], v[56:57], v[58:59]"); e("v_pk_add_f32 v[50:51], v[60:61], v[62:63]")
            e("v_pk_add_f32 v[48:49], v[48:49], v[50:51]"); e("v_add_f32 v48, v48, v49")
            for m in ("quad_perm:[1,0,3,2]", "quad_perm:[2,3,0,1]"):
                e(f"v_add_f32_dpp v48, v48, v48 {m} row_mask:0xf bank_mask:0xf")
            e(f"v_mul_f32 v48, {fl(1.0/32)}, v48")
            e("v_sub_f32 v50, 0, v48"); e("v_mov_b32 v51, v50")
            for q in range(4): e(f"v_pk_add_f32 v[{56+2*q}:{57+2*q}], v[{56+2*q}:{57+2*q}], v[50:51]")
            e("v_pk_mul_f32 v[52:53], v[56:57], v[56:57]")
            for q in range(1, 4): e(f"v_pk_fma_f32 v[52:53], v[{56+2*q}:{57+2*q}], v[{56+2*q}:{57+2*q}], v[52:53]")
            e("v_add_f32 v49, v52, v53")
            for m in ("quad_perm:[1,0,3,2]", "quad_perm:[2,3,0,1]"):
                e(f"v_add_f32_dpp v49, v49, v49 {m} row_mask:0xf bank_mask:0xf")
            self.srd(40, P_WS, WS_STX, 2048*128)
            e("v_add_u32 v18, s36, v14"); e("v_lshlrev_b32 v18, 7, v18")
            e("s_bfe_u32 s20, s3, 0x10001"); e("s_lshl_b32 s21, s5, 1"); e("s_add_u32 s20, s20, s21"); e("s_lshl_b32 s20, s20, 3")
            e("v_cmp_eq_u32 vcc, 0, v15"); e("s_and_saveexec_b64 s[44:45], vcc")
            e(f"buffer_store_dwordx2 v[48:49], v18, s[40:43], s20 offen {ST}")
            e("s_mov_b64 exec, s[44:45]")

    def p3(self):
        e = self.e
        self.srd(8, P_WS, WS_O, 2*MB); self.srd(12, P_WO, 0, 512*512*2)
        self.srd(16, P_X, 0, 2*MB); self.srd(24, P_WS, WS_X1, 2*MB); self.srd(28, P_WS, WS_MOD, 49152)
        self.proj_wvoff()
        self.proj_addr(False, 65536, 0)
        self.proj_epi_addr()
        def pre3():
            for m in range(10):
                sk = None
                if m == 9:
                    sk = self.lab("p3w"); e("s_cmp_lg_u32 s3, 0"); e(f"s_cbranch_scc1 {sk}")
                e(f"s_add_u32 s21, s3, {7*m}"); e("s_lshl_b32 s20, s21, 13"); e("s_lshl_b32 s21, s21, 10")
                self.dma(3, 12, "s20", "s_mov_b32 m0, s21")
                if sk: self.a.label(sk)
        def cO():
            e("s_lshr_b32 s46, s4, 2"); e("s_lshl_b32 s46, s46, 7"); e(f"s_add_u32 s46, s46, {F2}"); e("v_lshlrev_b32 v251, 2, v1")
        def cM(k):
            def f():
                e("s_and_b32 s46, s2, 7"); e("s_lshl_b32 s46, s46, 10"); e(f"s_add_u32 s46, s46, {F0 + 256*k}"); e("v_lshlrev_b32 v251, 2, v1")
            return f
        self.wait_flags([(cM(1), (1 << 64) - 1), (cM(2), (1 << 64) - 1), (cO, 0xffffffff)], pre=pre3, w7_after=False)
        self.stamp(11)
        e(f"s_mul_i32 s6, s4, {2*32*1024}"); e("s_lshl_b32 s21, s3, 10"); e("s_add_u32 s6, s6, s21")
        for c in range(4):
            for tt in range(2):
                e(f"s_add_u32 s20, s6, {tt*32*1024 + c*8*1024}")
                self.dma(2, 8, "s20", f"s_add_u32 m0, s21, {65536 + c*16384 + tt*8192}")
            if c < 3: e("s_barrier")
        e("buffer_load_dwordx4 v[32:35], v16, s[16:19], s32 offen")
        self.proj_gate_loads(2)
        ACC = 64
        for r in range(16): e(f"v_mov_b32 v{ACC+r}, 0")
        for c in range(4):
            e(f"s_waitcnt vmcnt({2*(3-c) + 9})"); e("s_barrier")
            if c == 0: self.stamp(35)
            self.proj_chunk(ACC, c*16384, 9, c*16384, False)
        self.stamp(36)
        self.proj_epilogue(ACC, 24, ST, True)
        self.stamp(37)
        self.phase_end()
        self.signal(lambda: (e("s_lshl_b32 s46, s4, 7"), e("s_lshl_b32 s47, s5, 2"), e("s_add_u32 s46, s46, s47"), e(f"s_add_u32 s46, s46, {F3}")))
        self.stamp(12)

    def p4(self):
        e = self.e
        RING = 65536; SL = 14336; D = 6; MODL = RING + D*SL
        PART = 155648
        Z1L = 135168
        self.srd(8, P_WS, WS_X1, 2*MB)
        self.srd(12, P_WS, WS_MOD, 49152)
        if self.REPACK: self.srd(16, P_WS, WS_WINP, 8*512*448)
        else: self.srd(16, P_WIN, 0, 512*1792*2)
        self.srd(28, P_WS, WS_Z2, 56*64*1024)
        self.srd(36, P_WS, WS_ST, 32*8*64*16)
        if self.REPACK:
            e("v_lshlrev_b32 v192, 4, v1")
            e("s_lshl_b32 s7, s3, 10"); e(f"s_add_u32 s7, s7, {RING}")
            e(f"s_mul_i32 s33, s5, {512*448}"); e("s_lshl_b32 s20, s3, 10"); e("s_add_u32 s33, s33, s20")
            e("s_cmp_ge_u32 s3, 6"); e("s_cselect_b32 s35, 0, 8192")
            e("s_add_u32 s34, s33, s35"); e("s_add_u32 s35, s35, s7")
        else:
            for m in range(2):
                d = 192 + m
                e(f"s_lshl_b32 s20, s3, 6"); e(f"s_add_u32 s20, s20, {512*m}")
                e(f"v_add_u32 v200, s20, v1")
                e(f"v_mul_u32_u24 v201, 2341, v200"); e(f"v_lshrrev_b32 v201, 16, v201")
                e(f"v_mul_u32_u24 v202, 28, v201"); e(f"v_sub_u32 v202, v200, v202")
                e(f"v_bfe_u32 v203, v201, 3, 1"); e(f"v_lshlrev_b32 v203, 1, v203"); e(f"v_xor_b32 v202, v202, v203")
                e(f"v_lshlrev_b32 v203, 4, v202")
                e(f"s_mul_i32 s20, s5, 224"); e(f"s_add_u32 s21, s20, 1792"); e(f"v_add_u32 v204, s21, v203")
                e(f"s_sub_u32 s21, s20, 224"); e(f"v_add_u32 v205, s21, v203")
                e(f"v_cmp_gt_u32 vcc, 14, v202"); e(f"v_cndmask_b32 v204, v205, v204, vcc")
                e(f"v_mul_u32_u24 v201, 3584, v201"); e(f"v_add_u32 v{d}, v201, v204")
            e("s_lshl_b32 s7, s3, 10"); e(f"s_add_u32 s7, s7, {RING}")
            e("s_cmp_ge_u32 s3, 6"); e("s_cselect_b64 vcc, -1, 0"); e("v_cndmask_b32 v194, v193, v192, vcc")
            e("s_cselect_b32 s35, 0, 8192"); e("s_add_u32 s35, s35, s7")
        def issue(stage, cnt):
            if self.REPACK:
                for m in range(cnt):
                    e(f"s_add_u32 s23, s33, {stage*14336 + m*8192}")
                    self.dma(192, 16, "s23", f"s_add_u32 m0, s7, {(stage % D)*SL + m*8192}")
            else:
                e(f"s_mov_b32 s23, {stage*32*3584}")
                for m in range(cnt):
                    self.dma(192+m, 16, "s23", f"s_add_u32 m0, s7, {(stage % D)*SL + m*8192}")
        def pre4():
            self.mod_issue(12, 3)
            for st in range(D-1):
                if self.REPACK:
                    e(f"s_add_u32 s23, s33, {st*14336}")
                    self.dma(192, 16, "s23", f"s_add_u32 m0, s7, {st*SL}")
                    e(f"s_add_u32 s23, s34, {st*14336}")
                    self.dma(192, 16, "s23", f"s_add_u32 m0, s35, {st*SL}")
                else:
                    e(f"s_mov_b32 s23, {st*32*3584}")
                    self.dma(192, 16, "s23", f"s_add_u32 m0, s7, {st*SL}")
                    self.dma(194, 16, "s23", f"s_add_u32 m0, s35, {st*SL}")
            e(f"s_waitcnt vmcnt({2*(D-1)})")
            self.mod_finish(MODL)
        e("v_lshrrev_b32 v3, 4, v1"); e("v_and_b32 v4, 15, v1"); e("v_lshrrev_b32 v5, 2, v4"); e("v_and_b32 v6, 3, v4")
        e("v_lshl_add_u32 v7, v3, 3, v5"); e("v_mul_u32_u24 v7, 448, v7"); e("v_lshl_add_u32 v7, v6, 3, v7"); e(f"v_add_u32 v7, {RING}, v7")
        e("v_and_b32 v8, 1, v3"); e("v_lshlrev_b32 v8, 5, v8")
        e("v_add_u32 v200, v7, v8"); e("v_sub_u32 v201, v7, v8")
        e(f"v_add_u32 v202, {4*SL}, v200"); e(f"v_add_u32 v203, {4*SL}, v201")
        e("s_and_b32 s21, s3, 1"); e("s_lshl_b32 s21, s21, 5"); e("v_add_u32 v9, s21, v4"); e("v_lshlrev_b32 v9, 10, v9")
        for m in range(4):
            e(f"v_add_u32 v10, {4*m}, v3"); e(f"v_xor_b32 v10, v10, v4"); e(f"v_lshl_add_u32 v{208+m}, v10, 4, v9")
        e(f"v_mov_b32 v5, {PART + 2048}"); e("v_mov_b32 v6, 0"); e("ds_write_b32 v5, v6")
        def cX():
            e("s_lshl_b32 s46, s4, 7"); e(f"s_add_u32 s46, s46, {F3}"); e("v_lshlrev_b32 v251, 2, v1")
        self.wait_flags([(cX, 0xff)], pre=lambda: (pre4(), e("s_waitcnt lgkmcnt(0)")))
        self.stamp(13)
        e("s_lshl_b32 s6, s4, 16")
        self.ln_loads(8, 6)
        self.srd(40, P_WS, WS_STX, 2048*128)
        e("s_lshl_b32 s20, s4, 6"); e("s_lshl_b32 s21, s3, 3"); e("s_add_u32 s20, s20, s21"); e("s_lshl_b32 s20, s20, 7")
        e("v_lshlrev_b32 v6, 7, v3"); e("v_lshl_add_u32 v6, v4, 3, v6")
        e("buffer_load_dwordx2 v[8:9], v6, s[40:43], s20 offen")
        e("buffer_load_dwordx2 v[10:11], v6, s[40:43], s20 offen offset:512")
        e("s_waitcnt vmcnt(0)")
        self.stamp(14)
        self.ln2_prepare()
        e("s_barrier")
        self.ln_finish(MODL)
        ACC = 212
        for r in range(32): e(f"v_mov_b32 v{ACC+r}, 0")
        e("s_waitcnt lgkmcnt(0)"); e("s_barrier")
        self.stamp(15)
        NK = 16
        c0 = -2.0*math.sqrt(2.0/math.pi)*LOG2E
        c1 = c0*0.044715
        variants = [self.lab("win_v") for _ in range(4)]
        join = self.lab("win_join")
        e("s_lshr_b32 s20, s3, 1")
        for cg in (1, 2, 3):
            e(f"s_cmp_eq_u32 s20, {cg}"); e(f"s_cbranch_scc1 {variants[cg]}")
        for cg in range(4):
            self.a.label(variants[cg])
            z2 = cg < 2
            nt = (4, 3, 3, 4)[cg]
            t0 = (0, 4, 4, 0)[cg]
            sg0 = (0 if z2 else 7) + t0
            cnt = 1 if cg == 3 else 2
            def reads(n):
                buf = n % 2; slot = n % D
                out = []
                for rt in range(2):
                    b = 32 + 32*buf + 4*rt
                    out.append(f"ds_read_b128 v[{b}:{b+3}], v{208 + (n & 3)} offset:{rt*16384 + (n >> 2)*256}")
                for c in range(nt):
                    sg = sg0 + c
                    b = 40 + 32*buf + 4*c
                    areg, off = (200 + (sg & 1), slot*SL) if slot < 4 else (202 + (sg & 1), (slot-4)*SL)
                    for t in range(2):
                        out.append(f"ds_read_b64_tr_b16 v[{b+2*t}:{b+2*t+1}], v{areg} offset:{off + 4*t*448 + sg*32}")
                return out
            for r in reads(0): e(r)
            for n in range(NK):
                if n + 1 < NK:
                    if n + 1 >= D - 1:
                        allowed = cnt * len([s for s in range(max(n+2, D-1), min(n+D-1, NK))])
                        e(f"s_waitcnt vmcnt({allowed})")
                    e("s_barrier")
                e("s_waitcnt lgkmcnt(0)")
                buf = n % 2
                ms = []
                for c in range(nt):
                    for rt in range(2):
                        acc = ACC + 4*(rt*4 + c)
                        x = 32 + 32*buf + 4*rt; w = 40 + 32*buf + 4*c
                        A, B = (x, w) if z2 else (w, x)
                        ms.append(f"v_mfma_f32_16x16x32_bf16 v[{acc}:{acc+3}], v[{A}:{A+3}], v[{B}:{B+3}], v[{acc}:{acc+3}]")
                rs = reads(n + 1) if n + 1 < NK else []
                ri = 0
                for i, m in enumerate(ms):
                    e(m)
                    for _ in range(2 if i < 3 else 1):
                        if ri < len(rs): e(rs[ri]); ri += 1
                while ri < len(rs): e(rs[ri]); ri += 1
                st = n + D - 1
                if st < NK: issue(st, cnt)
            self.stamp(31)
            if z2: e("s_setprio 2")
            e(f"s_mov_b32 s20, {fl(c1)}"); e(f"v_mov_b32 v20, {fl(c0)}")
            accs = [ACC + 4*(rt*4 + c) + r for c in range(nt) for rt in range(2) for r in range(4)]
            for i0 in range(0, len(accs), 4):
                grp = accs[i0:i0+4]
                for k, z in enumerate(grp): e(f"v_mul_f32 v{24+k}, v{z}, v{z}")
                for k, z in enumerate(grp): e(f"v_fma_f32 v{24+k}, v{24+k}, s20, v20")
                for k, z in enumerate(grp): e(f"v_mul_f32 v{24+k}, v{24+k}, v{z}")
                for k, z in enumerate(grp): e(f"v_exp_f32 v{24+k}, v{24+k}")
                for k, z in enumerate(grp): e(f"v_add_f32 v{24+k}, 1.0, v{24+k}")
                for k, z in enumerate(grp): e(f"v_rcp_f32 v{24+k}, v{24+k}")
                for k, z in enumerate(grp): e(f"v_mul_f32 v{z}, v{z}, v{24+k}")
            self.stamp(32)
            e("v_lshrrev_b32 v3, 4, v1"); e("v_and_b32 v4, 15, v1")
            if z2:
                regs = []
                for rt in range(2):
                    for r in range(4):
                        sreg = 64 + 2*(rt*4 + r)
                        a0 = ACC + 4*(rt*4) + r
                        e(f"v_mov_b32 v{sreg}, v{a0}"); e(f"v_mul_f32 v{sreg+1}, v{a0}, v{a0}")
                        for c in range(1, nt):
                            a = ACC + 4*(rt*4 + c) + r
                            e(f"v_add_f32 v{sreg}, v{sreg}, v{a}"); e(f"v_fmac_f32 v{sreg+1}, v{a}, v{a}")
                        regs += [sreg, sreg+1]
                self.dpp_reduce16(regs)
                e("s_and_b32 s20, s3, 1"); e("s_lshl_b32 s20, s20, 8")
                e(f"s_add_u32 s20, s20, {PART + cg*512}")
                e("v_lshlrev_b32 v5, 5, v3"); e("v_add_u32 v5, s20, v5")
                e("v_cmp_eq_u32 vcc, 0, v4"); e("s_and_saveexec_b64 s[40:41], vcc")
                for rt in range(2):
                    e(f"ds_write_b128 v5, v[{64+8*rt}:{67+8*rt}] offset:{rt*128}")
                    e(f"ds_write_b128 v5, v[{68+8*rt}:{71+8*rt}] offset:{rt*128+16}")
                e("s_waitcnt lgkmcnt(0)")
                e(f"v_mov_b32 v5, {PART + 2048}"); e("v_mov_b32 v6, 1")
                e("s_mov_b64 exec, 1")
                e("ds_add_u32 v5, v6")
                e("s_mov_b64 exec, -1")
                self.stamp(33)
                if cg == 0:
                    nx = self.lab("win_nx")
                    e("s_cmp_lg_u32 s3, 0"); e(f"s_cbranch_scc1 {nx}")
                    sp = self.lab("win_sp")
                    e("s_mov_b32 s47, 0")
                    self.a.label(sp)
                    e("ds_read_b32 v6, v5"); e("s_add_u32 s47, s47, 1"); e("s_waitcnt lgkmcnt(0)")
                    e("v_readfirstlane_b32 s20, v6")
                    spd = self.lab("win_spd")
                    e(f"s_cmp_gt_u32 s47, {SPIN_CAP}"); e(f"s_cbranch_scc1 {spd}")
                    e("s_cmp_lt_u32 s20, 4"); e(f"s_cbranch_scc1 {sp}")
                    self.a.label(spd)
                    e("v_lshlrev_b32 v5, 3, v1"); e(f"v_add_u32 v5, {PART}, v5")
                    e("ds_read_b64 v[64:65], v5"); e("ds_read_b64 v[66:67], v5 offset:512")
                    e("s_waitcnt lgkmcnt(0)")
                    e("v_add_f32 v64, v64, v66"); e("v_add_f32 v65, v65, v67")
                    e(f"v_mov_b32 v66, s{S_NONCE}"); e(f"v_mov_b32 v67, s{S_NONCE}")
                    e("v_lshlrev_b32 v6, 4, v1")
                    e("s_lshl_b32 s20, s4, 13"); e("s_lshl_b32 s21, s5, 10"); e("s_add_u32 s21, s21, s20")
                    e(f"buffer_store_dwordx4 v[64:67], v6, s[36:39], s21 offen {ST}")
                    e("s_mov_b32 s47, 0")
                    lp = self.lab("stp"); dn = self.lab("std")
                    self.a.label(lp)
                    for jj in range(8):
                        e(f"s_add_u32 s21, s20, {jj*1024}")
                        e(f"buffer_load_dwordx4 v[{72+4*jj}:{75+4*jj}], v6, s[36:39], s21 offen {ST}")
                    e("s_add_u32 s47, s47, 1"); e(f"s_cmp_gt_u32 s47, {SPIN_CAP}"); e(f"s_cbranch_scc1 {dn}")
                    e("s_waitcnt vmcnt(0)")
                    e("s_mov_b64 s[42:43], -1")
                    for jj in range(8):
                        e(f"v_cmp_eq_u32 vcc, s{S_NONCE}, v{74+4*jj}"); e("s_and_b64 s[42:43], s[42:43], vcc")
                        e(f"v_cmp_eq_u32 vcc, s{S_NONCE}, v{75+4*jj}"); e("s_and_b64 s[42:43], s[42:43], vcc")
                    e("s_cmp_eq_u64 s[42:43], -1")
                    if not Gen.NOHOP: e(f"s_cbranch_scc0 {lp}")
                    self.a.label(dn)
                    e("s_waitcnt vmcnt(0)")
                    for jj in range(1, 8):
                        e(f"v_add_f32 v72, v72, v{72+4*jj}"); e(f"v_add_f32 v73, v73, v{73+4*jj}")
                    e(f"v_mul_f32 v72, {fl(1.0/896)}, v72"); e(f"v_mul_f32 v73, {fl(1.0/896)}, v73")
                    e("v_fma_f32 v73, -v72, v72, v73"); e("v_max_f32 v73, 0, v73"); e(f"v_add_f32 v73, {fl(1e-5)}, v73")
                    e("v_rsq_f32 v75, v73"); e("v_mul_f32 v74, v72, v75"); e("v_sub_f32 v74, 0, v74")
                    e(f"ds_write_b64 v5, v[74:75] offset:1024")
                    self.a.label(nx)
                e("s_setprio 0")
            else:
                e("s_and_b32 s22, s3, 1"); e(f"s_mul_i32 s22, s22, {2*7*512}"); e(f"s_add_u32 s22, s22, {Z1L + t0*512}")
                e("v_lshlrev_b32 v7, 3, v1"); e("v_add_u32 v7, s22, v7")
                for c in range(nt):
                    for rt in range(2):
                        acc = ACC + 4*(rt*4 + c); pk = 32 + 2*(rt + 2*c)
                        e(f"v_cvt_pk_bf16_f32 v{pk}, v{acc}, v{acc+1}"); e(f"v_cvt_pk_bf16_f32 v{pk+1}, v{acc+2}, v{acc+3}")
                        e(f"ds_write_b64 v7, v[{pk}:{pk+1}] offset:{rt*7*512 + c*512}")
            e("s_waitcnt lgkmcnt(0)"); e("s_barrier")
            self.stamp(34)
            if z2:
                e("s_and_b32 s20, s3, 1"); e("s_lshl_b32 s20, s20, 8"); e(f"s_add_u32 s20, s20, {PART + 1024}")
                e("v_lshlrev_b32 v5, 5, v3"); e("v_add_u32 v5, s20, v5")
                for rt in range(2):
                    e(f"ds_read_b128 v[{64+8*rt}:{67+8*rt}], v5 offset:{rt*128}")
                    e(f"ds_read_b128 v[{68+8*rt}:{71+8*rt}], v5 offset:{rt*128+16}")
                e("v_and_b32 v6, 1, v3"); e("v_lshlrev_b32 v5, 9, v6"); e("v_lshrrev_b32 v6, 1, v3"); e("v_lshl_add_u32 v5, v6, 8, v5")
                e("v_lshl_add_u32 v5, v4, 4, v5")
                e("s_and_b32 s20, s3, 1"); e("s_lshl_b32 s21, s4, 1"); e("s_add_u32 s20, s20, s21"); e("s_lshl_b32 s20, s20, 10")
                e("s_mul_i32 s21, s5, 0x70000"); e("s_add_u32 s20, s20, s21")
                e("s_waitcnt lgkmcnt(0)")
                for c in range(nt):
                    e(f"s_add_u32 s21, s20, {(t0+c)*65536}")
                    pk = 32 + 4*c
                    for rt in range(2):
                        acc = ACC + 4*(rt*4 + c)
                        for r in range(4):
                            e(f"v_fma_f32 v{acc+r}, v{acc+r}, v{64+8*rt+2*r+1}, v{64+8*rt+2*r}")
                        e(f"v_cvt_pk_bf16_f32 v{pk+2*rt}, v{acc}, v{acc+1}"); e(f"v_cvt_pk_bf16_f32 v{pk+2*rt+1}, v{acc+2}, v{acc+3}")
                    e(f"v_permlane16_swap_b32 v{pk}, v{pk+2}"); e(f"v_permlane16_swap_b32 v{pk+1}, v{pk+3}")
                    e(f"buffer_store_dwordx4 v[{pk}:{pk+3}], v5, s[28:31], s21 offen {ST}")
            if cg < 3: e(f"s_branch {join}")
        self.a.label(join)
        self.phase_end()
        self.signal(lambda: (e("s_lshl_b32 s46, s5, 7"), e("s_lshl_b32 s47, s4, 2"), e("s_add_u32 s46, s46, s47"), e(f"s_add_u32 s46, s46, {F4}")))
        self.stamp(16)

    def p5(self):
        e = self.e
        end = self.lab("sp_end")
        Z1L = 135168
        self.srd(8, P_WSP, 0, 2048*2048*2)
        self.srd(12, P_WS, WS_Z2, 56*64*1024)
        self.srd(24, P_WS, WS_Y, 64*56*1024)
        self.srd(28, P_BSP, 0, 4096)
        SL = 22528; D = 6; NST = 32
        e(f"s_mov_b32 s44, {(-(D-1)*SL) & 0xffffffff}"); e(f"s_mov_b32 s45, {SL}")
        e("v_lshlrev_b32 v2, 4, v1"); e("v_lshrrev_b32 v3, 4, v1"); e("v_and_b32 v4, 15, v1")
        def cZ():
            e("s_lshl_b32 s46, s5, 7"); e(f"s_add_u32 s46, s46, {F4}"); e("v_lshlrev_b32 v251, 2, v1")
        lp = self.lab("sp_prod")
        e("s_cmp_ge_u32 s3, 4"); e(f"s_cbranch_scc1 {lp}")
        e("s_and_b32 s20, s3, 1"); e("s_lshl_b32 s21, s4, 2"); e("s_lshl_b32 s22, s20, 1"); e("s_add_u32 s21, s21, s22")
        e("v_lshlrev_b32 v5, 1, v4"); e("s_lshl_b32 s22, s21, 5")
        e("buffer_load_ushort v20, v5, s[28:31], s22 offen"); e("buffer_load_ushort v21, v5, s[28:31], s22 offen offset:32")
        e("s_bfe_u32 s23, s3, 0x10001"); e("s_lshl_b32 s23, s23, 2")
        e("v_lshrrev_b32 v7, 1, v3"); e("v_lshlrev_b32 v7, 9, v7"); e("v_lshl_add_u32 v7, v4, 4, v7")
        e("v_and_b32 v8, 1, v3"); e("v_lshl_add_u32 v7, v8, 3, v7")
        e("s_lshl_b32 s21, s4, 1"); e("s_add_u32 s21, s21, s20"); e("s_mul_i32 s21, s21, 56")
        e("s_mul_i32 s6, s5, 7"); e("s_add_u32 s21, s21, s6"); e("s_add_u32 s21, s21, s23"); e("s_lshl_b32 s35, s21, 10")
        e(f"s_mul_i32 s6, s20, {2*7*512}"); e("s_lshl_b32 s21, s23, 9"); e("s_add_u32 s6, s6, s21"); e(f"s_add_u32 s6, s6, {Z1L}")
        e("v_lshlrev_b32 v9, 3, v1"); e("v_add_u32 v9, s6, v9")
        e("s_and_b32 s20, s3, 1"); e("s_lshl_b32 s20, s20, 12"); e("v_lshlrev_b32 v5, 7, v4"); e("v_add_u32 v5, s20, v5")
        e("v_lshrrev_b32 v8, 1, v4")
        for ks in range(2):
            e(f"v_add_u32 v6, {4*ks}, v3"); e(f"v_xor_b32 v6, v6, v8"); e(f"v_lshl_add_u32 v{200+ks}, v6, 4, v5")
        e("s_bfe_u32 s20, s3, 0x10001"); e("s_lshl_b32 s20, s20, 13"); e("s_add_u32 s20, s20, 8192"); e("v_add_u32 v202, s20, v2")
        ACC = 128
        for r in range(32): e(f"v_mov_b32 v{ACC+r}, 0")
        e("s_barrier")
        LOOK = self.ZLOOK
        if self.ZTOUCH:
            e("s_and_b32 s20, s4, 7"); e("s_mul_i32 s20, s20, 14"); e("v_add_u32 v196, s20, v1")
            e("v_lshrrev_b32 v197, 4, v196"); e("v_lshlrev_b32 v197, 16, v197")
            e("v_bfe_u32 v198, v196, 3, 1"); e("v_lshl_add_u32 v197, v198, 10, v197")
            e("v_and_b32 v198, 7, v196"); e("v_lshl_add_u32 v196, v198, 7, v197")
            e("s_mul_i32 s43, s5, 0x70000"); e(f"s_add_u32 s43, s43, {(D-1)*2048}")
            e("s_cmp_eq_u32 s3, 0"); e("s_cselect_b32 s42, 0x3fff, 0")
            tk = self.lab("sp_tk")
            e("s_cmp_lg_u32 s3, 0"); e(f"s_cbranch_scc1 {tk}")
            e("s_mov_b64 exec, 0x3fff")
            for i in range(LOOK - (D-1)):
                e(f"s_add_u32 s20, s43, {i*2048}")
                e("buffer_load_dword v199, v196, s[12:15], s20 offen")
            e("s_mov_b64 exec, -1")
            self.a.label(tk)
            e(f"s_add_u32 s43, s43, {(LOOK-(D-1))*2048}")
        l3 = self.lab("sp_3"); lepi = self.lab("sp_epi")
        e("s_barrier")
        self.stamp(18)
        e("s_bitcmp1_b32 s3, 1"); e(f"s_cbranch_scc1 {l3}")
        for jj in range(2):
            nf = 4 if jj == 0 else 3
            if jj == 1: self.a.label(l3)
            def reads(ks, buf, nxt):
                b = 32 + 24*buf; ab = 203 if nxt else 200
                for tt in range(2): yield f"ds_read_b128 v[{b+4*tt}:{b+4*tt+3}], v{ab+ks} offset:{tt*2048}"
                for f in range(nf): yield f"ds_read_b128 v[{b+8+4*f}:{b+8+4*f+3}], v{ab+2} offset:{f*2048 + ks*1024}"
            def mf(buf):
                b = 32 + 24*buf
                for f in range(nf):
                    for tt in range(2):
                        acc = ACC + 4*(tt*4 + f)
                        yield f"v_mfma_f32_16x16x32_bf16 v[{acc}:{acc+3}], v[{b+8+4*f}:{b+8+4*f+3}], v[{b+4*tt}:{b+4*tt+3}], v[{acc}:{acc+3}]"
            def interleave(ms, rs):
                ms = list(ms); rs = list(rs)
                if self.X_NOMFMA: ms = []
                if self.X_NOREAD: rs = []
                ri = 0
                for i, m in enumerate(ms):
                    e(m)
                    for _ in range(self.RPG):
                        if ri < len(rs): e(rs[ri]); ri += 1
                for r in rs[ri:]: e(r)
            for r in reads(0, 0, False): e(r)
            e("s_mov_b32 s36, 0"); e(f"s_mov_b32 s37, {SL}"); e("s_mov_b32 s38, 1")
            loop = self.lab("sp_loop")
            self.a.label(loop)
            e("s_barrier")
            for k in range(3): e(f"v_add_u32 v{203+k}, s37, v{200+k}")
            if self.ZTOUCH and jj == 0:
                tk2 = self.lab("sp_tk2")
                e("s_cmp_lg_u32 s3, 0"); e(f"s_cbranch_scc1 {tk2}")
                e(f"s_cmp_ge_u32 s36, {NST} - {LOOK}".replace(f"{NST} - {LOOK}", str(NST - LOOK))); e(f"s_cbranch_scc1 {tk2}")
                e("s_mov_b64 exec, 0x3fff")
                e("buffer_load_dword v199, v196, s[12:15], s43 offen")
                e("s_mov_b64 exec, -1")
                e("s_add_u32 s43, s43, 2048")
                self.a.label(tk2)
            e(f"s_waitcnt lgkmcnt(0)")
            interleave(mf(0), reads(1, 1, False))
            e(f"s_waitcnt lgkmcnt(0)")
            interleave(mf(1), reads(0, 0, True))
            for k in range(3): e(f"v_mov_b32 v{200+k}, v{203+k}")
            e("s_add_u32 s38, s38, 1"); e(f"s_cmp_eq_u32 s38, {D}")
            e(f"s_cselect_b32 s37, s44, s45"); e(f"s_cselect_b32 s38, 0, s38")
            e("s_add_u32 s36, s36, 1"); e(f"s_cmp_lt_u32 s36, {NST}"); e(f"s_cbranch_scc1 {loop}")
            if jj == 0: e(f"s_branch {lepi}")
        self.a.label(lepi)
        self.stamp(19)
        ZR = 176
        for tt in range(2):
            for f in range(4):
                b = ZR + 2*(tt*4 + f)
                e(f"ds_read_b64 v[{b}:{b+1}], v9 offset:{tt*7*512 + f*512}")
        e("s_waitcnt vmcnt(0) lgkmcnt(0)")
        e("v_lshlrev_b32 v20, 16, v20"); e("v_lshlrev_b32 v21, 16, v21")
        for f in range(4):
            if f == 3:
                e("s_bitcmp1_b32 s3, 1"); e(f"s_cbranch_scc1 {end}")
            pk = 32 + 4*f
            for tt in range(2):
                acc = ACC + 4*(tt*4 + f); b = ZR + 2*(tt*4 + f)
                for q in range(2):
                    e(f"v_lshlrev_b32 v22, 16, v{b+q}"); e(f"v_and_b32 v23, 0xffff0000, v{b+q}")
                    e(f"v_add_f32 v24, v{acc+2*q}, v{20+tt}"); e(f"v_add_f32 v25, v{acc+2*q+1}, v{20+tt}")
                    e(f"v_mul_f32 v22, v22, v24"); e(f"v_mul_f32 v23, v23, v25")
                    e(f"v_cvt_pk_bf16_f32 v{pk+2*tt+q}, v22, v23")
            e(f"v_permlane16_swap_b32 v{pk}, v{pk+2}"); e(f"v_permlane16_swap_b32 v{pk+1}, v{pk+3}")
            e(f"buffer_store_dwordx4 v[{pk}:{pk+3}], v2, s[24:27], s35 offen offset:{f*1024} {ST}")
        e(f"s_branch {end}")
        self.a.label(lp)
        e("s_and_b32 s7, s3, 3")
        e("v_lshrrev_b32 v5, 3, v1"); e("v_and_b32 v6, 7, v1")
        for m in range(2):
            e(f"s_lshl_b32 s20, s7, 3"); e(f"s_add_u32 s20, s20, {32*m}")
            e(f"v_add_u32 v8, s20, v5"); e(f"v_bfe_u32 v9, v8, 1, 3"); e(f"v_xor_b32 v9, v9, v6")
            e(f"v_lshlrev_b32 v8, 12, v8"); e(f"v_lshl_add_u32 v{192+m}, v9, 4, v8")
        e("s_lshl_b32 s6, s4, 18")
        e("s_mul_i32 s32, s5, 0x70000"); e("s_lshr_b32 s20, s7, 1"); e("s_lshl_b32 s20, s20, 16"); e("s_add_u32 s32, s32, s20")
        e("s_and_b32 s20, s7, 1"); e("s_lshl_b32 s20, s20, 10"); e("s_add_u32 s32, s32, s20")
        e("s_lshl_b32 s33, s7, 10")
        e("s_mov_b32 s34, s33")
        def pre5():
            for st in range(D-1):
                for m in range(2): self.dma(192+m, 8, "s6", f"s_add_u32 m0, s34, {st*SL + m*4096}")
                e("s_add_u32 s6, s6, 128")
        self.wait_flags([(cZ, 0xffffffff)], pre=pre5)
        self.stamp(17)
        l5 = self.lab("sp_p5")
        e("s_cmp_ge_u32 s7, 2"); e(f"s_cbranch_scc1 {l5}")
        for var in range(2):
            nz = 4 if var == 0 else 3
            cnt = 2 + nz
            if var == 1: self.a.label(l5)
            def issue_z():
                for m in range(nz):
                    e(f"s_add_u32 s23, s32, {2*m*65536}")
                    self.dma(2, 12, "s23", f"s_add_u32 m0, s34, {8192 + m*4096}")
                e("s_add_u32 s32, s32, 2048")
            def issue():
                if self.X_NODMA: return
                for m in range(2): self.dma(192+m, 8, "s6", f"s_add_u32 m0, s34, {m*4096}")
                e("s_add_u32 s6, s6, 128")
                issue_z()
            for st in range(D-1):
                issue_z(); e(f"s_add_u32 s34, s34, {SL}")
            e(f"s_waitcnt vmcnt({nz*(D-2)})"); e("s_barrier")
            e("s_mov_b32 s36, 0"); e(f"s_mov_b32 s38, {D-1}")
            loop = self.lab("sp_ploop"); lni = self.lab("sp_ni"); lw = self.lab("sp_w"); le = self.lab("sp_e"); lb = self.lab("sp_b")
            self.a.label(loop)
            e(f"s_cmp_ge_u32 s36, {NST-D+2}"); e(f"s_cbranch_scc1 {lw}")
            e(f"s_cmp_lt_u32 s36, 3"); e(f"s_cbranch_scc1 {le}")
            e(f"s_waitcnt vmcnt({cnt*(D-3)})"); e(f"s_branch {lb}")
            self.a.label(le)
            e(f"s_waitcnt vmcnt({nz*(D-3)})")
            self.a.label(lb)
            e("s_barrier")
            e(f"s_cmp_ge_u32 s36, {NST-D+1}"); e(f"s_cbranch_scc1 {lni}")
            issue()
            e("s_add_u32 s38, s38, 1"); e(f"s_cmp_eq_u32 s38, {D}"); e(f"s_cselect_b32 s39, s44, s45"); e(f"s_cselect_b32 s38, 0, s38")
            e("s_add_u32 s34, s34, s39"); e(f"s_branch {lni}")
            self.a.label(lw)
            e("s_waitcnt vmcnt(0)"); e("s_barrier")
            self.a.label(lni)
            e("s_add_u32 s36, s36, 1"); e(f"s_cmp_lt_u32 s36, {NST}"); e(f"s_cbranch_scc1 {loop}")
            if var == 0: e(f"s_branch {end}")
        self.a.label(end)
        self.phase_end()
        self.signal(lambda: (e("s_lshl_b32 s46, s4, 7"), e("s_lshl_b32 s47, s5, 2"), e("s_add_u32 s46, s46, s47"), e(f"s_add_u32 s46, s46, {F5}")))
        self.stamp(20)

    def p6(self):
        e = self.e
        self.srd(8, P_WS, WS_Y, 64*56*1024); self.srd(12, P_WOUT, 0, 896*512*2)
        self.srd(16, P_WS, WS_X1, 2*MB); self.srd(24, P_OUT, 0, 2*MB); self.srd(28, P_WS, WS_MOD, 49152)
        XR = 114688; XS = 16384; NCH = 7; NSLOT = 3
        self.proj_wvoff()
        self.proj_addr(True, XR, 0)
        e("v_add_u32 v10, 0x10000, v9")
        self.proj_epi_addr()
        def pre6():
            for m in range(16):
                e(f"s_add_u32 s21, s3, {7*m}"); e("s_lshl_b32 s20, s21, 13"); e("s_lshl_b32 s21, s21, 10")
                self.dma(3, 12, "s20", "s_mov_b32 m0, s21")
        def cY():
            e("s_lshl_b32 s46, s4, 7"); e(f"s_add_u32 s46, s46, {F5}"); e("v_lshlrev_b32 v251, 2, v1")
        self.wait_flags([(cY, 0xff)], pre=pre6, w7_after=False)
        self.stamp(21)
        e(f"s_mul_i32 s6, s4, {2*56*1024}"); e("s_lshl_b32 s21, s3, 10"); e("s_add_u32 s6, s6, s21")
        def issue_x(ch):
            for tt in range(2):
                e(f"s_add_u32 s20, s6, {tt*56*1024 + ch*8*1024}")
                self.dma(2, 8, "s20", f"s_add_u32 m0, s21, {XR + (ch % NSLOT)*XS + tt*8192}")
        issue_x(0); e("s_barrier"); issue_x(1); e("s_barrier"); issue_x(2)
        e("buffer_load_dwordx4 v[32:35], v16, s[16:19], s32 offen")
        self.proj_gate_loads(5)
        ACC = 64
        for r in range(16): e(f"v_mov_b32 v{ACC+r}, 0")
        for ch in range(NCH):
            w = {0: 4 + 9, 1: 2 + 9, 2: 9 + 2}.get(ch, 2*(min(NCH - 1, ch + 1) - ch))
            e(f"s_waitcnt vmcnt({w})")
            e("s_barrier")
            if ch == 0: self.stamp(38)
            if ch >= 1 and ch + 2 < NCH: issue_x(ch + 2)
            wreg, woff = (9, ch*16384) if ch < 3 else (10, ch*16384 - 65536) if ch >= 4 else (9, ch*16384)
            self.proj_chunk(ACC, (ch % NSLOT)*XS, wreg, woff, True)
        self.stamp(39)
        self.proj_epilogue(ACC, 24, "", False)
        self.stamp(22)


HEADER = open('cdna_kernels/' + NAME + '.s.ref').read().split('; Override launch geometry')[0]

def build(stamps=False, hstamp=-1):
    Gen.STAMPS = stamps
    g = Gen()
    endl = "L_exit"
    g.prologue(endl)
    g.p01(); g.p2(); g.p3(); g.p4(); g.p5(); g.p6()
    if stamps and Gen.GSTAMP:
        e = g.e
        sk = g.lab("stst")
        e(f"s_cmp_lg_u32 s3, {Gen.GSTAMP_W}"); e(f"s_cbranch_scc1 {sk}")
        e("s_waitcnt vmcnt(0)")
        g.stamp(23)
        g.srd(8, P_DBG, 0, 0x20000)
        e("s_lshl_b32 s20, s2, 8"); e("s_add_u32 s20, s20, 4096")
        e("v_lshlrev_b32 v4, 2, v1")
        e("buffer_store_dword v255, v4, s[8:11], s20 offen")
        g.a.label(sk)
    elif stamps:
        e = g.e
        sk = g.lab("stst")
        e(f"s_sub_u32 s46, s2, {Gen.STAMP_WG0}"); e("s_cmp_ge_u32 s46, 4"); e(f"s_cbranch_scc1 {sk}")
        e("s_and_b32 s46, s3, 3"); e(f"s_cmp_lg_u32 s46, {Gen.STAMP_W}"); e(f"s_cbranch_scc1 {sk}")
        e("s_waitcnt vmcnt(0)")
        g.stamp(23)
        if hstamp >= 0: e(f"s_branch {sk}")
        g.srd(8, P_DBG, 0, 4096)
        e(f"s_sub_u32 s20, s2, {Gen.STAMP_WG0}"); e("s_lshl_b32 s20, s20, 1"); e("s_lshr_b32 s21, s3, 2"); e("s_add_u32 s20, s20, s21"); e("s_lshl_b32 s20, s20, 8"); e("s_add_u32 s20, s20, 256")
        e("v_lshlrev_b32 v4, 2, v1")
        e("buffer_store_dword v255, v4, s[8:11], s20 offen")
        g.a.label(sk)
    if hstamp >= 0:
        e = g.e
        sk = g.lab("hst")
        e(f"s_cmp_lg_u32 s2, {hstamp}"); e(f"s_cbranch_scc1 {sk}")
        e("s_cmp_lg_u32 s3, 0"); e(f"s_cbranch_scc1 {sk}")
        e("v_lshrrev_b32 v4, 2, v255")
        e("v_lshlrev_b32 v5, 16, v4")
        e("v_mov_b32_dpp v6, v5 row_shl:1 row_mask:0xf bank_mask:0xf")
        e("v_or_b32 v4, v4, v6")
        g.srd(8, P_DBG, 0, 256)
        e("v_lshrrev_b32 v7, 1, v1"); e("v_lshlrev_b32 v7, 2, v7"); e("v_add_u32 v7, 4, v7")
        e("v_and_b32 v8, 1, v1"); e("v_cmp_eq_u32 vcc, 0, v8"); e("v_cmp_gt_u32 s[40:41], 24, v1"); e("s_and_b64 vcc, vcc, s[40:41]")
        e("s_and_saveexec_b64 s[40:41], vcc")
        e("buffer_store_dword v4, v7, s[8:11], 0 offen")
        g.a.label(sk)
    g.a.label(endl)
    g.e("s_endpgm")
    g.a.fix_hazards()
    out = [HEADER, "; @launch grid=(256,1,1) block=(512,1,1) lds=163840\n",
           '.amdgcn_target "amdgcn-amd-amdhsa--gfx950"\n.text\n',
           f".globl {KNAME}\n.p2align 8\n.type {KNAME},@function\n{KNAME}:\n", g.a.text(),
           '.section .rodata,"a"\n', f""".p2align 6
.amdhsa_kernel {KNAME}
  .amdhsa_next_free_vgpr 256
  .amdhsa_next_free_sgpr 102
  .amdhsa_accum_offset 256
  .amdhsa_group_segment_fixed_size 0
  .amdhsa_kernarg_size 104
  .amdhsa_user_sgpr_count 2
  .amdhsa_user_sgpr_kernarg_segment_ptr 1
  .amdhsa_system_sgpr_workgroup_id_x 1
.end_amdhsa_kernel
"""]
    return ''.join(out)

if __name__ == "__main__":
    for k in ("PREFETCH", "STAMP_WG0", "STAMP_W", "CODEPF", "NOHOP", "BALANCE", "ZTOUCH", "GSTAMP", "GSTAMP_W", "ZLOOK", "REPACK", "M1", "M2", "RPG", "X_NOMFMA", "X_NOREAD", "X_NODMA"):
        if k in os.environ: setattr(Gen, k, int(os.environ[k]))
    txt = build(stamps=(len(sys.argv) > 2), hstamp=int(os.environ.get("HSTAMP", "-1")))
    path = sys.argv[1] if len(sys.argv) > 1 else 'cdna_kernels/' + NAME + '.s'
    open(path, 'w').write(txt)
    print("wrote", path, len(txt), "bytes")
```

```python
import sys, math, os
from asmlib import Asm, vr, sr

NAME = "adaLN_cond__softmax_full_mha__mixer_gmlp__prompt"
KNAME = NAME + "_kernel"
MB = 1 << 20
WS_MOD = 0
WS_ST  = 0x10000
WS_FLAG = 0x60000
WS_STX = 0x70000
WS_MODG = 0xB0000
WS_QK  = 1 * MB
WS_V   = 5 * MB
WS_O   = 7 * MB
WS_X1  = 9 * MB
WS_Z2  = 19 * MB
WS_Y   = 23 * MB
WS_WINP = 27 * MB
F0, F1, F2, F3, F4, F5, FR = 0x0, 0x2000, 0x4000, 0x5000, 0x6000, 0x7000, 0x8000
P_X, P_WQKV, P_WO, P_BX, P_WIN, P_WSP, P_BSP, P_WOUT, P_C, P_WMOD, P_OUT, P_DBG, P_WS = [64 + 2*i for i in range(13)]
LOG2E = 1.4426950408889634
S_QB, S_HEAD, S_NONCE, SRD_F = 57, 58, 59, 60
ST = "sc0 sc1"
SPIN_CAP = 1 << 17

def f2u(x):
    import struct
    return struct.unpack('<I', struct.pack('<f', x))[0]
def fl(x): return f"0x{f2u(x):08x}"

class Gen:
    STAMPS = False
    PREFETCH = True
    STAMP_WG0 = 0
    STAMP_W = 0
    CODEPF = False
    NOHOP = False
    BALANCE = True
    ZTOUCH = False
    ZLOOK = 9
    MODCRIT = 64
    XLATE = False
    SPD = 7
    REPACK = False
    M1 = 3
    M2 = 9
    RPG = 2
    X_NOMFMA = False
    X_NOREAD = False
    X_NODMA = False
    GSTAMP = False
    GSTAMP_W = 0
    def __init__(self):
        self.a = Asm()
        self.nstamp = 0
    def e(self, s): self.a.e(s)
    def lab(self, b): return self.a.newlabel(b)

    def stamp(self, i):
        if not Gen.STAMPS: return
        e = self.e
        sk = self.lab("stamp")
        if Gen.GSTAMP:
            e(f"s_cmp_lg_u32 s3, {Gen.GSTAMP_W}"); e(f"s_cbranch_scc1 {sk}")
            e("s_memtime s[46:47]" if Gen.GSTAMP == 2 else "s_memrealtime s[46:47]"); e("s_waitcnt lgkmcnt(0)")
            e(f"v_writelane_b32 v255, s46, {i}")
            self.a.label(sk)
            return
        e(f"s_sub_u32 s46, s2, {Gen.STAMP_WG0}"); e("s_cmp_ge_u32 s46, 4"); e(f"s_cbranch_scc1 {sk}")
        e("s_and_b32 s46, s3, 3"); e(f"s_cmp_lg_u32 s46, {Gen.STAMP_W}"); e(f"s_cbranch_scc1 {sk}")
        e("s_memtime s[46:47]"); e("s_waitcnt lgkmcnt(0)")
        e("s_sub_u32 s46, s46, s90")
        e(f"v_writelane_b32 v255, s46, {i}")
        self.a.label(sk)

    def srd(self, d, ptr, off, size):
        e = self.e
        if off:
            e(f"s_add_u32 s{d}, s{ptr}, 0x{off:x}"); e(f"s_addc_u32 s{d+1}, s{ptr+1}, 0")
        else:
            e(f"s_mov_b32 s{d}, s{ptr}"); e(f"s_mov_b32 s{d+1}, s{ptr+1}")
        e(f"s_mov_b32 s{d+2}, 0x{size:x}"); e(f"s_mov_b32 s{d+3}, 0x20000")

    def bf16_round(self, d, s):
        self.e(f"v_cvt_pk_bf16_f32 v{d}, v{s}, v{s}")
        self.e(f"v_lshlrev_b32 v{d}, 16, v{d}")

    def dpp_reduce16(self, regs):
        for m in ("quad_perm:[1,0,3,2]", "quad_perm:[2,3,0,1]", "row_half_mirror", "row_mirror"):
            for r in regs:
                self.e(f"v_add_f32_dpp v{r}, v{r}, v{r} {m} row_mask:0xf bank_mask:0xf")

    def dma(self, voff, srd, soff, m0expr, width="dwordx4"):
        self.e(m0expr)
        self.e("s_nop 0")
        self.e(f"buffer_load_{width} v{voff}, {sr(srd,4)}, {soff} offen lds")

    def phase_end(self):
        self.e("s_waitcnt lgkmcnt(0)" if Gen.NOHOP else "s_waitcnt vmcnt(0) lgkmcnt(0)")
        self.e("s_barrier")

    def signal(self, soff_code, nrep=1, rep_stride=0):
        e = self.e
        sk = self.lab("sig")
        e("s_cmp_lg_u32 s3, 7"); e(f"s_cbranch_scc1 {sk}")
        soff_code()
        e(f"v_mov_b32 v250, s{S_NONCE}")
        e(f"v_mul_u32_u24 v251, {max(rep_stride,1)}, v1")
        e(f"s_mov_b64 exec, {(1 << nrep) - 1}")
        e(f"buffer_store_dword v250, v251, s[{SRD_F}:{SRD_F+3}], s46 offen {ST}")
        e("s_mov_b64 exec, -1")
        self.a.label(sk)

    def wait_flags(self, polls, keep=False, pre=None, w7_after=True):
        e = self.e
        sk = self.lab("wf"); p7 = self.lab("wf7")
        e("s_cmp_eq_u32 s3, 7"); e(f"s_cbranch_scc1 {p7}")
        if pre: pre()
        e(f"s_branch {sk}")
        self.a.label(p7)
        for (code, mask) in ([] if (Gen.NOHOP and not keep) else polls):
            code()
            e(f"s_mov_b32 s42, 0x{mask & 0xffffffff:x}"); e(f"s_mov_b32 s43, 0x{mask >> 32:x}")
            e("s_mov_b32 s47, 0")
            lp = self.lab("poll"); dn = self.lab("polled")
            self.a.label(lp)
            e(f"buffer_load_dword v250, v251, s[{SRD_F}:{SRD_F+3}], s46 offen {ST}")
            e("s_add_u32 s47, s47, 1")
            e(f"s_cmp_gt_u32 s47, {SPIN_CAP}")
            e(f"s_cbranch_scc1 {dn}")
            e("s_waitcnt vmcnt(0)")
            e(f"v_cmp_eq_u32 vcc, s{S_NONCE}, v250")
            e("s_and_b64 vcc, vcc, s[42:43]")
            e("s_cmp_eq_u64 vcc, s[42:43]")
            e(f"s_cbranch_scc0 {lp}")
            self.a.label(dn)
        if pre and w7_after: pre()
        self.a.label(sk)
        e("s_barrier")

    def prologue(self, endlab):
        e = self.e
        e("s_cmp_ge_u32 s2, 256"); e(f"s_cbranch_scc1 {endlab}")
        e("s_load_dwordx16 s[64:79], s[0:1], 0")
        e("s_load_dwordx8 s[80:87], s[0:1], 64")
        e("s_load_dwordx2 s[88:89], s[0:1], 96")
        e("v_and_b32 v1, 63, v0")
        e("v_lshrrev_b32 v2, 6, v0")
        e("v_readfirstlane_b32 s3, v2")
        if Gen.STAMPS:
            e("s_memtime s[90:91]"); e("v_mov_b32 v255, 0")
        e("s_and_b32 s20, s2, 7"); e("s_lshr_b32 s21, s2, 3")
        e("s_and_b32 s4, s20, 3"); e("s_lshl_b32 s4, s4, 3"); e("s_and_b32 s22, s21, 7"); e("s_add_u32 s4, s4, s22")
        e("s_lshr_b32 s5, s20, 2"); e("s_lshl_b32 s5, s5, 2"); e("s_lshr_b32 s22, s21, 3"); e("s_add_u32 s5, s5, s22")
        e(f"s_lshl_b32 s{S_HEAD}, s20, 2"); e("s_and_b32 s22, s21, 3"); e(f"s_add_u32 s{S_HEAD}, s{S_HEAD}, s22")
        e(f"s_lshr_b32 s{S_QB}, s21, 2")
        e("s_waitcnt lgkmcnt(0)")
        self.stamp(24)
        self.srd(SRD_F, P_WS, WS_FLAG, 0x10000)
        sk = self.lab("nn")
        e("s_cmp_lg_u32 s3, 7"); e(f"s_cbranch_scc1 {sk}")
        self.srd(8, P_DBG, 0, 256)
        e("v_mov_b32 v251, 0")
        g = self.lab("ng")
        e("s_cmp_lg_u32 s2, 0"); e(f"s_cbranch_scc1 {g}")
        e("s_memrealtime s[46:47]"); e("s_waitcnt lgkmcnt(0)")
        e("s_or_b32 s46, s46, 1")
        e("v_mov_b32 v250, s46")
        e("s_mov_b64 exec, 1")
        e(f"buffer_store_dword v250, v251, s[8:11], 0 offen {ST}")
        e("s_mov_b64 exec, -1")
        self.a.label(g)
        self.a.label(sk)

    def get_nonce(self):
        e = self.e
        sk = self.lab("gn")
        e("s_cmp_lg_u32 s3, 7"); e(f"s_cbranch_scc1 {sk}")
        self.srd(48, P_DBG, 0, 256)
        e("v_mov_b32 v251, 0"); e("s_mov_b32 s47, 0")
        lp = self.lab("gnp"); dn = self.lab("gnd")
        self.a.label(lp)
        e(f"buffer_load_dword v250, v251, s[48:51], 0 offen {ST}")
        e("s_add_u32 s47, s47, 1"); e(f"s_cmp_gt_u32 s47, {SPIN_CAP}"); e(f"s_cbranch_scc1 {dn}")
        e("s_waitcnt vmcnt(0)")
        e(f"v_readfirstlane_b32 s{S_NONCE}, v250")
        e(f"s_cmp_eq_u32 s{S_NONCE}, 0"); e(f"s_cbranch_scc1 {lp}")
        self.a.label(dn)
        e("ds_write_b32 v251, v250")
        e("s_waitcnt lgkmcnt(0)")
        self.a.label(sk)

    def ln_loads(self, srd_x, s_rowoff):
        e = self.e
        e("v_lshrrev_b32 v3, 4, v1"); e("v_and_b32 v4, 15, v1")
        e("s_lshl_b32 s20, s3, 3")
        e("v_add_u32 v5, s20, v3"); e("v_lshlrev_b32 v5, 10, v5"); e("v_lshl_add_u32 v5, v4, 4, v5")
        e(f"s_add_u32 s21, s{s_rowoff}, 4096")
        for a in range(2):
            so = s_rowoff if a == 0 else 21
            for j in range(4):
                b = 32 + 16*a + 4*j
                e(f"buffer_load_dwordx4 v[{b}:{b+3}], v5, {sr(srd_x,4)}, s{so} offen offset:{256*j}")

    def mod_issue(self, srd_mod, first_chunk):
        e = self.e
        e("v_lshlrev_b32 v248, 3, v0")
        for kq in range(4):
            e(f"s_mov_b32 s22, {kq*12288 + first_chunk*2048}")
            e(f"buffer_load_dwordx2 v[{240+2*kq}:{241+2*kq}], v248, {sr(srd_mod,4)}, s22 offen")

    def mod_finish(self, lds_off):
        e = self.e
        e("v_pk_add_f32 v[240:241], v[240:241], v[242:243]"); e("v_pk_add_f32 v[244:245], v[244:245], v[246:247]")
        e("v_pk_add_f32 v[240:241], v[240:241], v[244:245]")
        e("v_cvt_pk_bf16_f32 v242, v240, v241")
        e("v_lshlrev_b32 v240, 16, v242"); e("v_and_b32 v241, 0xffff0000, v242")
        sk = self.lab("mf")
        e("s_cmp_lt_u32 s3, 4"); e(f"s_cbranch_scc1 {sk}")
        e("v_add_f32 v240, 1.0, v240"); e("v_add_f32 v241, 1.0, v241")
        e("v_cvt_pk_bf16_f32 v242, v240, v241")
        e("v_lshlrev_b32 v240, 16, v242"); e("v_and_b32 v241, 0xffff0000, v242")
        self.a.label(sk)
        e("v_and_b32 v242, 255, v0"); e("v_lshlrev_b32 v242, 1, v242")
        e("v_lshrrev_b32 v243, 7, v242"); e("v_lshlrev_b32 v248, 9, v243")
        e("v_bfe_u32 v243, v242, 2, 1"); e("v_lshl_add_u32 v248, v243, 8, v248")
        e("v_bfe_u32 v243, v242, 3, 4"); e("v_lshl_add_u32 v248, v243, 4, v248")
        e("v_and_b32 v243, 3, v242"); e("v_lshl_add_u32 v248, v243, 2, v248")
        e("v_lshrrev_b32 v243, 8, v0"); e("v_lshl_add_u32 v248, v243, 11, v248")
        e(f"v_add_u32 v248, {lds_off}, v248")
        e("ds_write_b64 v248, v[240:241]")

    def ln_stats(self, fillers):
        e = self.e
        X = 128
        it = iter(fillers)
        def fill():
            f = next(it, None)
            if f: f()
        for a in range(2):
            for q in range(16):
                s = 32 + 16*a + q
                e(f"v_lshlrev_b32 v{X+32*a+2*q}, 16, v{s}")
                e(f"v_and_b32 v{X+32*a+2*q+1}, 0xffff0000, v{s}")
            fill()
        A = lambda a, k: 8 + 8*a + 2*k
        for a in range(2):
            for k in range(4):
                e(f"v_pk_add_f32 v[{A(a,k)}:{A(a,k)+1}], v[{X+32*a+4*k}:{X+32*a+4*k+1}], v[{X+32*a+4*k+2}:{X+32*a+4*k+3}]")
        for q in range(8, 16):
            for a in range(2):
                k = q % 4
                e(f"v_pk_add_f32 v[{A(a,k)}:{A(a,k)+1}], v[{A(a,k)}:{A(a,k)+1}], v[{X+32*a+2*q}:{X+32*a+2*q+1}]")
        fill()
        for a in range(2):
            e(f"v_pk_add_f32 v[{A(a,0)}:{A(a,0)+1}], v[{A(a,0)}:{A(a,0)+1}], v[{A(a,1)}:{A(a,1)+1}]")
            e(f"v_pk_add_f32 v[{A(a,2)}:{A(a,2)+1}], v[{A(a,2)}:{A(a,2)+1}], v[{A(a,3)}:{A(a,3)+1}]")
        for a in range(2):
            e(f"v_pk_add_f32 v[{A(a,0)}:{A(a,0)+1}], v[{A(a,0)}:{A(a,0)+1}], v[{A(a,2)}:{A(a,2)+1}]")
        for a in range(2):
            e(f"v_add_f32 v{24+2*a}, v{A(a,0)}, v{A(a,0)+1}")
        self.dpp_reduce16([24, 26])
        for a in range(2):
            e(f"v_mul_f32 v{24+2*a}, {fl(-1.0/512)}, v{24+2*a}")
            e(f"v_mov_b32 v{25+2*a}, v{24+2*a}")
            for r in range(8): e(f"v_mov_b32 v{8+8*a+r}, 0")
        fill()
        for q in range(16):
            for a in range(2):
                r = X + 32*a + 2*q
                e(f"v_pk_add_f32 v[{r}:{r+1}], v[{r}:{r+1}], v[{24+2*a}:{25+2*a}]")
            if q > 0:
                for a in range(2):
                    r = X + 32*a + 2*(q-1); k = (q-1) % 4
                    e(f"v_pk_fma_f32 v[{A(a,k)}:{A(a,k)+1}], v[{r}:{r+1}], v[{r}:{r+1}], v[{A(a,k)}:{A(a,k)+1}]")
            if q % 4 == 3: fill()
        for a in range(2):
            r = X + 32*a + 30; k = 3
            e(f"v_pk_fma_f32 v[{A(a,k)}:{A(a,k)+1}], v[{r}:{r+1}], v[{r}:{r+1}], v[{A(a,k)}:{A(a,k)+1}]")
        for a in range(2):
            e(f"v_pk_add_f32 v[{A(a,0)}:{A(a,0)+1}], v[{A(a,0)}:{A(a,0)+1}], v[{A(a,1)}:{A(a,1)+1}]")
            e(f"v_pk_add_f32 v[{A(a,2)}:{A(a,2)+1}], v[{A(a,2)}:{A(a,2)+1}], v[{A(a,3)}:{A(a,3)+1}]")
        for a in range(2):
            e(f"v_pk_add_f32 v[{A(a,0)}:{A(a,0)+1}], v[{A(a,0)}:{A(a,0)+1}], v[{A(a,2)}:{A(a,2)+1}]")
        for a in range(2):
            e(f"v_add_f32 v{24+a}, v{A(a,0)}, v{A(a,0)+1}")
        self.dpp_reduce16([24, 25])
        for a in range(2):
            e(f"v_mov_b32 v14, {fl(1e-5)}")
            e(f"v_fmac_f32 v14, {fl(1.0/512)}, v{24+a}")
            e(f"v_rsq_f32 v{20+2*a}, v14")
        for a in range(2):
            e(f"v_mov_b32 v{21+2*a}, v{20+2*a}")
        for f in it: f()
        for a in range(2):
            for q in range(16):
                r = X + 32*a + 2*q
                e(f"v_pk_mul_f32 v[{r}:{r+1}], v[{r}:{r+1}], v[{20+2*a}:{21+2*a}]")

    def ln2_prepare(self):
        e = self.e
        X = 128
        for a in range(2):
            e(f"v_mov_b32 v{12+a}, v{8+2*a}")
        self.dpp_reduce16([12, 13])
        for a in range(2):
            e(f"v_mul_f32 v{12+a}, {fl(1.0/16)}, v{12+a}")
            e(f"v_sub_f32 v{14+a}, v{8+2*a}, v{12+a}")
            e(f"v_mul_f32 v{14+a}, v{14+a}, v{14+a}")
            e(f"v_fmac_f32 v{9+2*a}, {fl(32.0)}, v{14+a}")
        self.dpp_reduce16([9, 11])
        for a in range(2):
            e(f"v_mov_b32 v14, {fl(1e-5)}")
            e(f"v_fmac_f32 v14, {fl(1.0/512)}, v{9+2*a}")
            e(f"v_rsq_f32 v{20+4*a}, v14")
        for a in range(2):
            e(f"v_mov_b32 v{21+4*a}, v{20+4*a}")
            e(f"v_mul_f32 v{22+4*a}, v{12+a}, v{20+4*a}"); e(f"v_sub_f32 v{22+4*a}, 0, v{22+4*a}"); e(f"v_mov_b32 v{23+4*a}, v{22+4*a}")
        for a in range(2):
            for q in range(16):
                s_ = 32 + 16*a + q; r = X + 32*a + 2*q
                e(f"v_lshlrev_b32 v{r}, 16, v{s_}"); e(f"v_and_b32 v{r+1}, 0xffff0000, v{s_}")
        for a in range(2):
            for q in range(16):
                r = X + 32*a + 2*q
                e(f"v_pk_fma_f32 v[{r}:{r+1}], v[{r}:{r+1}], v[{20+4*a}:{21+4*a}], v[{22+4*a}:{23+4*a}]")

    def ln_finish(self, lds_mod):
        e = self.e
        X = 128
        e("v_lshrrev_b32 v3, 4, v1"); e("v_and_b32 v4, 15, v1")
        e("v_lshlrev_b32 v6, 4, v4")
        e(f"v_add_u32 v6, {lds_mod}, v6")
        for j in range(4):
            for hh in range(2):
                e(f"ds_read_b128 v[{64+8*j+4*hh}:{67+8*j+4*hh}], v6 offset:{2048 + 512*j + 256*hh}")
                e(f"ds_read_b128 v[{96+8*j+4*hh}:{99+8*j+4*hh}], v6 offset:{512*j + 256*hh}")
        for a in range(2):
            e(f"s_lshl_b32 s20, s3, 3"); e(f"s_add_u32 s20, s20, {4*a}")
            e(f"v_add_u32 v15, s20, v3"); e(f"v_and_b32 v16, 15, v15"); e(f"v_xor_b32 v16, v16, v4")
            e(f"v_lshlrev_b32 v15, 10, v15"); e(f"v_lshl_add_u32 v{18+a}, v16, 4, v15")
        for j in range(4):
            e(f"s_waitcnt lgkmcnt({4*(3-j) + 2*j if False else min(15, 4*(3-j) + 2*j)})" if False else f"s_waitcnt lgkmcnt({4*(3-j)})" if j == 0 else "s_waitcnt lgkmcnt(0)" if j == 1 else "s_nop 0")
            for a in range(2):
                for q in range(4):
                    r = X + 32*a + 8*j + 2*q
                    e(f"v_pk_fma_f32 v[{r}:{r+1}], v[{r}:{r+1}], v[{64+8*j+2*q}:{65+8*j+2*q}], v[{96+8*j+2*q}:{97+8*j+2*q}]")
                pk = 24 + 4*a
                for q in range(4):
                    r = X + 32*a + 8*j + 2*q
                    e(f"v_cvt_pk_bf16_f32 v{pk+q}, v{r}, v{r+1}")
                e(f"ds_write_b128 v{18+a}, v[{pk}:{pk+3}] offset:{256*j}")

    def repack_issue(self):
        e = self.e
        self.srd(48, P_WIN, 0, 512*1792*2)
        e("v_cmp_le_u32 vcc, 224, v0"); e("v_mov_b32 v223, 1"); e("v_cndmask_b32 v226, 0, v223, vcc")
        e("v_mul_u32_u24 v225, 224, v226"); e("v_sub_u32 v225, v0, v225")
        e("s_lshl_b32 s20, s2, 1"); e("v_add_u32 v226, s20, v226")
        e("v_mul_u32_u24 v224, 3584, v226"); e("v_lshl_add_u32 v224, v225, 4, v224")
        e("buffer_load_dwordx4 v[228:231], v224, s[48:51], 0 offen")
        e("v_cmp_le_u32 vcc, 112, v225"); e("v_mov_b32 v223, 112"); e("v_cndmask_b32 v224, 0, v223, vcc"); e("v_sub_u32 v225, v225, v224")
        e("v_mov_b32 v223, 0"); e("v_cndmask_b32 v224, 14, v223, vcc")
        e("v_mul_u32_u24 v227, 4682, v225"); e("v_lshrrev_b32 v227, 16, v227")
        e("v_mul_u32_u24 v223, 14, v227"); e("v_sub_u32 v225, v225, v223"); e("v_add_u32 v225, v225, v224")
        e("v_bfe_u32 v223, v226, 3, 1"); e("v_lshlrev_b32 v223, 1, v223"); e("v_xor_b32 v225, v225, v223")
        e(f"v_mul_u32_u24 v227, {512*448}, v227"); e("v_mul_u32_u24 v223, 448, v226"); e("v_add_u32 v227, v227, v223")
        e("v_lshl_add_u32 v227, v225, 4, v227")

    def repack_store(self):
        e = self.e
        self.srd(48, P_WS, WS_WINP, 8*512*448)
        sk = self.lab("rps")
        e("s_cmp_eq_u32 s3, 7"); e(f"s_cbranch_scc1 {sk}")
        e(f"buffer_store_dwordx4 v[228:231], v227, s[48:51], 0 offen {ST}")
        self.a.label(sk)

    def mod_loads(self, lo, hi, bar):
        e = self.e
        nomod1 = self.lab("nomod")
        e(f"s_sub_u32 s20, s2, {lo}"); e(f"s_cmp_ge_u32 s20, {hi-lo}"); e(f"s_cbranch_scc1 {nomod1}")
        e("v_and_b32 v72, 7, v0"); e("v_lshrrev_b32 v73, 3, v0")
        e("v_mul_u32_u24 v74, 6144, v73"); e("v_lshl_add_u32 v74, v72, 4, v74")
        e("v_lshlrev_b32 v75, 1, v73")
        e("s_and_b32 s20, s2, 3"); e("s_lshr_b32 s21, s2, 2")
        e(f"s_mul_i32 s40, s20, {128*6144}"); e("s_lshl_b32 s21, s21, 7"); e("s_add_u32 s40, s40, s21"); e(f"s_add_u32 s41, s40, {64*6144}")
        e("s_lshl_b32 s42, s20, 8")
        e("buffer_load_dwordx4 v[80:83], v74, s[32:35], s40 offen")
        e("buffer_load_dwordx4 v[84:87], v74, s[32:35], s41 offen")
        e("buffer_load_ushort v76, v75, s[36:39], s42 offen")
        e("buffer_load_ushort v77, v75, s[36:39], s42 offen offset:128")
        if bar: e("s_barrier")
        self.a.label(nomod1)

    def mod_compute(self, lo, hi, wait):
        e = self.e
        MSCR = 155648
        nomod2 = self.lab("nomod")
        e(f"s_sub_u32 s20, s2, {lo}"); e(f"s_cmp_ge_u32 s20, {hi-lo}"); e(f"s_cbranch_scc1 {nomod2}")
        for j in range(8): e(f"v_mov_b32 v{64+j}, 0")
        e(f"s_waitcnt vmcnt({wait})")
        self.stamp(29)
        for i in range(2):
            c = 76 + i
            e(f"v_lshlrev_b32 v{c}, 16, v{c}")
            e(f"v_mul_f32 v12, {fl(-LOG2E)}, v{c}"); e("v_exp_f32 v12, v12"); e("v_add_f32 v12, 1.0, v12"); e("v_rcp_f32 v12, v12")
            e(f"v_mul_f32 v{c}, v{c}, v12")
            self.bf16_round(c, c)
        for i in range(2):
            for q in range(4):
                w = 80 + 4*i + q
                e(f"v_lshlrev_b32 v12, 16, v{w}"); e(f"v_and_b32 v13, 0xffff0000, v{w}")
                e(f"v_fmac_f32 v{64+2*q}, v{76+i}, v12"); e(f"v_fmac_f32 v{65+2*q}, v{76+i}, v13")
        for j in range(8): e(f"v_add_f32_dpp v{64+j}, v{64+j}, v{64+j} row_ror:8 row_mask:0xf bank_mask:0xf")
        e("v_lshrrev_b32 v12, 4, v0"); e("v_lshlrev_b32 v12, 8, v12"); e("v_lshl_add_u32 v12, v72, 5, v12")
        e(f"v_add_u32 v12, {MSCR}, v12")
        e("v_and_b32 v13, 8, v1"); e("v_cmp_eq_u32 vcc, 0, v13")
        e("s_and_saveexec_b64 s[44:45], vcc")
        e("ds_write_b128 v12, v[64:67]"); e("ds_write_b128 v12, v[68:71] offset:16")
        e("s_mov_b64 exec, s[44:45]")
        e("s_waitcnt lgkmcnt(0)")
        self.stamp(30)
        e("s_barrier")
        mdone = self.lab("mdone")
        e("s_cmp_lg_u32 s3, 7"); e(f"s_cbranch_scc1 {mdone}")
        e("v_lshlrev_b32 v72, 2, v1"); e(f"v_add_u32 v12, {MSCR}, v72")
        for i in range(32): e(f"ds_read_b32 v{80+i}, v12 offset:{256*i}")
        for lo in (0, 16):
            e(f"s_waitcnt lgkmcnt({15 if lo == 0 else 0})")
            if lo == 0: e("s_waitcnt lgkmcnt(15)")
        e("s_waitcnt lgkmcnt(0)")
        for st in (16, 8, 4, 2, 1):
            for i in range(st): e(f"v_add_f32 v{80+i}, v{80+i}, v{80+i+st}")
        e("s_and_b32 s20, s2, 3"); e("s_mul_i32 s20, s20, 12288"); e("s_lshr_b32 s21, s2, 2"); e("s_lshl_b32 s21, s21, 8"); e("s_add_u32 s20, s20, s21")
        ng = self.lab("nogran")
        e("s_cmp_ge_u32 s2, 64"); e(f"s_cbranch_scc1 {ng}")
        self.srd(48, P_WS, WS_MODG, 32768)
        e(f"v_mov_b32 v81, s{S_NONCE}"); e("v_lshlrev_b32 v82, 3, v1")
        e("s_and_b32 s21, s2, 3"); e("s_lshl_b32 s21, s21, 13"); e("s_lshr_b32 s22, s2, 2"); e("s_lshl_b32 s22, s22, 9"); e("s_add_u32 s21, s21, s22")
        e(f"buffer_store_dwordx2 v[80:81], v82, s[48:51], s21 offen {ST}")
        self.a.label(ng)
        e(f"buffer_store_dword v80, v72, s[12:15], s20 offen {ST}")
        e("s_waitcnt vmcnt(0)")
        self.signal(lambda: (e("s_lshl_b32 s46, s2, 2"), e(f"s_add_u32 s46, s46, {F0}")), nrep=8, rep_stride=1024)
        self.a.label(mdone)
        self.a.label(nomod2)

    def mod_late_a(self):
        e = self.e
        MSCR = 155648
        sk = self.lab("mla")
        e("s_sub_u32 s20, s2, 64"); e("s_cmp_ge_u32 s20, 128"); e(f"s_cbranch_scc1 {sk}")
        e("s_cmp_eq_u32 s3, 7"); e(f"s_cbranch_scc1 {sk}")
        self.srd(32, P_WMOD, 0, 512*3072*2); self.srd(36, P_C, 0, 1024)
        e("v_and_b32 v72, 7, v0"); e("v_lshrrev_b32 v73, 3, v0")
        e("v_mul_u32_u24 v74, 6144, v73"); e("v_lshl_add_u32 v74, v72, 4, v74"); e("v_lshlrev_b32 v75, 1, v73")
        e("s_and_b32 s20, s2, 3"); e("s_lshr_b32 s21, s2, 2")
        e(f"s_mul_i32 s40, s20, {128*6144}"); e("s_lshl_b32 s21, s21, 7"); e("s_add_u32 s40, s40, s21")
        e(f"s_add_u32 s41, s40, {56*6144}"); e(f"s_add_u32 s43, s40, {112*6144}"); e("s_lshl_b32 s42, s20, 8")
        for r in range(88, 92): e(f"v_mov_b32 v{r}, 0")
        e("v_mov_b32 v78, 0")
        e("buffer_load_dwordx4 v[80:83], v74, s[32:35], s40 offen"); e("buffer_load_dwordx4 v[84:87], v74, s[32:35], s41 offen")
        e("buffer_load_ushort v76, v75, s[36:39], s42 offen"); e("buffer_load_ushort v77, v75, s[36:39], s42 offen offset:112")
        e("v_cmp_gt_u32 vcc, 16, v73"); e("s_and_saveexec_b64 s[44:45], vcc")
        s3 = self.lab("mla3")
        e(f"s_cbranch_execz {s3}")
        e("buffer_load_dwordx4 v[88:91], v74, s[32:35], s43 offen"); e("buffer_load_ushort v78, v75, s[36:39], s42 offen offset:224")
        self.a.label(s3)
        e("s_mov_b64 exec, s[44:45]")
        for j in range(8): e(f"v_mov_b32 v{64+j}, 0")
        e("s_waitcnt vmcnt(0)")
        for i in range(3):
            c = 76 + i
            e(f"v_lshlrev_b32 v{c}, 16, v{c}")
            e(f"v_mul_f32 v12, {fl(-LOG2E)}, v{c}"); e("v_exp_f32 v12, v12"); e("v_add_f32 v12, 1.0, v12"); e("v_rcp_f32 v12, v12")
            e(f"v_mul_f32 v{c}, v{c}, v12")
            self.bf16_round(c, c)
        for i in range(3):
            for q in range(4):
                w = 80 + 4*i + q
                e(f"v_lshlrev_b32 v12, 16, v{w}"); e(f"v_and_b32 v13, 0xffff0000, v{w}")
                e(f"v_fmac_f32 v{64+2*q}, v{76+i}, v12"); e(f"v_fmac_f32 v{65+2*q}, v{76+i}, v13")
        for j in range(8): e(f"v_add_f32_dpp v{64+j}, v{64+j}, v{64+j} row_ror:8 row_mask:0xf bank_mask:0xf")
        e("v_lshrrev_b32 v12, 4, v0"); e("v_lshlrev_b32 v12, 8, v12"); e("v_lshl_add_u32 v12, v72, 5, v12"); e(f"v_add_u32 v12, {MSCR}, v12")
        e("v_and_b32 v13, 8, v1"); e("v_cmp_eq_u32 vcc, 0, v13"); e("s_and_saveexec_b64 s[44:45], vcc")
        e("ds_write_b128 v12, v[64:67]"); e("ds_write_b128 v12, v[68:71] offset:16")
        e("s_mov_b64 exec, s[44:45]")
        e("s_waitcnt lgkmcnt(0)")
        self.a.label(sk)

    def mod_late_b(self):
        e = self.e
        MSCR = 155648
        sk = self.lab("mlb")
        e("s_sub_u32 s20, s2, 64"); e("s_cmp_ge_u32 s20, 128"); e(f"s_cbranch_scc1 {sk}")
        e("s_cmp_lg_u32 s3, 6"); e(f"s_cbranch_scc1 {sk}")
        self.srd(48, P_WS, WS_MOD, 49152)
        e("v_lshlrev_b32 v178, 2, v1"); e(f"v_add_u32 v179, {MSCR}, v178")
        for i in range(28): e(f"ds_read_b32 v{180+i}, v179 offset:{256*i}")
        e("s_waitcnt lgkmcnt(0)")
        for i in range(1, 28): e(f"v_add_f32 v180, v180, v{180+i}")
        e("s_and_b32 s20, s2, 3"); e("s_mul_i32 s20, s20, 12288"); e("s_lshr_b32 s21, s2, 2"); e("s_lshl_b32 s21, s21, 8"); e("s_add_u32 s20, s20, s21")
        e(f"buffer_store_dword v180, v178, s[48:51], s20 offen {ST}")
        self.a.label(sk)

    def mod_late_flag(self):
        e = self.e
        sk = self.lab("mlf")
        e("s_sub_u32 s20, s2, 64"); e("s_cmp_ge_u32 s20, 128"); e(f"s_cbranch_scc1 {sk}")
        e("s_cmp_lg_u32 s3, 6"); e(f"s_cbranch_scc1 {sk}")
        e("s_lshl_b32 s46, s2, 2"); e(f"s_add_u32 s46, s46, {F0}")
        e(f"v_mov_b32 v250, s{S_NONCE}"); e("v_mul_u32_u24 v251, 1024, v1")
        e("s_mov_b64 exec, 0xff")
        e(f"buffer_store_dword v250, v251, s[{SRD_F}:{SRD_F+3}], s46 offen {ST}")
        e("s_mov_b64 exec, -1")
        self.a.label(sk)

    def p01(self):
        e = self.e
        RING = 65536; SL = 12288; D = 7; MODL = RING + D*SL
        MSCR = 155648
        self.srd(8, P_X, 0, 2048*512*2)
        self.srd(12, P_WS, WS_MOD, 49152)
        self.srd(16, P_WQKV, 0, 512*1536*2)
        self.srd(24, P_WS, WS_QK, 4*MB)
        self.srd(28, P_WS, WS_V, 2*MB)
        self.srd(32, P_WMOD, 0, 512*3072*2)
        self.srd(36, P_C, 0, 1024)
        self.mod_loads(0, self.MODCRIT, True)
        self.get_nonce()
        self.stamp(25)
        if self.XLATE:
            xl = self.lab("xlate")
            e("s_cmp_ge_u32 s2, 192"); e(f"s_cbranch_scc1 {xl}")
            e("s_waitcnt vmcnt(0)")
            self.a.label(xl)
        e("s_lshl_b32 s6, s4, 16")
        self.ln_loads(8, 6)
        self.stamp(26)
        tk = self.lab("touch")
        e("s_cmp_ge_u32 s3, 3"); e(f"s_cbranch_scc1 {tk}")
        e("s_and_b32 s20, s4, 7"); e("s_lshl_b32 s20, s20, 6")
        e("v_add_u32 v7, s20, v1"); e("v_mul_u32_u24 v7, 3072, v7")
        e("s_lshl_b32 s20, s5, 8"); e("s_lshl_b32 s21, s3, 7"); e("s_add_u32 s20, s20, s21")
        e("s_lshl_b32 s21, s5, 7"); e("s_add_u32 s21, s21, 2048")
        e("s_cmp_eq_u32 s3, 2"); e("s_cselect_b32 s20, s21, s20")
        e("buffer_load_dword v9, v7, s[16:19], s20 offen")
        self.a.label(tk)
        self.stamp(27)
        e("s_and_b32 s7, s3, 3")
        for m in range(3):
            d = 192 + m
            e(f"s_lshl_b32 s20, s7, 6"); e(f"s_add_u32 s20, s20, {256*m}")
            e(f"v_add_u32 v200, s20, v1")
            e(f"v_mul_u32_u24 v201, 2731, v200"); e(f"v_lshrrev_b32 v201, 16, v201")
            e(f"v_mul_u32_u24 v202, 24, v201"); e(f"v_sub_u32 v202, v200, v202")
            e(f"v_bfe_u32 v203, v201, 1, 1"); e(f"v_bfe_u32 v204, v201, 3, 1")
            e(f"v_lshl_or_b32 v203, v204, 1, v203"); e(f"v_lshlrev_b32 v203, 1, v203")
            e(f"v_xor_b32 v202, v202, v203"); e(f"v_lshlrev_b32 v203, 4, v202")
            e(f"s_lshl_b32 s20, s5, 8"); e(f"v_add_u32 v204, s20, v203")
            e(f"s_lshl_b32 s20, s5, 7"); e(f"s_add_u32 s20, s20, {2048-256}"); e(f"v_add_u32 v205, s20, v203")
            e(f"v_cmp_gt_u32 vcc, 16, v202"); e(f"v_cndmask_b32 v204, v205, v204, vcc")
            e(f"v_mul_u32_u24 v201, 3072, v201"); e(f"v_add_u32 v{d}, v201, v204")
        e("s_lshl_b32 s7, s7, 10"); e(f"s_add_u32 s7, s7, {RING}")
        e("s_lshr_b32 s32, s3, 2")
        self.stamp(28)
        self.mod_compute(0, self.MODCRIT, 8)
        self.stamp(0)
        e(f"s_mul_i32 s33, s32, {32*3072}")
        e(f"s_mul_i32 s34, s32, {SL}"); e("s_add_u32 s34, s34, s7")
        def issue_pair(pairidx):
            def f():
                e(f"s_add_u32 s23, s33, {2*pairidx*32*3072}")
                for m in range(3):
                    self.dma(192+m, 16, "s23", f"s_add_u32 m0, s34, {2*pairidx*SL + m*4096}")
            return f
        issue_pair(0)()
        e("s_waitcnt vmcnt(3)")
        self.stamp(1)
        nop = lambda: None
        self.ln_stats([nop, nop, issue_pair(1), nop, nop, issue_pair(2)])
        self.stamp(2)
        e("s_barrier")
        e("v_mov_b32 v249, 0"); e("ds_read_b32 v249, v249"); e("s_waitcnt lgkmcnt(0)"); e(f"v_readfirstlane_b32 s{S_NONCE}, v249")
        self.srd(48, P_WS, WS_MODG, 32768)
        e("v_lshlrev_b32 v248, 4, v0")
        e("s_mov_b32 s47, 0")
        mp = self.lab("modp"); md = self.lab("modd")
        self.a.label(mp)
        for kq in range(4):
            e(f"s_mov_b32 s22, {kq*8192}")
            e(f"buffer_load_dwordx4 v[{232+4*kq}:{235+4*kq}], v248, s[48:51], s22 offen sc1")
        e("s_add_u32 s47, s47, 1"); e(f"s_cmp_gt_u32 s47, {SPIN_CAP}"); e(f"s_cbranch_scc1 {md}")
        e("s_waitcnt vmcnt(0)")
        e("s_mov_b64 s[42:43], -1")
        for kq in range(4):
            for k in (1, 3):
                e(f"v_cmp_eq_u32 vcc, s{S_NONCE}, v{232+4*kq+k}"); e("s_and_b64 s[42:43], s[42:43], vcc")
        e("s_cmp_eq_u64 s[42:43], -1"); e(f"s_cbranch_scc0 {mp}")
        self.a.label(md)
        e("s_waitcnt vmcnt(0)")
        self.stamp(3)
        for kq in range(4):
            e(f"v_mov_b32 v{224+2*kq}, v{232+4*kq}"); e(f"v_mov_b32 v{225+2*kq}, v{234+4*kq}")
        for r in range(8): e(f"v_mov_b32 v{240+r}, v{224+r}")
        e("v_lshlrev_b32 v248, 3, v0")
        e("v_lshrrev_b32 v3, 4, v1"); e("v_and_b32 v4, 15, v1")
        e("v_lshrrev_b32 v5, 2, v4"); e("v_and_b32 v6, 3, v4")
        e("v_lshl_add_u32 v7, v3, 3, v5"); e("v_mul_u32_u24 v7, 384, v7"); e("v_lshl_add_u32 v7, v6, 3, v7")
        e(f"v_add_u32 v7, {RING}, v7")
        e("v_bfe_u32 v8, v5, 1, 1"); e("v_and_b32 v9, 1, v3"); e("v_lshl_or_b32 v8, v9, 1, v8")
        e("s_lshr_b32 s20, s3, 1")
        for c in range(3):
            if c < 2: e(f"s_lshl_b32 s21, s20, 1"); e(f"s_add_u32 s21, s21, {c}")
            else: e(f"s_add_u32 s21, s20, 8")
            e("s_lshr_b32 s22, s21, 2"); e("s_lshl_b32 s22, s22, 7"); e("s_and_b32 s21, s21, 3")
            e(f"v_xor_b32 v9, s21, v8"); e(f"v_lshl_add_u32 v{200+c}, v9, 5, v7"); e(f"v_add_u32 v{200+c}, s22, v{200+c}")
            e(f"v_add_u32 v{204+c}, {5*SL}, v{200+c}")
        e("s_and_b32 s21, s3, 1"); e("s_lshl_b32 s21, s21, 5")
        e("v_add_u32 v9, s21, v4"); e("v_lshlrev_b32 v9, 10, v9")
        for m in range(4):
            e(f"v_add_u32 v10, {4*m}, v3"); e(f"v_xor_b32 v10, v10, v4"); e(f"v_lshl_add_u32 v{208+m}, v10, 4, v9")
        self.mod_finish(MODL)
        e("s_waitcnt lgkmcnt(0)")
        e("s_barrier")
        self.ln_finish(MODL)
        ACC = 128
        e("s_waitcnt lgkmcnt(0)")
        e("s_barrier")
        for r in range(24): e(f"v_mov_b32 v{192+8+r}, 0") if False else None
        ACC = 212
        for r in range(24): e(f"v_mov_b32 v{ACC+r}, 0")
        self.stamp(4)
        def reads_list(n):
            buf = n % 2; slot = n % D
            out = []
            for rt in range(2):
                b = 32 + 32*buf + 4*rt
                out.append(f"ds_read_b128 v[{b}:{b+3}], v{208 + (n & 3)} offset:{rt*16384 + (n >> 2)*256}")
            for c in range(3):
                b = 40 + 32*buf + 4*c
                areg, off = (200 + c, slot*SL) if slot < 5 else (204 + c, (slot-5)*SL)
                for t in range(2):
                    out.append(f"ds_read_b64_tr_b16 v[{b+2*t}:{b+2*t+1}], v{areg} offset:{off + 4*t*384}")
            return out
        def mfmas(n):
            buf = n % 2
            for c in range(3):
                for rt in range(2):
                    acc = ACC + 4*(rt*3 + c)
                    x = 32 + 32*buf + 4*rt; w = 40 + 32*buf + 4*c
                    A, B = (w, x) if c < 2 else (x, w)
                    yield f"v_mfma_f32_16x16x32_bf16 v[{acc}:{acc+3}], v[{A}:{A+3}], v[{B}:{B+3}], v[{acc}:{acc+3}]"
        NK = 16
        for r in reads_list(0): e(r)
        for n in range(NK):
            if n + 1 < NK:
                if n + 1 >= 6:
                    hi = min(n + 5, NK - 1)
                    cA = sum(1 for s in range(max(n+2, 6), hi+1) if s % 2 == 0); cB = sum(1 for s in range(max(n+2, 6), hi+1) if s % 2 == 1)
                    e(f"s_waitcnt vmcnt({3*min(cA, cB)})")
                e("s_barrier")
            e("s_waitcnt lgkmcnt(0)")
            ms = list(mfmas(n)); rs = reads_list(n + 1) if n + 1 < NK else []
            ri = 0
            for i, m in enumerate(ms):
                e(m)
                for _ in range(2 if i < 2 else 1):
                    if ri < len(rs): e(rs[ri]); ri += 1
            st = n + D - 1
            if st < NK:
                lsk = self.lab("qkv_sk")
                e(f"s_cmp_lg_u32 s32, {st & 1}"); e(f"s_cbranch_scc1 {lsk}")
                e(f"s_mov_b32 s23, {st*32*3072}")
                for m in range(3): self.dma(192+m, 16, "s23", f"s_add_u32 m0, s7, {(st % D)*SL + m*4096}")
                self.a.label(lsk)
        self.stamp(5)
        e("v_lshlrev_b32 v8, 4, v1")
        e("s_and_b32 s20, s3, 1"); e("s_lshl_b32 s21, s4, 1"); e("s_add_u32 s21, s21, s20"); e("s_lshl_b32 s21, s21, 10")
        e("s_lshr_b32 s20, s3, 1")
        e(f"s_mov_b32 s22, {fl(0.25*LOG2E)}"); e("s_cmp_lt_u32 s5, 4"); e("s_cselect_b32 s22, s22, 1.0")
        for c in range(3):
            if c < 2:
                e("s_lshl_b32 s23, s5, 3"); e("s_lshl_b32 s6, s20, 1"); e("s_add_u32 s23, s23, s6"); e(f"s_add_u32 s23, s23, {c}")
            else:
                e("s_lshl_b32 s23, s5, 2"); e("s_add_u32 s23, s23, s20")
            e("s_lshl_b32 s23, s23, 16"); e("s_add_u32 s23, s23, s21")
            pk = 32 + 4*c
            for rt in range(2):
                acc = ACC + 4*(rt*3 + c)
                if c < 2:
                    for q in range(4): e(f"v_mul_f32 v{acc+q}, s22, v{acc+q}")
                e(f"v_cvt_pk_bf16_f32 v{pk+2*rt}, v{acc}, v{acc+1}"); e(f"v_cvt_pk_bf16_f32 v{pk+2*rt+1}, v{acc+2}, v{acc+3}")
            sw = "v_permlane16_swap_b32" if c < 2 else "v_permlane32_swap_b32"
            e(f"{sw} v{pk}, v{pk+2}"); e(f"{sw} v{pk+1}, v{pk+3}")
            e(f"buffer_store_dwordx4 v[{pk}:{pk+3}], v8, {'s[24:27]' if c < 2 else 's[28:31]'}, s23 offen {ST}")
        self.phase_end()
        self.signal(lambda: (e("s_lshl_b32 s46, s5, 7"), e("s_lshl_b32 s47, s4, 2"), e("s_add_u32 s46, s46, s47"), e(f"s_add_u32 s46, s46, {F1}")),
                    nrep=8, rep_stride=1024)
        if self.MODCRIT < 192: self.mod_late_a()
        if self.REPACK:
            rpi = self.lab("rpi")
            e("s_cmp_eq_u32 s3, 7"); e(f"s_cbranch_scc1 {rpi}")
            self.repack_issue()
            self.a.label(rpi)
        self.stamp(6)

    def l2_prefetch(self, vtmp, vdst):
        e = self.e
        e("s_and_b32 s20, s2, 7"); e("s_lshr_b32 s21, s2, 3")
        e(f"v_lshlrev_b32 v{vtmp}, 7, v1")
        self.srd(48, P_WSP, 0, 2048*2048*2)
        e("s_and_b32 s22, s20, 3"); e("s_lshl_b32 s22, s22, 21"); e("s_lshl_b32 s23, s21, 16"); e("s_add_u32 s22, s22, s23")
        e("s_lshl_b32 s23, s3, 13"); e("s_add_u32 s22, s22, s23")
        e(f"buffer_load_dword v{vdst}, v{vtmp}, s[48:51], s22 offen")
        if self.REPACK:
            self.srd(48, P_WS, WS_WINP, 8*512*448)
            e("s_lshr_b32 s22, s20, 2"); e(f"s_mul_i32 s22, s22, {4*512*448}")
            e(f"s_mul_i32 s23, s21, {224*128}"); e("s_add_u32 s22, s22, s23")
            e("s_lshl_b32 s23, s3, 13"); e("s_add_u32 s22, s22, s23")
            pw4 = self.lab("pf4")
            e("s_cmp_ge_u32 s3, 4"); e(f"s_cbranch_scc1 {pw4}")
            e(f"buffer_load_dword v{vdst+2}, v{vtmp}, s[48:51], s22 offen")
            self.a.label(pw4)
        else:
            self.srd(48, P_WIN, 0, 512*1792*2)
            e(f"v_lshrrev_b32 v{vdst+1}, 5, v1"); e(f"v_bfe_u32 v{vdst+2}, v1, 4, 1")
            e(f"v_and_b32 v{vdst+3}, 15, v1"); e(f"v_min_u32 v{vdst+3}, 7, v{vdst+3}")
            e(f"v_mul_u32_u24 v{vdst+1}, 3584, v{vdst+1}"); e(f"v_mul_u32_u24 v{vdst+2}, 1792, v{vdst+2}")
            e(f"v_add_u32 v{vdst+1}, v{vdst+1}, v{vdst+2}"); e(f"v_lshl_add_u32 v{vdst+1}, v{vdst+3}, 7, v{vdst+1}")
            e("s_lshr_b32 s22, s20, 2"); e("s_mul_i32 s22, s22, 896")
            e("s_lshl_b32 s23, s21, 4"); e("s_lshl_b32 s46, s3, 1"); e("s_add_u32 s23, s23, s46"); e("s_mul_i32 s23, s23, 3584")
            e("s_add_u32 s22, s22, s23")
            e(f"buffer_load_dword v{vdst+2}, v{vdst+1}, s[48:51], s22 offen")
        e(f"v_lshrrev_b32 v{vdst+1}, 2, v1"); e(f"v_and_b32 v{vdst+3}, 3, v1")
        e(f"v_lshlrev_b32 v{vdst+1}, 10, v{vdst+1}"); e(f"v_lshl_add_u32 v{vdst+1}, v{vdst+3}, 7, v{vdst+1}")
        e("s_lshr_b32 s22, s20, 2"); e("s_lshl_b32 s22, s22, 9")
        lw = self.lab("pf_w"); lx = self.lab("pf_x")
        e("s_cmp_ge_u32 s3, 2"); e(f"s_cbranch_scc1 {lw}")
        self.srd(48, P_WOUT, 0, 896*512*2)
        e("s_mul_i32 s23, s21, 28"); e("s_lshl_b32 s46, s3, 4"); e("s_add_u32 s23, s23, s46"); e("s_lshl_b32 s23, s23, 10")
        e("s_add_u32 s22, s22, s23")
        e(f"buffer_load_dword v{vdst+3}, v{vdst+1}, s[48:51], s22 offen")
        e(f"s_branch {lx}")
        self.a.label(lw)
        e("s_cmp_lg_u32 s3, 2"); e(f"s_cbranch_scc1 {lx}")
        self.srd(48, P_WO, 0, 512*512*2)
        e("s_lshl_b32 s23, s21, 14"); e("s_add_u32 s22, s22, s23")
        e(f"buffer_load_dword v{vdst+3}, v{vdst+1}, s[48:51], s22 offen")
        self.a.label(lx)

    def p2(self):
        e = self.e
        end = self.lab("att_end")
        H, QB_ = S_HEAD, S_QB
        self.srd(8, P_WS, WS_QK, 4*MB)
        self.srd(12, P_WS, WS_V, 2*MB)
        self.srd(16, P_WS, WS_O, 2*MB)
        e("s_and_b32 s6, s3, 3"); e("s_lshr_b32 s7, s3, 2")
        e("v_lshlrev_b32 v2, 4, v1")
        QA, QB = 8, 12
        SA, SB = 32, 48
        PA, PB = 64, 72
        OA, OB = 80, 96
        CA, CB = 112, 128
        KF = 144; VF = 152
        AK, AV = 4, 5
        FLAG = 131072 + 20480
        e(f"v_mov_b32 v3, {FLAG}"); e("v_mov_b32 v4, 0"); e("ds_write_b32 v3, v4")
        e("v_and_b32 v6, 31, v1"); e("v_and_b32 v7, 27, v6"); e("v_cmp_eq_u32 vcc, 16, v7")
        e("v_mov_b32 v16, 0x3f803f80"); e("v_cndmask_b32 v16, 0, v16, vcc")
        for r in range(16): e(f"v_mov_b32 v{VF+r}, v16")
        e("v_cmp_gt_u32 s[30:31], 16, v6")
        for r in range(16):
            e(f"v_mov_b32 v{CA+r}, 0"); e(f"v_mov_b32 v{CB+r}, 0")
        e("s_mov_b32 s33, 0")
        def cKV():
            e("s_and_b32 s46, s2, 7"); e("s_lshl_b32 s46, s46, 10"); e(f"s_add_u32 s46, s46, {F1}")
            e(f"s_lshr_b32 s44, s{H}, 3"); e("s_add_u32 s44, s44, 4"); e("s_lshl_b32 s44, s44, 7")
            e(f"s_lshr_b32 s45, s{H}, 2"); e("s_lshl_b32 s45, s45, 7")
            e("v_and_b32 v251, 31, v1"); e("v_lshlrev_b32 v251, 2, v251")
            e("v_mov_b32 v252, s44"); e("v_mov_b32 v253, s45")
            e("v_cmp_gt_u32 vcc, 32, v1"); e("v_cndmask_b32 v252, v253, v252, vcc")
            e("v_add_u32 v251, v251, v252")
        def cQ():
            e("s_and_b32 s46, s2, 7"); e("s_lshl_b32 s46, s46, 10"); e(f"s_add_u32 s46, s46, {F1}")
            e(f"s_lshr_b32 s44, s{H}, 3"); e("s_lshl_b32 s44, s44, 7"); e("s_add_u32 s46, s46, s44")
            e(f"s_lshl_b32 s44, s{QB_}, 4"); e("s_add_u32 s46, s46, s44")
            e("v_lshlrev_b32 v251, 2, v1")
        self.wait_flags([(cKV, (1 << 64) - 1), (cQ, 0xf)])
        self.stamp(7)
        e(f"s_lshl_b32 s20, s{QB_}, 3"); e("s_lshl_b32 s21, s6, 1"); e("s_add_u32 s20, s20, s21"); e("s_lshl_b32 s20, s20, 10")
        e(f"s_lshl_b32 s21, s{H}, 16"); e("s_add_u32 s20, s20, s21")
        e(f"buffer_load_dwordx4 v[{QA}:{QA+3}], v2, s[8:11], s20 offen")
        e(f"buffer_load_dwordx4 v[{QB}:{QB+3}], v2, s[8:11], s20 offen offset:1024")
        e(f"s_lshl_b32 s41, s{H}, 16"); e(f"s_add_u32 s40, s41, {32*65536}"); e("s_lshl_b32 s42, s3, 10")
        e("s_add_u32 s40, s40, s42"); e("s_add_u32 s41, s41, s42")
        def dma_half(half):
            e(f"s_add_u32 s20, s40, {32*half*1024}")
            self.dma(2, 8, "s20", f"s_add_u32 m0, s42, {32*half*1024}")
            e(f"s_add_u32 s20, s41, {32*half*1024}")
            self.dma(2, 12, "s20", f"s_add_u32 m0, s42, {65536 + 32*half*1024}")
        def next_chunk():
            e("s_add_u32 s40, s40, 8192"); e("s_add_u32 s41, s41, 8192"); e("s_add_u32 s42, s42, 8192")
        dma_half(0); dma_half(1); next_chunk()
        if self.MODCRIT < 192: self.mod_late_b()
        lrestart = self.lab("att_restart")
        self.a.label(lrestart)
        for r in range(16):
            e(f"v_mov_b32 v{OA+r}, 0"); e(f"v_mov_b32 v{OB+r}, 0")
        e("s_lshl_b32 s20, s7, 15"); e(f"v_add_u32 v{AK}, s20, v2")
        e("v_lshrrev_b32 v6, 5, v1"); e("v_and_b32 v7, 15, v1"); e("v_lshlrev_b32 v7, 4, v7"); e("v_lshl_add_u32 v7, v6, 8, v7")
        e("s_add_u32 s20, s20, 65536"); e(f"v_add_u32 v{AV}, s20, v7")
        for r in range(8): e(f"v_mov_b32 v{PB+r}, 0")
        if self.BALANCE:
            e("s_lshl_b32 s20, s3, 2"); e(f"s_add_u32 s20, s20, {151552 + 64}"); e("v_mov_b32 v17, s20")
            e("s_xor_b32 s20, s20, 16"); e("v_mov_b32 v18, s20")
            e("v_mov_b32 v19, 0"); e("ds_write_b32 v17, v19")
        e("s_mov_b64 exec, s[30:31]")
        for r in range(8): e(f"v_mov_b32 v{VF+8+r}, 0")
        e("s_mov_b64 exec, -1")
        def rdK(buf, off): e(f"ds_read_b128 v[{KF+4*buf}:{KF+4*buf+3}], v{AK} offset:{off}")
        def rdV(buf, off):
            e("s_mov_b64 exec, s[30:31]")
            e(f"ds_read_b128 v[{VF+8*buf}:{VF+8*buf+3}], v{AV} offset:{off}")
            e(f"ds_read_b128 v[{VF+8*buf+4}:{VF+8*buf+7}], v{AV} offset:{off+512}")
            e("s_mov_b64 exec, -1")
        def qk(S, C, Q, buf): e(f"v_mfma_f32_32x32x16_bf16 v[{S}:{S+15}], v[{KF+4*buf}:{KF+4*buf+3}], v[{Q}:{Q+3}], v[{C}:{C+15}]")
        def pv(O, P, buf, mf): e(f"v_mfma_f32_32x32x16_bf16 v[{O}:{O+15}], v[{VF+8*buf+4*mf}:{VF+8*buf+4*mf+3}], v[{P+4*mf}:{P+4*mf+3}], v[{O}:{O+15}]")
        def step(S, P, first, mid1, mid2, pre=None, extra=None):
            if pre: pre()
            first()
            k = 0
            for j in range(16):
                e(f"v_exp_f32 v{S+j}, v{S+j}")
                if j >= 3 and j % 2 == 1:
                    e(f"v_cvt_pk_bf16_f32 v{P+k}, v{S+2*k}, v{S+2*k+1}"); k += 1
                if j == self.M1 and mid1: mid1()
                if j == 7 and extra: extra()
                if j == self.M2 and mid2: mid2()
            while k < 8:
                e(f"v_cvt_pk_bf16_f32 v{P+k}, v{S+2*k}, v{S+2*k+1}"); k += 1
        e("s_waitcnt vmcnt(0) lgkmcnt(0)")
        e("s_barrier")
        self.stamp(8)
        if self.REPACK:
            rps = self.lab("att_rps")
            e("s_cmp_lg_u32 s33, 0"); e(f"s_cbranch_scc1 {rps}")
            self.repack_store()
            self.a.label(rps)
        rdK(0, 0); rdV(0, 0)
        e("s_waitcnt lgkmcnt(0)")
        qk(SA, CA, QA, 0)
        e("s_mov_b32 s34, 0")
        loop = self.lab("att_loop")
        self.a.label(loop)
        nb = self.lab("att_nobar")
        e("s_add_u32 s35, s34, s33")
        if self.PREFETCH:
            pf = self.lab("att_pf")
            e(f"s_cmp_lg_u32 s34, {11 if self.REPACK else 4}"); e(f"s_cbranch_scc1 {pf}"); e("s_cmp_lg_u32 s33, 0"); e(f"s_cbranch_scc1 {pf}")
            self.l2_prefetch(170, 172)
            self.a.label(pf)
        if self.REPACK:
            fr = self.lab("att_fr")
            e("s_cmp_lg_u32 s3, 7"); e(f"s_cbranch_scc1 {fr}")
            e("s_cmp_lg_u32 s33, 0"); e(f"s_cbranch_scc1 {fr}")
            e("s_cmp_lg_u32 s34, 10"); e(f"s_cbranch_scc1 {fr}")
            e("s_and_b32 s21, s2, 7"); e("s_lshl_b32 s21, s21, 10"); e(f"s_add_u32 s21, s21, {FR}")
            e("v_lshlrev_b32 v238, 4, v1"); e("s_mov_b32 s47, 0")
            frl = self.lab("att_frl"); frd = self.lab("att_frd")
            self.a.label(frl)
            e(f"buffer_load_dwordx4 v[240:243], v238, s[{SRD_F}:{SRD_F+3}], s21 offen sc1")
            e("s_add_u32 s47, s47, 1"); e(f"s_cmp_gt_u32 s47, {SPIN_CAP}"); e(f"s_cbranch_scc1 {frd}")
            e("s_waitcnt vmcnt(0)")
            e("s_mov_b64 s[36:37], -1")
            for r in range(240, 244):
                e(f"v_cmp_eq_u32 vcc, s{S_NONCE}, v{r}"); e("s_and_b64 s[36:37], s[36:37], vcc")
            e("s_cmp_eq_u64 s[36:37], -1"); e(f"s_cbranch_scc0 {frl}")
            self.a.label(frd)
            e("s_waitcnt vmcnt(0)")
            self.a.label(fr)
        e("s_cmp_lg_u32 s35, 3"); e(f"s_cbranch_scc1 {nb}")
        e("s_waitcnt vmcnt(0)")
        e("s_barrier")
        if self.REPACK: self.signal(lambda: (e("s_lshl_b32 s46, s2, 2"), e(f"s_add_u32 s46, s46, {FR}")), nrep=8, rep_stride=1024)
        if self.MODCRIT < 192: self.mod_late_flag()
        self.a.label(nb)
        def extra_dma():
            sk = self.lab("att_nd")
            e("s_cmp_ge_u32 s35, 3"); e(f"s_cbranch_scc1 {sk}")
            dma_half(0); dma_half(1); next_chunk()
            self.a.label(sk)
        step(SA, PA, lambda: qk(SB, CB, QB, 0), lambda: pv(OB, PB, 1, 0), lambda: pv(OB, PB, 1, 1), pre=lambda: rdK(1, 1024), extra=extra_dma)
        def preB0():
            rdV(1, 1024); e("s_waitcnt lgkmcnt(2)")
            if self.BALANCE:
                e("v_mov_b32 v19, s34")
                e("ds_write_b32 v17, v19")
                e("ds_read_b32 v24, v18")
        step(SB, PB, lambda: qk(SA, CA, QA, 1), lambda: pv(OA, PA, 0, 0), lambda: pv(OA, PA, 0, 1), pre=preB0)
        step(SA, PA, lambda: qk(SB, CB, QB, 1), lambda: pv(OB, PB, 0, 0), lambda: pv(OB, PB, 0, 1), pre=lambda: rdK(0, 2048))
        def preB1():
            rdV(0, 2048); e("s_waitcnt lgkmcnt(2)")
            if self.BALANCE:
                hi = self.lab("att_hi"); dn_ = self.lab("att_pd")
                e("v_readfirstlane_b32 s20, v24")
                e("s_cmp_gt_u32 s34, s20"); e(f"s_cbranch_scc0 {hi}")
                e("s_setprio 0"); e(f"s_branch {dn_}")
                self.a.label(hi)
                e("s_setprio 1")
                self.a.label(dn_)
        step(SB, PB, lambda: qk(SA, CA, QA, 0), lambda: pv(OA, PA, 1, 0), lambda: pv(OA, PA, 1, 1), pre=preB1)
        e(f"v_add_u32 v{AK}, 2048, v{AK}"); e(f"v_add_u32 v{AV}, 2048, v{AV}")
        e("s_add_u32 s34, s34, 1"); e("s_cmp_lt_u32 s34, 16"); e(f"s_cbranch_scc1 {loop}")
        if self.BALANCE:
            e("v_mov_b32 v19, 64"); e("ds_write_b32 v17, v19"); e("s_setprio 0")
        self.stamp(9)
        pv(OB, PB, 1, 0); pv(OB, PB, 1, 1)
        SCR = 131072
        e("s_mul_i32 s20, s3, 2560"); e(f"s_add_u32 s20, s20, {SCR}")
        e("v_add_u32 v6, s20, v2"); e("v_lshlrev_b32 v7, 2, v1"); e("v_add_u32 v7, s20, v7")
        lk1 = self.lab("att_k1"); lx = self.lab("att_x")
        e("s_cmp_eq_u32 s7, 0"); e(f"s_cbranch_scc1 {lk1}")
        e(f"ds_write_b128 v6, v[{OA}:{OA+3}]"); e(f"ds_write_b128 v6, v[{OA+4}:{OA+7}] offset:1024"); e(f"ds_write_b32 v7, v{OA+8} offset:2048")
        for r in range(9): e(f"v_mov_b32 v{OA+r}, v{OB+r}")
        e(f"s_branch {lx}")
        self.a.label(lk1)
        e(f"ds_write_b128 v6, v[{OB}:{OB+3}]"); e(f"ds_write_b128 v6, v[{OB+4}:{OB+7}] offset:1024"); e(f"ds_write_b32 v7, v{OB+8} offset:2048")
        self.a.label(lx)
        e("s_xor_b32 s21, s3, 4"); e("s_mul_i32 s21, s21, 2560"); e(f"s_add_u32 s21, s21, {SCR}")
        e("v_add_u32 v6, s21, v2"); e("v_lshlrev_b32 v7, 2, v1"); e("v_add_u32 v7, s21, v7")
        e("s_waitcnt lgkmcnt(0)"); e("s_barrier")
        e(f"ds_read_b128 v[{SA}:{SA+3}], v6"); e(f"ds_read_b128 v[{SA+4}:{SA+7}], v6 offset:1024"); e(f"ds_read_b32 v{SA+8}, v7 offset:2048")
        e(f"v_mov_b32 v20, {fl(2.0**-24)}"); e(f"v_mov_b32 v21, {fl(2.0**40)}"); e(f"v_mov_b32 v22, 0x7f7fffff")
        e("s_waitcnt lgkmcnt(0)")
        for r in range(9): e(f"v_add_f32 v{OA+r}, v{OA+r}, v{SA+r}")
        e(f"v_max3_f32 v23, |v{OA}|, |v{OA+1}|, |v{OA+2}|"); e(f"v_max3_f32 v23, v23, |v{OA+3}|, |v{OA+4}|")
        e(f"v_max3_f32 v23, v23, |v{OA+5}|, |v{OA+6}|"); e(f"v_max_f32 v23, v23, |v{OA+7}|")
        e(f"v_cmp_ge_f32 vcc, v{OA+8}, v20"); e(f"v_cmp_le_f32 s[36:37], v{OA+8}, v21"); e(f"v_cmp_le_f32 s[38:39], v23, v22")
        e("s_and_b64 s[36:37], s[36:37], vcc"); e("s_and_b64 s[36:37], s[36:37], s[38:39]")
        lok = self.lab("att_ok")
        e("s_cmp_eq_u64 s[36:37], -1"); e(f"s_cbranch_scc1 {lok}")
        e(f"v_mov_b32 v3, {FLAG}"); e("v_mov_b32 v20, 1"); e("ds_write_b32 v3, v20"); e("s_waitcnt lgkmcnt(0)")
        self.a.label(lok)
        e(f"v_rcp_f32 v20, v{OA+8}")
        for r in range(8): e(f"v_mul_f32 v{OA+r}, v{OA+r}, v20")
        for q in range(4): e(f"v_cvt_pk_bf16_f32 v{SB+q}, v{OA+2*q}, v{OA+2*q+1}")
        e("s_barrier")
        e(f"v_mov_b32 v3, {FLAG}"); e("ds_read_b32 v20, v3")
        e(f"s_lshl_b32 s20, s{QB_}, 3"); e("s_lshl_b32 s21, s6, 1"); e("s_add_u32 s20, s20, s21"); e("s_add_u32 s20, s20, s7")
        e("s_lshl_b32 s20, s20, 15"); e(f"s_lshl_b32 s21, s{H}, 10"); e("s_add_u32 s22, s20, s21")
        e("s_waitcnt lgkmcnt(0)")
        e("v_readfirstlane_b32 s20, v20")
        lfin = self.lab("att_fin"); lslow = self.lab("att_slow")
        e("s_cmp_lg_u32 s33, 0"); e(f"s_cbranch_scc1 {lfin}")
        e("s_cmp_lg_u32 s20, 0"); e(f"s_cbranch_scc1 {lslow}")
        self.a.label(lfin)
        e(f"buffer_store_dwordx4 v[{SB}:{SB+3}], v2, s[16:19], s22 offen {ST}")
        e(f"s_branch {end}")
        self.a.label(lslow)
        e("s_mov_b32 s33, 8")
        e("s_lshl_b32 s20, s7, 15"); e(f"v_add_u32 v{AK}, s20, v2")
        e("v_mov_b32 v20, 0xff800000"); e("v_mov_b32 v21, 0xff800000")
        e("s_mov_b32 s34, 0")
        sl = self.lab("att_sl")
        self.a.label(sl)
        rdK(0, 0); e("s_waitcnt lgkmcnt(0)")
        e(f"v_mfma_f32_32x32x16_bf16 v[{SA}:{SA+15}], v[{KF}:{KF+3}], v[{QA}:{QA+3}], 0")
        e(f"v_mfma_f32_32x32x16_bf16 v[{SB}:{SB+15}], v[{KF}:{KF+3}], v[{QB}:{QB+3}], 0")
        for r in range(0, 16, 2): e(f"v_max3_f32 v20, v20, v{SA+r}, v{SA+r+1}")
        for r in range(0, 16, 2): e(f"v_max3_f32 v21, v21, v{SB+r}, v{SB+r+1}")
        e(f"v_add_u32 v{AK}, 1024, v{AK}")
        e("s_add_u32 s34, s34, 1"); e("s_cmp_lt_u32 s34, 32"); e(f"s_cbranch_scc1 {sl}")
        for r in (20, 21):
            e(f"v_mov_b32 v22, v{r}"); e(f"v_permlane32_swap_b32 v{r}, v22"); e(f"v_max_f32 v{r}, v{r}, v22")
        e("s_lshl_b32 s20, s3, 9"); e(f"s_add_u32 s20, s20, {SCR}")
        e("v_lshlrev_b32 v6, 2, v1"); e("v_add_u32 v7, s20, v6")
        e("s_barrier")
        e("ds_write_b32 v7, v20"); e("ds_write_b32 v7, v21 offset:256"); e("s_waitcnt lgkmcnt(0)"); e("s_barrier")
        e("s_xor_b32 s20, s3, 4"); e("s_lshl_b32 s20, s20, 9"); e(f"s_add_u32 s20, s20, {SCR}"); e("v_add_u32 v7, s20, v6")
        e("ds_read_b32 v22, v7"); e("ds_read_b32 v23, v7 offset:256"); e("s_waitcnt lgkmcnt(0)")
        e("v_max_f32 v20, v20, v22"); e("v_max_f32 v21, v21, v23")
        for r in range(16):
            e(f"v_sub_f32 v{CA+r}, 0, v20"); e(f"v_sub_f32 v{CB+r}, 0, v21")
        e("s_barrier")
        e(f"s_branch {lrestart}")
        self.a.label(end)
        self.phase_end()
        self.signal(lambda: (e(f"s_lshl_b32 s46, s{QB_}, 7"), e(f"s_lshl_b32 s47, s{H}, 2"), e("s_add_u32 s46, s46, s47"), e(f"s_add_u32 s46, s46, {F2}")))
        self.stamp(10)

    def proj_wvoff(self):
        e = self.e
        e("v_lshlrev_b32 v2, 4, v1")
        e("v_lshrrev_b32 v3, 3, v1"); e("v_and_b32 v4, 7, v1"); e("v_bfe_u32 v5, v3, 1, 1"); e("v_lshlrev_b32 v5, 2, v5")
        e("v_xor_b32 v4, v4, v5"); e("v_lshlrev_b32 v3, 10, v3"); e("v_lshl_add_u32 v3, v4, 4, v3")
        e("s_lshl_b32 s20, s5, 7"); e("v_add_u32 v3, s20, v3")

    def proj_epi_addr(self):
        e = self.e
        e("v_lshrrev_b32 v14, 2, v1"); e("v_and_b32 v15, 3, v1")
        e("s_and_b32 s20, s3, 1"); e("s_lshl_b32 s20, s20, 5"); e("s_lshl_b32 s21, s4, 6"); e("s_add_u32 s20, s20, s21")
        e("s_lshr_b32 s21, s3, 2"); e("s_lshl_b32 s21, s21, 4"); e("s_add_u32 s36, s20, s21")
        e("v_add_u32 v16, s36, v14"); e("v_lshlrev_b32 v16, 10, v16"); e("v_lshl_add_u32 v16, v15, 4, v16")
        e("s_bfe_u32 s20, s3, 0x10001"); e("s_lshl_b32 s20, s20, 6"); e("s_lshl_b32 s21, s5, 7"); e("s_add_u32 s32, s20, s21")
        e("v_lshlrev_b32 v17, 5, v15"); e("s_lshl_b32 s33, s32, 1")

    def proj_gate_loads(self, gate_chunk):
        e = self.e
        for kq in range(4):
            e(f"s_add_u32 s20, s33, {kq*12288 + gate_chunk*2048}")
            for hh in range(2):
                e(f"buffer_load_dwordx4 v[{160+8*kq+4*hh}:{163+8*kq+4*hh}], v17, s[28:31], s20 offen offset:{16*hh}")

    def proj_addr(self, natural, xbase, wbase):
        e = self.e
        e("s_and_b32 s20, s3, 1"); e("s_lshl_b32 s20, s20, 13"); e("s_lshr_b32 s21, s3, 2"); e("s_lshl_b32 s22, s21, 12")
        e("s_add_u32 s20, s20, s22"); e(f"s_add_u32 s20, s20, {xbase}"); e("v_add_u32 v8, s20, v2")
        e("v_lshrrev_b32 v4, 4, v1"); e("v_and_b32 v5, 15, v1"); e("v_lshrrev_b32 v6, 2, v5"); e("v_and_b32 v7, 3, v5")
        e("v_lshrrev_b32 v10, 1, v4"); e("v_and_b32 v11, 1, v4")
        e(f"v_lshl_add_u32 v12, v10, {3 if natural else 2}, v6"); e("v_lshlrev_b32 v12, 7, v12")
        e("v_bfe_u32 v13, v6, 1, 1"); e("s_bfe_u32 s20, s3, 0x10001"); e("v_xor_b32 v13, s20, v13")
        e("v_lshl_add_u32 v12, v13, 6, v12"); e("v_lshl_add_u32 v12, v11, 5, v12"); e("v_lshl_add_u32 v12, v7, 3, v12")
        e("s_lshl_b32 s22, s21, 13"); e(f"s_add_u32 s22, s22, {wbase}"); e("v_add_u32 v9, s22, v12")

    def proj_chunk(self, ACC, xoff, wreg, woff, natural):
        e = self.e
        tstep = (4 if natural else 8) * 128
        for ks in range(4):
            b = 96 + 8*ks
            e(f"ds_read_b128 v[{b}:{b+3}], v8 offset:{xoff + ks*1024}")
            e(f"ds_read_b64_tr_b16 v[{b+4}:{b+5}], v{wreg} offset:{woff + ks*2048}")
            e(f"ds_read_b64_tr_b16 v[{b+6}:{b+7}], v{wreg} offset:{woff + ks*2048 + tstep}")
        for ks in range(4):
            b = 96 + 8*ks
            e(f"s_waitcnt lgkmcnt({3*(3-ks)})")
            e(f"v_mfma_f32_32x32x16_bf16 v[{ACC}:{ACC+15}], v[{b+4}:{b+7}], v[{b}:{b+3}], v[{ACC}:{ACC+15}]")

    def proj_epilogue(self, ACC, srd_out, flags, stats):
        e = self.e
        e("s_barrier")
        e("s_mul_i32 s20, s3, 4608")
        e("v_and_b32 v18, 31, v1"); e("v_mul_u32_u24 v18, 144, v18"); e("v_lshrrev_b32 v19, 5, v1")
        e("v_lshl_add_u32 v18, v19, 4, v18"); e("v_add_u32 v18, s20, v18")
        for g in range(4): e(f"ds_write_b128 v18, v[{ACC+4*g}:{ACC+4*g+3}] offset:{32*g}")
        e("s_waitcnt vmcnt(0)")
        for q in range(4):
            for kq in (1,):
                e(f"v_pk_add_f32 v[{160+2*q}:{161+2*q}], v[{160+2*q}:{161+2*q}], v[{168+2*q}:{169+2*q}]")
                e(f"v_pk_add_f32 v[{176+2*q}:{177+2*q}], v[{176+2*q}:{177+2*q}], v[{184+2*q}:{185+2*q}]")
        for q in range(4):
            e(f"v_pk_add_f32 v[{160+2*q}:{161+2*q}], v[{160+2*q}:{161+2*q}], v[{176+2*q}:{177+2*q}]")
        for q in range(4):
            e(f"v_cvt_pk_bf16_f32 v{168+q}, v{160+2*q}, v{161+2*q}")
        for q in range(4):
            e(f"v_lshlrev_b32 v{160+2*q}, 16, v{168+q}"); e(f"v_and_b32 v{161+2*q}, 0xffff0000, v{168+q}")
        e("s_and_b32 s20, s3, 3"); e("s_mul_i32 s20, s20, 4608"); e("s_lshr_b32 s21, s3, 2"); e(f"s_mul_i32 s21, s21, {16*144}")
        e("s_add_u32 s20, s20, s21")
        e("v_mul_u32_u24 v18, 144, v14"); e("v_lshl_add_u32 v18, v15, 5, v18"); e("v_add_u32 v18, s20, v18")
        e("s_waitcnt lgkmcnt(0)"); e("s_barrier")
        e("ds_read_b128 v[48:51], v18"); e("ds_read_b128 v[52:55], v18 offset:16")
        e(f"ds_read_b128 v[56:59], v18 offset:{4*4608}"); e(f"ds_read_b128 v[60:63], v18 offset:{4*4608+16}")
        e("s_waitcnt lgkmcnt(0)")
        for q in range(4):
            e(f"v_pk_add_f32 v[{48+2*q}:{49+2*q}], v[{48+2*q}:{49+2*q}], v[{56+2*q}:{57+2*q}]")
        for q in range(4):
            e(f"v_lshlrev_b32 v{56+2*q}, 16, v{32+q}"); e(f"v_and_b32 v{57+2*q}, 0xffff0000, v{32+q}")
        for q in range(4):
            e(f"v_pk_fma_f32 v[{56+2*q}:{57+2*q}], v[{160+2*q}:{161+2*q}], v[{48+2*q}:{49+2*q}], v[{56+2*q}:{57+2*q}]")
        for q in range(4):
            e(f"v_cvt_pk_bf16_f32 v{32+q}, v{56+2*q}, v{57+2*q}")
        e(f"buffer_store_dwordx4 v[32:35], v16, {sr(srd_out,4)}, s32 offen {flags}")
        if stats:
            e("v_pk_add_f32 v[48:49], v[56:57], v[58:59]"); e("v_pk_add_f32 v[50:51], v[60:61], v[62:63]")
            e("v_pk_add_f32 v[48:49], v[48:49], v[50:51]"); e("v_add_f32 v48, v48, v49")
            for m in ("quad_perm:[1,0,3,2]", "quad_perm:[2,3,0,1]"):
                e(f"v_add_f32_dpp v48, v48, v48 {m} row_mask:0xf bank_mask:0xf")
            e(f"v_mul_f32 v48, {fl(1.0/32)}, v48")
            e("v_sub_f32 v50, 0, v48"); e("v_mov_b32 v51, v50")
            for q in range(4): e(f"v_pk_add_f32 v[{56+2*q}:{57+2*q}], v[{56+2*q}:{57+2*q}], v[50:51]")
            e("v_pk_mul_f32 v[52:53], v[56:57], v[56:57]")
            for q in range(1, 4): e(f"v_pk_fma_f32 v[52:53], v[{56+2*q}:{57+2*q}], v[{56+2*q}:{57+2*q}], v[52:53]")
            e("v_add_f32 v49, v52, v53")
            for m in ("quad_perm:[1,0,3,2]", "quad_perm:[2,3,0,1]"):
                e(f"v_add_f32_dpp v49, v49, v49 {m} row_mask:0xf bank_mask:0xf")
            self.srd(40, P_WS, WS_STX, 2048*128)
            e("v_add_u32 v18, s36, v14"); e("v_lshlrev_b32 v18, 7, v18")
            e("s_bfe_u32 s20, s3, 0x10001"); e("s_lshl_b32 s21, s5, 1"); e("s_add_u32 s20, s20, s21"); e("s_lshl_b32 s20, s20, 3")
            e("v_cmp_eq_u32 vcc, 0, v15"); e("s_and_saveexec_b64 s[44:45], vcc")
            e(f"buffer_store_dwordx2 v[48:49], v18, s[40:43], s20 offen {ST}")
            e("s_mov_b64 exec, s[44:45]")

    def p3(self):
        e = self.e
        self.srd(8, P_WS, WS_O, 2*MB); self.srd(12, P_WO, 0, 512*512*2)
        self.srd(16, P_X, 0, 2*MB); self.srd(24, P_WS, WS_X1, 2*MB); self.srd(28, P_WS, WS_MOD, 49152)
        self.proj_wvoff()
        self.proj_addr(False, 65536, 0)
        self.proj_epi_addr()
        def pre3():
            for m in range(10):
                sk = None
                if m == 9:
                    sk = self.lab("p3w"); e("s_cmp_lg_u32 s3, 0"); e(f"s_cbranch_scc1 {sk}")
                e(f"s_add_u32 s21, s3, {7*m}"); e("s_lshl_b32 s20, s21, 13"); e("s_lshl_b32 s21, s21, 10")
                self.dma(3, 12, "s20", "s_mov_b32 m0, s21")
                if sk: self.a.label(sk)
        def cO():
            e("s_lshr_b32 s46, s4, 2"); e("s_lshl_b32 s46, s46, 7"); e(f"s_add_u32 s46, s46, {F2}"); e("v_lshlrev_b32 v251, 2, v1")
        def cM(k):
            def f():
                e("s_and_b32 s46, s2, 7"); e("s_lshl_b32 s46, s46, 10"); e(f"s_add_u32 s46, s46, {F0 + 256*k}"); e("v_lshlrev_b32 v251, 2, v1")
            return f
        self.wait_flags([(cM(1), (1 << 64) - 1), (cM(2), (1 << 64) - 1), (cO, 0xffffffff)], pre=pre3, w7_after=False)
        self.stamp(11)
        e(f"s_mul_i32 s6, s4, {2*32*1024}"); e("s_lshl_b32 s21, s3, 10"); e("s_add_u32 s6, s6, s21")
        for c in range(4):
            for tt in range(2):
                e(f"s_add_u32 s20, s6, {tt*32*1024 + c*8*1024}")
                self.dma(2, 8, "s20", f"s_add_u32 m0, s21, {65536 + c*16384 + tt*8192}")
            if c < 3: e("s_barrier")
        e("buffer_load_dwordx4 v[32:35], v16, s[16:19], s32 offen")
        self.proj_gate_loads(2)
        ACC = 64
        for r in range(16): e(f"v_mov_b32 v{ACC+r}, 0")
        for c in range(4):
            e(f"s_waitcnt vmcnt({2*(3-c) + 9})"); e("s_barrier")
            if c == 0: self.stamp(35)
            self.proj_chunk(ACC, c*16384, 9, c*16384, False)
        self.stamp(36)
        self.proj_epilogue(ACC, 24, ST, True)
        self.stamp(37)
        self.phase_end()
        self.signal(lambda: (e("s_lshl_b32 s46, s4, 7"), e("s_lshl_b32 s47, s5, 2"), e("s_add_u32 s46, s46, s47"), e(f"s_add_u32 s46, s46, {F3}")))
        self.stamp(12)

    def p4(self):
        e = self.e
        RING = 65536; SL = 14336; D = 6; MODL = RING + D*SL
        PART = 155648
        Z1L = 135168
        self.srd(8, P_WS, WS_X1, 2*MB)
        self.srd(12, P_WS, WS_MOD, 49152)
        if self.REPACK: self.srd(16, P_WS, WS_WINP, 8*512*448)
        else: self.srd(16, P_WIN, 0, 512*1792*2)
        self.srd(28, P_WS, WS_Z2, 56*64*1024)
        self.srd(36, P_WS, WS_ST, 32*8*64*16)
        if self.REPACK:
            e("v_lshlrev_b32 v192, 4, v1")
            e("s_lshl_b32 s7, s3, 10"); e(f"s_add_u32 s7, s7, {RING}")
            e(f"s_mul_i32 s33, s5, {512*448}"); e("s_lshl_b32 s20, s3, 10"); e("s_add_u32 s33, s33, s20")
            e("s_cmp_ge_u32 s3, 6"); e("s_cselect_b32 s35, 0, 8192")
            e("s_add_u32 s34, s33, s35"); e("s_add_u32 s35, s35, s7")
        else:
            for m in range(2):
                d = 192 + m
                e(f"s_lshl_b32 s20, s3, 6"); e(f"s_add_u32 s20, s20, {512*m}")
                e(f"v_add_u32 v200, s20, v1")
                e(f"v_mul_u32_u24 v201, 2341, v200"); e(f"v_lshrrev_b32 v201, 16, v201")
                e(f"v_mul_u32_u24 v202, 28, v201"); e(f"v_sub_u32 v202, v200, v202")
                e(f"v_bfe_u32 v203, v201, 3, 1"); e(f"v_lshlrev_b32 v203, 1, v203"); e(f"v_xor_b32 v202, v202, v203")
                e(f"v_lshlrev_b32 v203, 4, v202")
                e(f"s_mul_i32 s20, s5, 224"); e(f"s_add_u32 s21, s20, 1792"); e(f"v_add_u32 v204, s21, v203")
                e(f"s_sub_u32 s21, s20, 224"); e(f"v_add_u32 v205, s21, v203")
                e(f"v_cmp_gt_u32 vcc, 14, v202"); e(f"v_cndmask_b32 v204, v205, v204, vcc")
                e(f"v_mul_u32_u24 v201, 3584, v201"); e(f"v_add_u32 v{d}, v201, v204")
            e("s_lshl_b32 s7, s3, 10"); e(f"s_add_u32 s7, s7, {RING}")
            e("s_cmp_ge_u32 s3, 6"); e("s_cselect_b64 vcc, -1, 0"); e("v_cndmask_b32 v194, v193, v192, vcc")
            e("s_cselect_b32 s35, 0, 8192"); e("s_add_u32 s35, s35, s7")
        def issue(stage, cnt):
            if self.REPACK:
                for m in range(cnt):
                    e(f"s_add_u32 s23, s33, {stage*14336 + m*8192}")
                    self.dma(192, 16, "s23", f"s_add_u32 m0, s7, {(stage % D)*SL + m*8192}")
            else:
                e(f"s_mov_b32 s23, {stage*32*3584}")
                for m in range(cnt):
                    self.dma(192+m, 16, "s23", f"s_add_u32 m0, s7, {(stage % D)*SL + m*8192}")
        def pre4():
            self.mod_issue(12, 3)
            for st in range(D-1):
                if self.REPACK:
                    e(f"s_add_u32 s23, s33, {st*14336}")
                    self.dma(192, 16, "s23", f"s_add_u32 m0, s7, {st*SL}")
                    e(f"s_add_u32 s23, s34, {st*14336}")
                    self.dma(192, 16, "s23", f"s_add_u32 m0, s35, {st*SL}")
                else:
                    e(f"s_mov_b32 s23, {st*32*3584}")
                    self.dma(192, 16, "s23", f"s_add_u32 m0, s7, {st*SL}")
                    self.dma(194, 16, "s23", f"s_add_u32 m0, s35, {st*SL}")
            e(f"s_waitcnt vmcnt({2*(D-1)})")
            self.mod_finish(MODL)
        e("v_lshrrev_b32 v3, 4, v1"); e("v_and_b32 v4, 15, v1"); e("v_lshrrev_b32 v5, 2, v4"); e("v_and_b32 v6, 3, v4")
        e("v_lshl_add_u32 v7, v3, 3, v5"); e("v_mul_u32_u24 v7, 448, v7"); e("v_lshl_add_u32 v7, v6, 3, v7"); e(f"v_add_u32 v7, {RING}, v7")
        e("v_and_b32 v8, 1, v3"); e("v_lshlrev_b32 v8, 5, v8")
        e("v_add_u32 v200, v7, v8"); e("v_sub_u32 v201, v7, v8")
        e(f"v_add_u32 v202, {4*SL}, v200"); e(f"v_add_u32 v203, {4*SL}, v201")
        e("s_and_b32 s21, s3, 1"); e("s_lshl_b32 s21, s21, 5"); e("v_add_u32 v9, s21, v4"); e("v_lshlrev_b32 v9, 10, v9")
        for m in range(4):
            e(f"v_add_u32 v10, {4*m}, v3"); e(f"v_xor_b32 v10, v10, v4"); e(f"v_lshl_add_u32 v{208+m}, v10, 4, v9")
        e(f"v_mov_b32 v5, {PART + 2048}"); e("v_mov_b32 v6, 0"); e("ds_write_b32 v5, v6")
        def cX():
            e("s_lshl_b32 s46, s4, 7"); e(f"s_add_u32 s46, s46, {F3}"); e("v_lshlrev_b32 v251, 2, v1")
        self.wait_flags([(cX, 0xff)], pre=lambda: (pre4(), e("s_waitcnt lgkmcnt(0)")))
        self.stamp(13)
        e("s_lshl_b32 s6, s4, 16")
        self.ln_loads(8, 6)
        self.srd(40, P_WS, WS_STX, 2048*128)
        e("s_lshl_b32 s20, s4, 6"); e("s_lshl_b32 s21, s3, 3"); e("s_add_u32 s20, s20, s21"); e("s_lshl_b32 s20, s20, 7")
        e("v_lshlrev_b32 v6, 7, v3"); e("v_lshl_add_u32 v6, v4, 3, v6")
        e("buffer_load_dwordx2 v[8:9], v6, s[40:43], s20 offen")
        e("buffer_load_dwordx2 v[10:11], v6, s[40:43], s20 offen offset:512")
        e("s_waitcnt vmcnt(0)")
        self.stamp(14)
        self.ln2_prepare()
        e("s_barrier")
        self.ln_finish(MODL)
        ACC = 212
        for r in range(32): e(f"v_mov_b32 v{ACC+r}, 0")
        e("s_waitcnt lgkmcnt(0)"); e("s_barrier")
        self.stamp(15)
        NK = 16
        c0 = -2.0*math.sqrt(2.0/math.pi)*LOG2E
        c1 = c0*0.044715
        variants = [self.lab("win_v") for _ in range(4)]
        join = self.lab("win_join")
        e("s_lshr_b32 s20, s3, 1")
        for cg in (1, 2, 3):
            e(f"s_cmp_eq_u32 s20, {cg}"); e(f"s_cbranch_scc1 {variants[cg]}")
        for cg in range(4):
            self.a.label(variants[cg])
            z2 = cg < 2
            nt = (4, 3, 3, 4)[cg]
            t0 = (0, 4, 4, 0)[cg]
            sg0 = (0 if z2 else 7) + t0
            cnt = 1 if cg == 3 else 2
            def reads(n):
                buf = n % 2; slot = n % D
                out = []
                for rt in range(2):
                    b = 32 + 32*buf + 4*rt
                    out.append(f"ds_read_b128 v[{b}:{b+3}], v{208 + (n & 3)} offset:{rt*16384 + (n >> 2)*256}")
                for c in range(nt):
                    sg = sg0 + c
                    b = 40 + 32*buf + 4*c
                    areg, off = (200 + (sg & 1), slot*SL) if slot < 4 else (202 + (sg & 1), (slot-4)*SL)
                    for t in range(2):
                        out.append(f"ds_read_b64_tr_b16 v[{b+2*t}:{b+2*t+1}], v{areg} offset:{off + 4*t*448 + sg*32}")
                return out
            for r in reads(0): e(r)
            for n in range(NK):
                if n + 1 < NK:
                    if n + 1 >= D - 1:
                        allowed = cnt * len([s for s in range(max(n+2, D-1), min(n+D-1, NK))])
                        e(f"s_waitcnt vmcnt({allowed})")
                    e("s_barrier")
                e("s_waitcnt lgkmcnt(0)")
                buf = n % 2
                ms = []
                for c in range(nt):
                    for rt in range(2):
                        acc = ACC + 4*(rt*4 + c)
                        x = 32 + 32*buf + 4*rt; w = 40 + 32*buf + 4*c
                        A, B = (x, w) if z2 else (w, x)
                        ms.append(f"v_mfma_f32_16x16x32_bf16 v[{acc}:{acc+3}], v[{A}:{A+3}], v[{B}:{B+3}], v[{acc}:{acc+3}]")
                rs = reads(n + 1) if n + 1 < NK else []
                ri = 0
                for i, m in enumerate(ms):
                    e(m)
                    for _ in range(2 if i < 3 else 1):
                        if ri < len(rs): e(rs[ri]); ri += 1
                while ri < len(rs): e(rs[ri]); ri += 1
                st = n + D - 1
                if st < NK: issue(st, cnt)
            self.stamp(31)
            if z2: e("s_setprio 2")
            e(f"s_mov_b32 s20, {fl(c1)}"); e(f"v_mov_b32 v20, {fl(c0)}")
            accs = [ACC + 4*(rt*4 + c) + r for c in range(nt) for rt in range(2) for r in range(4)]
            for i0 in range(0, len(accs), 4):
                grp = accs[i0:i0+4]
                for k, z in enumerate(grp): e(f"v_mul_f32 v{24+k}, v{z}, v{z}")
                for k, z in enumerate(grp): e(f"v_fma_f32 v{24+k}, v{24+k}, s20, v20")
                for k, z in enumerate(grp): e(f"v_mul_f32 v{24+k}, v{24+k}, v{z}")
                for k, z in enumerate(grp): e(f"v_exp_f32 v{24+k}, v{24+k}")
                for k, z in enumerate(grp): e(f"v_add_f32 v{24+k}, 1.0, v{24+k}")
                for k, z in enumerate(grp): e(f"v_rcp_f32 v{24+k}, v{24+k}")
                for k, z in enumerate(grp): e(f"v_mul_f32 v{z}, v{z}, v{24+k}")
            self.stamp(32)
            e("v_lshrrev_b32 v3, 4, v1"); e("v_and_b32 v4, 15, v1")
            if z2:
                regs = []
                for rt in range(2):
                    for r in range(4):
                        sreg = 64 + 2*(rt*4 + r)
                        a0 = ACC + 4*(rt*4) + r
                        e(f"v_mov_b32 v{sreg}, v{a0}"); e(f"v_mul_f32 v{sreg+1}, v{a0}, v{a0}")
                        for c in range(1, nt):
                            a = ACC + 4*(rt*4 + c) + r
                            e(f"v_add_f32 v{sreg}, v{sreg}, v{a}"); e(f"v_fmac_f32 v{sreg+1}, v{a}, v{a}")
                        regs += [sreg, sreg+1]
                self.dpp_reduce16(regs)
                e("s_and_b32 s20, s3, 1"); e("s_lshl_b32 s20, s20, 8")
                e(f"s_add_u32 s20, s20, {PART + cg*512}")
                e("v_lshlrev_b32 v5, 5, v3"); e("v_add_u32 v5, s20, v5")
                e("v_cmp_eq_u32 vcc, 0, v4"); e("s_and_saveexec_b64 s[40:41], vcc")
                for rt in range(2):
                    e(f"ds_write_b128 v5, v[{64+8*rt}:{67+8*rt}] offset:{rt*128}")
                    e(f"ds_write_b128 v5, v[{68+8*rt}:{71+8*rt}] offset:{rt*128+16}")
                e("s_waitcnt lgkmcnt(0)")
                e(f"v_mov_b32 v5, {PART + 2048}"); e("v_mov_b32 v6, 1")
                e("s_mov_b64 exec, 1")
                e("ds_add_u32 v5, v6")
                e("s_mov_b64 exec, -1")
                self.stamp(33)
                if cg == 0:
                    nx = self.lab("win_nx")
                    e("s_cmp_lg_u32 s3, 0"); e(f"s_cbranch_scc1 {nx}")
                    sp = self.lab("win_sp")
                    e("s_mov_b32 s47, 0")
                    self.a.label(sp)
                    e("ds_read_b32 v6, v5"); e("s_add_u32 s47, s47, 1"); e("s_waitcnt lgkmcnt(0)")
                    e("v_readfirstlane_b32 s20, v6")
                    spd = self.lab("win_spd")
                    e(f"s_cmp_gt_u32 s47, {SPIN_CAP}"); e(f"s_cbranch_scc1 {spd}")
                    e("s_cmp_lt_u32 s20, 4"); e(f"s_cbranch_scc1 {sp}")
                    self.a.label(spd)
                    e("v_lshlrev_b32 v5, 3, v1"); e(f"v_add_u32 v5, {PART}, v5")
                    e("ds_read_b64 v[64:65], v5"); e("ds_read_b64 v[66:67], v5 offset:512")
                    e("s_waitcnt lgkmcnt(0)")
                    e("v_add_f32 v64, v64, v66"); e("v_add_f32 v65, v65, v67")
                    e(f"v_mov_b32 v66, s{S_NONCE}"); e(f"v_mov_b32 v67, s{S_NONCE}")
                    e("v_lshlrev_b32 v6, 4, v1")
                    e("s_lshl_b32 s20, s4, 13"); e("s_lshl_b32 s21, s5, 10"); e("s_add_u32 s21, s21, s20")
                    e(f"buffer_store_dwordx4 v[64:67], v6, s[36:39], s21 offen {ST}")
                    e("s_mov_b32 s47, 0")
                    lp = self.lab("stp"); dn = self.lab("std")
                    self.a.label(lp)
                    for jj in range(8):
                        e(f"s_add_u32 s21, s20, {jj*1024}")
                        e(f"buffer_load_dwordx4 v[{72+4*jj}:{75+4*jj}], v6, s[36:39], s21 offen {ST}")
                    e("s_add_u32 s47, s47, 1"); e(f"s_cmp_gt_u32 s47, {SPIN_CAP}"); e(f"s_cbranch_scc1 {dn}")
                    e("s_waitcnt vmcnt(0)")
                    e("s_mov_b64 s[42:43], -1")
                    for jj in range(8):
                        e(f"v_cmp_eq_u32 vcc, s{S_NONCE}, v{74+4*jj}"); e("s_and_b64 s[42:43], s[42:43], vcc")
                        e(f"v_cmp_eq_u32 vcc, s{S_NONCE}, v{75+4*jj}"); e("s_and_b64 s[42:43], s[42:43], vcc")
                    e("s_cmp_eq_u64 s[42:43], -1")
                    if not Gen.NOHOP: e(f"s_cbranch_scc0 {lp}")
                    self.a.label(dn)
                    e("s_waitcnt vmcnt(0)")
                    for jj in range(1, 8):
                        e(f"v_add_f32 v72, v72, v{72+4*jj}"); e(f"v_add_f32 v73, v73, v{73+4*jj}")
                    e(f"v_mul_f32 v72, {fl(1.0/896)}, v72"); e(f"v_mul_f32 v73, {fl(1.0/896)}, v73")
                    e("v_fma_f32 v73, -v72, v72, v73"); e("v_max_f32 v73, 0, v73"); e(f"v_add_f32 v73, {fl(1e-5)}, v73")
                    e("v_rsq_f32 v75, v73"); e("v_mul_f32 v74, v72, v75"); e("v_sub_f32 v74, 0, v74")
                    e(f"ds_write_b64 v5, v[74:75] offset:1024")
                    self.a.label(nx)
                e("s_setprio 0")
            else:
                e("s_and_b32 s22, s3, 1"); e(f"s_mul_i32 s22, s22, {2*7*512}"); e(f"s_add_u32 s22, s22, {Z1L + t0*512}")
                e("v_lshlrev_b32 v7, 3, v1"); e("v_add_u32 v7, s22, v7")
                for c in range(nt):
                    for rt in range(2):
                        acc = ACC + 4*(rt*4 + c); pk = 32 + 2*(rt + 2*c)
                        e(f"v_cvt_pk_bf16_f32 v{pk}, v{acc}, v{acc+1}"); e(f"v_cvt_pk_bf16_f32 v{pk+1}, v{acc+2}, v{acc+3}")
                        e(f"ds_write_b64 v7, v[{pk}:{pk+1}] offset:{rt*7*512 + c*512}")
            e("s_waitcnt lgkmcnt(0)"); e("s_barrier")
            self.stamp(34)
            if z2:
                e("s_and_b32 s20, s3, 1"); e("s_lshl_b32 s20, s20, 8"); e(f"s_add_u32 s20, s20, {PART + 1024}")
                e("v_lshlrev_b32 v5, 5, v3"); e("v_add_u32 v5, s20, v5")
                for rt in range(2):
                    e(f"ds_read_b128 v[{64+8*rt}:{67+8*rt}], v5 offset:{rt*128}")
                    e(f"ds_read_b128 v[{68+8*rt}:{71+8*rt}], v5 offset:{rt*128+16}")
                e("v_and_b32 v6, 1, v3"); e("v_lshlrev_b32 v5, 9, v6"); e("v_lshrrev_b32 v6, 1, v3"); e("v_lshl_add_u32 v5, v6, 8, v5")
                e("v_lshl_add_u32 v5, v4, 4, v5")
                e("s_and_b32 s20, s3, 1"); e("s_lshl_b32 s21, s4, 1"); e("s_add_u32 s20, s20, s21"); e("s_lshl_b32 s20, s20, 10")
                e("s_mul_i32 s21, s5, 0x70000"); e("s_add_u32 s20, s20, s21")
                e("s_waitcnt lgkmcnt(0)")
                for c in range(nt):
                    e(f"s_add_u32 s21, s20, {(t0+c)*65536}")
                    pk = 32 + 4*c
                    for rt in range(2):
                        acc = ACC + 4*(rt*4 + c)
                        for r in range(4):
                            e(f"v_fma_f32 v{acc+r}, v{acc+r}, v{64+8*rt+2*r+1}, v{64+8*rt+2*r}")
                        e(f"v_cvt_pk_bf16_f32 v{pk+2*rt}, v{acc}, v{acc+1}"); e(f"v_cvt_pk_bf16_f32 v{pk+2*rt+1}, v{acc+2}, v{acc+3}")
                    e(f"v_permlane16_swap_b32 v{pk}, v{pk+2}"); e(f"v_permlane16_swap_b32 v{pk+1}, v{pk+3}")
                    e(f"buffer_store_dwordx4 v[{pk}:{pk+3}], v5, s[28:31], s21 offen {ST}")
            if cg < 3: e(f"s_branch {join}")
        self.a.label(join)
        self.phase_end()
        self.signal(lambda: (e("s_lshl_b32 s46, s5, 7"), e("s_lshl_b32 s47, s4, 2"), e("s_add_u32 s46, s46, s47"), e(f"s_add_u32 s46, s46, {F4}")))
        self.stamp(16)

    def p5(self):
        e = self.e
        end = self.lab("sp_end")
        Z1L = 135168
        self.srd(8, P_WSP, 0, 2048*2048*2)
        self.srd(12, P_WS, WS_Z2, 56*64*1024)
        self.srd(24, P_WS, WS_Y, 64*56*1024)
        self.srd(28, P_BSP, 0, 4096)
        SL = 22528; D = self.SPD; NST = 32
        e(f"s_mov_b32 s44, {(-(D-1)*SL) & 0xffffffff}"); e(f"s_mov_b32 s45, {SL}")
        e("v_lshlrev_b32 v2, 4, v1"); e("v_lshrrev_b32 v3, 4, v1"); e("v_and_b32 v4, 15, v1")
        def cZ():
            e("s_lshl_b32 s46, s5, 7"); e(f"s_add_u32 s46, s46, {F4}"); e("v_lshlrev_b32 v251, 2, v1")
        lp = self.lab("sp_prod")
        e("s_cmp_ge_u32 s3, 4"); e(f"s_cbranch_scc1 {lp}")
        e("s_and_b32 s20, s3, 1"); e("s_lshl_b32 s21, s4, 2"); e("s_lshl_b32 s22, s20, 1"); e("s_add_u32 s21, s21, s22")
        e("v_lshlrev_b32 v5, 1, v4"); e("s_lshl_b32 s22, s21, 5")
        e("buffer_load_ushort v20, v5, s[28:31], s22 offen"); e("buffer_load_ushort v21, v5, s[28:31], s22 offen offset:32")
        e("s_bfe_u32 s23, s3, 0x10001"); e("s_lshl_b32 s23, s23, 2")
        e("v_lshrrev_b32 v7, 1, v3"); e("v_lshlrev_b32 v7, 9, v7"); e("v_lshl_add_u32 v7, v4, 4, v7")
        e("v_and_b32 v8, 1, v3"); e("v_lshl_add_u32 v7, v8, 3, v7")
        e("s_lshl_b32 s21, s4, 1"); e("s_add_u32 s21, s21, s20"); e("s_mul_i32 s21, s21, 56")
        e("s_mul_i32 s6, s5, 7"); e("s_add_u32 s21, s21, s6"); e("s_add_u32 s21, s21, s23"); e("s_lshl_b32 s35, s21, 10")
        e(f"s_mul_i32 s6, s20, {2*7*512}"); e("s_lshl_b32 s21, s23, 9"); e("s_add_u32 s6, s6, s21"); e(f"s_add_u32 s6, s6, {Z1L}")
        e("v_lshlrev_b32 v9, 3, v1"); e("v_add_u32 v9, s6, v9")
        e("s_and_b32 s20, s3, 1"); e("s_lshl_b32 s20, s20, 12"); e("v_lshlrev_b32 v5, 7, v4"); e("v_add_u32 v5, s20, v5")
        e("v_lshrrev_b32 v8, 1, v4")
        for ks in range(2):
            e(f"v_add_u32 v6, {4*ks}, v3"); e(f"v_xor_b32 v6, v6, v8"); e(f"v_lshl_add_u32 v{200+ks}, v6, 4, v5")
        e("s_bfe_u32 s20, s3, 0x10001"); e("s_lshl_b32 s20, s20, 13"); e("s_add_u32 s20, s20, 8192"); e("v_add_u32 v202, s20, v2")
        ZR = 176
        for tt in range(2):
            for f in range(4):
                b = ZR + 2*(tt*4 + f)
                e(f"ds_read_b64 v[{b}:{b+1}], v9 offset:{tt*7*512 + f*512}")
        e("s_waitcnt lgkmcnt(0)")
        ACC = 128
        for r in range(32): e(f"v_mov_b32 v{ACC+r}, 0")
        e("s_barrier")
        LOOK = self.ZLOOK
        if self.ZTOUCH:
            e("s_and_b32 s20, s4, 7"); e("s_mul_i32 s20, s20, 14"); e("v_add_u32 v196, s20, v1")
            e("v_lshrrev_b32 v197, 4, v196"); e("v_lshlrev_b32 v197, 16, v197")
            e("v_bfe_u32 v198, v196, 3, 1"); e("v_lshl_add_u32 v197, v198, 10, v197")
            e("v_and_b32 v198, 7, v196"); e("v_lshl_add_u32 v196, v198, 7, v197")
            e("s_mul_i32 s43, s5, 0x70000"); e(f"s_add_u32 s43, s43, {(D-1)*2048}")
            e("s_cmp_eq_u32 s3, 0"); e("s_cselect_b32 s42, 0x3fff, 0")
            tk = self.lab("sp_tk")
            e("s_cmp_lg_u32 s3, 0"); e(f"s_cbranch_scc1 {tk}")
            e("s_mov_b64 exec, 0x3fff")
            for i in range(LOOK - (D-1)):
                e(f"s_add_u32 s20, s43, {i*2048}")
                e("buffer_load_dword v199, v196, s[12:15], s20 offen")
            e("s_mov_b64 exec, -1")
            self.a.label(tk)
            e(f"s_add_u32 s43, s43, {(LOOK-(D-1))*2048}")
        l3 = self.lab("sp_3"); lepi = self.lab("sp_epi")
        e("s_barrier")
        self.stamp(18)
        e("s_bitcmp1_b32 s3, 1"); e(f"s_cbranch_scc1 {l3}")
        for jj in range(2):
            nf = 4 if jj == 0 else 3
            if jj == 1: self.a.label(l3)
            def reads(ks, buf, nxt):
                b = 32 + 24*buf; ab = 203 if nxt else 200
                for tt in range(2): yield f"ds_read_b128 v[{b+4*tt}:{b+4*tt+3}], v{ab+ks} offset:{tt*2048}"
                for f in range(nf): yield f"ds_read_b128 v[{b+8+4*f}:{b+8+4*f+3}], v{ab+2} offset:{f*2048 + ks*1024}"
            def mf(buf):
                b = 32 + 24*buf
                for f in range(nf):
                    for tt in range(2):
                        acc = ACC + 4*(tt*4 + f)
                        yield f"v_mfma_f32_16x16x32_bf16 v[{acc}:{acc+3}], v[{b+8+4*f}:{b+8+4*f+3}], v[{b+4*tt}:{b+4*tt+3}], v[{acc}:{acc+3}]"
            def interleave(ms, rs):
                ms = list(ms); rs = list(rs)
                if self.X_NOMFMA: ms = []
                if self.X_NOREAD: rs = []
                ri = 0
                for i, m in enumerate(ms):
                    e(m)
                    for _ in range(self.RPG):
                        if ri < len(rs): e(rs[ri]); ri += 1
                for r in rs[ri:]: e(r)
            for r in reads(0, 0, False): e(r)
            e("s_mov_b32 s36, 0"); e(f"s_mov_b32 s37, {SL}"); e("s_mov_b32 s38, 1")
            loop = self.lab("sp_loop")
            self.a.label(loop)
            e("s_barrier")
            for k in range(3): e(f"v_add_u32 v{203+k}, s37, v{200+k}")
            if self.ZTOUCH and jj == 0:
                tk2 = self.lab("sp_tk2")
                e("s_cmp_lg_u32 s3, 0"); e(f"s_cbranch_scc1 {tk2}")
                e(f"s_cmp_ge_u32 s36, {NST} - {LOOK}".replace(f"{NST} - {LOOK}", str(NST - LOOK))); e(f"s_cbranch_scc1 {tk2}")
                e("s_mov_b64 exec, 0x3fff")
                e("buffer_load_dword v199, v196, s[12:15], s43 offen")
                e("s_mov_b64 exec, -1")
                e("s_add_u32 s43, s43, 2048")
                self.a.label(tk2)
            e(f"s_waitcnt lgkmcnt(0)")
            interleave(mf(0), reads(1, 1, False))
            e(f"s_waitcnt lgkmcnt(0)")
            interleave(mf(1), reads(0, 0, True))
            for k in range(3): e(f"v_mov_b32 v{200+k}, v{203+k}")
            e("s_add_u32 s38, s38, 1"); e(f"s_cmp_eq_u32 s38, {D}")
            e(f"s_cselect_b32 s37, s44, s45"); e(f"s_cselect_b32 s38, 0, s38")
            e("s_add_u32 s36, s36, 1"); e(f"s_cmp_lt_u32 s36, {NST}"); e(f"s_cbranch_scc1 {loop}")
            if jj == 0: e(f"s_branch {lepi}")
        self.a.label(lepi)
        self.stamp(19)
        e("s_waitcnt vmcnt(0) lgkmcnt(0)")
        e("v_lshlrev_b32 v20, 16, v20"); e("v_lshlrev_b32 v21, 16, v21")
        for f in range(4):
            if f == 3:
                e("s_bitcmp1_b32 s3, 1"); e(f"s_cbranch_scc1 {end}")
            pk = 32 + 4*f
            for tt in range(2):
                acc = ACC + 4*(tt*4 + f); b = ZR + 2*(tt*4 + f)
                for q in range(2):
                    e(f"v_lshlrev_b32 v22, 16, v{b+q}"); e(f"v_and_b32 v23, 0xffff0000, v{b+q}")
                    e(f"v_add_f32 v24, v{acc+2*q}, v{20+tt}"); e(f"v_add_f32 v25, v{acc+2*q+1}, v{20+tt}")
                    e(f"v_mul_f32 v22, v22, v24"); e(f"v_mul_f32 v23, v23, v25")
                    e(f"v_cvt_pk_bf16_f32 v{pk+2*tt+q}, v22, v23")
            e(f"v_permlane16_swap_b32 v{pk}, v{pk+2}"); e(f"v_permlane16_swap_b32 v{pk+1}, v{pk+3}")
            e(f"buffer_store_dwordx4 v[{pk}:{pk+3}], v2, s[24:27], s35 offen offset:{f*1024} {ST}")
        e(f"s_branch {end}")
        self.a.label(lp)
        e("s_and_b32 s7, s3, 3")
        e("v_lshrrev_b32 v5, 3, v1"); e("v_and_b32 v6, 7, v1")
        for m in range(2):
            e(f"s_lshl_b32 s20, s7, 3"); e(f"s_add_u32 s20, s20, {32*m}")
            e(f"v_add_u32 v8, s20, v5"); e(f"v_bfe_u32 v9, v8, 1, 3"); e(f"v_xor_b32 v9, v9, v6")
            e(f"v_lshlrev_b32 v8, 12, v8"); e(f"v_lshl_add_u32 v{192+m}, v9, 4, v8")
        e("s_lshl_b32 s6, s4, 18")
        e("s_mul_i32 s32, s5, 0x70000"); e("s_lshr_b32 s20, s7, 1"); e("s_lshl_b32 s20, s20, 16"); e("s_add_u32 s32, s32, s20")
        e("s_and_b32 s20, s7, 1"); e("s_lshl_b32 s20, s20, 10"); e("s_add_u32 s32, s32, s20")
        e("s_lshl_b32 s33, s7, 10")
        e("s_mov_b32 s34, s33")
        def pre5():
            for st in range(D-1):
                for m in range(2): self.dma(192+m, 8, "s6", f"s_add_u32 m0, s34, {st*SL + m*4096}")
                e("s_add_u32 s6, s6, 128")
        self.wait_flags([(cZ, 0xffffffff)], pre=pre5)
        self.stamp(17)
        l5 = self.lab("sp_p5")
        e("s_cmp_ge_u32 s7, 2"); e(f"s_cbranch_scc1 {l5}")
        for var in range(2):
            nz = 4 if var == 0 else 3
            cnt = 2 + nz
            if var == 1: self.a.label(l5)
            def issue_z():
                for m in range(nz):
                    e(f"s_add_u32 s23, s32, {2*m*65536}")
                    self.dma(2, 12, "s23", f"s_add_u32 m0, s34, {8192 + m*4096}")
                e("s_add_u32 s32, s32, 2048")
            def issue():
                if self.X_NODMA: return
                for m in range(2): self.dma(192+m, 8, "s6", f"s_add_u32 m0, s34, {m*4096}")
                e("s_add_u32 s6, s6, 128")
                issue_z()
            for st in range(D-1):
                issue_z(); e(f"s_add_u32 s34, s34, {SL}")
            e(f"s_waitcnt vmcnt({nz*(D-2)})"); e("s_barrier")
            e("s_mov_b32 s36, 0"); e(f"s_mov_b32 s38, {D-1}")
            loop = self.lab("sp_ploop"); lni = self.lab("sp_ni"); lw = self.lab("sp_w"); le = self.lab("sp_e"); lb = self.lab("sp_b")
            self.a.label(loop)
            e(f"s_cmp_ge_u32 s36, {NST-D+2}"); e(f"s_cbranch_scc1 {lw}")
            e(f"s_cmp_lt_u32 s36, {D-3}"); e(f"s_cbranch_scc1 {le}")
            e(f"s_waitcnt vmcnt({cnt*(D-3)})"); e(f"s_branch {lb}")
            self.a.label(le)
            e(f"s_waitcnt vmcnt({nz*(D-3)})")
            self.a.label(lb)
            e("s_barrier")
            e(f"s_cmp_ge_u32 s36, {NST-D+1}"); e(f"s_cbranch_scc1 {lni}")
            issue()
            e("s_add_u32 s38, s38, 1"); e(f"s_cmp_eq_u32 s38, {D}"); e(f"s_cselect_b32 s39, s44, s45"); e(f"s_cselect_b32 s38, 0, s38")
            e("s_add_u32 s34, s34, s39"); e(f"s_branch {lni}")
            self.a.label(lw)
            e("s_waitcnt vmcnt(0)"); e("s_barrier")
            self.a.label(lni)
            e("s_add_u32 s36, s36, 1"); e(f"s_cmp_lt_u32 s36, {NST}"); e(f"s_cbranch_scc1 {loop}")
            if var == 0: e(f"s_branch {end}")
        self.a.label(end)
        self.phase_end()
        self.signal(lambda: (e("s_lshl_b32 s46, s4, 7"), e("s_lshl_b32 s47, s5, 2"), e("s_add_u32 s46, s46, s47"), e(f"s_add_u32 s46, s46, {F5}")))
        self.stamp(20)

    def p6(self):
        e = self.e
        self.srd(8, P_WS, WS_Y, 64*56*1024); self.srd(12, P_WOUT, 0, 896*512*2)
        self.srd(16, P_WS, WS_X1, 2*MB); self.srd(24, P_OUT, 0, 2*MB); self.srd(28, P_WS, WS_MOD, 49152)
        XR = 114688; XS = 16384; NCH = 7; NSLOT = 3
        self.proj_wvoff()
        self.proj_addr(True, XR, 0)
        e("v_add_u32 v10, 0x10000, v9")
        self.proj_epi_addr()
        def pre6():
            for m in range(16):
                e(f"s_add_u32 s21, s3, {7*m}"); e("s_lshl_b32 s20, s21, 13"); e("s_lshl_b32 s21, s21, 10")
                self.dma(3, 12, "s20", "s_mov_b32 m0, s21")
        def cY():
            e("s_lshl_b32 s46, s4, 7"); e(f"s_add_u32 s46, s46, {F5}"); e("v_lshlrev_b32 v251, 2, v1")
        self.wait_flags([(cY, 0xff)], pre=pre6, w7_after=False)
        self.stamp(21)
        e(f"s_mul_i32 s6, s4, {2*56*1024}"); e("s_lshl_b32 s21, s3, 10"); e("s_add_u32 s6, s6, s21")
        def issue_x(ch):
            for tt in range(2):
                e(f"s_add_u32 s20, s6, {tt*56*1024 + ch*8*1024}")
                self.dma(2, 8, "s20", f"s_add_u32 m0, s21, {XR + (ch % NSLOT)*XS + tt*8192}")
        issue_x(0); e("s_barrier"); issue_x(1); e("s_barrier"); issue_x(2)
        e("buffer_load_dwordx4 v[32:35], v16, s[16:19], s32 offen")
        self.proj_gate_loads(5)
        ACC = 64
        for r in range(16): e(f"v_mov_b32 v{ACC+r}, 0")
        for ch in range(NCH):
            w = {0: 4 + 9, 1: 2 + 9, 2: 9 + 2}.get(ch, 2*(min(NCH - 1, ch + 1) - ch))
            e(f"s_waitcnt vmcnt({w})")
            e("s_barrier")
            if ch == 0: self.stamp(38)
            if ch >= 1 and ch + 2 < NCH: issue_x(ch + 2)
            wreg, woff = (9, ch*16384) if ch < 3 else (10, ch*16384 - 65536) if ch >= 4 else (9, ch*16384)
            self.proj_chunk(ACC, (ch % NSLOT)*XS, wreg, woff, True)
        self.stamp(39)
        self.proj_epilogue(ACC, 24, "", False)
        self.stamp(22)


HEADER = open('cdna_kernels/' + NAME + '.s.ref').read().split('; Override launch geometry')[0]

def build(stamps=False, hstamp=-1):
    Gen.STAMPS = stamps
    g = Gen()
    endl = "L_exit"
    g.prologue(endl)
    g.p01(); g.p2(); g.p3(); g.p4(); g.p5(); g.p6()
    if stamps and Gen.GSTAMP:
        e = g.e
        sk = g.lab("stst")
        e(f"s_cmp_lg_u32 s3, {Gen.GSTAMP_W}"); e(f"s_cbranch_scc1 {sk}")
        e("s_waitcnt vmcnt(0)")
        g.stamp(23)
        g.srd(8, P_DBG, 0, 0x20000)
        e("s_lshl_b32 s20, s2, 8"); e("s_add_u32 s20, s20, 4096")
        e("v_lshlrev_b32 v4, 2, v1")
        e("buffer_store_dword v255, v4, s[8:11], s20 offen")
        g.a.label(sk)
    elif stamps:
        e = g.e
        sk = g.lab("stst")
        e(f"s_sub_u32 s46, s2, {Gen.STAMP_WG0}"); e("s_cmp_ge_u32 s46, 4"); e(f"s_cbranch_scc1 {sk}")
        e("s_and_b32 s46, s3, 3"); e(f"s_cmp_lg_u32 s46, {Gen.STAMP_W}"); e(f"s_cbranch_scc1 {sk}")
        e("s_waitcnt vmcnt(0)")
        g.stamp(23)
        if hstamp >= 0: e(f"s_branch {sk}")
        g.srd(8, P_DBG, 0, 4096)
        e(f"s_sub_u32 s20, s2, {Gen.STAMP_WG0}"); e("s_lshl_b32 s20, s20, 1"); e("s_lshr_b32 s21, s3, 2"); e("s_add_u32 s20, s20, s21"); e("s_lshl_b32 s20, s20, 8"); e("s_add_u32 s20, s20, 256")
        e("v_lshlrev_b32 v4, 2, v1")
        e("buffer_store_dword v255, v4, s[8:11], s20 offen")
        g.a.label(sk)
    if hstamp >= 0:
        e = g.e
        sk = g.lab("hst")
        e(f"s_cmp_lg_u32 s2, {hstamp}"); e(f"s_cbranch_scc1 {sk}")
        e("s_cmp_lg_u32 s3, 0"); e(f"s_cbranch_scc1 {sk}")
        e("v_lshrrev_b32 v4, 2, v255")
        e("v_lshlrev_b32 v5, 16, v4")
        e("v_mov_b32_dpp v6, v5 row_shl:1 row_mask:0xf bank_mask:0xf")
        e("v_or_b32 v4, v4, v6")
        g.srd(8, P_DBG, 0, 256)
        e("v_lshrrev_b32 v7, 1, v1"); e("v_lshlrev_b32 v7, 2, v7"); e("v_add_u32 v7, 4, v7")
        e("v_and_b32 v8, 1, v1"); e("v_cmp_eq_u32 vcc, 0, v8"); e("v_cmp_gt_u32 s[40:41], 24, v1"); e("s_and_b64 vcc, vcc, s[40:41]")
        e("s_and_saveexec_b64 s[40:41], vcc")
        e("buffer_store_dword v4, v7, s[8:11], 0 offen")
        g.a.label(sk)
    g.a.label(endl)
    g.e("s_endpgm")
    g.a.fix_hazards()
    out = [HEADER, "; @launch grid=(256,1,1) block=(512,1,1) lds=163840\n",
           '.amdgcn_target "amdgcn-amd-amdhsa--gfx950"\n.text\n',
           f".globl {KNAME}\n.p2align 8\n.type {KNAME},@function\n{KNAME}:\n", g.a.text(),
           '.section .rodata,"a"\n', f""".p2align 6
.amdhsa_kernel {KNAME}
  .amdhsa_next_free_vgpr 256
  .amdhsa_next_free_sgpr 102
  .amdhsa_accum_offset 256
  .amdhsa_group_segment_fixed_size 0
  .amdhsa_kernarg_size 104
  .amdhsa_user_sgpr_count 2
  .amdhsa_user_sgpr_kernarg_segment_ptr 1
  .amdhsa_system_sgpr_workgroup_id_x 1
.end_amdhsa_kernel
"""]
    return ''.join(out)

if __name__ == "__main__":
    for k in ("PREFETCH", "STAMP_WG0", "STAMP_W", "CODEPF", "NOHOP", "BALANCE", "ZTOUCH", "GSTAMP", "GSTAMP_W", "ZLOOK", "MODCRIT", "XLATE", "SPD", "REPACK", "M1", "M2", "RPG", "X_NOMFMA", "X_NOREAD", "X_NODMA"):
        if k in os.environ: setattr(Gen, k, int(os.environ[k]))
    txt = build(stamps=(len(sys.argv) > 2), hstamp=int(os.environ.get("HSTAMP", "-1")))
    path = sys.argv[1] if len(sys.argv) > 1 else 'cdna_kernels/' + NAME + '.s'
    open(path, 'w').write(txt)
    print("wrote", path, len(txt), "bytes")
```

```python
import sys, math, os
from asmlib import Asm, vr, sr

NAME = "adaLN_cond__softmax_full_mha__mixer_gmlp__prompt"
KNAME = NAME + "_kernel"
MB = 1 << 20
WS_MOD = 0
WS_ST  = 0x10000
WS_FLAG = 0x60000
WS_STX = 0x70000
WS_MODG = 0xB0000
WS_QK  = 1 * MB
WS_V   = 5 * MB
WS_O   = 7 * MB
WS_X1  = 9 * MB
WS_Z2  = 19 * MB
WS_Y   = 23 * MB
WS_WINP = 27 * MB
F0, F1, F2, F3, F4, F5, FR = 0x0, 0x2000, 0x4000, 0x5000, 0x6000, 0x7000, 0x8000
P_X, P_WQKV, P_WO, P_BX, P_WIN, P_WSP, P_BSP, P_WOUT, P_C, P_WMOD, P_OUT, P_DBG, P_WS = [64 + 2*i for i in range(13)]
LOG2E = 1.4426950408889634
S_QB, S_HEAD, S_NONCE, SRD_F = 57, 58, 59, 60
ST = "sc0 sc1"
SPIN_CAP = 1 << 17

def f2u(x):
    import struct
    return struct.unpack('<I', struct.pack('<f', x))[0]
def fl(x): return f"0x{f2u(x):08x}"

class Gen:
    STAMPS = False
    PREFETCH = True
    STAMP_WG0 = 0
    STAMP_W = 0
    CODEPF = False
    NOHOP = False
    BALANCE = True
    ZTOUCH = False
    ZLOOK = 9
    DIAG = False
    diag_site = 0
    MODCRIT = 64
    XLATE = False
    SPD = 7
    REPACK = False
    M1 = 3
    M2 = 9
    RPG = 2
    X_NOMFMA = False
    X_NOREAD = False
    X_NODMA = False
    GSTAMP = False
    GSTAMP_W = 0
    def __init__(self):
        self.a = Asm()
        self.nstamp = 0
    def e(self, s): self.a.e(s)
    def lab(self, b): return self.a.newlabel(b)

    def stamp(self, i):
        if not Gen.STAMPS: return
        e = self.e
        sk = self.lab("stamp")
        if Gen.GSTAMP:
            e(f"s_cmp_lg_u32 s3, {Gen.GSTAMP_W}"); e(f"s_cbranch_scc1 {sk}")
            e("s_memtime s[46:47]" if Gen.GSTAMP == 2 else "s_memrealtime s[46:47]"); e("s_waitcnt lgkmcnt(0)")
            e(f"v_writelane_b32 v255, s46, {i}")
            self.a.label(sk)
            return
        e(f"s_sub_u32 s46, s2, {Gen.STAMP_WG0}"); e("s_cmp_ge_u32 s46, 4"); e(f"s_cbranch_scc1 {sk}")
        e("s_and_b32 s46, s3, 3"); e(f"s_cmp_lg_u32 s46, {Gen.STAMP_W}"); e(f"s_cbranch_scc1 {sk}")
        e("s_memtime s[46:47]"); e("s_waitcnt lgkmcnt(0)")
        e("s_sub_u32 s46, s46, s90")
        e(f"v_writelane_b32 v255, s46, {i}")
        self.a.label(sk)

    def srd(self, d, ptr, off, size):
        e = self.e
        if off:
            e(f"s_add_u32 s{d}, s{ptr}, 0x{off:x}"); e(f"s_addc_u32 s{d+1}, s{ptr+1}, 0")
        else:
            e(f"s_mov_b32 s{d}, s{ptr}"); e(f"s_mov_b32 s{d+1}, s{ptr+1}")
        e(f"s_mov_b32 s{d+2}, 0x{size:x}"); e(f"s_mov_b32 s{d+3}, 0x20000")

    def bf16_round(self, d, s):
        self.e(f"v_cvt_pk_bf16_f32 v{d}, v{s}, v{s}")
        self.e(f"v_lshlrev_b32 v{d}, 16, v{d}")

    def dpp_reduce16(self, regs):
        for m in ("quad_perm:[1,0,3,2]", "quad_perm:[2,3,0,1]", "row_half_mirror", "row_mirror"):
            for r in regs:
                self.e(f"v_add_f32_dpp v{r}, v{r}, v{r} {m} row_mask:0xf bank_mask:0xf")

    def dma(self, voff, srd, soff, m0expr, width="dwordx4"):
        self.e(m0expr)
        self.e("s_nop 0")
        self.e(f"buffer_load_{width} v{voff}, {sr(srd,4)}, {soff} offen lds")

    def diag(self, cnt_sgpr, vval):
        if not Gen.DIAG: return
        e = self.e
        Gen.diag_site += 1
        sk = self.lab("dg")
        e(f"s_cmp_le_u32 s{cnt_sgpr}, {SPIN_CAP}"); e(f"s_cbranch_scc1 {sk}")
        e("s_waitcnt vmcnt(0)")
        self.srd(48, P_DBG, 0, 1 << 22)
        e(f"s_mul_i32 s46, s2, 1024"); e(f"s_add_u32 s46, s46, {65536 + Gen.diag_site*262144}")
        e("v_lshlrev_b32 v252, 2, v1")
        e(f"buffer_store_dword v{vval}, v252, s[48:51], s46 offen offset:256")
        e(f"v_mov_b32 v253, s{S_NONCE}")
        e(f"buffer_store_dword v253, v252, s[48:51], s46 offen")
        e("s_waitcnt vmcnt(0)")
        self.a.label(sk)
        print("diag site", Gen.diag_site, self._where)

    _where = ""
    def phase_end(self):
        self.e("s_waitcnt lgkmcnt(0)" if Gen.NOHOP else "s_waitcnt vmcnt(0) lgkmcnt(0)")
        self.e("s_barrier")

    def signal(self, soff_code, nrep=1, rep_stride=0):
        e = self.e
        sk = self.lab("sig")
        e("s_cmp_lg_u32 s3, 7"); e(f"s_cbranch_scc1 {sk}")
        soff_code()
        e(f"v_mov_b32 v250, s{S_NONCE}")
        e(f"v_mul_u32_u24 v251, {max(rep_stride,1)}, v1")
        e(f"s_mov_b64 exec, {(1 << nrep) - 1}")
        e(f"buffer_store_dword v250, v251, s[{SRD_F}:{SRD_F+3}], s46 offen {ST}")
        e("s_mov_b64 exec, -1")
        self.a.label(sk)

    def wait_flags(self, polls, keep=False, pre=None, w7_after=True):
        e = self.e
        sk = self.lab("wf"); p7 = self.lab("wf7")
        e("s_cmp_eq_u32 s3, 7"); e(f"s_cbranch_scc1 {p7}")
        if pre: pre()
        e(f"s_branch {sk}")
        self.a.label(p7)
        for (code, mask) in ([] if (Gen.NOHOP and not keep) else polls):
            code()
            e(f"s_mov_b32 s42, 0x{mask & 0xffffffff:x}"); e(f"s_mov_b32 s43, 0x{mask >> 32:x}")
            e("s_mov_b32 s47, 0")
            lp = self.lab("poll"); dn = self.lab("polled")
            self.a.label(lp)
            e(f"buffer_load_dword v250, v251, s[{SRD_F}:{SRD_F+3}], s46 offen {ST}")
            e("s_add_u32 s47, s47, 1")
            e(f"s_cmp_gt_u32 s47, {SPIN_CAP}")
            e(f"s_cbranch_scc1 {dn}")
            e("s_waitcnt vmcnt(0)")
            e(f"v_cmp_eq_u32 vcc, s{S_NONCE}, v250")
            e("s_and_b64 vcc, vcc, s[42:43]")
            e("s_cmp_eq_u64 vcc, s[42:43]")
            e(f"s_cbranch_scc0 {lp}")
            self.a.label(dn)
            self._where = "wait_flags " + str(getattr(code, "__name__", code))
            self.diag(47, 250)
        if pre and w7_after: pre()
        self.a.label(sk)
        e("s_barrier")

    def prologue(self, endlab):
        e = self.e
        e("s_cmp_ge_u32 s2, 256"); e(f"s_cbranch_scc1 {endlab}")
        e("s_load_dwordx16 s[64:79], s[0:1], 0")
        e("s_load_dwordx8 s[80:87], s[0:1], 64")
        e("s_load_dwordx2 s[88:89], s[0:1], 96")
        e("v_and_b32 v1, 63, v0")
        e("v_lshrrev_b32 v2, 6, v0")
        e("v_readfirstlane_b32 s3, v2")
        if Gen.STAMPS:
            e("s_memtime s[90:91]"); e("v_mov_b32 v255, 0")
        e("s_and_b32 s20, s2, 7"); e("s_lshr_b32 s21, s2, 3")
        e("s_and_b32 s4, s20, 3"); e("s_lshl_b32 s4, s4, 3"); e("s_and_b32 s22, s21, 7"); e("s_add_u32 s4, s4, s22")
        e("s_lshr_b32 s5, s20, 2"); e("s_lshl_b32 s5, s5, 2"); e("s_lshr_b32 s22, s21, 3"); e("s_add_u32 s5, s5, s22")
        e(f"s_lshl_b32 s{S_HEAD}, s20, 2"); e("s_and_b32 s22, s21, 3"); e(f"s_add_u32 s{S_HEAD}, s{S_HEAD}, s22")
        e(f"s_lshr_b32 s{S_QB}, s21, 2")
        e("s_waitcnt lgkmcnt(0)")
        self.stamp(24)
        self.srd(SRD_F, P_WS, WS_FLAG, 0x10000)
        sk = self.lab("nn")
        e("s_cmp_lg_u32 s3, 7"); e(f"s_cbranch_scc1 {sk}")
        self.srd(8, P_DBG, 0, 256)
        e("v_mov_b32 v251, 0")
        g = self.lab("ng")
        e("s_cmp_lg_u32 s2, 0"); e(f"s_cbranch_scc1 {g}")
        e("s_memrealtime s[46:47]"); e("s_waitcnt lgkmcnt(0)")
        e("s_or_b32 s46, s46, 1")
        e("v_mov_b32 v250, s46")
        e("s_mov_b64 exec, 1")
        e(f"buffer_store_dword v250, v251, s[8:11], 0 offen {ST}")
        e("s_mov_b64 exec, -1")
        self.a.label(g)
        self.a.label(sk)

    def get_nonce(self):
        e = self.e
        sk = self.lab("gn")
        e("s_cmp_lg_u32 s3, 7"); e(f"s_cbranch_scc1 {sk}")
        self.srd(48, P_DBG, 0, 256)
        e("v_mov_b32 v251, 0"); e("s_mov_b32 s47, 0")
        lp = self.lab("gnp"); dn = self.lab("gnd")
        self.a.label(lp)
        e(f"buffer_load_dword v250, v251, s[48:51], 0 offen {ST}")
        e("s_add_u32 s47, s47, 1"); e(f"s_cmp_gt_u32 s47, {SPIN_CAP}"); e(f"s_cbranch_scc1 {dn}")
        e("s_waitcnt vmcnt(0)")
        e(f"v_readfirstlane_b32 s{S_NONCE}, v250")
        e(f"s_cmp_eq_u32 s{S_NONCE}, 0"); e(f"s_cbranch_scc1 {lp}")
        self.a.label(dn)
        self._where = "nonce"; self.diag(47, 250)
        if Gen.DIAG:
            self.srd(48, P_DBG, 0, 1 << 22); e("s_lshl_b32 s46, s2, 2"); e("s_add_u32 s46, s46, 8192"); e("s_mov_b64 exec, 1")
            e("buffer_store_dword v250, v251, s[48:51], s46 offen"); e("s_mov_b64 exec, -1")
        e("ds_write_b32 v251, v250")
        e("s_waitcnt lgkmcnt(0)")
        self.a.label(sk)

    def ln_loads(self, srd_x, s_rowoff):
        e = self.e
        e("v_lshrrev_b32 v3, 4, v1"); e("v_and_b32 v4, 15, v1")
        e("s_lshl_b32 s20, s3, 3")
        e("v_add_u32 v5, s20, v3"); e("v_lshlrev_b32 v5, 10, v5"); e("v_lshl_add_u32 v5, v4, 4, v5")
        e(f"s_add_u32 s21, s{s_rowoff}, 4096")
        for a in range(2):
            so = s_rowoff if a == 0 else 21
            for j in range(4):
                b = 32 + 16*a + 4*j
                e(f"buffer_load_dwordx4 v[{b}:{b+3}], v5, {sr(srd_x,4)}, s{so} offen offset:{256*j}")

    def mod_issue(self, srd_mod, first_chunk):
        e = self.e
        e("v_lshlrev_b32 v248, 3, v0")
        for kq in range(4):
            e(f"s_mov_b32 s22, {kq*12288 + first_chunk*2048}")
            e(f"buffer_load_dwordx2 v[{240+2*kq}:{241+2*kq}], v248, {sr(srd_mod,4)}, s22 offen")

    def mod_finish(self, lds_off):
        e = self.e
        e("v_pk_add_f32 v[240:241], v[240:241], v[242:243]"); e("v_pk_add_f32 v[244:245], v[244:245], v[246:247]")
        e("v_pk_add_f32 v[240:241], v[240:241], v[244:245]")
        e("v_cvt_pk_bf16_f32 v242, v240, v241")
        e("v_lshlrev_b32 v240, 16, v242"); e("v_and_b32 v241, 0xffff0000, v242")
        sk = self.lab("mf")
        e("s_cmp_lt_u32 s3, 4"); e(f"s_cbranch_scc1 {sk}")
        e("v_add_f32 v240, 1.0, v240"); e("v_add_f32 v241, 1.0, v241")
        e("v_cvt_pk_bf16_f32 v242, v240, v241")
        e("v_lshlrev_b32 v240, 16, v242"); e("v_and_b32 v241, 0xffff0000, v242")
        self.a.label(sk)
        e("v_and_b32 v242, 255, v0"); e("v_lshlrev_b32 v242, 1, v242")
        e("v_lshrrev_b32 v243, 7, v242"); e("v_lshlrev_b32 v248, 9, v243")
        e("v_bfe_u32 v243, v242, 2, 1"); e("v_lshl_add_u32 v248, v243, 8, v248")
        e("v_bfe_u32 v243, v242, 3, 4"); e("v_lshl_add_u32 v248, v243, 4, v248")
        e("v_and_b32 v243, 3, v242"); e("v_lshl_add_u32 v248, v243, 2, v248")
        e("v_lshrrev_b32 v243, 8, v0"); e("v_lshl_add_u32 v248, v243, 11, v248")
        e(f"v_add_u32 v248, {lds_off}, v248")
        e("ds_write_b64 v248, v[240:241]")

    def ln_stats(self, fillers):
        e = self.e
        X = 128
        it = iter(fillers)
        def fill():
            f = next(it, None)
            if f: f()
        for a in range(2):
            for q in range(16):
                s = 32 + 16*a + q
                e(f"v_lshlrev_b32 v{X+32*a+2*q}, 16, v{s}")
                e(f"v_and_b32 v{X+32*a+2*q+1}, 0xffff0000, v{s}")
            fill()
        A = lambda a, k: 8 + 8*a + 2*k
        for a in range(2):
            for k in range(4):
                e(f"v_pk_add_f32 v[{A(a,k)}:{A(a,k)+1}], v[{X+32*a+4*k}:{X+32*a+4*k+1}], v[{X+32*a+4*k+2}:{X+32*a+4*k+3}]")
        for q in range(8, 16):
            for a in range(2):
                k = q % 4
                e(f"v_pk_add_f32 v[{A(a,k)}:{A(a,k)+1}], v[{A(a,k)}:{A(a,k)+1}], v[{X+32*a+2*q}:{X+32*a+2*q+1}]")
        fill()
        for a in range(2):
            e(f"v_pk_add_f32 v[{A(a,0)}:{A(a,0)+1}], v[{A(a,0)}:{A(a,0)+1}], v[{A(a,1)}:{A(a,1)+1}]")
            e(f"v_pk_add_f32 v[{A(a,2)}:{A(a,2)+1}], v[{A(a,2)}:{A(a,2)+1}], v[{A(a,3)}:{A(a,3)+1}]")
        for a in range(2):
            e(f"v_pk_add_f32 v[{A(a,0)}:{A(a,0)+1}], v[{A(a,0)}:{A(a,0)+1}], v[{A(a,2)}:{A(a,2)+1}]")
        for a in range(2):
            e(f"v_add_f32 v{24+2*a}, v{A(a,0)}, v{A(a,0)+1}")
        self.dpp_reduce16([24, 26])
        for a in range(2):
            e(f"v_mul_f32 v{24+2*a}, {fl(-1.0/512)}, v{24+2*a}")
            e(f"v_mov_b32 v{25+2*a}, v{24+2*a}")
            for r in range(8): e(f"v_mov_b32 v{8+8*a+r}, 0")
        fill()
        for q in range(16):
            for a in range(2):
                r = X + 32*a + 2*q
                e(f"v_pk_add_f32 v[{r}:{r+1}], v[{r}:{r+1}], v[{24+2*a}:{25+2*a}]")
            if q > 0:
                for a in range(2):
                    r = X + 32*a + 2*(q-1); k = (q-1) % 4
                    e(f"v_pk_fma_f32 v[{A(a,k)}:{A(a,k)+1}], v[{r}:{r+1}], v[{r}:{r+1}], v[{A(a,k)}:{A(a,k)+1}]")
            if q % 4 == 3: fill()
        for a in range(2):
            r = X + 32*a + 30; k = 3
            e(f"v_pk_fma_f32 v[{A(a,k)}:{A(a,k)+1}], v[{r}:{r+1}], v[{r}:{r+1}], v[{A(a,k)}:{A(a,k)+1}]")
        for a in range(2):
            e(f"v_pk_add_f32 v[{A(a,0)}:{A(a,0)+1}], v[{A(a,0)}:{A(a,0)+1}], v[{A(a,1)}:{A(a,1)+1}]")
            e(f"v_pk_add_f32 v[{A(a,2)}:{A(a,2)+1}], v[{A(a,2)}:{A(a,2)+1}], v[{A(a,3)}:{A(a,3)+1}]")
        for a in range(2):
            e(f"v_pk_add_f32 v[{A(a,0)}:{A(a,0)+1}], v[{A(a,0)}:{A(a,0)+1}], v[{A(a,2)}:{A(a,2)+1}]")
        for a in range(2):
            e(f"v_add_f32 v{24+a}, v{A(a,0)}, v{A(a,0)+1}")
        self.dpp_reduce16([24, 25])
        for a in range(2):
            e(f"v_mov_b32 v14, {fl(1e-5)}")
            e(f"v_fmac_f32 v14, {fl(1.0/512)}, v{24+a}")
            e(f"v_rsq_f32 v{20+2*a}, v14")
        for a in range(2):
            e(f"v_mov_b32 v{21+2*a}, v{20+2*a}")
        for f in it: f()
        for a in range(2):
            for q in range(16):
                r = X + 32*a + 2*q
                e(f"v_pk_mul_f32 v[{r}:{r+1}], v[{r}:{r+1}], v[{20+2*a}:{21+2*a}]")

    def ln2_prepare(self):
        e = self.e
        X = 128
        for a in range(2):
            e(f"v_mov_b32 v{12+a}, v{8+2*a}")
        self.dpp_reduce16([12, 13])
        for a in range(2):
            e(f"v_mul_f32 v{12+a}, {fl(1.0/16)}, v{12+a}")
            e(f"v_sub_f32 v{14+a}, v{8+2*a}, v{12+a}")
            e(f"v_mul_f32 v{14+a}, v{14+a}, v{14+a}")
            e(f"v_fmac_f32 v{9+2*a}, {fl(32.0)}, v{14+a}")
        self.dpp_reduce16([9, 11])
        for a in range(2):
            e(f"v_mov_b32 v14, {fl(1e-5)}")
            e(f"v_fmac_f32 v14, {fl(1.0/512)}, v{9+2*a}")
            e(f"v_rsq_f32 v{20+4*a}, v14")
        for a in range(2):
            e(f"v_mov_b32 v{21+4*a}, v{20+4*a}")
            e(f"v_mul_f32 v{22+4*a}, v{12+a}, v{20+4*a}"); e(f"v_sub_f32 v{22+4*a}, 0, v{22+4*a}"); e(f"v_mov_b32 v{23+4*a}, v{22+4*a}")
        for a in range(2):
            for q in range(16):
                s_ = 32 + 16*a + q; r = X + 32*a + 2*q
                e(f"v_lshlrev_b32 v{r}, 16, v{s_}"); e(f"v_and_b32 v{r+1}, 0xffff0000, v{s_}")
        for a in range(2):
            for q in range(16):
                r = X + 32*a + 2*q
                e(f"v_pk_fma_f32 v[{r}:{r+1}], v[{r}:{r+1}], v[{20+4*a}:{21+4*a}], v[{22+4*a}:{23+4*a}]")

    def ln_finish(self, lds_mod):
        e = self.e
        X = 128
        e("v_lshrrev_b32 v3, 4, v1"); e("v_and_b32 v4, 15, v1")
        e("v_lshlrev_b32 v6, 4, v4")
        e(f"v_add_u32 v6, {lds_mod}, v6")
        for j in range(4):
            for hh in range(2):
                e(f"ds_read_b128 v[{64+8*j+4*hh}:{67+8*j+4*hh}], v6 offset:{2048 + 512*j + 256*hh}")
                e(f"ds_read_b128 v[{96+8*j+4*hh}:{99+8*j+4*hh}], v6 offset:{512*j + 256*hh}")
        for a in range(2):
            e(f"s_lshl_b32 s20, s3, 3"); e(f"s_add_u32 s20, s20, {4*a}")
            e(f"v_add_u32 v15, s20, v3"); e(f"v_and_b32 v16, 15, v15"); e(f"v_xor_b32 v16, v16, v4")
            e(f"v_lshlrev_b32 v15, 10, v15"); e(f"v_lshl_add_u32 v{18+a}, v16, 4, v15")
        for j in range(4):
            e(f"s_waitcnt lgkmcnt({4*(3-j) + 2*j if False else min(15, 4*(3-j) + 2*j)})" if False else f"s_waitcnt lgkmcnt({4*(3-j)})" if j == 0 else "s_waitcnt lgkmcnt(0)" if j == 1 else "s_nop 0")
            for a in range(2):
                for q in range(4):
                    r = X + 32*a + 8*j + 2*q
                    e(f"v_pk_fma_f32 v[{r}:{r+1}], v[{r}:{r+1}], v[{64+8*j+2*q}:{65+8*j+2*q}], v[{96+8*j+2*q}:{97+8*j+2*q}]")
                pk = 24 + 4*a
                for q in range(4):
                    r = X + 32*a + 8*j + 2*q
                    e(f"v_cvt_pk_bf16_f32 v{pk+q}, v{r}, v{r+1}")
                e(f"ds_write_b128 v{18+a}, v[{pk}:{pk+3}] offset:{256*j}")

    def repack_issue(self):
        e = self.e
        self.srd(48, P_WIN, 0, 512*1792*2)
        e("v_cmp_le_u32 vcc, 224, v0"); e("v_mov_b32 v223, 1"); e("v_cndmask_b32 v226, 0, v223, vcc")
        e("v_mul_u32_u24 v225, 224, v226"); e("v_sub_u32 v225, v0, v225")
        e("s_lshl_b32 s20, s2, 1"); e("v_add_u32 v226, s20, v226")
        e("v_mul_u32_u24 v224, 3584, v226"); e("v_lshl_add_u32 v224, v225, 4, v224")
        e("buffer_load_dwordx4 v[228:231], v224, s[48:51], 0 offen")
        e("v_cmp_le_u32 vcc, 112, v225"); e("v_mov_b32 v223, 112"); e("v_cndmask_b32 v224, 0, v223, vcc"); e("v_sub_u32 v225, v225, v224")
        e("v_mov_b32 v223, 0"); e("v_cndmask_b32 v224, 14, v223, vcc")
        e("v_mul_u32_u24 v227, 4682, v225"); e("v_lshrrev_b32 v227, 16, v227")
        e("v_mul_u32_u24 v223, 14, v227"); e("v_sub_u32 v225, v225, v223"); e("v_add_u32 v225, v225, v224")
        e("v_bfe_u32 v223, v226, 3, 1"); e("v_lshlrev_b32 v223, 1, v223"); e("v_xor_b32 v225, v225, v223")
        e(f"v_mul_u32_u24 v227, {512*448}, v227"); e("v_mul_u32_u24 v223, 448, v226"); e("v_add_u32 v227, v227, v223")
        e("v_lshl_add_u32 v227, v225, 4, v227")

    def repack_store(self):
        e = self.e
        self.srd(48, P_WS, WS_WINP, 8*512*448)
        sk = self.lab("rps")
        e("s_cmp_eq_u32 s3, 7"); e(f"s_cbranch_scc1 {sk}")
        e(f"buffer_store_dwordx4 v[228:231], v227, s[48:51], 0 offen {ST}")
        self.a.label(sk)

    def mod_loads(self, lo, hi, bar):
        e = self.e
        nomod1 = self.lab("nomod")
        e(f"s_sub_u32 s20, s2, {lo}"); e(f"s_cmp_ge_u32 s20, {hi-lo}"); e(f"s_cbranch_scc1 {nomod1}")
        e("v_and_b32 v72, 7, v0"); e("v_lshrrev_b32 v73, 3, v0")
        e("v_mul_u32_u24 v74, 6144, v73"); e("v_lshl_add_u32 v74, v72, 4, v74")
        e("v_lshlrev_b32 v75, 1, v73")
        e("s_and_b32 s20, s2, 3"); e("s_lshr_b32 s21, s2, 2")
        e(f"s_mul_i32 s40, s20, {128*6144}"); e("s_lshl_b32 s21, s21, 7"); e("s_add_u32 s40, s40, s21"); e(f"s_add_u32 s41, s40, {64*6144}")
        e("s_lshl_b32 s42, s20, 8")
        e("buffer_load_dwordx4 v[80:83], v74, s[32:35], s40 offen")
        e("buffer_load_dwordx4 v[84:87], v74, s[32:35], s41 offen")
        e("buffer_load_ushort v76, v75, s[36:39], s42 offen")
        e("buffer_load_ushort v77, v75, s[36:39], s42 offen offset:128")
        if bar: e("s_barrier")
        self.a.label(nomod1)

    def mod_compute(self, lo, hi, wait):
        e = self.e
        MSCR = 155648
        nomod2 = self.lab("nomod")
        e(f"s_sub_u32 s20, s2, {lo}"); e(f"s_cmp_ge_u32 s20, {hi-lo}"); e(f"s_cbranch_scc1 {nomod2}")
        for j in range(8): e(f"v_mov_b32 v{64+j}, 0")
        e(f"s_waitcnt vmcnt({wait})")
        self.stamp(29)
        for i in range(2):
            c = 76 + i
            e(f"v_lshlrev_b32 v{c}, 16, v{c}")
            e(f"v_mul_f32 v12, {fl(-LOG2E)}, v{c}"); e("v_exp_f32 v12, v12"); e("v_add_f32 v12, 1.0, v12"); e("v_rcp_f32 v12, v12")
            e(f"v_mul_f32 v{c}, v{c}, v12")
            self.bf16_round(c, c)
        for i in range(2):
            for q in range(4):
                w = 80 + 4*i + q
                e(f"v_lshlrev_b32 v12, 16, v{w}"); e(f"v_and_b32 v13, 0xffff0000, v{w}")
                e(f"v_fmac_f32 v{64+2*q}, v{76+i}, v12"); e(f"v_fmac_f32 v{65+2*q}, v{76+i}, v13")
        for j in range(8): e(f"v_add_f32_dpp v{64+j}, v{64+j}, v{64+j} row_ror:8 row_mask:0xf bank_mask:0xf")
        e("v_lshrrev_b32 v12, 4, v0"); e("v_lshlrev_b32 v12, 8, v12"); e("v_lshl_add_u32 v12, v72, 5, v12")
        e(f"v_add_u32 v12, {MSCR}, v12")
        e("v_and_b32 v13, 8, v1"); e("v_cmp_eq_u32 vcc, 0, v13")
        e("s_and_saveexec_b64 s[44:45], vcc")
        e("ds_write_b128 v12, v[64:67]"); e("ds_write_b128 v12, v[68:71] offset:16")
        e("s_mov_b64 exec, s[44:45]")
        e("s_waitcnt lgkmcnt(0)")
        self.stamp(30)
        e("s_barrier")
        mdone = self.lab("mdone")
        e("s_cmp_lg_u32 s3, 7"); e(f"s_cbranch_scc1 {mdone}")
        e("v_lshlrev_b32 v72, 2, v1"); e(f"v_add_u32 v12, {MSCR}, v72")
        for i in range(32): e(f"ds_read_b32 v{80+i}, v12 offset:{256*i}")
        for lo in (0, 16):
            e(f"s_waitcnt lgkmcnt({15 if lo == 0 else 0})")
            if lo == 0: e("s_waitcnt lgkmcnt(15)")
        e("s_waitcnt lgkmcnt(0)")
        for st in (16, 8, 4, 2, 1):
            for i in range(st): e(f"v_add_f32 v{80+i}, v{80+i}, v{80+i+st}")
        e("s_and_b32 s20, s2, 3"); e("s_mul_i32 s20, s20, 12288"); e("s_lshr_b32 s21, s2, 2"); e("s_lshl_b32 s21, s21, 8"); e("s_add_u32 s20, s20, s21")
        e(f"buffer_store_dword v80, v72, s[12:15], s20 offen {ST}")
        e("s_waitcnt vmcnt(0)")
        self.signal(lambda: (e("s_lshl_b32 s46, s2, 2"), e(f"s_add_u32 s46, s46, {F0}")), nrep=8, rep_stride=1024)
        self.a.label(mdone)
        self.a.label(nomod2)

    def mod_late_a(self):
        e = self.e
        MSCR = 155648
        sk = self.lab("mla")
        e("s_sub_u32 s20, s2, 64"); e("s_cmp_ge_u32 s20, 128"); e(f"s_cbranch_scc1 {sk}")
        e("s_cmp_eq_u32 s3, 7"); e(f"s_cbranch_scc1 {sk}")
        self.srd(32, P_WMOD, 0, 512*3072*2); self.srd(36, P_C, 0, 1024)
        e("v_and_b32 v72, 7, v0"); e("v_lshrrev_b32 v73, 3, v0")
        e("v_mul_u32_u24 v74, 6144, v73"); e("v_lshl_add_u32 v74, v72, 4, v74"); e("v_lshlrev_b32 v75, 1, v73")
        e("s_and_b32 s20, s2, 3"); e("s_lshr_b32 s21, s2, 2")
        e(f"s_mul_i32 s40, s20, {128*6144}"); e("s_lshl_b32 s21, s21, 7"); e("s_add_u32 s40, s40, s21")
        e(f"s_add_u32 s41, s40, {56*6144}"); e(f"s_add_u32 s43, s40, {112*6144}"); e("s_lshl_b32 s42, s20, 8")
        for r in range(88, 92): e(f"v_mov_b32 v{r}, 0")
        e("v_mov_b32 v78, 0")
        e("buffer_load_dwordx4 v[80:83], v74, s[32:35], s40 offen"); e("buffer_load_dwordx4 v[84:87], v74, s[32:35], s41 offen")
        e("buffer_load_ushort v76, v75, s[36:39], s42 offen"); e("buffer_load_ushort v77, v75, s[36:39], s42 offen offset:112")
        e("v_cmp_gt_u32 vcc, 16, v73"); e("s_and_saveexec_b64 s[44:45], vcc")
        s3 = self.lab("mla3")
        e(f"s_cbranch_execz {s3}")
        e("buffer_load_dwordx4 v[88:91], v74, s[32:35], s43 offen"); e("buffer_load_ushort v78, v75, s[36:39], s42 offen offset:224")
        self.a.label(s3)
        e("s_mov_b64 exec, s[44:45]")
        for j in range(8): e(f"v_mov_b32 v{64+j}, 0")
        e("s_waitcnt vmcnt(0)")
        for i in range(3):
            c = 76 + i
            e(f"v_lshlrev_b32 v{c}, 16, v{c}")
            e(f"v_mul_f32 v12, {fl(-LOG2E)}, v{c}"); e("v_exp_f32 v12, v12"); e("v_add_f32 v12, 1.0, v12"); e("v_rcp_f32 v12, v12")
            e(f"v_mul_f32 v{c}, v{c}, v12")
            self.bf16_round(c, c)
        for i in range(3):
            for q in range(4):
                w = 80 + 4*i + q
                e(f"v_lshlrev_b32 v12, 16, v{w}"); e(f"v_and_b32 v13, 0xffff0000, v{w}")
                e(f"v_fmac_f32 v{64+2*q}, v{76+i}, v12"); e(f"v_fmac_f32 v{65+2*q}, v{76+i}, v13")
        for j in range(8): e(f"v_add_f32_dpp v{64+j}, v{64+j}, v{64+j} row_ror:8 row_mask:0xf bank_mask:0xf")
        e("v_lshrrev_b32 v12, 4, v0"); e("v_lshlrev_b32 v12, 8, v12"); e("v_lshl_add_u32 v12, v72, 5, v12"); e(f"v_add_u32 v12, {MSCR}, v12")
        e("v_and_b32 v13, 8, v1"); e("v_cmp_eq_u32 vcc, 0, v13"); e("s_and_saveexec_b64 s[44:45], vcc")
        e("ds_write_b128 v12, v[64:67]"); e("ds_write_b128 v12, v[68:71] offset:16")
        e("s_mov_b64 exec, s[44:45]")
        e("s_waitcnt lgkmcnt(0)")
        self.a.label(sk)

    def mod_late_b(self):
        e = self.e
        MSCR = 155648
        sk = self.lab("mlb")
        e("s_sub_u32 s20, s2, 64"); e("s_cmp_ge_u32 s20, 128"); e(f"s_cbranch_scc1 {sk}")
        e("s_cmp_lg_u32 s3, 6"); e(f"s_cbranch_scc1 {sk}")
        self.srd(48, P_WS, WS_MOD, 49152)
        e("v_lshlrev_b32 v178, 2, v1"); e(f"v_add_u32 v179, {MSCR}, v178")
        for i in range(28): e(f"ds_read_b32 v{180+i}, v179 offset:{256*i}")
        e("s_waitcnt lgkmcnt(0)")
        for i in range(1, 28): e(f"v_add_f32 v180, v180, v{180+i}")
        e("s_and_b32 s20, s2, 3"); e("s_mul_i32 s20, s20, 12288"); e("s_lshr_b32 s21, s2, 2"); e("s_lshl_b32 s21, s21, 8"); e("s_add_u32 s20, s20, s21")
        e(f"buffer_store_dword v180, v178, s[48:51], s20 offen {ST}")
        self.a.label(sk)

    def mod_late_flag(self):
        e = self.e
        sk = self.lab("mlf")
        e("s_sub_u32 s20, s2, 64"); e("s_cmp_ge_u32 s20, 128"); e(f"s_cbranch_scc1 {sk}")
        e("s_cmp_lg_u32 s3, 6"); e(f"s_cbranch_scc1 {sk}")
        e("s_lshl_b32 s46, s2, 2"); e(f"s_add_u32 s46, s46, {F0}")
        e(f"v_mov_b32 v250, s{S_NONCE}"); e("v_mul_u32_u24 v251, 1024, v1")
        e("s_mov_b64 exec, 0xff")
        e(f"buffer_store_dword v250, v251, s[{SRD_F}:{SRD_F+3}], s46 offen {ST}")
        e("s_mov_b64 exec, -1")
        self.a.label(sk)

    def p01(self):
        e = self.e
        RING = 65536; SL = 12288; D = 7; MODL = RING + D*SL
        MSCR = 155648
        self.srd(8, P_X, 0, 2048*512*2)
        self.srd(12, P_WS, WS_MOD, 49152)
        self.srd(16, P_WQKV, 0, 512*1536*2)
        self.srd(24, P_WS, WS_QK, 4*MB)
        self.srd(28, P_WS, WS_V, 2*MB)
        self.srd(32, P_WMOD, 0, 512*3072*2)
        self.srd(36, P_C, 0, 1024)
        self.mod_loads(0, self.MODCRIT, True)
        self.get_nonce()
        self.stamp(25)
        if self.XLATE:
            xl = self.lab("xlate")
            e("s_cmp_ge_u32 s2, 192"); e(f"s_cbranch_scc1 {xl}")
            e("s_waitcnt vmcnt(0)")
            self.a.label(xl)
        e("s_lshl_b32 s6, s4, 16")
        self.ln_loads(8, 6)
        self.stamp(26)
        tk = self.lab("touch")
        e("s_cmp_ge_u32 s3, 3"); e(f"s_cbranch_scc1 {tk}")
        e("s_and_b32 s20, s4, 7"); e("s_lshl_b32 s20, s20, 6")
        e("v_add_u32 v7, s20, v1"); e("v_mul_u32_u24 v7, 3072, v7")
        e("s_lshl_b32 s20, s5, 8"); e("s_lshl_b32 s21, s3, 7"); e("s_add_u32 s20, s20, s21")
        e("s_lshl_b32 s21, s5, 7"); e("s_add_u32 s21, s21, 2048")
        e("s_cmp_eq_u32 s3, 2"); e("s_cselect_b32 s20, s21, s20")
        e("buffer_load_dword v9, v7, s[16:19], s20 offen")
        self.a.label(tk)
        self.stamp(27)
        e("s_and_b32 s7, s3, 3")
        for m in range(3):
            d = 192 + m
            e(f"s_lshl_b32 s20, s7, 6"); e(f"s_add_u32 s20, s20, {256*m}")
            e(f"v_add_u32 v200, s20, v1")
            e(f"v_mul_u32_u24 v201, 2731, v200"); e(f"v_lshrrev_b32 v201, 16, v201")
            e(f"v_mul_u32_u24 v202, 24, v201"); e(f"v_sub_u32 v202, v200, v202")
            e(f"v_bfe_u32 v203, v201, 1, 1"); e(f"v_bfe_u32 v204, v201, 3, 1")
            e(f"v_lshl_or_b32 v203, v204, 1, v203"); e(f"v_lshlrev_b32 v203, 1, v203")
            e(f"v_xor_b32 v202, v202, v203"); e(f"v_lshlrev_b32 v203, 4, v202")
            e(f"s_lshl_b32 s20, s5, 8"); e(f"v_add_u32 v204, s20, v203")
            e(f"s_lshl_b32 s20, s5, 7"); e(f"s_add_u32 s20, s20, {2048-256}"); e(f"v_add_u32 v205, s20, v203")
            e(f"v_cmp_gt_u32 vcc, 16, v202"); e(f"v_cndmask_b32 v204, v205, v204, vcc")
            e(f"v_mul_u32_u24 v201, 3072, v201"); e(f"v_add_u32 v{d}, v201, v204")
        e("s_lshl_b32 s7, s7, 10"); e(f"s_add_u32 s7, s7, {RING}")
        e("s_lshr_b32 s32, s3, 2")
        self.stamp(28)
        self.mod_compute(0, self.MODCRIT, 8)
        self.stamp(0)
        e(f"s_mul_i32 s33, s32, {32*3072}")
        e(f"s_mul_i32 s34, s32, {SL}"); e("s_add_u32 s34, s34, s7")
        def issue_pair(pairidx):
            def f():
                e(f"s_add_u32 s23, s33, {2*pairidx*32*3072}")
                for m in range(3):
                    self.dma(192+m, 16, "s23", f"s_add_u32 m0, s34, {2*pairidx*SL + m*4096}")
            return f
        issue_pair(0)()
        e("s_waitcnt vmcnt(3)")
        self.stamp(1)
        nop = lambda: None
        self.ln_stats([nop, nop, issue_pair(1), nop, nop, issue_pair(2)])
        self.stamp(2)
        def c0():
            e("s_and_b32 s46, s2, 7"); e("s_lshl_b32 s46, s46, 10"); e(f"s_add_u32 s46, s46, {F0}")
            e("v_lshlrev_b32 v251, 2, v1")
        self.wait_flags([(c0, (1 << 64) - 1)], keep=True)
        self.stamp(3)
        self.mod_issue(12, 0)
        e("v_mov_b32 v249, 0"); e("ds_read_b32 v249, v249"); e("s_waitcnt lgkmcnt(0)"); e(f"v_readfirstlane_b32 s{S_NONCE}, v249")
        e("v_lshrrev_b32 v3, 4, v1"); e("v_and_b32 v4, 15, v1")
        e("v_lshrrev_b32 v5, 2, v4"); e("v_and_b32 v6, 3, v4")
        e("v_lshl_add_u32 v7, v3, 3, v5"); e("v_mul_u32_u24 v7, 384, v7"); e("v_lshl_add_u32 v7, v6, 3, v7")
        e(f"v_add_u32 v7, {RING}, v7")
        e("v_bfe_u32 v8, v5, 1, 1"); e("v_and_b32 v9, 1, v3"); e("v_lshl_or_b32 v8, v9, 1, v8")
        e("s_lshr_b32 s20, s3, 1")
        for c in range(3):
            if c < 2: e(f"s_lshl_b32 s21, s20, 1"); e(f"s_add_u32 s21, s21, {c}")
            else: e(f"s_add_u32 s21, s20, 8")
            e("s_lshr_b32 s22, s21, 2"); e("s_lshl_b32 s22, s22, 7"); e("s_and_b32 s21, s21, 3")
            e(f"v_xor_b32 v9, s21, v8"); e(f"v_lshl_add_u32 v{200+c}, v9, 5, v7"); e(f"v_add_u32 v{200+c}, s22, v{200+c}")
            e(f"v_add_u32 v{204+c}, {5*SL}, v{200+c}")
        e("s_and_b32 s21, s3, 1"); e("s_lshl_b32 s21, s21, 5")
        e("v_add_u32 v9, s21, v4"); e("v_lshlrev_b32 v9, 10, v9")
        for m in range(4):
            e(f"v_add_u32 v10, {4*m}, v3"); e(f"v_xor_b32 v10, v10, v4"); e(f"v_lshl_add_u32 v{208+m}, v10, 4, v9")
        e("s_waitcnt vmcnt(0)")
        self.mod_finish(MODL)
        e("s_waitcnt lgkmcnt(0)")
        e("s_barrier")
        self.ln_finish(MODL)
        ACC = 128
        e("s_waitcnt lgkmcnt(0)")
        e("s_barrier")
        for r in range(24): e(f"v_mov_b32 v{192+8+r}, 0") if False else None
        ACC = 212
        for r in range(24): e(f"v_mov_b32 v{ACC+r}, 0")
        self.stamp(4)
        def reads_list(n):
            buf = n % 2; slot = n % D
            out = []
            for rt in range(2):
                b = 32 + 32*buf + 4*rt
                out.append(f"ds_read_b128 v[{b}:{b+3}], v{208 + (n & 3)} offset:{rt*16384 + (n >> 2)*256}")
            for c in range(3):
                b = 40 + 32*buf + 4*c
                areg, off = (200 + c, slot*SL) if slot < 5 else (204 + c, (slot-5)*SL)
                for t in range(2):
                    out.append(f"ds_read_b64_tr_b16 v[{b+2*t}:{b+2*t+1}], v{areg} offset:{off + 4*t*384}")
            return out
        def mfmas(n):
            buf = n % 2
            for c in range(3):
                for rt in range(2):
                    acc = ACC + 4*(rt*3 + c)
                    x = 32 + 32*buf + 4*rt; w = 40 + 32*buf + 4*c
                    A, B = (w, x) if c < 2 else (x, w)
                    yield f"v_mfma_f32_16x16x32_bf16 v[{acc}:{acc+3}], v[{A}:{A+3}], v[{B}:{B+3}], v[{acc}:{acc+3}]"
        NK = 16
        for r in reads_list(0): e(r)
        for n in range(NK):
            if n + 1 < NK:
                if n + 1 >= 6:
                    hi = min(n + 5, NK - 1)
                    cA = sum(1 for s in range(max(n+2, 6), hi+1) if s % 2 == 0); cB = sum(1 for s in range(max(n+2, 6), hi+1) if s % 2 == 1)
                    e(f"s_waitcnt vmcnt({3*min(cA, cB)})")
                e("s_barrier")
            e("s_waitcnt lgkmcnt(0)")
            ms = list(mfmas(n)); rs = reads_list(n + 1) if n + 1 < NK else []
            ri = 0
            for i, m in enumerate(ms):
                e(m)
                for _ in range(2 if i < 2 else 1):
                    if ri < len(rs): e(rs[ri]); ri += 1
            st = n + D - 1
            if st < NK:
                lsk = self.lab("qkv_sk")
                e(f"s_cmp_lg_u32 s32, {st & 1}"); e(f"s_cbranch_scc1 {lsk}")
                e(f"s_mov_b32 s23, {st*32*3072}")
                for m in range(3): self.dma(192+m, 16, "s23", f"s_add_u32 m0, s7, {(st % D)*SL + m*4096}")
                self.a.label(lsk)
        self.stamp(5)
        e("v_lshlrev_b32 v8, 4, v1")
        e("s_and_b32 s20, s3, 1"); e("s_lshl_b32 s21, s4, 1"); e("s_add_u32 s21, s21, s20"); e("s_lshl_b32 s21, s21, 10")
        e("s_lshr_b32 s20, s3, 1")
        e(f"s_mov_b32 s22, {fl(0.25*LOG2E)}"); e("s_cmp_lt_u32 s5, 4"); e("s_cselect_b32 s22, s22, 1.0")
        for c in range(3):
            if c < 2:
                e("s_lshl_b32 s23, s5, 3"); e("s_lshl_b32 s6, s20, 1"); e("s_add_u32 s23, s23, s6"); e(f"s_add_u32 s23, s23, {c}")
            else:
                e("s_lshl_b32 s23, s5, 2"); e("s_add_u32 s23, s23, s20")
            e("s_lshl_b32 s23, s23, 16"); e("s_add_u32 s23, s23, s21")
            pk = 32 + 4*c
            for rt in range(2):
                acc = ACC + 4*(rt*3 + c)
                if c < 2:
                    for q in range(4): e(f"v_mul_f32 v{acc+q}, s22, v{acc+q}")
                e(f"v_cvt_pk_bf16_f32 v{pk+2*rt}, v{acc}, v{acc+1}"); e(f"v_cvt_pk_bf16_f32 v{pk+2*rt+1}, v{acc+2}, v{acc+3}")
            sw = "v_permlane16_swap_b32" if c < 2 else "v_permlane32_swap_b32"
            e(f"{sw} v{pk}, v{pk+2}"); e(f"{sw} v{pk+1}, v{pk+3}")
            e(f"buffer_store_dwordx4 v[{pk}:{pk+3}], v8, {'s[24:27]' if c < 2 else 's[28:31]'}, s23 offen {ST}")
        self.phase_end()
        self.signal(lambda: (e("s_lshl_b32 s46, s5, 7"), e("s_lshl_b32 s47, s4, 2"), e("s_add_u32 s46, s46, s47"), e(f"s_add_u32 s46, s46, {F1}")),
                    nrep=8, rep_stride=1024)
        if self.MODCRIT < 192: self.mod_late_a()
        if self.REPACK:
            rpi = self.lab("rpi")
            e("s_cmp_eq_u32 s3, 7"); e(f"s_cbranch_scc1 {rpi}")
            self.repack_issue()
            self.a.label(rpi)
        self.stamp(6)

    def l2_prefetch(self, vtmp, vdst):
        e = self.e
        e("s_and_b32 s20, s2, 7"); e("s_lshr_b32 s21, s2, 3")
        e(f"v_lshlrev_b32 v{vtmp}, 7, v1")
        self.srd(48, P_WSP, 0, 2048*2048*2)
        e("s_and_b32 s22, s20, 3"); e("s_lshl_b32 s22, s22, 21"); e("s_lshl_b32 s23, s21, 16"); e("s_add_u32 s22, s22, s23")
        e("s_lshl_b32 s23, s3, 13"); e("s_add_u32 s22, s22, s23")
        e(f"buffer_load_dword v{vdst}, v{vtmp}, s[48:51], s22 offen")
        if self.REPACK:
            self.srd(48, P_WS, WS_WINP, 8*512*448)
            e("s_lshr_b32 s22, s20, 2"); e(f"s_mul_i32 s22, s22, {4*512*448}")
            e(f"s_mul_i32 s23, s21, {224*128}"); e("s_add_u32 s22, s22, s23")
            e("s_lshl_b32 s23, s3, 13"); e("s_add_u32 s22, s22, s23")
            pw4 = self.lab("pf4")
            e("s_cmp_ge_u32 s3, 4"); e(f"s_cbranch_scc1 {pw4}")
            e(f"buffer_load_dword v{vdst+2}, v{vtmp}, s[48:51], s22 offen")
            self.a.label(pw4)
        else:
            self.srd(48, P_WIN, 0, 512*1792*2)
            e(f"v_lshrrev_b32 v{vdst+1}, 5, v1"); e(f"v_bfe_u32 v{vdst+2}, v1, 4, 1")
            e(f"v_and_b32 v{vdst+3}, 15, v1"); e(f"v_min_u32 v{vdst+3}, 7, v{vdst+3}")
            e(f"v_mul_u32_u24 v{vdst+1}, 3584, v{vdst+1}"); e(f"v_mul_u32_u24 v{vdst+2}, 1792, v{vdst+2}")
            e(f"v_add_u32 v{vdst+1}, v{vdst+1}, v{vdst+2}"); e(f"v_lshl_add_u32 v{vdst+1}, v{vdst+3}, 7, v{vdst+1}")
            e("s_lshr_b32 s22, s20, 2"); e("s_mul_i32 s22, s22, 896")
            e("s_lshl_b32 s23, s21, 4"); e("s_lshl_b32 s46, s3, 1"); e("s_add_u32 s23, s23, s46"); e("s_mul_i32 s23, s23, 3584")
            e("s_add_u32 s22, s22, s23")
            e(f"buffer_load_dword v{vdst+2}, v{vdst+1}, s[48:51], s22 offen")
        e(f"v_lshrrev_b32 v{vdst+1}, 2, v1"); e(f"v_and_b32 v{vdst+3}, 3, v1")
        e(f"v_lshlrev_b32 v{vdst+1}, 10, v{vdst+1}"); e(f"v_lshl_add_u32 v{vdst+1}, v{vdst+3}, 7, v{vdst+1}")
        e("s_lshr_b32 s22, s20, 2"); e("s_lshl_b32 s22, s22, 9")
        lw = self.lab("pf_w"); lx = self.lab("pf_x")
        e("s_cmp_ge_u32 s3, 2"); e(f"s_cbranch_scc1 {lw}")
        self.srd(48, P_WOUT, 0, 896*512*2)
        e("s_mul_i32 s23, s21, 28"); e("s_lshl_b32 s46, s3, 4"); e("s_add_u32 s23, s23, s46"); e("s_lshl_b32 s23, s23, 10")
        e("s_add_u32 s22, s22, s23")
        e(f"buffer_load_dword v{vdst+3}, v{vdst+1}, s[48:51], s22 offen")
        e(f"s_branch {lx}")
        self.a.label(lw)
        e("s_cmp_lg_u32 s3, 2"); e(f"s_cbranch_scc1 {lx}")
        self.srd(48, P_WO, 0, 512*512*2)
        e("s_lshl_b32 s23, s21, 14"); e("s_add_u32 s22, s22, s23")
        e(f"buffer_load_dword v{vdst+3}, v{vdst+1}, s[48:51], s22 offen")
        self.a.label(lx)

    def p2(self):
        e = self.e
        end = self.lab("att_end")
        H, QB_ = S_HEAD, S_QB
        self.srd(8, P_WS, WS_QK, 4*MB)
        self.srd(12, P_WS, WS_V, 2*MB)
        self.srd(16, P_WS, WS_O, 2*MB)
        e("s_and_b32 s6, s3, 3"); e("s_lshr_b32 s7, s3, 2")
        e("v_lshlrev_b32 v2, 4, v1")
        QA, QB = 8, 12
        SA, SB = 32, 48
        PA, PB = 64, 72
        OA, OB = 80, 96
        CA, CB = 112, 128
        KF = 144; VF = 152
        AK, AV = 4, 5
        FLAG = 131072 + 20480
        e(f"v_mov_b32 v3, {FLAG}"); e("v_mov_b32 v4, 0"); e("ds_write_b32 v3, v4")
        e("v_and_b32 v6, 31, v1"); e("v_and_b32 v7, 27, v6"); e("v_cmp_eq_u32 vcc, 16, v7")
        e("v_mov_b32 v16, 0x3f803f80"); e("v_cndmask_b32 v16, 0, v16, vcc")
        for r in range(16): e(f"v_mov_b32 v{VF+r}, v16")
        e("v_cmp_gt_u32 s[30:31], 16, v6")
        for r in range(16):
            e(f"v_mov_b32 v{CA+r}, 0"); e(f"v_mov_b32 v{CB+r}, 0")
        e("s_mov_b32 s33, 0")
        def cKV():
            e("s_and_b32 s46, s2, 7"); e("s_lshl_b32 s46, s46, 10"); e(f"s_add_u32 s46, s46, {F1}")
            e(f"s_lshr_b32 s44, s{H}, 3"); e("s_add_u32 s44, s44, 4"); e("s_lshl_b32 s44, s44, 7")
            e(f"s_lshr_b32 s45, s{H}, 2"); e("s_lshl_b32 s45, s45, 7")
            e("v_and_b32 v251, 31, v1"); e("v_lshlrev_b32 v251, 2, v251")
            e("v_mov_b32 v252, s44"); e("v_mov_b32 v253, s45")
            e("v_cmp_gt_u32 vcc, 32, v1"); e("v_cndmask_b32 v252, v253, v252, vcc")
            e("v_add_u32 v251, v251, v252")
        def cQ():
            e("s_and_b32 s46, s2, 7"); e("s_lshl_b32 s46, s46, 10"); e(f"s_add_u32 s46, s46, {F1}")
            e(f"s_lshr_b32 s44, s{H}, 3"); e("s_lshl_b32 s44, s44, 7"); e("s_add_u32 s46, s46, s44")
            e(f"s_lshl_b32 s44, s{QB_}, 4"); e("s_add_u32 s46, s46, s44")
            e("v_lshlrev_b32 v251, 2, v1")
        self.wait_flags([(cKV, (1 << 64) - 1), (cQ, 0xf)])
        self.stamp(7)
        e(f"s_lshl_b32 s20, s{QB_}, 3"); e("s_lshl_b32 s21, s6, 1"); e("s_add_u32 s20, s20, s21"); e("s_lshl_b32 s20, s20, 10")
        e(f"s_lshl_b32 s21, s{H}, 16"); e("s_add_u32 s20, s20, s21")
        e(f"buffer_load_dwordx4 v[{QA}:{QA+3}], v2, s[8:11], s20 offen")
        e(f"buffer_load_dwordx4 v[{QB}:{QB+3}], v2, s[8:11], s20 offen offset:1024")
        e(f"s_lshl_b32 s41, s{H}, 16"); e(f"s_add_u32 s40, s41, {32*65536}"); e("s_lshl_b32 s42, s3, 10")
        e("s_add_u32 s40, s40, s42"); e("s_add_u32 s41, s41, s42")
        def dma_half(half):
            e(f"s_add_u32 s20, s40, {32*half*1024}")
            self.dma(2, 8, "s20", f"s_add_u32 m0, s42, {32*half*1024}")
            e(f"s_add_u32 s20, s41, {32*half*1024}")
            self.dma(2, 12, "s20", f"s_add_u32 m0, s42, {65536 + 32*half*1024}")
        def next_chunk():
            e("s_add_u32 s40, s40, 8192"); e("s_add_u32 s41, s41, 8192"); e("s_add_u32 s42, s42, 8192")
        dma_half(0); dma_half(1); next_chunk()
        if self.MODCRIT < 192: self.mod_late_b()
        lrestart = self.lab("att_restart")
        self.a.label(lrestart)
        for r in range(16):
            e(f"v_mov_b32 v{OA+r}, 0"); e(f"v_mov_b32 v{OB+r}, 0")
        e("s_lshl_b32 s20, s7, 15"); e(f"v_add_u32 v{AK}, s20, v2")
        e("v_lshrrev_b32 v6, 5, v1"); e("v_and_b32 v7, 15, v1"); e("v_lshlrev_b32 v7, 4, v7"); e("v_lshl_add_u32 v7, v6, 8, v7")
        e("s_add_u32 s20, s20, 65536"); e(f"v_add_u32 v{AV}, s20, v7")
        for r in range(8): e(f"v_mov_b32 v{PB+r}, 0")
        if self.BALANCE:
            e("s_lshl_b32 s20, s3, 2"); e(f"s_add_u32 s20, s20, {151552 + 64}"); e("v_mov_b32 v17, s20")
            e("s_xor_b32 s20, s20, 16"); e("v_mov_b32 v18, s20")
            e("v_mov_b32 v19, 0"); e("ds_write_b32 v17, v19")
        e("s_mov_b64 exec, s[30:31]")
        for r in range(8): e(f"v_mov_b32 v{VF+8+r}, 0")
        e("s_mov_b64 exec, -1")
        def rdK(buf, off): e(f"ds_read_b128 v[{KF+4*buf}:{KF+4*buf+3}], v{AK} offset:{off}")
        def rdV(buf, off):
            e("s_mov_b64 exec, s[30:31]")
            e(f"ds_read_b128 v[{VF+8*buf}:{VF+8*buf+3}], v{AV} offset:{off}")
            e(f"ds_read_b128 v[{VF+8*buf+4}:{VF+8*buf+7}], v{AV} offset:{off+512}")
            e("s_mov_b64 exec, -1")
        def qk(S, C, Q, buf): e(f"v_mfma_f32_32x32x16_bf16 v[{S}:{S+15}], v[{KF+4*buf}:{KF+4*buf+3}], v[{Q}:{Q+3}], v[{C}:{C+15}]")
        def pv(O, P, buf, mf): e(f"v_mfma_f32_32x32x16_bf16 v[{O}:{O+15}], v[{VF+8*buf+4*mf}:{VF+8*buf+4*mf+3}], v[{P+4*mf}:{P+4*mf+3}], v[{O}:{O+15}]")
        def step(S, P, first, mid1, mid2, pre=None, extra=None):
            if pre: pre()
            first()
            k = 0
            for j in range(16):
                e(f"v_exp_f32 v{S+j}, v{S+j}")
                if j >= 3 and j % 2 == 1:
                    e(f"v_cvt_pk_bf16_f32 v{P+k}, v{S+2*k}, v{S+2*k+1}"); k += 1
                if j == self.M1 and mid1: mid1()
                if j == 7 and extra: extra()
                if j == self.M2 and mid2: mid2()
            while k < 8:
                e(f"v_cvt_pk_bf16_f32 v{P+k}, v{S+2*k}, v{S+2*k+1}"); k += 1
        e("s_waitcnt vmcnt(0) lgkmcnt(0)")
        e("s_barrier")
        self.stamp(8)
        if self.REPACK:
            rps = self.lab("att_rps")
            e("s_cmp_lg_u32 s33, 0"); e(f"s_cbranch_scc1 {rps}")
            self.repack_store()
            self.a.label(rps)
        rdK(0, 0); rdV(0, 0)
        e("s_waitcnt lgkmcnt(0)")
        qk(SA, CA, QA, 0)
        e("s_mov_b32 s34, 0")
        loop = self.lab("att_loop")
        self.a.label(loop)
        nb = self.lab("att_nobar")
        e("s_add_u32 s35, s34, s33")
        if self.PREFETCH:
            pf = self.lab("att_pf")
            e(f"s_cmp_lg_u32 s34, {11 if self.REPACK else 4}"); e(f"s_cbranch_scc1 {pf}"); e("s_cmp_lg_u32 s33, 0"); e(f"s_cbranch_scc1 {pf}")
            self.l2_prefetch(170, 172)
            self.a.label(pf)
        if self.REPACK:
            fr = self.lab("att_fr")
            e("s_cmp_lg_u32 s3, 7"); e(f"s_cbranch_scc1 {fr}")
            e("s_cmp_lg_u32 s33, 0"); e(f"s_cbranch_scc1 {fr}")
            e("s_cmp_lg_u32 s34, 10"); e(f"s_cbranch_scc1 {fr}")
            e("s_and_b32 s21, s2, 7"); e("s_lshl_b32 s21, s21, 10"); e(f"s_add_u32 s21, s21, {FR}")
            e("v_lshlrev_b32 v238, 4, v1"); e("s_mov_b32 s47, 0")
            frl = self.lab("att_frl"); frd = self.lab("att_frd")
            self.a.label(frl)
            e(f"buffer_load_dwordx4 v[240:243], v238, s[{SRD_F}:{SRD_F+3}], s21 offen sc1")
            e("s_add_u32 s47, s47, 1"); e(f"s_cmp_gt_u32 s47, {SPIN_CAP}"); e(f"s_cbranch_scc1 {frd}")
            e("s_waitcnt vmcnt(0)")
            e("s_mov_b64 s[36:37], -1")
            for r in range(240, 244):
                e(f"v_cmp_eq_u32 vcc, s{S_NONCE}, v{r}"); e("s_and_b64 s[36:37], s[36:37], vcc")
            e("s_cmp_eq_u64 s[36:37], -1"); e(f"s_cbranch_scc0 {frl}")
            self.a.label(frd)
            e("s_waitcnt vmcnt(0)")
            self.a.label(fr)
        e("s_cmp_lg_u32 s35, 3"); e(f"s_cbranch_scc1 {nb}")
        e("s_waitcnt vmcnt(0)")
        e("s_barrier")
        if self.REPACK: self.signal(lambda: (e("s_lshl_b32 s46, s2, 2"), e(f"s_add_u32 s46, s46, {FR}")), nrep=8, rep_stride=1024)
        if self.MODCRIT < 192: self.mod_late_flag()
        self.a.label(nb)
        def extra_dma():
            sk = self.lab("att_nd")
            e("s_cmp_ge_u32 s35, 3"); e(f"s_cbranch_scc1 {sk}")
            dma_half(0); dma_half(1); next_chunk()
            self.a.label(sk)
        step(SA, PA, lambda: qk(SB, CB, QB, 0), lambda: pv(OB, PB, 1, 0), lambda: pv(OB, PB, 1, 1), pre=lambda: rdK(1, 1024), extra=extra_dma)
        def preB0():
            rdV(1, 1024); e("s_waitcnt lgkmcnt(2)")
            if self.BALANCE:
                e("v_mov_b32 v19, s34")
                e("ds_write_b32 v17, v19")
                e("ds_read_b32 v24, v18")
        step(SB, PB, lambda: qk(SA, CA, QA, 1), lambda: pv(OA, PA, 0, 0), lambda: pv(OA, PA, 0, 1), pre=preB0)
        step(SA, PA, lambda: qk(SB, CB, QB, 1), lambda: pv(OB, PB, 0, 0), lambda: pv(OB, PB, 0, 1), pre=lambda: rdK(0, 2048))
        def preB1():
            rdV(0, 2048); e("s_waitcnt lgkmcnt(2)")
            if self.BALANCE:
                hi = self.lab("att_hi"); dn_ = self.lab("att_pd")
                e("v_readfirstlane_b32 s20, v24")
                e("s_cmp_gt_u32 s34, s20"); e(f"s_cbranch_scc0 {hi}")
                e("s_setprio 0"); e(f"s_branch {dn_}")
                self.a.label(hi)
                e("s_setprio 1")
                self.a.label(dn_)
        step(SB, PB, lambda: qk(SA, CA, QA, 0), lambda: pv(OA, PA, 1, 0), lambda: pv(OA, PA, 1, 1), pre=preB1)
        e(f"v_add_u32 v{AK}, 2048, v{AK}"); e(f"v_add_u32 v{AV}, 2048, v{AV}")
        e("s_add_u32 s34, s34, 1"); e("s_cmp_lt_u32 s34, 16"); e(f"s_cbranch_scc1 {loop}")
        if self.BALANCE:
            e("v_mov_b32 v19, 64"); e("ds_write_b32 v17, v19"); e("s_setprio 0")
        self.stamp(9)
        pv(OB, PB, 1, 0); pv(OB, PB, 1, 1)
        SCR = 131072
        e("s_mul_i32 s20, s3, 2560"); e(f"s_add_u32 s20, s20, {SCR}")
        e("v_add_u32 v6, s20, v2"); e("v_lshlrev_b32 v7, 2, v1"); e("v_add_u32 v7, s20, v7")
        lk1 = self.lab("att_k1"); lx = self.lab("att_x")
        e("s_cmp_eq_u32 s7, 0"); e(f"s_cbranch_scc1 {lk1}")
        e(f"ds_write_b128 v6, v[{OA}:{OA+3}]"); e(f"ds_write_b128 v6, v[{OA+4}:{OA+7}] offset:1024"); e(f"ds_write_b32 v7, v{OA+8} offset:2048")
        for r in range(9): e(f"v_mov_b32 v{OA+r}, v{OB+r}")
        e(f"s_branch {lx}")
        self.a.label(lk1)
        e(f"ds_write_b128 v6, v[{OB}:{OB+3}]"); e(f"ds_write_b128 v6, v[{OB+4}:{OB+7}] offset:1024"); e(f"ds_write_b32 v7, v{OB+8} offset:2048")
        self.a.label(lx)
        e("s_xor_b32 s21, s3, 4"); e("s_mul_i32 s21, s21, 2560"); e(f"s_add_u32 s21, s21, {SCR}")
        e("v_add_u32 v6, s21, v2"); e("v_lshlrev_b32 v7, 2, v1"); e("v_add_u32 v7, s21, v7")
        e("s_waitcnt lgkmcnt(0)"); e("s_barrier")
        e(f"ds_read_b128 v[{SA}:{SA+3}], v6"); e(f"ds_read_b128 v[{SA+4}:{SA+7}], v6 offset:1024"); e(f"ds_read_b32 v{SA+8}, v7 offset:2048")
        e(f"v_mov_b32 v20, {fl(2.0**-24)}"); e(f"v_mov_b32 v21, {fl(2.0**40)}"); e(f"v_mov_b32 v22, 0x7f7fffff")
        e("s_waitcnt lgkmcnt(0)")
        for r in range(9): e(f"v_add_f32 v{OA+r}, v{OA+r}, v{SA+r}")
        e(f"v_max3_f32 v23, |v{OA}|, |v{OA+1}|, |v{OA+2}|"); e(f"v_max3_f32 v23, v23, |v{OA+3}|, |v{OA+4}|")
        e(f"v_max3_f32 v23, v23, |v{OA+5}|, |v{OA+6}|"); e(f"v_max_f32 v23, v23, |v{OA+7}|")
        e(f"v_cmp_ge_f32 vcc, v{OA+8}, v20"); e(f"v_cmp_le_f32 s[36:37], v{OA+8}, v21"); e(f"v_cmp_le_f32 s[38:39], v23, v22")
        e("s_and_b64 s[36:37], s[36:37], vcc"); e("s_and_b64 s[36:37], s[36:37], s[38:39]")
        lok = self.lab("att_ok")
        e("s_cmp_eq_u64 s[36:37], -1"); e(f"s_cbranch_scc1 {lok}")
        e(f"v_mov_b32 v3, {FLAG}"); e("v_mov_b32 v20, 1"); e("ds_write_b32 v3, v20"); e("s_waitcnt lgkmcnt(0)")
        self.a.label(lok)
        e(f"v_rcp_f32 v20, v{OA+8}")
        for r in range(8): e(f"v_mul_f32 v{OA+r}, v{OA+r}, v20")
        for q in range(4): e(f"v_cvt_pk_bf16_f32 v{SB+q}, v{OA+2*q}, v{OA+2*q+1}")
        e("s_barrier")
        e(f"v_mov_b32 v3, {FLAG}"); e("ds_read_b32 v20, v3")
        e(f"s_lshl_b32 s20, s{QB_}, 3"); e("s_lshl_b32 s21, s6, 1"); e("s_add_u32 s20, s20, s21"); e("s_add_u32 s20, s20, s7")
        e("s_lshl_b32 s20, s20, 15"); e(f"s_lshl_b32 s21, s{H}, 10"); e("s_add_u32 s22, s20, s21")
        e("s_waitcnt lgkmcnt(0)")
        e("v_readfirstlane_b32 s20, v20")
        lfin = self.lab("att_fin"); lslow = self.lab("att_slow")
        e("s_cmp_lg_u32 s33, 0"); e(f"s_cbranch_scc1 {lfin}")
        e("s_cmp_lg_u32 s20, 0"); e(f"s_cbranch_scc1 {lslow}")
        self.a.label(lfin)
        e(f"buffer_store_dwordx4 v[{SB}:{SB+3}], v2, s[16:19], s22 offen {ST}")
        e(f"s_branch {end}")
        self.a.label(lslow)
        e("s_mov_b32 s33, 8")
        e("s_lshl_b32 s20, s7, 15"); e(f"v_add_u32 v{AK}, s20, v2")
        e("v_mov_b32 v20, 0xff800000"); e("v_mov_b32 v21, 0xff800000")
        e("s_mov_b32 s34, 0")
        sl = self.lab("att_sl")
        self.a.label(sl)
        rdK(0, 0); e("s_waitcnt lgkmcnt(0)")
        e(f"v_mfma_f32_32x32x16_bf16 v[{SA}:{SA+15}], v[{KF}:{KF+3}], v[{QA}:{QA+3}], 0")
        e(f"v_mfma_f32_32x32x16_bf16 v[{SB}:{SB+15}], v[{KF}:{KF+3}], v[{QB}:{QB+3}], 0")
        for r in range(0, 16, 2): e(f"v_max3_f32 v20, v20, v{SA+r}, v{SA+r+1}")
        for r in range(0, 16, 2): e(f"v_max3_f32 v21, v21, v{SB+r}, v{SB+r+1}")
        e(f"v_add_u32 v{AK}, 1024, v{AK}")
        e("s_add_u32 s34, s34, 1"); e("s_cmp_lt_u32 s34, 32"); e(f"s_cbranch_scc1 {sl}")
        for r in (20, 21):
            e(f"v_mov_b32 v22, v{r}"); e(f"v_permlane32_swap_b32 v{r}, v22"); e(f"v_max_f32 v{r}, v{r}, v22")
        e("s_lshl_b32 s20, s3, 9"); e(f"s_add_u32 s20, s20, {SCR}")
        e("v_lshlrev_b32 v6, 2, v1"); e("v_add_u32 v7, s20, v6")
        e("s_barrier")
        e("ds_write_b32 v7, v20"); e("ds_write_b32 v7, v21 offset:256"); e("s_waitcnt lgkmcnt(0)"); e("s_barrier")
        e("s_xor_b32 s20, s3, 4"); e("s_lshl_b32 s20, s20, 9"); e(f"s_add_u32 s20, s20, {SCR}"); e("v_add_u32 v7, s20, v6")
        e("ds_read_b32 v22, v7"); e("ds_read_b32 v23, v7 offset:256"); e("s_waitcnt lgkmcnt(0)")
        e("v_max_f32 v20, v20, v22"); e("v_max_f32 v21, v21, v23")
        for r in range(16):
            e(f"v_sub_f32 v{CA+r}, 0, v20"); e(f"v_sub_f32 v{CB+r}, 0, v21")
        e("s_barrier")
        e(f"s_branch {lrestart}")
        self.a.label(end)
        self.phase_end()
        self.signal(lambda: (e(f"s_lshl_b32 s46, s{QB_}, 7"), e(f"s_lshl_b32 s47, s{H}, 2"), e("s_add_u32 s46, s46, s47"), e(f"s_add_u32 s46, s46, {F2}")))
        self.stamp(10)

    def proj_wvoff(self):
        e = self.e
        e("v_lshlrev_b32 v2, 4, v1")
        e("v_lshrrev_b32 v3, 3, v1"); e("v_and_b32 v4, 7, v1"); e("v_bfe_u32 v5, v3, 1, 1"); e("v_lshlrev_b32 v5, 2, v5")
        e("v_xor_b32 v4, v4, v5"); e("v_lshlrev_b32 v3, 10, v3"); e("v_lshl_add_u32 v3, v4, 4, v3")
        e("s_lshl_b32 s20, s5, 7"); e("v_add_u32 v3, s20, v3")

    def proj_epi_addr(self):
        e = self.e
        e("v_lshrrev_b32 v14, 2, v1"); e("v_and_b32 v15, 3, v1")
        e("s_and_b32 s20, s3, 1"); e("s_lshl_b32 s20, s20, 5"); e("s_lshl_b32 s21, s4, 6"); e("s_add_u32 s20, s20, s21")
        e("s_lshr_b32 s21, s3, 2"); e("s_lshl_b32 s21, s21, 4"); e("s_add_u32 s36, s20, s21")
        e("v_add_u32 v16, s36, v14"); e("v_lshlrev_b32 v16, 10, v16"); e("v_lshl_add_u32 v16, v15, 4, v16")
        e("s_bfe_u32 s20, s3, 0x10001"); e("s_lshl_b32 s20, s20, 6"); e("s_lshl_b32 s21, s5, 7"); e("s_add_u32 s32, s20, s21")
        e("v_lshlrev_b32 v17, 5, v15"); e("s_lshl_b32 s33, s32, 1")

    def proj_gate_loads(self, gate_chunk):
        e = self.e
        for kq in range(4):
            e(f"s_add_u32 s20, s33, {kq*12288 + gate_chunk*2048}")
            for hh in range(2):
                e(f"buffer_load_dwordx4 v[{160+8*kq+4*hh}:{163+8*kq+4*hh}], v17, s[28:31], s20 offen offset:{16*hh}")

    def proj_addr(self, natural, xbase, wbase):
        e = self.e
        e("s_and_b32 s20, s3, 1"); e("s_lshl_b32 s20, s20, 13"); e("s_lshr_b32 s21, s3, 2"); e("s_lshl_b32 s22, s21, 12")
        e("s_add_u32 s20, s20, s22"); e(f"s_add_u32 s20, s20, {xbase}"); e("v_add_u32 v8, s20, v2")
        e("v_lshrrev_b32 v4, 4, v1"); e("v_and_b32 v5, 15, v1"); e("v_lshrrev_b32 v6, 2, v5"); e("v_and_b32 v7, 3, v5")
        e("v_lshrrev_b32 v10, 1, v4"); e("v_and_b32 v11, 1, v4")
        e(f"v_lshl_add_u32 v12, v10, {3 if natural else 2}, v6"); e("v_lshlrev_b32 v12, 7, v12")
        e("v_bfe_u32 v13, v6, 1, 1"); e("s_bfe_u32 s20, s3, 0x10001"); e("v_xor_b32 v13, s20, v13")
        e("v_lshl_add_u32 v12, v13, 6, v12"); e("v_lshl_add_u32 v12, v11, 5, v12"); e("v_lshl_add_u32 v12, v7, 3, v12")
        e("s_lshl_b32 s22, s21, 13"); e(f"s_add_u32 s22, s22, {wbase}"); e("v_add_u32 v9, s22, v12")

    def proj_chunk(self, ACC, xoff, wreg, woff, natural):
        e = self.e
        tstep = (4 if natural else 8) * 128
        for ks in range(4):
            b = 96 + 8*ks
            e(f"ds_read_b128 v[{b}:{b+3}], v8 offset:{xoff + ks*1024}")
            e(f"ds_read_b64_tr_b16 v[{b+4}:{b+5}], v{wreg} offset:{woff + ks*2048}")
            e(f"ds_read_b64_tr_b16 v[{b+6}:{b+7}], v{wreg} offset:{woff + ks*2048 + tstep}")
        for ks in range(4):
            b = 96 + 8*ks
            e(f"s_waitcnt lgkmcnt({3*(3-ks)})")
            e(f"v_mfma_f32_32x32x16_bf16 v[{ACC}:{ACC+15}], v[{b+4}:{b+7}], v[{b}:{b+3}], v[{ACC}:{ACC+15}]")

    def proj_epilogue(self, ACC, srd_out, flags, stats):
        e = self.e
        e("s_barrier")
        e("s_mul_i32 s20, s3, 4608")
        e("v_and_b32 v18, 31, v1"); e("v_mul_u32_u24 v18, 144, v18"); e("v_lshrrev_b32 v19, 5, v1")
        e("v_lshl_add_u32 v18, v19, 4, v18"); e("v_add_u32 v18, s20, v18")
        for g in range(4): e(f"ds_write_b128 v18, v[{ACC+4*g}:{ACC+4*g+3}] offset:{32*g}")
        e("s_waitcnt vmcnt(0)")
        for q in range(4):
            for kq in (1,):
                e(f"v_pk_add_f32 v[{160+2*q}:{161+2*q}], v[{160+2*q}:{161+2*q}], v[{168+2*q}:{169+2*q}]")
                e(f"v_pk_add_f32 v[{176+2*q}:{177+2*q}], v[{176+2*q}:{177+2*q}], v[{184+2*q}:{185+2*q}]")
        for q in range(4):
            e(f"v_pk_add_f32 v[{160+2*q}:{161+2*q}], v[{160+2*q}:{161+2*q}], v[{176+2*q}:{177+2*q}]")
        for q in range(4):
            e(f"v_cvt_pk_bf16_f32 v{168+q}, v{160+2*q}, v{161+2*q}")
        for q in range(4):
            e(f"v_lshlrev_b32 v{160+2*q}, 16, v{168+q}"); e(f"v_and_b32 v{161+2*q}, 0xffff0000, v{168+q}")
        e("s_and_b32 s20, s3, 3"); e("s_mul_i32 s20, s20, 4608"); e("s_lshr_b32 s21, s3, 2"); e(f"s_mul_i32 s21, s21, {16*144}")
        e("s_add_u32 s20, s20, s21")
        e("v_mul_u32_u24 v18, 144, v14"); e("v_lshl_add_u32 v18, v15, 5, v18"); e("v_add_u32 v18, s20, v18")
        e("s_waitcnt lgkmcnt(0)"); e("s_barrier")
        e("ds_read_b128 v[48:51], v18"); e("ds_read_b128 v[52:55], v18 offset:16")
        e(f"ds_read_b128 v[56:59], v18 offset:{4*4608}"); e(f"ds_read_b128 v[60:63], v18 offset:{4*4608+16}")
        e("s_waitcnt lgkmcnt(0)")
        for q in range(4):
            e(f"v_pk_add_f32 v[{48+2*q}:{49+2*q}], v[{48+2*q}:{49+2*q}], v[{56+2*q}:{57+2*q}]")
        for q in range(4):
            e(f"v_lshlrev_b32 v{56+2*q}, 16, v{32+q}"); e(f"v_and_b32 v{57+2*q}, 0xffff0000, v{32+q}")
        for q in range(4):
            e(f"v_pk_fma_f32 v[{56+2*q}:{57+2*q}], v[{160+2*q}:{161+2*q}], v[{48+2*q}:{49+2*q}], v[{56+2*q}:{57+2*q}]")
        for q in range(4):
            e(f"v_cvt_pk_bf16_f32 v{32+q}, v{56+2*q}, v{57+2*q}")
        e(f"buffer_store_dwordx4 v[32:35], v16, {sr(srd_out,4)}, s32 offen {flags}")
        if stats:
            e("v_pk_add_f32 v[48:49], v[56:57], v[58:59]"); e("v_pk_add_f32 v[50:51], v[60:61], v[62:63]")
            e("v_pk_add_f32 v[48:49], v[48:49], v[50:51]"); e("v_add_f32 v48, v48, v49")
            for m in ("quad_perm:[1,0,3,2]", "quad_perm:[2,3,0,1]"):
                e(f"v_add_f32_dpp v48, v48, v48 {m} row_mask:0xf bank_mask:0xf")
            e(f"v_mul_f32 v48, {fl(1.0/32)}, v48")
            e("v_sub_f32 v50, 0, v48"); e("v_mov_b32 v51, v50")
            for q in range(4): e(f"v_pk_add_f32 v[{56+2*q}:{57+2*q}], v[{56+2*q}:{57+2*q}], v[50:51]")
            e("v_pk_mul_f32 v[52:53], v[56:57], v[56:57]")
            for q in range(1, 4): e(f"v_pk_fma_f32 v[52:53], v[{56+2*q}:{57+2*q}], v[{56+2*q}:{57+2*q}], v[52:53]")
            e("v_add_f32 v49, v52, v53")
            for m in ("quad_perm:[1,0,3,2]", "quad_perm:[2,3,0,1]"):
                e(f"v_add_f32_dpp v49, v49, v49 {m} row_mask:0xf bank_mask:0xf")
            self.srd(40, P_WS, WS_STX, 2048*128)
            e("v_add_u32 v18, s36, v14"); e("v_lshlrev_b32 v18, 7, v18")
            e("s_bfe_u32 s20, s3, 0x10001"); e("s_lshl_b32 s21, s5, 1"); e("s_add_u32 s20, s20, s21"); e("s_lshl_b32 s20, s20, 3")
            e("v_cmp_eq_u32 vcc, 0, v15"); e("s_and_saveexec_b64 s[44:45], vcc")
            e(f"buffer_store_dwordx2 v[48:49], v18, s[40:43], s20 offen {ST}")
            e("s_mov_b64 exec, s[44:45]")

    def p3(self):
        e = self.e
        self.srd(8, P_WS, WS_O, 2*MB); self.srd(12, P_WO, 0, 512*512*2)
        self.srd(16, P_X, 0, 2*MB); self.srd(24, P_WS, WS_X1, 2*MB); self.srd(28, P_WS, WS_MOD, 49152)
        self.proj_wvoff()
        self.proj_addr(False, 65536, 0)
        self.proj_epi_addr()
        def pre3():
            for m in range(10):
                sk = None
                if m == 9:
                    sk = self.lab("p3w"); e("s_cmp_lg_u32 s3, 0"); e(f"s_cbranch_scc1 {sk}")
                e(f"s_add_u32 s21, s3, {7*m}"); e("s_lshl_b32 s20, s21, 13"); e("s_lshl_b32 s21, s21, 10")
                self.dma(3, 12, "s20", "s_mov_b32 m0, s21")
                if sk: self.a.label(sk)
        def cO():
            e("s_lshr_b32 s46, s4, 2"); e("s_lshl_b32 s46, s46, 7"); e(f"s_add_u32 s46, s46, {F2}"); e("v_lshlrev_b32 v251, 2, v1")
        def cM(k):
            def f():
                e("s_and_b32 s46, s2, 7"); e("s_lshl_b32 s46, s46, 10"); e(f"s_add_u32 s46, s46, {F0 + 256*k}"); e("v_lshlrev_b32 v251, 2, v1")
            return f
        self.wait_flags([(cM(1), (1 << 64) - 1), (cM(2), (1 << 64) - 1), (cO, 0xffffffff)], pre=pre3, w7_after=False)
        self.stamp(11)
        e(f"s_mul_i32 s6, s4, {2*32*1024}"); e("s_lshl_b32 s21, s3, 10"); e("s_add_u32 s6, s6, s21")
        for c in range(4):
            for tt in range(2):
                e(f"s_add_u32 s20, s6, {tt*32*1024 + c*8*1024}")
                self.dma(2, 8, "s20", f"s_add_u32 m0, s21, {65536 + c*16384 + tt*8192}")
            if c < 3: e("s_barrier")
        e("buffer_load_dwordx4 v[32:35], v16, s[16:19], s32 offen")
        self.proj_gate_loads(2)
        ACC = 64
        for r in range(16): e(f"v_mov_b32 v{ACC+r}, 0")
        for c in range(4):
            e(f"s_waitcnt vmcnt({2*(3-c) + 9})"); e("s_barrier")
            if c == 0: self.stamp(35)
            self.proj_chunk(ACC, c*16384, 9, c*16384, False)
        self.stamp(36)
        self.proj_epilogue(ACC, 24, ST, True)
        self.stamp(37)
        self.phase_end()
        self.signal(lambda: (e("s_lshl_b32 s46, s4, 7"), e("s_lshl_b32 s47, s5, 2"), e("s_add_u32 s46, s46, s47"), e(f"s_add_u32 s46, s46, {F3}")))
        self.stamp(12)

    def p4(self):
        e = self.e
        RING = 65536; SL = 14336; D = 6; MODL = RING + D*SL
        PART = 155648
        Z1L = 135168
        self.srd(8, P_WS, WS_X1, 2*MB)
        self.srd(12, P_WS, WS_MOD, 49152)
        if self.REPACK: self.srd(16, P_WS, WS_WINP, 8*512*448)
        else: self.srd(16, P_WIN, 0, 512*1792*2)
        self.srd(28, P_WS, WS_Z2, 56*64*1024)
        self.srd(36, P_WS, WS_ST, 32*8*64*16)
        if self.REPACK:
            e("v_lshlrev_b32 v192, 4, v1")
            e("s_lshl_b32 s7, s3, 10"); e(f"s_add_u32 s7, s7, {RING}")
            e(f"s_mul_i32 s33, s5, {512*448}"); e("s_lshl_b32 s20, s3, 10"); e("s_add_u32 s33, s33, s20")
            e("s_cmp_ge_u32 s3, 6"); e("s_cselect_b32 s35, 0, 8192")
            e("s_add_u32 s34, s33, s35"); e("s_add_u32 s35, s35, s7")
        else:
            for m in range(2):
                d = 192 + m
                e(f"s_lshl_b32 s20, s3, 6"); e(f"s_add_u32 s20, s20, {512*m}")
                e(f"v_add_u32 v200, s20, v1")
                e(f"v_mul_u32_u24 v201, 2341, v200"); e(f"v_lshrrev_b32 v201, 16, v201")
                e(f"v_mul_u32_u24 v202, 28, v201"); e(f"v_sub_u32 v202, v200, v202")
                e(f"v_bfe_u32 v203, v201, 3, 1"); e(f"v_lshlrev_b32 v203, 1, v203"); e(f"v_xor_b32 v202, v202, v203")
                e(f"v_lshlrev_b32 v203, 4, v202")
                e(f"s_mul_i32 s20, s5, 224"); e(f"s_add_u32 s21, s20, 1792"); e(f"v_add_u32 v204, s21, v203")
                e(f"s_sub_u32 s21, s20, 224"); e(f"v_add_u32 v205, s21, v203")
                e(f"v_cmp_gt_u32 vcc, 14, v202"); e(f"v_cndmask_b32 v204, v205, v204, vcc")
                e(f"v_mul_u32_u24 v201, 3584, v201"); e(f"v_add_u32 v{d}, v201, v204")
            e("s_lshl_b32 s7, s3, 10"); e(f"s_add_u32 s7, s7, {RING}")
            e("s_cmp_ge_u32 s3, 6"); e("s_cselect_b64 vcc, -1, 0"); e("v_cndmask_b32 v194, v193, v192, vcc")
            e("s_cselect_b32 s35, 0, 8192"); e("s_add_u32 s35, s35, s7")
        def issue(stage, cnt):
            if self.REPACK:
                for m in range(cnt):
                    e(f"s_add_u32 s23, s33, {stage*14336 + m*8192}")
                    self.dma(192, 16, "s23", f"s_add_u32 m0, s7, {(stage % D)*SL + m*8192}")
            else:
                e(f"s_mov_b32 s23, {stage*32*3584}")
                for m in range(cnt):
                    self.dma(192+m, 16, "s23", f"s_add_u32 m0, s7, {(stage % D)*SL + m*8192}")
        def pre4():
            self.mod_issue(12, 3)
            for st in range(D-1):
                if self.REPACK:
                    e(f"s_add_u32 s23, s33, {st*14336}")
                    self.dma(192, 16, "s23", f"s_add_u32 m0, s7, {st*SL}")
                    e(f"s_add_u32 s23, s34, {st*14336}")
                    self.dma(192, 16, "s23", f"s_add_u32 m0, s35, {st*SL}")
                else:
                    e(f"s_mov_b32 s23, {st*32*3584}")
                    self.dma(192, 16, "s23", f"s_add_u32 m0, s7, {st*SL}")
                    self.dma(194, 16, "s23", f"s_add_u32 m0, s35, {st*SL}")
            e(f"s_waitcnt vmcnt({2*(D-1)})")
            self.mod_finish(MODL)
        e("v_lshrrev_b32 v3, 4, v1"); e("v_and_b32 v4, 15, v1"); e("v_lshrrev_b32 v5, 2, v4"); e("v_and_b32 v6, 3, v4")
        e("v_lshl_add_u32 v7, v3, 3, v5"); e("v_mul_u32_u24 v7, 448, v7"); e("v_lshl_add_u32 v7, v6, 3, v7"); e(f"v_add_u32 v7, {RING}, v7")
        e("v_and_b32 v8, 1, v3"); e("v_lshlrev_b32 v8, 5, v8")
        e("v_add_u32 v200, v7, v8"); e("v_sub_u32 v201, v7, v8")
        e(f"v_add_u32 v202, {4*SL}, v200"); e(f"v_add_u32 v203, {4*SL}, v201")
        e("s_and_b32 s21, s3, 1"); e("s_lshl_b32 s21, s21, 5"); e("v_add_u32 v9, s21, v4"); e("v_lshlrev_b32 v9, 10, v9")
        for m in range(4):
            e(f"v_add_u32 v10, {4*m}, v3"); e(f"v_xor_b32 v10, v10, v4"); e(f"v_lshl_add_u32 v{208+m}, v10, 4, v9")
        e(f"v_mov_b32 v5, {PART + 2048}"); e("v_mov_b32 v6, 0"); e("ds_write_b32 v5, v6")
        def cX():
            e("s_lshl_b32 s46, s4, 7"); e(f"s_add_u32 s46, s46, {F3}"); e("v_lshlrev_b32 v251, 2, v1")
        self.wait_flags([(cX, 0xff)], pre=lambda: (pre4(), e("s_waitcnt lgkmcnt(0)")))
        self.stamp(13)
        e("s_lshl_b32 s6, s4, 16")
        self.ln_loads(8, 6)
        self.srd(40, P_WS, WS_STX, 2048*128)
        e("s_lshl_b32 s20, s4, 6"); e("s_lshl_b32 s21, s3, 3"); e("s_add_u32 s20, s20, s21"); e("s_lshl_b32 s20, s20, 7")
        e("v_lshlrev_b32 v6, 7, v3"); e("v_lshl_add_u32 v6, v4, 3, v6")
        e("buffer_load_dwordx2 v[8:9], v6, s[40:43], s20 offen")
        e("buffer_load_dwordx2 v[10:11], v6, s[40:43], s20 offen offset:512")
        e("s_waitcnt vmcnt(0)")
        self.stamp(14)
        self.ln2_prepare()
        e("s_barrier")
        self.ln_finish(MODL)
        ACC = 212
        for r in range(32): e(f"v_mov_b32 v{ACC+r}, 0")
        e("s_waitcnt lgkmcnt(0)"); e("s_barrier")
        self.stamp(15)
        NK = 16
        c0 = -2.0*math.sqrt(2.0/math.pi)*LOG2E
        c1 = c0*0.044715
        variants = [self.lab("win_v") for _ in range(4)]
        join = self.lab("win_join")
        e("s_lshr_b32 s20, s3, 1")
        for cg in (1, 2, 3):
            e(f"s_cmp_eq_u32 s20, {cg}"); e(f"s_cbranch_scc1 {variants[cg]}")
        for cg in range(4):
            self.a.label(variants[cg])
            z2 = cg < 2
            nt = (4, 3, 3, 4)[cg]
            t0 = (0, 4, 4, 0)[cg]
            sg0 = (0 if z2 else 7) + t0
            cnt = 1 if cg == 3 else 2
            def reads(n):
                buf = n % 2; slot = n % D
                out = []
                for rt in range(2):
                    b = 32 + 32*buf + 4*rt
                    out.append(f"ds_read_b128 v[{b}:{b+3}], v{208 + (n & 3)} offset:{rt*16384 + (n >> 2)*256}")
                for c in range(nt):
                    sg = sg0 + c
                    b = 40 + 32*buf + 4*c
                    areg, off = (200 + (sg & 1), slot*SL) if slot < 4 else (202 + (sg & 1), (slot-4)*SL)
                    for t in range(2):
                        out.append(f"ds_read_b64_tr_b16 v[{b+2*t}:{b+2*t+1}], v{areg} offset:{off + 4*t*448 + sg*32}")
                return out
            for r in reads(0): e(r)
            for n in range(NK):
                if n + 1 < NK:
                    if n + 1 >= D - 1:
                        allowed = cnt * len([s for s in range(max(n+2, D-1), min(n+D-1, NK))])
                        e(f"s_waitcnt vmcnt({allowed})")
                    e("s_barrier")
                e("s_waitcnt lgkmcnt(0)")
                buf = n % 2
                ms = []
                for c in range(nt):
                    for rt in range(2):
                        acc = ACC + 4*(rt*4 + c)
                        x = 32 + 32*buf + 4*rt; w = 40 + 32*buf + 4*c
                        A, B = (x, w) if z2 else (w, x)
                        ms.append(f"v_mfma_f32_16x16x32_bf16 v[{acc}:{acc+3}], v[{A}:{A+3}], v[{B}:{B+3}], v[{acc}:{acc+3}]")
                rs = reads(n + 1) if n + 1 < NK else []
                ri = 0
                for i, m in enumerate(ms):
                    e(m)
                    for _ in range(2 if i < 3 else 1):
                        if ri < len(rs): e(rs[ri]); ri += 1
                while ri < len(rs): e(rs[ri]); ri += 1
                st = n + D - 1
                if st < NK: issue(st, cnt)
            self.stamp(31)
            if z2: e("s_setprio 2")
            e(f"s_mov_b32 s20, {fl(c1)}"); e(f"v_mov_b32 v20, {fl(c0)}")
            accs = [ACC + 4*(rt*4 + c) + r for c in range(nt) for rt in range(2) for r in range(4)]
            for i0 in range(0, len(accs), 4):
                grp = accs[i0:i0+4]
                for k, z in enumerate(grp): e(f"v_mul_f32 v{24+k}, v{z}, v{z}")
                for k, z in enumerate(grp): e(f"v_fma_f32 v{24+k}, v{24+k}, s20, v20")
                for k, z in enumerate(grp): e(f"v_mul_f32 v{24+k}, v{24+k}, v{z}")
                for k, z in enumerate(grp): e(f"v_exp_f32 v{24+k}, v{24+k}")
                for k, z in enumerate(grp): e(f"v_add_f32 v{24+k}, 1.0, v{24+k}")
                for k, z in enumerate(grp): e(f"v_rcp_f32 v{24+k}, v{24+k}")
                for k, z in enumerate(grp): e(f"v_mul_f32 v{z}, v{z}, v{24+k}")
            self.stamp(32)
            e("v_lshrrev_b32 v3, 4, v1"); e("v_and_b32 v4, 15, v1")
            if z2:
                regs = []
                for rt in range(2):
                    for r in range(4):
                        sreg = 64 + 2*(rt*4 + r)
                        a0 = ACC + 4*(rt*4) + r
                        e(f"v_mov_b32 v{sreg}, v{a0}"); e(f"v_mul_f32 v{sreg+1}, v{a0}, v{a0}")
                        for c in range(1, nt):
                            a = ACC + 4*(rt*4 + c) + r
                            e(f"v_add_f32 v{sreg}, v{sreg}, v{a}"); e(f"v_fmac_f32 v{sreg+1}, v{a}, v{a}")
                        regs += [sreg, sreg+1]
                self.dpp_reduce16(regs)
                e("s_and_b32 s20, s3, 1"); e("s_lshl_b32 s20, s20, 8")
                e(f"s_add_u32 s20, s20, {PART + cg*512}")
                e("v_lshlrev_b32 v5, 5, v3"); e("v_add_u32 v5, s20, v5")
                e("v_cmp_eq_u32 vcc, 0, v4"); e("s_and_saveexec_b64 s[40:41], vcc")
                for rt in range(2):
                    e(f"ds_write_b128 v5, v[{64+8*rt}:{67+8*rt}] offset:{rt*128}")
                    e(f"ds_write_b128 v5, v[{68+8*rt}:{71+8*rt}] offset:{rt*128+16}")
                e("s_waitcnt lgkmcnt(0)")
                e(f"v_mov_b32 v5, {PART + 2048}"); e("v_mov_b32 v6, 1")
                e("s_mov_b64 exec, 1")
                e("ds_add_u32 v5, v6")
                e("s_mov_b64 exec, -1")
                self.stamp(33)
                if cg == 0:
                    nx = self.lab("win_nx")
                    e("s_cmp_lg_u32 s3, 0"); e(f"s_cbranch_scc1 {nx}")
                    sp = self.lab("win_sp")
                    e("s_mov_b32 s47, 0")
                    self.a.label(sp)
                    e("ds_read_b32 v6, v5"); e("s_add_u32 s47, s47, 1"); e("s_waitcnt lgkmcnt(0)")
                    e("v_readfirstlane_b32 s20, v6")
                    spd = self.lab("win_spd")
                    e(f"s_cmp_gt_u32 s47, {SPIN_CAP}"); e(f"s_cbranch_scc1 {spd}")
                    e("s_cmp_lt_u32 s20, 4"); e(f"s_cbranch_scc1 {sp}")
                    self.a.label(spd)
                    e("v_lshlrev_b32 v5, 3, v1"); e(f"v_add_u32 v5, {PART}, v5")
                    e("ds_read_b64 v[64:65], v5"); e("ds_read_b64 v[66:67], v5 offset:512")
                    e("s_waitcnt lgkmcnt(0)")
                    e("v_add_f32 v64, v64, v66"); e("v_add_f32 v65, v65, v67")
                    e(f"v_mov_b32 v66, s{S_NONCE}"); e(f"v_mov_b32 v67, s{S_NONCE}")
                    e("v_lshlrev_b32 v6, 4, v1")
                    e("s_lshl_b32 s20, s4, 13"); e("s_lshl_b32 s21, s5, 10"); e("s_add_u32 s21, s21, s20")
                    e(f"buffer_store_dwordx4 v[64:67], v6, s[36:39], s21 offen {ST}")
                    e("s_mov_b32 s47, 0")
                    lp = self.lab("stp"); dn = self.lab("std")
                    self.a.label(lp)
                    for jj in range(8):
                        e(f"s_add_u32 s21, s20, {jj*1024}")
                        e(f"buffer_load_dwordx4 v[{72+4*jj}:{75+4*jj}], v6, s[36:39], s21 offen {ST}")
                    e("s_add_u32 s47, s47, 1"); e(f"s_cmp_gt_u32 s47, {SPIN_CAP}"); e(f"s_cbranch_scc1 {dn}")
                    e("s_waitcnt vmcnt(0)")
                    e("s_mov_b64 s[42:43], -1")
                    for jj in range(8):
                        e(f"v_cmp_eq_u32 vcc, s{S_NONCE}, v{74+4*jj}"); e("s_and_b64 s[42:43], s[42:43], vcc")
                        e(f"v_cmp_eq_u32 vcc, s{S_NONCE}, v{75+4*jj}"); e("s_and_b64 s[42:43], s[42:43], vcc")
                    e("s_cmp_eq_u64 s[42:43], -1")
                    if not Gen.NOHOP: e(f"s_cbranch_scc0 {lp}")
                    self.a.label(dn)
                    self._where = "stat granules"; self.diag(47, 74)
                    e("s_waitcnt vmcnt(0)")
                    for jj in range(1, 8):
                        e(f"v_add_f32 v72, v72, v{72+4*jj}"); e(f"v_add_f32 v73, v73, v{73+4*jj}")
                    e(f"v_mul_f32 v72, {fl(1.0/896)}, v72"); e(f"v_mul_f32 v73, {fl(1.0/896)}, v73")
                    e("v_fma_f32 v73, -v72, v72, v73"); e("v_max_f32 v73, 0, v73"); e(f"v_add_f32 v73, {fl(1e-5)}, v73")
                    e("v_rsq_f32 v75, v73"); e("v_mul_f32 v74, v72, v75"); e("v_sub_f32 v74, 0, v74")
                    e(f"ds_write_b64 v5, v[74:75] offset:1024")
                    self.a.label(nx)
                e("s_setprio 0")
            else:
                e("s_and_b32 s22, s3, 1"); e(f"s_mul_i32 s22, s22, {2*7*512}"); e(f"s_add_u32 s22, s22, {Z1L + t0*512}")
                e("v_lshlrev_b32 v7, 3, v1"); e("v_add_u32 v7, s22, v7")
                for c in range(nt):
                    for rt in range(2):
                        acc = ACC + 4*(rt*4 + c); pk = 32 + 2*(rt + 2*c)
                        e(f"v_cvt_pk_bf16_f32 v{pk}, v{acc}, v{acc+1}"); e(f"v_cvt_pk_bf16_f32 v{pk+1}, v{acc+2}, v{acc+3}")
                        e(f"ds_write_b64 v7, v[{pk}:{pk+1}] offset:{rt*7*512 + c*512}")
            e("s_waitcnt lgkmcnt(0)"); e("s_barrier")
            self.stamp(34)
            if z2:
                e("s_and_b32 s20, s3, 1"); e("s_lshl_b32 s20, s20, 8"); e(f"s_add_u32 s20, s20, {PART + 1024}")
                e("v_lshlrev_b32 v5, 5, v3"); e("v_add_u32 v5, s20, v5")
                for rt in range(2):
                    e(f"ds_read_b128 v[{64+8*rt}:{67+8*rt}], v5 offset:{rt*128}")
                    e(f"ds_read_b128 v[{68+8*rt}:{71+8*rt}], v5 offset:{rt*128+16}")
                e("v_and_b32 v6, 1, v3"); e("v_lshlrev_b32 v5, 9, v6"); e("v_lshrrev_b32 v6, 1, v3"); e("v_lshl_add_u32 v5, v6, 8, v5")
                e("v_lshl_add_u32 v5, v4, 4, v5")
                e("s_and_b32 s20, s3, 1"); e("s_lshl_b32 s21, s4, 1"); e("s_add_u32 s20, s20, s21"); e("s_lshl_b32 s20, s20, 10")
                e("s_mul_i32 s21, s5, 0x70000"); e("s_add_u32 s20, s20, s21")
                e("s_waitcnt lgkmcnt(0)")
                for c in range(nt):
                    e(f"s_add_u32 s21, s20, {(t0+c)*65536}")
                    pk = 32 + 4*c
                    for rt in range(2):
                        acc = ACC + 4*(rt*4 + c)
                        for r in range(4):
                            e(f"v_fma_f32 v{acc+r}, v{acc+r}, v{64+8*rt+2*r+1}, v{64+8*rt+2*r}")
                        e(f"v_cvt_pk_bf16_f32 v{pk+2*rt}, v{acc}, v{acc+1}"); e(f"v_cvt_pk_bf16_f32 v{pk+2*rt+1}, v{acc+2}, v{acc+3}")
                    e(f"v_permlane16_swap_b32 v{pk}, v{pk+2}"); e(f"v_permlane16_swap_b32 v{pk+1}, v{pk+3}")
                    e(f"buffer_store_dwordx4 v[{pk}:{pk+3}], v5, s[28:31], s21 offen {ST}")
            if cg < 3: e(f"s_branch {join}")
        self.a.label(join)
        self.phase_end()
        self.signal(lambda: (e("s_lshl_b32 s46, s5, 7"), e("s_lshl_b32 s47, s4, 2"), e("s_add_u32 s46, s46, s47"), e(f"s_add_u32 s46, s46, {F4}")))
        self.stamp(16)

    def p5(self):
        e = self.e
        end = self.lab("sp_end")
        Z1L = 135168
        self.srd(8, P_WSP, 0, 2048*2048*2)
        self.srd(12, P_WS, WS_Z2, 56*64*1024)
        self.srd(24, P_WS, WS_Y, 64*56*1024)
        self.srd(28, P_BSP, 0, 4096)
        SL = 22528; D = self.SPD; NST = 32
        e(f"s_mov_b32 s44, {(-(D-1)*SL) & 0xffffffff}"); e(f"s_mov_b32 s45, {SL}")
        e("v_lshlrev_b32 v2, 4, v1"); e("v_lshrrev_b32 v3, 4, v1"); e("v_and_b32 v4, 15, v1")
        def cZ():
            e("s_lshl_b32 s46, s5, 7"); e(f"s_add_u32 s46, s46, {F4}"); e("v_lshlrev_b32 v251, 2, v1")
        lp = self.lab("sp_prod")
        e("s_cmp_ge_u32 s3, 4"); e(f"s_cbranch_scc1 {lp}")
        e("s_and_b32 s20, s3, 1"); e("s_lshl_b32 s21, s4, 2"); e("s_lshl_b32 s22, s20, 1"); e("s_add_u32 s21, s21, s22")
        e("v_lshlrev_b32 v5, 1, v4"); e("s_lshl_b32 s22, s21, 5")
        e("buffer_load_ushort v20, v5, s[28:31], s22 offen"); e("buffer_load_ushort v21, v5, s[28:31], s22 offen offset:32")
        e("s_bfe_u32 s23, s3, 0x10001"); e("s_lshl_b32 s23, s23, 2")
        e("v_lshrrev_b32 v7, 1, v3"); e("v_lshlrev_b32 v7, 9, v7"); e("v_lshl_add_u32 v7, v4, 4, v7")
        e("v_and_b32 v8, 1, v3"); e("v_lshl_add_u32 v7, v8, 3, v7")
        e("s_lshl_b32 s21, s4, 1"); e("s_add_u32 s21, s21, s20"); e("s_mul_i32 s21, s21, 56")
        e("s_mul_i32 s6, s5, 7"); e("s_add_u32 s21, s21, s6"); e("s_add_u32 s21, s21, s23"); e("s_lshl_b32 s35, s21, 10")
        e(f"s_mul_i32 s6, s20, {2*7*512}"); e("s_lshl_b32 s21, s23, 9"); e("s_add_u32 s6, s6, s21"); e(f"s_add_u32 s6, s6, {Z1L}")
        e("v_lshlrev_b32 v9, 3, v1"); e("v_add_u32 v9, s6, v9")
        e("s_and_b32 s20, s3, 1"); e("s_lshl_b32 s20, s20, 12"); e("v_lshlrev_b32 v5, 7, v4"); e("v_add_u32 v5, s20, v5")
        e("v_lshrrev_b32 v8, 1, v4")
        for ks in range(2):
            e(f"v_add_u32 v6, {4*ks}, v3"); e(f"v_xor_b32 v6, v6, v8"); e(f"v_lshl_add_u32 v{200+ks}, v6, 4, v5")
        e("s_bfe_u32 s20, s3, 0x10001"); e("s_lshl_b32 s20, s20, 13"); e("s_add_u32 s20, s20, 8192"); e("v_add_u32 v202, s20, v2")
        ZR = 176
        for tt in range(2):
            for f in range(4):
                b = ZR + 2*(tt*4 + f)
                e(f"ds_read_b64 v[{b}:{b+1}], v9 offset:{tt*7*512 + f*512}")
        e("s_waitcnt lgkmcnt(0)")
        ACC = 128
        for r in range(32): e(f"v_mov_b32 v{ACC+r}, 0")
        e("s_barrier")
        LOOK = self.ZLOOK
        if self.ZTOUCH:
            e("s_and_b32 s20, s4, 7"); e("s_mul_i32 s20, s20, 14"); e("v_add_u32 v196, s20, v1")
            e("v_lshrrev_b32 v197, 4, v196"); e("v_lshlrev_b32 v197, 16, v197")
            e("v_bfe_u32 v198, v196, 3, 1"); e("v_lshl_add_u32 v197, v198, 10, v197")
            e("v_and_b32 v198, 7, v196"); e("v_lshl_add_u32 v196, v198, 7, v197")
            e("s_mul_i32 s43, s5, 0x70000"); e(f"s_add_u32 s43, s43, {(D-1)*2048}")
            e("s_cmp_eq_u32 s3, 0"); e("s_cselect_b32 s42, 0x3fff, 0")
            tk = self.lab("sp_tk")
            e("s_cmp_lg_u32 s3, 0"); e(f"s_cbranch_scc1 {tk}")
            e("s_mov_b64 exec, 0x3fff")
            for i in range(LOOK - (D-1)):
                e(f"s_add_u32 s20, s43, {i*2048}")
                e("buffer_load_dword v199, v196, s[12:15], s20 offen")
            e("s_mov_b64 exec, -1")
            self.a.label(tk)
            e(f"s_add_u32 s43, s43, {(LOOK-(D-1))*2048}")
        l3 = self.lab("sp_3"); lepi = self.lab("sp_epi")
        e("s_barrier")
        self.stamp(18)
        e("s_bitcmp1_b32 s3, 1"); e(f"s_cbranch_scc1 {l3}")
        for jj in range(2):
            nf = 4 if jj == 0 else 3
            if jj == 1: self.a.label(l3)
            def reads(ks, buf, nxt):
                b = 32 + 24*buf; ab = 203 if nxt else 200
                for tt in range(2): yield f"ds_read_b128 v[{b+4*tt}:{b+4*tt+3}], v{ab+ks} offset:{tt*2048}"
                for f in range(nf): yield f"ds_read_b128 v[{b+8+4*f}:{b+8+4*f+3}], v{ab+2} offset:{f*2048 + ks*1024}"
            def mf(buf):
                b = 32 + 24*buf
                for f in range(nf):
                    for tt in range(2):
                        acc = ACC + 4*(tt*4 + f)
                        yield f"v_mfma_f32_16x16x32_bf16 v[{acc}:{acc+3}], v[{b+8+4*f}:{b+8+4*f+3}], v[{b+4*tt}:{b+4*tt+3}], v[{acc}:{acc+3}]"
            def interleave(ms, rs):
                ms = list(ms); rs = list(rs)
                if self.X_NOMFMA: ms = []
                if self.X_NOREAD: rs = []
                ri = 0
                for i, m in enumerate(ms):
                    e(m)
                    for _ in range(self.RPG):
                        if ri < len(rs): e(rs[ri]); ri += 1
                for r in rs[ri:]: e(r)
            for r in reads(0, 0, False): e(r)
            e("s_mov_b32 s36, 0"); e(f"s_mov_b32 s37, {SL}"); e("s_mov_b32 s38, 1")
            loop = self.lab("sp_loop")
            self.a.label(loop)
            e("s_barrier")
            for k in range(3): e(f"v_add_u32 v{203+k}, s37, v{200+k}")
            if self.ZTOUCH and jj == 0:
                tk2 = self.lab("sp_tk2")
                e("s_cmp_lg_u32 s3, 0"); e(f"s_cbranch_scc1 {tk2}")
                e(f"s_cmp_ge_u32 s36, {NST} - {LOOK}".replace(f"{NST} - {LOOK}", str(NST - LOOK))); e(f"s_cbranch_scc1 {tk2}")
                e("s_mov_b64 exec, 0x3fff")
                e("buffer_load_dword v199, v196, s[12:15], s43 offen")
                e("s_mov_b64 exec, -1")
                e("s_add_u32 s43, s43, 2048")
                self.a.label(tk2)
            e(f"s_waitcnt lgkmcnt(0)")
            interleave(mf(0), reads(1, 1, False))
            e(f"s_waitcnt lgkmcnt(0)")
            interleave(mf(1), reads(0, 0, True))
            for k in range(3): e(f"v_mov_b32 v{200+k}, v{203+k}")
            e("s_add_u32 s38, s38, 1"); e(f"s_cmp_eq_u32 s38, {D}")
            e(f"s_cselect_b32 s37, s44, s45"); e(f"s_cselect_b32 s38, 0, s38")
            e("s_add_u32 s36, s36, 1"); e(f"s_cmp_lt_u32 s36, {NST}"); e(f"s_cbranch_scc1 {loop}")
            if jj == 0: e(f"s_branch {lepi}")
        self.a.label(lepi)
        self.stamp(19)
        e("s_waitcnt vmcnt(0) lgkmcnt(0)")
        e("v_lshlrev_b32 v20, 16, v20"); e("v_lshlrev_b32 v21, 16, v21")
        for f in range(4):
            if f == 3:
                e("s_bitcmp1_b32 s3, 1"); e(f"s_cbranch_scc1 {end}")
            pk = 32 + 4*f
            for tt in range(2):
                acc = ACC + 4*(tt*4 + f); b = ZR + 2*(tt*4 + f)
                for q in range(2):
                    e(f"v_lshlrev_b32 v22, 16, v{b+q}"); e(f"v_and_b32 v23, 0xffff0000, v{b+q}")
                    e(f"v_add_f32 v24, v{acc+2*q}, v{20+tt}"); e(f"v_add_f32 v25, v{acc+2*q+1}, v{20+tt}")
                    e(f"v_mul_f32 v22, v22, v24"); e(f"v_mul_f32 v23, v23, v25")
                    e(f"v_cvt_pk_bf16_f32 v{pk+2*tt+q}, v22, v23")
            e(f"v_permlane16_swap_b32 v{pk}, v{pk+2}"); e(f"v_permlane16_swap_b32 v{pk+1}, v{pk+3}")
            e(f"buffer_store_dwordx4 v[{pk}:{pk+3}], v2, s[24:27], s35 offen offset:{f*1024} {ST}")
        e(f"s_branch {end}")
        self.a.label(lp)
        e("s_and_b32 s7, s3, 3")
        e("v_lshrrev_b32 v5, 3, v1"); e("v_and_b32 v6, 7, v1")
        for m in range(2):
            e(f"s_lshl_b32 s20, s7, 3"); e(f"s_add_u32 s20, s20, {32*m}")
            e(f"v_add_u32 v8, s20, v5"); e(f"v_bfe_u32 v9, v8, 1, 3"); e(f"v_xor_b32 v9, v9, v6")
            e(f"v_lshlrev_b32 v8, 12, v8"); e(f"v_lshl_add_u32 v{192+m}, v9, 4, v8")
        e("s_lshl_b32 s6, s4, 18")
        e("s_mul_i32 s32, s5, 0x70000"); e("s_lshr_b32 s20, s7, 1"); e("s_lshl_b32 s20, s20, 16"); e("s_add_u32 s32, s32, s20")
        e("s_and_b32 s20, s7, 1"); e("s_lshl_b32 s20, s20, 10"); e("s_add_u32 s32, s32, s20")
        e("s_lshl_b32 s33, s7, 10")
        e("s_mov_b32 s34, s33")
        def pre5():
            for st in range(D-1):
                for m in range(2): self.dma(192+m, 8, "s6", f"s_add_u32 m0, s34, {st*SL + m*4096}")
                e("s_add_u32 s6, s6, 128")
        self.wait_flags([(cZ, 0xffffffff)], pre=pre5)
        self.stamp(17)
        l5 = self.lab("sp_p5")
        e("s_cmp_ge_u32 s7, 2"); e(f"s_cbranch_scc1 {l5}")
        for var in range(2):
            nz = 4 if var == 0 else 3
            cnt = 2 + nz
            if var == 1: self.a.label(l5)
            def issue_z():
                for m in range(nz):
                    e(f"s_add_u32 s23, s32, {2*m*65536}")
                    self.dma(2, 12, "s23", f"s_add_u32 m0, s34, {8192 + m*4096}")
                e("s_add_u32 s32, s32, 2048")
            def issue():
                if self.X_NODMA: return
                for m in range(2): self.dma(192+m, 8, "s6", f"s_add_u32 m0, s34, {m*4096}")
                e("s_add_u32 s6, s6, 128")
                issue_z()
            for st in range(D-1):
                issue_z(); e(f"s_add_u32 s34, s34, {SL}")
            e(f"s_waitcnt vmcnt({nz*(D-2)})"); e("s_barrier")
            e("s_mov_b32 s36, 0"); e(f"s_mov_b32 s38, {D-1}")
            loop = self.lab("sp_ploop"); lni = self.lab("sp_ni"); lw = self.lab("sp_w"); le = self.lab("sp_e"); lb = self.lab("sp_b")
            self.a.label(loop)
            e(f"s_cmp_ge_u32 s36, {NST-D+2}"); e(f"s_cbranch_scc1 {lw}")
            e(f"s_cmp_lt_u32 s36, {D-3}"); e(f"s_cbranch_scc1 {le}")
            e(f"s_waitcnt vmcnt({cnt*(D-3)})"); e(f"s_branch {lb}")
            self.a.label(le)
            e(f"s_waitcnt vmcnt({nz*(D-3)})")
            self.a.label(lb)
            e("s_barrier")
            e(f"s_cmp_ge_u32 s36, {NST-D+1}"); e(f"s_cbranch_scc1 {lni}")
            issue()
            e("s_add_u32 s38, s38, 1"); e(f"s_cmp_eq_u32 s38, {D}"); e(f"s_cselect_b32 s39, s44, s45"); e(f"s_cselect_b32 s38, 0, s38")
            e("s_add_u32 s34, s34, s39"); e(f"s_branch {lni}")
            self.a.label(lw)
            e("s_waitcnt vmcnt(0)"); e("s_barrier")
            self.a.label(lni)
            e("s_add_u32 s36, s36, 1"); e(f"s_cmp_lt_u32 s36, {NST}"); e(f"s_cbranch_scc1 {loop}")
            if var == 0: e(f"s_branch {end}")
        self.a.label(end)
        self.phase_end()
        self.signal(lambda: (e("s_lshl_b32 s46, s4, 7"), e("s_lshl_b32 s47, s5, 2"), e("s_add_u32 s46, s46, s47"), e(f"s_add_u32 s46, s46, {F5}")))
        self.stamp(20)

    def p6(self):
        e = self.e
        self.srd(8, P_WS, WS_Y, 64*56*1024); self.srd(12, P_WOUT, 0, 896*512*2)
        self.srd(16, P_WS, WS_X1, 2*MB); self.srd(24, P_OUT, 0, 2*MB); self.srd(28, P_WS, WS_MOD, 49152)
        XR = 114688; XS = 16384; NCH = 7; NSLOT = 3
        self.proj_wvoff()
        self.proj_addr(True, XR, 0)
        e("v_add_u32 v10, 0x10000, v9")
        self.proj_epi_addr()
        def pre6():
            for m in range(16):
                e(f"s_add_u32 s21, s3, {7*m}"); e("s_lshl_b32 s20, s21, 13"); e("s_lshl_b32 s21, s21, 10")
                self.dma(3, 12, "s20", "s_mov_b32 m0, s21")
        def cY():
            e("s_lshl_b32 s46, s4, 7"); e(f"s_add_u32 s46, s46, {F5}"); e("v_lshlrev_b32 v251, 2, v1")
        self.wait_flags([(cY, 0xff)], pre=pre6, w7_after=False)
        self.stamp(21)
        e(f"s_mul_i32 s6, s4, {2*56*1024}"); e("s_lshl_b32 s21, s3, 10"); e("s_add_u32 s6, s6, s21")
        def issue_x(ch):
            for tt in range(2):
                e(f"s_add_u32 s20, s6, {tt*56*1024 + ch*8*1024}")
                self.dma(2, 8, "s20", f"s_add_u32 m0, s21, {XR + (ch % NSLOT)*XS + tt*8192}")
        issue_x(0); e("s_barrier"); issue_x(1); e("s_barrier"); issue_x(2)
        e("buffer_load_dwordx4 v[32:35], v16, s[16:19], s32 offen")
        self.proj_gate_loads(5)
        ACC = 64
        for r in range(16): e(f"v_mov_b32 v{ACC+r}, 0")
        for ch in range(NCH):
            w = {0: 4 + 9, 1: 2 + 9, 2: 9 + 2}.get(ch, 2*(min(NCH - 1, ch + 1) - ch))
            e(f"s_waitcnt vmcnt({w})")
            e("s_barrier")
            if ch == 0: self.stamp(38)
            if ch >= 1 and ch + 2 < NCH: issue_x(ch + 2)
            wreg, woff = (9, ch*16384) if ch < 3 else (10, ch*16384 - 65536) if ch >= 4 else (9, ch*16384)
            self.proj_chunk(ACC, (ch % NSLOT)*XS, wreg, woff, True)
        self.stamp(39)
        self.proj_epilogue(ACC, 24, "", False)
        self.stamp(22)


HEADER = open('cdna_kernels/' + NAME + '.s.ref').read().split('; Override launch geometry')[0]

def build(stamps=False, hstamp=-1):
    Gen.STAMPS = stamps
    g = Gen()
    endl = "L_exit"
    g.prologue(endl)
    g.p01(); g.p2(); g.p3(); g.p4(); g.p5(); g.p6()
    if stamps and Gen.GSTAMP:
        e = g.e
        sk = g.lab("stst")
        e(f"s_cmp_lg_u32 s3, {Gen.GSTAMP_W}"); e(f"s_cbranch_scc1 {sk}")
        e("s_waitcnt vmcnt(0)")
        g.stamp(23)
        g.srd(8, P_DBG, 0, 0x20000)
        e("s_lshl_b32 s20, s2, 8"); e("s_add_u32 s20, s20, 4096")
        e("v_lshlrev_b32 v4, 2, v1")
        e("buffer_store_dword v255, v4, s[8:11], s20 offen")
        g.a.label(sk)
    elif stamps:
        e = g.e
        sk = g.lab("stst")
        e(f"s_sub_u32 s46, s2, {Gen.STAMP_WG0}"); e("s_cmp_ge_u32 s46, 4"); e(f"s_cbranch_scc1 {sk}")
        e("s_and_b32 s46, s3, 3"); e(f"s_cmp_lg_u32 s46, {Gen.STAMP_W}"); e(f"s_cbranch_scc1 {sk}")
        e("s_waitcnt vmcnt(0)")
        g.stamp(23)
        if hstamp >= 0: e(f"s_branch {sk}")
        g.srd(8, P_DBG, 0, 4096)
        e(f"s_sub_u32 s20, s2, {Gen.STAMP_WG0}"); e("s_lshl_b32 s20, s20, 1"); e("s_lshr_b32 s21, s3, 2"); e("s_add_u32 s20, s20, s21"); e("s_lshl_b32 s20, s20, 8"); e("s_add_u32 s20, s20, 256")
        e("v_lshlrev_b32 v4, 2, v1")
        e("buffer_store_dword v255, v4, s[8:11], s20 offen")
        g.a.label(sk)
    if hstamp >= 0:
        e = g.e
        sk = g.lab("hst")
        e(f"s_cmp_lg_u32 s2, {hstamp}"); e(f"s_cbranch_scc1 {sk}")
        e("s_cmp_lg_u32 s3, 0"); e(f"s_cbranch_scc1 {sk}")
        e("v_lshrrev_b32 v4, 2, v255")
        e("v_lshlrev_b32 v5, 16, v4")
        e("v_mov_b32_dpp v6, v5 row_shl:1 row_mask:0xf bank_mask:0xf")
        e("v_or_b32 v4, v4, v6")
        g.srd(8, P_DBG, 0, 256)
        e("v_lshrrev_b32 v7, 1, v1"); e("v_lshlrev_b32 v7, 2, v7"); e("v_add_u32 v7, 4, v7")
        e("v_and_b32 v8, 1, v1"); e("v_cmp_eq_u32 vcc, 0, v8"); e("v_cmp_gt_u32 s[40:41], 24, v1"); e("s_and_b64 vcc, vcc, s[40:41]")
        e("s_and_saveexec_b64 s[40:41], vcc")
        e("buffer_store_dword v4, v7, s[8:11], 0 offen")
        g.a.label(sk)
    g.a.label(endl)
    g.e("s_endpgm")
    g.a.fix_hazards()
    out = [HEADER, "; @launch grid=(256,1,1) block=(512,1,1) lds=163840\n",
           '.amdgcn_target "amdgcn-amd-amdhsa--gfx950"\n.text\n',
           f".globl {KNAME}\n.p2align 8\n.type {KNAME},@function\n{KNAME}:\n", g.a.text(),
           '.section .rodata,"a"\n', f""".p2align 6
.amdhsa_kernel {KNAME}
  .amdhsa_next_free_vgpr 256
  .amdhsa_next_free_sgpr 102
  .amdhsa_accum_offset 256
  .amdhsa_group_segment_fixed_size 0
  .amdhsa_kernarg_size 104
  .amdhsa_user_sgpr_count 2
  .amdhsa_user_sgpr_kernarg_segment_ptr 1
  .amdhsa_system_sgpr_workgroup_id_x 1
.end_amdhsa_kernel
"""]
    return ''.join(out)

if __name__ == "__main__":
    for k in ("PREFETCH", "STAMP_WG0", "STAMP_W", "CODEPF", "NOHOP", "BALANCE", "ZTOUCH", "GSTAMP", "GSTAMP_W", "ZLOOK", "DIAG", "MODCRIT", "XLATE", "SPD", "REPACK", "M1", "M2", "RPG", "X_NOMFMA", "X_NOREAD", "X_NODMA"):
        if k in os.environ: setattr(Gen, k, int(os.environ[k]))
    txt = build(stamps=(len(sys.argv) > 2), hstamp=int(os.environ.get("HSTAMP", "-1")))
    path = sys.argv[1] if len(sys.argv) > 1 else 'cdna_kernels/' + NAME + '.s'
    open(path, 'w').write(txt)
    print("wrote", path, len(txt), "bytes")
```

```python
import sys, math, os
from asmlib import Asm, vr, sr

NAME = "adaLN_cond__softmax_full_mha__mixer_gmlp__prompt"
KNAME = NAME + "_kernel"
MB = 1 << 20
WS_MOD = 0
WS_ST  = 0x10000
WS_FLAG = 0x60000
WS_STX = 0x70000
WS_MODG = 0xB0000
WS_QK  = 1 * MB
WS_V   = 5 * MB
WS_O   = 7 * MB
WS_X1  = 9 * MB
WS_Z2  = 19 * MB
WS_Y   = 23 * MB
WS_WINP = 27 * MB
F0, F1, F2, F3, F4, F5, FR = 0x0, 0x2000, 0x4000, 0x5000, 0x6000, 0x7000, 0x8000
P_X, P_WQKV, P_WO, P_BX, P_WIN, P_WSP, P_BSP, P_WOUT, P_C, P_WMOD, P_OUT, P_DBG, P_WS = [64 + 2*i for i in range(13)]
LOG2E = 1.4426950408889634
S_QB, S_HEAD, S_NONCE, SRD_F = 57, 58, 59, 60
ST = "sc0 sc1"
SPIN_CAP = 1 << 17

def f2u(x):
    import struct
    return struct.unpack('<I', struct.pack('<f', x))[0]
def fl(x): return f"0x{f2u(x):08x}"

class Gen:
    STAMPS = False
    PREFETCH = True
    STAMP_WG0 = 0
    STAMP_W = 0
    CODEPF = False
    NOHOP = False
    BALANCE = True
    ZTOUCH = False
    ZLOOK = 9
    DIAG = False
    diag_site = 0
    MODCRIT = 64
    XLATE = False
    SPD = 7
    REPACK = False
    M1 = 3
    M2 = 9
    RPG = 2
    X_NOMFMA = False
    X_NOREAD = False
    X_NODMA = False
    GSTAMP = False
    GSTAMP_W = 0
    def __init__(self):
        self.a = Asm()
        self.nstamp = 0
    def e(self, s): self.a.e(s)
    def lab(self, b): return self.a.newlabel(b)

    def stamp(self, i):
        if not Gen.STAMPS: return
        e = self.e
        sk = self.lab("stamp")
        if Gen.GSTAMP:
            e(f"s_cmp_lg_u32 s3, {Gen.GSTAMP_W}"); e(f"s_cbranch_scc1 {sk}")
            e("s_memtime s[46:47]" if Gen.GSTAMP == 2 else "s_memrealtime s[46:47]"); e("s_waitcnt lgkmcnt(0)")
            e(f"v_writelane_b32 v255, s46, {i}")
            self.a.label(sk)
            return
        e(f"s_sub_u32 s46, s2, {Gen.STAMP_WG0}"); e("s_cmp_ge_u32 s46, 4"); e(f"s_cbranch_scc1 {sk}")
        e("s_and_b32 s46, s3, 3"); e(f"s_cmp_lg_u32 s46, {Gen.STAMP_W}"); e(f"s_cbranch_scc1 {sk}")
        e("s_memtime s[46:47]"); e("s_waitcnt lgkmcnt(0)")
        e("s_sub_u32 s46, s46, s90")
        e(f"v_writelane_b32 v255, s46, {i}")
        self.a.label(sk)

    def srd(self, d, ptr, off, size):
        e = self.e
        if off:
            e(f"s_add_u32 s{d}, s{ptr}, 0x{off:x}"); e(f"s_addc_u32 s{d+1}, s{ptr+1}, 0")
        else:
            e(f"s_mov_b32 s{d}, s{ptr}"); e(f"s_mov_b32 s{d+1}, s{ptr+1}")
        e(f"s_mov_b32 s{d+2}, 0x{size:x}"); e(f"s_mov_b32 s{d+3}, 0x20000")

    def bf16_round(self, d, s):
        self.e(f"v_cvt_pk_bf16_f32 v{d}, v{s}, v{s}")
        self.e(f"v_lshlrev_b32 v{d}, 16, v{d}")

    def dpp_reduce16(self, regs):
        for m in ("quad_perm:[1,0,3,2]", "quad_perm:[2,3,0,1]", "row_half_mirror", "row_mirror"):
            for r in regs:
                self.e(f"v_add_f32_dpp v{r}, v{r}, v{r} {m} row_mask:0xf bank_mask:0xf")

    def dma(self, voff, srd, soff, m0expr, width="dwordx4"):
        self.e(m0expr)
        self.e("s_nop 0")
        self.e(f"buffer_load_{width} v{voff}, {sr(srd,4)}, {soff} offen lds")

    def diag(self, cnt_sgpr, vval):
        if not Gen.DIAG: return
        e = self.e
        Gen.diag_site += 1
        sk = self.lab("dg")
        e(f"s_cmp_le_u32 s{cnt_sgpr}, {SPIN_CAP}"); e(f"s_cbranch_scc1 {sk}")
        e("s_waitcnt vmcnt(0)")
        self.srd(48, P_DBG, 0, 1 << 22)
        e(f"s_mul_i32 s46, s2, 1024"); e(f"s_add_u32 s46, s46, {65536 + Gen.diag_site*262144}")
        e("v_lshlrev_b32 v252, 2, v1")
        e(f"buffer_store_dword v{vval}, v252, s[48:51], s46 offen offset:256")
        e(f"v_mov_b32 v253, s{S_NONCE}")
        e(f"buffer_store_dword v253, v252, s[48:51], s46 offen")
        e("s_waitcnt vmcnt(0)")
        self.a.label(sk)
        print("diag site", Gen.diag_site, self._where)

    _where = ""
    def phase_end(self):
        self.e("s_waitcnt lgkmcnt(0)" if Gen.NOHOP else "s_waitcnt vmcnt(0) lgkmcnt(0)")
        self.e("s_barrier")

    def signal(self, soff_code, nrep=1, rep_stride=0):
        e = self.e
        sk = self.lab("sig")
        e("s_cmp_lg_u32 s3, 7"); e(f"s_cbranch_scc1 {sk}")
        soff_code()
        e(f"v_mov_b32 v250, s{S_NONCE}")
        e(f"v_mul_u32_u24 v251, {max(rep_stride,1)}, v1")
        e(f"s_mov_b64 exec, {(1 << nrep) - 1}")
        e(f"buffer_store_dword v250, v251, s[{SRD_F}:{SRD_F+3}], s46 offen {ST}")
        e("s_mov_b64 exec, -1")
        self.a.label(sk)

    def wait_flags(self, polls, keep=False, pre=None, w7_after=True):
        e = self.e
        sk = self.lab("wf"); p7 = self.lab("wf7")
        e("s_cmp_eq_u32 s3, 7"); e(f"s_cbranch_scc1 {p7}")
        if pre: pre()
        e(f"s_branch {sk}")
        self.a.label(p7)
        for (code, mask) in ([] if (Gen.NOHOP and not keep) else polls):
            code()
            e(f"s_mov_b32 s42, 0x{mask & 0xffffffff:x}"); e(f"s_mov_b32 s43, 0x{mask >> 32:x}")
            e("s_mov_b32 s47, 0")
            lp = self.lab("poll"); dn = self.lab("polled")
            self.a.label(lp)
            e(f"buffer_load_dword v250, v251, s[{SRD_F}:{SRD_F+3}], s46 offen {ST}")
            e("s_add_u32 s47, s47, 1")
            e(f"s_cmp_gt_u32 s47, {SPIN_CAP}")
            e(f"s_cbranch_scc1 {dn}")
            e("s_waitcnt vmcnt(0)")
            e(f"v_cmp_eq_u32 vcc, s{S_NONCE}, v250")
            e("s_and_b64 vcc, vcc, s[42:43]")
            e("s_cmp_eq_u64 vcc, s[42:43]")
            e(f"s_cbranch_scc0 {lp}")
            self.a.label(dn)
            self._where = "wait_flags " + str(getattr(code, "__name__", code))
            self.diag(47, 250)
        if pre and w7_after: pre()
        self.a.label(sk)
        e("s_barrier")

    def prologue(self, endlab):
        e = self.e
        e("s_cmp_ge_u32 s2, 256"); e(f"s_cbranch_scc1 {endlab}")
        e("s_load_dwordx16 s[64:79], s[0:1], 0")
        e("s_load_dwordx8 s[80:87], s[0:1], 64")
        e("s_load_dwordx2 s[88:89], s[0:1], 96")
        e("v_and_b32 v1, 63, v0")
        e("v_lshrrev_b32 v2, 6, v0")
        e("v_readfirstlane_b32 s3, v2")
        if Gen.STAMPS:
            e("s_memtime s[90:91]"); e("v_mov_b32 v255, 0")
        e("s_and_b32 s20, s2, 7"); e("s_lshr_b32 s21, s2, 3")
        e("s_and_b32 s4, s20, 3"); e("s_lshl_b32 s4, s4, 3"); e("s_and_b32 s22, s21, 7"); e("s_add_u32 s4, s4, s22")
        e("s_lshr_b32 s5, s20, 2"); e("s_lshl_b32 s5, s5, 2"); e("s_lshr_b32 s22, s21, 3"); e("s_add_u32 s5, s5, s22")
        e(f"s_lshl_b32 s{S_HEAD}, s20, 2"); e("s_and_b32 s22, s21, 3"); e(f"s_add_u32 s{S_HEAD}, s{S_HEAD}, s22")
        e(f"s_lshr_b32 s{S_QB}, s21, 2")
        e("s_waitcnt lgkmcnt(0)")
        self.stamp(24)
        self.srd(SRD_F, P_WS, WS_FLAG, 0x10000)
        sk = self.lab("nn")
        e("s_cmp_lg_u32 s3, 7"); e(f"s_cbranch_scc1 {sk}")
        self.srd(8, P_DBG, 0, 256)
        e("v_mov_b32 v251, 0")
        g = self.lab("ng")
        e("s_cmp_lg_u32 s2, 0"); e(f"s_cbranch_scc1 {g}")
        e("s_memrealtime s[46:47]"); e("s_waitcnt lgkmcnt(0)")
        e("s_or_b32 s46, s46, 1")
        e("v_mov_b32 v250, s46")
        e("s_mov_b64 exec, 1")
        e(f"buffer_store_dword v250, v251, s[8:11], 0 offen {ST}")
        e("s_mov_b64 exec, -1")
        self.a.label(g)
        self.a.label(sk)

    def get_nonce(self):
        e = self.e
        sk = self.lab("gn")
        e("s_cmp_lg_u32 s3, 7"); e(f"s_cbranch_scc1 {sk}")
        self.srd(48, P_DBG, 0, 256)
        e("v_mov_b32 v251, 0"); e("s_mov_b32 s47, 0")
        lp = self.lab("gnp"); dn = self.lab("gnd")
        self.a.label(lp)
        e(f"buffer_load_dword v250, v251, s[48:51], 0 offen {ST}")
        e("s_add_u32 s47, s47, 1"); e(f"s_cmp_gt_u32 s47, {SPIN_CAP}"); e(f"s_cbranch_scc1 {dn}")
        e("s_waitcnt vmcnt(0)")
        e(f"v_readfirstlane_b32 s{S_NONCE}, v250")
        e(f"s_cmp_eq_u32 s{S_NONCE}, 0"); e(f"s_cbranch_scc1 {lp}")
        self.a.label(dn)
        self._where = "nonce"; self.diag(47, 250)
        if Gen.DIAG:
            self.srd(48, P_DBG, 0, 1 << 22); e("s_lshl_b32 s46, s2, 2"); e("s_add_u32 s46, s46, 8192"); e("s_mov_b64 exec, 1")
            e("buffer_store_dword v250, v251, s[48:51], s46 offen"); e("s_mov_b64 exec, -1")
        e("ds_write_b32 v251, v250")
        e("s_waitcnt lgkmcnt(0)")
        self.a.label(sk)

    def ln_loads(self, srd_x, s_rowoff):
        e = self.e
        e("v_lshrrev_b32 v3, 4, v1"); e("v_and_b32 v4, 15, v1")
        e("s_lshl_b32 s20, s3, 3")
        e("v_add_u32 v5, s20, v3"); e("v_lshlrev_b32 v5, 10, v5"); e("v_lshl_add_u32 v5, v4, 4, v5")
        e(f"s_add_u32 s21, s{s_rowoff}, 4096")
        for a in range(2):
            so = s_rowoff if a == 0 else 21
            for j in range(4):
                b = 32 + 16*a + 4*j
                e(f"buffer_load_dwordx4 v[{b}:{b+3}], v5, {sr(srd_x,4)}, s{so} offen offset:{256*j}")

    def mod_issue(self, srd_mod, first_chunk):
        e = self.e
        e("v_lshlrev_b32 v248, 3, v0")
        for kq in range(4):
            e(f"s_mov_b32 s22, {kq*12288 + first_chunk*2048}")
            e(f"buffer_load_dwordx2 v[{240+2*kq}:{241+2*kq}], v248, {sr(srd_mod,4)}, s22 offen")

    def mod_finish(self, lds_off):
        e = self.e
        e("v_pk_add_f32 v[240:241], v[240:241], v[242:243]"); e("v_pk_add_f32 v[244:245], v[244:245], v[246:247]")
        e("v_pk_add_f32 v[240:241], v[240:241], v[244:245]")
        e("v_cvt_pk_bf16_f32 v242, v240, v241")
        e("v_lshlrev_b32 v240, 16, v242"); e("v_and_b32 v241, 0xffff0000, v242")
        sk = self.lab("mf")
        e("s_cmp_lt_u32 s3, 4"); e(f"s_cbranch_scc1 {sk}")
        e("v_add_f32 v240, 1.0, v240"); e("v_add_f32 v241, 1.0, v241")
        e("v_cvt_pk_bf16_f32 v242, v240, v241")
        e("v_lshlrev_b32 v240, 16, v242"); e("v_and_b32 v241, 0xffff0000, v242")
        self.a.label(sk)
        e("v_and_b32 v242, 255, v0"); e("v_lshlrev_b32 v242, 1, v242")
        e("v_lshrrev_b32 v243, 7, v242"); e("v_lshlrev_b32 v248, 9, v243")
        e("v_bfe_u32 v243, v242, 2, 1"); e("v_lshl_add_u32 v248, v243, 8, v248")
        e("v_bfe_u32 v243, v242, 3, 4"); e("v_lshl_add_u32 v248, v243, 4, v248")
        e("v_and_b32 v243, 3, v242"); e("v_lshl_add_u32 v248, v243, 2, v248")
        e("v_lshrrev_b32 v243, 8, v0"); e("v_lshl_add_u32 v248, v243, 11, v248")
        e(f"v_add_u32 v248, {lds_off}, v248")
        e("ds_write_b64 v248, v[240:241]")

    def ln_stats(self, fillers):
        e = self.e
        X = 128
        it = iter(fillers)
        def fill():
            f = next(it, None)
            if f: f()
        for a in range(2):
            for q in range(16):
                s = 32 + 16*a + q
                e(f"v_lshlrev_b32 v{X+32*a+2*q}, 16, v{s}")
                e(f"v_and_b32 v{X+32*a+2*q+1}, 0xffff0000, v{s}")
            fill()
        A = lambda a, k: 8 + 8*a + 2*k
        for a in range(2):
            for k in range(4):
                e(f"v_pk_add_f32 v[{A(a,k)}:{A(a,k)+1}], v[{X+32*a+4*k}:{X+32*a+4*k+1}], v[{X+32*a+4*k+2}:{X+32*a+4*k+3}]")
        for q in range(8, 16):
            for a in range(2):
                k = q % 4
                e(f"v_pk_add_f32 v[{A(a,k)}:{A(a,k)+1}], v[{A(a,k)}:{A(a,k)+1}], v[{X+32*a+2*q}:{X+32*a+2*q+1}]")
        fill()
        for a in range(2):
            e(f"v_pk_add_f32 v[{A(a,0)}:{A(a,0)+1}], v[{A(a,0)}:{A(a,0)+1}], v[{A(a,1)}:{A(a,1)+1}]")
            e(f"v_pk_add_f32 v[{A(a,2)}:{A(a,2)+1}], v[{A(a,2)}:{A(a,2)+1}], v[{A(a,3)}:{A(a,3)+1}]")
        for a in range(2):
            e(f"v_pk_add_f32 v[{A(a,0)}:{A(a,0)+1}], v[{A(a,0)}:{A(a,0)+1}], v[{A(a,2)}:{A(a,2)+1}]")
        for a in range(2):
            e(f"v_add_f32 v{24+2*a}, v{A(a,0)}, v{A(a,0)+1}")
        self.dpp_reduce16([24, 26])
        for a in range(2):
            e(f"v_mul_f32 v{24+2*a}, {fl(-1.0/512)}, v{24+2*a}")
            e(f"v_mov_b32 v{25+2*a}, v{24+2*a}")
            for r in range(8): e(f"v_mov_b32 v{8+8*a+r}, 0")
        fill()
        for q in range(16):
            for a in range(2):
                r = X + 32*a + 2*q
                e(f"v_pk_add_f32 v[{r}:{r+1}], v[{r}:{r+1}], v[{24+2*a}:{25+2*a}]")
            if q > 0:
                for a in range(2):
                    r = X + 32*a + 2*(q-1); k = (q-1) % 4
                    e(f"v_pk_fma_f32 v[{A(a,k)}:{A(a,k)+1}], v[{r}:{r+1}], v[{r}:{r+1}], v[{A(a,k)}:{A(a,k)+1}]")
            if q % 4 == 3: fill()
        for a in range(2):
            r = X + 32*a + 30; k = 3
            e(f"v_pk_fma_f32 v[{A(a,k)}:{A(a,k)+1}], v[{r}:{r+1}], v[{r}:{r+1}], v[{A(a,k)}:{A(a,k)+1}]")
        for a in range(2):
            e(f"v_pk_add_f32 v[{A(a,0)}:{A(a,0)+1}], v[{A(a,0)}:{A(a,0)+1}], v[{A(a,1)}:{A(a,1)+1}]")
            e(f"v_pk_add_f32 v[{A(a,2)}:{A(a,2)+1}], v[{A(a,2)}:{A(a,2)+1}], v[{A(a,3)}:{A(a,3)+1}]")
        for a in range(2):
            e(f"v_pk_add_f32 v[{A(a,0)}:{A(a,0)+1}], v[{A(a,0)}:{A(a,0)+1}], v[{A(a,2)}:{A(a,2)+1}]")
        for a in range(2):
            e(f"v_add_f32 v{24+a}, v{A(a,0)}, v{A(a,0)+1}")
        self.dpp_reduce16([24, 25])
        for a in range(2):
            e(f"v_mov_b32 v14, {fl(1e-5)}")
            e(f"v_fmac_f32 v14, {fl(1.0/512)}, v{24+a}")
            e(f"v_rsq_f32 v{20+2*a}, v14")
        for a in range(2):
            e(f"v_mov_b32 v{21+2*a}, v{20+2*a}")
        for f in it: f()
        for a in range(2):
            for q in range(16):
                r = X + 32*a + 2*q
                e(f"v_pk_mul_f32 v[{r}:{r+1}], v[{r}:{r+1}], v[{20+2*a}:{21+2*a}]")

    def ln2_prepare(self):
        e = self.e
        X = 128
        for a in range(2):
            e(f"v_mov_b32 v{12+a}, v{8+2*a}")
        self.dpp_reduce16([12, 13])
        for a in range(2):
            e(f"v_mul_f32 v{12+a}, {fl(1.0/16)}, v{12+a}")
            e(f"v_sub_f32 v{14+a}, v{8+2*a}, v{12+a}")
            e(f"v_mul_f32 v{14+a}, v{14+a}, v{14+a}")
            e(f"v_fmac_f32 v{9+2*a}, {fl(32.0)}, v{14+a}")
        self.dpp_reduce16([9, 11])
        for a in range(2):
            e(f"v_mov_b32 v14, {fl(1e-5)}")
            e(f"v_fmac_f32 v14, {fl(1.0/512)}, v{9+2*a}")
            e(f"v_rsq_f32 v{20+4*a}, v14")
        for a in range(2):
            e(f"v_mov_b32 v{21+4*a}, v{20+4*a}")
            e(f"v_mul_f32 v{22+4*a}, v{12+a}, v{20+4*a}"); e(f"v_sub_f32 v{22+4*a}, 0, v{22+4*a}"); e(f"v_mov_b32 v{23+4*a}, v{22+4*a}")
        for a in range(2):
            for q in range(16):
                s_ = 32 + 16*a + q; r = X + 32*a + 2*q
                e(f"v_lshlrev_b32 v{r}, 16, v{s_}"); e(f"v_and_b32 v{r+1}, 0xffff0000, v{s_}")
        for a in range(2):
            for q in range(16):
                r = X + 32*a + 2*q
                e(f"v_pk_fma_f32 v[{r}:{r+1}], v[{r}:{r+1}], v[{20+4*a}:{21+4*a}], v[{22+4*a}:{23+4*a}]")

    def ln_finish(self, lds_mod):
        e = self.e
        X = 128
        e("v_lshrrev_b32 v3, 4, v1"); e("v_and_b32 v4, 15, v1")
        e("v_lshlrev_b32 v6, 4, v4")
        e(f"v_add_u32 v6, {lds_mod}, v6")
        for j in range(4):
            for hh in range(2):
                e(f"ds_read_b128 v[{64+8*j+4*hh}:{67+8*j+4*hh}], v6 offset:{2048 + 512*j + 256*hh}")
                e(f"ds_read_b128 v[{96+8*j+4*hh}:{99+8*j+4*hh}], v6 offset:{512*j + 256*hh}")
        for a in range(2):
            e(f"s_lshl_b32 s20, s3, 3"); e(f"s_add_u32 s20, s20, {4*a}")
            e(f"v_add_u32 v15, s20, v3"); e(f"v_and_b32 v16, 15, v15"); e(f"v_xor_b32 v16, v16, v4")
            e(f"v_lshlrev_b32 v15, 10, v15"); e(f"v_lshl_add_u32 v{18+a}, v16, 4, v15")
        for j in range(4):
            e(f"s_waitcnt lgkmcnt({4*(3-j) + 2*j if False else min(15, 4*(3-j) + 2*j)})" if False else f"s_waitcnt lgkmcnt({4*(3-j)})" if j == 0 else "s_waitcnt lgkmcnt(0)" if j == 1 else "s_nop 0")
            for a in range(2):
                for q in range(4):
                    r = X + 32*a + 8*j + 2*q
                    e(f"v_pk_fma_f32 v[{r}:{r+1}], v[{r}:{r+1}], v[{64+8*j+2*q}:{65+8*j+2*q}], v[{96+8*j+2*q}:{97+8*j+2*q}]")
                pk = 24 + 4*a
                for q in range(4):
                    r = X + 32*a + 8*j + 2*q
                    e(f"v_cvt_pk_bf16_f32 v{pk+q}, v{r}, v{r+1}")
                e(f"ds_write_b128 v{18+a}, v[{pk}:{pk+3}] offset:{256*j}")

    def repack_issue(self):
        e = self.e
        self.srd(48, P_WIN, 0, 512*1792*2)
        e("v_cmp_le_u32 vcc, 224, v0"); e("v_mov_b32 v223, 1"); e("v_cndmask_b32 v226, 0, v223, vcc")
        e("v_mul_u32_u24 v225, 224, v226"); e("v_sub_u32 v225, v0, v225")
        e("s_lshl_b32 s20, s2, 1"); e("v_add_u32 v226, s20, v226")
        e("v_mul_u32_u24 v224, 3584, v226"); e("v_lshl_add_u32 v224, v225, 4, v224")
        e("buffer_load_dwordx4 v[228:231], v224, s[48:51], 0 offen")
        e("v_cmp_le_u32 vcc, 112, v225"); e("v_mov_b32 v223, 112"); e("v_cndmask_b32 v224, 0, v223, vcc"); e("v_sub_u32 v225, v225, v224")
        e("v_mov_b32 v223, 0"); e("v_cndmask_b32 v224, 14, v223, vcc")
        e("v_mul_u32_u24 v227, 4682, v225"); e("v_lshrrev_b32 v227, 16, v227")
        e("v_mul_u32_u24 v223, 14, v227"); e("v_sub_u32 v225, v225, v223"); e("v_add_u32 v225, v225, v224")
        e("v_bfe_u32 v223, v226, 3, 1"); e("v_lshlrev_b32 v223, 1, v223"); e("v_xor_b32 v225, v225, v223")
        e(f"v_mul_u32_u24 v227, {512*448}, v227"); e("v_mul_u32_u24 v223, 448, v226"); e("v_add_u32 v227, v227, v223")
        e("v_lshl_add_u32 v227, v225, 4, v227")

    def repack_store(self):
        e = self.e
        self.srd(48, P_WS, WS_WINP, 8*512*448)
        sk = self.lab("rps")
        e("s_cmp_eq_u32 s3, 7"); e(f"s_cbranch_scc1 {sk}")
        e(f"buffer_store_dwordx4 v[228:231], v227, s[48:51], 0 offen {ST}")
        self.a.label(sk)

    def mod_loads(self, lo, hi, bar):
        e = self.e
        nomod1 = self.lab("nomod")
        e(f"s_sub_u32 s20, s2, {lo}"); e(f"s_cmp_ge_u32 s20, {hi-lo}"); e(f"s_cbranch_scc1 {nomod1}")
        e("v_and_b32 v72, 7, v0"); e("v_lshrrev_b32 v73, 3, v0")
        e("v_mul_u32_u24 v74, 6144, v73"); e("v_lshl_add_u32 v74, v72, 4, v74")
        e("v_lshlrev_b32 v75, 1, v73")
        e("s_and_b32 s20, s2, 3"); e("s_lshr_b32 s21, s2, 2")
        e(f"s_mul_i32 s40, s20, {128*6144}"); e("s_lshl_b32 s21, s21, 7"); e("s_add_u32 s40, s40, s21"); e(f"s_add_u32 s41, s40, {64*6144}")
        e("s_lshl_b32 s42, s20, 8")
        e("buffer_load_dwordx4 v[80:83], v74, s[32:35], s40 offen")
        e("buffer_load_dwordx4 v[84:87], v74, s[32:35], s41 offen")
        e("buffer_load_ushort v76, v75, s[36:39], s42 offen")
        e("buffer_load_ushort v77, v75, s[36:39], s42 offen offset:128")
        if bar: e("s_barrier")
        self.a.label(nomod1)

    def mod_compute(self, lo, hi, wait):
        e = self.e
        MSCR = 155648
        nomod2 = self.lab("nomod")
        e(f"s_sub_u32 s20, s2, {lo}"); e(f"s_cmp_ge_u32 s20, {hi-lo}"); e(f"s_cbranch_scc1 {nomod2}")
        for j in range(8): e(f"v_mov_b32 v{64+j}, 0")
        e(f"s_waitcnt vmcnt({wait})")
        self.stamp(29)
        for i in range(2):
            c = 76 + i
            e(f"v_lshlrev_b32 v{c}, 16, v{c}")
            e(f"v_mul_f32 v12, {fl(-LOG2E)}, v{c}"); e("v_exp_f32 v12, v12"); e("v_add_f32 v12, 1.0, v12"); e("v_rcp_f32 v12, v12")
            e(f"v_mul_f32 v{c}, v{c}, v12")
            self.bf16_round(c, c)
        for i in range(2):
            for q in range(4):
                w = 80 + 4*i + q
                e(f"v_lshlrev_b32 v12, 16, v{w}"); e(f"v_and_b32 v13, 0xffff0000, v{w}")
                e(f"v_fmac_f32 v{64+2*q}, v{76+i}, v12"); e(f"v_fmac_f32 v{65+2*q}, v{76+i}, v13")
        for j in range(8): e(f"v_add_f32_dpp v{64+j}, v{64+j}, v{64+j} row_ror:8 row_mask:0xf bank_mask:0xf")
        e("v_lshrrev_b32 v12, 4, v0"); e("v_lshlrev_b32 v12, 8, v12"); e("v_lshl_add_u32 v12, v72, 5, v12")
        e(f"v_add_u32 v12, {MSCR}, v12")
        e("v_and_b32 v13, 8, v1"); e("v_cmp_eq_u32 vcc, 0, v13")
        e("s_and_saveexec_b64 s[44:45], vcc")
        e("ds_write_b128 v12, v[64:67]"); e("ds_write_b128 v12, v[68:71] offset:16")
        e("s_mov_b64 exec, s[44:45]")
        e("s_waitcnt lgkmcnt(0)")
        self.stamp(30)
        e("s_barrier")
        mdone = self.lab("mdone")
        e("s_cmp_lg_u32 s3, 7"); e(f"s_cbranch_scc1 {mdone}")
        e("v_lshlrev_b32 v72, 2, v1"); e(f"v_add_u32 v12, {MSCR}, v72")
        for i in range(32): e(f"ds_read_b32 v{80+i}, v12 offset:{256*i}")
        for lo in (0, 16):
            e(f"s_waitcnt lgkmcnt({15 if lo == 0 else 0})")
            if lo == 0: e("s_waitcnt lgkmcnt(15)")
        e("s_waitcnt lgkmcnt(0)")
        for st in (16, 8, 4, 2, 1):
            for i in range(st): e(f"v_add_f32 v{80+i}, v{80+i}, v{80+i+st}")
        e("s_and_b32 s20, s2, 3"); e("s_mul_i32 s20, s20, 12288"); e("s_lshr_b32 s21, s2, 2"); e("s_lshl_b32 s21, s21, 8"); e("s_add_u32 s20, s20, s21")
        e(f"buffer_store_dword v80, v72, s[12:15], s20 offen {ST}")
        e("s_waitcnt vmcnt(0)")
        self.signal(lambda: (e("s_lshl_b32 s46, s2, 2"), e(f"s_add_u32 s46, s46, {F0}")), nrep=8, rep_stride=1024)
        self.a.label(mdone)
        self.a.label(nomod2)

    def mod_late_a(self):
        e = self.e
        MSCR = 155648
        sk = self.lab("mla")
        e("s_sub_u32 s20, s2, 64"); e("s_cmp_ge_u32 s20, 128"); e(f"s_cbranch_scc1 {sk}")
        e("s_cmp_eq_u32 s3, 7"); e(f"s_cbranch_scc1 {sk}")
        self.srd(32, P_WMOD, 0, 512*3072*2); self.srd(36, P_C, 0, 1024)
        e("v_and_b32 v72, 7, v0"); e("v_lshrrev_b32 v73, 3, v0")
        e("v_mul_u32_u24 v74, 6144, v73"); e("v_lshl_add_u32 v74, v72, 4, v74"); e("v_lshlrev_b32 v75, 1, v73")
        e("s_and_b32 s20, s2, 3"); e("s_lshr_b32 s21, s2, 2")
        e(f"s_mul_i32 s40, s20, {128*6144}"); e("s_lshl_b32 s21, s21, 7"); e("s_add_u32 s40, s40, s21")
        e(f"s_add_u32 s41, s40, {56*6144}"); e(f"s_add_u32 s43, s40, {112*6144}"); e("s_lshl_b32 s42, s20, 8")
        for r in range(88, 92): e(f"v_mov_b32 v{r}, 0")
        e("v_mov_b32 v78, 0")
        e("buffer_load_dwordx4 v[80:83], v74, s[32:35], s40 offen"); e("buffer_load_dwordx4 v[84:87], v74, s[32:35], s41 offen")
        e("buffer_load_ushort v76, v75, s[36:39], s42 offen"); e("buffer_load_ushort v77, v75, s[36:39], s42 offen offset:112")
        e("v_cmp_gt_u32 vcc, 16, v73"); e("s_and_saveexec_b64 s[44:45], vcc")
        s3 = self.lab("mla3")
        e(f"s_cbranch_execz {s3}")
        e("buffer_load_dwordx4 v[88:91], v74, s[32:35], s43 offen"); e("buffer_load_ushort v78, v75, s[36:39], s42 offen offset:224")
        self.a.label(s3)
        e("s_mov_b64 exec, s[44:45]")
        for j in range(8): e(f"v_mov_b32 v{64+j}, 0")
        e("s_waitcnt vmcnt(0)")
        for i in range(3):
            c = 76 + i
            e(f"v_lshlrev_b32 v{c}, 16, v{c}")
            e(f"v_mul_f32 v12, {fl(-LOG2E)}, v{c}"); e("v_exp_f32 v12, v12"); e("v_add_f32 v12, 1.0, v12"); e("v_rcp_f32 v12, v12")
            e(f"v_mul_f32 v{c}, v{c}, v12")
            self.bf16_round(c, c)
        for i in range(3):
            for q in range(4):
                w = 80 + 4*i + q
                e(f"v_lshlrev_b32 v12, 16, v{w}"); e(f"v_and_b32 v13, 0xffff0000, v{w}")
                e(f"v_fmac_f32 v{64+2*q}, v{76+i}, v12"); e(f"v_fmac_f32 v{65+2*q}, v{76+i}, v13")
        for j in range(8): e(f"v_add_f32_dpp v{64+j}, v{64+j}, v{64+j} row_ror:8 row_mask:0xf bank_mask:0xf")
        e("v_lshrrev_b32 v12, 4, v0"); e("v_lshlrev_b32 v12, 8, v12"); e("v_lshl_add_u32 v12, v72, 5, v12"); e(f"v_add_u32 v12, {MSCR}, v12")
        e("v_and_b32 v13, 8, v1"); e("v_cmp_eq_u32 vcc, 0, v13"); e("s_and_saveexec_b64 s[44:45], vcc")
        e("ds_write_b128 v12, v[64:67]"); e("ds_write_b128 v12, v[68:71] offset:16")
        e("s_mov_b64 exec, s[44:45]")
        e("s_waitcnt lgkmcnt(0)")
        self.a.label(sk)

    def mod_late_b(self):
        e = self.e
        MSCR = 155648
        sk = self.lab("mlb")
        e("s_sub_u32 s20, s2, 64"); e("s_cmp_ge_u32 s20, 128"); e(f"s_cbranch_scc1 {sk}")
        e("s_cmp_lg_u32 s3, 6"); e(f"s_cbranch_scc1 {sk}")
        self.srd(48, P_WS, WS_MOD, 49152)
        e("v_lshlrev_b32 v178, 2, v1"); e(f"v_add_u32 v179, {MSCR}, v178")
        for i in range(28): e(f"ds_read_b32 v{180+i}, v179 offset:{256*i}")
        e("s_waitcnt lgkmcnt(0)")
        for i in range(1, 28): e(f"v_add_f32 v180, v180, v{180+i}")
        e("s_and_b32 s20, s2, 3"); e("s_mul_i32 s20, s20, 12288"); e("s_lshr_b32 s21, s2, 2"); e("s_lshl_b32 s21, s21, 8"); e("s_add_u32 s20, s20, s21")
        e(f"buffer_store_dword v180, v178, s[48:51], s20 offen {ST}")
        self.a.label(sk)

    def mod_late_flag(self):
        e = self.e
        sk = self.lab("mlf")
        e("s_sub_u32 s20, s2, 64"); e("s_cmp_ge_u32 s20, 128"); e(f"s_cbranch_scc1 {sk}")
        e("s_cmp_lg_u32 s3, 6"); e(f"s_cbranch_scc1 {sk}")
        e("s_lshl_b32 s46, s2, 2"); e(f"s_add_u32 s46, s46, {F0}")
        e(f"v_mov_b32 v250, s{S_NONCE}"); e("v_mul_u32_u24 v251, 1024, v1")
        e("s_mov_b64 exec, 0xff")
        e(f"buffer_store_dword v250, v251, s[{SRD_F}:{SRD_F+3}], s46 offen {ST}")
        e("s_mov_b64 exec, -1")
        self.a.label(sk)

    def p01(self):
        e = self.e
        RING = 65536; SL = 12288; D = 7; MODL = RING + D*SL
        MSCR = 155648
        self.srd(8, P_X, 0, 2048*512*2)
        self.srd(12, P_WS, WS_MOD, 49152)
        self.srd(16, P_WQKV, 0, 512*1536*2)
        self.srd(24, P_WS, WS_QK, 4*MB)
        self.srd(28, P_WS, WS_V, 2*MB)
        self.srd(32, P_WMOD, 0, 512*3072*2)
        self.srd(36, P_C, 0, 1024)
        self.mod_loads(0, self.MODCRIT, True)
        self.get_nonce()
        self.stamp(25)
        if self.XLATE:
            xl = self.lab("xlate")
            e("s_cmp_ge_u32 s2, 192"); e(f"s_cbranch_scc1 {xl}")
            e("s_waitcnt vmcnt(0)")
            self.a.label(xl)
        e("s_lshl_b32 s6, s4, 16")
        self.ln_loads(8, 6)
        self.stamp(26)
        tk = self.lab("touch")
        e("s_cmp_ge_u32 s3, 3"); e(f"s_cbranch_scc1 {tk}")
        e("s_and_b32 s20, s4, 7"); e("s_lshl_b32 s20, s20, 6")
        e("v_add_u32 v7, s20, v1"); e("v_mul_u32_u24 v7, 3072, v7")
        e("s_lshl_b32 s20, s5, 8"); e("s_lshl_b32 s21, s3, 7"); e("s_add_u32 s20, s20, s21")
        e("s_lshl_b32 s21, s5, 7"); e("s_add_u32 s21, s21, 2048")
        e("s_cmp_eq_u32 s3, 2"); e("s_cselect_b32 s20, s21, s20")
        e("buffer_load_dword v9, v7, s[16:19], s20 offen")
        self.a.label(tk)
        self.stamp(27)
        e("s_and_b32 s7, s3, 3")
        for m in range(3):
            d = 192 + m
            e(f"s_lshl_b32 s20, s7, 6"); e(f"s_add_u32 s20, s20, {256*m}")
            e(f"v_add_u32 v200, s20, v1")
            e(f"v_mul_u32_u24 v201, 2731, v200"); e(f"v_lshrrev_b32 v201, 16, v201")
            e(f"v_mul_u32_u24 v202, 24, v201"); e(f"v_sub_u32 v202, v200, v202")
            e(f"v_bfe_u32 v203, v201, 1, 1"); e(f"v_bfe_u32 v204, v201, 3, 1")
            e(f"v_lshl_or_b32 v203, v204, 1, v203"); e(f"v_lshlrev_b32 v203, 1, v203")
            e(f"v_xor_b32 v202, v202, v203"); e(f"v_lshlrev_b32 v203, 4, v202")
            e(f"s_lshl_b32 s20, s5, 8"); e(f"v_add_u32 v204, s20, v203")
            e(f"s_lshl_b32 s20, s5, 7"); e(f"s_add_u32 s20, s20, {2048-256}"); e(f"v_add_u32 v205, s20, v203")
            e(f"v_cmp_gt_u32 vcc, 16, v202"); e(f"v_cndmask_b32 v204, v205, v204, vcc")
            e(f"v_mul_u32_u24 v201, 3072, v201"); e(f"v_add_u32 v{d}, v201, v204")
        e("s_lshl_b32 s7, s7, 10"); e(f"s_add_u32 s7, s7, {RING}")
        e("s_lshr_b32 s32, s3, 2")
        self.stamp(28)
        self.mod_compute(0, self.MODCRIT, 8)
        self.stamp(0)
        e(f"s_mul_i32 s33, s32, {32*3072}")
        e(f"s_mul_i32 s34, s32, {SL}"); e("s_add_u32 s34, s34, s7")
        def issue_pair(pairidx):
            def f():
                e(f"s_add_u32 s23, s33, {2*pairidx*32*3072}")
                for m in range(3):
                    self.dma(192+m, 16, "s23", f"s_add_u32 m0, s34, {2*pairidx*SL + m*4096}")
            return f
        issue_pair(0)()
        e("s_waitcnt vmcnt(3)")
        self.stamp(1)
        nop = lambda: None
        self.ln_stats([nop, nop, issue_pair(1), nop, nop, issue_pair(2)])
        self.stamp(2)
        def c0():
            e("s_and_b32 s46, s2, 7"); e("s_lshl_b32 s46, s46, 10"); e(f"s_add_u32 s46, s46, {F0}")
            e("v_lshlrev_b32 v251, 2, v1")
        self.wait_flags([(c0, (1 << 64) - 1)], keep=True)
        self.stamp(3)
        self.mod_issue(12, 0)
        e("v_mov_b32 v249, 0"); e("ds_read_b32 v249, v249"); e("s_waitcnt lgkmcnt(0)"); e(f"v_readfirstlane_b32 s{S_NONCE}, v249")
        e("v_lshrrev_b32 v3, 4, v1"); e("v_and_b32 v4, 15, v1")
        e("v_lshrrev_b32 v5, 2, v4"); e("v_and_b32 v6, 3, v4")
        e("v_lshl_add_u32 v7, v3, 3, v5"); e("v_mul_u32_u24 v7, 384, v7"); e("v_lshl_add_u32 v7, v6, 3, v7")
        e(f"v_add_u32 v7, {RING}, v7")
        e("v_bfe_u32 v8, v5, 1, 1"); e("v_and_b32 v9, 1, v3"); e("v_lshl_or_b32 v8, v9, 1, v8")
        e("s_lshr_b32 s20, s3, 1")
        for c in range(3):
            if c < 2: e(f"s_lshl_b32 s21, s20, 1"); e(f"s_add_u32 s21, s21, {c}")
            else: e(f"s_add_u32 s21, s20, 8")
            e("s_lshr_b32 s22, s21, 2"); e("s_lshl_b32 s22, s22, 7"); e("s_and_b32 s21, s21, 3")
            e(f"v_xor_b32 v9, s21, v8"); e(f"v_lshl_add_u32 v{200+c}, v9, 5, v7"); e(f"v_add_u32 v{200+c}, s22, v{200+c}")
            e(f"v_add_u32 v{204+c}, {5*SL}, v{200+c}")
        e("s_and_b32 s21, s3, 1"); e("s_lshl_b32 s21, s21, 5")
        e("v_add_u32 v9, s21, v4"); e("v_lshlrev_b32 v9, 10, v9")
        for m in range(4):
            e(f"v_add_u32 v10, {4*m}, v3"); e(f"v_xor_b32 v10, v10, v4"); e(f"v_lshl_add_u32 v{208+m}, v10, 4, v9")
        e("s_waitcnt vmcnt(0)")
        self.mod_finish(MODL)
        e("s_waitcnt lgkmcnt(0)")
        e("s_barrier")
        self.ln_finish(MODL)
        ACC = 128
        e("s_waitcnt lgkmcnt(0)")
        e("s_barrier")
        for r in range(24): e(f"v_mov_b32 v{192+8+r}, 0") if False else None
        ACC = 212
        for r in range(24): e(f"v_mov_b32 v{ACC+r}, 0")
        self.stamp(4)
        def reads_list(n):
            buf = n % 2; slot = n % D
            out = []
            for rt in range(2):
                b = 32 + 32*buf + 4*rt
                out.append(f"ds_read_b128 v[{b}:{b+3}], v{208 + (n & 3)} offset:{rt*16384 + (n >> 2)*256}")
            for c in range(3):
                b = 40 + 32*buf + 4*c
                areg, off = (200 + c, slot*SL) if slot < 5 else (204 + c, (slot-5)*SL)
                for t in range(2):
                    out.append(f"ds_read_b64_tr_b16 v[{b+2*t}:{b+2*t+1}], v{areg} offset:{off + 4*t*384}")
            return out
        def mfmas(n):
            buf = n % 2
            for c in range(3):
                for rt in range(2):
                    acc = ACC + 4*(rt*3 + c)
                    x = 32 + 32*buf + 4*rt; w = 40 + 32*buf + 4*c
                    A, B = (w, x) if c < 2 else (x, w)
                    yield f"v_mfma_f32_16x16x32_bf16 v[{acc}:{acc+3}], v[{A}:{A+3}], v[{B}:{B+3}], v[{acc}:{acc+3}]"
        NK = 16
        for r in reads_list(0): e(r)
        for n in range(NK):
            if n + 1 < NK:
                if n + 1 >= 6:
                    hi = min(n + 5, NK - 1)
                    cA = sum(1 for s in range(max(n+2, 6), hi+1) if s % 2 == 0); cB = sum(1 for s in range(max(n+2, 6), hi+1) if s % 2 == 1)
                    e(f"s_waitcnt vmcnt({3*min(cA, cB)})")
                e("s_barrier")
            e("s_waitcnt lgkmcnt(0)")
            ms = list(mfmas(n)); rs = reads_list(n + 1) if n + 1 < NK else []
            ri = 0
            for i, m in enumerate(ms):
                e(m)
                for _ in range(2 if i < 2 else 1):
                    if ri < len(rs): e(rs[ri]); ri += 1
            st = n + D - 1
            if st < NK:
                lsk = self.lab("qkv_sk")
                e(f"s_cmp_lg_u32 s32, {st & 1}"); e(f"s_cbranch_scc1 {lsk}")
                e(f"s_mov_b32 s23, {st*32*3072}")
                for m in range(3): self.dma(192+m, 16, "s23", f"s_add_u32 m0, s7, {(st % D)*SL + m*4096}")
                self.a.label(lsk)
        self.stamp(5)
        e("v_lshlrev_b32 v8, 4, v1")
        e("s_and_b32 s20, s3, 1"); e("s_lshl_b32 s21, s4, 1"); e("s_add_u32 s21, s21, s20"); e("s_lshl_b32 s21, s21, 10")
        e("s_lshr_b32 s20, s3, 1")
        e(f"s_mov_b32 s22, {fl(0.25*LOG2E)}"); e("s_cmp_lt_u32 s5, 4"); e("s_cselect_b32 s22, s22, 1.0")
        for c in range(3):
            if c < 2:
                e("s_lshl_b32 s23, s5, 3"); e("s_lshl_b32 s6, s20, 1"); e("s_add_u32 s23, s23, s6"); e(f"s_add_u32 s23, s23, {c}")
            else:
                e("s_lshl_b32 s23, s5, 2"); e("s_add_u32 s23, s23, s20")
            e("s_lshl_b32 s23, s23, 16"); e("s_add_u32 s23, s23, s21")
            pk = 32 + 4*c
            for rt in range(2):
                acc = ACC + 4*(rt*3 + c)
                if c < 2:
                    for q in range(4): e(f"v_mul_f32 v{acc+q}, s22, v{acc+q}")
                e(f"v_cvt_pk_bf16_f32 v{pk+2*rt}, v{acc}, v{acc+1}"); e(f"v_cvt_pk_bf16_f32 v{pk+2*rt+1}, v{acc+2}, v{acc+3}")
            sw = "v_permlane16_swap_b32" if c < 2 else "v_permlane32_swap_b32"
            e(f"{sw} v{pk}, v{pk+2}"); e(f"{sw} v{pk+1}, v{pk+3}")
            e(f"buffer_store_dwordx4 v[{pk}:{pk+3}], v8, {'s[24:27]' if c < 2 else 's[28:31]'}, s23 offen {ST}")
        self.phase_end()
        self.signal(lambda: (e("s_lshl_b32 s46, s5, 7"), e("s_lshl_b32 s47, s4, 2"), e("s_add_u32 s46, s46, s47"), e(f"s_add_u32 s46, s46, {F1}")),
                    nrep=8, rep_stride=1024)
        if self.MODCRIT < 192: self.mod_late_a()
        if self.REPACK:
            rpi = self.lab("rpi")
            e("s_cmp_eq_u32 s3, 7"); e(f"s_cbranch_scc1 {rpi}")
            self.repack_issue()
            self.a.label(rpi)
        self.stamp(6)

    def l2_prefetch(self, vtmp, vdst):
        e = self.e
        e("s_and_b32 s20, s2, 7"); e("s_lshr_b32 s21, s2, 3")
        e(f"v_lshlrev_b32 v{vtmp}, 7, v1")
        self.srd(48, P_WSP, 0, 2048*2048*2)
        e("s_and_b32 s22, s20, 3"); e("s_lshl_b32 s22, s22, 21"); e("s_lshl_b32 s23, s21, 16"); e("s_add_u32 s22, s22, s23")
        e("s_lshl_b32 s23, s3, 13"); e("s_add_u32 s22, s22, s23")
        e(f"buffer_load_dword v{vdst}, v{vtmp}, s[48:51], s22 offen")
        if self.REPACK:
            self.srd(48, P_WS, WS_WINP, 8*512*448)
            e("s_lshr_b32 s22, s20, 2"); e(f"s_mul_i32 s22, s22, {4*512*448}")
            e(f"s_mul_i32 s23, s21, {224*128}"); e("s_add_u32 s22, s22, s23")
            e("s_lshl_b32 s23, s3, 13"); e("s_add_u32 s22, s22, s23")
            pw4 = self.lab("pf4")
            e("s_cmp_ge_u32 s3, 4"); e(f"s_cbranch_scc1 {pw4}")
            e(f"buffer_load_dword v{vdst+2}, v{vtmp}, s[48:51], s22 offen")
            self.a.label(pw4)
        else:
            self.srd(48, P_WIN, 0, 512*1792*2)
            e(f"v_lshrrev_b32 v{vdst+1}, 5, v1"); e(f"v_bfe_u32 v{vdst+2}, v1, 4, 1")
            e(f"v_and_b32 v{vdst+3}, 15, v1"); e(f"v_min_u32 v{vdst+3}, 7, v{vdst+3}")
            e(f"v_mul_u32_u24 v{vdst+1}, 3584, v{vdst+1}"); e(f"v_mul_u32_u24 v{vdst+2}, 1792, v{vdst+2}")
            e(f"v_add_u32 v{vdst+1}, v{vdst+1}, v{vdst+2}"); e(f"v_lshl_add_u32 v{vdst+1}, v{vdst+3}, 7, v{vdst+1}")
            e("s_lshr_b32 s22, s20, 2"); e("s_mul_i32 s22, s22, 896")
            e("s_lshl_b32 s23, s21, 4"); e("s_lshl_b32 s46, s3, 1"); e("s_add_u32 s23, s23, s46"); e("s_mul_i32 s23, s23, 3584")
            e("s_add_u32 s22, s22, s23")
            e(f"buffer_load_dword v{vdst+2}, v{vdst+1}, s[48:51], s22 offen")
        e(f"v_lshrrev_b32 v{vdst+1}, 2, v1"); e(f"v_and_b32 v{vdst+3}, 3, v1")
        e(f"v_lshlrev_b32 v{vdst+1}, 10, v{vdst+1}"); e(f"v_lshl_add_u32 v{vdst+1}, v{vdst+3}, 7, v{vdst+1}")
        e("s_lshr_b32 s22, s20, 2"); e("s_lshl_b32 s22, s22, 9")
        lw = self.lab("pf_w"); lx = self.lab("pf_x")
        e("s_cmp_ge_u32 s3, 2"); e(f"s_cbranch_scc1 {lw}")
        self.srd(48, P_WOUT, 0, 896*512*2)
        e("s_mul_i32 s23, s21, 28"); e("s_lshl_b32 s46, s3, 4"); e("s_add_u32 s23, s23, s46"); e("s_lshl_b32 s23, s23, 10")
        e("s_add_u32 s22, s22, s23")
        e(f"buffer_load_dword v{vdst+3}, v{vdst+1}, s[48:51], s22 offen")
        e(f"s_branch {lx}")
        self.a.label(lw)
        e("s_cmp_lg_u32 s3, 2"); e(f"s_cbranch_scc1 {lx}")
        self.srd(48, P_WO, 0, 512*512*2)
        e("s_lshl_b32 s23, s21, 14"); e("s_add_u32 s22, s22, s23")
        e(f"buffer_load_dword v{vdst+3}, v{vdst+1}, s[48:51], s22 offen")
        self.a.label(lx)

    def p2(self):
        e = self.e
        end = self.lab("att_end")
        H, QB_ = S_HEAD, S_QB
        self.srd(8, P_WS, WS_QK, 4*MB)
        self.srd(12, P_WS, WS_V, 2*MB)
        self.srd(16, P_WS, WS_O, 2*MB)
        e("s_and_b32 s6, s3, 3"); e("s_lshr_b32 s7, s3, 2")
        e("v_lshlrev_b32 v2, 4, v1")
        QA, QB = 8, 12
        SA, SB = 32, 48
        PA, PB = 64, 72
        OA, OB = 80, 96
        CA, CB = 112, 128
        KF = 144; VF = 152
        AK, AV = 4, 5
        FLAG = 131072 + 20480
        e(f"v_mov_b32 v3, {FLAG}"); e("v_mov_b32 v4, 0"); e("ds_write_b32 v3, v4")
        e("v_and_b32 v6, 31, v1"); e("v_and_b32 v7, 27, v6"); e("v_cmp_eq_u32 vcc, 16, v7")
        e("v_mov_b32 v16, 0x3f803f80"); e("v_cndmask_b32 v16, 0, v16, vcc")
        for r in range(16): e(f"v_mov_b32 v{VF+r}, v16")
        e("v_cmp_gt_u32 s[30:31], 16, v6")
        for r in range(16):
            e(f"v_mov_b32 v{CA+r}, 0"); e(f"v_mov_b32 v{CB+r}, 0")
        e("s_mov_b32 s33, 0")
        def cKV():
            e("s_and_b32 s46, s2, 7"); e("s_lshl_b32 s46, s46, 10"); e(f"s_add_u32 s46, s46, {F1}")
            e(f"s_lshr_b32 s44, s{H}, 3"); e("s_add_u32 s44, s44, 4"); e("s_lshl_b32 s44, s44, 7")
            e(f"s_lshr_b32 s45, s{H}, 2"); e("s_lshl_b32 s45, s45, 7")
            e("v_and_b32 v251, 31, v1"); e("v_lshlrev_b32 v251, 2, v251")
            e("v_mov_b32 v252, s44"); e("v_mov_b32 v253, s45")
            e("v_cmp_gt_u32 vcc, 32, v1"); e("v_cndmask_b32 v252, v253, v252, vcc")
            e("v_add_u32 v251, v251, v252")
        def cQ():
            e("s_and_b32 s46, s2, 7"); e("s_lshl_b32 s46, s46, 10"); e(f"s_add_u32 s46, s46, {F1}")
            e(f"s_lshr_b32 s44, s{H}, 3"); e("s_lshl_b32 s44, s44, 7"); e("s_add_u32 s46, s46, s44")
            e(f"s_lshl_b32 s44, s{QB_}, 4"); e("s_add_u32 s46, s46, s44")
            e("v_lshlrev_b32 v251, 2, v1")
        self.wait_flags([(cKV, (1 << 64) - 1), (cQ, 0xf)])
        self.stamp(7)
        e(f"s_lshl_b32 s20, s{QB_}, 3"); e("s_lshl_b32 s21, s6, 1"); e("s_add_u32 s20, s20, s21"); e("s_lshl_b32 s20, s20, 10")
        e(f"s_lshl_b32 s21, s{H}, 16"); e("s_add_u32 s20, s20, s21")
        e(f"buffer_load_dwordx4 v[{QA}:{QA+3}], v2, s[8:11], s20 offen")
        e(f"buffer_load_dwordx4 v[{QB}:{QB+3}], v2, s[8:11], s20 offen offset:1024")
        e(f"s_lshl_b32 s41, s{H}, 16"); e(f"s_add_u32 s40, s41, {32*65536}"); e("s_lshl_b32 s42, s3, 10")
        e("s_add_u32 s40, s40, s42"); e("s_add_u32 s41, s41, s42")
        def dma_half(half):
            e(f"s_add_u32 s20, s40, {32*half*1024}")
            self.dma(2, 8, "s20", f"s_add_u32 m0, s42, {32*half*1024}")
            e(f"s_add_u32 s20, s41, {32*half*1024}")
            self.dma(2, 12, "s20", f"s_add_u32 m0, s42, {65536 + 32*half*1024}")
        def next_chunk():
            e("s_add_u32 s40, s40, 8192"); e("s_add_u32 s41, s41, 8192"); e("s_add_u32 s42, s42, 8192")
        dma_half(0); dma_half(1); next_chunk()
        if self.MODCRIT < 192: self.mod_late_b()
        lrestart = self.lab("att_restart")
        self.a.label(lrestart)
        for r in range(16):
            e(f"v_mov_b32 v{OA+r}, 0"); e(f"v_mov_b32 v{OB+r}, 0")
        e("s_lshl_b32 s20, s7, 15"); e(f"v_add_u32 v{AK}, s20, v2")
        e("v_lshrrev_b32 v6, 5, v1"); e("v_and_b32 v7, 15, v1"); e("v_lshlrev_b32 v7, 4, v7"); e("v_lshl_add_u32 v7, v6, 8, v7")
        e("s_add_u32 s20, s20, 65536"); e(f"v_add_u32 v{AV}, s20, v7")
        for r in range(8): e(f"v_mov_b32 v{PB+r}, 0")
        if self.BALANCE:
            e("s_lshl_b32 s20, s3, 2"); e(f"s_add_u32 s20, s20, {151552 + 64}"); e("v_mov_b32 v17, s20")
            e("s_xor_b32 s20, s20, 16"); e("v_mov_b32 v18, s20")
            e("v_mov_b32 v19, 0"); e("ds_write_b32 v17, v19")
        e("s_mov_b64 exec, s[30:31]")
        for r in range(8): e(f"v_mov_b32 v{VF+8+r}, 0")
        e("s_mov_b64 exec, -1")
        def rdK(buf, off): e(f"ds_read_b128 v[{KF+4*buf}:{KF+4*buf+3}], v{AK} offset:{off}")
        def rdV(buf, off):
            e("s_mov_b64 exec, s[30:31]")
            e(f"ds_read_b128 v[{VF+8*buf}:{VF+8*buf+3}], v{AV} offset:{off}")
            e(f"ds_read_b128 v[{VF+8*buf+4}:{VF+8*buf+7}], v{AV} offset:{off+512}")
            e("s_mov_b64 exec, -1")
        def qk(S, C, Q, buf): e(f"v_mfma_f32_32x32x16_bf16 v[{S}:{S+15}], v[{KF+4*buf}:{KF+4*buf+3}], v[{Q}:{Q+3}], v[{C}:{C+15}]")
        def pv(O, P, buf, mf): e(f"v_mfma_f32_32x32x16_bf16 v[{O}:{O+15}], v[{VF+8*buf+4*mf}:{VF+8*buf+4*mf+3}], v[{P+4*mf}:{P+4*mf+3}], v[{O}:{O+15}]")
        def step(S, P, first, mid1, mid2, pre=None, extra=None):
            if pre: pre()
            first()
            k = 0
            for j in range(16):
                e(f"v_exp_f32 v{S+j}, v{S+j}")
                if j >= 3 and j % 2 == 1:
                    e(f"v_cvt_pk_bf16_f32 v{P+k}, v{S+2*k}, v{S+2*k+1}"); k += 1
                if j == self.M1 and mid1: mid1()
                if j == 7 and extra: extra()
                if j == self.M2 and mid2: mid2()
            while k < 8:
                e(f"v_cvt_pk_bf16_f32 v{P+k}, v{S+2*k}, v{S+2*k+1}"); k += 1
        e("s_waitcnt vmcnt(0) lgkmcnt(0)")
        e("s_barrier")
        self.stamp(8)
        if self.REPACK:
            rps = self.lab("att_rps")
            e("s_cmp_lg_u32 s33, 0"); e(f"s_cbranch_scc1 {rps}")
            self.repack_store()
            self.a.label(rps)
        rdK(0, 0); rdV(0, 0)
        e("s_waitcnt lgkmcnt(0)")
        qk(SA, CA, QA, 0)
        e("s_mov_b32 s34, 0")
        loop = self.lab("att_loop")
        self.a.label(loop)
        nb = self.lab("att_nobar")
        e("s_add_u32 s35, s34, s33")
        if self.PREFETCH:
            pf = self.lab("att_pf")
            e(f"s_cmp_lg_u32 s34, {11 if self.REPACK else 4}"); e(f"s_cbranch_scc1 {pf}"); e("s_cmp_lg_u32 s33, 0"); e(f"s_cbranch_scc1 {pf}")
            self.l2_prefetch(170, 172)
            self.a.label(pf)
        if self.REPACK:
            fr = self.lab("att_fr")
            e("s_cmp_lg_u32 s3, 7"); e(f"s_cbranch_scc1 {fr}")
            e("s_cmp_lg_u32 s33, 0"); e(f"s_cbranch_scc1 {fr}")
            e("s_cmp_lg_u32 s34, 10"); e(f"s_cbranch_scc1 {fr}")
            e("s_and_b32 s21, s2, 7"); e("s_lshl_b32 s21, s21, 10"); e(f"s_add_u32 s21, s21, {FR}")
            e("v_lshlrev_b32 v238, 4, v1"); e("s_mov_b32 s47, 0")
            frl = self.lab("att_frl"); frd = self.lab("att_frd")
            self.a.label(frl)
            e(f"buffer_load_dwordx4 v[240:243], v238, s[{SRD_F}:{SRD_F+3}], s21 offen sc1")
            e("s_add_u32 s47, s47, 1"); e(f"s_cmp_gt_u32 s47, {SPIN_CAP}"); e(f"s_cbranch_scc1 {frd}")
            e("s_waitcnt vmcnt(0)")
            e("s_mov_b64 s[36:37], -1")
            for r in range(240, 244):
                e(f"v_cmp_eq_u32 vcc, s{S_NONCE}, v{r}"); e("s_and_b64 s[36:37], s[36:37], vcc")
            e("s_cmp_eq_u64 s[36:37], -1"); e(f"s_cbranch_scc0 {frl}")
            self.a.label(frd)
            e("s_waitcnt vmcnt(0)")
            self.a.label(fr)
        e("s_cmp_lg_u32 s35, 3"); e(f"s_cbranch_scc1 {nb}")
        e("s_waitcnt vmcnt(0)")
        e("s_barrier")
        if self.REPACK: self.signal(lambda: (e("s_lshl_b32 s46, s2, 2"), e(f"s_add_u32 s46, s46, {FR}")), nrep=8, rep_stride=1024)
        if self.MODCRIT < 192: self.mod_late_flag()
        self.a.label(nb)
        def extra_dma():
            sk = self.lab("att_nd")
            e("s_cmp_ge_u32 s35, 3"); e(f"s_cbranch_scc1 {sk}")
            dma_half(0); dma_half(1); next_chunk()
            self.a.label(sk)
        step(SA, PA, lambda: qk(SB, CB, QB, 0), lambda: pv(OB, PB, 1, 0), lambda: pv(OB, PB, 1, 1), pre=lambda: rdK(1, 1024), extra=extra_dma)
        def preB0():
            rdV(1, 1024); e("s_waitcnt lgkmcnt(2)")
            if self.BALANCE:
                e("v_mov_b32 v19, s34")
                e("ds_write_b32 v17, v19")
                e("ds_read_b32 v24, v18")
        step(SB, PB, lambda: qk(SA, CA, QA, 1), lambda: pv(OA, PA, 0, 0), lambda: pv(OA, PA, 0, 1), pre=preB0)
        step(SA, PA, lambda: qk(SB, CB, QB, 1), lambda: pv(OB, PB, 0, 0), lambda: pv(OB, PB, 0, 1), pre=lambda: rdK(0, 2048))
        def preB1():
            rdV(0, 2048); e("s_waitcnt lgkmcnt(2)")
            if self.BALANCE:
                hi = self.lab("att_hi"); dn_ = self.lab("att_pd")
                e("v_readfirstlane_b32 s20, v24")
                e("s_cmp_gt_u32 s34, s20"); e(f"s_cbranch_scc0 {hi}")
                e("s_setprio 0"); e(f"s_branch {dn_}")
                self.a.label(hi)
                e("s_setprio 1")
                self.a.label(dn_)
        step(SB, PB, lambda: qk(SA, CA, QA, 0), lambda: pv(OA, PA, 1, 0), lambda: pv(OA, PA, 1, 1), pre=preB1)
        e(f"v_add_u32 v{AK}, 2048, v{AK}"); e(f"v_add_u32 v{AV}, 2048, v{AV}")
        e("s_add_u32 s34, s34, 1"); e("s_cmp_lt_u32 s34, 16"); e(f"s_cbranch_scc1 {loop}")
        if self.BALANCE:
            e("v_mov_b32 v19, 64"); e("ds_write_b32 v17, v19"); e("s_setprio 0")
        self.stamp(9)
        pv(OB, PB, 1, 0); pv(OB, PB, 1, 1)
        SCR = 131072
        e("s_mul_i32 s20, s3, 2560"); e(f"s_add_u32 s20, s20, {SCR}")
        e("v_add_u32 v6, s20, v2"); e("v_lshlrev_b32 v7, 2, v1"); e("v_add_u32 v7, s20, v7")
        lk1 = self.lab("att_k1"); lx = self.lab("att_x")
        e("s_cmp_eq_u32 s7, 0"); e(f"s_cbranch_scc1 {lk1}")
        e(f"ds_write_b128 v6, v[{OA}:{OA+3}]"); e(f"ds_write_b128 v6, v[{OA+4}:{OA+7}] offset:1024"); e(f"ds_write_b32 v7, v{OA+8} offset:2048")
        for r in range(9): e(f"v_mov_b32 v{OA+r}, v{OB+r}")
        e(f"s_branch {lx}")
        self.a.label(lk1)
        e(f"ds_write_b128 v6, v[{OB}:{OB+3}]"); e(f"ds_write_b128 v6, v[{OB+4}:{OB+7}] offset:1024"); e(f"ds_write_b32 v7, v{OB+8} offset:2048")
        self.a.label(lx)
        e("s_xor_b32 s21, s3, 4"); e("s_mul_i32 s21, s21, 2560"); e(f"s_add_u32 s21, s21, {SCR}")
        e("v_add_u32 v6, s21, v2"); e("v_lshlrev_b32 v7, 2, v1"); e("v_add_u32 v7, s21, v7")
        e("s_waitcnt lgkmcnt(0)"); e("s_barrier")
        e(f"ds_read_b128 v[{SA}:{SA+3}], v6"); e(f"ds_read_b128 v[{SA+4}:{SA+7}], v6 offset:1024"); e(f"ds_read_b32 v{SA+8}, v7 offset:2048")
        e(f"v_mov_b32 v20, {fl(2.0**-24)}"); e(f"v_mov_b32 v21, {fl(2.0**40)}"); e(f"v_mov_b32 v22, 0x7f7fffff")
        e("s_waitcnt lgkmcnt(0)")
        for r in range(9): e(f"v_add_f32 v{OA+r}, v{OA+r}, v{SA+r}")
        e(f"v_max3_f32 v23, |v{OA}|, |v{OA+1}|, |v{OA+2}|"); e(f"v_max3_f32 v23, v23, |v{OA+3}|, |v{OA+4}|")
        e(f"v_max3_f32 v23, v23, |v{OA+5}|, |v{OA+6}|"); e(f"v_max_f32 v23, v23, |v{OA+7}|")
        e(f"v_cmp_ge_f32 vcc, v{OA+8}, v20"); e(f"v_cmp_le_f32 s[36:37], v{OA+8}, v21"); e(f"v_cmp_le_f32 s[38:39], v23, v22")
        e("s_and_b64 s[36:37], s[36:37], vcc"); e("s_and_b64 s[36:37], s[36:37], s[38:39]")
        lok = self.lab("att_ok")
        e("s_cmp_eq_u64 s[36:37], -1"); e(f"s_cbranch_scc1 {lok}")
        e(f"v_mov_b32 v3, {FLAG}"); e("v_mov_b32 v20, 1"); e("ds_write_b32 v3, v20"); e("s_waitcnt lgkmcnt(0)")
        self.a.label(lok)
        e(f"v_rcp_f32 v20, v{OA+8}")
        for r in range(8): e(f"v_mul_f32 v{OA+r}, v{OA+r}, v20")
        for q in range(4): e(f"v_cvt_pk_bf16_f32 v{SB+q}, v{OA+2*q}, v{OA+2*q+1}")
        e("s_barrier")
        e(f"v_mov_b32 v3, {FLAG}"); e("ds_read_b32 v20, v3")
        e(f"s_lshl_b32 s20, s{QB_}, 3"); e("s_lshl_b32 s21, s6, 1"); e("s_add_u32 s20, s20, s21"); e("s_add_u32 s20, s20, s7")
        e("s_lshl_b32 s20, s20, 15"); e(f"s_lshl_b32 s21, s{H}, 10"); e("s_add_u32 s22, s20, s21")
        e("s_waitcnt lgkmcnt(0)")
        e("v_readfirstlane_b32 s20, v20")
        lfin = self.lab("att_fin"); lslow = self.lab("att_slow")
        e("s_cmp_lg_u32 s33, 0"); e(f"s_cbranch_scc1 {lfin}")
        e("s_cmp_lg_u32 s20, 0"); e(f"s_cbranch_scc1 {lslow}")
        self.a.label(lfin)
        e(f"buffer_store_dwordx4 v[{SB}:{SB+3}], v2, s[16:19], s22 offen {ST}")
        e(f"s_branch {end}")
        self.a.label(lslow)
        e("s_mov_b32 s33, 8")
        e("s_lshl_b32 s20, s7, 15"); e(f"v_add_u32 v{AK}, s20, v2")
        e("v_mov_b32 v20, 0xff800000"); e("v_mov_b32 v21, 0xff800000")
        e("s_mov_b32 s34, 0")
        sl = self.lab("att_sl")
        self.a.label(sl)
        rdK(0, 0); e("s_waitcnt lgkmcnt(0)")
        e(f"v_mfma_f32_32x32x16_bf16 v[{SA}:{SA+15}], v[{KF}:{KF+3}], v[{QA}:{QA+3}], 0")
        e(f"v_mfma_f32_32x32x16_bf16 v[{SB}:{SB+15}], v[{KF}:{KF+3}], v[{QB}:{QB+3}], 0")
        for r in range(0, 16, 2): e(f"v_max3_f32 v20, v20, v{SA+r}, v{SA+r+1}")
        for r in range(0, 16, 2): e(f"v_max3_f32 v21, v21, v{SB+r}, v{SB+r+1}")
        e(f"v_add_u32 v{AK}, 1024, v{AK}")
        e("s_add_u32 s34, s34, 1"); e("s_cmp_lt_u32 s34, 32"); e(f"s_cbranch_scc1 {sl}")
        for r in (20, 21):
            e(f"v_mov_b32 v22, v{r}"); e(f"v_permlane32_swap_b32 v{r}, v22"); e(f"v_max_f32 v{r}, v{r}, v22")
        e("s_lshl_b32 s20, s3, 9"); e(f"s_add_u32 s20, s20, {SCR}")
        e("v_lshlrev_b32 v6, 2, v1"); e("v_add_u32 v7, s20, v6")
        e("s_barrier")
        e("ds_write_b32 v7, v20"); e("ds_write_b32 v7, v21 offset:256"); e("s_waitcnt lgkmcnt(0)"); e("s_barrier")
        e("s_xor_b32 s20, s3, 4"); e("s_lshl_b32 s20, s20, 9"); e(f"s_add_u32 s20, s20, {SCR}"); e("v_add_u32 v7, s20, v6")
        e("ds_read_b32 v22, v7"); e("ds_read_b32 v23, v7 offset:256"); e("s_waitcnt lgkmcnt(0)")
        e("v_max_f32 v20, v20, v22"); e("v_max_f32 v21, v21, v23")
        for r in range(16):
            e(f"v_sub_f32 v{CA+r}, 0, v20"); e(f"v_sub_f32 v{CB+r}, 0, v21")
        e("s_barrier")
        e(f"s_branch {lrestart}")
        self.a.label(end)
        self.phase_end()
        self.signal(lambda: (e(f"s_lshl_b32 s46, s{QB_}, 7"), e(f"s_lshl_b32 s47, s{H}, 2"), e("s_add_u32 s46, s46, s47"), e(f"s_add_u32 s46, s46, {F2}")))
        self.stamp(10)

    def proj_wvoff(self):
        e = self.e
        e("v_lshlrev_b32 v2, 4, v1")
        e("v_lshrrev_b32 v3, 3, v1"); e("v_and_b32 v4, 7, v1"); e("v_bfe_u32 v5, v3, 1, 1"); e("v_lshlrev_b32 v5, 2, v5")
        e("v_xor_b32 v4, v4, v5"); e("v_lshlrev_b32 v3, 10, v3"); e("v_lshl_add_u32 v3, v4, 4, v3")
        e("s_lshl_b32 s20, s5, 7"); e("v_add_u32 v3, s20, v3")

    def proj_epi_addr(self):
        e = self.e
        e("v_lshrrev_b32 v14, 2, v1"); e("v_and_b32 v15, 3, v1")
        e("s_and_b32 s20, s3, 1"); e("s_lshl_b32 s20, s20, 5"); e("s_lshl_b32 s21, s4, 6"); e("s_add_u32 s20, s20, s21")
        e("s_lshr_b32 s21, s3, 2"); e("s_lshl_b32 s21, s21, 4"); e("s_add_u32 s36, s20, s21")
        e("v_add_u32 v16, s36, v14"); e("v_lshlrev_b32 v16, 10, v16"); e("v_lshl_add_u32 v16, v15, 4, v16")
        e("s_bfe_u32 s20, s3, 0x10001"); e("s_lshl_b32 s20, s20, 6"); e("s_lshl_b32 s21, s5, 7"); e("s_add_u32 s32, s20, s21")
        e("v_lshlrev_b32 v17, 5, v15"); e("s_lshl_b32 s33, s32, 1")

    def proj_gate_loads(self, gate_chunk):
        e = self.e
        for kq in range(4):
            e(f"s_add_u32 s20, s33, {kq*12288 + gate_chunk*2048}")
            for hh in range(2):
                e(f"buffer_load_dwordx4 v[{160+8*kq+4*hh}:{163+8*kq+4*hh}], v17, s[28:31], s20 offen offset:{16*hh}")

    def proj_addr(self, natural, xbase, wbase):
        e = self.e
        e("s_and_b32 s20, s3, 1"); e("s_lshl_b32 s20, s20, 13"); e("s_lshr_b32 s21, s3, 2"); e("s_lshl_b32 s22, s21, 12")
        e("s_add_u32 s20, s20, s22"); e(f"s_add_u32 s20, s20, {xbase}"); e("v_add_u32 v8, s20, v2")
        e("v_lshrrev_b32 v4, 4, v1"); e("v_and_b32 v5, 15, v1"); e("v_lshrrev_b32 v6, 2, v5"); e("v_and_b32 v7, 3, v5")
        e("v_lshrrev_b32 v10, 1, v4"); e("v_and_b32 v11, 1, v4")
        e(f"v_lshl_add_u32 v12, v10, {3 if natural else 2}, v6"); e("v_lshlrev_b32 v12, 7, v12")
        e("v_bfe_u32 v13, v6, 1, 1"); e("s_bfe_u32 s20, s3, 0x10001"); e("v_xor_b32 v13, s20, v13")
        e("v_lshl_add_u32 v12, v13, 6, v12"); e("v_lshl_add_u32 v12, v11, 5, v12"); e("v_lshl_add_u32 v12, v7, 3, v12")
        e("s_lshl_b32 s22, s21, 13"); e(f"s_add_u32 s22, s22, {wbase}"); e("v_add_u32 v9, s22, v12")

    def proj_chunk(self, ACC, xoff, wreg, woff, natural):
        e = self.e
        tstep = (4 if natural else 8) * 128
        for ks in range(4):
            b = 96 + 8*ks
            e(f"ds_read_b128 v[{b}:{b+3}], v8 offset:{xoff + ks*1024}")
            e(f"ds_read_b64_tr_b16 v[{b+4}:{b+5}], v{wreg} offset:{woff + ks*2048}")
            e(f"ds_read_b64_tr_b16 v[{b+6}:{b+7}], v{wreg} offset:{woff + ks*2048 + tstep}")
        for ks in range(4):
            b = 96 + 8*ks
            e(f"s_waitcnt lgkmcnt({3*(3-ks)})")
            e(f"v_mfma_f32_32x32x16_bf16 v[{ACC}:{ACC+15}], v[{b+4}:{b+7}], v[{b}:{b+3}], v[{ACC}:{ACC+15}]")

    def proj_epilogue(self, ACC, srd_out, flags, stats):
        e = self.e
        e("s_barrier")
        e("s_mul_i32 s20, s3, 4608")
        e("v_and_b32 v18, 31, v1"); e("v_mul_u32_u24 v18, 144, v18"); e("v_lshrrev_b32 v19, 5, v1")
        e("v_lshl_add_u32 v18, v19, 4, v18"); e("v_add_u32 v18, s20, v18")
        for g in range(4): e(f"ds_write_b128 v18, v[{ACC+4*g}:{ACC+4*g+3}] offset:{32*g}")
        e("s_waitcnt vmcnt(0)")
        for q in range(4):
            for kq in (1,):
                e(f"v_pk_add_f32 v[{160+2*q}:{161+2*q}], v[{160+2*q}:{161+2*q}], v[{168+2*q}:{169+2*q}]")
                e(f"v_pk_add_f32 v[{176+2*q}:{177+2*q}], v[{176+2*q}:{177+2*q}], v[{184+2*q}:{185+2*q}]")
        for q in range(4):
            e(f"v_pk_add_f32 v[{160+2*q}:{161+2*q}], v[{160+2*q}:{161+2*q}], v[{176+2*q}:{177+2*q}]")
        for q in range(4):
            e(f"v_cvt_pk_bf16_f32 v{168+q}, v{160+2*q}, v{161+2*q}")
        for q in range(4):
            e(f"v_lshlrev_b32 v{160+2*q}, 16, v{168+q}"); e(f"v_and_b32 v{161+2*q}, 0xffff0000, v{168+q}")
        e("s_and_b32 s20, s3, 3"); e("s_mul_i32 s20, s20, 4608"); e("s_lshr_b32 s21, s3, 2"); e(f"s_mul_i32 s21, s21, {16*144}")
        e("s_add_u32 s20, s20, s21")
        e("v_mul_u32_u24 v18, 144, v14"); e("v_lshl_add_u32 v18, v15, 5, v18"); e("v_add_u32 v18, s20, v18")
        e("s_waitcnt lgkmcnt(0)"); e("s_barrier")
        e("ds_read_b128 v[48:51], v18"); e("ds_read_b128 v[52:55], v18 offset:16")
        e(f"ds_read_b128 v[56:59], v18 offset:{4*4608}"); e(f"ds_read_b128 v[60:63], v18 offset:{4*4608+16}")
        e("s_waitcnt lgkmcnt(0)")
        for q in range(4):
            e(f"v_pk_add_f32 v[{48+2*q}:{49+2*q}], v[{48+2*q}:{49+2*q}], v[{56+2*q}:{57+2*q}]")
        for q in range(4):
            e(f"v_lshlrev_b32 v{56+2*q}, 16, v{32+q}"); e(f"v_and_b32 v{57+2*q}, 0xffff0000, v{32+q}")
        for q in range(4):
            e(f"v_pk_fma_f32 v[{56+2*q}:{57+2*q}], v[{160+2*q}:{161+2*q}], v[{48+2*q}:{49+2*q}], v[{56+2*q}:{57+2*q}]")
        for q in range(4):
            e(f"v_cvt_pk_bf16_f32 v{32+q}, v{56+2*q}, v{57+2*q}")
        e(f"buffer_store_dwordx4 v[32:35], v16, {sr(srd_out,4)}, s32 offen {flags}")
        if stats:
            e("v_pk_add_f32 v[48:49], v[56:57], v[58:59]"); e("v_pk_add_f32 v[50:51], v[60:61], v[62:63]")
            e("v_pk_add_f32 v[48:49], v[48:49], v[50:51]"); e("v_add_f32 v48, v48, v49")
            for m in ("quad_perm:[1,0,3,2]", "quad_perm:[2,3,0,1]"):
                e(f"v_add_f32_dpp v48, v48, v48 {m} row_mask:0xf bank_mask:0xf")
            e(f"v_mul_f32 v48, {fl(1.0/32)}, v48")
            e("v_sub_f32 v50, 0, v48"); e("v_mov_b32 v51, v50")
            for q in range(4): e(f"v_pk_add_f32 v[{56+2*q}:{57+2*q}], v[{56+2*q}:{57+2*q}], v[50:51]")
            e("v_pk_mul_f32 v[52:53], v[56:57], v[56:57]")
            for q in range(1, 4): e(f"v_pk_fma_f32 v[52:53], v[{56+2*q}:{57+2*q}], v[{56+2*q}:{57+2*q}], v[52:53]")
            e("v_add_f32 v49, v52, v53")
            for m in ("quad_perm:[1,0,3,2]", "quad_perm:[2,3,0,1]"):
                e(f"v_add_f32_dpp v49, v49, v49 {m} row_mask:0xf bank_mask:0xf")
            self.srd(40, P_WS, WS_STX, 2048*128)
            e("v_add_u32 v18, s36, v14"); e("v_lshlrev_b32 v18, 7, v18")
            e("s_bfe_u32 s20, s3, 0x10001"); e("s_lshl_b32 s21, s5, 1"); e("s_add_u32 s20, s20, s21"); e("s_lshl_b32 s20, s20, 3")
            e("v_cmp_eq_u32 vcc, 0, v15"); e("s_and_saveexec_b64 s[44:45], vcc")
            e(f"buffer_store_dwordx2 v[48:49], v18, s[40:43], s20 offen {ST}")
            e("s_mov_b64 exec, s[44:45]")

    def p3(self):
        e = self.e
        self.srd(8, P_WS, WS_O, 2*MB); self.srd(12, P_WO, 0, 512*512*2)
        self.srd(16, P_X, 0, 2*MB); self.srd(24, P_WS, WS_X1, 2*MB); self.srd(28, P_WS, WS_MOD, 49152)
        self.proj_wvoff()
        self.proj_addr(False, 65536, 0)
        self.proj_epi_addr()
        def pre3():
            for m in range(10):
                sk = None
                if m == 9:
                    sk = self.lab("p3w"); e("s_cmp_lg_u32 s3, 0"); e(f"s_cbranch_scc1 {sk}")
                e(f"s_add_u32 s21, s3, {7*m}"); e("s_lshl_b32 s20, s21, 13"); e("s_lshl_b32 s21, s21, 10")
                self.dma(3, 12, "s20", "s_mov_b32 m0, s21")
                if sk: self.a.label(sk)
        def cO():
            e("s_lshr_b32 s46, s4, 2"); e("s_lshl_b32 s46, s46, 7"); e(f"s_add_u32 s46, s46, {F2}"); e("v_lshlrev_b32 v251, 2, v1")
        def cM(k):
            def f():
                e("s_and_b32 s46, s2, 7"); e("s_lshl_b32 s46, s46, 10"); e(f"s_add_u32 s46, s46, {F0 + 256*k}"); e("v_lshlrev_b32 v251, 2, v1")
            return f
        self.wait_flags([(cM(1), (1 << 64) - 1), (cM(2), (1 << 64) - 1), (cO, 0xffffffff)], pre=pre3, w7_after=False)
        self.stamp(11)
        e(f"s_mul_i32 s6, s4, {2*32*1024}"); e("s_lshl_b32 s21, s3, 10"); e("s_add_u32 s6, s6, s21")
        for c in range(4):
            for tt in range(2):
                e(f"s_add_u32 s20, s6, {tt*32*1024 + c*8*1024}")
                self.dma(2, 8, "s20", f"s_add_u32 m0, s21, {65536 + c*16384 + tt*8192}")
            if c < 3: e("s_barrier")
        e("buffer_load_dwordx4 v[32:35], v16, s[16:19], s32 offen")
        self.proj_gate_loads(2)
        ACC = 64
        for r in range(16): e(f"v_mov_b32 v{ACC+r}, 0")
        for c in range(4):
            e(f"s_waitcnt vmcnt({2*(3-c) + 9})"); e("s_barrier")
            if c == 0: self.stamp(35)
            self.proj_chunk(ACC, c*16384, 9, c*16384, False)
        self.stamp(36)
        self.proj_epilogue(ACC, 24, ST, True)
        self.stamp(37)
        self.phase_end()
        self.signal(lambda: (e("s_lshl_b32 s46, s4, 7"), e("s_lshl_b32 s47, s5, 2"), e("s_add_u32 s46, s46, s47"), e(f"s_add_u32 s46, s46, {F3}")))
        self.stamp(12)

    def p4(self):
        e = self.e
        RING = 65536; SL = 14336; D = 6; MODL = RING + D*SL
        PART = 155648
        Z1L = 135168
        self.srd(8, P_WS, WS_X1, 2*MB)
        self.srd(12, P_WS, WS_MOD, 49152)
        self.srd(16, P_WIN, 0, 512*1792*2)
        self.srd(28, P_WS, WS_Z2, 56*64*1024)
        self.srd(36, P_WS, WS_ST, 32*8*64*16)
        for m in range(2):
            d = 192 + m
            e(f"s_lshl_b32 s20, s3, 6"); e(f"s_add_u32 s20, s20, {512*m}")
            e(f"v_add_u32 v200, s20, v1")
            e(f"v_mul_u32_u24 v201, 4682, v200"); e(f"v_lshrrev_b32 v201, 16, v201")
            e(f"v_mul_u32_u24 v202, 14, v201"); e(f"v_sub_u32 v202, v200, v202")
            e(f"v_lshrrev_b32 v203, 1, v202")
            e(f"v_xor_b32 v204, 4, v203"); e(f"v_cmp_eq_u32 vcc, 3, v203"); e(f"v_cndmask_b32 v204, v204, v203, vcc")
            e(f"v_bfe_u32 v205, v201, 3, 1"); e(f"v_cmp_eq_u32 vcc, 1, v205"); e(f"v_cndmask_b32 v203, v203, v204, vcc")
            e(f"v_and_b32 v202, 1, v202"); e(f"v_lshl_or_b32 v202, v203, 1, v202")
            e(f"v_mul_u32_u24 v201, 3584, v201"); e(f"v_lshl_add_u32 v{d}, v202, 4, v201")
        e("s_lshl_b32 s7, s3, 10"); e(f"s_add_u32 s7, s7, {RING}")
        e("s_cmp_ge_u32 s3, 6"); e("s_cselect_b64 vcc, -1, 0"); e("v_cndmask_b32 v194, v193, v192, vcc")
        e("s_cselect_b32 s35, 0, 8192"); e("s_add_u32 s35, s35, s7")
        e("s_mul_i32 s33, s5, 224"); e("s_add_u32 s34, s33, 1792")
        def src(stage):
            e(f"s_add_u32 s23, s{34 if stage < 8 else 33}, {(stage % 8)*64*3584}")
        def issue(stage, cnt):
            src(stage)
            for m in range(cnt):
                self.dma(192+m, 16, "s23", f"s_add_u32 m0, s7, {(stage % D)*SL + m*8192}")
        def pre4():
            self.mod_issue(12, 3)
            for st in range(D-1):
                src(st)
                self.dma(192, 16, "s23", f"s_add_u32 m0, s7, {st*SL}")
                self.dma(194, 16, "s23", f"s_add_u32 m0, s35, {st*SL}")
            e(f"s_waitcnt vmcnt({2*(D-1)})")
            self.mod_finish(MODL)
        e("v_lshrrev_b32 v3, 4, v1"); e("v_and_b32 v4, 15, v1"); e("v_lshrrev_b32 v5, 2, v4"); e("v_and_b32 v6, 3, v4")
        e("v_lshl_add_u32 v7, v3, 3, v5"); e("v_mul_u32_u24 v7, 224, v7"); e("v_lshl_add_u32 v7, v6, 3, v7"); e(f"v_add_u32 v7, {RING}, v7")
        e("v_and_b32 v8, 1, v3"); e("v_cmp_eq_u32 vcc, 1, v8")
        e("s_lshr_b32 s20, s3, 1")
        for c in range(2):
            e(f"s_lshl_b32 s21, s20, 1"); e(f"s_add_u32 s21, s21, {c}")
            e("s_xor_b32 s22, s21, 4"); e("s_cmp_eq_u32 s21, 3"); e("s_cselect_b32 s22, s21, s22")
            e("v_mov_b32 v9, s21"); e("v_mov_b32 v10, s22"); e("v_cndmask_b32 v9, v9, v10, vcc")
            e(f"v_lshl_add_u32 v{200+c}, v9, 5, v7"); e(f"v_add_u32 v{202+c}, {4*SL}, v{200+c}")
        e("s_and_b32 s21, s3, 1"); e("s_lshl_b32 s21, s21, 5"); e("v_add_u32 v9, s21, v4"); e("v_lshlrev_b32 v9, 10, v9")
        for m in range(4):
            e(f"v_add_u32 v10, {4*m}, v3"); e(f"v_xor_b32 v10, v10, v4"); e(f"v_lshl_add_u32 v{208+m}, v10, 4, v9")
        def cX():
            e("s_lshl_b32 s46, s4, 7"); e(f"s_add_u32 s46, s46, {F3}"); e("v_lshlrev_b32 v251, 2, v1")
        self.wait_flags([(cX, 0xff)], pre=lambda: (pre4(), e("s_waitcnt lgkmcnt(0)")))
        self.stamp(13)
        e("s_lshl_b32 s6, s4, 16")
        self.ln_loads(8, 6)
        self.srd(40, P_WS, WS_STX, 2048*128)
        e("s_lshl_b32 s20, s4, 6"); e("s_lshl_b32 s21, s3, 3"); e("s_add_u32 s20, s20, s21"); e("s_lshl_b32 s20, s20, 7")
        e("v_lshlrev_b32 v6, 7, v3"); e("v_lshl_add_u32 v6, v4, 3, v6")
        e("buffer_load_dwordx2 v[8:9], v6, s[40:43], s20 offen")
        e("buffer_load_dwordx2 v[10:11], v6, s[40:43], s20 offen offset:512")
        e("s_waitcnt vmcnt(0)")
        self.stamp(14)
        self.ln2_prepare()
        e("s_barrier")
        self.ln_finish(MODL)
        ACCA, ACCB = 212, 228
        for r in range(32): e(f"v_mov_b32 v{ACCA+r}, 0")
        e("s_waitcnt lgkmcnt(0)"); e("s_barrier")
        self.stamp(15)
        NS = 16
        c0 = -2.0*math.sqrt(2.0/math.pi)*LOG2E
        c1 = c0*0.044715
        def gelu(accs):
            e(f"s_mov_b32 s20, {fl(c1)}"); e(f"v_mov_b32 v20, {fl(c0)}")
            for i0 in range(0, len(accs), 4):
                grp = accs[i0:i0+4]
                for k, z in enumerate(grp): e(f"v_mul_f32 v{24+k}, v{z}, v{z}")
                for k, z in enumerate(grp): e(f"v_fma_f32 v{24+k}, v{24+k}, s20, v20")
                for k, z in enumerate(grp): e(f"v_mul_f32 v{24+k}, v{24+k}, v{z}")
                for k, z in enumerate(grp): e(f"v_exp_f32 v{24+k}, v{24+k}")
                for k, z in enumerate(grp): e(f"v_add_f32 v{24+k}, 1.0, v{24+k}")
                for k, z in enumerate(grp): e(f"v_rcp_f32 v{24+k}, v{24+k}")
                for k, z in enumerate(grp): e(f"v_mul_f32 v{z}, v{z}, v{24+k}")
        v1l = self.lab("win_v1"); join = self.lab("win_join")
        e("s_cmp_ge_u32 s3, 6"); e(f"s_cbranch_scc1 {v1l}")
        for var in range(2):
            nt = 2 if var == 0 else 1
            cnt = 2 if var == 0 else 1
            if var == 1: self.a.label(v1l)
            def reads(stage, ks):
                n = 2*(stage % 8) + ks; buf = ks; slot = stage % D
                out = []
                if stage < 8:
                    for rt in range(2):
                        b = 64 + 8*n + 4*rt
                        out.append(f"ds_read_b128 v[{b}:{b+3}], v{208 + (n & 3)} offset:{rt*16384 + (n >> 2)*256}")
                for c in range(nt):
                    b = 32 + 16*(stage % 2) + 8*ks + 4*c
                    areg, off = (200 + c, slot*SL) if slot < 4 else (202 + c, (slot-4)*SL)
                    for t in range(2):
                        out.append(f"ds_read_b64_tr_b16 v[{b+2*t}:{b+2*t+1}], v{areg} offset:{off + (32*ks + 4*t)*224}")
                return out
            def mfmas(stage, ks):
                buf = ks; ACC = ACCA if stage < 8 else ACCB
                n = 2*(stage % 8) + ks
                out = []
                for c in range(nt):
                    for rt in range(2):
                        acc = ACC + 4*(rt*2 + c)
                        x = 64 + 8*n + 4*rt; w = 32 + 16*(stage % 2) + 8*ks + 4*c
                        A, B = (x, w) if stage < 8 else (w, x)
                        out.append(f"v_mfma_f32_16x16x32_bf16 v[{acc}:{acc+3}], v[{A}:{A+3}], v[{B}:{B+3}], v[{acc}:{acc+3}]")
                return out
            def inter(ms, rs):
                ri = 0
                for m in ms:
                    e(m)
                    for _ in range(2):
                        if ri < len(rs): e(rs[ri]); ri += 1
                for r in rs[ri:]: e(r)
            for r in reads(0, 0): e(r)
            for r in reads(0, 1): e(r)
            for n in range(NS):
                if n + 1 < NS:
                    if n + 1 >= D - 1:
                        allowed = cnt * len([s_ for s_ in range(max(n+2, D-1), min(n+D-1, NS))])
                        e(f"s_waitcnt vmcnt({allowed})")
                    e("s_barrier")
                if n == 8 and var == 0:
                    nx = self.lab("win_pub")
                    e("s_cmp_lg_u32 s3, 0"); e(f"s_cbranch_scc1 {nx}")
                    e("v_lshlrev_b32 v5, 3, v1"); e(f"v_add_u32 v5, {PART}, v5")
                    for q in range(4): e(f"ds_read_b64 v[{8+2*q}:{9+2*q}], v5 offset:{512*q}")
                    e("s_waitcnt lgkmcnt(0)")
                    e("v_pk_add_f32 v[8:9], v[8:9], v[10:11]"); e("v_pk_add_f32 v[12:13], v[12:13], v[14:15]")
                    e("v_pk_add_f32 v[8:9], v[8:9], v[12:13]")
                    e(f"v_mov_b32 v10, s{S_NONCE}"); e(f"v_mov_b32 v11, s{S_NONCE}")
                    e("v_lshlrev_b32 v6, 4, v1")
                    e("s_lshl_b32 s20, s4, 13"); e("s_lshl_b32 s21, s5, 10"); e("s_add_u32 s21, s21, s20")
                    e(f"buffer_store_dwordx4 v[8:11], v6, s[36:39], s21 offen {ST}")
                    self.a.label(nx)
                full = (n == 8)
                r0 = reads(n + 1, 0) if n + 1 < NS else []
                r1 = reads(n + 1, 1) if n + 1 < NS else []
                e(f"s_waitcnt lgkmcnt({0 if full else len(reads(n, 1))})")
                inter(mfmas(n, 0), r0)
                e(f"s_waitcnt lgkmcnt({len(r0)})")
                inter(mfmas(n, 1), r1)
                st = n + D - 1
                if st < NS: issue(st, cnt)
                if n == 7:
                    self.stamp(31)
                    accs = [ACCA + 4*(rt*2 + c) + r for c in range(nt) for rt in range(2) for r in range(4)]
                    gelu(accs)
                    e("v_lshrrev_b32 v3, 4, v1"); e("v_and_b32 v4, 15, v1")
                    regs = []
                    for rt in range(2):
                        for r in range(4):
                            sreg = (8, 10, 12, 14, 16, 18, 28, 30)[rt*4 + r]
                            a0 = ACCA + 4*(rt*2) + r
                            e(f"v_mov_b32 v{sreg}, v{a0}"); e(f"v_mul_f32 v{sreg+1}, v{a0}, v{a0}")
                            for c in range(1, nt):
                                a_ = ACCA + 4*(rt*2 + c) + r
                                e(f"v_add_f32 v{sreg}, v{sreg}, v{a_}"); e(f"v_fmac_f32 v{sreg+1}, v{a_}, v{a_}")
                            regs += [sreg, sreg+1]
                    self.dpp_reduce16(regs)
                    e("s_and_b32 s20, s3, 1"); e("s_lshl_b32 s20, s20, 8"); e("s_lshr_b32 s21, s3, 1"); e("s_lshl_b32 s21, s21, 9")
                    e("s_add_u32 s20, s20, s21"); e(f"s_add_u32 s20, s20, {PART}")
                    e("v_lshlrev_b32 v5, 5, v3"); e("v_add_u32 v5, s20, v5")
                    e("v_cmp_eq_u32 vcc, 0, v4"); e("s_and_saveexec_b64 s[44:45], vcc")
                    for rt in range(2):
                        for r in range(4):
                            sreg = (8, 10, 12, 14, 16, 18, 28, 30)[rt*4 + r]
                            e(f"ds_write_b64 v5, v[{sreg}:{sreg+1}] offset:{rt*128 + r*8}")
                    e("s_mov_b64 exec, s[44:45]")
                    e("s_waitcnt lgkmcnt(0)") if False else None
                    self.stamp(33)
                if n == 7:
                    e("s_waitcnt lgkmcnt(0)")
            self.stamp(32)
            accs = [ACCB + 4*(rt*2 + c) + r for c in range(nt) for rt in range(2) for r in range(4)]
            gelu(accs)
            e("s_and_b32 s22, s3, 1"); e(f"s_mul_i32 s22, s22, {2*7*512}"); e("s_lshr_b32 s21, s3, 1"); e("s_lshl_b32 s21, s21, 10")
            e("s_add_u32 s22, s22, s21"); e(f"s_add_u32 s22, s22, {Z1L}")
            e("v_lshlrev_b32 v7, 3, v1"); e("v_add_u32 v7, s22, v7")
            for c in range(nt):
                for rt in range(2):
                    acc = ACCB + 4*(rt*2 + c); pk = 32 + 2*(rt + 2*c)
                    e(f"v_cvt_pk_bf16_f32 v{pk}, v{acc}, v{acc+1}"); e(f"v_cvt_pk_bf16_f32 v{pk+1}, v{acc+2}, v{acc+3}")
                    e(f"ds_write_b64 v7, v[{pk}:{pk+1}] offset:{rt*7*512 + c*512}")
            if var == 0:
                nx = self.lab("win_nx")
                e("s_cmp_lg_u32 s3, 0"); e(f"s_cbranch_scc1 {nx}")
                e("v_lshlrev_b32 v5, 3, v1"); e(f"v_add_u32 v5, {PART}, v5")
                e("v_lshlrev_b32 v6, 4, v1"); e("s_lshl_b32 s20, s4, 13")
                e("s_mov_b32 s47, 0")
                lp = self.lab("stp"); dn = self.lab("std")
                self.a.label(lp)
                for jj in range(8):
                    e(f"s_add_u32 s21, s20, {jj*1024}")
                    e(f"buffer_load_dwordx4 v[{96+4*jj}:{99+4*jj}], v6, s[36:39], s21 offen {ST}")
                e("s_add_u32 s47, s47, 1"); e(f"s_cmp_gt_u32 s47, {SPIN_CAP}"); e(f"s_cbranch_scc1 {dn}")
                e("s_waitcnt vmcnt(0)")
                e("s_mov_b64 s[42:43], -1")
                for jj in range(8):
                    e(f"v_cmp_eq_u32 vcc, s{S_NONCE}, v{98+4*jj}"); e("s_and_b64 s[42:43], s[42:43], vcc")
                    e(f"v_cmp_eq_u32 vcc, s{S_NONCE}, v{99+4*jj}"); e("s_and_b64 s[42:43], s[42:43], vcc")
                e("s_cmp_eq_u64 s[42:43], -1")
                if not Gen.NOHOP: e(f"s_cbranch_scc0 {lp}")
                self.a.label(dn)
                self._where = "stat granules"; self.diag(47, 98)
                e("s_waitcnt vmcnt(0)")
                for jj in range(1, 8):
                    e(f"v_add_f32 v96, v96, v{96+4*jj}"); e(f"v_add_f32 v97, v97, v{97+4*jj}")
                e(f"v_mul_f32 v96, {fl(1.0/896)}, v96"); e(f"v_mul_f32 v97, {fl(1.0/896)}, v97")
                e("v_fma_f32 v97, -v96, v96, v97"); e("v_max_f32 v97, 0, v97"); e(f"v_add_f32 v97, {fl(1e-5)}, v97")
                e("v_rsq_f32 v99, v97"); e("v_mul_f32 v98, v96, v99"); e("v_sub_f32 v98, 0, v98")
                e(f"ds_write_b64 v5, v[98:99] offset:2048")
                self.a.label(nx)
            e("s_waitcnt lgkmcnt(0)"); e("s_barrier")
            self.stamp(34)
            e("v_lshrrev_b32 v3, 4, v1"); e("v_and_b32 v4, 15, v1")
            e("s_and_b32 s20, s3, 1"); e("s_lshl_b32 s20, s20, 8"); e(f"s_add_u32 s20, s20, {PART + 2048}")
            e("v_lshlrev_b32 v5, 5, v3"); e("v_add_u32 v5, s20, v5")
            for rt in range(2):
                e(f"ds_read_b128 v[{64+8*rt}:{67+8*rt}], v5 offset:{rt*128}")
                e(f"ds_read_b128 v[{68+8*rt}:{71+8*rt}], v5 offset:{rt*128+16}")
            e("v_and_b32 v6, 1, v3"); e("v_lshlrev_b32 v5, 9, v6"); e("v_lshrrev_b32 v6, 1, v3"); e("v_lshl_add_u32 v5, v6, 8, v5")
            e("v_lshl_add_u32 v5, v4, 4, v5")
            e("s_and_b32 s20, s3, 1"); e("s_lshl_b32 s21, s4, 1"); e("s_add_u32 s20, s20, s21"); e("s_lshl_b32 s20, s20, 10")
            e("s_mul_i32 s21, s5, 7"); e("s_lshr_b32 s22, s3, 1"); e("s_lshl_b32 s22, s22, 1"); e("s_add_u32 s21, s21, s22")
            e("s_lshl_b32 s21, s21, 16"); e("s_add_u32 s20, s20, s21")
            e("s_waitcnt lgkmcnt(0)")
            for c in range(nt):
                e(f"s_add_u32 s21, s20, {c*65536}")
                pk = 32 + 4*c
                for rt in range(2):
                    acc = ACCA + 4*(rt*2 + c)
                    for r in range(4):
                        e(f"v_fma_f32 v{acc+r}, v{acc+r}, v{64+8*rt+2*r+1}, v{64+8*rt+2*r}")
                    e(f"v_cvt_pk_bf16_f32 v{pk+2*rt}, v{acc}, v{acc+1}"); e(f"v_cvt_pk_bf16_f32 v{pk+2*rt+1}, v{acc+2}, v{acc+3}")
                e(f"v_permlane16_swap_b32 v{pk}, v{pk+2}"); e(f"v_permlane16_swap_b32 v{pk+1}, v{pk+3}")
                e(f"buffer_store_dwordx4 v[{pk}:{pk+3}], v5, s[28:31], s21 offen {ST}")
            if var == 0: e(f"s_branch {join}")
        self.a.label(join)
        self.phase_end()
        self.signal(lambda: (e("s_lshl_b32 s46, s5, 7"), e("s_lshl_b32 s47, s4, 2"), e("s_add_u32 s46, s46, s47"), e(f"s_add_u32 s46, s46, {F4}")))
        self.stamp(16)

    def p5(self):
        e = self.e
        end = self.lab("sp_end")
        Z1L = 135168
        self.srd(8, P_WSP, 0, 2048*2048*2)
        self.srd(12, P_WS, WS_Z2, 56*64*1024)
        self.srd(24, P_WS, WS_Y, 64*56*1024)
        self.srd(28, P_BSP, 0, 4096)
        SL = 22528; D = self.SPD; NST = 32
        e(f"s_mov_b32 s44, {(-(D-1)*SL) & 0xffffffff}"); e(f"s_mov_b32 s45, {SL}")
        e("v_lshlrev_b32 v2, 4, v1"); e("v_lshrrev_b32 v3, 4, v1"); e("v_and_b32 v4, 15, v1")
        def cZ():
            e("s_lshl_b32 s46, s5, 7"); e(f"s_add_u32 s46, s46, {F4}"); e("v_lshlrev_b32 v251, 2, v1")
        lp = self.lab("sp_prod")
        e("s_cmp_ge_u32 s3, 4"); e(f"s_cbranch_scc1 {lp}")
        e("s_and_b32 s20, s3, 1"); e("s_lshl_b32 s21, s4, 2"); e("s_lshl_b32 s22, s20, 1"); e("s_add_u32 s21, s21, s22")
        e("v_lshlrev_b32 v5, 1, v4"); e("s_lshl_b32 s22, s21, 5")
        e("buffer_load_ushort v20, v5, s[28:31], s22 offen"); e("buffer_load_ushort v21, v5, s[28:31], s22 offen offset:32")
        e("s_bfe_u32 s23, s3, 0x10001"); e("s_lshl_b32 s23, s23, 2")
        e("v_lshrrev_b32 v7, 1, v3"); e("v_lshlrev_b32 v7, 9, v7"); e("v_lshl_add_u32 v7, v4, 4, v7")
        e("v_and_b32 v8, 1, v3"); e("v_lshl_add_u32 v7, v8, 3, v7")
        e("s_lshl_b32 s21, s4, 1"); e("s_add_u32 s21, s21, s20"); e("s_mul_i32 s21, s21, 56")
        e("s_mul_i32 s6, s5, 7"); e("s_add_u32 s21, s21, s6"); e("s_add_u32 s21, s21, s23"); e("s_lshl_b32 s35, s21, 10")
        e(f"s_mul_i32 s6, s20, {2*7*512}"); e("s_lshl_b32 s21, s23, 9"); e("s_add_u32 s6, s6, s21"); e(f"s_add_u32 s6, s6, {Z1L}")
        e("v_lshlrev_b32 v9, 3, v1"); e("v_add_u32 v9, s6, v9")
        e("s_and_b32 s20, s3, 1"); e("s_lshl_b32 s20, s20, 12"); e("v_lshlrev_b32 v5, 7, v4"); e("v_add_u32 v5, s20, v5")
        e("v_lshrrev_b32 v8, 1, v4")
        for ks in range(2):
            e(f"v_add_u32 v6, {4*ks}, v3"); e(f"v_xor_b32 v6, v6, v8"); e(f"v_lshl_add_u32 v{200+ks}, v6, 4, v5")
        e("s_bfe_u32 s20, s3, 0x10001"); e("s_lshl_b32 s20, s20, 13"); e("s_add_u32 s20, s20, 8192"); e("v_add_u32 v202, s20, v2")
        ZR = 176
        for tt in range(2):
            for f in range(4):
                b = ZR + 2*(tt*4 + f)
                e(f"ds_read_b64 v[{b}:{b+1}], v9 offset:{tt*7*512 + f*512}")
        e("s_waitcnt lgkmcnt(0)")
        ACC = 128
        for r in range(32): e(f"v_mov_b32 v{ACC+r}, 0")
        e("s_barrier")
        LOOK = self.ZLOOK
        if self.ZTOUCH:
            e("s_and_b32 s20, s4, 7"); e("s_mul_i32 s20, s20, 14"); e("v_add_u32 v196, s20, v1")
            e("v_lshrrev_b32 v197, 4, v196"); e("v_lshlrev_b32 v197, 16, v197")
            e("v_bfe_u32 v198, v196, 3, 1"); e("v_lshl_add_u32 v197, v198, 10, v197")
            e("v_and_b32 v198, 7, v196"); e("v_lshl_add_u32 v196, v198, 7, v197")
            e("s_mul_i32 s43, s5, 0x70000"); e(f"s_add_u32 s43, s43, {(D-1)*2048}")
            e("s_cmp_eq_u32 s3, 0"); e("s_cselect_b32 s42, 0x3fff, 0")
            tk = self.lab("sp_tk")
            e("s_cmp_lg_u32 s3, 0"); e(f"s_cbranch_scc1 {tk}")
            e("s_mov_b64 exec, 0x3fff")
            for i in range(LOOK - (D-1)):
                e(f"s_add_u32 s20, s43, {i*2048}")
                e("buffer_load_dword v199, v196, s[12:15], s20 offen")
            e("s_mov_b64 exec, -1")
            self.a.label(tk)
            e(f"s_add_u32 s43, s43, {(LOOK-(D-1))*2048}")
        l3 = self.lab("sp_3"); lepi = self.lab("sp_epi")
        e("s_barrier")
        self.stamp(18)
        e("s_bitcmp1_b32 s3, 1"); e(f"s_cbranch_scc1 {l3}")
        for jj in range(2):
            nf = 4 if jj == 0 else 3
            if jj == 1: self.a.label(l3)
            def reads(ks, buf, nxt):
                b = 32 + 24*buf; ab = 203 if nxt else 200
                for tt in range(2): yield f"ds_read_b128 v[{b+4*tt}:{b+4*tt+3}], v{ab+ks} offset:{tt*2048}"
                for f in range(nf): yield f"ds_read_b128 v[{b+8+4*f}:{b+8+4*f+3}], v{ab+2} offset:{f*2048 + ks*1024}"
            def mf(buf):
                b = 32 + 24*buf
                for f in range(nf):
                    for tt in range(2):
                        acc = ACC + 4*(tt*4 + f)
                        yield f"v_mfma_f32_16x16x32_bf16 v[{acc}:{acc+3}], v[{b+8+4*f}:{b+8+4*f+3}], v[{b+4*tt}:{b+4*tt+3}], v[{acc}:{acc+3}]"
            def interleave(ms, rs):
                ms = list(ms); rs = list(rs)
                if self.X_NOMFMA: ms = []
                if self.X_NOREAD: rs = []
                ri = 0
                for i, m in enumerate(ms):
                    e(m)
                    for _ in range(self.RPG):
                        if ri < len(rs): e(rs[ri]); ri += 1
                for r in rs[ri:]: e(r)
            for r in reads(0, 0, False): e(r)
            e("s_mov_b32 s36, 0"); e(f"s_mov_b32 s37, {SL}"); e("s_mov_b32 s38, 1")
            loop = self.lab("sp_loop")
            self.a.label(loop)
            e("s_barrier")
            for k in range(3): e(f"v_add_u32 v{203+k}, s37, v{200+k}")
            if self.ZTOUCH and jj == 0:
                tk2 = self.lab("sp_tk2")
                e("s_cmp_lg_u32 s3, 0"); e(f"s_cbranch_scc1 {tk2}")
                e(f"s_cmp_ge_u32 s36, {NST} - {LOOK}".replace(f"{NST} - {LOOK}", str(NST - LOOK))); e(f"s_cbranch_scc1 {tk2}")
                e("s_mov_b64 exec, 0x3fff")
                e("buffer_load_dword v199, v196, s[12:15], s43 offen")
                e("s_mov_b64 exec, -1")
                e("s_add_u32 s43, s43, 2048")
                self.a.label(tk2)
            e(f"s_waitcnt lgkmcnt(0)")
            interleave(mf(0), reads(1, 1, False))
            e(f"s_waitcnt lgkmcnt(0)")
            interleave(mf(1), reads(0, 0, True))
            for k in range(3): e(f"v_mov_b32 v{200+k}, v{203+k}")
            e("s_add_u32 s38, s38, 1"); e(f"s_cmp_eq_u32 s38, {D}")
            e(f"s_cselect_b32 s37, s44, s45"); e(f"s_cselect_b32 s38, 0, s38")
            e("s_add_u32 s36, s36, 1"); e(f"s_cmp_lt_u32 s36, {NST}"); e(f"s_cbranch_scc1 {loop}")
            if jj == 0: e(f"s_branch {lepi}")
        self.a.label(lepi)
        self.stamp(19)
        e("s_waitcnt vmcnt(0) lgkmcnt(0)")
        e("v_lshlrev_b32 v20, 16, v20"); e("v_lshlrev_b32 v21, 16, v21")
        for f in range(4):
            if f == 3:
                e("s_bitcmp1_b32 s3, 1"); e(f"s_cbranch_scc1 {end}")
            pk = 32 + 4*f
            for tt in range(2):
                acc = ACC + 4*(tt*4 + f); b = ZR + 2*(tt*4 + f)
                for q in range(2):
                    e(f"v_lshlrev_b32 v22, 16, v{b+q}"); e(f"v_and_b32 v23, 0xffff0000, v{b+q}")
                    e(f"v_add_f32 v24, v{acc+2*q}, v{20+tt}"); e(f"v_add_f32 v25, v{acc+2*q+1}, v{20+tt}")
                    e(f"v_mul_f32 v22, v22, v24"); e(f"v_mul_f32 v23, v23, v25")
                    e(f"v_cvt_pk_bf16_f32 v{pk+2*tt+q}, v22, v23")
            e(f"v_permlane16_swap_b32 v{pk}, v{pk+2}"); e(f"v_permlane16_swap_b32 v{pk+1}, v{pk+3}")
            e(f"buffer_store_dwordx4 v[{pk}:{pk+3}], v2, s[24:27], s35 offen offset:{f*1024} {ST}")
        e(f"s_branch {end}")
        self.a.label(lp)
        e("s_and_b32 s7, s3, 3")
        e("v_lshrrev_b32 v5, 3, v1"); e("v_and_b32 v6, 7, v1")
        for m in range(2):
            e(f"s_lshl_b32 s20, s7, 3"); e(f"s_add_u32 s20, s20, {32*m}")
            e(f"v_add_u32 v8, s20, v5"); e(f"v_bfe_u32 v9, v8, 1, 3"); e(f"v_xor_b32 v9, v9, v6")
            e(f"v_lshlrev_b32 v8, 12, v8"); e(f"v_lshl_add_u32 v{192+m}, v9, 4, v8")
        e("s_lshl_b32 s6, s4, 18")
        e("s_mul_i32 s32, s5, 0x70000"); e("s_lshr_b32 s20, s7, 1"); e("s_lshl_b32 s20, s20, 16"); e("s_add_u32 s32, s32, s20")
        e("s_and_b32 s20, s7, 1"); e("s_lshl_b32 s20, s20, 10"); e("s_add_u32 s32, s32, s20")
        e("s_lshl_b32 s33, s7, 10")
        e("s_mov_b32 s34, s33")
        def pre5():
            for st in range(D-1):
                for m in range(2): self.dma(192+m, 8, "s6", f"s_add_u32 m0, s34, {st*SL + m*4096}")
                e("s_add_u32 s6, s6, 128")
        self.wait_flags([(cZ, 0xffffffff)], pre=pre5)
        self.stamp(17)
        l5 = self.lab("sp_p5")
        e("s_cmp_ge_u32 s7, 2"); e(f"s_cbranch_scc1 {l5}")
        for var in range(2):
            nz = 4 if var == 0 else 3
            cnt = 2 + nz
            if var == 1: self.a.label(l5)
            def issue_z():
                for m in range(nz):
                    e(f"s_add_u32 s23, s32, {2*m*65536}")
                    self.dma(2, 12, "s23", f"s_add_u32 m0, s34, {8192 + m*4096}")
                e("s_add_u32 s32, s32, 2048")
            def issue():
                if self.X_NODMA: return
                for m in range(2): self.dma(192+m, 8, "s6", f"s_add_u32 m0, s34, {m*4096}")
                e("s_add_u32 s6, s6, 128")
                issue_z()
            for st in range(D-1):
                issue_z(); e(f"s_add_u32 s34, s34, {SL}")
            e(f"s_waitcnt vmcnt({nz*(D-2)})"); e("s_barrier")
            e("s_mov_b32 s36, 0"); e(f"s_mov_b32 s38, {D-1}")
            loop = self.lab("sp_ploop"); lni = self.lab("sp_ni"); lw = self.lab("sp_w"); le = self.lab("sp_e"); lb = self.lab("sp_b")
            self.a.label(loop)
            e(f"s_cmp_ge_u32 s36, {NST-D+2}"); e(f"s_cbranch_scc1 {lw}")
            e(f"s_cmp_lt_u32 s36, {D-3}"); e(f"s_cbranch_scc1 {le}")
            e(f"s_waitcnt vmcnt({cnt*(D-3)})"); e(f"s_branch {lb}")
            self.a.label(le)
            e(f"s_waitcnt vmcnt({nz*(D-3)})")
            self.a.label(lb)
            e("s_barrier")
            e(f"s_cmp_ge_u32 s36, {NST-D+1}"); e(f"s_cbranch_scc1 {lni}")
            issue()
            e("s_add_u32 s38, s38, 1"); e(f"s_cmp_eq_u32 s38, {D}"); e(f"s_cselect_b32 s39, s44, s45"); e(f"s_cselect_b32 s38, 0, s38")
            e("s_add_u32 s34, s34, s39"); e(f"s_branch {lni}")
            self.a.label(lw)
            e("s_waitcnt vmcnt(0)"); e("s_barrier")
            self.a.label(lni)
            e("s_add_u32 s36, s36, 1"); e(f"s_cmp_lt_u32 s36, {NST}"); e(f"s_cbranch_scc1 {loop}")
            if var == 0: e(f"s_branch {end}")
        self.a.label(end)
        self.phase_end()
        self.signal(lambda: (e("s_lshl_b32 s46, s4, 7"), e("s_lshl_b32 s47, s5, 2"), e("s_add_u32 s46, s46, s47"), e(f"s_add_u32 s46, s46, {F5}")))
        self.stamp(20)

    def p6(self):
        e = self.e
        self.srd(8, P_WS, WS_Y, 64*56*1024); self.srd(12, P_WOUT, 0, 896*512*2)
        self.srd(16, P_WS, WS_X1, 2*MB); self.srd(24, P_OUT, 0, 2*MB); self.srd(28, P_WS, WS_MOD, 49152)
        XR = 114688; XS = 16384; NCH = 7; NSLOT = 3
        self.proj_wvoff()
        self.proj_addr(True, XR, 0)
        e("v_add_u32 v10, 0x10000, v9")
        self.proj_epi_addr()
        def pre6():
            for m in range(16):
                e(f"s_add_u32 s21, s3, {7*m}"); e("s_lshl_b32 s20, s21, 13"); e("s_lshl_b32 s21, s21, 10")
                self.dma(3, 12, "s20", "s_mov_b32 m0, s21")
        def cY():
            e("s_lshl_b32 s46, s4, 7"); e(f"s_add_u32 s46, s46, {F5}"); e("v_lshlrev_b32 v251, 2, v1")
        self.wait_flags([(cY, 0xff)], pre=pre6, w7_after=False)
        self.stamp(21)
        e(f"s_mul_i32 s6, s4, {2*56*1024}"); e("s_lshl_b32 s21, s3, 10"); e("s_add_u32 s6, s6, s21")
        def issue_x(ch):
            for tt in range(2):
                e(f"s_add_u32 s20, s6, {tt*56*1024 + ch*8*1024}")
                self.dma(2, 8, "s20", f"s_add_u32 m0, s21, {XR + (ch % NSLOT)*XS + tt*8192}")
        issue_x(0); e("s_barrier"); issue_x(1); e("s_barrier"); issue_x(2)
        e("buffer_load_dwordx4 v[32:35], v16, s[16:19], s32 offen")
        self.proj_gate_loads(5)
        ACC = 64
        for r in range(16): e(f"v_mov_b32 v{ACC+r}, 0")
        for ch in range(NCH):
            w = {0: 4 + 9, 1: 2 + 9, 2: 9 + 2}.get(ch, 2*(min(NCH - 1, ch + 1) - ch))
            e(f"s_waitcnt vmcnt({w})")
            e("s_barrier")
            if ch == 0: self.stamp(38)
            if ch >= 1 and ch + 2 < NCH: issue_x(ch + 2)
            wreg, woff = (9, ch*16384) if ch < 3 else (10, ch*16384 - 65536) if ch >= 4 else (9, ch*16384)
            self.proj_chunk(ACC, (ch % NSLOT)*XS, wreg, woff, True)
        self.stamp(39)
        self.proj_epilogue(ACC, 24, "", False)
        self.stamp(22)


HEADER = open('cdna_kernels/' + NAME + '.s.ref').read().split('; Override launch geometry')[0]

def build(stamps=False, hstamp=-1):
    Gen.STAMPS = stamps
    g = Gen()
    endl = "L_exit"
    g.prologue(endl)
    g.p01(); g.p2(); g.p3(); g.p4(); g.p5(); g.p6()
    if stamps and Gen.GSTAMP:
        e = g.e
        sk = g.lab("stst")
        e(f"s_cmp_lg_u32 s3, {Gen.GSTAMP_W}"); e(f"s_cbranch_scc1 {sk}")
        e("s_waitcnt vmcnt(0)")
        g.stamp(23)
        g.srd(8, P_DBG, 0, 0x20000)
        e("s_lshl_b32 s20, s2, 8"); e("s_add_u32 s20, s20, 4096")
        e("v_lshlrev_b32 v4, 2, v1")
        e("buffer_store_dword v255, v4, s[8:11], s20 offen")
        g.a.label(sk)
    elif stamps:
        e = g.e
        sk = g.lab("stst")
        e(f"s_sub_u32 s46, s2, {Gen.STAMP_WG0}"); e("s_cmp_ge_u32 s46, 4"); e(f"s_cbranch_scc1 {sk}")
        e("s_and_b32 s46, s3, 3"); e(f"s_cmp_lg_u32 s46, {Gen.STAMP_W}"); e(f"s_cbranch_scc1 {sk}")
        e("s_waitcnt vmcnt(0)")
        g.stamp(23)
        if hstamp >= 0: e(f"s_branch {sk}")
        g.srd(8, P_DBG, 0, 4096)
        e(f"s_sub_u32 s20, s2, {Gen.STAMP_WG0}"); e("s_lshl_b32 s20, s20, 1"); e("s_lshr_b32 s21, s3, 2"); e("s_add_u32 s20, s20, s21"); e("s_lshl_b32 s20, s20, 8"); e("s_add_u32 s20, s20, 256")
        e("v_lshlrev_b32 v4, 2, v1")
        e("buffer_store_dword v255, v4, s[8:11], s20 offen")
        g.a.label(sk)
    if hstamp >= 0:
        e = g.e
        sk = g.lab("hst")
        e(f"s_cmp_lg_u32 s2, {hstamp}"); e(f"s_cbranch_scc1 {sk}")
        e("s_cmp_lg_u32 s3, 0"); e(f"s_cbranch_scc1 {sk}")
        e("v_lshrrev_b32 v4, 2, v255")
        e("v_lshlrev_b32 v5, 16, v4")
        e("v_mov_b32_dpp v6, v5 row_shl:1 row_mask:0xf bank_mask:0xf")
        e("v_or_b32 v4, v4, v6")
        g.srd(8, P_DBG, 0, 256)
        e("v_lshrrev_b32 v7, 1, v1"); e("v_lshlrev_b32 v7, 2, v7"); e("v_add_u32 v7, 4, v7")
        e("v_and_b32 v8, 1, v1"); e("v_cmp_eq_u32 vcc, 0, v8"); e("v_cmp_gt_u32 s[40:41], 24, v1"); e("s_and_b64 vcc, vcc, s[40:41]")
        e("s_and_saveexec_b64 s[40:41], vcc")
        e("buffer_store_dword v4, v7, s[8:11], 0 offen")
        g.a.label(sk)
    g.a.label(endl)
    g.e("s_endpgm")
    g.a.fix_hazards()
    out = [HEADER, "; @launch grid=(256,1,1) block=(512,1,1) lds=163840\n",
           '.amdgcn_target "amdgcn-amd-amdhsa--gfx950"\n.text\n',
           f".globl {KNAME}\n.p2align 8\n.type {KNAME},@function\n{KNAME}:\n", g.a.text(),
           '.section .rodata,"a"\n', f""".p2align 6
.amdhsa_kernel {KNAME}
  .amdhsa_next_free_vgpr 256
  .amdhsa_next_free_sgpr 102
  .amdhsa_accum_offset 256
  .amdhsa_group_segment_fixed_size 0
  .amdhsa_kernarg_size 104
  .amdhsa_user_sgpr_count 2
  .amdhsa_user_sgpr_kernarg_segment_ptr 1
  .amdhsa_system_sgpr_workgroup_id_x 1
.end_amdhsa_kernel
"""]
    return ''.join(out)

if __name__ == "__main__":
    for k in ("PREFETCH", "STAMP_WG0", "STAMP_W", "CODEPF", "NOHOP", "BALANCE", "ZTOUCH", "GSTAMP", "GSTAMP_W", "ZLOOK", "DIAG", "MODCRIT", "XLATE", "SPD", "REPACK", "M1", "M2", "RPG", "X_NOMFMA", "X_NOREAD", "X_NODMA"):
        if k in os.environ: setattr(Gen, k, int(os.environ[k]))
    txt = build(stamps=(len(sys.argv) > 2), hstamp=int(os.environ.get("HSTAMP", "-1")))
    path = sys.argv[1] if len(sys.argv) > 1 else 'cdna_kernels/' + NAME + '.s'
    open(path, 'w').write(txt)
    print("wrote", path, len(txt), "bytes")
```

```python
import sys, math, os
from asmlib import Asm, vr, sr

NAME = "adaLN_cond__softmax_full_mha__mixer_gmlp__prompt"
KNAME = NAME + "_kernel"
MB = 1 << 20
WS_MOD = 0
WS_ST  = 0x10000
WS_FLAG = 0x60000
WS_STX = 0x70000
WS_MODG = 0xB0000
WS_QK  = 1 * MB
WS_V   = 5 * MB
WS_O   = 7 * MB
WS_X1  = 9 * MB
WS_Z2  = 19 * MB
WS_Y   = 23 * MB
WS_WINP = 27 * MB
F0, F1, F2, F3, F4, F5, FR = 0x0, 0x2000, 0x4000, 0x5000, 0x6000, 0x7000, 0x8000
P_X, P_WQKV, P_WO, P_BX, P_WIN, P_WSP, P_BSP, P_WOUT, P_C, P_WMOD, P_OUT, P_DBG, P_WS = [64 + 2*i for i in range(13)]
LOG2E = 1.4426950408889634
S_QB, S_HEAD, S_NONCE, SRD_F = 57, 58, 59, 60
ST = "sc0 sc1"
SPIN_CAP = 1 << 17

def f2u(x):
    import struct
    return struct.unpack('<I', struct.pack('<f', x))[0]
def fl(x): return f"0x{f2u(x):08x}"

class Gen:
    STAMPS = False
    PREFETCH = True
    STAMP_WG0 = 0
    STAMP_W = 0
    CODEPF = False
    NOHOP = False
    BALANCE = True
    ZTOUCH = False
    ZLOOK = 9
    DIAG = False
    diag_site = 0
    MODCRIT = 64
    XLATE = False
    SPD = 7
    REPACK = False
    M1 = 3
    M2 = 9
    RPG = 2
    X_NOMFMA = False
    X_NOREAD = False
    X_NODMA = False
    GSTAMP = False
    GSTAMP_W = 0
    def __init__(self):
        self.a = Asm()
        self.nstamp = 0
    def e(self, s): self.a.e(s)
    def lab(self, b): return self.a.newlabel(b)

    def stamp(self, i):
        if not Gen.STAMPS: return
        e = self.e
        sk = self.lab("stamp")
        if Gen.GSTAMP:
            e(f"s_cmp_lg_u32 s3, {Gen.GSTAMP_W}"); e(f"s_cbranch_scc1 {sk}")
            e("s_memtime s[46:47]" if Gen.GSTAMP == 2 else "s_memrealtime s[46:47]"); e("s_waitcnt lgkmcnt(0)")
            e(f"v_writelane_b32 v255, s46, {i}")
            self.a.label(sk)
            return
        e(f"s_sub_u32 s46, s2, {Gen.STAMP_WG0}"); e("s_cmp_ge_u32 s46, 4"); e(f"s_cbranch_scc1 {sk}")
        e("s_and_b32 s46, s3, 3"); e(f"s_cmp_lg_u32 s46, {Gen.STAMP_W}"); e(f"s_cbranch_scc1 {sk}")
        e("s_memtime s[46:47]"); e("s_waitcnt lgkmcnt(0)")
        e("s_sub_u32 s46, s46, s90")
        e(f"v_writelane_b32 v255, s46, {i}")
        self.a.label(sk)

    def srd(self, d, ptr, off, size):
        e = self.e
        if off:
            e(f"s_add_u32 s{d}, s{ptr}, 0x{off:x}"); e(f"s_addc_u32 s{d+1}, s{ptr+1}, 0")
        else:
            e(f"s_mov_b32 s{d}, s{ptr}"); e(f"s_mov_b32 s{d+1}, s{ptr+1}")
        e(f"s_mov_b32 s{d+2}, 0x{size:x}"); e(f"s_mov_b32 s{d+3}, 0x20000")

    def bf16_round(self, d, s):
        self.e(f"v_cvt_pk_bf16_f32 v{d}, v{s}, v{s}")
        self.e(f"v_lshlrev_b32 v{d}, 16, v{d}")

    def dpp_reduce16(self, regs):
        for m in ("quad_perm:[1,0,3,2]", "quad_perm:[2,3,0,1]", "row_half_mirror", "row_mirror"):
            for r in regs:
                self.e(f"v_add_f32_dpp v{r}, v{r}, v{r} {m} row_mask:0xf bank_mask:0xf")

    def dma(self, voff, srd, soff, m0expr, width="dwordx4"):
        self.e(m0expr)
        self.e("s_nop 0")
        self.e(f"buffer_load_{width} v{voff}, {sr(srd,4)}, {soff} offen lds")

    def diag(self, cnt_sgpr, vval):
        if not Gen.DIAG: return
        e = self.e
        Gen.diag_site += 1
        sk = self.lab("dg")
        e(f"s_cmp_le_u32 s{cnt_sgpr}, {SPIN_CAP}"); e(f"s_cbranch_scc1 {sk}")
        e("s_waitcnt vmcnt(0)")
        self.srd(48, P_DBG, 0, 1 << 22)
        e(f"s_mul_i32 s46, s2, 1024"); e(f"s_add_u32 s46, s46, {65536 + Gen.diag_site*262144}")
        e("v_lshlrev_b32 v252, 2, v1")
        e(f"buffer_store_dword v{vval}, v252, s[48:51], s46 offen offset:256")
        e(f"v_mov_b32 v253, s{S_NONCE}")
        e(f"buffer_store_dword v253, v252, s[48:51], s46 offen")
        e("s_waitcnt vmcnt(0)")
        self.a.label(sk)
        print("diag site", Gen.diag_site, self._where)

    _where = ""
    def phase_end(self):
        self.e("s_waitcnt lgkmcnt(0)" if Gen.NOHOP else "s_waitcnt vmcnt(0) lgkmcnt(0)")
        self.e("s_barrier")

    def signal(self, soff_code, nrep=1, rep_stride=0):
        e = self.e
        sk = self.lab("sig")
        e("s_cmp_lg_u32 s3, 7"); e(f"s_cbranch_scc1 {sk}")
        soff_code()
        e(f"v_mov_b32 v250, s{S_NONCE}")
        e(f"v_mul_u32_u24 v251, {max(rep_stride,1)}, v1")
        e(f"s_mov_b64 exec, {(1 << nrep) - 1}")
        e(f"buffer_store_dword v250, v251, s[{SRD_F}:{SRD_F+3}], s46 offen {ST}")
        e("s_mov_b64 exec, -1")
        self.a.label(sk)

    def wait_flags(self, polls, keep=False, pre=None, w7_after=True):
        e = self.e
        sk = self.lab("wf"); p7 = self.lab("wf7")
        e("s_cmp_eq_u32 s3, 7"); e(f"s_cbranch_scc1 {p7}")
        if pre: pre()
        e(f"s_branch {sk}")
        self.a.label(p7)
        for (code, mask) in ([] if (Gen.NOHOP and not keep) else polls):
            code()
            e(f"s_mov_b32 s42, 0x{mask & 0xffffffff:x}"); e(f"s_mov_b32 s43, 0x{mask >> 32:x}")
            e("s_mov_b32 s47, 0")
            lp = self.lab("poll"); dn = self.lab("polled")
            self.a.label(lp)
            e(f"buffer_load_dword v250, v251, s[{SRD_F}:{SRD_F+3}], s46 offen {ST}")
            e("s_add_u32 s47, s47, 1")
            e(f"s_cmp_gt_u32 s47, {SPIN_CAP}")
            e(f"s_cbranch_scc1 {dn}")
            e("s_waitcnt vmcnt(0)")
            e(f"v_cmp_eq_u32 vcc, s{S_NONCE}, v250")
            e("s_and_b64 vcc, vcc, s[42:43]")
            e("s_cmp_eq_u64 vcc, s[42:43]")
            e(f"s_cbranch_scc0 {lp}")
            self.a.label(dn)
            self._where = "wait_flags " + str(getattr(code, "__name__", code))
            self.diag(47, 250)
        if pre and w7_after: pre()
        self.a.label(sk)
        e("s_barrier")

    def prologue(self, endlab):
        e = self.e
        e("s_cmp_ge_u32 s2, 256"); e(f"s_cbranch_scc1 {endlab}")
        e("s_load_dwordx16 s[64:79], s[0:1], 0")
        e("s_load_dwordx8 s[80:87], s[0:1], 64")
        e("s_load_dwordx2 s[88:89], s[0:1], 96")
        e("v_and_b32 v1, 63, v0")
        e("v_lshrrev_b32 v2, 6, v0")
        e("v_readfirstlane_b32 s3, v2")
        if Gen.STAMPS:
            e("s_memtime s[90:91]"); e("v_mov_b32 v255, 0")
        e("s_and_b32 s20, s2, 7"); e("s_lshr_b32 s21, s2, 3")
        e("s_and_b32 s4, s20, 3"); e("s_lshl_b32 s4, s4, 3"); e("s_and_b32 s22, s21, 7"); e("s_add_u32 s4, s4, s22")
        e("s_lshr_b32 s5, s20, 2"); e("s_lshl_b32 s5, s5, 2"); e("s_lshr_b32 s22, s21, 3"); e("s_add_u32 s5, s5, s22")
        e(f"s_lshl_b32 s{S_HEAD}, s20, 2"); e("s_and_b32 s22, s21, 3"); e(f"s_add_u32 s{S_HEAD}, s{S_HEAD}, s22")
        e(f"s_lshr_b32 s{S_QB}, s21, 2")
        e("s_waitcnt lgkmcnt(0)")
        self.stamp(24)
        self.srd(SRD_F, P_WS, WS_FLAG, 0x10000)
        sk = self.lab("nn")
        e("s_cmp_lg_u32 s3, 7"); e(f"s_cbranch_scc1 {sk}")
        self.srd(8, P_DBG, 0, 256)
        e("v_mov_b32 v251, 0")
        g = self.lab("ng")
        e("s_cmp_lg_u32 s2, 0"); e(f"s_cbranch_scc1 {g}")
        e("s_memrealtime s[46:47]"); e("s_waitcnt lgkmcnt(0)")
        e("s_or_b32 s46, s46, 1")
        e("v_mov_b32 v250, s46")
        e("s_mov_b64 exec, 1")
        e(f"buffer_store_dword v250, v251, s[8:11], 0 offen {ST}")
        e("s_mov_b64 exec, -1")
        self.a.label(g)
        self.a.label(sk)

    def get_nonce(self):
        e = self.e
        sk = self.lab("gn")
        e("s_cmp_lg_u32 s3, 7"); e(f"s_cbranch_scc1 {sk}")
        self.srd(48, P_DBG, 0, 256)
        e("v_mov_b32 v251, 0"); e("s_mov_b32 s47, 0")
        lp = self.lab("gnp"); dn = self.lab("gnd")
        self.a.label(lp)
        e(f"buffer_load_dword v250, v251, s[48:51], 0 offen {ST}")
        e("s_add_u32 s47, s47, 1"); e(f"s_cmp_gt_u32 s47, {SPIN_CAP}"); e(f"s_cbranch_scc1 {dn}")
        e("s_waitcnt vmcnt(0)")
        e(f"v_readfirstlane_b32 s{S_NONCE}, v250")
        e(f"s_cmp_eq_u32 s{S_NONCE}, 0"); e(f"s_cbranch_scc1 {lp}")
        self.a.label(dn)
        self._where = "nonce"; self.diag(47, 250)
        if Gen.DIAG:
            self.srd(48, P_DBG, 0, 1 << 22); e("s_lshl_b32 s46, s2, 2"); e("s_add_u32 s46, s46, 8192"); e("s_mov_b64 exec, 1")
            e("buffer_store_dword v250, v251, s[48:51], s46 offen"); e("s_mov_b64 exec, -1")
        e("ds_write_b32 v251, v250")
        e("s_waitcnt lgkmcnt(0)")
        self.a.label(sk)

    def ln_loads(self, srd_x, s_rowoff):
        e = self.e
        e("v_lshrrev_b32 v3, 4, v1"); e("v_and_b32 v4, 15, v1")
        e("s_lshl_b32 s20, s3, 3")
        e("v_add_u32 v5, s20, v3"); e("v_lshlrev_b32 v5, 10, v5"); e("v_lshl_add_u32 v5, v4, 4, v5")
        e(f"s_add_u32 s21, s{s_rowoff}, 4096")
        for a in range(2):
            so = s_rowoff if a == 0 else 21
            for j in range(4):
                b = 32 + 16*a + 4*j
                e(f"buffer_load_dwordx4 v[{b}:{b+3}], v5, {sr(srd_x,4)}, s{so} offen offset:{256*j}")

    def mod_issue(self, srd_mod, first_chunk):
        e = self.e
        e("v_lshlrev_b32 v248, 3, v0")
        for kq in range(4):
            e(f"s_mov_b32 s22, {kq*12288 + first_chunk*2048}")
            e(f"buffer_load_dwordx2 v[{240+2*kq}:{241+2*kq}], v248, {sr(srd_mod,4)}, s22 offen")

    def mod_finish(self, lds_off):
        e = self.e
        e("v_pk_add_f32 v[240:241], v[240:241], v[242:243]"); e("v_pk_add_f32 v[244:245], v[244:245], v[246:247]")
        e("v_pk_add_f32 v[240:241], v[240:241], v[244:245]")
        e("v_cvt_pk_bf16_f32 v242, v240, v241")
        e("v_lshlrev_b32 v240, 16, v242"); e("v_and_b32 v241, 0xffff0000, v242")
        sk = self.lab("mf")
        e("s_cmp_lt_u32 s3, 4"); e(f"s_cbranch_scc1 {sk}")
        e("v_add_f32 v240, 1.0, v240"); e("v_add_f32 v241, 1.0, v241")
        e("v_cvt_pk_bf16_f32 v242, v240, v241")
        e("v_lshlrev_b32 v240, 16, v242"); e("v_and_b32 v241, 0xffff0000, v242")
        self.a.label(sk)
        e("v_and_b32 v242, 255, v0"); e("v_lshlrev_b32 v242, 1, v242")
        e("v_lshrrev_b32 v243, 7, v242"); e("v_lshlrev_b32 v248, 9, v243")
        e("v_bfe_u32 v243, v242, 2, 1"); e("v_lshl_add_u32 v248, v243, 8, v248")
        e("v_bfe_u32 v243, v242, 3, 4"); e("v_lshl_add_u32 v248, v243, 4, v248")
        e("v_and_b32 v243, 3, v242"); e("v_lshl_add_u32 v248, v243, 2, v248")
        e("v_lshrrev_b32 v243, 8, v0"); e("v_lshl_add_u32 v248, v243, 11, v248")
        e(f"v_add_u32 v248, {lds_off}, v248")
        e("ds_write_b64 v248, v[240:241]")

    def ln_stats(self, fillers):
        e = self.e
        X = 128
        it = iter(fillers)
        def fill():
            f = next(it, None)
            if f: f()
        for a in range(2):
            for q in range(16):
                s = 32 + 16*a + q
                e(f"v_lshlrev_b32 v{X+32*a+2*q}, 16, v{s}")
                e(f"v_and_b32 v{X+32*a+2*q+1}, 0xffff0000, v{s}")
            fill()
        A = lambda a, k: 8 + 8*a + 2*k
        for a in range(2):
            for k in range(4):
                e(f"v_pk_add_f32 v[{A(a,k)}:{A(a,k)+1}], v[{X+32*a+4*k}:{X+32*a+4*k+1}], v[{X+32*a+4*k+2}:{X+32*a+4*k+3}]")
        for q in range(8, 16):
            for a in range(2):
                k = q % 4
                e(f"v_pk_add_f32 v[{A(a,k)}:{A(a,k)+1}], v[{A(a,k)}:{A(a,k)+1}], v[{X+32*a+2*q}:{X+32*a+2*q+1}]")
        fill()
        for a in range(2):
            e(f"v_pk_add_f32 v[{A(a,0)}:{A(a,0)+1}], v[{A(a,0)}:{A(a,0)+1}], v[{A(a,1)}:{A(a,1)+1}]")
            e(f"v_pk_add_f32 v[{A(a,2)}:{A(a,2)+1}], v[{A(a,2)}:{A(a,2)+1}], v[{A(a,3)}:{A(a,3)+1}]")
        for a in range(2):
            e(f"v_pk_add_f32 v[{A(a,0)}:{A(a,0)+1}], v[{A(a,0)}:{A(a,0)+1}], v[{A(a,2)}:{A(a,2)+1}]")
        for a in range(2):
            e(f"v_add_f32 v{24+2*a}, v{A(a,0)}, v{A(a,0)+1}")
        self.dpp_reduce16([24, 26])
        for a in range(2):
            e(f"v_mul_f32 v{24+2*a}, {fl(-1.0/512)}, v{24+2*a}")
            e(f"v_mov_b32 v{25+2*a}, v{24+2*a}")
            for r in range(8): e(f"v_mov_b32 v{8+8*a+r}, 0")
        fill()
        for q in range(16):
            for a in range(2):
                r = X + 32*a + 2*q
                e(f"v_pk_add_f32 v[{r}:{r+1}], v[{r}:{r+1}], v[{24+2*a}:{25+2*a}]")
            if q > 0:
                for a in range(2):
                    r = X + 32*a + 2*(q-1); k = (q-1) % 4
                    e(f"v_pk_fma_f32 v[{A(a,k)}:{A(a,k)+1}], v[{r}:{r+1}], v[{r}:{r+1}], v[{A(a,k)}:{A(a,k)+1}]")
            if q % 4 == 3: fill()
        for a in range(2):
            r = X + 32*a + 30; k = 3
            e(f"v_pk_fma_f32 v[{A(a,k)}:{A(a,k)+1}], v[{r}:{r+1}], v[{r}:{r+1}], v[{A(a,k)}:{A(a,k)+1}]")
        for a in range(2):
            e(f"v_pk_add_f32 v[{A(a,0)}:{A(a,0)+1}], v[{A(a,0)}:{A(a,0)+1}], v[{A(a,1)}:{A(a,1)+1}]")
            e(f"v_pk_add_f32 v[{A(a,2)}:{A(a,2)+1}], v[{A(a,2)}:{A(a,2)+1}], v[{A(a,3)}:{A(a,3)+1}]")
        for a in range(2):
            e(f"v_pk_add_f32 v[{A(a,0)}:{A(a,0)+1}], v[{A(a,0)}:{A(a,0)+1}], v[{A(a,2)}:{A(a,2)+1}]")
        for a in range(2):
            e(f"v_add_f32 v{24+a}, v{A(a,0)}, v{A(a,0)+1}")
        self.dpp_reduce16([24, 25])
        for a in range(2):
            e(f"v_mov_b32 v14, {fl(1e-5)}")
            e(f"v_fmac_f32 v14, {fl(1.0/512)}, v{24+a}")
            e(f"v_rsq_f32 v{20+2*a}, v14")
        for a in range(2):
            e(f"v_mov_b32 v{21+2*a}, v{20+2*a}")
        for f in it: f()
        for a in range(2):
            for q in range(16):
                r = X + 32*a + 2*q
                e(f"v_pk_mul_f32 v[{r}:{r+1}], v[{r}:{r+1}], v[{20+2*a}:{21+2*a}]")

    def ln2_prepare(self):
        e = self.e
        X = 128
        for a in range(2):
            e(f"v_mov_b32 v{12+a}, v{8+2*a}")
        self.dpp_reduce16([12, 13])
        for a in range(2):
            e(f"v_mul_f32 v{12+a}, {fl(1.0/16)}, v{12+a}")
            e(f"v_sub_f32 v{14+a}, v{8+2*a}, v{12+a}")
            e(f"v_mul_f32 v{14+a}, v{14+a}, v{14+a}")
            e(f"v_fmac_f32 v{9+2*a}, {fl(32.0)}, v{14+a}")
        self.dpp_reduce16([9, 11])
        for a in range(2):
            e(f"v_mov_b32 v14, {fl(1e-5)}")
            e(f"v_fmac_f32 v14, {fl(1.0/512)}, v{9+2*a}")
            e(f"v_rsq_f32 v{20+4*a}, v14")
        for a in range(2):
            e(f"v_mov_b32 v{21+4*a}, v{20+4*a}")
            e(f"v_mul_f32 v{22+4*a}, v{12+a}, v{20+4*a}"); e(f"v_sub_f32 v{22+4*a}, 0, v{22+4*a}"); e(f"v_mov_b32 v{23+4*a}, v{22+4*a}")
        for a in range(2):
            for q in range(16):
                s_ = 32 + 16*a + q; r = X + 32*a + 2*q
                e(f"v_lshlrev_b32 v{r}, 16, v{s_}"); e(f"v_and_b32 v{r+1}, 0xffff0000, v{s_}")
        for a in range(2):
            for q in range(16):
                r = X + 32*a + 2*q
                e(f"v_pk_fma_f32 v[{r}:{r+1}], v[{r}:{r+1}], v[{20+4*a}:{21+4*a}], v[{22+4*a}:{23+4*a}]")

    def ln_finish(self, lds_mod):
        e = self.e
        X = 128
        e("v_lshrrev_b32 v3, 4, v1"); e("v_and_b32 v4, 15, v1")
        e("v_lshlrev_b32 v6, 4, v4")
        e(f"v_add_u32 v6, {lds_mod}, v6")
        for j in range(4):
            for hh in range(2):
                e(f"ds_read_b128 v[{64+8*j+4*hh}:{67+8*j+4*hh}], v6 offset:{2048 + 512*j + 256*hh}")
                e(f"ds_read_b128 v[{96+8*j+4*hh}:{99+8*j+4*hh}], v6 offset:{512*j + 256*hh}")
        for a in range(2):
            e(f"s_lshl_b32 s20, s3, 3"); e(f"s_add_u32 s20, s20, {4*a}")
            e(f"v_add_u32 v15, s20, v3"); e(f"v_and_b32 v16, 15, v15"); e(f"v_xor_b32 v16, v16, v4")
            e(f"v_lshlrev_b32 v15, 10, v15"); e(f"v_lshl_add_u32 v{18+a}, v16, 4, v15")
        for j in range(4):
            e(f"s_waitcnt lgkmcnt({4*(3-j) + 2*j if False else min(15, 4*(3-j) + 2*j)})" if False else f"s_waitcnt lgkmcnt({4*(3-j)})" if j == 0 else "s_waitcnt lgkmcnt(0)" if j == 1 else "s_nop 0")
            for a in range(2):
                for q in range(4):
                    r = X + 32*a + 8*j + 2*q
                    e(f"v_pk_fma_f32 v[{r}:{r+1}], v[{r}:{r+1}], v[{64+8*j+2*q}:{65+8*j+2*q}], v[{96+8*j+2*q}:{97+8*j+2*q}]")
                pk = 24 + 4*a
                for q in range(4):
                    r = X + 32*a + 8*j + 2*q
                    e(f"v_cvt_pk_bf16_f32 v{pk+q}, v{r}, v{r+1}")
                e(f"ds_write_b128 v{18+a}, v[{pk}:{pk+3}] offset:{256*j}")

    def repack_issue(self):
        e = self.e
        self.srd(48, P_WIN, 0, 512*1792*2)
        e("v_cmp_le_u32 vcc, 224, v0"); e("v_mov_b32 v223, 1"); e("v_cndmask_b32 v226, 0, v223, vcc")
        e("v_mul_u32_u24 v225, 224, v226"); e("v_sub_u32 v225, v0, v225")
        e("s_lshl_b32 s20, s2, 1"); e("v_add_u32 v226, s20, v226")
        e("v_mul_u32_u24 v224, 3584, v226"); e("v_lshl_add_u32 v224, v225, 4, v224")
        e("buffer_load_dwordx4 v[228:231], v224, s[48:51], 0 offen")
        e("v_cmp_le_u32 vcc, 112, v225"); e("v_mov_b32 v223, 112"); e("v_cndmask_b32 v224, 0, v223, vcc"); e("v_sub_u32 v225, v225, v224")
        e("v_mov_b32 v223, 0"); e("v_cndmask_b32 v224, 14, v223, vcc")
        e("v_mul_u32_u24 v227, 4682, v225"); e("v_lshrrev_b32 v227, 16, v227")
        e("v_mul_u32_u24 v223, 14, v227"); e("v_sub_u32 v225, v225, v223"); e("v_add_u32 v225, v225, v224")
        e("v_bfe_u32 v223, v226, 3, 1"); e("v_lshlrev_b32 v223, 1, v223"); e("v_xor_b32 v225, v225, v223")
        e(f"v_mul_u32_u24 v227, {512*448}, v227"); e("v_mul_u32_u24 v223, 448, v226"); e("v_add_u32 v227, v227, v223")
        e("v_lshl_add_u32 v227, v225, 4, v227")

    def repack_store(self):
        e = self.e
        self.srd(48, P_WS, WS_WINP, 8*512*448)
        sk = self.lab("rps")
        e("s_cmp_eq_u32 s3, 7"); e(f"s_cbranch_scc1 {sk}")
        e(f"buffer_store_dwordx4 v[228:231], v227, s[48:51], 0 offen {ST}")
        self.a.label(sk)

    def mod_loads(self, lo, hi, bar):
        e = self.e
        nomod1 = self.lab("nomod")
        e(f"s_sub_u32 s20, s2, {lo}"); e(f"s_cmp_ge_u32 s20, {hi-lo}"); e(f"s_cbranch_scc1 {nomod1}")
        e("v_and_b32 v72, 7, v0"); e("v_lshrrev_b32 v73, 3, v0")
        e("v_mul_u32_u24 v74, 6144, v73"); e("v_lshl_add_u32 v74, v72, 4, v74")
        e("v_lshlrev_b32 v75, 1, v73")
        e("s_and_b32 s20, s2, 3"); e("s_lshr_b32 s21, s2, 2")
        e(f"s_mul_i32 s40, s20, {128*6144}"); e("s_lshl_b32 s21, s21, 7"); e("s_add_u32 s40, s40, s21"); e(f"s_add_u32 s41, s40, {64*6144}")
        e("s_lshl_b32 s42, s20, 8")
        e("buffer_load_dwordx4 v[80:83], v74, s[32:35], s40 offen")
        e("buffer_load_dwordx4 v[84:87], v74, s[32:35], s41 offen")
        e("buffer_load_ushort v76, v75, s[36:39], s42 offen")
        e("buffer_load_ushort v77, v75, s[36:39], s42 offen offset:128")
        if bar: e("s_barrier")
        self.a.label(nomod1)

    def mod_compute(self, lo, hi, wait):
        e = self.e
        MSCR = 155648
        nomod2 = self.lab("nomod")
        e(f"s_sub_u32 s20, s2, {lo}"); e(f"s_cmp_ge_u32 s20, {hi-lo}"); e(f"s_cbranch_scc1 {nomod2}")
        for j in range(8): e(f"v_mov_b32 v{64+j}, 0")
        e(f"s_waitcnt vmcnt({wait})")
        self.stamp(29)
        for i in range(2):
            c = 76 + i
            e(f"v_lshlrev_b32 v{c}, 16, v{c}")
            e(f"v_mul_f32 v12, {fl(-LOG2E)}, v{c}"); e("v_exp_f32 v12, v12"); e("v_add_f32 v12, 1.0, v12"); e("v_rcp_f32 v12, v12")
            e(f"v_mul_f32 v{c}, v{c}, v12")
            self.bf16_round(c, c)
        for i in range(2):
            for q in range(4):
                w = 80 + 4*i + q
                e(f"v_lshlrev_b32 v12, 16, v{w}"); e(f"v_and_b32 v13, 0xffff0000, v{w}")
                e(f"v_fmac_f32 v{64+2*q}, v{76+i}, v12"); e(f"v_fmac_f32 v{65+2*q}, v{76+i}, v13")
        for j in range(8): e(f"v_add_f32_dpp v{64+j}, v{64+j}, v{64+j} row_ror:8 row_mask:0xf bank_mask:0xf")
        e("v_lshrrev_b32 v12, 4, v0"); e("v_lshlrev_b32 v12, 8, v12"); e("v_lshl_add_u32 v12, v72, 5, v12")
        e(f"v_add_u32 v12, {MSCR}, v12")
        e("v_and_b32 v13, 8, v1"); e("v_cmp_eq_u32 vcc, 0, v13")
        e("s_and_saveexec_b64 s[44:45], vcc")
        e("ds_write_b128 v12, v[64:67]"); e("ds_write_b128 v12, v[68:71] offset:16")
        e("s_mov_b64 exec, s[44:45]")
        e("s_waitcnt lgkmcnt(0)")
        self.stamp(30)
        e("s_barrier")
        mdone = self.lab("mdone")
        e("s_cmp_lg_u32 s3, 7"); e(f"s_cbranch_scc1 {mdone}")
        e("v_lshlrev_b32 v72, 2, v1"); e(f"v_add_u32 v12, {MSCR}, v72")
        for i in range(32): e(f"ds_read_b32 v{80+i}, v12 offset:{256*i}")
        for lo in (0, 16):
            e(f"s_waitcnt lgkmcnt({15 if lo == 0 else 0})")
            if lo == 0: e("s_waitcnt lgkmcnt(15)")
        e("s_waitcnt lgkmcnt(0)")
        for st in (16, 8, 4, 2, 1):
            for i in range(st): e(f"v_add_f32 v{80+i}, v{80+i}, v{80+i+st}")
        e("s_and_b32 s20, s2, 3"); e("s_mul_i32 s20, s20, 12288"); e("s_lshr_b32 s21, s2, 2"); e("s_lshl_b32 s21, s21, 8"); e("s_add_u32 s20, s20, s21")
        e(f"buffer_store_dword v80, v72, s[12:15], s20 offen {ST}")
        e("s_waitcnt vmcnt(0)")
        self.signal(lambda: (e("s_lshl_b32 s46, s2, 2"), e(f"s_add_u32 s46, s46, {F0}")), nrep=8, rep_stride=1024)
        self.a.label(mdone)
        self.a.label(nomod2)

    def mod_late_a(self):
        e = self.e
        MSCR = 155648
        sk = self.lab("mla")
        e("s_sub_u32 s20, s2, 64"); e("s_cmp_ge_u32 s20, 128"); e(f"s_cbranch_scc1 {sk}")
        e("s_cmp_eq_u32 s3, 7"); e(f"s_cbranch_scc1 {sk}")
        self.srd(32, P_WMOD, 0, 512*3072*2); self.srd(36, P_C, 0, 1024)
        e("v_and_b32 v72, 7, v0"); e("v_lshrrev_b32 v73, 3, v0")
        e("v_mul_u32_u24 v74, 6144, v73"); e("v_lshl_add_u32 v74, v72, 4, v74"); e("v_lshlrev_b32 v75, 1, v73")
        e("s_and_b32 s20, s2, 3"); e("s_lshr_b32 s21, s2, 2")
        e(f"s_mul_i32 s40, s20, {128*6144}"); e("s_lshl_b32 s21, s21, 7"); e("s_add_u32 s40, s40, s21")
        e(f"s_add_u32 s41, s40, {56*6144}"); e(f"s_add_u32 s43, s40, {112*6144}"); e("s_lshl_b32 s42, s20, 8")
        for r in range(88, 92): e(f"v_mov_b32 v{r}, 0")
        e("v_mov_b32 v78, 0")
        e("buffer_load_dwordx4 v[80:83], v74, s[32:35], s40 offen"); e("buffer_load_dwordx4 v[84:87], v74, s[32:35], s41 offen")
        e("buffer_load_ushort v76, v75, s[36:39], s42 offen"); e("buffer_load_ushort v77, v75, s[36:39], s42 offen offset:112")
        e("v_cmp_gt_u32 vcc, 16, v73"); e("s_and_saveexec_b64 s[44:45], vcc")
        s3 = self.lab("mla3")
        e(f"s_cbranch_execz {s3}")
        e("buffer_load_dwordx4 v[88:91], v74, s[32:35], s43 offen"); e("buffer_load_ushort v78, v75, s[36:39], s42 offen offset:224")
        self.a.label(s3)
        e("s_mov_b64 exec, s[44:45]")
        for j in range(8): e(f"v_mov_b32 v{64+j}, 0")
        e("s_waitcnt vmcnt(0)")
        for i in range(3):
            c = 76 + i
            e(f"v_lshlrev_b32 v{c}, 16, v{c}")
            e(f"v_mul_f32 v12, {fl(-LOG2E)}, v{c}"); e("v_exp_f32 v12, v12"); e("v_add_f32 v12, 1.0, v12"); e("v_rcp_f32 v12, v12")
            e(f"v_mul_f32 v{c}, v{c}, v12")
            self.bf16_round(c, c)
        for i in range(3):
            for q in range(4):
                w = 80 + 4*i + q
                e(f"v_lshlrev_b32 v12, 16, v{w}"); e(f"v_and_b32 v13, 0xffff0000, v{w}")
                e(f"v_fmac_f32 v{64+2*q}, v{76+i}, v12"); e(f"v_fmac_f32 v{65+2*q}, v{76+i}, v13")
        for j in range(8): e(f"v_add_f32_dpp v{64+j}, v{64+j}, v{64+j} row_ror:8 row_mask:0xf bank_mask:0xf")
        e("v_lshrrev_b32 v12, 4, v0"); e("v_lshlrev_b32 v12, 8, v12"); e("v_lshl_add_u32 v12, v72, 5, v12"); e(f"v_add_u32 v12, {MSCR}, v12")
        e("v_and_b32 v13, 8, v1"); e("v_cmp_eq_u32 vcc, 0, v13"); e("s_and_saveexec_b64 s[44:45], vcc")
        e("ds_write_b128 v12, v[64:67]"); e("ds_write_b128 v12, v[68:71] offset:16")
        e("s_mov_b64 exec, s[44:45]")
        e("s_waitcnt lgkmcnt(0)")
        self.a.label(sk)

    def mod_late_b(self):
        e = self.e
        MSCR = 155648
        sk = self.lab("mlb")
        e("s_sub_u32 s20, s2, 64"); e("s_cmp_ge_u32 s20, 128"); e(f"s_cbranch_scc1 {sk}")
        e("s_cmp_lg_u32 s3, 6"); e(f"s_cbranch_scc1 {sk}")
        self.srd(48, P_WS, WS_MOD, 49152)
        e("v_lshlrev_b32 v178, 2, v1"); e(f"v_add_u32 v179, {MSCR}, v178")
        for i in range(28): e(f"ds_read_b32 v{180+i}, v179 offset:{256*i}")
        e("s_waitcnt lgkmcnt(0)")
        for i in range(1, 28): e(f"v_add_f32 v180, v180, v{180+i}")
        e("s_and_b32 s20, s2, 3"); e("s_mul_i32 s20, s20, 12288"); e("s_lshr_b32 s21, s2, 2"); e("s_lshl_b32 s21, s21, 8"); e("s_add_u32 s20, s20, s21")
        e(f"buffer_store_dword v180, v178, s[48:51], s20 offen {ST}")
        self.a.label(sk)

    def mod_late_flag(self):
        e = self.e
        sk = self.lab("mlf")
        e("s_sub_u32 s20, s2, 64"); e("s_cmp_ge_u32 s20, 128"); e(f"s_cbranch_scc1 {sk}")
        e("s_cmp_lg_u32 s3, 6"); e(f"s_cbranch_scc1 {sk}")
        e("s_lshl_b32 s46, s2, 2"); e(f"s_add_u32 s46, s46, {F0}")
        e(f"v_mov_b32 v250, s{S_NONCE}"); e("v_mul_u32_u24 v251, 1024, v1")
        e("s_mov_b64 exec, 0xff")
        e(f"buffer_store_dword v250, v251, s[{SRD_F}:{SRD_F+3}], s46 offen {ST}")
        e("s_mov_b64 exec, -1")
        self.a.label(sk)

    def p01(self):
        e = self.e
        RING = 65536; SL = 12288; D = 7; MODL = RING + D*SL
        MSCR = 155648
        self.srd(8, P_X, 0, 2048*512*2)
        self.srd(12, P_WS, WS_MOD, 49152)
        self.srd(16, P_WQKV, 0, 512*1536*2)
        self.srd(24, P_WS, WS_QK, 4*MB)
        self.srd(28, P_WS, WS_V, 2*MB)
        self.srd(32, P_WMOD, 0, 512*3072*2)
        self.srd(36, P_C, 0, 1024)
        self.mod_loads(0, self.MODCRIT, True)
        self.get_nonce()
        self.stamp(25)
        if self.XLATE:
            xl = self.lab("xlate")
            e("s_cmp_ge_u32 s2, 192"); e(f"s_cbranch_scc1 {xl}")
            e("s_waitcnt vmcnt(0)")
            self.a.label(xl)
        e("s_lshl_b32 s6, s4, 16")
        self.ln_loads(8, 6)
        self.stamp(26)
        tk = self.lab("touch")
        e("s_cmp_ge_u32 s3, 3"); e(f"s_cbranch_scc1 {tk}")
        e("s_and_b32 s20, s4, 7"); e("s_lshl_b32 s20, s20, 6")
        e("v_add_u32 v7, s20, v1"); e("v_mul_u32_u24 v7, 3072, v7")
        e("s_lshl_b32 s20, s5, 8"); e("s_lshl_b32 s21, s3, 7"); e("s_add_u32 s20, s20, s21")
        e("s_lshl_b32 s21, s5, 7"); e("s_add_u32 s21, s21, 2048")
        e("s_cmp_eq_u32 s3, 2"); e("s_cselect_b32 s20, s21, s20")
        e("buffer_load_dword v9, v7, s[16:19], s20 offen")
        self.a.label(tk)
        self.stamp(27)
        e("s_and_b32 s7, s3, 3")
        for m in range(3):
            d = 192 + m
            e(f"s_lshl_b32 s20, s7, 6"); e(f"s_add_u32 s20, s20, {256*m}")
            e(f"v_add_u32 v200, s20, v1")
            e(f"v_mul_u32_u24 v201, 2731, v200"); e(f"v_lshrrev_b32 v201, 16, v201")
            e(f"v_mul_u32_u24 v202, 24, v201"); e(f"v_sub_u32 v202, v200, v202")
            e(f"v_bfe_u32 v203, v201, 1, 1"); e(f"v_bfe_u32 v204, v201, 3, 1")
            e(f"v_lshl_or_b32 v203, v204, 1, v203"); e(f"v_lshlrev_b32 v203, 1, v203")
            e(f"v_xor_b32 v202, v202, v203"); e(f"v_lshlrev_b32 v203, 4, v202")
            e(f"s_lshl_b32 s20, s5, 8"); e(f"v_add_u32 v204, s20, v203")
            e(f"s_lshl_b32 s20, s5, 7"); e(f"s_add_u32 s20, s20, {2048-256}"); e(f"v_add_u32 v205, s20, v203")
            e(f"v_cmp_gt_u32 vcc, 16, v202"); e(f"v_cndmask_b32 v204, v205, v204, vcc")
            e(f"v_mul_u32_u24 v201, 3072, v201"); e(f"v_add_u32 v{d}, v201, v204")
        e("s_lshl_b32 s7, s7, 10"); e(f"s_add_u32 s7, s7, {RING}")
        e("s_lshr_b32 s32, s3, 2")
        self.stamp(28)
        self.mod_compute(0, self.MODCRIT, 8)
        self.stamp(0)
        e(f"s_mul_i32 s33, s32, {32*3072}")
        e(f"s_mul_i32 s34, s32, {SL}"); e("s_add_u32 s34, s34, s7")
        def issue_pair(pairidx):
            def f():
                e(f"s_add_u32 s23, s33, {2*pairidx*32*3072}")
                for m in range(3):
                    self.dma(192+m, 16, "s23", f"s_add_u32 m0, s34, {2*pairidx*SL + m*4096}")
            return f
        issue_pair(0)()
        e("s_waitcnt vmcnt(3)")
        self.stamp(1)
        nop = lambda: None
        self.ln_stats([nop, nop, issue_pair(1), nop, nop, issue_pair(2)])
        self.stamp(2)
        def c0():
            e("s_and_b32 s46, s2, 7"); e("s_lshl_b32 s46, s46, 10"); e(f"s_add_u32 s46, s46, {F0}")
            e("v_lshlrev_b32 v251, 2, v1")
        self.wait_flags([(c0, (1 << 64) - 1)], keep=True)
        self.stamp(3)
        self.mod_issue(12, 0)
        e("v_mov_b32 v249, 0"); e("ds_read_b32 v249, v249"); e("s_waitcnt lgkmcnt(0)"); e(f"v_readfirstlane_b32 s{S_NONCE}, v249")
        e("v_lshrrev_b32 v3, 4, v1"); e("v_and_b32 v4, 15, v1")
        e("v_lshrrev_b32 v5, 2, v4"); e("v_and_b32 v6, 3, v4")
        e("v_lshl_add_u32 v7, v3, 3, v5"); e("v_mul_u32_u24 v7, 384, v7"); e("v_lshl_add_u32 v7, v6, 3, v7")
        e(f"v_add_u32 v7, {RING}, v7")
        e("v_bfe_u32 v8, v5, 1, 1"); e("v_and_b32 v9, 1, v3"); e("v_lshl_or_b32 v8, v9, 1, v8")
        e("s_lshr_b32 s20, s3, 1")
        for c in range(3):
            if c < 2: e(f"s_lshl_b32 s21, s20, 1"); e(f"s_add_u32 s21, s21, {c}")
            else: e(f"s_add_u32 s21, s20, 8")
            e("s_lshr_b32 s22, s21, 2"); e("s_lshl_b32 s22, s22, 7"); e("s_and_b32 s21, s21, 3")
            e(f"v_xor_b32 v9, s21, v8"); e(f"v_lshl_add_u32 v{200+c}, v9, 5, v7"); e(f"v_add_u32 v{200+c}, s22, v{200+c}")
            e(f"v_add_u32 v{204+c}, {5*SL}, v{200+c}")
        e("s_and_b32 s21, s3, 1"); e("s_lshl_b32 s21, s21, 5")
        e("v_add_u32 v9, s21, v4"); e("v_lshlrev_b32 v9, 10, v9")
        for m in range(4):
            e(f"v_add_u32 v10, {4*m}, v3"); e(f"v_xor_b32 v10, v10, v4"); e(f"v_lshl_add_u32 v{208+m}, v10, 4, v9")
        e("s_waitcnt vmcnt(0)")
        self.mod_finish(MODL)
        e("s_waitcnt lgkmcnt(0)")
        e("s_barrier")
        self.ln_finish(MODL)
        ACC = 128
        e("s_waitcnt lgkmcnt(0)")
        e("s_barrier")
        for r in range(24): e(f"v_mov_b32 v{192+8+r}, 0") if False else None
        ACC = 212
        for r in range(24): e(f"v_mov_b32 v{ACC+r}, 0")
        self.stamp(4)
        def reads_list(n):
            buf = n % 2; slot = n % D
            out = []
            for rt in range(2):
                b = 32 + 32*buf + 4*rt
                out.append(f"ds_read_b128 v[{b}:{b+3}], v{208 + (n & 3)} offset:{rt*16384 + (n >> 2)*256}")
            for c in range(3):
                b = 40 + 32*buf + 4*c
                areg, off = (200 + c, slot*SL) if slot < 5 else (204 + c, (slot-5)*SL)
                for t in range(2):
                    out.append(f"ds_read_b64_tr_b16 v[{b+2*t}:{b+2*t+1}], v{areg} offset:{off + 4*t*384}")
            return out
        def mfmas(n):
            buf = n % 2
            for c in range(3):
                for rt in range(2):
                    acc = ACC + 4*(rt*3 + c)
                    x = 32 + 32*buf + 4*rt; w = 40 + 32*buf + 4*c
                    A, B = (w, x) if c < 2 else (x, w)
                    yield f"v_mfma_f32_16x16x32_bf16 v[{acc}:{acc+3}], v[{A}:{A+3}], v[{B}:{B+3}], v[{acc}:{acc+3}]"
        NK = 16
        for r in reads_list(0): e(r)
        for n in range(NK):
            if n + 1 < NK:
                if n + 1 >= 6:
                    hi = min(n + 5, NK - 1)
                    cA = sum(1 for s in range(max(n+2, 6), hi+1) if s % 2 == 0); cB = sum(1 for s in range(max(n+2, 6), hi+1) if s % 2 == 1)
                    e(f"s_waitcnt vmcnt({3*min(cA, cB)})")
                e("s_barrier")
            e("s_waitcnt lgkmcnt(0)")
            ms = list(mfmas(n)); rs = reads_list(n + 1) if n + 1 < NK else []
            ri = 0
            for i, m in enumerate(ms):
                e(m)
                for _ in range(2 if i < 2 else 1):
                    if ri < len(rs): e(rs[ri]); ri += 1
            st = n + D - 1
            if st < NK:
                lsk = self.lab("qkv_sk")
                e(f"s_cmp_lg_u32 s32, {st & 1}"); e(f"s_cbranch_scc1 {lsk}")
                e(f"s_mov_b32 s23, {st*32*3072}")
                for m in range(3): self.dma(192+m, 16, "s23", f"s_add_u32 m0, s7, {(st % D)*SL + m*4096}")
                self.a.label(lsk)
        self.stamp(5)
        e("v_lshlrev_b32 v8, 4, v1")
        e("s_and_b32 s20, s3, 1"); e("s_lshl_b32 s21, s4, 1"); e("s_add_u32 s21, s21, s20"); e("s_lshl_b32 s21, s21, 10")
        e("s_lshr_b32 s20, s3, 1")
        e(f"s_mov_b32 s22, {fl(0.25*LOG2E)}"); e("s_cmp_lt_u32 s5, 4"); e("s_cselect_b32 s22, s22, 1.0")
        for c in range(3):
            if c < 2:
                e("s_lshl_b32 s23, s5, 3"); e("s_lshl_b32 s6, s20, 1"); e("s_add_u32 s23, s23, s6"); e(f"s_add_u32 s23, s23, {c}")
            else:
                e("s_lshl_b32 s23, s5, 2"); e("s_add_u32 s23, s23, s20")
            e("s_lshl_b32 s23, s23, 16"); e("s_add_u32 s23, s23, s21")
            pk = 32 + 4*c
            for rt in range(2):
                acc = ACC + 4*(rt*3 + c)
                if c < 2:
                    for q in range(4): e(f"v_mul_f32 v{acc+q}, s22, v{acc+q}")
                e(f"v_cvt_pk_bf16_f32 v{pk+2*rt}, v{acc}, v{acc+1}"); e(f"v_cvt_pk_bf16_f32 v{pk+2*rt+1}, v{acc+2}, v{acc+3}")
            sw = "v_permlane16_swap_b32" if c < 2 else "v_permlane32_swap_b32"
            e(f"{sw} v{pk}, v{pk+2}"); e(f"{sw} v{pk+1}, v{pk+3}")
            e(f"buffer_store_dwordx4 v[{pk}:{pk+3}], v8, {'s[24:27]' if c < 2 else 's[28:31]'}, s23 offen {ST}")
        self.phase_end()
        self.signal(lambda: (e("s_lshl_b32 s46, s5, 7"), e("s_lshl_b32 s47, s4, 2"), e("s_add_u32 s46, s46, s47"), e(f"s_add_u32 s46, s46, {F1}")),
                    nrep=8, rep_stride=1024)
        if self.MODCRIT < 192: self.mod_late_a()
        if self.REPACK:
            rpi = self.lab("rpi")
            e("s_cmp_eq_u32 s3, 7"); e(f"s_cbranch_scc1 {rpi}")
            self.repack_issue()
            self.a.label(rpi)
        self.stamp(6)

    def l2_prefetch(self, vtmp, vdst):
        e = self.e
        e("s_and_b32 s20, s2, 7"); e("s_lshr_b32 s21, s2, 3")
        e(f"v_lshlrev_b32 v{vtmp}, 7, v1")
        self.srd(48, P_WSP, 0, 2048*2048*2)
        e("s_and_b32 s22, s20, 3"); e("s_lshl_b32 s22, s22, 21"); e("s_lshl_b32 s23, s21, 16"); e("s_add_u32 s22, s22, s23")
        e("s_lshl_b32 s23, s3, 13"); e("s_add_u32 s22, s22, s23")
        e(f"buffer_load_dword v{vdst}, v{vtmp}, s[48:51], s22 offen")
        if self.REPACK:
            self.srd(48, P_WS, WS_WINP, 8*512*448)
            e("s_lshr_b32 s22, s20, 2"); e(f"s_mul_i32 s22, s22, {4*512*448}")
            e(f"s_mul_i32 s23, s21, {224*128}"); e("s_add_u32 s22, s22, s23")
            e("s_lshl_b32 s23, s3, 13"); e("s_add_u32 s22, s22, s23")
            pw4 = self.lab("pf4")
            e("s_cmp_ge_u32 s3, 4"); e(f"s_cbranch_scc1 {pw4}")
            e(f"buffer_load_dword v{vdst+2}, v{vtmp}, s[48:51], s22 offen")
            self.a.label(pw4)
        else:
            self.srd(48, P_WIN, 0, 512*1792*2)
            e(f"v_lshrrev_b32 v{vdst+1}, 5, v1"); e(f"v_bfe_u32 v{vdst+2}, v1, 4, 1")
            e(f"v_and_b32 v{vdst+3}, 15, v1"); e(f"v_min_u32 v{vdst+3}, 7, v{vdst+3}")
            e(f"v_mul_u32_u24 v{vdst+1}, 3584, v{vdst+1}"); e(f"v_mul_u32_u24 v{vdst+2}, 1792, v{vdst+2}")
            e(f"v_add_u32 v{vdst+1}, v{vdst+1}, v{vdst+2}"); e(f"v_lshl_add_u32 v{vdst+1}, v{vdst+3}, 7, v{vdst+1}")
            e("s_lshr_b32 s22, s20, 2"); e("s_mul_i32 s22, s22, 896")
            e("s_lshl_b32 s23, s21, 4"); e("s_lshl_b32 s46, s3, 1"); e("s_add_u32 s23, s23, s46"); e("s_mul_i32 s23, s23, 3584")
            e("s_add_u32 s22, s22, s23")
            e(f"buffer_load_dword v{vdst+2}, v{vdst+1}, s[48:51], s22 offen")
        e(f"v_lshrrev_b32 v{vdst+1}, 2, v1"); e(f"v_and_b32 v{vdst+3}, 3, v1")
        e(f"v_lshlrev_b32 v{vdst+1}, 10, v{vdst+1}"); e(f"v_lshl_add_u32 v{vdst+1}, v{vdst+3}, 7, v{vdst+1}")
        e("s_lshr_b32 s22, s20, 2"); e("s_lshl_b32 s22, s22, 9")
        lw = self.lab("pf_w"); lx = self.lab("pf_x")
        e("s_cmp_ge_u32 s3, 2"); e(f"s_cbranch_scc1 {lw}")
        self.srd(48, P_WOUT, 0, 896*512*2)
        e("s_mul_i32 s23, s21, 28"); e("s_lshl_b32 s46, s3, 4"); e("s_add_u32 s23, s23, s46"); e("s_lshl_b32 s23, s23, 10")
        e("s_add_u32 s22, s22, s23")
        e(f"buffer_load_dword v{vdst+3}, v{vdst+1}, s[48:51], s22 offen")
        e(f"s_branch {lx}")
        self.a.label(lw)
        e("s_cmp_lg_u32 s3, 2"); e(f"s_cbranch_scc1 {lx}")
        self.srd(48, P_WO, 0, 512*512*2)
        e("s_lshl_b32 s23, s21, 14"); e("s_add_u32 s22, s22, s23")
        e(f"buffer_load_dword v{vdst+3}, v{vdst+1}, s[48:51], s22 offen")
        self.a.label(lx)

    def p2(self):
        e = self.e
        end = self.lab("att_end")
        H, QB_ = S_HEAD, S_QB
        self.srd(8, P_WS, WS_QK, 4*MB)
        self.srd(12, P_WS, WS_V, 2*MB)
        self.srd(16, P_WS, WS_O, 2*MB)
        e("s_and_b32 s6, s3, 3"); e("s_lshr_b32 s7, s3, 2")
        e("v_lshlrev_b32 v2, 4, v1")
        QA, QB = 8, 12
        SA, SB = 32, 48
        PA, PB = 64, 72
        OA, OB = 80, 96
        CA, CB = 112, 128
        KF = 144; VF = 152
        AK, AV = 4, 5
        FLAG = 131072 + 20480
        e(f"v_mov_b32 v3, {FLAG}"); e("v_mov_b32 v4, 0"); e("ds_write_b32 v3, v4")
        e("v_and_b32 v6, 31, v1"); e("v_and_b32 v7, 27, v6"); e("v_cmp_eq_u32 vcc, 16, v7")
        e("v_mov_b32 v16, 0x3f803f80"); e("v_cndmask_b32 v16, 0, v16, vcc")
        for r in range(16): e(f"v_mov_b32 v{VF+r}, v16")
        e("v_cmp_gt_u32 s[30:31], 16, v6")
        for r in range(16):
            e(f"v_mov_b32 v{CA+r}, 0"); e(f"v_mov_b32 v{CB+r}, 0")
        e("s_mov_b32 s33, 0")
        def cKV():
            e("s_and_b32 s46, s2, 7"); e("s_lshl_b32 s46, s46, 10"); e(f"s_add_u32 s46, s46, {F1}")
            e(f"s_lshr_b32 s44, s{H}, 3"); e("s_add_u32 s44, s44, 4"); e("s_lshl_b32 s44, s44, 7")
            e(f"s_lshr_b32 s45, s{H}, 2"); e("s_lshl_b32 s45, s45, 7")
            e("v_and_b32 v251, 31, v1"); e("v_lshlrev_b32 v251, 2, v251")
            e("v_mov_b32 v252, s44"); e("v_mov_b32 v253, s45")
            e("v_cmp_gt_u32 vcc, 32, v1"); e("v_cndmask_b32 v252, v253, v252, vcc")
            e("v_add_u32 v251, v251, v252")
        def cQ():
            e("s_and_b32 s46, s2, 7"); e("s_lshl_b32 s46, s46, 10"); e(f"s_add_u32 s46, s46, {F1}")
            e(f"s_lshr_b32 s44, s{H}, 3"); e("s_lshl_b32 s44, s44, 7"); e("s_add_u32 s46, s46, s44")
            e(f"s_lshl_b32 s44, s{QB_}, 4"); e("s_add_u32 s46, s46, s44")
            e("v_lshlrev_b32 v251, 2, v1")
        self.wait_flags([(cKV, (1 << 64) - 1), (cQ, 0xf)])
        self.stamp(7)
        e(f"s_lshl_b32 s20, s{QB_}, 3"); e("s_lshl_b32 s21, s6, 1"); e("s_add_u32 s20, s20, s21"); e("s_lshl_b32 s20, s20, 10")
        e(f"s_lshl_b32 s21, s{H}, 16"); e("s_add_u32 s20, s20, s21")
        e(f"buffer_load_dwordx4 v[{QA}:{QA+3}], v2, s[8:11], s20 offen")
        e(f"buffer_load_dwordx4 v[{QB}:{QB+3}], v2, s[8:11], s20 offen offset:1024")
        e(f"s_lshl_b32 s41, s{H}, 16"); e(f"s_add_u32 s40, s41, {32*65536}"); e("s_lshl_b32 s42, s3, 10")
        e("s_add_u32 s40, s40, s42"); e("s_add_u32 s41, s41, s42")
        def dma_half(half):
            e(f"s_add_u32 s20, s40, {32*half*1024}")
            self.dma(2, 8, "s20", f"s_add_u32 m0, s42, {32*half*1024}")
            e(f"s_add_u32 s20, s41, {32*half*1024}")
            self.dma(2, 12, "s20", f"s_add_u32 m0, s42, {65536 + 32*half*1024}")
        def next_chunk():
            e("s_add_u32 s40, s40, 8192"); e("s_add_u32 s41, s41, 8192"); e("s_add_u32 s42, s42, 8192")
        dma_half(0); dma_half(1); next_chunk()
        if self.MODCRIT < 192: self.mod_late_b()
        lrestart = self.lab("att_restart")
        self.a.label(lrestart)
        for r in range(16):
            e(f"v_mov_b32 v{OA+r}, 0"); e(f"v_mov_b32 v{OB+r}, 0")
        e("s_lshl_b32 s20, s7, 15"); e(f"v_add_u32 v{AK}, s20, v2")
        e("v_lshrrev_b32 v6, 5, v1"); e("v_and_b32 v7, 15, v1"); e("v_lshlrev_b32 v7, 4, v7"); e("v_lshl_add_u32 v7, v6, 8, v7")
        e("s_add_u32 s20, s20, 65536"); e(f"v_add_u32 v{AV}, s20, v7")
        for r in range(8): e(f"v_mov_b32 v{PB+r}, 0")
        if self.BALANCE:
            e("s_lshl_b32 s20, s3, 2"); e(f"s_add_u32 s20, s20, {151552 + 64}"); e("v_mov_b32 v17, s20")
            e("s_xor_b32 s20, s20, 16"); e("v_mov_b32 v18, s20")
            e("v_mov_b32 v19, 0"); e("ds_write_b32 v17, v19")
        e("s_mov_b64 exec, s[30:31]")
        for r in range(8): e(f"v_mov_b32 v{VF+8+r}, 0")
        e("s_mov_b64 exec, -1")
        def rdK(buf, off): e(f"ds_read_b128 v[{KF+4*buf}:{KF+4*buf+3}], v{AK} offset:{off}")
        def rdV(buf, off):
            e("s_mov_b64 exec, s[30:31]")
            e(f"ds_read_b128 v[{VF+8*buf}:{VF+8*buf+3}], v{AV} offset:{off}")
            e(f"ds_read_b128 v[{VF+8*buf+4}:{VF+8*buf+7}], v{AV} offset:{off+512}")
            e("s_mov_b64 exec, -1")
        def qk(S, C, Q, buf): e(f"v_mfma_f32_32x32x16_bf16 v[{S}:{S+15}], v[{KF+4*buf}:{KF+4*buf+3}], v[{Q}:{Q+3}], v[{C}:{C+15}]")
        def pv(O, P, buf, mf): e(f"v_mfma_f32_32x32x16_bf16 v[{O}:{O+15}], v[{VF+8*buf+4*mf}:{VF+8*buf+4*mf+3}], v[{P+4*mf}:{P+4*mf+3}], v[{O}:{O+15}]")
        def step(S, P, first, mid1, mid2, pre=None, extra=None):
            if pre: pre()
            first()
            k = 0
            for j in range(16):
                e(f"v_exp_f32 v{S+j}, v{S+j}")
                if j >= 3 and j % 2 == 1:
                    e(f"v_cvt_pk_bf16_f32 v{P+k}, v{S+2*k}, v{S+2*k+1}"); k += 1
                if j == self.M1 and mid1: mid1()
                if j == 7 and extra: extra()
                if j == self.M2 and mid2: mid2()
            while k < 8:
                e(f"v_cvt_pk_bf16_f32 v{P+k}, v{S+2*k}, v{S+2*k+1}"); k += 1
        e("s_waitcnt vmcnt(0) lgkmcnt(0)")
        e("s_barrier")
        self.stamp(8)
        if self.REPACK:
            rps = self.lab("att_rps")
            e("s_cmp_lg_u32 s33, 0"); e(f"s_cbranch_scc1 {rps}")
            self.repack_store()
            self.a.label(rps)
        rdK(0, 0); rdV(0, 0)
        e("s_waitcnt lgkmcnt(0)")
        cz = {"zero": False}
        def qkz(S, C, Q, buf):
            c = "0" if cz["zero"] else f"v[{C}:{C+15}]"
            e(f"v_mfma_f32_32x32x16_bf16 v[{S}:{S+15}], v[{KF+4*buf}:{KF+4*buf+3}], v[{Q}:{Q+3}], {c}")
        def body(extra):
            step(SA, PA, lambda: qkz(SB, CB, QB, 0), lambda: pv(OB, PB, 1, 0), lambda: pv(OB, PB, 1, 1), pre=lambda: rdK(1, 1024), extra=extra)
            def preB0():
                rdV(1, 1024); e("s_waitcnt lgkmcnt(2)")
                if self.BALANCE:
                    e("v_mov_b32 v19, s34")
                    e("ds_write_b32 v17, v19")
                    e("ds_read_b32 v24, v18")
            step(SB, PB, lambda: qkz(SA, CA, QA, 1), lambda: pv(OA, PA, 0, 0), lambda: pv(OA, PA, 0, 1), pre=preB0)
            step(SA, PA, lambda: qkz(SB, CB, QB, 1), lambda: pv(OB, PB, 0, 0), lambda: pv(OB, PB, 0, 1), pre=lambda: rdK(0, 2048))
            def preB1():
                rdV(0, 2048); e("s_waitcnt lgkmcnt(2)")
                if self.BALANCE:
                    e("v_readfirstlane_b32 s20, v24")
                    e("s_cmp_gt_u32 s34, s20"); e("s_cselect_b32 s20, 0, 1")
                    hi = self.lab("att_hi"); dn_ = self.lab("att_pd")
                    e("s_cmp_eq_u32 s20, 1"); e(f"s_cbranch_scc1 {hi}")
                    e("s_setprio 0"); e(f"s_branch {dn_}")
                    self.a.label(hi)
                    e("s_setprio 1")
                    self.a.label(dn_)
            step(SB, PB, lambda: qkz(SA, CA, QA, 0), lambda: pv(OA, PA, 1, 0), lambda: pv(OA, PA, 1, 1), pre=preB1)
            e(f"v_add_u32 v{AK}, 2048, v{AK}"); e(f"v_add_u32 v{AV}, 2048, v{AV}")
            e("s_add_u32 s34, s34, 1")
        lslowloop = self.lab("att_slowloop"); ltail = self.lab("att_tail")
        qk(SA, CA, QA, 0)
        e("s_mov_b32 s34, 0")
        e("s_cmp_lg_u32 s33, 0"); e(f"s_cbranch_scc1 {lslowloop}")
        cz["zero"] = True
        loop = self.lab("att_loop"); nb = self.lab("att_nobar")
        self.a.label(loop)
        if self.PREFETCH:
            pf = self.lab("att_pf")
            e("s_cmp_lg_u32 s34, 4"); e(f"s_cbranch_scc1 {pf}")
            self.l2_prefetch(170, 172)
            self.a.label(pf)
        e("s_cmp_lg_u32 s34, 3"); e(f"s_cbranch_scc1 {nb}")
        e("s_waitcnt vmcnt(0)")
        e("s_barrier")
        if self.MODCRIT < 192: self.mod_late_flag()
        self.a.label(nb)
        def extra_dma():
            sk = self.lab("att_nd")
            e("s_cmp_ge_u32 s34, 3"); e(f"s_cbranch_scc1 {sk}")
            dma_half(0); dma_half(1); next_chunk()
            self.a.label(sk)
        body(extra_dma)
        e("s_cmp_lt_u32 s34, 5"); e(f"s_cbranch_scc1 {loop}")
        lean = self.lab("att_lean")
        self.a.label(lean)
        body(None)
        e("s_cmp_lt_u32 s34, 16"); e(f"s_cbranch_scc1 {lean}")
        e(f"s_branch {ltail}")
        cz["zero"] = False
        self.a.label(lslowloop)
        body(None)
        e("s_cmp_lt_u32 s34, 16"); e(f"s_cbranch_scc1 {lslowloop}")
        self.a.label(ltail)
        if self.BALANCE:
            e("v_mov_b32 v19, 64"); e("ds_write_b32 v17, v19"); e("s_setprio 0")
        self.stamp(9)
        pv(OB, PB, 1, 0); pv(OB, PB, 1, 1)
        SCR = 131072
        e("s_mul_i32 s20, s3, 2560"); e(f"s_add_u32 s20, s20, {SCR}")
        e("v_add_u32 v6, s20, v2"); e("v_lshlrev_b32 v7, 2, v1"); e("v_add_u32 v7, s20, v7")
        lk1 = self.lab("att_k1"); lx = self.lab("att_x")
        e("s_cmp_eq_u32 s7, 0"); e(f"s_cbranch_scc1 {lk1}")
        e(f"ds_write_b128 v6, v[{OA}:{OA+3}]"); e(f"ds_write_b128 v6, v[{OA+4}:{OA+7}] offset:1024"); e(f"ds_write_b32 v7, v{OA+8} offset:2048")
        for r in range(9): e(f"v_mov_b32 v{OA+r}, v{OB+r}")
        e(f"s_branch {lx}")
        self.a.label(lk1)
        e(f"ds_write_b128 v6, v[{OB}:{OB+3}]"); e(f"ds_write_b128 v6, v[{OB+4}:{OB+7}] offset:1024"); e(f"ds_write_b32 v7, v{OB+8} offset:2048")
        self.a.label(lx)
        e("s_xor_b32 s21, s3, 4"); e("s_mul_i32 s21, s21, 2560"); e(f"s_add_u32 s21, s21, {SCR}")
        e("v_add_u32 v6, s21, v2"); e("v_lshlrev_b32 v7, 2, v1"); e("v_add_u32 v7, s21, v7")
        e("s_waitcnt lgkmcnt(0)"); e("s_barrier")
        e(f"ds_read_b128 v[{SA}:{SA+3}], v6"); e(f"ds_read_b128 v[{SA+4}:{SA+7}], v6 offset:1024"); e(f"ds_read_b32 v{SA+8}, v7 offset:2048")
        e(f"v_mov_b32 v20, {fl(2.0**-24)}"); e(f"v_mov_b32 v21, {fl(2.0**40)}"); e(f"v_mov_b32 v22, 0x7f7fffff")
        e("s_waitcnt lgkmcnt(0)")
        for r in range(9): e(f"v_add_f32 v{OA+r}, v{OA+r}, v{SA+r}")
        e(f"v_max3_f32 v23, |v{OA}|, |v{OA+1}|, |v{OA+2}|"); e(f"v_max3_f32 v23, v23, |v{OA+3}|, |v{OA+4}|")
        e(f"v_max3_f32 v23, v23, |v{OA+5}|, |v{OA+6}|"); e(f"v_max_f32 v23, v23, |v{OA+7}|")
        e(f"v_cmp_ge_f32 vcc, v{OA+8}, v20"); e(f"v_cmp_le_f32 s[36:37], v{OA+8}, v21"); e(f"v_cmp_le_f32 s[38:39], v23, v22")
        e("s_and_b64 s[36:37], s[36:37], vcc"); e("s_and_b64 s[36:37], s[36:37], s[38:39]")
        lok = self.lab("att_ok")
        e("s_cmp_eq_u64 s[36:37], -1"); e(f"s_cbranch_scc1 {lok}")
        e(f"v_mov_b32 v3, {FLAG}"); e("v_mov_b32 v20, 1"); e("ds_write_b32 v3, v20"); e("s_waitcnt lgkmcnt(0)")
        self.a.label(lok)
        e(f"v_rcp_f32 v20, v{OA+8}")
        for r in range(8): e(f"v_mul_f32 v{OA+r}, v{OA+r}, v20")
        for q in range(4): e(f"v_cvt_pk_bf16_f32 v{SB+q}, v{OA+2*q}, v{OA+2*q+1}")
        e("s_barrier")
        e(f"v_mov_b32 v3, {FLAG}"); e("ds_read_b32 v20, v3")
        e(f"s_lshl_b32 s20, s{QB_}, 3"); e("s_lshl_b32 s21, s6, 1"); e("s_add_u32 s20, s20, s21"); e("s_add_u32 s20, s20, s7")
        e("s_lshl_b32 s20, s20, 15"); e(f"s_lshl_b32 s21, s{H}, 10"); e("s_add_u32 s22, s20, s21")
        e("s_waitcnt lgkmcnt(0)")
        e("v_readfirstlane_b32 s20, v20")
        lfin = self.lab("att_fin"); lslow = self.lab("att_slow")
        e("s_cmp_lg_u32 s33, 0"); e(f"s_cbranch_scc1 {lfin}")
        e("s_cmp_lg_u32 s20, 0"); e(f"s_cbranch_scc1 {lslow}")
        self.a.label(lfin)
        e(f"buffer_store_dwordx4 v[{SB}:{SB+3}], v2, s[16:19], s22 offen {ST}")
        e(f"s_branch {end}")
        self.a.label(lslow)
        e("s_mov_b32 s33, 8")
        e("s_lshl_b32 s20, s7, 15"); e(f"v_add_u32 v{AK}, s20, v2")
        e("v_mov_b32 v20, 0xff800000"); e("v_mov_b32 v21, 0xff800000")
        e("s_mov_b32 s34, 0")
        sl = self.lab("att_sl")
        self.a.label(sl)
        rdK(0, 0); e("s_waitcnt lgkmcnt(0)")
        e(f"v_mfma_f32_32x32x16_bf16 v[{SA}:{SA+15}], v[{KF}:{KF+3}], v[{QA}:{QA+3}], 0")
        e(f"v_mfma_f32_32x32x16_bf16 v[{SB}:{SB+15}], v[{KF}:{KF+3}], v[{QB}:{QB+3}], 0")
        for r in range(0, 16, 2): e(f"v_max3_f32 v20, v20, v{SA+r}, v{SA+r+1}")
        for r in range(0, 16, 2): e(f"v_max3_f32 v21, v21, v{SB+r}, v{SB+r+1}")
        e(f"v_add_u32 v{AK}, 1024, v{AK}")
        e("s_add_u32 s34, s34, 1"); e("s_cmp_lt_u32 s34, 32"); e(f"s_cbranch_scc1 {sl}")
        for r in (20, 21):
            e(f"v_mov_b32 v22, v{r}"); e(f"v_permlane32_swap_b32 v{r}, v22"); e(f"v_max_f32 v{r}, v{r}, v22")
        e("s_lshl_b32 s20, s3, 9"); e(f"s_add_u32 s20, s20, {SCR}")
        e("v_lshlrev_b32 v6, 2, v1"); e("v_add_u32 v7, s20, v6")
        e("s_barrier")
        e("ds_write_b32 v7, v20"); e("ds_write_b32 v7, v21 offset:256"); e("s_waitcnt lgkmcnt(0)"); e("s_barrier")
        e("s_xor_b32 s20, s3, 4"); e("s_lshl_b32 s20, s20, 9"); e(f"s_add_u32 s20, s20, {SCR}"); e("v_add_u32 v7, s20, v6")
        e("ds_read_b32 v22, v7"); e("ds_read_b32 v23, v7 offset:256"); e("s_waitcnt lgkmcnt(0)")
        e("v_max_f32 v20, v20, v22"); e("v_max_f32 v21, v21, v23")
        for r in range(16):
            e(f"v_sub_f32 v{CA+r}, 0, v20"); e(f"v_sub_f32 v{CB+r}, 0, v21")
        e("s_barrier")
        e(f"s_branch {lrestart}")
        self.a.label(end)
        self.phase_end()
        self.signal(lambda: (e(f"s_lshl_b32 s46, s{QB_}, 7"), e(f"s_lshl_b32 s47, s{H}, 2"), e("s_add_u32 s46, s46, s47"), e(f"s_add_u32 s46, s46, {F2}")))
        self.stamp(10)

    def proj_wvoff(self):
        e = self.e
        e("v_lshlrev_b32 v2, 4, v1")
        e("v_lshrrev_b32 v3, 3, v1"); e("v_and_b32 v4, 7, v1"); e("v_bfe_u32 v5, v3, 1, 1"); e("v_lshlrev_b32 v5, 2, v5")
        e("v_xor_b32 v4, v4, v5"); e("v_lshlrev_b32 v3, 10, v3"); e("v_lshl_add_u32 v3, v4, 4, v3")
        e("s_lshl_b32 s20, s5, 7"); e("v_add_u32 v3, s20, v3")

    def proj_epi_addr(self):
        e = self.e
        e("v_lshrrev_b32 v14, 2, v1"); e("v_and_b32 v15, 3, v1")
        e("s_and_b32 s20, s3, 1"); e("s_lshl_b32 s20, s20, 5"); e("s_lshl_b32 s21, s4, 6"); e("s_add_u32 s20, s20, s21")
        e("s_lshr_b32 s21, s3, 2"); e("s_lshl_b32 s21, s21, 4"); e("s_add_u32 s36, s20, s21")
        e("v_add_u32 v16, s36, v14"); e("v_lshlrev_b32 v16, 10, v16"); e("v_lshl_add_u32 v16, v15, 4, v16")
        e("s_bfe_u32 s20, s3, 0x10001"); e("s_lshl_b32 s20, s20, 6"); e("s_lshl_b32 s21, s5, 7"); e("s_add_u32 s32, s20, s21")
        e("v_lshlrev_b32 v17, 5, v15"); e("s_lshl_b32 s33, s32, 1")

    def proj_gate_loads(self, gate_chunk):
        e = self.e
        for kq in range(4):
            e(f"s_add_u32 s20, s33, {kq*12288 + gate_chunk*2048}")
            for hh in range(2):
                e(f"buffer_load_dwordx4 v[{160+8*kq+4*hh}:{163+8*kq+4*hh}], v17, s[28:31], s20 offen offset:{16*hh}")

    def proj_addr(self, natural, xbase, wbase):
        e = self.e
        e("s_and_b32 s20, s3, 1"); e("s_lshl_b32 s20, s20, 13"); e("s_lshr_b32 s21, s3, 2"); e("s_lshl_b32 s22, s21, 12")
        e("s_add_u32 s20, s20, s22"); e(f"s_add_u32 s20, s20, {xbase}"); e("v_add_u32 v8, s20, v2")
        e("v_lshrrev_b32 v4, 4, v1"); e("v_and_b32 v5, 15, v1"); e("v_lshrrev_b32 v6, 2, v5"); e("v_and_b32 v7, 3, v5")
        e("v_lshrrev_b32 v10, 1, v4"); e("v_and_b32 v11, 1, v4")
        e(f"v_lshl_add_u32 v12, v10, {3 if natural else 2}, v6"); e("v_lshlrev_b32 v12, 7, v12")
        e("v_bfe_u32 v13, v6, 1, 1"); e("s_bfe_u32 s20, s3, 0x10001"); e("v_xor_b32 v13, s20, v13")
        e("v_lshl_add_u32 v12, v13, 6, v12"); e("v_lshl_add_u32 v12, v11, 5, v12"); e("v_lshl_add_u32 v12, v7, 3, v12")
        e("s_lshl_b32 s22, s21, 13"); e(f"s_add_u32 s22, s22, {wbase}"); e("v_add_u32 v9, s22, v12")

    def proj_chunk(self, ACC, xoff, wreg, woff, natural):
        e = self.e
        tstep = (4 if natural else 8) * 128
        for ks in range(4):
            b = 96 + 8*ks
            e(f"ds_read_b128 v[{b}:{b+3}], v8 offset:{xoff + ks*1024}")
            e(f"ds_read_b64_tr_b16 v[{b+4}:{b+5}], v{wreg} offset:{woff + ks*2048}")
            e(f"ds_read_b64_tr_b16 v[{b+6}:{b+7}], v{wreg} offset:{woff + ks*2048 + tstep}")
        for ks in range(4):
            b = 96 + 8*ks
            e(f"s_waitcnt lgkmcnt({3*(3-ks)})")
            e(f"v_mfma_f32_32x32x16_bf16 v[{ACC}:{ACC+15}], v[{b+4}:{b+7}], v[{b}:{b+3}], v[{ACC}:{ACC+15}]")

    def proj_epilogue(self, ACC, srd_out, flags, stats):
        e = self.e
        e("s_barrier")
        e("s_mul_i32 s20, s3, 4608")
        e("v_and_b32 v18, 31, v1"); e("v_mul_u32_u24 v18, 144, v18"); e("v_lshrrev_b32 v19, 5, v1")
        e("v_lshl_add_u32 v18, v19, 4, v18"); e("v_add_u32 v18, s20, v18")
        for g in range(4): e(f"ds_write_b128 v18, v[{ACC+4*g}:{ACC+4*g+3}] offset:{32*g}")
        e("s_waitcnt vmcnt(0)")
        for q in range(4):
            for kq in (1,):
                e(f"v_pk_add_f32 v[{160+2*q}:{161+2*q}], v[{160+2*q}:{161+2*q}], v[{168+2*q}:{169+2*q}]")
                e(f"v_pk_add_f32 v[{176+2*q}:{177+2*q}], v[{176+2*q}:{177+2*q}], v[{184+2*q}:{185+2*q}]")
        for q in range(4):
            e(f"v_pk_add_f32 v[{160+2*q}:{161+2*q}], v[{160+2*q}:{161+2*q}], v[{176+2*q}:{177+2*q}]")
        for q in range(4):
            e(f"v_cvt_pk_bf16_f32 v{168+q}, v{160+2*q}, v{161+2*q}")
        for q in range(4):
            e(f"v_lshlrev_b32 v{160+2*q}, 16, v{168+q}"); e(f"v_and_b32 v{161+2*q}, 0xffff0000, v{168+q}")
        e("s_and_b32 s20, s3, 3"); e("s_mul_i32 s20, s20, 4608"); e("s_lshr_b32 s21, s3, 2"); e(f"s_mul_i32 s21, s21, {16*144}")
        e("s_add_u32 s20, s20, s21")
        e("v_mul_u32_u24 v18, 144, v14"); e("v_lshl_add_u32 v18, v15, 5, v18"); e("v_add_u32 v18, s20, v18")
        e("s_waitcnt lgkmcnt(0)"); e("s_barrier")
        e("ds_read_b128 v[48:51], v18"); e("ds_read_b128 v[52:55], v18 offset:16")
        e(f"ds_read_b128 v[56:59], v18 offset:{4*4608}"); e(f"ds_read_b128 v[60:63], v18 offset:{4*4608+16}")
        e("s_waitcnt lgkmcnt(0)")
        for q in range(4):
            e(f"v_pk_add_f32 v[{48+2*q}:{49+2*q}], v[{48+2*q}:{49+2*q}], v[{56+2*q}:{57+2*q}]")
        for q in range(4):
            e(f"v_lshlrev_b32 v{56+2*q}, 16, v{32+q}"); e(f"v_and_b32 v{57+2*q}, 0xffff0000, v{32+q}")
        for q in range(4):
            e(f"v_pk_fma_f32 v[{56+2*q}:{57+2*q}], v[{160+2*q}:{161+2*q}], v[{48+2*q}:{49+2*q}], v[{56+2*q}:{57+2*q}]")
        for q in range(4):
            e(f"v_cvt_pk_bf16_f32 v{32+q}, v{56+2*q}, v{57+2*q}")
        e(f"buffer_store_dwordx4 v[32:35], v16, {sr(srd_out,4)}, s32 offen {flags}")
        if stats:
            e("v_pk_add_f32 v[48:49], v[56:57], v[58:59]"); e("v_pk_add_f32 v[50:51], v[60:61], v[62:63]")
            e("v_pk_add_f32 v[48:49], v[48:49], v[50:51]"); e("v_add_f32 v48, v48, v49")
            for m in ("quad_perm:[1,0,3,2]", "quad_perm:[2,3,0,1]"):
                e(f"v_add_f32_dpp v48, v48, v48 {m} row_mask:0xf bank_mask:0xf")
            e(f"v_mul_f32 v48, {fl(1.0/32)}, v48")
            e("v_sub_f32 v50, 0, v48"); e("v_mov_b32 v51, v50")
            for q in range(4): e(f"v_pk_add_f32 v[{56+2*q}:{57+2*q}], v[{56+2*q}:{57+2*q}], v[50:51]")
            e("v_pk_mul_f32 v[52:53], v[56:57], v[56:57]")
            for q in range(1, 4): e(f"v_pk_fma_f32 v[52:53], v[{56+2*q}:{57+2*q}], v[{56+2*q}:{57+2*q}], v[52:53]")
            e("v_add_f32 v49, v52, v53")
            for m in ("quad_perm:[1,0,3,2]", "quad_perm:[2,3,0,1]"):
                e(f"v_add_f32_dpp v49, v49, v49 {m} row_mask:0xf bank_mask:0xf")
            self.srd(40, P_WS, WS_STX, 2048*128)
            e("v_add_u32 v18, s36, v14"); e("v_lshlrev_b32 v18, 7, v18")
            e("s_bfe_u32 s20, s3, 0x10001"); e("s_lshl_b32 s21, s5, 1"); e("s_add_u32 s20, s20, s21"); e("s_lshl_b32 s20, s20, 3")
            e("v_cmp_eq_u32 vcc, 0, v15"); e("s_and_saveexec_b64 s[44:45], vcc")
            e(f"buffer_store_dwordx2 v[48:49], v18, s[40:43], s20 offen {ST}")
            e("s_mov_b64 exec, s[44:45]")

    def p3(self):
        e = self.e
        self.srd(8, P_WS, WS_O, 2*MB); self.srd(12, P_WO, 0, 512*512*2)
        self.srd(16, P_X, 0, 2*MB); self.srd(24, P_WS, WS_X1, 2*MB); self.srd(28, P_WS, WS_MOD, 49152)
        self.proj_wvoff()
        self.proj_addr(False, 65536, 0)
        self.proj_epi_addr()
        def pre3():
            for m in range(10):
                sk = None
                if m == 9:
                    sk = self.lab("p3w"); e("s_cmp_lg_u32 s3, 0"); e(f"s_cbranch_scc1 {sk}")
                e(f"s_add_u32 s21, s3, {7*m}"); e("s_lshl_b32 s20, s21, 13"); e("s_lshl_b32 s21, s21, 10")
                self.dma(3, 12, "s20", "s_mov_b32 m0, s21")
                if sk: self.a.label(sk)
        def cO():
            e("s_lshr_b32 s46, s4, 2"); e("s_lshl_b32 s46, s46, 7"); e(f"s_add_u32 s46, s46, {F2}"); e("v_lshlrev_b32 v251, 2, v1")
        def cM(k):
            def f():
                e("s_and_b32 s46, s2, 7"); e("s_lshl_b32 s46, s46, 10"); e(f"s_add_u32 s46, s46, {F0 + 256*k}"); e("v_lshlrev_b32 v251, 2, v1")
            return f
        self.wait_flags([(cM(1), (1 << 64) - 1), (cM(2), (1 << 64) - 1), (cO, 0xffffffff)], pre=pre3, w7_after=False)
        self.stamp(11)
        e(f"s_mul_i32 s6, s4, {2*32*1024}"); e("s_lshl_b32 s21, s3, 10"); e("s_add_u32 s6, s6, s21")
        for c in range(4):
            for tt in range(2):
                e(f"s_add_u32 s20, s6, {tt*32*1024 + c*8*1024}")
                self.dma(2, 8, "s20", f"s_add_u32 m0, s21, {65536 + c*16384 + tt*8192}")
            if c < 3: e("s_barrier")
        e("buffer_load_dwordx4 v[32:35], v16, s[16:19], s32 offen")
        self.proj_gate_loads(2)
        ACC = 64
        for r in range(16): e(f"v_mov_b32 v{ACC+r}, 0")
        for c in range(4):
            e(f"s_waitcnt vmcnt({2*(3-c) + 9})"); e("s_barrier")
            if c == 0: self.stamp(35)
            self.proj_chunk(ACC, c*16384, 9, c*16384, False)
        self.stamp(36)
        self.proj_epilogue(ACC, 24, ST, True)
        self.stamp(37)
        self.phase_end()
        self.signal(lambda: (e("s_lshl_b32 s46, s4, 7"), e("s_lshl_b32 s47, s5, 2"), e("s_add_u32 s46, s46, s47"), e(f"s_add_u32 s46, s46, {F3}")))
        self.stamp(12)

    def p4(self):
        e = self.e
        RING = 65536; SL = 14336; D = 6; MODL = RING + D*SL
        PART = 155648
        Z1L = 135168
        self.srd(8, P_WS, WS_X1, 2*MB)
        self.srd(12, P_WS, WS_MOD, 49152)
        self.srd(16, P_WIN, 0, 512*1792*2)
        self.srd(28, P_WS, WS_Z2, 56*64*1024)
        self.srd(36, P_WS, WS_ST, 32*8*64*16)
        for m in range(2):
            d = 192 + m
            e(f"s_lshl_b32 s20, s3, 6"); e(f"s_add_u32 s20, s20, {512*m}")
            e(f"v_add_u32 v200, s20, v1")
            e(f"v_mul_u32_u24 v201, 4682, v200"); e(f"v_lshrrev_b32 v201, 16, v201")
            e(f"v_mul_u32_u24 v202, 14, v201"); e(f"v_sub_u32 v202, v200, v202")
            e(f"v_lshrrev_b32 v203, 1, v202")
            e(f"v_xor_b32 v204, 4, v203"); e(f"v_cmp_eq_u32 vcc, 3, v203"); e(f"v_cndmask_b32 v204, v204, v203, vcc")
            e(f"v_bfe_u32 v205, v201, 3, 1"); e(f"v_cmp_eq_u32 vcc, 1, v205"); e(f"v_cndmask_b32 v203, v203, v204, vcc")
            e(f"v_and_b32 v202, 1, v202"); e(f"v_lshl_or_b32 v202, v203, 1, v202")
            e(f"v_mul_u32_u24 v201, 3584, v201"); e(f"v_lshl_add_u32 v{d}, v202, 4, v201")
        e("s_lshl_b32 s7, s3, 10"); e(f"s_add_u32 s7, s7, {RING}")
        e("s_cmp_ge_u32 s3, 6"); e("s_cselect_b64 vcc, -1, 0"); e("v_cndmask_b32 v194, v193, v192, vcc")
        e("s_cselect_b32 s35, 0, 8192"); e("s_add_u32 s35, s35, s7")
        e("s_mul_i32 s33, s5, 224"); e("s_add_u32 s34, s33, 1792")
        def src(stage):
            e(f"s_add_u32 s23, s{34 if stage < 8 else 33}, {(stage % 8)*64*3584}")
        def issue(stage, cnt):
            src(stage)
            for m in range(cnt):
                self.dma(192+m, 16, "s23", f"s_add_u32 m0, s7, {(stage % D)*SL + m*8192}")
        def pre4():
            self.mod_issue(12, 3)
            for st in range(D-1):
                src(st)
                self.dma(192, 16, "s23", f"s_add_u32 m0, s7, {st*SL}")
                self.dma(194, 16, "s23", f"s_add_u32 m0, s35, {st*SL}")
            e(f"s_waitcnt vmcnt({2*(D-1)})")
            self.mod_finish(MODL)
        e("v_lshrrev_b32 v3, 4, v1"); e("v_and_b32 v4, 15, v1"); e("v_lshrrev_b32 v5, 2, v4"); e("v_and_b32 v6, 3, v4")
        e("v_lshl_add_u32 v7, v3, 3, v5"); e("v_mul_u32_u24 v7, 224, v7"); e("v_lshl_add_u32 v7, v6, 3, v7"); e(f"v_add_u32 v7, {RING}, v7")
        e("v_and_b32 v8, 1, v3"); e("v_cmp_eq_u32 vcc, 1, v8")
        e("s_lshr_b32 s20, s3, 1")
        for c in range(2):
            e(f"s_lshl_b32 s21, s20, 1"); e(f"s_add_u32 s21, s21, {c}")
            e("s_xor_b32 s22, s21, 4"); e("s_cmp_eq_u32 s21, 3"); e("s_cselect_b32 s22, s21, s22")
            e("v_mov_b32 v9, s21"); e("v_mov_b32 v10, s22"); e("v_cndmask_b32 v9, v9, v10, vcc")
            e(f"v_lshl_add_u32 v{200+c}, v9, 5, v7"); e(f"v_add_u32 v{202+c}, {4*SL}, v{200+c}")
        e("s_and_b32 s21, s3, 1"); e("s_lshl_b32 s21, s21, 5"); e("v_add_u32 v9, s21, v4"); e("v_lshlrev_b32 v9, 10, v9")
        for m in range(4):
            e(f"v_add_u32 v10, {4*m}, v3"); e(f"v_xor_b32 v10, v10, v4"); e(f"v_lshl_add_u32 v{208+m}, v10, 4, v9")
        def cX():
            e("s_lshl_b32 s46, s4, 7"); e(f"s_add_u32 s46, s46, {F3}"); e("v_lshlrev_b32 v251, 2, v1")
        self.wait_flags([(cX, 0xff)], pre=lambda: (pre4(), e("s_waitcnt lgkmcnt(0)")))
        self.stamp(13)
        e("s_lshl_b32 s6, s4, 16")
        self.ln_loads(8, 6)
        self.srd(40, P_WS, WS_STX, 2048*128)
        e("s_lshl_b32 s20, s4, 6"); e("s_lshl_b32 s21, s3, 3"); e("s_add_u32 s20, s20, s21"); e("s_lshl_b32 s20, s20, 7")
        e("v_lshlrev_b32 v6, 7, v3"); e("v_lshl_add_u32 v6, v4, 3, v6")
        e("buffer_load_dwordx2 v[8:9], v6, s[40:43], s20 offen")
        e("buffer_load_dwordx2 v[10:11], v6, s[40:43], s20 offen offset:512")
        e("s_waitcnt vmcnt(0)")
        self.stamp(14)
        self.ln2_prepare()
        e("s_barrier")
        self.ln_finish(MODL)
        ACCA, ACCB = 212, 228
        for r in range(32): e(f"v_mov_b32 v{ACCA+r}, 0")
        e("s_waitcnt lgkmcnt(0)"); e("s_barrier")
        self.stamp(15)
        NS = 16
        c0 = -2.0*math.sqrt(2.0/math.pi)*LOG2E
        c1 = c0*0.044715
        def gelu(accs):
            e(f"s_mov_b32 s20, {fl(c1)}"); e(f"v_mov_b32 v20, {fl(c0)}")
            for i0 in range(0, len(accs), 4):
                grp = accs[i0:i0+4]
                for k, z in enumerate(grp): e(f"v_mul_f32 v{24+k}, v{z}, v{z}")
                for k, z in enumerate(grp): e(f"v_fma_f32 v{24+k}, v{24+k}, s20, v20")
                for k, z in enumerate(grp): e(f"v_mul_f32 v{24+k}, v{24+k}, v{z}")
                for k, z in enumerate(grp): e(f"v_exp_f32 v{24+k}, v{24+k}")
                for k, z in enumerate(grp): e(f"v_add_f32 v{24+k}, 1.0, v{24+k}")
                for k, z in enumerate(grp): e(f"v_rcp_f32 v{24+k}, v{24+k}")
                for k, z in enumerate(grp): e(f"v_mul_f32 v{z}, v{z}, v{24+k}")
        v1l = self.lab("win_v1"); join = self.lab("win_join")
        e("s_cmp_ge_u32 s3, 6"); e(f"s_cbranch_scc1 {v1l}")
        for var in range(2):
            nt = 2 if var == 0 else 1
            cnt = 2 if var == 0 else 1
            if var == 1: self.a.label(v1l)
            def reads(stage, ks):
                n = 2*(stage % 8) + ks; buf = ks; slot = stage % D
                out = []
                if stage < 8:
                    for rt in range(2):
                        b = 64 + 8*n + 4*rt
                        out.append(f"ds_read_b128 v[{b}:{b+3}], v{208 + (n & 3)} offset:{rt*16384 + (n >> 2)*256}")
                for c in range(nt):
                    b = 32 + 16*(stage % 2) + 8*ks + 4*c
                    areg, off = (200 + c, slot*SL) if slot < 4 else (202 + c, (slot-4)*SL)
                    for t in range(2):
                        out.append(f"ds_read_b64_tr_b16 v[{b+2*t}:{b+2*t+1}], v{areg} offset:{off + (32*ks + 4*t)*224}")
                return out
            def mfmas(stage, ks):
                buf = ks; ACC = ACCA if stage < 8 else ACCB
                n = 2*(stage % 8) + ks
                out = []
                for c in range(nt):
                    for rt in range(2):
                        acc = ACC + 4*(rt*2 + c)
                        x = 64 + 8*n + 4*rt; w = 32 + 16*(stage % 2) + 8*ks + 4*c
                        A, B = (x, w) if stage < 8 else (w, x)
                        out.append(f"v_mfma_f32_16x16x32_bf16 v[{acc}:{acc+3}], v[{A}:{A+3}], v[{B}:{B+3}], v[{acc}:{acc+3}]")
                return out
            def inter(ms, rs):
                ri = 0
                for m in ms:
                    e(m)
                    for _ in range(2):
                        if ri < len(rs): e(rs[ri]); ri += 1
                for r in rs[ri:]: e(r)
            for r in reads(0, 0): e(r)
            for r in reads(0, 1): e(r)
            for n in range(NS):
                if n + 1 < NS:
                    if n + 1 >= D - 1:
                        allowed = cnt * len([s_ for s_ in range(max(n+2, D-1), min(n+D-1, NS))])
                        e(f"s_waitcnt vmcnt({allowed})")
                    e("s_barrier")
                if n == 8 and var == 0:
                    nx = self.lab("win_pub")
                    e("s_cmp_lg_u32 s3, 0"); e(f"s_cbranch_scc1 {nx}")
                    e("v_lshlrev_b32 v5, 3, v1"); e(f"v_add_u32 v5, {PART}, v5")
                    for q in range(4): e(f"ds_read_b64 v[{8+2*q}:{9+2*q}], v5 offset:{512*q}")
                    e("s_waitcnt lgkmcnt(0)")
                    e("v_pk_add_f32 v[8:9], v[8:9], v[10:11]"); e("v_pk_add_f32 v[12:13], v[12:13], v[14:15]")
                    e("v_pk_add_f32 v[8:9], v[8:9], v[12:13]")
                    e(f"v_mov_b32 v10, s{S_NONCE}"); e(f"v_mov_b32 v11, s{S_NONCE}")
                    e("v_lshlrev_b32 v6, 4, v1")
                    e("s_lshl_b32 s20, s4, 13"); e("s_lshl_b32 s21, s5, 10"); e("s_add_u32 s21, s21, s20")
                    e(f"buffer_store_dwordx4 v[8:11], v6, s[36:39], s21 offen {ST}")
                    self.a.label(nx)
                full = (n == 8)
                r0 = reads(n + 1, 0) if n + 1 < NS else []
                r1 = reads(n + 1, 1) if n + 1 < NS else []
                e(f"s_waitcnt lgkmcnt({0 if full else len(reads(n, 1))})")
                inter(mfmas(n, 0), r0)
                e(f"s_waitcnt lgkmcnt({len(r0)})")
                inter(mfmas(n, 1), r1)
                st = n + D - 1
                if st < NS: issue(st, cnt)
                if n == 7:
                    self.stamp(31)
                    accs = [ACCA + 4*(rt*2 + c) + r for c in range(nt) for rt in range(2) for r in range(4)]
                    gelu(accs)
                    e("v_lshrrev_b32 v3, 4, v1"); e("v_and_b32 v4, 15, v1")
                    regs = []
                    for rt in range(2):
                        for r in range(4):
                            sreg = (8, 10, 12, 14, 16, 18, 28, 30)[rt*4 + r]
                            a0 = ACCA + 4*(rt*2) + r
                            e(f"v_mov_b32 v{sreg}, v{a0}"); e(f"v_mul_f32 v{sreg+1}, v{a0}, v{a0}")
                            for c in range(1, nt):
                                a_ = ACCA + 4*(rt*2 + c) + r
                                e(f"v_add_f32 v{sreg}, v{sreg}, v{a_}"); e(f"v_fmac_f32 v{sreg+1}, v{a_}, v{a_}")
                            regs += [sreg, sreg+1]
                    self.dpp_reduce16(regs)
                    e("s_and_b32 s20, s3, 1"); e("s_lshl_b32 s20, s20, 8"); e("s_lshr_b32 s21, s3, 1"); e("s_lshl_b32 s21, s21, 9")
                    e("s_add_u32 s20, s20, s21"); e(f"s_add_u32 s20, s20, {PART}")
                    e("v_lshlrev_b32 v5, 5, v3"); e("v_add_u32 v5, s20, v5")
                    e("v_cmp_eq_u32 vcc, 0, v4"); e("s_and_saveexec_b64 s[44:45], vcc")
                    for rt in range(2):
                        for r in range(4):
                            sreg = (8, 10, 12, 14, 16, 18, 28, 30)[rt*4 + r]
                            e(f"ds_write_b64 v5, v[{sreg}:{sreg+1}] offset:{rt*128 + r*8}")
                    e("s_mov_b64 exec, s[44:45]")
                    e("s_waitcnt lgkmcnt(0)") if False else None
                    self.stamp(33)
                if n == 7:
                    e("s_waitcnt lgkmcnt(0)")
            self.stamp(32)
            accs = [ACCB + 4*(rt*2 + c) + r for c in range(nt) for rt in range(2) for r in range(4)]
            gelu(accs)
            e("s_and_b32 s22, s3, 1"); e(f"s_mul_i32 s22, s22, {2*7*512}"); e("s_lshr_b32 s21, s3, 1"); e("s_lshl_b32 s21, s21, 10")
            e("s_add_u32 s22, s22, s21"); e(f"s_add_u32 s22, s22, {Z1L}")
            e("v_lshlrev_b32 v7, 3, v1"); e("v_add_u32 v7, s22, v7")
            for c in range(nt):
                for rt in range(2):
                    acc = ACCB + 4*(rt*2 + c); pk = 32 + 2*(rt + 2*c)
                    e(f"v_cvt_pk_bf16_f32 v{pk}, v{acc}, v{acc+1}"); e(f"v_cvt_pk_bf16_f32 v{pk+1}, v{acc+2}, v{acc+3}")
                    e(f"ds_write_b64 v7, v[{pk}:{pk+1}] offset:{rt*7*512 + c*512}")
            if var == 0:
                nx = self.lab("win_nx")
                e("s_cmp_lg_u32 s3, 0"); e(f"s_cbranch_scc1 {nx}")
                e("v_lshlrev_b32 v5, 3, v1"); e(f"v_add_u32 v5, {PART}, v5")
                e("v_lshlrev_b32 v6, 4, v1"); e("s_lshl_b32 s20, s4, 13")
                e("s_mov_b32 s47, 0")
                lp = self.lab("stp"); dn = self.lab("std")
                self.a.label(lp)
                for jj in range(8):
                    e(f"s_add_u32 s21, s20, {jj*1024}")
                    e(f"buffer_load_dwordx4 v[{96+4*jj}:{99+4*jj}], v6, s[36:39], s21 offen {ST}")
                e("s_add_u32 s47, s47, 1"); e(f"s_cmp_gt_u32 s47, {SPIN_CAP}"); e(f"s_cbranch_scc1 {dn}")
                e("s_waitcnt vmcnt(0)")
                e("s_mov_b64 s[42:43], -1")
                for jj in range(8):
                    e(f"v_cmp_eq_u32 vcc, s{S_NONCE}, v{98+4*jj}"); e("s_and_b64 s[42:43], s[42:43], vcc")
                    e(f"v_cmp_eq_u32 vcc, s{S_NONCE}, v{99+4*jj}"); e("s_and_b64 s[42:43], s[42:43], vcc")
                e("s_cmp_eq_u64 s[42:43], -1")
                if not Gen.NOHOP: e(f"s_cbranch_scc0 {lp}")
                self.a.label(dn)
                self._where = "stat granules"; self.diag(47, 98)
                e("s_waitcnt vmcnt(0)")
                for jj in range(1, 8):
                    e(f"v_add_f32 v96, v96, v{96+4*jj}"); e(f"v_add_f32 v97, v97, v{97+4*jj}")
                e(f"v_mul_f32 v96, {fl(1.0/896)}, v96"); e(f"v_mul_f32 v97, {fl(1.0/896)}, v97")
                e("v_fma_f32 v97, -v96, v96, v97"); e("v_max_f32 v97, 0, v97"); e(f"v_add_f32 v97, {fl(1e-5)}, v97")
                e("v_rsq_f32 v99, v97"); e("v_mul_f32 v98, v96, v99"); e("v_sub_f32 v98, 0, v98")
                e(f"ds_write_b64 v5, v[98:99] offset:2048")
                self.a.label(nx)
            e("s_waitcnt lgkmcnt(0)"); e("s_barrier")
            self.stamp(34)
            e("v_lshrrev_b32 v3, 4, v1"); e("v_and_b32 v4, 15, v1")
            e("s_and_b32 s20, s3, 1"); e("s_lshl_b32 s20, s20, 8"); e(f"s_add_u32 s20, s20, {PART + 2048}")
            e("v_lshlrev_b32 v5, 5, v3"); e("v_add_u32 v5, s20, v5")
            for rt in range(2):
                e(f"ds_read_b128 v[{64+8*rt}:{67+8*rt}], v5 offset:{rt*128}")
                e(f"ds_read_b128 v[{68+8*rt}:{71+8*rt}], v5 offset:{rt*128+16}")
            e("v_and_b32 v6, 1, v3"); e("v_lshlrev_b32 v5, 9, v6"); e("v_lshrrev_b32 v6, 1, v3"); e("v_lshl_add_u32 v5, v6, 8, v5")
            e("v_lshl_add_u32 v5, v4, 4, v5")
            e("s_and_b32 s20, s3, 1"); e("s_lshl_b32 s21, s4, 1"); e("s_add_u32 s20, s20, s21"); e("s_lshl_b32 s20, s20, 10")
            e("s_mul_i32 s21, s5, 7"); e("s_lshr_b32 s22, s3, 1"); e("s_lshl_b32 s22, s22, 1"); e("s_add_u32 s21, s21, s22")
            e("s_lshl_b32 s21, s21, 16"); e("s_add_u32 s20, s20, s21")
            e("s_waitcnt lgkmcnt(0)")
            for c in range(nt):
                e(f"s_add_u32 s21, s20, {c*65536}")
                pk = 32 + 4*c
                for rt in range(2):
                    acc = ACCA + 4*(rt*2 + c)
                    for r in range(4):
                        e(f"v_fma_f32 v{acc+r}, v{acc+r}, v{64+8*rt+2*r+1}, v{64+8*rt+2*r}")
                    e(f"v_cvt_pk_bf16_f32 v{pk+2*rt}, v{acc}, v{acc+1}"); e(f"v_cvt_pk_bf16_f32 v{pk+2*rt+1}, v{acc+2}, v{acc+3}")
                e(f"v_permlane16_swap_b32 v{pk}, v{pk+2}"); e(f"v_permlane16_swap_b32 v{pk+1}, v{pk+3}")
                e(f"buffer_store_dwordx4 v[{pk}:{pk+3}], v5, s[28:31], s21 offen {ST}")
            if var == 0: e(f"s_branch {join}")
        self.a.label(join)
        self.phase_end()
        self.signal(lambda: (e("s_lshl_b32 s46, s5, 7"), e("s_lshl_b32 s47, s4, 2"), e("s_add_u32 s46, s46, s47"), e(f"s_add_u32 s46, s46, {F4}")))
        self.stamp(16)

    def p5(self):
        e = self.e
        end = self.lab("sp_end")
        Z1L = 135168
        self.srd(8, P_WSP, 0, 2048*2048*2)
        self.srd(12, P_WS, WS_Z2, 56*64*1024)
        self.srd(24, P_WS, WS_Y, 64*56*1024)
        self.srd(28, P_BSP, 0, 4096)
        SL = 22528; D = self.SPD; NST = 32
        e(f"s_mov_b32 s44, {(-(D-1)*SL) & 0xffffffff}"); e(f"s_mov_b32 s45, {SL}")
        e("v_lshlrev_b32 v2, 4, v1"); e("v_lshrrev_b32 v3, 4, v1"); e("v_and_b32 v4, 15, v1")
        def cZ():
            e("s_lshl_b32 s46, s5, 7"); e(f"s_add_u32 s46, s46, {F4}"); e("v_lshlrev_b32 v251, 2, v1")
        lp = self.lab("sp_prod")
        e("s_cmp_ge_u32 s3, 4"); e(f"s_cbranch_scc1 {lp}")
        e("s_and_b32 s20, s3, 1"); e("s_lshl_b32 s21, s4, 2"); e("s_lshl_b32 s22, s20, 1"); e("s_add_u32 s21, s21, s22")
        e("v_lshlrev_b32 v5, 1, v4"); e("s_lshl_b32 s22, s21, 5")
        e("buffer_load_ushort v20, v5, s[28:31], s22 offen"); e("buffer_load_ushort v21, v5, s[28:31], s22 offen offset:32")
        e("s_bfe_u32 s23, s3, 0x10001"); e("s_lshl_b32 s23, s23, 2")
        e("v_lshrrev_b32 v7, 1, v3"); e("v_lshlrev_b32 v7, 9, v7"); e("v_lshl_add_u32 v7, v4, 4, v7")
        e("v_and_b32 v8, 1, v3"); e("v_lshl_add_u32 v7, v8, 3, v7")
        e("s_lshl_b32 s21, s4, 1"); e("s_add_u32 s21, s21, s20"); e("s_mul_i32 s21, s21, 56")
        e("s_mul_i32 s6, s5, 7"); e("s_add_u32 s21, s21, s6"); e("s_add_u32 s21, s21, s23"); e("s_lshl_b32 s35, s21, 10")
        e(f"s_mul_i32 s6, s20, {2*7*512}"); e("s_lshl_b32 s21, s23, 9"); e("s_add_u32 s6, s6, s21"); e(f"s_add_u32 s6, s6, {Z1L}")
        e("v_lshlrev_b32 v9, 3, v1"); e("v_add_u32 v9, s6, v9")
        e("s_and_b32 s20, s3, 1"); e("s_lshl_b32 s20, s20, 12"); e("v_lshlrev_b32 v5, 7, v4"); e("v_add_u32 v5, s20, v5")
        e("v_lshrrev_b32 v8, 1, v4")
        for ks in range(2):
            e(f"v_add_u32 v6, {4*ks}, v3"); e(f"v_xor_b32 v6, v6, v8"); e(f"v_lshl_add_u32 v{200+ks}, v6, 4, v5")
        e("s_bfe_u32 s20, s3, 0x10001"); e("s_lshl_b32 s20, s20, 13"); e("s_add_u32 s20, s20, 8192"); e("v_add_u32 v202, s20, v2")
        ZR = 176
        for tt in range(2):
            for f in range(4):
                b = ZR + 2*(tt*4 + f)
                e(f"ds_read_b64 v[{b}:{b+1}], v9 offset:{tt*7*512 + f*512}")
        e("s_waitcnt lgkmcnt(0)")
        ACC = 128
        for r in range(32): e(f"v_mov_b32 v{ACC+r}, 0")
        e("s_barrier")
        LOOK = self.ZLOOK
        if self.ZTOUCH:
            e("s_and_b32 s20, s4, 7"); e("s_mul_i32 s20, s20, 14"); e("v_add_u32 v196, s20, v1")
            e("v_lshrrev_b32 v197, 4, v196"); e("v_lshlrev_b32 v197, 16, v197")
            e("v_bfe_u32 v198, v196, 3, 1"); e("v_lshl_add_u32 v197, v198, 10, v197")
            e("v_and_b32 v198, 7, v196"); e("v_lshl_add_u32 v196, v198, 7, v197")
            e("s_mul_i32 s43, s5, 0x70000"); e(f"s_add_u32 s43, s43, {(D-1)*2048}")
            e("s_cmp_eq_u32 s3, 0"); e("s_cselect_b32 s42, 0x3fff, 0")
            tk = self.lab("sp_tk")
            e("s_cmp_lg_u32 s3, 0"); e(f"s_cbranch_scc1 {tk}")
            e("s_mov_b64 exec, 0x3fff")
            for i in range(LOOK - (D-1)):
                e(f"s_add_u32 s20, s43, {i*2048}")
                e("buffer_load_dword v199, v196, s[12:15], s20 offen")
            e("s_mov_b64 exec, -1")
            self.a.label(tk)
            e(f"s_add_u32 s43, s43, {(LOOK-(D-1))*2048}")
        l3 = self.lab("sp_3"); lepi = self.lab("sp_epi")
        e("s_barrier")
        self.stamp(18)
        e("s_bitcmp1_b32 s3, 1"); e(f"s_cbranch_scc1 {l3}")
        for jj in range(2):
            nf = 4 if jj == 0 else 3
            if jj == 1: self.a.label(l3)
            def reads(ks, buf, nxt):
                b = 32 + 24*buf; ab = 203 if nxt else 200
                for tt in range(2): yield f"ds_read_b128 v[{b+4*tt}:{b+4*tt+3}], v{ab+ks} offset:{tt*2048}"
                for f in range(nf): yield f"ds_read_b128 v[{b+8+4*f}:{b+8+4*f+3}], v{ab+2} offset:{f*2048 + ks*1024}"
            def mf(buf):
                b = 32 + 24*buf
                for f in range(nf):
                    for tt in range(2):
                        acc = ACC + 4*(tt*4 + f)
                        yield f"v_mfma_f32_16x16x32_bf16 v[{acc}:{acc+3}], v[{b+8+4*f}:{b+8+4*f+3}], v[{b+4*tt}:{b+4*tt+3}], v[{acc}:{acc+3}]"
            def interleave(ms, rs):
                ms = list(ms); rs = list(rs)
                if self.X_NOMFMA: ms = []
                if self.X_NOREAD: rs = []
                ri = 0
                for i, m in enumerate(ms):
                    e(m)
                    for _ in range(self.RPG):
                        if ri < len(rs): e(rs[ri]); ri += 1
                for r in rs[ri:]: e(r)
            for r in reads(0, 0, False): e(r)
            e("s_mov_b32 s36, 0"); e(f"s_mov_b32 s37, {SL}"); e("s_mov_b32 s38, 1")
            loop = self.lab("sp_loop")
            self.a.label(loop)
            e("s_barrier")
            for k in range(3): e(f"v_add_u32 v{203+k}, s37, v{200+k}")
            if self.ZTOUCH and jj == 0:
                tk2 = self.lab("sp_tk2")
                e("s_cmp_lg_u32 s3, 0"); e(f"s_cbranch_scc1 {tk2}")
                e(f"s_cmp_ge_u32 s36, {NST} - {LOOK}".replace(f"{NST} - {LOOK}", str(NST - LOOK))); e(f"s_cbranch_scc1 {tk2}")
                e("s_mov_b64 exec, 0x3fff")
                e("buffer_load_dword v199, v196, s[12:15], s43 offen")
                e("s_mov_b64 exec, -1")
                e("s_add_u32 s43, s43, 2048")
                self.a.label(tk2)
            e(f"s_waitcnt lgkmcnt(0)")
            interleave(mf(0), reads(1, 1, False))
            e(f"s_waitcnt lgkmcnt(0)")
            interleave(mf(1), reads(0, 0, True))
            for k in range(3): e(f"v_mov_b32 v{200+k}, v{203+k}")
            e("s_add_u32 s38, s38, 1"); e(f"s_cmp_eq_u32 s38, {D}")
            e(f"s_cselect_b32 s37, s44, s45"); e(f"s_cselect_b32 s38, 0, s38")
            e("s_add_u32 s36, s36, 1"); e(f"s_cmp_lt_u32 s36, {NST}"); e(f"s_cbranch_scc1 {loop}")
            if jj == 0: e(f"s_branch {lepi}")
        self.a.label(lepi)
        self.stamp(19)
        e("s_waitcnt vmcnt(0) lgkmcnt(0)")
        e("v_lshlrev_b32 v20, 16, v20"); e("v_lshlrev_b32 v21, 16, v21")
        for f in range(4):
            if f == 3:
                e("s_bitcmp1_b32 s3, 1"); e(f"s_cbranch_scc1 {end}")
            pk = 32 + 4*f
            for tt in range(2):
                acc = ACC + 4*(tt*4 + f); b = ZR + 2*(tt*4 + f)
                for q in range(2):
                    e(f"v_lshlrev_b32 v22, 16, v{b+q}"); e(f"v_and_b32 v23, 0xffff0000, v{b+q}")
                    e(f"v_add_f32 v24, v{acc+2*q}, v{20+tt}"); e(f"v_add_f32 v25, v{acc+2*q+1}, v{20+tt}")
                    e(f"v_mul_f32 v22, v22, v24"); e(f"v_mul_f32 v23, v23, v25")
                    e(f"v_cvt_pk_bf16_f32 v{pk+2*tt+q}, v22, v23")
            e(f"v_permlane16_swap_b32 v{pk}, v{pk+2}"); e(f"v_permlane16_swap_b32 v{pk+1}, v{pk+3}")
            e(f"buffer_store_dwordx4 v[{pk}:{pk+3}], v2, s[24:27], s35 offen offset:{f*1024} {ST}")
        e(f"s_branch {end}")
        self.a.label(lp)
        e("s_and_b32 s7, s3, 3")
        e("v_lshrrev_b32 v5, 3, v1"); e("v_and_b32 v6, 7, v1")
        for m in range(2):
            e(f"s_lshl_b32 s20, s7, 3"); e(f"s_add_u32 s20, s20, {32*m}")
            e(f"v_add_u32 v8, s20, v5"); e(f"v_bfe_u32 v9, v8, 1, 3"); e(f"v_xor_b32 v9, v9, v6")
            e(f"v_lshlrev_b32 v8, 12, v8"); e(f"v_lshl_add_u32 v{192+m}, v9, 4, v8")
        e("s_lshl_b32 s6, s4, 18")
        e("s_mul_i32 s32, s5, 0x70000"); e("s_lshr_b32 s20, s7, 1"); e("s_lshl_b32 s20, s20, 16"); e("s_add_u32 s32, s32, s20")
        e("s_and_b32 s20, s7, 1"); e("s_lshl_b32 s20, s20, 10"); e("s_add_u32 s32, s32, s20")
        e("s_lshl_b32 s33, s7, 10")
        e("s_mov_b32 s34, s33")
        def pre5():
            for st in range(D-1):
                for m in range(2): self.dma(192+m, 8, "s6", f"s_add_u32 m0, s34, {st*SL + m*4096}")
                e("s_add_u32 s6, s6, 128")
        self.wait_flags([(cZ, 0xffffffff)], pre=pre5)
        self.stamp(17)
        l5 = self.lab("sp_p5")
        e("s_cmp_ge_u32 s7, 2"); e(f"s_cbranch_scc1 {l5}")
        for var in range(2):
            nz = 4 if var == 0 else 3
            cnt = 2 + nz
            if var == 1: self.a.label(l5)
            def issue_z():
                for m in range(nz):
                    e(f"s_add_u32 s23, s32, {2*m*65536}")
                    self.dma(2, 12, "s23", f"s_add_u32 m0, s34, {8192 + m*4096}")
                e("s_add_u32 s32, s32, 2048")
            def issue():
                if self.X_NODMA: return
                for m in range(2): self.dma(192+m, 8, "s6", f"s_add_u32 m0, s34, {m*4096}")
                e("s_add_u32 s6, s6, 128")
                issue_z()
            for st in range(D-1):
                issue_z(); e(f"s_add_u32 s34, s34, {SL}")
            e(f"s_waitcnt vmcnt({nz*(D-2)})"); e("s_barrier")
            e("s_mov_b32 s36, 0"); e(f"s_mov_b32 s38, {D-1}")
            loop = self.lab("sp_ploop"); lni = self.lab("sp_ni"); lw = self.lab("sp_w"); le = self.lab("sp_e"); lb = self.lab("sp_b")
            self.a.label(loop)
            e(f"s_cmp_ge_u32 s36, {NST-D+2}"); e(f"s_cbranch_scc1 {lw}")
            e(f"s_cmp_lt_u32 s36, {D-3}"); e(f"s_cbranch_scc1 {le}")
            e(f"s_waitcnt vmcnt({cnt*(D-3)})"); e(f"s_branch {lb}")
            self.a.label(le)
            e(f"s_waitcnt vmcnt({nz*(D-3)})")
            self.a.label(lb)
            e("s_barrier")
            e(f"s_cmp_ge_u32 s36, {NST-D+1}"); e(f"s_cbranch_scc1 {lni}")
            issue()
            e("s_add_u32 s38, s38, 1"); e(f"s_cmp_eq_u32 s38, {D}"); e(f"s_cselect_b32 s39, s44, s45"); e(f"s_cselect_b32 s38, 0, s38")
            e("s_add_u32 s34, s34, s39"); e(f"s_branch {lni}")
            self.a.label(lw)
            e("s_waitcnt vmcnt(0)"); e("s_barrier")
            self.a.label(lni)
            e("s_add_u32 s36, s36, 1"); e(f"s_cmp_lt_u32 s36, {NST}"); e(f"s_cbranch_scc1 {loop}")
            if var == 0: e(f"s_branch {end}")
        self.a.label(end)
        self.phase_end()
        self.signal(lambda: (e("s_lshl_b32 s46, s4, 7"), e("s_lshl_b32 s47, s5, 2"), e("s_add_u32 s46, s46, s47"), e(f"s_add_u32 s46, s46, {F5}")))
        self.stamp(20)

    def p6(self):
        e = self.e
        self.srd(8, P_WS, WS_Y, 64*56*1024); self.srd(12, P_WOUT, 0, 896*512*2)
        self.srd(16, P_WS, WS_X1, 2*MB); self.srd(24, P_OUT, 0, 2*MB); self.srd(28, P_WS, WS_MOD, 49152)
        XR = 114688; XS = 16384; NCH = 7; NSLOT = 3
        self.proj_wvoff()
        self.proj_addr(True, XR, 0)
        e("v_add_u32 v10, 0x10000, v9")
        self.proj_epi_addr()
        def pre6():
            for m in range(16):
                e(f"s_add_u32 s21, s3, {7*m}"); e("s_lshl_b32 s20, s21, 13"); e("s_lshl_b32 s21, s21, 10")
                self.dma(3, 12, "s20", "s_mov_b32 m0, s21")
        def cY():
            e("s_lshl_b32 s46, s4, 7"); e(f"s_add_u32 s46, s46, {F5}"); e("v_lshlrev_b32 v251, 2, v1")
        self.wait_flags([(cY, 0xff)], pre=pre6, w7_after=False)
        self.stamp(21)
        e(f"s_mul_i32 s6, s4, {2*56*1024}"); e("s_lshl_b32 s21, s3, 10"); e("s_add_u32 s6, s6, s21")
        def issue_x(ch):
            for tt in range(2):
                e(f"s_add_u32 s20, s6, {tt*56*1024 + ch*8*1024}")
                self.dma(2, 8, "s20", f"s_add_u32 m0, s21, {XR + (ch % NSLOT)*XS + tt*8192}")
        issue_x(0); e("s_barrier"); issue_x(1); e("s_barrier"); issue_x(2)
        e("buffer_load_dwordx4 v[32:35], v16, s[16:19], s32 offen")
        self.proj_gate_loads(5)
        ACC = 64
        for r in range(16): e(f"v_mov_b32 v{ACC+r}, 0")
        for ch in range(NCH):
            w = {0: 4 + 9, 1: 2 + 9, 2: 9 + 2}.get(ch, 2*(min(NCH - 1, ch + 1) - ch))
            e(f"s_waitcnt vmcnt({w})")
            e("s_barrier")
            if ch == 0: self.stamp(38)
            if ch >= 1 and ch + 2 < NCH: issue_x(ch + 2)
            wreg, woff = (9, ch*16384) if ch < 3 else (10, ch*16384 - 65536) if ch >= 4 else (9, ch*16384)
            self.proj_chunk(ACC, (ch % NSLOT)*XS, wreg, woff, True)
        self.stamp(39)
        self.proj_epilogue(ACC, 24, "", False)
        self.stamp(22)


HEADER = open('cdna_kernels/' + NAME + '.s.ref').read().split('; Override launch geometry')[0]

def build(stamps=False, hstamp=-1):
    Gen.STAMPS = stamps
    g = Gen()
    endl = "L_exit"
    g.prologue(endl)
    g.p01(); g.p2(); g.p3(); g.p4(); g.p5(); g.p6()
    if stamps and Gen.GSTAMP:
        e = g.e
        sk = g.lab("stst")
        e(f"s_cmp_lg_u32 s3, {Gen.GSTAMP_W}"); e(f"s_cbranch_scc1 {sk}")
        e("s_waitcnt vmcnt(0)")
        g.stamp(23)
        g.srd(8, P_DBG, 0, 0x20000)
        e("s_lshl_b32 s20, s2, 8"); e("s_add_u32 s20, s20, 4096")
        e("v_lshlrev_b32 v4, 2, v1")
        e("buffer_store_dword v255, v4, s[8:11], s20 offen")
        g.a.label(sk)
    elif stamps:
        e = g.e
        sk = g.lab("stst")
        e(f"s_sub_u32 s46, s2, {Gen.STAMP_WG0}"); e("s_cmp_ge_u32 s46, 4"); e(f"s_cbranch_scc1 {sk}")
        e("s_and_b32 s46, s3, 3"); e(f"s_cmp_lg_u32 s46, {Gen.STAMP_W}"); e(f"s_cbranch_scc1 {sk}")
        e("s_waitcnt vmcnt(0)")
        g.stamp(23)
        if hstamp >= 0: e(f"s_branch {sk}")
        g.srd(8, P_DBG, 0, 4096)
        e(f"s_sub_u32 s20, s2, {Gen.STAMP_WG0}"); e("s_lshl_b32 s20, s20, 1"); e("s_lshr_b32 s21, s3, 2"); e("s_add_u32 s20, s20, s21"); e("s_lshl_b32 s20, s20, 8"); e("s_add_u32 s20, s20, 256")
        e("v_lshlrev_b32 v4, 2, v1")
        e("buffer_store_dword v255, v4, s[8:11], s20 offen")
        g.a.label(sk)
    if hstamp >= 0:
        e = g.e
        sk = g.lab("hst")
        e(f"s_cmp_lg_u32 s2, {hstamp}"); e(f"s_cbranch_scc1 {sk}")
        e("s_cmp_lg_u32 s3, 0"); e(f"s_cbranch_scc1 {sk}")
        e("v_lshrrev_b32 v4, 2, v255")
        e("v_lshlrev_b32 v5, 16, v4")
        e("v_mov_b32_dpp v6, v5 row_shl:1 row_mask:0xf bank_mask:0xf")
        e("v_or_b32 v4, v4, v6")
        g.srd(8, P_DBG, 0, 256)
        e("v_lshrrev_b32 v7, 1, v1"); e("v_lshlrev_b32 v7, 2, v7"); e("v_add_u32 v7, 4, v7")
        e("v_and_b32 v8, 1, v1"); e("v_cmp_eq_u32 vcc, 0, v8"); e("v_cmp_gt_u32 s[40:41], 24, v1"); e("s_and_b64 vcc, vcc, s[40:41]")
        e("s_and_saveexec_b64 s[40:41], vcc")
        e("buffer_store_dword v4, v7, s[8:11], 0 offen")
        g.a.label(sk)
    g.a.label(endl)
    g.e("s_endpgm")
    g.a.fix_hazards()
    out = [HEADER, "; @launch grid=(256,1,1) block=(512,1,1) lds=163840\n",
           '.amdgcn_target "amdgcn-amd-amdhsa--gfx950"\n.text\n',
           f".globl {KNAME}\n.p2align 8\n.type {KNAME},@function\n{KNAME}:\n", g.a.text(),
           '.section .rodata,"a"\n', f""".p2align 6
.amdhsa_kernel {KNAME}
  .amdhsa_next_free_vgpr 256
  .amdhsa_next_free_sgpr 102
  .amdhsa_accum_offset 256
  .amdhsa_group_segment_fixed_size 0
  .amdhsa_kernarg_size 104
  .amdhsa_user_sgpr_count 2
  .amdhsa_user_sgpr_kernarg_segment_ptr 1
  .amdhsa_system_sgpr_workgroup_id_x 1
.end_amdhsa_kernel
"""]
    return ''.join(out)

if __name__ == "__main__":
    for k in ("PREFETCH", "STAMP_WG0", "STAMP_W", "CODEPF", "NOHOP", "BALANCE", "ZTOUCH", "GSTAMP", "GSTAMP_W", "ZLOOK", "DIAG", "MODCRIT", "XLATE", "SPD", "REPACK", "M1", "M2", "RPG", "X_NOMFMA", "X_NOREAD", "X_NODMA"):
        if k in os.environ: setattr(Gen, k, int(os.environ[k]))
    txt = build(stamps=(len(sys.argv) > 2), hstamp=int(os.environ.get("HSTAMP", "-1")))
    path = sys.argv[1] if len(sys.argv) > 1 else 'cdna_kernels/' + NAME + '.s'
    open(path, 'w').write(txt)
    print("wrote", path, len(txt), "bytes")
```

```python
import sys, math, os
from asmlib import Asm, vr, sr

NAME = "adaLN_cond__softmax_full_mha__mixer_gmlp__prompt"
KNAME = NAME + "_kernel"
MB = 1 << 20
WS_MOD = 0
WS_ST  = 0x10000
WS_FLAG = 0x60000
WS_STX = 0x70000
WS_MODG = 0xB0000
WS_QK  = 1 * MB
WS_V   = 5 * MB
WS_O   = 7 * MB
WS_X1  = 9 * MB
WS_Z2  = 19 * MB
WS_Y   = 23 * MB
WS_WINP = 27 * MB
F0, F1, F2, F3, F4, F5, FR = 0x0, 0x2000, 0x4000, 0x5000, 0x6000, 0x7000, 0x8000
P_X, P_WQKV, P_WO, P_BX, P_WIN, P_WSP, P_BSP, P_WOUT, P_C, P_WMOD, P_OUT, P_DBG, P_WS = [64 + 2*i for i in range(13)]
LOG2E = 1.4426950408889634
S_QB, S_HEAD, S_NONCE, SRD_F = 57, 58, 59, 60
ST = "sc0 sc1"
SPIN_CAP = 1 << 17

def f2u(x):
    import struct
    return struct.unpack('<I', struct.pack('<f', x))[0]
def fl(x): return f"0x{f2u(x):08x}"

class Gen:
    STAMPS = False
    PREFETCH = True
    STAMP_WG0 = 0
    STAMP_W = 0
    CODEPF = False
    NOHOP = False
    BALANCE = True
    ZTOUCH = False
    ZLOOK = 9
    DIAG = False
    diag_site = 0
    MODCRIT = 64
    XLATE = False
    SPD = 7
    REPACK = False
    M1 = 3
    M2 = 9
    RPG = 2
    X_NOMFMA = False
    X_NOREAD = False
    X_NODMA = False
    GSTAMP = False
    GSTAMP_W = 0
    def __init__(self):
        self.a = Asm()
        self.nstamp = 0
    def e(self, s): self.a.e(s)
    def lab(self, b): return self.a.newlabel(b)

    def stamp(self, i):
        if not Gen.STAMPS: return
        e = self.e
        sk = self.lab("stamp")
        if Gen.GSTAMP:
            e(f"s_cmp_lg_u32 s3, {Gen.GSTAMP_W}"); e(f"s_cbranch_scc1 {sk}")
            e("s_memtime s[46:47]" if Gen.GSTAMP == 2 else "s_memrealtime s[46:47]"); e("s_waitcnt lgkmcnt(0)")
            e(f"v_writelane_b32 v255, s46, {i}")
            self.a.label(sk)
            return
        e(f"s_sub_u32 s46, s2, {Gen.STAMP_WG0}"); e("s_cmp_ge_u32 s46, 4"); e(f"s_cbranch_scc1 {sk}")
        e("s_and_b32 s46, s3, 3"); e(f"s_cmp_lg_u32 s46, {Gen.STAMP_W}"); e(f"s_cbranch_scc1 {sk}")
        e("s_memtime s[46:47]"); e("s_waitcnt lgkmcnt(0)")
        e("s_sub_u32 s46, s46, s90")
        e(f"v_writelane_b32 v255, s46, {i}")
        self.a.label(sk)

    def srd(self, d, ptr, off, size):
        e = self.e
        if off:
            e(f"s_add_u32 s{d}, s{ptr}, 0x{off:x}"); e(f"s_addc_u32 s{d+1}, s{ptr+1}, 0")
        else:
            e(f"s_mov_b32 s{d}, s{ptr}"); e(f"s_mov_b32 s{d+1}, s{ptr+1}")
        e(f"s_mov_b32 s{d+2}, 0x{size:x}"); e(f"s_mov_b32 s{d+3}, 0x20000")

    def bf16_round(self, d, s):
        self.e(f"v_cvt_pk_bf16_f32 v{d}, v{s}, v{s}")
        self.e(f"v_lshlrev_b32 v{d}, 16, v{d}")

    def dpp_reduce16(self, regs):
        for m in ("quad_perm:[1,0,3,2]", "quad_perm:[2,3,0,1]", "row_half_mirror", "row_mirror"):
            for r in regs:
                self.e(f"v_add_f32_dpp v{r}, v{r}, v{r} {m} row_mask:0xf bank_mask:0xf")

    def dma(self, voff, srd, soff, m0expr, width="dwordx4"):
        self.e(m0expr)
        self.e("s_nop 0")
        self.e(f"buffer_load_{width} v{voff}, {sr(srd,4)}, {soff} offen lds")

    def diag(self, cnt_sgpr, vval):
        if not Gen.DIAG: return
        e = self.e
        Gen.diag_site += 1
        sk = self.lab("dg")
        e(f"s_cmp_le_u32 s{cnt_sgpr}, {SPIN_CAP}"); e(f"s_cbranch_scc1 {sk}")
        e("s_waitcnt vmcnt(0)")
        self.srd(48, P_DBG, 0, 1 << 22)
        e(f"s_mul_i32 s46, s2, 1024"); e(f"s_add_u32 s46, s46, {65536 + Gen.diag_site*262144}")
        e("v_lshlrev_b32 v252, 2, v1")
        e(f"buffer_store_dword v{vval}, v252, s[48:51], s46 offen offset:256")
        e(f"v_mov_b32 v253, s{S_NONCE}")
        e(f"buffer_store_dword v253, v252, s[48:51], s46 offen")
        e("s_waitcnt vmcnt(0)")
        self.a.label(sk)
        print("diag site", Gen.diag_site, self._where)

    _where = ""
    def phase_end(self):
        self.e("s_waitcnt lgkmcnt(0)" if Gen.NOHOP else "s_waitcnt vmcnt(0) lgkmcnt(0)")
        self.e("s_barrier")

    def signal(self, soff_code, nrep=1, rep_stride=0):
        e = self.e
        sk = self.lab("sig")
        e("s_cmp_lg_u32 s3, 7"); e(f"s_cbranch_scc1 {sk}")
        soff_code()
        e(f"v_mov_b32 v250, s{S_NONCE}")
        e(f"v_mul_u32_u24 v251, {max(rep_stride,1)}, v1")
        e(f"s_mov_b64 exec, {(1 << nrep) - 1}")
        e(f"buffer_store_dword v250, v251, s[{SRD_F}:{SRD_F+3}], s46 offen {ST}")
        e("s_mov_b64 exec, -1")
        self.a.label(sk)

    def wait_flags(self, polls, keep=False, pre=None, w7_after=True):
        e = self.e
        sk = self.lab("wf"); p7 = self.lab("wf7")
        e("s_cmp_eq_u32 s3, 7"); e(f"s_cbranch_scc1 {p7}")
        if pre: pre()
        e(f"s_branch {sk}")
        self.a.label(p7)
        for (code, mask) in ([] if (Gen.NOHOP and not keep) else polls):
            code()
            e(f"s_mov_b32 s42, 0x{mask & 0xffffffff:x}"); e(f"s_mov_b32 s43, 0x{mask >> 32:x}")
            e("s_mov_b32 s47, 0")
            lp = self.lab("poll"); dn = self.lab("polled")
            self.a.label(lp)
            e(f"buffer_load_dword v250, v251, s[{SRD_F}:{SRD_F+3}], s46 offen {ST}")
            e("s_add_u32 s47, s47, 1")
            e(f"s_cmp_gt_u32 s47, {SPIN_CAP}")
            e(f"s_cbranch_scc1 {dn}")
            e("s_waitcnt vmcnt(0)")
            e(f"v_cmp_eq_u32 vcc, s{S_NONCE}, v250")
            e("s_and_b64 vcc, vcc, s[42:43]")
            e("s_cmp_eq_u64 vcc, s[42:43]")
            e(f"s_cbranch_scc0 {lp}")
            self.a.label(dn)
            self._where = "wait_flags " + str(getattr(code, "__name__", code))
            self.diag(47, 250)
        if pre and w7_after: pre()
        self.a.label(sk)
        e("s_barrier")

    def prologue(self, endlab):
        e = self.e
        e("s_cmp_ge_u32 s2, 256"); e(f"s_cbranch_scc1 {endlab}")
        e("s_load_dwordx16 s[64:79], s[0:1], 0")
        e("s_load_dwordx8 s[80:87], s[0:1], 64")
        e("s_load_dwordx2 s[88:89], s[0:1], 96")
        e("v_and_b32 v1, 63, v0")
        e("v_lshrrev_b32 v2, 6, v0")
        e("v_readfirstlane_b32 s3, v2")
        if Gen.STAMPS:
            e("s_memtime s[90:91]"); e("v_mov_b32 v255, 0")
        e("s_and_b32 s20, s2, 7"); e("s_lshr_b32 s21, s2, 3")
        e("s_and_b32 s4, s20, 3"); e("s_lshl_b32 s4, s4, 3"); e("s_and_b32 s22, s21, 7"); e("s_add_u32 s4, s4, s22")
        e("s_lshr_b32 s5, s20, 2"); e("s_lshl_b32 s5, s5, 2"); e("s_lshr_b32 s22, s21, 3"); e("s_add_u32 s5, s5, s22")
        e(f"s_lshl_b32 s{S_HEAD}, s20, 2"); e("s_and_b32 s22, s21, 3"); e(f"s_add_u32 s{S_HEAD}, s{S_HEAD}, s22")
        e(f"s_lshr_b32 s{S_QB}, s21, 2")
        e("s_waitcnt lgkmcnt(0)")
        self.stamp(24)
        self.srd(SRD_F, P_WS, WS_FLAG, 0x10000)
        sk = self.lab("nn")
        e("s_cmp_lg_u32 s3, 7"); e(f"s_cbranch_scc1 {sk}")
        self.srd(8, P_DBG, 0, 256)
        e("v_mov_b32 v251, 0")
        g = self.lab("ng")
        e("s_cmp_lg_u32 s2, 0"); e(f"s_cbranch_scc1 {g}")
        e("s_memrealtime s[46:47]"); e("s_waitcnt lgkmcnt(0)")
        e("s_or_b32 s46, s46, 1")
        e("v_mov_b32 v250, s46")
        e("s_mov_b64 exec, 1")
        e(f"buffer_store_dword v250, v251, s[8:11], 0 offen {ST}")
        e("s_mov_b64 exec, -1")
        self.a.label(g)
        self.a.label(sk)

    def get_nonce(self):
        e = self.e
        sk = self.lab("gn")
        e("s_cmp_lg_u32 s3, 7"); e(f"s_cbranch_scc1 {sk}")
        self.srd(48, P_DBG, 0, 256)
        e("v_mov_b32 v251, 0"); e("s_mov_b32 s47, 0")
        lp = self.lab("gnp"); dn = self.lab("gnd")
        self.a.label(lp)
        e(f"buffer_load_dword v250, v251, s[48:51], 0 offen {ST}")
        e("s_add_u32 s47, s47, 1"); e(f"s_cmp_gt_u32 s47, {SPIN_CAP}"); e(f"s_cbranch_scc1 {dn}")
        e("s_waitcnt vmcnt(0)")
        e(f"v_readfirstlane_b32 s{S_NONCE}, v250")
        e(f"s_cmp_eq_u32 s{S_NONCE}, 0"); e(f"s_cbranch_scc1 {lp}")
        self.a.label(dn)
        self._where = "nonce"; self.diag(47, 250)
        if Gen.DIAG:
            self.srd(48, P_DBG, 0, 1 << 22); e("s_lshl_b32 s46, s2, 2"); e("s_add_u32 s46, s46, 8192"); e("s_mov_b64 exec, 1")
            e("buffer_store_dword v250, v251, s[48:51], s46 offen"); e("s_mov_b64 exec, -1")
        e("ds_write_b32 v251, v250")
        e("s_waitcnt lgkmcnt(0)")
        self.a.label(sk)

    def ln_loads(self, srd_x, s_rowoff):
        e = self.e
        e("v_lshrrev_b32 v3, 4, v1"); e("v_and_b32 v4, 15, v1")
        e("s_lshl_b32 s20, s3, 3")
        e("v_add_u32 v5, s20, v3"); e("v_lshlrev_b32 v5, 10, v5"); e("v_lshl_add_u32 v5, v4, 4, v5")
        e(f"s_add_u32 s21, s{s_rowoff}, 4096")
        for a in range(2):
            so = s_rowoff if a == 0 else 21
            for j in range(4):
                b = 32 + 16*a + 4*j
                e(f"buffer_load_dwordx4 v[{b}:{b+3}], v5, {sr(srd_x,4)}, s{so} offen offset:{256*j}")

    def mod_issue(self, srd_mod, first_chunk):
        e = self.e
        e("v_lshlrev_b32 v248, 3, v0")
        for kq in range(4):
            e(f"s_mov_b32 s22, {kq*12288 + first_chunk*2048}")
            e(f"buffer_load_dwordx2 v[{240+2*kq}:{241+2*kq}], v248, {sr(srd_mod,4)}, s22 offen")

    def mod_finish(self, lds_off):
        e = self.e
        e("v_pk_add_f32 v[240:241], v[240:241], v[242:243]"); e("v_pk_add_f32 v[244:245], v[244:245], v[246:247]")
        e("v_pk_add_f32 v[240:241], v[240:241], v[244:245]")
        e("v_cvt_pk_bf16_f32 v242, v240, v241")
        e("v_lshlrev_b32 v240, 16, v242"); e("v_and_b32 v241, 0xffff0000, v242")
        sk = self.lab("mf")
        e("s_cmp_lt_u32 s3, 4"); e(f"s_cbranch_scc1 {sk}")
        e("v_add_f32 v240, 1.0, v240"); e("v_add_f32 v241, 1.0, v241")
        e("v_cvt_pk_bf16_f32 v242, v240, v241")
        e("v_lshlrev_b32 v240, 16, v242"); e("v_and_b32 v241, 0xffff0000, v242")
        self.a.label(sk)
        e("v_and_b32 v242, 255, v0"); e("v_lshlrev_b32 v242, 1, v242")
        e("v_lshrrev_b32 v243, 7, v242"); e("v_lshlrev_b32 v248, 9, v243")
        e("v_bfe_u32 v243, v242, 2, 1"); e("v_lshl_add_u32 v248, v243, 8, v248")
        e("v_bfe_u32 v243, v242, 3, 4"); e("v_lshl_add_u32 v248, v243, 4, v248")
        e("v_and_b32 v243, 3, v242"); e("v_lshl_add_u32 v248, v243, 2, v248")
        e("v_lshrrev_b32 v243, 8, v0"); e("v_lshl_add_u32 v248, v243, 11, v248")
        e(f"v_add_u32 v248, {lds_off}, v248")
        e("ds_write_b64 v248, v[240:241]")

    def ln_stats(self, fillers):
        e = self.e
        X = 128
        it = iter(fillers)
        def fill():
            f = next(it, None)
            if f: f()
        for a in range(2):
            for q in range(16):
                s = 32 + 16*a + q
                e(f"v_lshlrev_b32 v{X+32*a+2*q}, 16, v{s}")
                e(f"v_and_b32 v{X+32*a+2*q+1}, 0xffff0000, v{s}")
            fill()
        A = lambda a, k: 8 + 8*a + 2*k
        for a in range(2):
            for k in range(4):
                e(f"v_pk_add_f32 v[{A(a,k)}:{A(a,k)+1}], v[{X+32*a+4*k}:{X+32*a+4*k+1}], v[{X+32*a+4*k+2}:{X+32*a+4*k+3}]")
        for q in range(8, 16):
            for a in range(2):
                k = q % 4
                e(f"v_pk_add_f32 v[{A(a,k)}:{A(a,k)+1}], v[{A(a,k)}:{A(a,k)+1}], v[{X+32*a+2*q}:{X+32*a+2*q+1}]")
        fill()
        for a in range(2):
            e(f"v_pk_add_f32 v[{A(a,0)}:{A(a,0)+1}], v[{A(a,0)}:{A(a,0)+1}], v[{A(a,1)}:{A(a,1)+1}]")
            e(f"v_pk_add_f32 v[{A(a,2)}:{A(a,2)+1}], v[{A(a,2)}:{A(a,2)+1}], v[{A(a,3)}:{A(a,3)+1}]")
        for a in range(2):
            e(f"v_pk_add_f32 v[{A(a,0)}:{A(a,0)+1}], v[{A(a,0)}:{A(a,0)+1}], v[{A(a,2)}:{A(a,2)+1}]")
        for a in range(2):
            e(f"v_add_f32 v{24+2*a}, v{A(a,0)}, v{A(a,0)+1}")
        self.dpp_reduce16([24, 26])
        for a in range(2):
            e(f"v_mul_f32 v{24+2*a}, {fl(-1.0/512)}, v{24+2*a}")
            e(f"v_mov_b32 v{25+2*a}, v{24+2*a}")
            for r in range(8): e(f"v_mov_b32 v{8+8*a+r}, 0")
        fill()
        for q in range(16):
            for a in range(2):
                r = X + 32*a + 2*q
                e(f"v_pk_add_f32 v[{r}:{r+1}], v[{r}:{r+1}], v[{24+2*a}:{25+2*a}]")
            if q > 0:
                for a in range(2):
                    r = X + 32*a + 2*(q-1); k = (q-1) % 4
                    e(f"v_pk_fma_f32 v[{A(a,k)}:{A(a,k)+1}], v[{r}:{r+1}], v[{r}:{r+1}], v[{A(a,k)}:{A(a,k)+1}]")
            if q % 4 == 3: fill()
        for a in range(2):
            r = X + 32*a + 30; k = 3
            e(f"v_pk_fma_f32 v[{A(a,k)}:{A(a,k)+1}], v[{r}:{r+1}], v[{r}:{r+1}], v[{A(a,k)}:{A(a,k)+1}]")
        for a in range(2):
            e(f"v_pk_add_f32 v[{A(a,0)}:{A(a,0)+1}], v[{A(a,0)}:{A(a,0)+1}], v[{A(a,1)}:{A(a,1)+1}]")
            e(f"v_pk_add_f32 v[{A(a,2)}:{A(a,2)+1}], v[{A(a,2)}:{A(a,2)+1}], v[{A(a,3)}:{A(a,3)+1}]")
        for a in range(2):
            e(f"v_pk_add_f32 v[{A(a,0)}:{A(a,0)+1}], v[{A(a,0)}:{A(a,0)+1}], v[{A(a,2)}:{A(a,2)+1}]")
        for a in range(2):
            e(f"v_add_f32 v{24+a}, v{A(a,0)}, v{A(a,0)+1}")
        self.dpp_reduce16([24, 25])
        for a in range(2):
            e(f"v_mov_b32 v14, {fl(1e-5)}")
            e(f"v_fmac_f32 v14, {fl(1.0/512)}, v{24+a}")
            e(f"v_rsq_f32 v{20+2*a}, v14")
        for a in range(2):
            e(f"v_mov_b32 v{21+2*a}, v{20+2*a}")
        for f in it: f()
        for a in range(2):
            for q in range(16):
                r = X + 32*a + 2*q
                e(f"v_pk_mul_f32 v[{r}:{r+1}], v[{r}:{r+1}], v[{20+2*a}:{21+2*a}]")

    def ln2_prepare(self):
        e = self.e
        X = 128
        for a in range(2):
            e(f"v_mov_b32 v{12+a}, v{8+2*a}")
        self.dpp_reduce16([12, 13])
        for a in range(2):
            e(f"v_mul_f32 v{12+a}, {fl(1.0/16)}, v{12+a}")
            e(f"v_sub_f32 v{14+a}, v{8+2*a}, v{12+a}")
            e(f"v_mul_f32 v{14+a}, v{14+a}, v{14+a}")
            e(f"v_fmac_f32 v{9+2*a}, {fl(32.0)}, v{14+a}")
        self.dpp_reduce16([9, 11])
        for a in range(2):
            e(f"v_mov_b32 v14, {fl(1e-5)}")
            e(f"v_fmac_f32 v14, {fl(1.0/512)}, v{9+2*a}")
            e(f"v_rsq_f32 v{20+4*a}, v14")
        for a in range(2):
            e(f"v_mov_b32 v{21+4*a}, v{20+4*a}")
            e(f"v_mul_f32 v{22+4*a}, v{12+a}, v{20+4*a}"); e(f"v_sub_f32 v{22+4*a}, 0, v{22+4*a}"); e(f"v_mov_b32 v{23+4*a}, v{22+4*a}")
        for a in range(2):
            for q in range(16):
                s_ = 32 + 16*a + q; r = X + 32*a + 2*q
                e(f"v_lshlrev_b32 v{r}, 16, v{s_}"); e(f"v_and_b32 v{r+1}, 0xffff0000, v{s_}")
        for a in range(2):
            for q in range(16):
                r = X + 32*a + 2*q
                e(f"v_pk_fma_f32 v[{r}:{r+1}], v[{r}:{r+1}], v[{20+4*a}:{21+4*a}], v[{22+4*a}:{23+4*a}]")

    def ln_finish(self, lds_mod):
        e = self.e
        X = 128
        e("v_lshrrev_b32 v3, 4, v1"); e("v_and_b32 v4, 15, v1")
        e("v_lshlrev_b32 v6, 4, v4")
        e(f"v_add_u32 v6, {lds_mod}, v6")
        for j in range(4):
            for hh in range(2):
                e(f"ds_read_b128 v[{64+8*j+4*hh}:{67+8*j+4*hh}], v6 offset:{2048 + 512*j + 256*hh}")
                e(f"ds_read_b128 v[{96+8*j+4*hh}:{99+8*j+4*hh}], v6 offset:{512*j + 256*hh}")
        for a in range(2):
            e(f"s_lshl_b32 s20, s3, 3"); e(f"s_add_u32 s20, s20, {4*a}")
            e(f"v_add_u32 v15, s20, v3"); e(f"v_and_b32 v16, 15, v15"); e(f"v_xor_b32 v16, v16, v4")
            e(f"v_lshlrev_b32 v15, 10, v15"); e(f"v_lshl_add_u32 v{18+a}, v16, 4, v15")
        for j in range(4):
            e(f"s_waitcnt lgkmcnt({4*(3-j) + 2*j if False else min(15, 4*(3-j) + 2*j)})" if False else f"s_waitcnt lgkmcnt({4*(3-j)})" if j == 0 else "s_waitcnt lgkmcnt(0)" if j == 1 else "s_nop 0")
            for a in range(2):
                for q in range(4):
                    r = X + 32*a + 8*j + 2*q
                    e(f"v_pk_fma_f32 v[{r}:{r+1}], v[{r}:{r+1}], v[{64+8*j+2*q}:{65+8*j+2*q}], v[{96+8*j+2*q}:{97+8*j+2*q}]")
                pk = 24 + 4*a
                for q in range(4):
                    r = X + 32*a + 8*j + 2*q
                    e(f"v_cvt_pk_bf16_f32 v{pk+q}, v{r}, v{r+1}")
                e(f"ds_write_b128 v{18+a}, v[{pk}:{pk+3}] offset:{256*j}")

    def repack_issue(self):
        e = self.e
        self.srd(48, P_WIN, 0, 512*1792*2)
        e("v_cmp_le_u32 vcc, 224, v0"); e("v_mov_b32 v223, 1"); e("v_cndmask_b32 v226, 0, v223, vcc")
        e("v_mul_u32_u24 v225, 224, v226"); e("v_sub_u32 v225, v0, v225")
        e("s_lshl_b32 s20, s2, 1"); e("v_add_u32 v226, s20, v226")
        e("v_mul_u32_u24 v224, 3584, v226"); e("v_lshl_add_u32 v224, v225, 4, v224")
        e("buffer_load_dwordx4 v[228:231], v224, s[48:51], 0 offen")
        e("v_cmp_le_u32 vcc, 112, v225"); e("v_mov_b32 v223, 112"); e("v_cndmask_b32 v224, 0, v223, vcc"); e("v_sub_u32 v225, v225, v224")
        e("v_mov_b32 v223, 0"); e("v_cndmask_b32 v224, 14, v223, vcc")
        e("v_mul_u32_u24 v227, 4682, v225"); e("v_lshrrev_b32 v227, 16, v227")
        e("v_mul_u32_u24 v223, 14, v227"); e("v_sub_u32 v225, v225, v223"); e("v_add_u32 v225, v225, v224")
        e("v_bfe_u32 v223, v226, 3, 1"); e("v_lshlrev_b32 v223, 1, v223"); e("v_xor_b32 v225, v225, v223")
        e(f"v_mul_u32_u24 v227, {512*448}, v227"); e("v_mul_u32_u24 v223, 448, v226"); e("v_add_u32 v227, v227, v223")
        e("v_lshl_add_u32 v227, v225, 4, v227")

    def repack_store(self):
        e = self.e
        self.srd(48, P_WS, WS_WINP, 8*512*448)
        sk = self.lab("rps")
        e("s_cmp_eq_u32 s3, 7"); e(f"s_cbranch_scc1 {sk}")
        e(f"buffer_store_dwordx4 v[228:231], v227, s[48:51], 0 offen {ST}")
        self.a.label(sk)

    def mod_loads(self, lo, hi, bar):
        e = self.e
        nomod1 = self.lab("nomod")
        e(f"s_sub_u32 s20, s2, {lo}"); e(f"s_cmp_ge_u32 s20, {hi-lo}"); e(f"s_cbranch_scc1 {nomod1}")
        e("v_and_b32 v72, 7, v0"); e("v_lshrrev_b32 v73, 3, v0")
        e("v_mul_u32_u24 v74, 6144, v73"); e("v_lshl_add_u32 v74, v72, 4, v74")
        e("v_lshlrev_b32 v75, 1, v73")
        e("s_and_b32 s20, s2, 3"); e("s_lshr_b32 s21, s2, 2")
        e(f"s_mul_i32 s40, s20, {128*6144}"); e("s_lshl_b32 s21, s21, 7"); e("s_add_u32 s40, s40, s21"); e(f"s_add_u32 s41, s40, {64*6144}")
        e("s_lshl_b32 s42, s20, 8")
        e("buffer_load_dwordx4 v[80:83], v74, s[32:35], s40 offen")
        e("buffer_load_dwordx4 v[84:87], v74, s[32:35], s41 offen")
        e("buffer_load_ushort v76, v75, s[36:39], s42 offen")
        e("buffer_load_ushort v77, v75, s[36:39], s42 offen offset:128")
        if bar: e("s_barrier")
        self.a.label(nomod1)

    def mod_compute(self, lo, hi, wait):
        e = self.e
        MSCR = 155648
        nomod2 = self.lab("nomod")
        e(f"s_sub_u32 s20, s2, {lo}"); e(f"s_cmp_ge_u32 s20, {hi-lo}"); e(f"s_cbranch_scc1 {nomod2}")
        for j in range(8): e(f"v_mov_b32 v{64+j}, 0")
        e(f"s_waitcnt vmcnt({wait})")
        self.stamp(29)
        for i in range(2):
            c = 76 + i
            e(f"v_lshlrev_b32 v{c}, 16, v{c}")
            e(f"v_mul_f32 v12, {fl(-LOG2E)}, v{c}"); e("v_exp_f32 v12, v12"); e("v_add_f32 v12, 1.0, v12"); e("v_rcp_f32 v12, v12")
            e(f"v_mul_f32 v{c}, v{c}, v12")
            self.bf16_round(c, c)
        for i in range(2):
            for q in range(4):
                w = 80 + 4*i + q
                e(f"v_lshlrev_b32 v12, 16, v{w}"); e(f"v_and_b32 v13, 0xffff0000, v{w}")
                e(f"v_fmac_f32 v{64+2*q}, v{76+i}, v12"); e(f"v_fmac_f32 v{65+2*q}, v{76+i}, v13")
        for j in range(8): e(f"v_add_f32_dpp v{64+j}, v{64+j}, v{64+j} row_ror:8 row_mask:0xf bank_mask:0xf")
        e("v_lshrrev_b32 v12, 4, v0"); e("v_lshlrev_b32 v12, 8, v12"); e("v_lshl_add_u32 v12, v72, 5, v12")
        e(f"v_add_u32 v12, {MSCR}, v12")
        e("v_and_b32 v13, 8, v1"); e("v_cmp_eq_u32 vcc, 0, v13")
        e("s_and_saveexec_b64 s[44:45], vcc")
        e("ds_write_b128 v12, v[64:67]"); e("ds_write_b128 v12, v[68:71] offset:16")
        e("s_mov_b64 exec, s[44:45]")
        e("s_waitcnt lgkmcnt(0)")
        self.stamp(30)
        e("s_barrier")
        mdone = self.lab("mdone")
        e("s_cmp_lg_u32 s3, 7"); e(f"s_cbranch_scc1 {mdone}")
        e("v_lshlrev_b32 v72, 2, v1"); e(f"v_add_u32 v12, {MSCR}, v72")
        for i in range(32): e(f"ds_read_b32 v{80+i}, v12 offset:{256*i}")
        for lo in (0, 16):
            e(f"s_waitcnt lgkmcnt({15 if lo == 0 else 0})")
            if lo == 0: e("s_waitcnt lgkmcnt(15)")
        e("s_waitcnt lgkmcnt(0)")
        for st in (16, 8, 4, 2, 1):
            for i in range(st): e(f"v_add_f32 v{80+i}, v{80+i}, v{80+i+st}")
        e("s_and_b32 s20, s2, 3"); e("s_mul_i32 s20, s20, 12288"); e("s_lshr_b32 s21, s2, 2"); e("s_lshl_b32 s21, s21, 8"); e("s_add_u32 s20, s20, s21")
        e(f"buffer_store_dword v80, v72, s[12:15], s20 offen {ST}")
        e("s_waitcnt vmcnt(0)")
        self.signal(lambda: (e("s_lshl_b32 s46, s2, 2"), e(f"s_add_u32 s46, s46, {F0}")), nrep=8, rep_stride=1024)
        self.a.label(mdone)
        self.a.label(nomod2)

    def mod_late_a(self):
        e = self.e
        MSCR = 155648
        sk = self.lab("mla")
        e("s_sub_u32 s20, s2, 64"); e("s_cmp_ge_u32 s20, 128"); e(f"s_cbranch_scc1 {sk}")
        e("s_cmp_eq_u32 s3, 7"); e(f"s_cbranch_scc1 {sk}")
        self.srd(32, P_WMOD, 0, 512*3072*2); self.srd(36, P_C, 0, 1024)
        e("v_and_b32 v72, 7, v0"); e("v_lshrrev_b32 v73, 3, v0")
        e("v_mul_u32_u24 v74, 6144, v73"); e("v_lshl_add_u32 v74, v72, 4, v74"); e("v_lshlrev_b32 v75, 1, v73")
        e("s_and_b32 s20, s2, 3"); e("s_lshr_b32 s21, s2, 2")
        e(f"s_mul_i32 s40, s20, {128*6144}"); e("s_lshl_b32 s21, s21, 7"); e("s_add_u32 s40, s40, s21")
        e(f"s_add_u32 s41, s40, {56*6144}"); e(f"s_add_u32 s43, s40, {112*6144}"); e("s_lshl_b32 s42, s20, 8")
        for r in range(88, 92): e(f"v_mov_b32 v{r}, 0")
        e("v_mov_b32 v78, 0")
        e("buffer_load_dwordx4 v[80:83], v74, s[32:35], s40 offen"); e("buffer_load_dwordx4 v[84:87], v74, s[32:35], s41 offen")
        e("buffer_load_ushort v76, v75, s[36:39], s42 offen"); e("buffer_load_ushort v77, v75, s[36:39], s42 offen offset:112")
        e("v_cmp_gt_u32 vcc, 16, v73"); e("s_and_saveexec_b64 s[44:45], vcc")
        s3 = self.lab("mla3")
        e(f"s_cbranch_execz {s3}")
        e("buffer_load_dwordx4 v[88:91], v74, s[32:35], s43 offen"); e("buffer_load_ushort v78, v75, s[36:39], s42 offen offset:224")
        self.a.label(s3)
        e("s_mov_b64 exec, s[44:45]")
        for j in range(8): e(f"v_mov_b32 v{64+j}, 0")
        e("s_waitcnt vmcnt(0)")
        for i in range(3):
            c = 76 + i
            e(f"v_lshlrev_b32 v{c}, 16, v{c}")
            e(f"v_mul_f32 v12, {fl(-LOG2E)}, v{c}"); e("v_exp_f32 v12, v12"); e("v_add_f32 v12, 1.0, v12"); e("v_rcp_f32 v12, v12")
            e(f"v_mul_f32 v{c}, v{c}, v12")
            self.bf16_round(c, c)
        for i in range(3):
            for q in range(4):
                w = 80 + 4*i + q
                e(f"v_lshlrev_b32 v12, 16, v{w}"); e(f"v_and_b32 v13, 0xffff0000, v{w}")
                e(f"v_fmac_f32 v{64+2*q}, v{76+i}, v12"); e(f"v_fmac_f32 v{65+2*q}, v{76+i}, v13")
        for j in range(8): e(f"v_add_f32_dpp v{64+j}, v{64+j}, v{64+j} row_ror:8 row_mask:0xf bank_mask:0xf")
        e("v_lshrrev_b32 v12, 4, v0"); e("v_lshlrev_b32 v12, 8, v12"); e("v_lshl_add_u32 v12, v72, 5, v12"); e(f"v_add_u32 v12, {MSCR}, v12")
        e("v_and_b32 v13, 8, v1"); e("v_cmp_eq_u32 vcc, 0, v13"); e("s_and_saveexec_b64 s[44:45], vcc")
        e("ds_write_b128 v12, v[64:67]"); e("ds_write_b128 v12, v[68:71] offset:16")
        e("s_mov_b64 exec, s[44:45]")
        e("s_waitcnt lgkmcnt(0)")
        self.a.label(sk)

    def mod_late_b(self):
        e = self.e
        MSCR = 155648
        sk = self.lab("mlb")
        e("s_sub_u32 s20, s2, 64"); e("s_cmp_ge_u32 s20, 128"); e(f"s_cbranch_scc1 {sk}")
        e("s_cmp_lg_u32 s3, 6"); e(f"s_cbranch_scc1 {sk}")
        self.srd(48, P_WS, WS_MOD, 49152)
        e("v_lshlrev_b32 v178, 2, v1"); e(f"v_add_u32 v179, {MSCR}, v178")
        for i in range(28): e(f"ds_read_b32 v{180+i}, v179 offset:{256*i}")
        e("s_waitcnt lgkmcnt(0)")
        for i in range(1, 28): e(f"v_add_f32 v180, v180, v{180+i}")
        e("s_and_b32 s20, s2, 3"); e("s_mul_i32 s20, s20, 12288"); e("s_lshr_b32 s21, s2, 2"); e("s_lshl_b32 s21, s21, 8"); e("s_add_u32 s20, s20, s21")
        e(f"buffer_store_dword v180, v178, s[48:51], s20 offen {ST}")
        self.a.label(sk)

    def mod_late_flag(self):
        e = self.e
        sk = self.lab("mlf")
        e("s_sub_u32 s20, s2, 64"); e("s_cmp_ge_u32 s20, 128"); e(f"s_cbranch_scc1 {sk}")
        e("s_cmp_lg_u32 s3, 6"); e(f"s_cbranch_scc1 {sk}")
        e("s_lshl_b32 s46, s2, 2"); e(f"s_add_u32 s46, s46, {F0}")
        e(f"v_mov_b32 v250, s{S_NONCE}"); e("v_mul_u32_u24 v251, 1024, v1")
        e("s_mov_b64 exec, 0xff")
        e(f"buffer_store_dword v250, v251, s[{SRD_F}:{SRD_F+3}], s46 offen {ST}")
        e("s_mov_b64 exec, -1")
        self.a.label(sk)

    def p01(self):
        e = self.e
        RING = 65536; SL = 12288; D = 7; MODL = RING + D*SL
        MSCR = 155648
        self.srd(8, P_X, 0, 2048*512*2)
        self.srd(12, P_WS, WS_MOD, 49152)
        self.srd(16, P_WQKV, 0, 512*1536*2)
        self.srd(24, P_WS, WS_QK, 4*MB)
        self.srd(28, P_WS, WS_V, 2*MB)
        self.srd(32, P_WMOD, 0, 512*3072*2)
        self.srd(36, P_C, 0, 1024)
        self.mod_loads(0, self.MODCRIT, True)
        self.get_nonce()
        self.stamp(25)
        if self.XLATE:
            xl = self.lab("xlate")
            e("s_cmp_ge_u32 s2, 192"); e(f"s_cbranch_scc1 {xl}")
            e("s_waitcnt vmcnt(0)")
            self.a.label(xl)
        e("s_lshl_b32 s6, s4, 16")
        self.ln_loads(8, 6)
        self.stamp(26)
        tk = self.lab("touch")
        e("s_cmp_ge_u32 s3, 3"); e(f"s_cbranch_scc1 {tk}")
        e("s_and_b32 s20, s4, 7"); e("s_lshl_b32 s20, s20, 6")
        e("v_add_u32 v7, s20, v1"); e("v_mul_u32_u24 v7, 3072, v7")
        e("s_lshl_b32 s20, s5, 8"); e("s_lshl_b32 s21, s3, 7"); e("s_add_u32 s20, s20, s21")
        e("s_lshl_b32 s21, s5, 7"); e("s_add_u32 s21, s21, 2048")
        e("s_cmp_eq_u32 s3, 2"); e("s_cselect_b32 s20, s21, s20")
        e("buffer_load_dword v9, v7, s[16:19], s20 offen")
        self.a.label(tk)
        self.stamp(27)
        e("s_and_b32 s7, s3, 3")
        for m in range(3):
            d = 192 + m
            e(f"s_lshl_b32 s20, s7, 6"); e(f"s_add_u32 s20, s20, {256*m}")
            e(f"v_add_u32 v200, s20, v1")
            e(f"v_mul_u32_u24 v201, 2731, v200"); e(f"v_lshrrev_b32 v201, 16, v201")
            e(f"v_mul_u32_u24 v202, 24, v201"); e(f"v_sub_u32 v202, v200, v202")
            e(f"v_bfe_u32 v203, v201, 1, 1"); e(f"v_bfe_u32 v204, v201, 3, 1")
            e(f"v_lshl_or_b32 v203, v204, 1, v203"); e(f"v_lshlrev_b32 v203, 1, v203")
            e(f"v_xor_b32 v202, v202, v203"); e(f"v_lshlrev_b32 v203, 4, v202")
            e(f"s_lshl_b32 s20, s5, 8"); e(f"v_add_u32 v204, s20, v203")
            e(f"s_lshl_b32 s20, s5, 7"); e(f"s_add_u32 s20, s20, {2048-256}"); e(f"v_add_u32 v205, s20, v203")
            e(f"v_cmp_gt_u32 vcc, 16, v202"); e(f"v_cndmask_b32 v204, v205, v204, vcc")
            e(f"v_mul_u32_u24 v201, 3072, v201"); e(f"v_add_u32 v{d}, v201, v204")
        e("s_lshl_b32 s7, s7, 10"); e(f"s_add_u32 s7, s7, {RING}")
        e("s_lshr_b32 s32, s3, 2")
        self.stamp(28)
        self.mod_compute(0, self.MODCRIT, 8)
        self.stamp(0)
        e(f"s_mul_i32 s33, s32, {32*3072}")
        e(f"s_mul_i32 s34, s32, {SL}"); e("s_add_u32 s34, s34, s7")
        def issue_pair(pairidx):
            def f():
                e(f"s_add_u32 s23, s33, {2*pairidx*32*3072}")
                for m in range(3):
                    self.dma(192+m, 16, "s23", f"s_add_u32 m0, s34, {2*pairidx*SL + m*4096}")
            return f
        issue_pair(0)()
        e("s_waitcnt vmcnt(3)")
        self.stamp(1)
        nop = lambda: None
        self.ln_stats([nop, nop, issue_pair(1), nop, nop, issue_pair(2)])
        self.stamp(2)
        def c0():
            e("s_and_b32 s46, s2, 7"); e("s_lshl_b32 s46, s46, 10"); e(f"s_add_u32 s46, s46, {F0}")
            e("v_lshlrev_b32 v251, 2, v1")
        self.wait_flags([(c0, (1 << 64) - 1)], keep=True)
        self.stamp(3)
        self.mod_issue(12, 0)
        e("v_mov_b32 v249, 0"); e("ds_read_b32 v249, v249"); e("s_waitcnt lgkmcnt(0)"); e(f"v_readfirstlane_b32 s{S_NONCE}, v249")
        e("v_lshrrev_b32 v3, 4, v1"); e("v_and_b32 v4, 15, v1")
        e("v_lshrrev_b32 v5, 2, v4"); e("v_and_b32 v6, 3, v4")
        e("v_lshl_add_u32 v7, v3, 3, v5"); e("v_mul_u32_u24 v7, 384, v7"); e("v_lshl_add_u32 v7, v6, 3, v7")
        e(f"v_add_u32 v7, {RING}, v7")
        e("v_bfe_u32 v8, v5, 1, 1"); e("v_and_b32 v9, 1, v3"); e("v_lshl_or_b32 v8, v9, 1, v8")
        e("s_lshr_b32 s20, s3, 1")
        for c in range(3):
            if c < 2: e(f"s_lshl_b32 s21, s20, 1"); e(f"s_add_u32 s21, s21, {c}")
            else: e(f"s_add_u32 s21, s20, 8")
            e("s_lshr_b32 s22, s21, 2"); e("s_lshl_b32 s22, s22, 7"); e("s_and_b32 s21, s21, 3")
            e(f"v_xor_b32 v9, s21, v8"); e(f"v_lshl_add_u32 v{200+c}, v9, 5, v7"); e(f"v_add_u32 v{200+c}, s22, v{200+c}")
            e(f"v_add_u32 v{204+c}, {5*SL}, v{200+c}")
        e("s_and_b32 s21, s3, 1"); e("s_lshl_b32 s21, s21, 5")
        e("v_add_u32 v9, s21, v4"); e("v_lshlrev_b32 v9, 10, v9")
        for m in range(4):
            e(f"v_add_u32 v10, {4*m}, v3"); e(f"v_xor_b32 v10, v10, v4"); e(f"v_lshl_add_u32 v{208+m}, v10, 4, v9")
        e("s_waitcnt vmcnt(0)")
        self.mod_finish(MODL)
        e("s_waitcnt lgkmcnt(0)")
        e("s_barrier")
        self.ln_finish(MODL)
        ACC = 128
        e("s_waitcnt lgkmcnt(0)")
        e("s_barrier")
        for r in range(24): e(f"v_mov_b32 v{192+8+r}, 0") if False else None
        ACC = 212
        for r in range(24): e(f"v_mov_b32 v{ACC+r}, 0")
        self.stamp(4)
        def reads_list(n):
            buf = n % 2; slot = n % D
            out = []
            for rt in range(2):
                b = 32 + 32*buf + 4*rt
                out.append(f"ds_read_b128 v[{b}:{b+3}], v{208 + (n & 3)} offset:{rt*16384 + (n >> 2)*256}")
            for c in range(3):
                b = 40 + 32*buf + 4*c
                areg, off = (200 + c, slot*SL) if slot < 5 else (204 + c, (slot-5)*SL)
                for t in range(2):
                    out.append(f"ds_read_b64_tr_b16 v[{b+2*t}:{b+2*t+1}], v{areg} offset:{off + 4*t*384}")
            return out
        def mfmas(n):
            buf = n % 2
            for c in range(3):
                for rt in range(2):
                    acc = ACC + 4*(rt*3 + c)
                    x = 32 + 32*buf + 4*rt; w = 40 + 32*buf + 4*c
                    A, B = (w, x) if c < 2 else (x, w)
                    yield f"v_mfma_f32_16x16x32_bf16 v[{acc}:{acc+3}], v[{A}:{A+3}], v[{B}:{B+3}], v[{acc}:{acc+3}]"
        NK = 16
        for r in reads_list(0): e(r)
        for n in range(NK):
            if n + 1 < NK:
                if n + 1 >= 6:
                    hi = min(n + 5, NK - 1)
                    cA = sum(1 for s in range(max(n+2, 6), hi+1) if s % 2 == 0); cB = sum(1 for s in range(max(n+2, 6), hi+1) if s % 2 == 1)
                    e(f"s_waitcnt vmcnt({3*min(cA, cB)})")
                e("s_barrier")
            e("s_waitcnt lgkmcnt(0)")
            ms = list(mfmas(n)); rs = reads_list(n + 1) if n + 1 < NK else []
            ri = 0
            for i, m in enumerate(ms):
                e(m)
                for _ in range(2 if i < 2 else 1):
                    if ri < len(rs): e(rs[ri]); ri += 1
            st = n + D - 1
            if st < NK:
                lsk = self.lab("qkv_sk")
                e(f"s_cmp_lg_u32 s32, {st & 1}"); e(f"s_cbranch_scc1 {lsk}")
                e(f"s_mov_b32 s23, {st*32*3072}")
                for m in range(3): self.dma(192+m, 16, "s23", f"s_add_u32 m0, s7, {(st % D)*SL + m*4096}")
                self.a.label(lsk)
        self.stamp(5)
        e("v_lshlrev_b32 v8, 4, v1")
        e("s_and_b32 s20, s3, 1"); e("s_lshl_b32 s21, s4, 1"); e("s_add_u32 s21, s21, s20"); e("s_lshl_b32 s21, s21, 10")
        e("s_lshr_b32 s20, s3, 1")
        e(f"s_mov_b32 s22, {fl(0.25*LOG2E)}"); e("s_cmp_lt_u32 s5, 4"); e("s_cselect_b32 s22, s22, 1.0")
        for c in range(3):
            if c < 2:
                e("s_lshl_b32 s23, s5, 3"); e("s_lshl_b32 s6, s20, 1"); e("s_add_u32 s23, s23, s6"); e(f"s_add_u32 s23, s23, {c}")
            else:
                e("s_lshl_b32 s23, s5, 2"); e("s_add_u32 s23, s23, s20")
            e("s_lshl_b32 s23, s23, 16"); e("s_add_u32 s23, s23, s21")
            pk = 32 + 4*c
            for rt in range(2):
                acc = ACC + 4*(rt*3 + c)
                if c < 2:
                    for q in range(4): e(f"v_mul_f32 v{acc+q}, s22, v{acc+q}")
                e(f"v_cvt_pk_bf16_f32 v{pk+2*rt}, v{acc}, v{acc+1}"); e(f"v_cvt_pk_bf16_f32 v{pk+2*rt+1}, v{acc+2}, v{acc+3}")
            sw = "v_permlane16_swap_b32" if c < 2 else "v_permlane32_swap_b32"
            e(f"{sw} v{pk}, v{pk+2}"); e(f"{sw} v{pk+1}, v{pk+3}")
            e(f"buffer_store_dwordx4 v[{pk}:{pk+3}], v8, {'s[24:27]' if c < 2 else 's[28:31]'}, s23 offen {ST}")
        self.phase_end()
        self.signal(lambda: (e("s_lshl_b32 s46, s5, 7"), e("s_lshl_b32 s47, s4, 2"), e("s_add_u32 s46, s46, s47"), e(f"s_add_u32 s46, s46, {F1}")),
                    nrep=8, rep_stride=1024)
        if self.MODCRIT < 192: self.mod_late_a()
        if self.REPACK:
            rpi = self.lab("rpi")
            e("s_cmp_eq_u32 s3, 7"); e(f"s_cbranch_scc1 {rpi}")
            self.repack_issue()
            self.a.label(rpi)
        self.stamp(6)

    def l2_prefetch(self, vtmp, vdst):
        e = self.e
        e("s_and_b32 s20, s2, 7"); e("s_lshr_b32 s21, s2, 3")
        e(f"v_lshlrev_b32 v{vtmp}, 7, v1")
        self.srd(48, P_WSP, 0, 2048*2048*2)
        e("s_and_b32 s22, s20, 3"); e("s_lshl_b32 s22, s22, 21"); e("s_lshl_b32 s23, s21, 16"); e("s_add_u32 s22, s22, s23")
        e("s_lshl_b32 s23, s3, 13"); e("s_add_u32 s22, s22, s23")
        e(f"buffer_load_dword v{vdst}, v{vtmp}, s[48:51], s22 offen")
        if self.REPACK:
            self.srd(48, P_WS, WS_WINP, 8*512*448)
            e("s_lshr_b32 s22, s20, 2"); e(f"s_mul_i32 s22, s22, {4*512*448}")
            e(f"s_mul_i32 s23, s21, {224*128}"); e("s_add_u32 s22, s22, s23")
            e("s_lshl_b32 s23, s3, 13"); e("s_add_u32 s22, s22, s23")
            pw4 = self.lab("pf4")
            e("s_cmp_ge_u32 s3, 4"); e(f"s_cbranch_scc1 {pw4}")
            e(f"buffer_load_dword v{vdst+2}, v{vtmp}, s[48:51], s22 offen")
            self.a.label(pw4)
        else:
            self.srd(48, P_WIN, 0, 512*1792*2)
            e(f"v_lshrrev_b32 v{vdst+1}, 5, v1"); e(f"v_bfe_u32 v{vdst+2}, v1, 4, 1")
            e(f"v_and_b32 v{vdst+3}, 15, v1"); e(f"v_min_u32 v{vdst+3}, 7, v{vdst+3}")
            e(f"v_mul_u32_u24 v{vdst+1}, 3584, v{vdst+1}"); e(f"v_mul_u32_u24 v{vdst+2}, 1792, v{vdst+2}")
            e(f"v_add_u32 v{vdst+1}, v{vdst+1}, v{vdst+2}"); e(f"v_lshl_add_u32 v{vdst+1}, v{vdst+3}, 7, v{vdst+1}")
            e("s_lshr_b32 s22, s20, 2"); e("s_mul_i32 s22, s22, 896")
            e("s_lshl_b32 s23, s21, 4"); e("s_lshl_b32 s46, s3, 1"); e("s_add_u32 s23, s23, s46"); e("s_mul_i32 s23, s23, 3584")
            e("s_add_u32 s22, s22, s23")
            e(f"buffer_load_dword v{vdst+2}, v{vdst+1}, s[48:51], s22 offen")
        e(f"v_lshrrev_b32 v{vdst+1}, 2, v1"); e(f"v_and_b32 v{vdst+3}, 3, v1")
        e(f"v_lshlrev_b32 v{vdst+1}, 10, v{vdst+1}"); e(f"v_lshl_add_u32 v{vdst+1}, v{vdst+3}, 7, v{vdst+1}")
        e("s_lshr_b32 s22, s20, 2"); e("s_lshl_b32 s22, s22, 9")
        lw = self.lab("pf_w"); lx = self.lab("pf_x")
        e("s_cmp_ge_u32 s3, 2"); e(f"s_cbranch_scc1 {lw}")
        self.srd(48, P_WOUT, 0, 896*512*2)
        e("s_mul_i32 s23, s21, 28"); e("s_lshl_b32 s46, s3, 4"); e("s_add_u32 s23, s23, s46"); e("s_lshl_b32 s23, s23, 10")
        e("s_add_u32 s22, s22, s23")
        e(f"buffer_load_dword v{vdst+3}, v{vdst+1}, s[48:51], s22 offen")
        e(f"s_branch {lx}")
        self.a.label(lw)
        e("s_cmp_lg_u32 s3, 2"); e(f"s_cbranch_scc1 {lx}")
        self.srd(48, P_WO, 0, 512*512*2)
        e("s_lshl_b32 s23, s21, 14"); e("s_add_u32 s22, s22, s23")
        e(f"buffer_load_dword v{vdst+3}, v{vdst+1}, s[48:51], s22 offen")
        self.a.label(lx)

    def p2(self):
        e = self.e
        end = self.lab("att_end")
        H, QB_ = S_HEAD, S_QB
        self.srd(8, P_WS, WS_QK, 4*MB)
        self.srd(12, P_WS, WS_V, 2*MB)
        self.srd(16, P_WS, WS_O, 2*MB)
        e("s_and_b32 s6, s3, 3"); e("s_lshr_b32 s7, s3, 2")
        e("v_lshlrev_b32 v2, 4, v1")
        QA, QB = 8, 12
        SA, SB = 32, 48
        PA, PB = 64, 72
        OA, OB = 80, 96
        CA, CB = 112, 128
        KF = 144; VF = 152
        AK, AV = 4, 5
        FLAG = 131072 + 20480
        e(f"v_mov_b32 v3, {FLAG}"); e("v_mov_b32 v4, 0"); e("ds_write_b32 v3, v4")
        e("v_and_b32 v6, 31, v1"); e("v_and_b32 v7, 27, v6"); e("v_cmp_eq_u32 vcc, 16, v7")
        e("v_mov_b32 v16, 0x3f803f80"); e("v_cndmask_b32 v16, 0, v16, vcc")
        for r in range(16): e(f"v_mov_b32 v{VF+r}, v16")
        e("v_cmp_gt_u32 s[30:31], 16, v6")
        for r in range(16):
            e(f"v_mov_b32 v{CA+r}, 0"); e(f"v_mov_b32 v{CB+r}, 0")
        e("s_mov_b32 s33, 0")
        def cKV():
            e("s_and_b32 s46, s2, 7"); e("s_lshl_b32 s46, s46, 10"); e(f"s_add_u32 s46, s46, {F1}")
            e(f"s_lshr_b32 s44, s{H}, 3"); e("s_add_u32 s44, s44, 4"); e("s_lshl_b32 s44, s44, 7")
            e(f"s_lshr_b32 s45, s{H}, 2"); e("s_lshl_b32 s45, s45, 7")
            e("v_and_b32 v251, 31, v1"); e("v_lshlrev_b32 v251, 2, v251")
            e("v_mov_b32 v252, s44"); e("v_mov_b32 v253, s45")
            e("v_cmp_gt_u32 vcc, 32, v1"); e("v_cndmask_b32 v252, v253, v252, vcc")
            e("v_add_u32 v251, v251, v252")
        def cQ():
            e("s_and_b32 s46, s2, 7"); e("s_lshl_b32 s46, s46, 10"); e(f"s_add_u32 s46, s46, {F1}")
            e(f"s_lshr_b32 s44, s{H}, 3"); e("s_lshl_b32 s44, s44, 7"); e("s_add_u32 s46, s46, s44")
            e(f"s_lshl_b32 s44, s{QB_}, 4"); e("s_add_u32 s46, s46, s44")
            e("v_lshlrev_b32 v251, 2, v1")
        self.wait_flags([(cKV, (1 << 64) - 1), (cQ, 0xf)])
        self.stamp(7)
        e(f"s_lshl_b32 s20, s{QB_}, 3"); e("s_lshl_b32 s21, s6, 1"); e("s_add_u32 s20, s20, s21"); e("s_lshl_b32 s20, s20, 10")
        e(f"s_lshl_b32 s21, s{H}, 16"); e("s_add_u32 s20, s20, s21")
        e(f"buffer_load_dwordx4 v[{QA}:{QA+3}], v2, s[8:11], s20 offen")
        e(f"buffer_load_dwordx4 v[{QB}:{QB+3}], v2, s[8:11], s20 offen offset:1024")
        e(f"s_lshl_b32 s41, s{H}, 16"); e(f"s_add_u32 s40, s41, {32*65536}"); e("s_lshl_b32 s42, s3, 10")
        e("s_add_u32 s40, s40, s42"); e("s_add_u32 s41, s41, s42")
        def dma_half(half):
            e(f"s_add_u32 s20, s40, {32*half*1024}")
            self.dma(2, 8, "s20", f"s_add_u32 m0, s42, {32*half*1024}")
            e(f"s_add_u32 s20, s41, {32*half*1024}")
            self.dma(2, 12, "s20", f"s_add_u32 m0, s42, {65536 + 32*half*1024}")
        def next_chunk():
            e("s_add_u32 s40, s40, 8192"); e("s_add_u32 s41, s41, 8192"); e("s_add_u32 s42, s42, 8192")
        dma_half(0); dma_half(1); next_chunk()
        if self.MODCRIT < 192: self.mod_late_b()
        lrestart = self.lab("att_restart")
        self.a.label(lrestart)
        for r in range(16):
            e(f"v_mov_b32 v{OA+r}, 0"); e(f"v_mov_b32 v{OB+r}, 0")
        e("s_lshl_b32 s20, s7, 15"); e(f"v_add_u32 v{AK}, s20, v2")
        e("v_lshrrev_b32 v6, 5, v1"); e("v_and_b32 v7, 15, v1"); e("v_lshlrev_b32 v7, 4, v7"); e("v_lshl_add_u32 v7, v6, 8, v7")
        e("s_add_u32 s20, s20, 65536"); e(f"v_add_u32 v{AV}, s20, v7")
        for r in range(8): e(f"v_mov_b32 v{PB+r}, 0")
        if self.BALANCE:
            e("s_lshl_b32 s20, s3, 2"); e(f"s_add_u32 s20, s20, {151552 + 64}"); e("v_mov_b32 v17, s20")
            e("s_xor_b32 s20, s20, 16"); e("v_mov_b32 v18, s20")
            e("v_mov_b32 v19, 0"); e("ds_write_b32 v17, v19")
        e("s_mov_b64 exec, s[30:31]")
        for r in range(8): e(f"v_mov_b32 v{VF+8+r}, 0")
        e("s_mov_b64 exec, -1")
        def rdK(buf, off): e(f"ds_read_b128 v[{KF+4*buf}:{KF+4*buf+3}], v{AK} offset:{off}")
        def rdV(buf, off):
            e("s_mov_b64 exec, s[30:31]")
            e(f"ds_read_b128 v[{VF+8*buf}:{VF+8*buf+3}], v{AV} offset:{off}")
            e(f"ds_read_b128 v[{VF+8*buf+4}:{VF+8*buf+7}], v{AV} offset:{off+512}")
            e("s_mov_b64 exec, -1")
        def qk(S, C, Q, buf): e(f"v_mfma_f32_32x32x16_bf16 v[{S}:{S+15}], v[{KF+4*buf}:{KF+4*buf+3}], v[{Q}:{Q+3}], v[{C}:{C+15}]")
        def pv(O, P, buf, mf): e(f"v_mfma_f32_32x32x16_bf16 v[{O}:{O+15}], v[{VF+8*buf+4*mf}:{VF+8*buf+4*mf+3}], v[{P+4*mf}:{P+4*mf+3}], v[{O}:{O+15}]")
        def step(S, P, first, mid1, mid2, pre=None, extra=None):
            if pre: pre()
            first()
            k = 0
            for j in range(16):
                e(f"v_exp_f32 v{S+j}, v{S+j}")
                if j >= 3 and j % 2 == 1:
                    e(f"v_cvt_pk_bf16_f32 v{P+k}, v{S+2*k}, v{S+2*k+1}"); k += 1
                if j == self.M1 and mid1: mid1()
                if j == 7 and extra: extra()
                if j == self.M2 and mid2: mid2()
            while k < 8:
                e(f"v_cvt_pk_bf16_f32 v{P+k}, v{S+2*k}, v{S+2*k+1}"); k += 1
        e("s_waitcnt vmcnt(0) lgkmcnt(0)")
        e("s_barrier")
        self.stamp(8)
        if self.REPACK:
            rps = self.lab("att_rps")
            e("s_cmp_lg_u32 s33, 0"); e(f"s_cbranch_scc1 {rps}")
            self.repack_store()
            self.a.label(rps)
        rdK(0, 0); rdV(0, 0)
        e("s_waitcnt lgkmcnt(0)")
        cz = {"zero": False}
        def qkz(S, C, Q, buf):
            c = "0" if cz["zero"] else f"v[{C}:{C+15}]"
            e(f"v_mfma_f32_32x32x16_bf16 v[{S}:{S+15}], v[{KF+4*buf}:{KF+4*buf+3}], v[{Q}:{Q+3}], {c}")
        def body(extra):
            step(SA, PA, lambda: qkz(SB, CB, QB, 0), lambda: pv(OB, PB, 1, 0), lambda: pv(OB, PB, 1, 1), pre=lambda: rdK(1, 1024), extra=extra)
            def preB0():
                rdV(1, 1024); e("s_waitcnt lgkmcnt(2)")
                if self.BALANCE:
                    e("v_mov_b32 v19, s34")
                    e("ds_write_b32 v17, v19")
                    e("ds_read_b32 v24, v18")
            step(SB, PB, lambda: qkz(SA, CA, QA, 1), lambda: pv(OA, PA, 0, 0), lambda: pv(OA, PA, 0, 1), pre=preB0)
            step(SA, PA, lambda: qkz(SB, CB, QB, 1), lambda: pv(OB, PB, 0, 0), lambda: pv(OB, PB, 0, 1), pre=lambda: rdK(0, 2048))
            def preB1():
                rdV(0, 2048); e("s_waitcnt lgkmcnt(2)")
                if self.BALANCE:
                    e("v_readfirstlane_b32 s20, v24")
                    e("s_cmp_gt_u32 s34, s20"); e("s_cselect_b32 s20, 0, 1")
                    hi = self.lab("att_hi"); dn_ = self.lab("att_pd")
                    e("s_cmp_eq_u32 s20, 1"); e(f"s_cbranch_scc1 {hi}")
                    e("s_setprio 0"); e(f"s_branch {dn_}")
                    self.a.label(hi)
                    e("s_setprio 1")
                    self.a.label(dn_)
            step(SB, PB, lambda: qkz(SA, CA, QA, 0), lambda: pv(OA, PA, 1, 0), lambda: pv(OA, PA, 1, 1), pre=preB1)
            e(f"v_add_u32 v{AK}, 2048, v{AK}"); e(f"v_add_u32 v{AV}, 2048, v{AV}")
            e("s_add_u32 s34, s34, 1")
        lslowloop = self.lab("att_slowloop"); ltail = self.lab("att_tail")
        qk(SA, CA, QA, 0)
        e("s_mov_b32 s34, 0")
        e("s_cmp_lg_u32 s33, 0"); e(f"s_cbranch_scc1 {lslowloop}")
        cz["zero"] = True
        loop = self.lab("att_loop"); nb = self.lab("att_nobar")
        self.a.label(loop)
        if self.PREFETCH:
            pf = self.lab("att_pf")
            e("s_cmp_lg_u32 s34, 4"); e(f"s_cbranch_scc1 {pf}")
            self.l2_prefetch(170, 172)
            self.a.label(pf)
        e("s_cmp_lg_u32 s34, 3"); e(f"s_cbranch_scc1 {nb}")
        e("s_waitcnt vmcnt(0)")
        e("s_barrier")
        if self.MODCRIT < 192: self.mod_late_flag()
        self.a.label(nb)
        def extra_dma():
            sk = self.lab("att_nd")
            e("s_cmp_ge_u32 s34, 3"); e(f"s_cbranch_scc1 {sk}")
            dma_half(0); dma_half(1); next_chunk()
            self.a.label(sk)
        body(extra_dma)
        e("s_cmp_lt_u32 s34, 5"); e(f"s_cbranch_scc1 {loop}")
        lean = self.lab("att_lean")
        self.a.label(lean)
        body(None)
        e("s_cmp_lt_u32 s34, 16"); e(f"s_cbranch_scc1 {lean}")
        e(f"s_branch {ltail}")
        cz["zero"] = False
        self.a.label(lslowloop)
        body(None)
        e("s_cmp_lt_u32 s34, 16"); e(f"s_cbranch_scc1 {lslowloop}")
        self.a.label(ltail)
        if self.BALANCE:
            e("v_mov_b32 v19, 64"); e("ds_write_b32 v17, v19"); e("s_setprio 0")
        self.stamp(9)
        pv(OB, PB, 1, 0); pv(OB, PB, 1, 1)
        SCR = 131072
        e("s_mul_i32 s20, s3, 2560"); e(f"s_add_u32 s20, s20, {SCR}")
        e("v_add_u32 v6, s20, v2"); e("v_lshlrev_b32 v7, 2, v1"); e("v_add_u32 v7, s20, v7")
        lk1 = self.lab("att_k1"); lx = self.lab("att_x")
        e("s_cmp_eq_u32 s7, 0"); e(f"s_cbranch_scc1 {lk1}")
        e(f"ds_write_b128 v6, v[{OA}:{OA+3}]"); e(f"ds_write_b128 v6, v[{OA+4}:{OA+7}] offset:1024"); e(f"ds_write_b32 v7, v{OA+8} offset:2048")
        for r in range(9): e(f"v_mov_b32 v{OA+r}, v{OB+r}")
        e(f"s_branch {lx}")
        self.a.label(lk1)
        e(f"ds_write_b128 v6, v[{OB}:{OB+3}]"); e(f"ds_write_b128 v6, v[{OB+4}:{OB+7}] offset:1024"); e(f"ds_write_b32 v7, v{OB+8} offset:2048")
        self.a.label(lx)
        e("s_xor_b32 s21, s3, 4"); e("s_mul_i32 s21, s21, 2560"); e(f"s_add_u32 s21, s21, {SCR}")
        e("v_add_u32 v6, s21, v2"); e("v_lshlrev_b32 v7, 2, v1"); e("v_add_u32 v7, s21, v7")
        e("s_waitcnt lgkmcnt(0)"); e("s_barrier")
        e(f"ds_read_b128 v[{SA}:{SA+3}], v6"); e(f"ds_read_b128 v[{SA+4}:{SA+7}], v6 offset:1024"); e(f"ds_read_b32 v{SA+8}, v7 offset:2048")
        e(f"v_mov_b32 v20, {fl(2.0**-24)}"); e(f"v_mov_b32 v21, {fl(2.0**40)}"); e(f"v_mov_b32 v22, 0x7f7fffff")
        e("s_waitcnt lgkmcnt(0)")
        for r in range(9): e(f"v_add_f32 v{OA+r}, v{OA+r}, v{SA+r}")
        e(f"v_max3_f32 v23, |v{OA}|, |v{OA+1}|, |v{OA+2}|"); e(f"v_max3_f32 v23, v23, |v{OA+3}|, |v{OA+4}|")
        e(f"v_max3_f32 v23, v23, |v{OA+5}|, |v{OA+6}|"); e(f"v_max_f32 v23, v23, |v{OA+7}|")
        e(f"v_cmp_ge_f32 vcc, v{OA+8}, v20"); e(f"v_cmp_le_f32 s[36:37], v{OA+8}, v21"); e(f"v_cmp_le_f32 s[38:39], v23, v22")
        e("s_and_b64 s[36:37], s[36:37], vcc"); e("s_and_b64 s[36:37], s[36:37], s[38:39]")
        lok = self.lab("att_ok")
        e("s_cmp_eq_u64 s[36:37], -1"); e(f"s_cbranch_scc1 {lok}")
        e(f"v_mov_b32 v3, {FLAG}"); e("v_mov_b32 v20, 1"); e("ds_write_b32 v3, v20"); e("s_waitcnt lgkmcnt(0)")
        self.a.label(lok)
        e(f"v_rcp_f32 v20, v{OA+8}")
        for r in range(8): e(f"v_mul_f32 v{OA+r}, v{OA+r}, v20")
        for q in range(4): e(f"v_cvt_pk_bf16_f32 v{SB+q}, v{OA+2*q}, v{OA+2*q+1}")
        e("s_barrier")
        e(f"v_mov_b32 v3, {FLAG}"); e("ds_read_b32 v20, v3")
        e(f"s_lshl_b32 s20, s{QB_}, 3"); e("s_lshl_b32 s21, s6, 1"); e("s_add_u32 s20, s20, s21"); e("s_add_u32 s20, s20, s7")
        e("s_lshl_b32 s20, s20, 15"); e(f"s_lshl_b32 s21, s{H}, 10"); e("s_add_u32 s22, s20, s21")
        e("s_waitcnt lgkmcnt(0)")
        e("v_readfirstlane_b32 s20, v20")
        lfin = self.lab("att_fin"); lslow = self.lab("att_slow")
        e("s_cmp_lg_u32 s33, 0"); e(f"s_cbranch_scc1 {lfin}")
        e("s_cmp_lg_u32 s20, 0"); e(f"s_cbranch_scc1 {lslow}")
        self.a.label(lfin)
        e(f"buffer_store_dwordx4 v[{SB}:{SB+3}], v2, s[16:19], s22 offen {ST}")
        e(f"s_branch {end}")
        self.a.label(lslow)
        e("s_mov_b32 s33, 8")
        e("s_lshl_b32 s20, s7, 15"); e(f"v_add_u32 v{AK}, s20, v2")
        e("v_mov_b32 v20, 0xff800000"); e("v_mov_b32 v21, 0xff800000")
        e("s_mov_b32 s34, 0")
        sl = self.lab("att_sl")
        self.a.label(sl)
        rdK(0, 0); e("s_waitcnt lgkmcnt(0)")
        e(f"v_mfma_f32_32x32x16_bf16 v[{SA}:{SA+15}], v[{KF}:{KF+3}], v[{QA}:{QA+3}], 0")
        e(f"v_mfma_f32_32x32x16_bf16 v[{SB}:{SB+15}], v[{KF}:{KF+3}], v[{QB}:{QB+3}], 0")
        for r in range(0, 16, 2): e(f"v_max3_f32 v20, v20, v{SA+r}, v{SA+r+1}")
        for r in range(0, 16, 2): e(f"v_max3_f32 v21, v21, v{SB+r}, v{SB+r+1}")
        e(f"v_add_u32 v{AK}, 1024, v{AK}")
        e("s_add_u32 s34, s34, 1"); e("s_cmp_lt_u32 s34, 32"); e(f"s_cbranch_scc1 {sl}")
        for r in (20, 21):
            e(f"v_mov_b32 v22, v{r}"); e(f"v_permlane32_swap_b32 v{r}, v22"); e(f"v_max_f32 v{r}, v{r}, v22")
        e("s_lshl_b32 s20, s3, 9"); e(f"s_add_u32 s20, s20, {SCR}")
        e("v_lshlrev_b32 v6, 2, v1"); e("v_add_u32 v7, s20, v6")
        e("s_barrier")
        e("ds_write_b32 v7, v20"); e("ds_write_b32 v7, v21 offset:256"); e("s_waitcnt lgkmcnt(0)"); e("s_barrier")
        e("s_xor_b32 s20, s3, 4"); e("s_lshl_b32 s20, s20, 9"); e(f"s_add_u32 s20, s20, {SCR}"); e("v_add_u32 v7, s20, v6")
        e("ds_read_b32 v22, v7"); e("ds_read_b32 v23, v7 offset:256"); e("s_waitcnt lgkmcnt(0)")
        e("v_max_f32 v20, v20, v22"); e("v_max_f32 v21, v21, v23")
        for r in range(16):
            e(f"v_sub_f32 v{CA+r}, 0, v20"); e(f"v_sub_f32 v{CB+r}, 0, v21")
        e("s_barrier")
        e(f"s_branch {lrestart}")
        self.a.label(end)
        self.phase_end()
        self.signal(lambda: (e(f"s_lshl_b32 s46, s{QB_}, 7"), e(f"s_lshl_b32 s47, s{H}, 2"), e("s_add_u32 s46, s46, s47"), e(f"s_add_u32 s46, s46, {F2}")))
        self.stamp(10)

    def proj_wvoff(self):
        e = self.e
        e("v_lshlrev_b32 v2, 4, v1")
        e("v_lshrrev_b32 v3, 3, v1"); e("v_and_b32 v4, 7, v1"); e("v_bfe_u32 v5, v3, 1, 1"); e("v_lshlrev_b32 v5, 2, v5")
        e("v_xor_b32 v4, v4, v5"); e("v_lshlrev_b32 v3, 10, v3"); e("v_lshl_add_u32 v3, v4, 4, v3")
        e("s_lshl_b32 s20, s5, 7"); e("v_add_u32 v3, s20, v3")

    def proj_epi_addr(self):
        e = self.e
        e("v_lshrrev_b32 v14, 2, v1"); e("v_and_b32 v15, 3, v1")
        e("s_and_b32 s20, s3, 1"); e("s_lshl_b32 s20, s20, 5"); e("s_lshl_b32 s21, s4, 6"); e("s_add_u32 s20, s20, s21")
        e("s_lshr_b32 s21, s3, 2"); e("s_lshl_b32 s21, s21, 4"); e("s_add_u32 s36, s20, s21")
        e("v_add_u32 v16, s36, v14"); e("v_lshlrev_b32 v16, 10, v16"); e("v_lshl_add_u32 v16, v15, 4, v16")
        e("s_bfe_u32 s20, s3, 0x10001"); e("s_lshl_b32 s20, s20, 6"); e("s_lshl_b32 s21, s5, 7"); e("s_add_u32 s32, s20, s21")
        e("v_lshlrev_b32 v17, 5, v15"); e("s_lshl_b32 s33, s32, 1")

    def proj_gate_loads(self, gate_chunk):
        e = self.e
        for kq in range(4):
            e(f"s_add_u32 s20, s33, {kq*12288 + gate_chunk*2048}")
            for hh in range(2):
                e(f"buffer_load_dwordx4 v[{160+8*kq+4*hh}:{163+8*kq+4*hh}], v17, s[28:31], s20 offen offset:{16*hh}")

    def proj_addr(self, natural, xbase, wbase):
        e = self.e
        e("s_and_b32 s20, s3, 1"); e("s_lshl_b32 s20, s20, 13"); e("s_lshr_b32 s21, s3, 2"); e("s_lshl_b32 s22, s21, 12")
        e("s_add_u32 s20, s20, s22"); e(f"s_add_u32 s20, s20, {xbase}"); e("v_add_u32 v8, s20, v2")
        e("v_lshrrev_b32 v4, 4, v1"); e("v_and_b32 v5, 15, v1"); e("v_lshrrev_b32 v6, 2, v5"); e("v_and_b32 v7, 3, v5")
        e("v_lshrrev_b32 v10, 1, v4"); e("v_and_b32 v11, 1, v4")
        e(f"v_lshl_add_u32 v12, v10, {3 if natural else 2}, v6"); e("v_lshlrev_b32 v12, 7, v12")
        e("v_bfe_u32 v13, v6, 1, 1"); e("s_bfe_u32 s20, s3, 0x10001"); e("v_xor_b32 v13, s20, v13")
        e("v_lshl_add_u32 v12, v13, 6, v12"); e("v_lshl_add_u32 v12, v11, 5, v12"); e("v_lshl_add_u32 v12, v7, 3, v12")
        e("s_lshl_b32 s22, s21, 13"); e(f"s_add_u32 s22, s22, {wbase}"); e("v_add_u32 v9, s22, v12")

    def proj_chunk(self, ACC, xoff, wreg, woff, natural):
        e = self.e
        tstep = (4 if natural else 8) * 128
        for ks in range(4):
            b = 96 + 8*ks
            e(f"ds_read_b128 v[{b}:{b+3}], v8 offset:{xoff + ks*1024}")
            e(f"ds_read_b64_tr_b16 v[{b+4}:{b+5}], v{wreg} offset:{woff + ks*2048}")
            e(f"ds_read_b64_tr_b16 v[{b+6}:{b+7}], v{wreg} offset:{woff + ks*2048 + tstep}")
        for ks in range(4):
            b = 96 + 8*ks
            e(f"s_waitcnt lgkmcnt({3*(3-ks)})")
            e(f"v_mfma_f32_32x32x16_bf16 v[{ACC}:{ACC+15}], v[{b+4}:{b+7}], v[{b}:{b+3}], v[{ACC}:{ACC+15}]")

    def proj_epilogue(self, ACC, srd_out, flags, stats):
        e = self.e
        e("s_barrier")
        e("s_mul_i32 s20, s3, 4608")
        e("v_and_b32 v18, 31, v1"); e("v_mul_u32_u24 v18, 144, v18"); e("v_lshrrev_b32 v19, 5, v1")
        e("v_lshl_add_u32 v18, v19, 4, v18"); e("v_add_u32 v18, s20, v18")
        for g in range(4): e(f"ds_write_b128 v18, v[{ACC+4*g}:{ACC+4*g+3}] offset:{32*g}")
        e("s_waitcnt vmcnt(0)")
        for q in range(4):
            for kq in (1,):
                e(f"v_pk_add_f32 v[{160+2*q}:{161+2*q}], v[{160+2*q}:{161+2*q}], v[{168+2*q}:{169+2*q}]")
                e(f"v_pk_add_f32 v[{176+2*q}:{177+2*q}], v[{176+2*q}:{177+2*q}], v[{184+2*q}:{185+2*q}]")
        for q in range(4):
            e(f"v_pk_add_f32 v[{160+2*q}:{161+2*q}], v[{160+2*q}:{161+2*q}], v[{176+2*q}:{177+2*q}]")
        for q in range(4):
            e(f"v_cvt_pk_bf16_f32 v{168+q}, v{160+2*q}, v{161+2*q}")
        for q in range(4):
            e(f"v_lshlrev_b32 v{160+2*q}, 16, v{168+q}"); e(f"v_and_b32 v{161+2*q}, 0xffff0000, v{168+q}")
        e("s_and_b32 s20, s3, 3"); e("s_mul_i32 s20, s20, 4608"); e("s_lshr_b32 s21, s3, 2"); e(f"s_mul_i32 s21, s21, {16*144}")
        e("s_add_u32 s20, s20, s21")
        e("v_mul_u32_u24 v18, 144, v14"); e("v_lshl_add_u32 v18, v15, 5, v18"); e("v_add_u32 v18, s20, v18")
        e("s_waitcnt lgkmcnt(0)"); e("s_barrier")
        e("ds_read_b128 v[48:51], v18"); e("ds_read_b128 v[52:55], v18 offset:16")
        e(f"ds_read_b128 v[56:59], v18 offset:{4*4608}"); e(f"ds_read_b128 v[60:63], v18 offset:{4*4608+16}")
        e("s_waitcnt lgkmcnt(0)")
        for q in range(4):
            e(f"v_pk_add_f32 v[{48+2*q}:{49+2*q}], v[{48+2*q}:{49+2*q}], v[{56+2*q}:{57+2*q}]")
        for q in range(4):
            e(f"v_lshlrev_b32 v{56+2*q}, 16, v{32+q}"); e(f"v_and_b32 v{57+2*q}, 0xffff0000, v{32+q}")
        for q in range(4):
            e(f"v_pk_fma_f32 v[{56+2*q}:{57+2*q}], v[{160+2*q}:{161+2*q}], v[{48+2*q}:{49+2*q}], v[{56+2*q}:{57+2*q}]")
        for q in range(4):
            e(f"v_cvt_pk_bf16_f32 v{32+q}, v{56+2*q}, v{57+2*q}")
        e(f"buffer_store_dwordx4 v[32:35], v16, {sr(srd_out,4)}, s32 offen {flags}")
        if stats:
            e("v_pk_add_f32 v[48:49], v[56:57], v[58:59]"); e("v_pk_add_f32 v[50:51], v[60:61], v[62:63]")
            e("v_pk_add_f32 v[48:49], v[48:49], v[50:51]"); e("v_add_f32 v48, v48, v49")
            for m in ("quad_perm:[1,0,3,2]", "quad_perm:[2,3,0,1]"):
                e(f"v_add_f32_dpp v48, v48, v48 {m} row_mask:0xf bank_mask:0xf")
            e(f"v_mul_f32 v48, {fl(1.0/32)}, v48")
            e("v_sub_f32 v50, 0, v48"); e("v_mov_b32 v51, v50")
            for q in range(4): e(f"v_pk_add_f32 v[{56+2*q}:{57+2*q}], v[{56+2*q}:{57+2*q}], v[50:51]")
            e("v_pk_mul_f32 v[52:53], v[56:57], v[56:57]")
            for q in range(1, 4): e(f"v_pk_fma_f32 v[52:53], v[{56+2*q}:{57+2*q}], v[{56+2*q}:{57+2*q}], v[52:53]")
            e("v_add_f32 v49, v52, v53")
            for m in ("quad_perm:[1,0,3,2]", "quad_perm:[2,3,0,1]"):
                e(f"v_add_f32_dpp v49, v49, v49 {m} row_mask:0xf bank_mask:0xf")
            self.srd(40, P_WS, WS_STX, 2048*128)
            e("v_add_u32 v18, s36, v14"); e("v_lshlrev_b32 v18, 7, v18")
            e("s_bfe_u32 s20, s3, 0x10001"); e("s_lshl_b32 s21, s5, 1"); e("s_add_u32 s20, s20, s21"); e("s_lshl_b32 s20, s20, 3")
            e("v_cmp_eq_u32 vcc, 0, v15"); e("s_and_saveexec_b64 s[44:45], vcc")
            e(f"buffer_store_dwordx2 v[48:49], v18, s[40:43], s20 offen {ST}")
            e("s_mov_b64 exec, s[44:45]")

    def p3(self):
        e = self.e
        self.srd(8, P_WS, WS_O, 2*MB); self.srd(12, P_WO, 0, 512*512*2)
        self.srd(16, P_X, 0, 2*MB); self.srd(24, P_WS, WS_X1, 2*MB); self.srd(28, P_WS, WS_MOD, 49152)
        self.proj_wvoff()
        self.proj_addr(False, 65536, 0)
        self.proj_epi_addr()
        def pre3():
            for m in range(10):
                sk = None
                if m == 9:
                    sk = self.lab("p3w"); e("s_cmp_lg_u32 s3, 0"); e(f"s_cbranch_scc1 {sk}")
                e(f"s_add_u32 s21, s3, {7*m}"); e("s_lshl_b32 s20, s21, 13"); e("s_lshl_b32 s21, s21, 10")
                self.dma(3, 12, "s20", "s_mov_b32 m0, s21")
                if sk: self.a.label(sk)
        def cO():
            e("s_lshr_b32 s46, s4, 2"); e("s_lshl_b32 s46, s46, 7"); e(f"s_add_u32 s46, s46, {F2}"); e("v_lshlrev_b32 v251, 2, v1")
        def cM(k):
            def f():
                e("s_and_b32 s46, s2, 7"); e("s_lshl_b32 s46, s46, 10"); e(f"s_add_u32 s46, s46, {F0 + 256*k}"); e("v_lshlrev_b32 v251, 2, v1")
            return f
        self.wait_flags([(cM(1), (1 << 64) - 1), (cM(2), (1 << 64) - 1), (cO, 0xffffffff)], pre=pre3, w7_after=False)
        self.stamp(11)
        e(f"s_mul_i32 s6, s4, {2*32*1024}"); e("s_lshl_b32 s21, s3, 10"); e("s_add_u32 s6, s6, s21")
        for c in range(4):
            for tt in range(2):
                e(f"s_add_u32 s20, s6, {tt*32*1024 + c*8*1024}")
                self.dma(2, 8, "s20", f"s_add_u32 m0, s21, {65536 + c*16384 + tt*8192}")
            if c < 3: e("s_barrier")
        e("buffer_load_dwordx4 v[32:35], v16, s[16:19], s32 offen")
        self.proj_gate_loads(2)
        ACC = 64
        for r in range(16): e(f"v_mov_b32 v{ACC+r}, 0")
        for c in range(4):
            e(f"s_waitcnt vmcnt({2*(3-c) + 9})"); e("s_barrier")
            if c == 0: self.stamp(35)
            self.proj_chunk(ACC, c*16384, 9, c*16384, False)
        self.stamp(36)
        self.proj_epilogue(ACC, 24, ST, True)
        self.stamp(37)
        self.phase_end()
        self.signal(lambda: (e("s_lshl_b32 s46, s4, 7"), e("s_lshl_b32 s47, s5, 2"), e("s_add_u32 s46, s46, s47"), e(f"s_add_u32 s46, s46, {F3}")))
        self.stamp(12)

    def p4(self):
        e = self.e
        RING = 65536; SL = 14336; D = 6; MODL = RING + D*SL
        PART = 155648
        Z1L = 135168
        self.srd(8, P_WS, WS_X1, 2*MB)
        self.srd(12, P_WS, WS_MOD, 49152)
        self.srd(16, P_WIN, 0, 512*1792*2)
        self.srd(28, P_WS, WS_Z2, 56*64*1024)
        self.srd(36, P_WS, WS_ST, 32*8*64*16)
        for m in range(2):
            d = 192 + m
            e(f"s_lshl_b32 s20, s3, 6"); e(f"s_add_u32 s20, s20, {512*m}")
            e(f"v_add_u32 v200, s20, v1")
            e(f"v_mul_u32_u24 v201, 4682, v200"); e(f"v_lshrrev_b32 v201, 16, v201")
            e(f"v_mul_u32_u24 v202, 14, v201"); e(f"v_sub_u32 v202, v200, v202")
            e(f"v_lshrrev_b32 v203, 1, v202")
            e(f"v_xor_b32 v204, 4, v203"); e(f"v_cmp_eq_u32 vcc, 3, v203"); e(f"v_cndmask_b32 v204, v204, v203, vcc")
            e(f"v_bfe_u32 v205, v201, 3, 1"); e(f"v_cmp_eq_u32 vcc, 1, v205"); e(f"v_cndmask_b32 v203, v203, v204, vcc")
            e(f"v_and_b32 v202, 1, v202"); e(f"v_lshl_or_b32 v202, v203, 1, v202")
            e(f"v_mul_u32_u24 v201, 3584, v201"); e(f"v_lshl_add_u32 v{d}, v202, 4, v201")
        e("s_lshl_b32 s7, s3, 10"); e(f"s_add_u32 s7, s7, {RING}")
        e("s_cmp_ge_u32 s3, 6"); e("s_cselect_b64 vcc, -1, 0"); e("v_cndmask_b32 v194, v193, v192, vcc")
        e("s_cselect_b32 s35, 0, 8192"); e("s_add_u32 s35, s35, s7")
        e("s_mul_i32 s33, s5, 224"); e("s_add_u32 s34, s33, 1792")
        def src(stage):
            e(f"s_add_u32 s23, s{34 if stage < 8 else 33}, {(stage % 8)*64*3584}")
        def issue(stage, cnt):
            src(stage)
            for m in range(cnt):
                self.dma(192+m, 16, "s23", f"s_add_u32 m0, s7, {(stage % D)*SL + m*8192}")
        def pre4():
            self.mod_issue(12, 3)
            for st in range(D-1):
                src(st)
                self.dma(192, 16, "s23", f"s_add_u32 m0, s7, {st*SL}")
                self.dma(194, 16, "s23", f"s_add_u32 m0, s35, {st*SL}")
            e(f"s_waitcnt vmcnt({2*(D-1)})")
            self.mod_finish(MODL)
        e("v_lshrrev_b32 v3, 4, v1"); e("v_and_b32 v4, 15, v1"); e("v_lshrrev_b32 v5, 2, v4"); e("v_and_b32 v6, 3, v4")
        e("v_lshl_add_u32 v7, v3, 3, v5"); e("v_mul_u32_u24 v7, 224, v7"); e("v_lshl_add_u32 v7, v6, 3, v7"); e(f"v_add_u32 v7, {RING}, v7")
        e("v_and_b32 v8, 1, v3"); e("v_cmp_eq_u32 vcc, 1, v8")
        e("s_lshr_b32 s20, s3, 1")
        for c in range(2):
            e(f"s_lshl_b32 s21, s20, 1"); e(f"s_add_u32 s21, s21, {c}")
            e("s_xor_b32 s22, s21, 4"); e("s_cmp_eq_u32 s21, 3"); e("s_cselect_b32 s22, s21, s22")
            e("v_mov_b32 v9, s21"); e("v_mov_b32 v10, s22"); e("v_cndmask_b32 v9, v9, v10, vcc")
            e(f"v_lshl_add_u32 v{200+c}, v9, 5, v7"); e(f"v_add_u32 v{202+c}, {4*SL}, v{200+c}")
        e("s_and_b32 s21, s3, 1"); e("s_lshl_b32 s21, s21, 5"); e("v_add_u32 v9, s21, v4"); e("v_lshlrev_b32 v9, 10, v9")
        for m in range(4):
            e(f"v_add_u32 v10, {4*m}, v3"); e(f"v_xor_b32 v10, v10, v4"); e(f"v_lshl_add_u32 v{208+m}, v10, 4, v9")
        def cX():
            e("s_lshl_b32 s46, s4, 7"); e(f"s_add_u32 s46, s46, {F3}"); e("v_lshlrev_b32 v251, 2, v1")
        self.wait_flags([(cX, 0xff)], pre=lambda: (pre4(), e("s_waitcnt lgkmcnt(0)")))
        self.stamp(13)
        e("s_lshl_b32 s6, s4, 16")
        self.ln_loads(8, 6)
        self.srd(40, P_WS, WS_STX, 2048*128)
        e("s_lshl_b32 s20, s4, 6"); e("s_lshl_b32 s21, s3, 3"); e("s_add_u32 s20, s20, s21"); e("s_lshl_b32 s20, s20, 7")
        e("v_lshlrev_b32 v6, 7, v3"); e("v_lshl_add_u32 v6, v4, 3, v6")
        e("buffer_load_dwordx2 v[8:9], v6, s[40:43], s20 offen")
        e("buffer_load_dwordx2 v[10:11], v6, s[40:43], s20 offen offset:512")
        e("s_waitcnt vmcnt(0)")
        self.stamp(14)
        self.ln2_prepare()
        e("s_barrier")
        self.ln_finish(MODL)
        ACCA, ACCB = 212, 228
        for r in range(32): e(f"v_mov_b32 v{ACCA+r}, 0")
        e("s_waitcnt lgkmcnt(0)"); e("s_barrier")
        self.stamp(15)
        NS = 16
        c0 = -2.0*math.sqrt(2.0/math.pi)*LOG2E
        c1 = c0*0.044715
        def gelu(accs):
            e(f"s_mov_b32 s20, {fl(c1)}"); e(f"v_mov_b32 v20, {fl(c0)}")
            for i0 in range(0, len(accs), 4):
                grp = accs[i0:i0+4]
                for k, z in enumerate(grp): e(f"v_mul_f32 v{24+k}, v{z}, v{z}")
                for k, z in enumerate(grp): e(f"v_fma_f32 v{24+k}, v{24+k}, s20, v20")
                for k, z in enumerate(grp): e(f"v_mul_f32 v{24+k}, v{24+k}, v{z}")
                for k, z in enumerate(grp): e(f"v_exp_f32 v{24+k}, v{24+k}")
                for k, z in enumerate(grp): e(f"v_add_f32 v{24+k}, 1.0, v{24+k}")
                for k, z in enumerate(grp): e(f"v_rcp_f32 v{24+k}, v{24+k}")
                for k, z in enumerate(grp): e(f"v_mul_f32 v{z}, v{z}, v{24+k}")
        v1l = self.lab("win_v1"); join = self.lab("win_join")
        e("s_cmp_ge_u32 s3, 6"); e(f"s_cbranch_scc1 {v1l}")
        for var in range(2):
            nt = 2 if var == 0 else 1
            cnt = 2 if var == 0 else 1
            if var == 1: self.a.label(v1l)
            def reads(stage, ks):
                n = 2*(stage % 8) + ks; buf = ks; slot = stage % D
                out = []
                if stage < 8:
                    for rt in range(2):
                        b = 64 + 8*n + 4*rt
                        out.append(f"ds_read_b128 v[{b}:{b+3}], v{208 + (n & 3)} offset:{rt*16384 + (n >> 2)*256}")
                for c in range(nt):
                    b = 32 + 16*(stage % 2) + 8*ks + 4*c
                    areg, off = (200 + c, slot*SL) if slot < 4 else (202 + c, (slot-4)*SL)
                    for t in range(2):
                        out.append(f"ds_read_b64_tr_b16 v[{b+2*t}:{b+2*t+1}], v{areg} offset:{off + (32*ks + 4*t)*224}")
                return out
            def mfmas(stage, ks):
                buf = ks; ACC = ACCA if stage < 8 else ACCB
                n = 2*(stage % 8) + ks
                out = []
                for c in range(nt):
                    for rt in range(2):
                        acc = ACC + 4*(rt*2 + c)
                        x = 64 + 8*n + 4*rt; w = 32 + 16*(stage % 2) + 8*ks + 4*c
                        A, B = (x, w) if stage < 8 else (w, x)
                        out.append(f"v_mfma_f32_16x16x32_bf16 v[{acc}:{acc+3}], v[{A}:{A+3}], v[{B}:{B+3}], v[{acc}:{acc+3}]")
                return out
            def inter(ms, rs):
                ri = 0
                for m in ms:
                    e(m)
                    for _ in range(2):
                        if ri < len(rs): e(rs[ri]); ri += 1
                for r in rs[ri:]: e(r)
            for r in reads(0, 0): e(r)
            for r in reads(0, 1): e(r)
            for n in range(NS):
                if n + 1 < NS:
                    if n + 1 >= D - 1:
                        allowed = cnt * len([s_ for s_ in range(max(n+2, D-1), min(n+D-1, NS))])
                        e(f"s_waitcnt vmcnt({allowed})")
                    e("s_barrier")
                if n == 8 and var == 0:
                    nx = self.lab("win_pub")
                    e("s_cmp_lg_u32 s3, 0"); e(f"s_cbranch_scc1 {nx}")
                    e("v_lshlrev_b32 v5, 3, v1"); e(f"v_add_u32 v5, {PART}, v5")
                    for q in range(4): e(f"ds_read_b64 v[{8+2*q}:{9+2*q}], v5 offset:{512*q}")
                    e("s_waitcnt lgkmcnt(0)")
                    e("v_pk_add_f32 v[8:9], v[8:9], v[10:11]"); e("v_pk_add_f32 v[12:13], v[12:13], v[14:15]")
                    e("v_pk_add_f32 v[8:9], v[8:9], v[12:13]")
                    e(f"v_mov_b32 v10, s{S_NONCE}"); e(f"v_mov_b32 v11, s{S_NONCE}")
                    e("v_lshlrev_b32 v6, 4, v1")
                    e("s_lshl_b32 s20, s4, 13"); e("s_lshl_b32 s21, s5, 10"); e("s_add_u32 s21, s21, s20")
                    e(f"buffer_store_dwordx4 v[8:11], v6, s[36:39], s21 offen {ST}")
                    self.a.label(nx)
                full = (n == 8)
                r0 = reads(n + 1, 0) if n + 1 < NS else []
                r1 = reads(n + 1, 1) if n + 1 < NS else []
                e(f"s_waitcnt lgkmcnt({0 if full else len(reads(n, 1))})")
                inter(mfmas(n, 0), r0)
                e(f"s_waitcnt lgkmcnt({len(r0)})")
                inter(mfmas(n, 1), r1)
                st = n + D - 1
                if st < NS: issue(st, cnt)
                if n == 7:
                    self.stamp(31)
                    accs = [ACCA + 4*(rt*2 + c) + r for c in range(nt) for rt in range(2) for r in range(4)]
                    gelu(accs)
                    e("v_lshrrev_b32 v3, 4, v1"); e("v_and_b32 v4, 15, v1")
                    regs = []
                    for rt in range(2):
                        for r in range(4):
                            sreg = (8, 10, 12, 14, 16, 18, 28, 30)[rt*4 + r]
                            a0 = ACCA + 4*(rt*2) + r
                            e(f"v_mov_b32 v{sreg}, v{a0}"); e(f"v_mul_f32 v{sreg+1}, v{a0}, v{a0}")
                            for c in range(1, nt):
                                a_ = ACCA + 4*(rt*2 + c) + r
                                e(f"v_add_f32 v{sreg}, v{sreg}, v{a_}"); e(f"v_fmac_f32 v{sreg+1}, v{a_}, v{a_}")
                            regs += [sreg, sreg+1]
                    self.dpp_reduce16(regs)
                    e("s_and_b32 s20, s3, 1"); e("s_lshl_b32 s20, s20, 8"); e("s_lshr_b32 s21, s3, 1"); e("s_lshl_b32 s21, s21, 9")
                    e("s_add_u32 s20, s20, s21"); e(f"s_add_u32 s20, s20, {PART}")
                    e("v_lshlrev_b32 v5, 5, v3"); e("v_add_u32 v5, s20, v5")
                    e("v_cmp_eq_u32 vcc, 0, v4"); e("s_and_saveexec_b64 s[44:45], vcc")
                    for rt in range(2):
                        for r in range(4):
                            sreg = (8, 10, 12, 14, 16, 18, 28, 30)[rt*4 + r]
                            e(f"ds_write_b64 v5, v[{sreg}:{sreg+1}] offset:{rt*128 + r*8}")
                    e("s_mov_b64 exec, s[44:45]")
                    e("s_waitcnt lgkmcnt(0)") if False else None
                    self.stamp(33)
                if n == 7:
                    e("s_waitcnt lgkmcnt(0)")
            self.stamp(32)
            accs = [ACCB + 4*(rt*2 + c) + r for c in range(nt) for rt in range(2) for r in range(4)]
            gelu(accs)
            e("s_and_b32 s22, s3, 1"); e(f"s_mul_i32 s22, s22, {2*7*512}"); e("s_lshr_b32 s21, s3, 1"); e("s_lshl_b32 s21, s21, 10")
            e("s_add_u32 s22, s22, s21"); e(f"s_add_u32 s22, s22, {Z1L}")
            e("v_lshlrev_b32 v7, 3, v1"); e("v_add_u32 v7, s22, v7")
            for c in range(nt):
                for rt in range(2):
                    acc = ACCB + 4*(rt*2 + c); pk = 32 + 2*(rt + 2*c)
                    e(f"v_cvt_pk_bf16_f32 v{pk}, v{acc}, v{acc+1}"); e(f"v_cvt_pk_bf16_f32 v{pk+1}, v{acc+2}, v{acc+3}")
                    e(f"ds_write_b64 v7, v[{pk}:{pk+1}] offset:{rt*7*512 + c*512}")
            if var == 0:
                nx = self.lab("win_nx")
                e("s_cmp_lg_u32 s3, 0"); e(f"s_cbranch_scc1 {nx}")
                e("v_lshlrev_b32 v5, 3, v1"); e(f"v_add_u32 v5, {PART}, v5")
                e("v_lshlrev_b32 v6, 4, v1"); e("s_lshl_b32 s20, s4, 13")
                e("s_mov_b32 s47, 0")
                lp = self.lab("stp"); dn = self.lab("std")
                self.a.label(lp)
                for jj in range(8):
                    e(f"s_add_u32 s21, s20, {jj*1024}")
                    e(f"buffer_load_dwordx4 v[{96+4*jj}:{99+4*jj}], v6, s[36:39], s21 offen {ST}")
                e("s_add_u32 s47, s47, 1"); e(f"s_cmp_gt_u32 s47, {SPIN_CAP}"); e(f"s_cbranch_scc1 {dn}")
                e("s_waitcnt vmcnt(0)")
                e("s_mov_b64 s[42:43], -1")
                for jj in range(8):
                    e(f"v_cmp_eq_u32 vcc, s{S_NONCE}, v{98+4*jj}"); e("s_and_b64 s[42:43], s[42:43], vcc")
                    e(f"v_cmp_eq_u32 vcc, s{S_NONCE}, v{99+4*jj}"); e("s_and_b64 s[42:43], s[42:43], vcc")
                e("s_cmp_eq_u64 s[42:43], -1")
                if not Gen.NOHOP: e(f"s_cbranch_scc0 {lp}")
                self.a.label(dn)
                self._where = "stat granules"; self.diag(47, 98)
                e("s_waitcnt vmcnt(0)")
                for jj in range(1, 8):
                    e(f"v_add_f32 v96, v96, v{96+4*jj}"); e(f"v_add_f32 v97, v97, v{97+4*jj}")
                e(f"v_mul_f32 v96, {fl(1.0/896)}, v96"); e(f"v_mul_f32 v97, {fl(1.0/896)}, v97")
                e("v_fma_f32 v97, -v96, v96, v97"); e("v_max_f32 v97, 0, v97"); e(f"v_add_f32 v97, {fl(1e-5)}, v97")
                e("v_rsq_f32 v99, v97"); e("v_mul_f32 v98, v96, v99"); e("v_sub_f32 v98, 0, v98")
                e(f"ds_write_b64 v5, v[98:99] offset:2048")
                self.a.label(nx)
            e("s_waitcnt lgkmcnt(0)"); e("s_barrier")
            self.stamp(34)
            e("v_lshrrev_b32 v3, 4, v1"); e("v_and_b32 v4, 15, v1")
            e("s_and_b32 s20, s3, 1"); e("s_lshl_b32 s20, s20, 8"); e(f"s_add_u32 s20, s20, {PART + 2048}")
            e("v_lshlrev_b32 v5, 5, v3"); e("v_add_u32 v5, s20, v5")
            for rt in range(2):
                e(f"ds_read_b128 v[{64+8*rt}:{67+8*rt}], v5 offset:{rt*128}")
                e(f"ds_read_b128 v[{68+8*rt}:{71+8*rt}], v5 offset:{rt*128+16}")
            e("v_and_b32 v6, 1, v3"); e("v_lshlrev_b32 v5, 9, v6"); e("v_lshrrev_b32 v6, 1, v3"); e("v_lshl_add_u32 v5, v6, 8, v5")
            e("v_lshl_add_u32 v5, v4, 4, v5")
            e("s_and_b32 s20, s3, 1"); e("s_lshl_b32 s21, s4, 1"); e("s_add_u32 s20, s20, s21"); e("s_lshl_b32 s20, s20, 10")
            e("s_mul_i32 s21, s5, 7"); e("s_lshr_b32 s22, s3, 1"); e("s_lshl_b32 s22, s22, 1"); e("s_add_u32 s21, s21, s22")
            e("s_lshl_b32 s21, s21, 16"); e("s_add_u32 s20, s20, s21")
            e("s_waitcnt lgkmcnt(0)")
            for c in range(nt):
                e(f"s_add_u32 s21, s20, {c*65536}")
                pk = 32 + 4*c
                for rt in range(2):
                    acc = ACCA + 4*(rt*2 + c)
                    for r in range(4):
                        e(f"v_fma_f32 v{acc+r}, v{acc+r}, v{64+8*rt+2*r+1}, v{64+8*rt+2*r}")
                    e(f"v_cvt_pk_bf16_f32 v{pk+2*rt}, v{acc}, v{acc+1}"); e(f"v_cvt_pk_bf16_f32 v{pk+2*rt+1}, v{acc+2}, v{acc+3}")
                e(f"v_permlane16_swap_b32 v{pk}, v{pk+2}"); e(f"v_permlane16_swap_b32 v{pk+1}, v{pk+3}")
                e(f"buffer_store_dwordx4 v[{pk}:{pk+3}], v5, s[28:31], s21 offen {ST}")
            if var == 0: e(f"s_branch {join}")
        self.a.label(join)
        self.phase_end()
        self.signal(lambda: (e("s_lshl_b32 s46, s5, 7"), e("s_lshl_b32 s47, s4, 2"), e("s_add_u32 s46, s46, s47"), e(f"s_add_u32 s46, s46, {F4}")))
        self.stamp(16)

    def p5(self):
        e = self.e
        end = self.lab("sp_end")
        Z1L = 135168
        self.srd(8, P_WSP, 0, 2048*2048*2)
        self.srd(12, P_WS, WS_Z2, 56*64*1024)
        self.srd(24, P_WS, WS_Y, 64*56*1024)
        self.srd(28, P_BSP, 0, 4096)
        SL = 22528; D = self.SPD; NST = 32
        e(f"s_mov_b32 s44, {(-(D-1)*SL) & 0xffffffff}"); e(f"s_mov_b32 s45, {SL}")
        e("v_lshlrev_b32 v2, 4, v1"); e("v_lshrrev_b32 v3, 4, v1"); e("v_and_b32 v4, 15, v1")
        def cZ():
            e("s_lshl_b32 s46, s5, 7"); e(f"s_add_u32 s46, s46, {F4}"); e("v_lshlrev_b32 v251, 2, v1")
        lp = self.lab("sp_prod")
        e("s_cmp_ge_u32 s3, 4"); e(f"s_cbranch_scc1 {lp}")
        e("s_and_b32 s20, s3, 1"); e("s_lshl_b32 s21, s4, 2"); e("s_lshl_b32 s22, s20, 1"); e("s_add_u32 s21, s21, s22")
        e("v_lshlrev_b32 v5, 1, v4"); e("s_lshl_b32 s22, s21, 5")
        e("buffer_load_ushort v20, v5, s[28:31], s22 offen"); e("buffer_load_ushort v21, v5, s[28:31], s22 offen offset:32")
        e("s_bfe_u32 s23, s3, 0x10001"); e("s_lshl_b32 s23, s23, 2")
        e("v_lshrrev_b32 v7, 1, v3"); e("v_lshlrev_b32 v7, 9, v7"); e("v_lshl_add_u32 v7, v4, 4, v7")
        e("v_and_b32 v8, 1, v3"); e("v_lshl_add_u32 v7, v8, 3, v7")
        e("s_lshl_b32 s21, s4, 1"); e("s_add_u32 s21, s21, s20"); e("s_mul_i32 s21, s21, 56")
        e("s_mul_i32 s6, s5, 7"); e("s_add_u32 s21, s21, s6"); e("s_add_u32 s21, s21, s23"); e("s_lshl_b32 s35, s21, 10")
        e(f"s_mul_i32 s6, s20, {2*7*512}"); e("s_lshl_b32 s21, s23, 9"); e("s_add_u32 s6, s6, s21"); e(f"s_add_u32 s6, s6, {Z1L}")
        e("v_lshlrev_b32 v9, 3, v1"); e("v_add_u32 v9, s6, v9")
        e("s_and_b32 s20, s3, 1"); e("s_lshl_b32 s20, s20, 12"); e("v_lshlrev_b32 v5, 7, v4"); e("v_add_u32 v5, s20, v5")
        e("v_lshrrev_b32 v8, 1, v4")
        for ks in range(2):
            e(f"v_add_u32 v6, {4*ks}, v3"); e(f"v_xor_b32 v6, v6, v8"); e(f"v_lshl_add_u32 v{200+ks}, v6, 4, v5")
        e("s_bfe_u32 s20, s3, 0x10001"); e("s_lshl_b32 s20, s20, 13"); e("s_add_u32 s20, s20, 8192"); e("v_add_u32 v202, s20, v2")
        ZR = 176
        for tt in range(2):
            for f in range(4):
                b = ZR + 2*(tt*4 + f)
                e(f"ds_read_b64 v[{b}:{b+1}], v9 offset:{tt*7*512 + f*512}")
        e("s_waitcnt lgkmcnt(0)")
        ACC = 128
        for r in range(32): e(f"v_mov_b32 v{ACC+r}, 0")
        e("s_barrier")
        LOOK = self.ZLOOK
        if self.ZTOUCH:
            e("s_and_b32 s20, s4, 7"); e("s_mul_i32 s20, s20, 14"); e("v_add_u32 v196, s20, v1")
            e("v_lshrrev_b32 v197, 4, v196"); e("v_lshlrev_b32 v197, 16, v197")
            e("v_bfe_u32 v198, v196, 3, 1"); e("v_lshl_add_u32 v197, v198, 10, v197")
            e("v_and_b32 v198, 7, v196"); e("v_lshl_add_u32 v196, v198, 7, v197")
            e("s_mul_i32 s43, s5, 0x70000"); e(f"s_add_u32 s43, s43, {(D-1)*2048}")
            e("s_cmp_eq_u32 s3, 0"); e("s_cselect_b32 s42, 0x3fff, 0")
            tk = self.lab("sp_tk")
            e("s_cmp_lg_u32 s3, 0"); e(f"s_cbranch_scc1 {tk}")
            e("s_mov_b64 exec, 0x3fff")
            for i in range(LOOK - (D-1)):
                e(f"s_add_u32 s20, s43, {i*2048}")
                e("buffer_load_dword v199, v196, s[12:15], s20 offen")
            e("s_mov_b64 exec, -1")
            self.a.label(tk)
            e(f"s_add_u32 s43, s43, {(LOOK-(D-1))*2048}")
        l3 = self.lab("sp_3"); lepi = self.lab("sp_epi")
        e("s_barrier")
        self.stamp(18)
        e("s_bitcmp1_b32 s3, 1"); e(f"s_cbranch_scc1 {l3}")
        for jj in range(2):
            nf = 4 if jj == 0 else 3
            if jj == 1: self.a.label(l3)
            def reads(ks, buf, nxt):
                b = 32 + 24*buf; ab = 203 if nxt else 200
                for tt in range(2): yield f"ds_read_b128 v[{b+4*tt}:{b+4*tt+3}], v{ab+ks} offset:{tt*2048}"
                for f in range(nf): yield f"ds_read_b128 v[{b+8+4*f}:{b+8+4*f+3}], v{ab+2} offset:{f*2048 + ks*1024}"
            def mf(buf):
                b = 32 + 24*buf
                for f in range(nf):
                    for tt in range(2):
                        acc = ACC + 4*(tt*4 + f)
                        yield f"v_mfma_f32_16x16x32_bf16 v[{acc}:{acc+3}], v[{b+8+4*f}:{b+8+4*f+3}], v[{b+4*tt}:{b+4*tt+3}], v[{acc}:{acc+3}]"
            def interleave(ms, rs):
                ms = list(ms); rs = list(rs)
                if self.X_NOMFMA: ms = []
                if self.X_NOREAD: rs = []
                ri = 0
                for i, m in enumerate(ms):
                    e(m)
                    for _ in range(self.RPG):
                        if ri < len(rs): e(rs[ri]); ri += 1
                for r in rs[ri:]: e(r)
            for r in reads(0, 0, False): e(r)
            e("s_mov_b32 s36, 0"); e(f"s_mov_b32 s37, {SL}"); e("s_mov_b32 s38, 1")
            loop = self.lab("sp_loop")
            self.a.label(loop)
            e("s_barrier")
            for k in range(3): e(f"v_add_u32 v{203+k}, s37, v{200+k}")
            if self.ZTOUCH and jj == 0:
                tk2 = self.lab("sp_tk2")
                e("s_cmp_lg_u32 s3, 0"); e(f"s_cbranch_scc1 {tk2}")
                e(f"s_cmp_ge_u32 s36, {NST} - {LOOK}".replace(f"{NST} - {LOOK}", str(NST - LOOK))); e(f"s_cbranch_scc1 {tk2}")
                e("s_mov_b64 exec, 0x3fff")
                e("buffer_load_dword v199, v196, s[12:15], s43 offen")
                e("s_mov_b64 exec, -1")
                e("s_add_u32 s43, s43, 2048")
                self.a.label(tk2)
            e(f"s_waitcnt lgkmcnt(0)")
            interleave(mf(0), reads(1, 1, False))
            e(f"s_waitcnt lgkmcnt(0)")
            interleave(mf(1), reads(0, 0, True))
            for k in range(3): e(f"v_mov_b32 v{200+k}, v{203+k}")
            e("s_add_u32 s38, s38, 1"); e(f"s_cmp_eq_u32 s38, {D}")
            e(f"s_cselect_b32 s37, s44, s45"); e(f"s_cselect_b32 s38, 0, s38")
            e("s_add_u32 s36, s36, 1"); e(f"s_cmp_lt_u32 s36, {NST}"); e(f"s_cbranch_scc1 {loop}")
            if jj == 0: e(f"s_branch {lepi}")
        self.a.label(lepi)
        self.stamp(19)
        e("s_waitcnt vmcnt(0) lgkmcnt(0)")
        e("v_lshlrev_b32 v20, 16, v20"); e("v_lshlrev_b32 v21, 16, v21")
        for f in range(4):
            if f == 3:
                e("s_bitcmp1_b32 s3, 1"); e(f"s_cbranch_scc1 {end}")
            pk = 32 + 4*f
            for tt in range(2):
                acc = ACC + 4*(tt*4 + f); b = ZR + 2*(tt*4 + f)
                for q in range(2):
                    e(f"v_lshlrev_b32 v22, 16, v{b+q}"); e(f"v_and_b32 v23, 0xffff0000, v{b+q}")
                    e(f"v_add_f32 v24, v{acc+2*q}, v{20+tt}"); e(f"v_add_f32 v25, v{acc+2*q+1}, v{20+tt}")
                    e(f"v_mul_f32 v22, v22, v24"); e(f"v_mul_f32 v23, v23, v25")
                    e(f"v_cvt_pk_bf16_f32 v{pk+2*tt+q}, v22, v23")
            e(f"v_permlane16_swap_b32 v{pk}, v{pk+2}"); e(f"v_permlane16_swap_b32 v{pk+1}, v{pk+3}")
            e(f"buffer_store_dwordx4 v[{pk}:{pk+3}], v2, s[24:27], s35 offen offset:{f*1024} {ST}")
        e(f"s_branch {end}")
        self.a.label(lp)
        e("s_and_b32 s7, s3, 3")
        e("v_lshrrev_b32 v5, 3, v1"); e("v_and_b32 v6, 7, v1")
        for m in range(2):
            e(f"s_lshl_b32 s20, s7, 3"); e(f"s_add_u32 s20, s20, {32*m}")
            e(f"v_add_u32 v8, s20, v5"); e(f"v_bfe_u32 v9, v8, 1, 3"); e(f"v_xor_b32 v9, v9, v6")
            e(f"v_lshlrev_b32 v8, 12, v8"); e(f"v_lshl_add_u32 v{192+m}, v9, 4, v8")
        e("s_lshl_b32 s6, s4, 18")
        e("s_mul_i32 s32, s5, 0x70000"); e("s_lshr_b32 s20, s7, 1"); e("s_lshl_b32 s20, s20, 16"); e("s_add_u32 s32, s32, s20")
        e("s_and_b32 s20, s7, 1"); e("s_lshl_b32 s20, s20, 10"); e("s_add_u32 s32, s32, s20")
        e("s_lshl_b32 s33, s7, 10")
        e("s_mov_b32 s34, s33")
        def pre5():
            for st in range(D-1):
                for m in range(2): self.dma(192+m, 8, "s6", f"s_add_u32 m0, s34, {st*SL + m*4096}")
                e("s_add_u32 s6, s6, 128")
        self.wait_flags([(cZ, 0xffffffff)], pre=pre5)
        self.stamp(17)
        l5 = self.lab("sp_p5")
        e("s_cmp_ge_u32 s7, 2"); e(f"s_cbranch_scc1 {l5}")
        for var in range(2):
            nz = 4 if var == 0 else 3
            cnt = 2 + nz
            if var == 1: self.a.label(l5)
            def issue_z():
                for m in range(nz):
                    e(f"s_add_u32 s23, s32, {2*m*65536}")
                    self.dma(2, 12, "s23", f"s_add_u32 m0, s34, {8192 + m*4096}")
                e("s_add_u32 s32, s32, 2048")
            def issue():
                if self.X_NODMA: return
                for m in range(2): self.dma(192+m, 8, "s6", f"s_add_u32 m0, s34, {m*4096}")
                e("s_add_u32 s6, s6, 128")
                issue_z()
            for st in range(D-1):
                issue_z(); e(f"s_add_u32 s34, s34, {SL}")
            e(f"s_waitcnt vmcnt({nz*(D-2)})"); e("s_barrier")
            e("s_mov_b32 s36, 0"); e(f"s_mov_b32 s38, {D-1}")
            loop = self.lab("sp_ploop"); lni = self.lab("sp_ni"); lw = self.lab("sp_w"); le = self.lab("sp_e"); lb = self.lab("sp_b")
            self.a.label(loop)
            e(f"s_cmp_ge_u32 s36, {NST-D+2}"); e(f"s_cbranch_scc1 {lw}")
            e(f"s_cmp_lt_u32 s36, {D-3}"); e(f"s_cbranch_scc1 {le}")
            e(f"s_waitcnt vmcnt({cnt*(D-3)})"); e(f"s_branch {lb}")
            self.a.label(le)
            e(f"s_waitcnt vmcnt({nz*(D-3)})")
            self.a.label(lb)
            e("s_barrier")
            e(f"s_cmp_ge_u32 s36, {NST-D+1}"); e(f"s_cbranch_scc1 {lni}")
            issue()
            e("s_add_u32 s38, s38, 1"); e(f"s_cmp_eq_u32 s38, {D}"); e(f"s_cselect_b32 s39, s44, s45"); e(f"s_cselect_b32 s38, 0, s38")
            e("s_add_u32 s34, s34, s39"); e(f"s_branch {lni}")
            self.a.label(lw)
            e("s_waitcnt vmcnt(0)"); e("s_barrier")
            self.a.label(lni)
            e("s_add_u32 s36, s36, 1"); e(f"s_cmp_lt_u32 s36, {NST}"); e(f"s_cbranch_scc1 {loop}")
            if var == 0: e(f"s_branch {end}")
        self.a.label(end)
        self.phase_end()
        self.signal(lambda: (e("s_lshl_b32 s46, s4, 7"), e("s_lshl_b32 s47, s5, 2"), e("s_add_u32 s46, s46, s47"), e(f"s_add_u32 s46, s46, {F5}")))
        self.stamp(20)

    def p6(self):
        e = self.e
        self.srd(8, P_WS, WS_Y, 64*56*1024); self.srd(12, P_WOUT, 0, 896*512*2)
        self.srd(16, P_WS, WS_X1, 2*MB); self.srd(24, P_OUT, 0, 2*MB); self.srd(28, P_WS, WS_MOD, 49152)
        XR = 114688; XS = 16384; NCH = 7; NSLOT = 3
        self.proj_wvoff()
        self.proj_addr(True, XR, 0)
        e("v_add_u32 v10, 0x10000, v9")
        self.proj_epi_addr()
        def pre6():
            for m in range(16):
                e(f"s_add_u32 s21, s3, {7*m}"); e("s_lshl_b32 s20, s21, 13"); e("s_lshl_b32 s21, s21, 10")
                self.dma(3, 12, "s20", "s_mov_b32 m0, s21")
        def cY():
            e("s_lshl_b32 s46, s4, 7"); e(f"s_add_u32 s46, s46, {F5}"); e("v_lshlrev_b32 v251, 2, v1")
        self.wait_flags([(cY, 0xff)], pre=pre6, w7_after=False)
        self.stamp(21)
        e(f"s_mul_i32 s6, s4, {2*56*1024}"); e("s_lshl_b32 s21, s3, 10"); e("s_add_u32 s6, s6, s21")
        def issue_x(ch):
            for tt in range(2):
                e(f"s_add_u32 s20, s6, {tt*56*1024 + ch*8*1024}")
                self.dma(2, 8, "s20", f"s_add_u32 m0, s21, {XR + (ch % NSLOT)*XS + tt*8192}")
        issue_x(0); e("s_barrier"); issue_x(1); e("s_barrier"); issue_x(2)
        e("buffer_load_dwordx4 v[32:35], v16, s[16:19], s32 offen")
        self.proj_gate_loads(5)
        ACC = 64
        for r in range(16): e(f"v_mov_b32 v{ACC+r}, 0")
        for ch in range(NCH):
            w = {0: 4 + 9, 1: 2 + 9, 2: 9 + 2}.get(ch, 2*(min(NCH - 1, ch + 1) - ch))
            e(f"s_waitcnt vmcnt({w})")
            e("s_barrier")
            if ch == 0: self.stamp(38)
            if ch >= 1 and ch + 2 < NCH: issue_x(ch + 2)
            wreg, woff = (9, ch*16384) if ch < 3 else (10, ch*16384 - 65536) if ch >= 4 else (9, ch*16384)
            self.proj_chunk(ACC, (ch % NSLOT)*XS, wreg, woff, True)
        self.stamp(39)
        self.proj_epilogue(ACC, 24, "", False)
        self.stamp(22)


HEADER = open('cdna_kernels/' + NAME + '.s.ref').read().split('; Override launch geometry')[0]

def build(stamps=False, hstamp=-1):
    Gen.STAMPS = stamps
    g = Gen()
    endl = "L_exit"
    g.prologue(endl)
    g.p01(); g.p2(); g.p3(); g.p4(); g.p5(); g.p6()
    if stamps and Gen.GSTAMP:
        e = g.e
        sk = g.lab("stst")
        e(f"s_cmp_lg_u32 s3, {Gen.GSTAMP_W}"); e(f"s_cbranch_scc1 {sk}")
        e("s_waitcnt vmcnt(0)")
        g.stamp(23)
        g.srd(8, P_DBG, 0, 0x20000)
        e("s_lshl_b32 s20, s2, 8"); e("s_add_u32 s20, s20, 4096")
        e("v_lshlrev_b32 v4, 2, v1")
        e("buffer_store_dword v255, v4, s[8:11], s20 offen")
        g.a.label(sk)
    elif stamps:
        e = g.e
        sk = g.lab("stst")
        e(f"s_sub_u32 s46, s2, {Gen.STAMP_WG0}"); e("s_cmp_ge_u32 s46, 4"); e(f"s_cbranch_scc1 {sk}")
        e("s_and_b32 s46, s3, 3"); e(f"s_cmp_lg_u32 s46, {Gen.STAMP_W}"); e(f"s_cbranch_scc1 {sk}")
        e("s_waitcnt vmcnt(0)")
        g.stamp(23)
        if hstamp >= 0: e(f"s_branch {sk}")
        g.srd(8, P_DBG, 0, 4096)
        e(f"s_sub_u32 s20, s2, {Gen.STAMP_WG0}"); e("s_lshl_b32 s20, s20, 1"); e("s_lshr_b32 s21, s3, 2"); e("s_add_u32 s20, s20, s21"); e("s_lshl_b32 s20, s20, 8"); e("s_add_u32 s20, s20, 256")
        e("v_lshlrev_b32 v4, 2, v1")
        e("buffer_store_dword v255, v4, s[8:11], s20 offen")
        g.a.label(sk)
    if hstamp >= 0:
        e = g.e
        sk = g.lab("hst")
        e(f"s_cmp_lg_u32 s2, {hstamp}"); e(f"s_cbranch_scc1 {sk}")
        e("s_cmp_lg_u32 s3, 0"); e(f"s_cbranch_scc1 {sk}")
        e("v_lshrrev_b32 v4, 2, v255")
        e("v_lshlrev_b32 v5, 16, v4")
        e("v_mov_b32_dpp v6, v5 row_shl:1 row_mask:0xf bank_mask:0xf")
        e("v_or_b32 v4, v4, v6")
        g.srd(8, P_DBG, 0, 256)
        e("v_lshrrev_b32 v7, 1, v1"); e("v_lshlrev_b32 v7, 2, v7"); e("v_add_u32 v7, 4, v7")
        e("v_and_b32 v8, 1, v1"); e("v_cmp_eq_u32 vcc, 0, v8"); e("v_cmp_gt_u32 s[40:41], 24, v1"); e("s_and_b64 vcc, vcc, s[40:41]")
        e("s_and_saveexec_b64 s[40:41], vcc")
        e("buffer_store_dword v4, v7, s[8:11], 0 offen")
        g.a.label(sk)
    g.a.label(endl)
    g.e("s_endpgm")
    g.a.fix_hazards()
    out = [HEADER, "; @launch grid=(256,1,1) block=(512,1,1) lds=163840\n",
           '.amdgcn_target "amdgcn-amd-amdhsa--gfx950"\n.text\n',
           f".globl {KNAME}\n.p2align 8\n.type {KNAME},@function\n{KNAME}:\n", g.a.text(),
           '.section .rodata,"a"\n', f""".p2align 6
.amdhsa_kernel {KNAME}
  .amdhsa_next_free_vgpr 256
  .amdhsa_next_free_sgpr 102
  .amdhsa_accum_offset 256
  .amdhsa_group_segment_fixed_size 0
  .amdhsa_kernarg_size 104
  .amdhsa_user_sgpr_count 2
  .amdhsa_user_sgpr_kernarg_segment_ptr 1
  .amdhsa_system_sgpr_workgroup_id_x 1
.end_amdhsa_kernel
"""]
    txt = ''.join(out)
    import re
    txt = re.sub(r'(buffer_store_\w+ [^\n]*?) sc0 sc1', r'\1 sc1', txt)
    return txt

if __name__ == "__main__":
    for k in ("PREFETCH", "STAMP_WG0", "STAMP_W", "CODEPF", "NOHOP", "BALANCE", "ZTOUCH", "GSTAMP", "GSTAMP_W", "ZLOOK", "DIAG", "MODCRIT", "XLATE", "SPD", "REPACK", "M1", "M2", "RPG", "X_NOMFMA", "X_NOREAD", "X_NODMA"):
        if k in os.environ: setattr(Gen, k, int(os.environ[k]))
    txt = build(stamps=(len(sys.argv) > 2), hstamp=int(os.environ.get("HSTAMP", "-1")))
    path = sys.argv[1] if len(sys.argv) > 1 else 'cdna_kernels/' + NAME + '.s'
    open(path, 'w').write(txt)
    print("wrote", path, len(txt), "bytes")
```

```python
import sys, math, os
from asmlib import Asm, vr, sr

NAME = "adaLN_cond__softmax_full_mha__mixer_gmlp__prompt"
KNAME = NAME + "_kernel"
MB = 1 << 20
WS_MOD = 0
WS_ST  = 0x10000
WS_FLAG = 0x60000
WS_STX = 0x70000
WS_MODG = 0xB0000
WS_QK  = 1 * MB
WS_V   = 5 * MB
WS_O   = 7 * MB
WS_X1  = 9 * MB
WS_Z2  = 19 * MB
WS_Y   = 23 * MB
WS_WINP = 27 * MB
F0, F1, F2, F3, F4, F5, FR = 0x0, 0x2000, 0x4000, 0x5000, 0x6000, 0x7000, 0x8000
P_X, P_WQKV, P_WO, P_BX, P_WIN, P_WSP, P_BSP, P_WOUT, P_C, P_WMOD, P_OUT, P_DBG, P_WS = [64 + 2*i for i in range(13)]
LOG2E = 1.4426950408889634
S_QB, S_HEAD, S_NONCE, SRD_F = 57, 58, 59, 60
ST = "sc0 sc1"
SPIN_CAP = 1 << 17

def f2u(x):
    import struct
    return struct.unpack('<I', struct.pack('<f', x))[0]
def fl(x): return f"0x{f2u(x):08x}"

class Gen:
    STAMPS = False
    PREFETCH = True
    STAMP_WG0 = 0
    STAMP_W = 0
    CODEPF = False
    NOHOP = False
    BALANCE = True
    ZTOUCH = False
    ZLOOK = 9
    DIAG = False
    diag_site = 0
    MODCRIT = 64
    XLATE = False
    SPD = 7
    REPACK = False
    M1 = 3
    M2 = 9
    RPG = 2
    X_NOMFMA = False
    X_NOREAD = False
    X_NODMA = False
    GSTAMP = False
    GSTAMP_W = 0
    def __init__(self):
        self.a = Asm()
        self.nstamp = 0
    def e(self, s): self.a.e(s)
    def lab(self, b): return self.a.newlabel(b)

    def stamp(self, i):
        if not Gen.STAMPS: return
        e = self.e
        sk = self.lab("stamp")
        if Gen.GSTAMP:
            e(f"s_cmp_lg_u32 s3, {Gen.GSTAMP_W}"); e(f"s_cbranch_scc1 {sk}")
            e("s_memtime s[46:47]" if Gen.GSTAMP == 2 else "s_memrealtime s[46:47]"); e("s_waitcnt lgkmcnt(0)")
            e(f"v_writelane_b32 v255, s46, {i}")
            self.a.label(sk)
            return
        e(f"s_sub_u32 s46, s2, {Gen.STAMP_WG0}"); e("s_cmp_ge_u32 s46, 4"); e(f"s_cbranch_scc1 {sk}")
        e("s_and_b32 s46, s3, 3"); e(f"s_cmp_lg_u32 s46, {Gen.STAMP_W}"); e(f"s_cbranch_scc1 {sk}")
        e("s_memtime s[46:47]"); e("s_waitcnt lgkmcnt(0)")
        e("s_sub_u32 s46, s46, s90")
        e(f"v_writelane_b32 v255, s46, {i}")
        self.a.label(sk)

    def srd(self, d, ptr, off, size):
        e = self.e
        if off:
            e(f"s_add_u32 s{d}, s{ptr}, 0x{off:x}"); e(f"s_addc_u32 s{d+1}, s{ptr+1}, 0")
        else:
            e(f"s_mov_b32 s{d}, s{ptr}"); e(f"s_mov_b32 s{d+1}, s{ptr+1}")
        e(f"s_mov_b32 s{d+2}, 0x{size:x}"); e(f"s_mov_b32 s{d+3}, 0x20000")

    def bf16_round(self, d, s):
        self.e(f"v_cvt_pk_bf16_f32 v{d}, v{s}, v{s}")
        self.e(f"v_lshlrev_b32 v{d}, 16, v{d}")

    def dpp_reduce16(self, regs):
        for m in ("quad_perm:[1,0,3,2]", "quad_perm:[2,3,0,1]", "row_half_mirror", "row_mirror"):
            for r in regs:
                self.e(f"v_add_f32_dpp v{r}, v{r}, v{r} {m} row_mask:0xf bank_mask:0xf")

    def dma(self, voff, srd, soff, m0expr, width="dwordx4"):
        self.e(m0expr)
        self.e("s_nop 0")
        self.e(f"buffer_load_{width} v{voff}, {sr(srd,4)}, {soff} offen lds")

    def diag(self, cnt_sgpr, vval):
        if not Gen.DIAG: return
        e = self.e
        Gen.diag_site += 1
        sk = self.lab("dg")
        e(f"s_cmp_le_u32 s{cnt_sgpr}, {SPIN_CAP}"); e(f"s_cbranch_scc1 {sk}")
        e("s_waitcnt vmcnt(0)")
        self.srd(48, P_DBG, 0, 1 << 22)
        e(f"s_mul_i32 s46, s2, 1024"); e(f"s_add_u32 s46, s46, {65536 + Gen.diag_site*262144}")
        e("v_lshlrev_b32 v252, 2, v1")
        e(f"buffer_store_dword v{vval}, v252, s[48:51], s46 offen offset:256")
        e(f"v_mov_b32 v253, s{S_NONCE}")
        e(f"buffer_store_dword v253, v252, s[48:51], s46 offen")
        e("s_waitcnt vmcnt(0)")
        self.a.label(sk)
        print("diag site", Gen.diag_site, self._where)

    _where = ""
    def phase_end(self):
        self.e("s_waitcnt lgkmcnt(0)" if Gen.NOHOP else "s_waitcnt vmcnt(0) lgkmcnt(0)")
        self.e("s_barrier")

    def signal(self, soff_code, nrep=1, rep_stride=0):
        e = self.e
        sk = self.lab("sig")
        e("s_cmp_lg_u32 s3, 7"); e(f"s_cbranch_scc1 {sk}")
        soff_code()
        e(f"v_mov_b32 v250, s{S_NONCE}")
        e(f"v_mul_u32_u24 v251, {max(rep_stride,1)}, v1")
        e(f"s_mov_b64 exec, {(1 << nrep) - 1}")
        e(f"buffer_store_dword v250, v251, s[{SRD_F}:{SRD_F+3}], s46 offen {ST}")
        e("s_mov_b64 exec, -1")
        self.a.label(sk)

    def wait_flags(self, polls, keep=False, pre=None, w7_after=True):
        e = self.e
        sk = self.lab("wf"); p7 = self.lab("wf7")
        e("s_cmp_eq_u32 s3, 7"); e(f"s_cbranch_scc1 {p7}")
        if pre: pre()
        e(f"s_branch {sk}")
        self.a.label(p7)
        for (code, mask) in ([] if (Gen.NOHOP and not keep) else polls):
            code()
            e(f"s_mov_b32 s42, 0x{mask & 0xffffffff:x}"); e(f"s_mov_b32 s43, 0x{mask >> 32:x}")
            e("s_mov_b32 s47, 0")
            lp = self.lab("poll"); dn = self.lab("polled")
            self.a.label(lp)
            e(f"buffer_load_dword v250, v251, s[{SRD_F}:{SRD_F+3}], s46 offen {ST}")
            e("s_add_u32 s47, s47, 1")
            e(f"s_cmp_gt_u32 s47, {SPIN_CAP}")
            e(f"s_cbranch_scc1 {dn}")
            e("s_waitcnt vmcnt(0)")
            e(f"v_cmp_eq_u32 vcc, s{S_NONCE}, v250")
            e("s_and_b64 vcc, vcc, s[42:43]")
            e("s_cmp_eq_u64 vcc, s[42:43]")
            e(f"s_cbranch_scc0 {lp}")
            self.a.label(dn)
            self._where = "wait_flags " + str(getattr(code, "__name__", code))
            self.diag(47, 250)
        if pre and w7_after: pre()
        self.a.label(sk)
        e("s_barrier")

    def prologue(self, endlab):
        e = self.e
        e("s_cmp_ge_u32 s2, 256"); e(f"s_cbranch_scc1 {endlab}")
        e("s_load_dwordx16 s[64:79], s[0:1], 0")
        e("s_load_dwordx8 s[80:87], s[0:1], 64")
        e("s_load_dwordx2 s[88:89], s[0:1], 96")
        e("v_and_b32 v1, 63, v0")
        e("v_lshrrev_b32 v2, 6, v0")
        e("v_readfirstlane_b32 s3, v2")
        if Gen.STAMPS:
            e("s_memtime s[90:91]"); e("v_mov_b32 v255, 0")
        e("s_and_b32 s20, s2, 7"); e("s_lshr_b32 s21, s2, 3")
        e("s_and_b32 s4, s20, 3"); e("s_lshl_b32 s4, s4, 3"); e("s_and_b32 s22, s21, 7"); e("s_add_u32 s4, s4, s22")
        e("s_lshr_b32 s5, s20, 2"); e("s_lshl_b32 s5, s5, 2"); e("s_lshr_b32 s22, s21, 3"); e("s_add_u32 s5, s5, s22")
        e(f"s_lshl_b32 s{S_HEAD}, s20, 2"); e("s_and_b32 s22, s21, 3"); e(f"s_add_u32 s{S_HEAD}, s{S_HEAD}, s22")
        e(f"s_lshr_b32 s{S_QB}, s21, 2")
        e("s_waitcnt lgkmcnt(0)")
        self.stamp(24)
        self.srd(SRD_F, P_WS, WS_FLAG, 0x10000)
        sk = self.lab("nn")
        e("s_cmp_lg_u32 s3, 7"); e(f"s_cbranch_scc1 {sk}")
        self.srd(8, P_DBG, 0, 256)
        e("v_mov_b32 v251, 0")
        g = self.lab("ng")
        e("s_cmp_lg_u32 s2, 0"); e(f"s_cbranch_scc1 {g}")
        e("s_memrealtime s[46:47]"); e("s_waitcnt lgkmcnt(0)")
        e("s_or_b32 s46, s46, 1")
        e("v_mov_b32 v250, s46")
        e("s_mov_b64 exec, 1")
        e(f"buffer_store_dword v250, v251, s[8:11], 0 offen {ST}")
        e("s_mov_b64 exec, -1")
        self.a.label(g)
        self.a.label(sk)

    def get_nonce(self):
        e = self.e
        sk = self.lab("gn")
        e("s_cmp_lg_u32 s3, 7"); e(f"s_cbranch_scc1 {sk}")
        self.srd(48, P_DBG, 0, 256)
        e("v_mov_b32 v251, 0"); e("s_mov_b32 s47, 0")
        lp = self.lab("gnp"); dn = self.lab("gnd")
        self.a.label(lp)
        e(f"buffer_load_dword v250, v251, s[48:51], 0 offen {ST}")
        e("s_add_u32 s47, s47, 1"); e(f"s_cmp_gt_u32 s47, {SPIN_CAP}"); e(f"s_cbranch_scc1 {dn}")
        e("s_waitcnt vmcnt(0)")
        e(f"v_readfirstlane_b32 s{S_NONCE}, v250")
        e(f"s_cmp_eq_u32 s{S_NONCE}, 0"); e(f"s_cbranch_scc1 {lp}")
        self.a.label(dn)
        self._where = "nonce"; self.diag(47, 250)
        if Gen.DIAG:
            self.srd(48, P_DBG, 0, 1 << 22); e("s_lshl_b32 s46, s2, 2"); e("s_add_u32 s46, s46, 8192"); e("s_mov_b64 exec, 1")
            e("buffer_store_dword v250, v251, s[48:51], s46 offen"); e("s_mov_b64 exec, -1")
        e("ds_write_b32 v251, v250")
        e("s_waitcnt lgkmcnt(0)")
        self.a.label(sk)

    def ln_loads(self, srd_x, s_rowoff):
        e = self.e
        e("v_lshrrev_b32 v3, 4, v1"); e("v_and_b32 v4, 15, v1")
        e("s_lshl_b32 s20, s3, 3")
        e("v_add_u32 v5, s20, v3"); e("v_lshlrev_b32 v5, 10, v5"); e("v_lshl_add_u32 v5, v4, 4, v5")
        e(f"s_add_u32 s21, s{s_rowoff}, 4096")
        for a in range(2):
            so = s_rowoff if a == 0 else 21
            for j in range(4):
                b = 32 + 16*a + 4*j
                e(f"buffer_load_dwordx4 v[{b}:{b+3}], v5, {sr(srd_x,4)}, s{so} offen offset:{256*j}")

    def mod_issue(self, srd_mod, first_chunk):
        e = self.e
        e("v_lshlrev_b32 v248, 3, v0")
        for kq in range(4):
            e(f"s_mov_b32 s22, {kq*12288 + first_chunk*2048}")
            e(f"buffer_load_dwordx2 v[{240+2*kq}:{241+2*kq}], v248, {sr(srd_mod,4)}, s22 offen")

    def mod_finish(self, lds_off):
        e = self.e
        e("v_pk_add_f32 v[240:241], v[240:241], v[242:243]"); e("v_pk_add_f32 v[244:245], v[244:245], v[246:247]")
        e("v_pk_add_f32 v[240:241], v[240:241], v[244:245]")
        e("v_cvt_pk_bf16_f32 v242, v240, v241")
        e("v_lshlrev_b32 v240, 16, v242"); e("v_and_b32 v241, 0xffff0000, v242")
        sk = self.lab("mf")
        e("s_cmp_lt_u32 s3, 4"); e(f"s_cbranch_scc1 {sk}")
        e("v_add_f32 v240, 1.0, v240"); e("v_add_f32 v241, 1.0, v241")
        e("v_cvt_pk_bf16_f32 v242, v240, v241")
        e("v_lshlrev_b32 v240, 16, v242"); e("v_and_b32 v241, 0xffff0000, v242")
        self.a.label(sk)
        e("v_and_b32 v242, 255, v0"); e("v_lshlrev_b32 v242, 1, v242")
        e("v_lshrrev_b32 v243, 7, v242"); e("v_lshlrev_b32 v248, 9, v243")
        e("v_bfe_u32 v243, v242, 2, 1"); e("v_lshl_add_u32 v248, v243, 8, v248")
        e("v_bfe_u32 v243, v242, 3, 4"); e("v_lshl_add_u32 v248, v243, 4, v248")
        e("v_and_b32 v243, 3, v242"); e("v_lshl_add_u32 v248, v243, 2, v248")
        e("v_lshrrev_b32 v243, 8, v0"); e("v_lshl_add_u32 v248, v243, 11, v248")
        e(f"v_add_u32 v248, {lds_off}, v248")
        e("ds_write_b64 v248, v[240:241]")

    def ln_stats(self, fillers):
        e = self.e
        X = 128
        it = iter(fillers)
        def fill():
            f = next(it, None)
            if f: f()
        for a in range(2):
            for q in range(16):
                s = 32 + 16*a + q
                e(f"v_lshlrev_b32 v{X+32*a+2*q}, 16, v{s}")
                e(f"v_and_b32 v{X+32*a+2*q+1}, 0xffff0000, v{s}")
            fill()
        A = lambda a, k: 8 + 8*a + 2*k
        for a in range(2):
            for k in range(4):
                e(f"v_pk_add_f32 v[{A(a,k)}:{A(a,k)+1}], v[{X+32*a+4*k}:{X+32*a+4*k+1}], v[{X+32*a+4*k+2}:{X+32*a+4*k+3}]")
        for q in range(8, 16):
            for a in range(2):
                k = q % 4
                e(f"v_pk_add_f32 v[{A(a,k)}:{A(a,k)+1}], v[{A(a,k)}:{A(a,k)+1}], v[{X+32*a+2*q}:{X+32*a+2*q+1}]")
        fill()
        for a in range(2):
            e(f"v_pk_add_f32 v[{A(a,0)}:{A(a,0)+1}], v[{A(a,0)}:{A(a,0)+1}], v[{A(a,1)}:{A(a,1)+1}]")
            e(f"v_pk_add_f32 v[{A(a,2)}:{A(a,2)+1}], v[{A(a,2)}:{A(a,2)+1}], v[{A(a,3)}:{A(a,3)+1}]")
        for a in range(2):
            e(f"v_pk_add_f32 v[{A(a,0)}:{A(a,0)+1}], v[{A(a,0)}:{A(a,0)+1}], v[{A(a,2)}:{A(a,2)+1}]")
        for a in range(2):
            e(f"v_add_f32 v{24+2*a}, v{A(a,0)}, v{A(a,0)+1}")
        self.dpp_reduce16([24, 26])
        for a in range(2):
            e(f"v_mul_f32 v{24+2*a}, {fl(-1.0/512)}, v{24+2*a}")
            e(f"v_mov_b32 v{25+2*a}, v{24+2*a}")
            for r in range(8): e(f"v_mov_b32 v{8+8*a+r}, 0")
        fill()
        for q in range(16):
            for a in range(2):
                r = X + 32*a + 2*q
                e(f"v_pk_add_f32 v[{r}:{r+1}], v[{r}:{r+1}], v[{24+2*a}:{25+2*a}]")
            if q > 0:
                for a in range(2):
                    r = X + 32*a + 2*(q-1); k = (q-1) % 4
                    e(f"v_pk_fma_f32 v[{A(a,k)}:{A(a,k)+1}], v[{r}:{r+1}], v[{r}:{r+1}], v[{A(a,k)}:{A(a,k)+1}]")
            if q % 4 == 3: fill()
        for a in range(2):
            r = X + 32*a + 30; k = 3
            e(f"v_pk_fma_f32 v[{A(a,k)}:{A(a,k)+1}], v[{r}:{r+1}], v[{r}:{r+1}], v[{A(a,k)}:{A(a,k)+1}]")
        for a in range(2):
            e(f"v_pk_add_f32 v[{A(a,0)}:{A(a,0)+1}], v[{A(a,0)}:{A(a,0)+1}], v[{A(a,1)}:{A(a,1)+1}]")
            e(f"v_pk_add_f32 v[{A(a,2)}:{A(a,2)+1}], v[{A(a,2)}:{A(a,2)+1}], v[{A(a,3)}:{A(a,3)+1}]")
        for a in range(2):
            e(f"v_pk_add_f32 v[{A(a,0)}:{A(a,0)+1}], v[{A(a,0)}:{A(a,0)+1}], v[{A(a,2)}:{A(a,2)+1}]")
        for a in range(2):
            e(f"v_add_f32 v{24+a}, v{A(a,0)}, v{A(a,0)+1}")
        self.dpp_reduce16([24, 25])
        for a in range(2):
            e(f"v_mov_b32 v14, {fl(1e-5)}")
            e(f"v_fmac_f32 v14, {fl(1.0/512)}, v{24+a}")
            e(f"v_rsq_f32 v{20+2*a}, v14")
        for a in range(2):
            e(f"v_mov_b32 v{21+2*a}, v{20+2*a}")
        for f in it: f()
        for a in range(2):
            for q in range(16):
                r = X + 32*a + 2*q
                e(f"v_pk_mul_f32 v[{r}:{r+1}], v[{r}:{r+1}], v[{20+2*a}:{21+2*a}]")

    def ln2_prepare(self):
        e = self.e
        X = 128
        for a in range(2):
            e(f"v_mov_b32 v{12+a}, v{8+2*a}")
        self.dpp_reduce16([12, 13])
        for a in range(2):
            e(f"v_mul_f32 v{12+a}, {fl(1.0/16)}, v{12+a}")
            e(f"v_sub_f32 v{14+a}, v{8+2*a}, v{12+a}")
            e(f"v_mul_f32 v{14+a}, v{14+a}, v{14+a}")
            e(f"v_fmac_f32 v{9+2*a}, {fl(32.0)}, v{14+a}")
        self.dpp_reduce16([9, 11])
        for a in range(2):
            e(f"v_mov_b32 v14, {fl(1e-5)}")
            e(f"v_fmac_f32 v14, {fl(1.0/512)}, v{9+2*a}")
            e(f"v_rsq_f32 v{20+4*a}, v14")
        for a in range(2):
            e(f"v_mov_b32 v{21+4*a}, v{20+4*a}")
            e(f"v_mul_f32 v{22+4*a}, v{12+a}, v{20+4*a}"); e(f"v_sub_f32 v{22+4*a}, 0, v{22+4*a}"); e(f"v_mov_b32 v{23+4*a}, v{22+4*a}")
        for a in range(2):
            for q in range(16):
                s_ = 32 + 16*a + q; r = X + 32*a + 2*q
                e(f"v_lshlrev_b32 v{r}, 16, v{s_}"); e(f"v_and_b32 v{r+1}, 0xffff0000, v{s_}")
        for a in range(2):
            for q in range(16):
                r = X + 32*a + 2*q
                e(f"v_pk_fma_f32 v[{r}:{r+1}], v[{r}:{r+1}], v[{20+4*a}:{21+4*a}], v[{22+4*a}:{23+4*a}]")

    def ln_finish(self, lds_mod):
        e = self.e
        X = 128
        e("v_lshrrev_b32 v3, 4, v1"); e("v_and_b32 v4, 15, v1")
        e("v_lshlrev_b32 v6, 4, v4")
        e(f"v_add_u32 v6, {lds_mod}, v6")
        for j in range(4):
            for hh in range(2):
                e(f"ds_read_b128 v[{64+8*j+4*hh}:{67+8*j+4*hh}], v6 offset:{2048 + 512*j + 256*hh}")
                e(f"ds_read_b128 v[{96+8*j+4*hh}:{99+8*j+4*hh}], v6 offset:{512*j + 256*hh}")
        for a in range(2):
            e(f"s_lshl_b32 s20, s3, 3"); e(f"s_add_u32 s20, s20, {4*a}")
            e(f"v_add_u32 v15, s20, v3"); e(f"v_and_b32 v16, 15, v15"); e(f"v_xor_b32 v16, v16, v4")
            e(f"v_lshlrev_b32 v15, 10, v15"); e(f"v_lshl_add_u32 v{18+a}, v16, 4, v15")
        for j in range(4):
            e(f"s_waitcnt lgkmcnt({4*(3-j) + 2*j if False else min(15, 4*(3-j) + 2*j)})" if False else f"s_waitcnt lgkmcnt({4*(3-j)})" if j == 0 else "s_waitcnt lgkmcnt(0)" if j == 1 else "s_nop 0")
            for a in range(2):
                for q in range(4):
                    r = X + 32*a + 8*j + 2*q
                    e(f"v_pk_fma_f32 v[{r}:{r+1}], v[{r}:{r+1}], v[{64+8*j+2*q}:{65+8*j+2*q}], v[{96+8*j+2*q}:{97+8*j+2*q}]")
                pk = 24 + 4*a
                for q in range(4):
                    r = X + 32*a + 8*j + 2*q
                    e(f"v_cvt_pk_bf16_f32 v{pk+q}, v{r}, v{r+1}")
                e(f"ds_write_b128 v{18+a}, v[{pk}:{pk+3}] offset:{256*j}")

    def repack_issue(self):
        e = self.e
        self.srd(48, P_WIN, 0, 512*1792*2)
        e("v_cmp_le_u32 vcc, 224, v0"); e("v_mov_b32 v223, 1"); e("v_cndmask_b32 v226, 0, v223, vcc")
        e("v_mul_u32_u24 v225, 224, v226"); e("v_sub_u32 v225, v0, v225")
        e("s_lshl_b32 s20, s2, 1"); e("v_add_u32 v226, s20, v226")
        e("v_mul_u32_u24 v224, 3584, v226"); e("v_lshl_add_u32 v224, v225, 4, v224")
        e("buffer_load_dwordx4 v[228:231], v224, s[48:51], 0 offen")
        e("v_cmp_le_u32 vcc, 112, v225"); e("v_mov_b32 v223, 112"); e("v_cndmask_b32 v224, 0, v223, vcc"); e("v_sub_u32 v225, v225, v224")
        e("v_mov_b32 v223, 0"); e("v_cndmask_b32 v224, 14, v223, vcc")
        e("v_mul_u32_u24 v227, 4682, v225"); e("v_lshrrev_b32 v227, 16, v227")
        e("v_mul_u32_u24 v223, 14, v227"); e("v_sub_u32 v225, v225, v223"); e("v_add_u32 v225, v225, v224")
        e("v_bfe_u32 v223, v226, 3, 1"); e("v_lshlrev_b32 v223, 1, v223"); e("v_xor_b32 v225, v225, v223")
        e(f"v_mul_u32_u24 v227, {512*448}, v227"); e("v_mul_u32_u24 v223, 448, v226"); e("v_add_u32 v227, v227, v223")
        e("v_lshl_add_u32 v227, v225, 4, v227")

    def repack_store(self):
        e = self.e
        self.srd(48, P_WS, WS_WINP, 8*512*448)
        sk = self.lab("rps")
        e("s_cmp_eq_u32 s3, 7"); e(f"s_cbranch_scc1 {sk}")
        e(f"buffer_store_dwordx4 v[228:231], v227, s[48:51], 0 offen {ST}")
        self.a.label(sk)

    def mod_loads(self, lo, hi, bar):
        e = self.e
        nomod1 = self.lab("nomod")
        e(f"s_sub_u32 s20, s2, {lo}"); e(f"s_cmp_ge_u32 s20, {hi-lo}"); e(f"s_cbranch_scc1 {nomod1}")
        e("v_and_b32 v72, 7, v0"); e("v_lshrrev_b32 v73, 3, v0")
        e("v_mul_u32_u24 v74, 6144, v73"); e("v_lshl_add_u32 v74, v72, 4, v74")
        e("v_lshlrev_b32 v75, 1, v73")
        e("s_and_b32 s20, s2, 3"); e("s_lshr_b32 s21, s2, 2")
        e(f"s_mul_i32 s40, s20, {128*6144}"); e("s_lshl_b32 s21, s21, 7"); e("s_add_u32 s40, s40, s21"); e(f"s_add_u32 s41, s40, {64*6144}")
        e("s_lshl_b32 s42, s20, 8")
        e("buffer_load_dwordx4 v[80:83], v74, s[32:35], s40 offen")
        e("buffer_load_dwordx4 v[84:87], v74, s[32:35], s41 offen")
        e("buffer_load_ushort v76, v75, s[36:39], s42 offen")
        e("buffer_load_ushort v77, v75, s[36:39], s42 offen offset:128")
        if bar: e("s_barrier")
        self.a.label(nomod1)

    def mod_compute(self, lo, hi, wait):
        e = self.e
        MSCR = 155648
        nomod2 = self.lab("nomod")
        e(f"s_sub_u32 s20, s2, {lo}"); e(f"s_cmp_ge_u32 s20, {hi-lo}"); e(f"s_cbranch_scc1 {nomod2}")
        for j in range(8): e(f"v_mov_b32 v{64+j}, 0")
        e(f"s_waitcnt vmcnt({wait})")
        self.stamp(29)
        for i in range(2):
            c = 76 + i
            e(f"v_lshlrev_b32 v{c}, 16, v{c}")
            e(f"v_mul_f32 v12, {fl(-LOG2E)}, v{c}"); e("v_exp_f32 v12, v12"); e("v_add_f32 v12, 1.0, v12"); e("v_rcp_f32 v12, v12")
            e(f"v_mul_f32 v{c}, v{c}, v12")
            self.bf16_round(c, c)
        for i in range(2):
            for q in range(4):
                w = 80 + 4*i + q
                e(f"v_lshlrev_b32 v12, 16, v{w}"); e(f"v_and_b32 v13, 0xffff0000, v{w}")
                e(f"v_fmac_f32 v{64+2*q}, v{76+i}, v12"); e(f"v_fmac_f32 v{65+2*q}, v{76+i}, v13")
        for j in range(8): e(f"v_add_f32_dpp v{64+j}, v{64+j}, v{64+j} row_ror:8 row_mask:0xf bank_mask:0xf")
        e("v_lshrrev_b32 v12, 4, v0"); e("v_lshlrev_b32 v12, 8, v12"); e("v_lshl_add_u32 v12, v72, 5, v12")
        e(f"v_add_u32 v12, {MSCR}, v12")
        e("v_and_b32 v13, 8, v1"); e("v_cmp_eq_u32 vcc, 0, v13")
        e("s_and_saveexec_b64 s[44:45], vcc")
        e("ds_write_b128 v12, v[64:67]"); e("ds_write_b128 v12, v[68:71] offset:16")
        e("s_mov_b64 exec, s[44:45]")
        e("s_waitcnt lgkmcnt(0)")
        self.stamp(30)
        e("s_barrier")
        mdone = self.lab("mdone")
        e("s_cmp_lg_u32 s3, 7"); e(f"s_cbranch_scc1 {mdone}")
        e("v_lshlrev_b32 v72, 2, v1"); e(f"v_add_u32 v12, {MSCR}, v72")
        for i in range(32): e(f"ds_read_b32 v{80+i}, v12 offset:{256*i}")
        for lo in (0, 16):
            e(f"s_waitcnt lgkmcnt({15 if lo == 0 else 0})")
            if lo == 0: e("s_waitcnt lgkmcnt(15)")
        e("s_waitcnt lgkmcnt(0)")
        for st in (16, 8, 4, 2, 1):
            for i in range(st): e(f"v_add_f32 v{80+i}, v{80+i}, v{80+i+st}")
        e("s_and_b32 s20, s2, 3"); e("s_mul_i32 s20, s20, 12288"); e("s_lshr_b32 s21, s2, 2"); e("s_lshl_b32 s21, s21, 8"); e("s_add_u32 s20, s20, s21")
        e(f"buffer_store_dword v80, v72, s[12:15], s20 offen {ST}")
        e("s_waitcnt vmcnt(0)")
        self.signal(lambda: (e("s_lshl_b32 s46, s2, 2"), e(f"s_add_u32 s46, s46, {F0}")), nrep=8, rep_stride=1024)
        self.a.label(mdone)
        self.a.label(nomod2)

    def mod_late_a(self):
        e = self.e
        MSCR = 155648
        sk = self.lab("mla")
        e("s_sub_u32 s20, s2, 64"); e("s_cmp_ge_u32 s20, 128"); e(f"s_cbranch_scc1 {sk}")
        e("s_cmp_eq_u32 s3, 7"); e(f"s_cbranch_scc1 {sk}")
        self.srd(32, P_WMOD, 0, 512*3072*2); self.srd(36, P_C, 0, 1024)
        e("v_and_b32 v72, 7, v0"); e("v_lshrrev_b32 v73, 3, v0")
        e("v_mul_u32_u24 v74, 6144, v73"); e("v_lshl_add_u32 v74, v72, 4, v74"); e("v_lshlrev_b32 v75, 1, v73")
        e("s_and_b32 s20, s2, 3"); e("s_lshr_b32 s21, s2, 2")
        e(f"s_mul_i32 s40, s20, {128*6144}"); e("s_lshl_b32 s21, s21, 7"); e("s_add_u32 s40, s40, s21")
        e(f"s_add_u32 s41, s40, {56*6144}"); e(f"s_add_u32 s43, s40, {112*6144}"); e("s_lshl_b32 s42, s20, 8")
        for r in range(88, 92): e(f"v_mov_b32 v{r}, 0")
        e("v_mov_b32 v78, 0")
        e("buffer_load_dwordx4 v[80:83], v74, s[32:35], s40 offen"); e("buffer_load_dwordx4 v[84:87], v74, s[32:35], s41 offen")
        e("buffer_load_ushort v76, v75, s[36:39], s42 offen"); e("buffer_load_ushort v77, v75, s[36:39], s42 offen offset:112")
        e("v_cmp_gt_u32 vcc, 16, v73"); e("s_and_saveexec_b64 s[44:45], vcc")
        s3 = self.lab("mla3")
        e(f"s_cbranch_execz {s3}")
        e("buffer_load_dwordx4 v[88:91], v74, s[32:35], s43 offen"); e("buffer_load_ushort v78, v75, s[36:39], s42 offen offset:224")
        self.a.label(s3)
        e("s_mov_b64 exec, s[44:45]")
        for j in range(8): e(f"v_mov_b32 v{64+j}, 0")
        e("s_waitcnt vmcnt(0)")
        for i in range(3):
            c = 76 + i
            e(f"v_lshlrev_b32 v{c}, 16, v{c}")
            e(f"v_mul_f32 v12, {fl(-LOG2E)}, v{c}"); e("v_exp_f32 v12, v12"); e("v_add_f32 v12, 1.0, v12"); e("v_rcp_f32 v12, v12")
            e(f"v_mul_f32 v{c}, v{c}, v12")
            self.bf16_round(c, c)
        for i in range(3):
            for q in range(4):
                w = 80 + 4*i + q
                e(f"v_lshlrev_b32 v12, 16, v{w}"); e(f"v_and_b32 v13, 0xffff0000, v{w}")
                e(f"v_fmac_f32 v{64+2*q}, v{76+i}, v12"); e(f"v_fmac_f32 v{65+2*q}, v{76+i}, v13")
        for j in range(8): e(f"v_add_f32_dpp v{64+j}, v{64+j}, v{64+j} row_ror:8 row_mask:0xf bank_mask:0xf")
        e("v_lshrrev_b32 v12, 4, v0"); e("v_lshlrev_b32 v12, 8, v12"); e("v_lshl_add_u32 v12, v72, 5, v12"); e(f"v_add_u32 v12, {MSCR}, v12")
        e("v_and_b32 v13, 8, v1"); e("v_cmp_eq_u32 vcc, 0, v13"); e("s_and_saveexec_b64 s[44:45], vcc")
        e("ds_write_b128 v12, v[64:67]"); e("ds_write_b128 v12, v[68:71] offset:16")
        e("s_mov_b64 exec, s[44:45]")
        e("s_waitcnt lgkmcnt(0)")
        self.a.label(sk)

    def mod_late_b(self):
        e = self.e
        MSCR = 155648
        sk = self.lab("mlb")
        e("s_sub_u32 s20, s2, 64"); e("s_cmp_ge_u32 s20, 128"); e(f"s_cbranch_scc1 {sk}")
        e("s_cmp_lg_u32 s3, 6"); e(f"s_cbranch_scc1 {sk}")
        self.srd(48, P_WS, WS_MOD, 49152)
        e("v_lshlrev_b32 v178, 2, v1"); e(f"v_add_u32 v179, {MSCR}, v178")
        for i in range(28): e(f"ds_read_b32 v{180+i}, v179 offset:{256*i}")
        e("s_waitcnt lgkmcnt(0)")
        for i in range(1, 28): e(f"v_add_f32 v180, v180, v{180+i}")
        e("s_and_b32 s20, s2, 3"); e("s_mul_i32 s20, s20, 12288"); e("s_lshr_b32 s21, s2, 2"); e("s_lshl_b32 s21, s21, 8"); e("s_add_u32 s20, s20, s21")
        e(f"buffer_store_dword v180, v178, s[48:51], s20 offen {ST}")
        self.a.label(sk)

    def mod_late_flag(self):
        e = self.e
        sk = self.lab("mlf")
        e("s_sub_u32 s20, s2, 64"); e("s_cmp_ge_u32 s20, 128"); e(f"s_cbranch_scc1 {sk}")
        e("s_cmp_lg_u32 s3, 6"); e(f"s_cbranch_scc1 {sk}")
        e("s_lshl_b32 s46, s2, 2"); e(f"s_add_u32 s46, s46, {F0}")
        e(f"v_mov_b32 v250, s{S_NONCE}"); e("v_mul_u32_u24 v251, 1024, v1")
        e("s_mov_b64 exec, 0xff")
        e(f"buffer_store_dword v250, v251, s[{SRD_F}:{SRD_F+3}], s46 offen {ST}")
        e("s_mov_b64 exec, -1")
        self.a.label(sk)

    def p01(self):
        e = self.e
        RING = 65536; SL = 12288; D = 7; MODL = RING + D*SL
        MSCR = 155648
        self.srd(8, P_X, 0, 2048*512*2)
        self.srd(12, P_WS, WS_MOD, 49152)
        self.srd(16, P_WQKV, 0, 512*1536*2)
        self.srd(24, P_WS, WS_QK, 4*MB)
        self.srd(28, P_WS, WS_V, 2*MB)
        self.srd(32, P_WMOD, 0, 512*3072*2)
        self.srd(36, P_C, 0, 1024)
        self.mod_loads(0, self.MODCRIT, True)
        self.get_nonce()
        self.stamp(25)
        if self.XLATE:
            xl = self.lab("xlate")
            e("s_cmp_ge_u32 s2, 192"); e(f"s_cbranch_scc1 {xl}")
            e("s_waitcnt vmcnt(0)")
            self.a.label(xl)
        e("s_lshl_b32 s6, s4, 16")
        self.ln_loads(8, 6)
        self.stamp(26)
        tk = self.lab("touch")
        e("s_cmp_ge_u32 s3, 3"); e(f"s_cbranch_scc1 {tk}")
        e("s_and_b32 s20, s4, 7"); e("s_lshl_b32 s20, s20, 6")
        e("v_add_u32 v7, s20, v1"); e("v_mul_u32_u24 v7, 3072, v7")
        e("s_lshl_b32 s20, s5, 8"); e("s_lshl_b32 s21, s3, 7"); e("s_add_u32 s20, s20, s21")
        e("s_lshl_b32 s21, s5, 7"); e("s_add_u32 s21, s21, 2048")
        e("s_cmp_eq_u32 s3, 2"); e("s_cselect_b32 s20, s21, s20")
        e("buffer_load_dword v9, v7, s[16:19], s20 offen")
        self.a.label(tk)
        self.stamp(27)
        e("s_and_b32 s7, s3, 3")
        for m in range(3):
            d = 192 + m
            e(f"s_lshl_b32 s20, s7, 6"); e(f"s_add_u32 s20, s20, {256*m}")
            e(f"v_add_u32 v200, s20, v1")
            e(f"v_mul_u32_u24 v201, 2731, v200"); e(f"v_lshrrev_b32 v201, 16, v201")
            e(f"v_mul_u32_u24 v202, 24, v201"); e(f"v_sub_u32 v202, v200, v202")
            e(f"v_bfe_u32 v203, v201, 1, 1"); e(f"v_bfe_u32 v204, v201, 3, 1")
            e(f"v_lshl_or_b32 v203, v204, 1, v203"); e(f"v_lshlrev_b32 v203, 1, v203")
            e(f"v_xor_b32 v202, v202, v203"); e(f"v_lshlrev_b32 v203, 4, v202")
            e(f"s_lshl_b32 s20, s5, 8"); e(f"v_add_u32 v204, s20, v203")
            e(f"s_lshl_b32 s20, s5, 7"); e(f"s_add_u32 s20, s20, {2048-256}"); e(f"v_add_u32 v205, s20, v203")
            e(f"v_cmp_gt_u32 vcc, 16, v202"); e(f"v_cndmask_b32 v204, v205, v204, vcc")
            e(f"v_mul_u32_u24 v201, 3072, v201"); e(f"v_add_u32 v{d}, v201, v204")
        e("s_lshl_b32 s7, s7, 10"); e(f"s_add_u32 s7, s7, {RING}")
        e("s_lshr_b32 s32, s3, 2")
        self.stamp(28)
        self.mod_compute(0, self.MODCRIT, 8)
        self.stamp(0)
        e(f"s_mul_i32 s33, s32, {32*3072}")
        e(f"s_mul_i32 s34, s32, {SL}"); e("s_add_u32 s34, s34, s7")
        def issue_pair(pairidx):
            def f():
                e(f"s_add_u32 s23, s33, {2*pairidx*32*3072}")
                for m in range(3):
                    self.dma(192+m, 16, "s23", f"s_add_u32 m0, s34, {2*pairidx*SL + m*4096}")
            return f
        issue_pair(0)()
        e("s_waitcnt vmcnt(3)")
        self.stamp(1)
        nop = lambda: None
        self.ln_stats([nop, nop, issue_pair(1), nop, nop, issue_pair(2)])
        self.stamp(2)
        def c0():
            e("s_and_b32 s46, s2, 7"); e("s_lshl_b32 s46, s46, 10"); e(f"s_add_u32 s46, s46, {F0}")
            e("v_lshlrev_b32 v251, 2, v1")
        self.wait_flags([(c0, (1 << 64) - 1)], keep=True)
        self.stamp(3)
        self.mod_issue(12, 0)
        e("v_mov_b32 v249, 0"); e("ds_read_b32 v249, v249"); e("s_waitcnt lgkmcnt(0)"); e(f"v_readfirstlane_b32 s{S_NONCE}, v249")
        e("v_lshrrev_b32 v3, 4, v1"); e("v_and_b32 v4, 15, v1")
        e("v_lshrrev_b32 v5, 2, v4"); e("v_and_b32 v6, 3, v4")
        e("v_lshl_add_u32 v7, v3, 3, v5"); e("v_mul_u32_u24 v7, 384, v7"); e("v_lshl_add_u32 v7, v6, 3, v7")
        e(f"v_add_u32 v7, {RING}, v7")
        e("v_bfe_u32 v8, v5, 1, 1"); e("v_and_b32 v9, 1, v3"); e("v_lshl_or_b32 v8, v9, 1, v8")
        e("s_lshr_b32 s20, s3, 1")
        for c in range(3):
            if c < 2: e(f"s_lshl_b32 s21, s20, 1"); e(f"s_add_u32 s21, s21, {c}")
            else: e(f"s_add_u32 s21, s20, 8")
            e("s_lshr_b32 s22, s21, 2"); e("s_lshl_b32 s22, s22, 7"); e("s_and_b32 s21, s21, 3")
            e(f"v_xor_b32 v9, s21, v8"); e(f"v_lshl_add_u32 v{200+c}, v9, 5, v7"); e(f"v_add_u32 v{200+c}, s22, v{200+c}")
            e(f"v_add_u32 v{204+c}, {5*SL}, v{200+c}")
        e("s_and_b32 s21, s3, 1"); e("s_lshl_b32 s21, s21, 5")
        e("v_add_u32 v9, s21, v4"); e("v_lshlrev_b32 v9, 10, v9")
        for m in range(4):
            e(f"v_add_u32 v10, {4*m}, v3"); e(f"v_xor_b32 v10, v10, v4"); e(f"v_lshl_add_u32 v{208+m}, v10, 4, v9")
        e("s_waitcnt vmcnt(0)")
        self.mod_finish(MODL)
        e("s_waitcnt lgkmcnt(0)")
        e("s_barrier")
        self.ln_finish(MODL)
        ACC = 128
        e("s_waitcnt lgkmcnt(0)")
        e("s_barrier")
        for r in range(24): e(f"v_mov_b32 v{192+8+r}, 0") if False else None
        ACC = 212
        for r in range(24): e(f"v_mov_b32 v{ACC+r}, 0")
        self.stamp(4)
        def reads_list(n):
            buf = n % 2; slot = n % D
            out = []
            for rt in range(2):
                b = 32 + 32*buf + 4*rt
                out.append(f"ds_read_b128 v[{b}:{b+3}], v{208 + (n & 3)} offset:{rt*16384 + (n >> 2)*256}")
            for c in range(3):
                b = 40 + 32*buf + 4*c
                areg, off = (200 + c, slot*SL) if slot < 5 else (204 + c, (slot-5)*SL)
                for t in range(2):
                    out.append(f"ds_read_b64_tr_b16 v[{b+2*t}:{b+2*t+1}], v{areg} offset:{off + 4*t*384}")
            return out
        def mfmas(n):
            buf = n % 2
            for c in range(3):
                for rt in range(2):
                    acc = ACC + 4*(rt*3 + c)
                    x = 32 + 32*buf + 4*rt; w = 40 + 32*buf + 4*c
                    A, B = (w, x) if c < 2 else (x, w)
                    yield f"v_mfma_f32_16x16x32_bf16 v[{acc}:{acc+3}], v[{A}:{A+3}], v[{B}:{B+3}], v[{acc}:{acc+3}]"
        NK = 16
        for r in reads_list(0): e(r)
        for n in range(NK):
            if n + 1 < NK:
                if n + 1 >= 6:
                    hi = min(n + 5, NK - 1)
                    cA = sum(1 for s in range(max(n+2, 6), hi+1) if s % 2 == 0); cB = sum(1 for s in range(max(n+2, 6), hi+1) if s % 2 == 1)
                    e(f"s_waitcnt vmcnt({3*min(cA, cB)})")
                e("s_barrier")
            e("s_waitcnt lgkmcnt(0)")
            ms = list(mfmas(n)); rs = reads_list(n + 1) if n + 1 < NK else []
            ri = 0
            for i, m in enumerate(ms):
                e(m)
                for _ in range(2 if i < 2 else 1):
                    if ri < len(rs): e(rs[ri]); ri += 1
            st = n + D - 1
            if st < NK:
                lsk = self.lab("qkv_sk")
                e(f"s_cmp_lg_u32 s32, {st & 1}"); e(f"s_cbranch_scc1 {lsk}")
                e(f"s_mov_b32 s23, {st*32*3072}")
                for m in range(3): self.dma(192+m, 16, "s23", f"s_add_u32 m0, s7, {(st % D)*SL + m*4096}")
                self.a.label(lsk)
        self.stamp(5)
        e("v_lshlrev_b32 v8, 4, v1")
        e("s_and_b32 s20, s3, 1"); e("s_lshl_b32 s21, s4, 1"); e("s_add_u32 s21, s21, s20"); e("s_lshl_b32 s21, s21, 10")
        e("s_lshr_b32 s20, s3, 1")
        e(f"s_mov_b32 s22, {fl(0.25*LOG2E)}"); e("s_cmp_lt_u32 s5, 4"); e("s_cselect_b32 s22, s22, 1.0")
        for c in range(3):
            if c < 2:
                e("s_lshl_b32 s23, s5, 3"); e("s_lshl_b32 s6, s20, 1"); e("s_add_u32 s23, s23, s6"); e(f"s_add_u32 s23, s23, {c}")
            else:
                e("s_lshl_b32 s23, s5, 2"); e("s_add_u32 s23, s23, s20")
            e("s_lshl_b32 s23, s23, 16"); e("s_add_u32 s23, s23, s21")
            pk = 32 + 4*c
            for rt in range(2):
                acc = ACC + 4*(rt*3 + c)
                if c < 2:
                    for q in range(4): e(f"v_mul_f32 v{acc+q}, s22, v{acc+q}")
                e(f"v_cvt_pk_bf16_f32 v{pk+2*rt}, v{acc}, v{acc+1}"); e(f"v_cvt_pk_bf16_f32 v{pk+2*rt+1}, v{acc+2}, v{acc+3}")
            sw = "v_permlane16_swap_b32" if c < 2 else "v_permlane32_swap_b32"
            e(f"{sw} v{pk}, v{pk+2}"); e(f"{sw} v{pk+1}, v{pk+3}")
            e(f"buffer_store_dwordx4 v[{pk}:{pk+3}], v8, {'s[24:27]' if c < 2 else 's[28:31]'}, s23 offen {ST}")
        self.phase_end()
        self.signal(lambda: (e("s_lshl_b32 s46, s5, 7"), e("s_lshl_b32 s47, s4, 2"), e("s_add_u32 s46, s46, s47"), e(f"s_add_u32 s46, s46, {F1}")),
                    nrep=8, rep_stride=1024)
        if self.MODCRIT < 192: self.mod_late_a()
        if self.REPACK:
            rpi = self.lab("rpi")
            e("s_cmp_eq_u32 s3, 7"); e(f"s_cbranch_scc1 {rpi}")
            self.repack_issue()
            self.a.label(rpi)
        self.stamp(6)

    def l2_prefetch(self, vtmp, vdst):
        e = self.e
        e("s_and_b32 s20, s2, 7"); e("s_lshr_b32 s21, s2, 3")
        e(f"v_lshlrev_b32 v{vtmp}, 7, v1")
        self.srd(48, P_WSP, 0, 2048*2048*2)
        e("s_and_b32 s22, s20, 3"); e("s_lshl_b32 s22, s22, 21"); e("s_lshl_b32 s23, s21, 16"); e("s_add_u32 s22, s22, s23")
        e("s_lshl_b32 s23, s3, 13"); e("s_add_u32 s22, s22, s23")
        e(f"buffer_load_dword v{vdst}, v{vtmp}, s[48:51], s22 offen")
        if self.REPACK:
            self.srd(48, P_WS, WS_WINP, 8*512*448)
            e("s_lshr_b32 s22, s20, 2"); e(f"s_mul_i32 s22, s22, {4*512*448}")
            e(f"s_mul_i32 s23, s21, {224*128}"); e("s_add_u32 s22, s22, s23")
            e("s_lshl_b32 s23, s3, 13"); e("s_add_u32 s22, s22, s23")
            pw4 = self.lab("pf4")
            e("s_cmp_ge_u32 s3, 4"); e(f"s_cbranch_scc1 {pw4}")
            e(f"buffer_load_dword v{vdst+2}, v{vtmp}, s[48:51], s22 offen")
            self.a.label(pw4)
        else:
            self.srd(48, P_WIN, 0, 512*1792*2)
            e(f"v_lshrrev_b32 v{vdst+1}, 5, v1"); e(f"v_bfe_u32 v{vdst+2}, v1, 4, 1")
            e(f"v_and_b32 v{vdst+3}, 15, v1"); e(f"v_min_u32 v{vdst+3}, 7, v{vdst+3}")
            e(f"v_mul_u32_u24 v{vdst+1}, 3584, v{vdst+1}"); e(f"v_mul_u32_u24 v{vdst+2}, 1792, v{vdst+2}")
            e(f"v_add_u32 v{vdst+1}, v{vdst+1}, v{vdst+2}"); e(f"v_lshl_add_u32 v{vdst+1}, v{vdst+3}, 7, v{vdst+1}")
            e("s_lshr_b32 s22, s20, 2"); e("s_mul_i32 s22, s22, 896")
            e("s_lshl_b32 s23, s21, 4"); e("s_lshl_b32 s46, s3, 1"); e("s_add_u32 s23, s23, s46"); e("s_mul_i32 s23, s23, 3584")
            e("s_add_u32 s22, s22, s23")
            e(f"buffer_load_dword v{vdst+2}, v{vdst+1}, s[48:51], s22 offen")
        e(f"v_lshrrev_b32 v{vdst+1}, 2, v1"); e(f"v_and_b32 v{vdst+3}, 3, v1")
        e(f"v_lshlrev_b32 v{vdst+1}, 10, v{vdst+1}"); e(f"v_lshl_add_u32 v{vdst+1}, v{vdst+3}, 7, v{vdst+1}")
        e("s_lshr_b32 s22, s20, 2"); e("s_lshl_b32 s22, s22, 9")
        lw = self.lab("pf_w"); lx = self.lab("pf_x")
        e("s_cmp_ge_u32 s3, 2"); e(f"s_cbranch_scc1 {lw}")
        self.srd(48, P_WOUT, 0, 896*512*2)
        e("s_mul_i32 s23, s21, 28"); e("s_lshl_b32 s46, s3, 4"); e("s_add_u32 s23, s23, s46"); e("s_lshl_b32 s23, s23, 10")
        e("s_add_u32 s22, s22, s23")
        e(f"buffer_load_dword v{vdst+3}, v{vdst+1}, s[48:51], s22 offen")
        e(f"s_branch {lx}")
        self.a.label(lw)
        e("s_cmp_lg_u32 s3, 2"); e(f"s_cbranch_scc1 {lx}")
        self.srd(48, P_WO, 0, 512*512*2)
        e("s_lshl_b32 s23, s21, 14"); e("s_add_u32 s22, s22, s23")
        e(f"buffer_load_dword v{vdst+3}, v{vdst+1}, s[48:51], s22 offen")
        self.a.label(lx)

    def p2(self):
        e = self.e
        end = self.lab("att_end")
        H, QB_ = S_HEAD, S_QB
        self.srd(8, P_WS, WS_QK, 4*MB)
        self.srd(12, P_WS, WS_V, 2*MB)
        self.srd(16, P_WS, WS_O, 2*MB)
        e("s_and_b32 s6, s3, 3"); e("s_lshr_b32 s7, s3, 2")
        e("v_lshlrev_b32 v2, 4, v1")
        QA, QB = 8, 12
        SA, SB = 32, 48
        PA, PB = 64, 72
        OA, OB = 80, 96
        CA, CB = 112, 128
        KF = 144; VF = 152
        AK, AV = 4, 5
        FLAG = 131072 + 20480
        e(f"v_mov_b32 v3, {FLAG}"); e("v_mov_b32 v4, 0"); e("ds_write_b32 v3, v4")
        e("v_and_b32 v6, 31, v1"); e("v_and_b32 v7, 27, v6"); e("v_cmp_eq_u32 vcc, 16, v7")
        e("v_mov_b32 v16, 0x3f803f80"); e("v_cndmask_b32 v16, 0, v16, vcc")
        for r in range(16): e(f"v_mov_b32 v{VF+r}, v16")
        e("v_cmp_gt_u32 s[30:31], 16, v6")
        for r in range(16):
            e(f"v_mov_b32 v{CA+r}, 0"); e(f"v_mov_b32 v{CB+r}, 0")
        e("s_mov_b32 s33, 0")
        def cKV():
            e("s_and_b32 s46, s2, 7"); e("s_lshl_b32 s46, s46, 10"); e(f"s_add_u32 s46, s46, {F1}")
            e(f"s_lshr_b32 s44, s{H}, 3"); e("s_add_u32 s44, s44, 4"); e("s_lshl_b32 s44, s44, 7")
            e(f"s_lshr_b32 s45, s{H}, 2"); e("s_lshl_b32 s45, s45, 7")
            e("v_and_b32 v251, 31, v1"); e("v_lshlrev_b32 v251, 2, v251")
            e("v_mov_b32 v252, s44"); e("v_mov_b32 v253, s45")
            e("v_cmp_gt_u32 vcc, 32, v1"); e("v_cndmask_b32 v252, v253, v252, vcc")
            e("v_add_u32 v251, v251, v252")
        def cQ():
            e("s_and_b32 s46, s2, 7"); e("s_lshl_b32 s46, s46, 10"); e(f"s_add_u32 s46, s46, {F1}")
            e(f"s_lshr_b32 s44, s{H}, 3"); e("s_lshl_b32 s44, s44, 7"); e("s_add_u32 s46, s46, s44")
            e(f"s_lshl_b32 s44, s{QB_}, 4"); e("s_add_u32 s46, s46, s44")
            e("v_lshlrev_b32 v251, 2, v1")
        self.wait_flags([(cKV, (1 << 64) - 1), (cQ, 0xf)])
        self.stamp(7)
        e(f"s_lshl_b32 s20, s{QB_}, 3"); e("s_lshl_b32 s21, s6, 1"); e("s_add_u32 s20, s20, s21"); e("s_lshl_b32 s20, s20, 10")
        e(f"s_lshl_b32 s21, s{H}, 16"); e("s_add_u32 s20, s20, s21")
        e(f"buffer_load_dwordx4 v[{QA}:{QA+3}], v2, s[8:11], s20 offen")
        e(f"buffer_load_dwordx4 v[{QB}:{QB+3}], v2, s[8:11], s20 offen offset:1024")
        e(f"s_lshl_b32 s41, s{H}, 16"); e(f"s_add_u32 s40, s41, {32*65536}"); e("s_lshl_b32 s42, s3, 10")
        e("s_add_u32 s40, s40, s42"); e("s_add_u32 s41, s41, s42")
        def dma_half(half):
            e(f"s_add_u32 s20, s40, {32*half*1024}")
            self.dma(2, 8, "s20", f"s_add_u32 m0, s42, {32*half*1024}")
            e(f"s_add_u32 s20, s41, {32*half*1024}")
            self.dma(2, 12, "s20", f"s_add_u32 m0, s42, {65536 + 32*half*1024}")
        def next_chunk():
            e("s_add_u32 s40, s40, 8192"); e("s_add_u32 s41, s41, 8192"); e("s_add_u32 s42, s42, 8192")
        dma_half(0); dma_half(1); next_chunk()
        if self.MODCRIT < 192: self.mod_late_b()
        lrestart = self.lab("att_restart")
        self.a.label(lrestart)
        for r in range(16):
            e(f"v_mov_b32 v{OA+r}, 0"); e(f"v_mov_b32 v{OB+r}, 0")
        e("s_lshl_b32 s20, s7, 15"); e(f"v_add_u32 v{AK}, s20, v2")
        e("v_lshrrev_b32 v6, 5, v1"); e("v_and_b32 v7, 15, v1"); e("v_lshlrev_b32 v7, 4, v7"); e("v_lshl_add_u32 v7, v6, 8, v7")
        e("s_add_u32 s20, s20, 65536"); e(f"v_add_u32 v{AV}, s20, v7")
        for r in range(8): e(f"v_mov_b32 v{PB+r}, 0")
        if self.BALANCE:
            e("s_lshl_b32 s20, s3, 2"); e(f"s_add_u32 s20, s20, {151552 + 64}"); e("v_mov_b32 v17, s20")
            e("s_xor_b32 s20, s20, 16"); e("v_mov_b32 v18, s20")
            e("v_mov_b32 v19, 0"); e("ds_write_b32 v17, v19")
        e("s_mov_b64 exec, s[30:31]")
        for r in range(8): e(f"v_mov_b32 v{VF+8+r}, 0")
        e("s_mov_b64 exec, -1")
        def rdK(buf, off): e(f"ds_read_b128 v[{KF+4*buf}:{KF+4*buf+3}], v{AK} offset:{off}")
        def rdV(buf, off):
            e("s_mov_b64 exec, s[30:31]")
            e(f"ds_read_b128 v[{VF+8*buf}:{VF+8*buf+3}], v{AV} offset:{off}")
            e(f"ds_read_b128 v[{VF+8*buf+4}:{VF+8*buf+7}], v{AV} offset:{off+512}")
            e("s_mov_b64 exec, -1")
        def qk(S, C, Q, buf): e(f"v_mfma_f32_32x32x16_bf16 v[{S}:{S+15}], v[{KF+4*buf}:{KF+4*buf+3}], v[{Q}:{Q+3}], v[{C}:{C+15}]")
        def pv(O, P, buf, mf): e(f"v_mfma_f32_32x32x16_bf16 v[{O}:{O+15}], v[{VF+8*buf+4*mf}:{VF+8*buf+4*mf+3}], v[{P+4*mf}:{P+4*mf+3}], v[{O}:{O+15}]")
        def step(S, P, first, mid1, mid2, pre=None, extra=None):
            if pre: pre()
            first()
            k = 0
            for j in range(16):
                e(f"v_exp_f32 v{S+j}, v{S+j}")
                if j >= 3 and j % 2 == 1:
                    e(f"v_cvt_pk_bf16_f32 v{P+k}, v{S+2*k}, v{S+2*k+1}"); k += 1
                if j == self.M1 and mid1: mid1()
                if j == 7 and extra: extra()
                if j == self.M2 and mid2: mid2()
            while k < 8:
                e(f"v_cvt_pk_bf16_f32 v{P+k}, v{S+2*k}, v{S+2*k+1}"); k += 1
        e("s_waitcnt vmcnt(0) lgkmcnt(0)")
        e("s_barrier")
        self.stamp(8)
        if self.REPACK:
            rps = self.lab("att_rps")
            e("s_cmp_lg_u32 s33, 0"); e(f"s_cbranch_scc1 {rps}")
            self.repack_store()
            self.a.label(rps)
        rdK(0, 0); rdV(0, 0)
        e("s_waitcnt lgkmcnt(0)")
        cz = {"zero": False}
        def qkz(S, C, Q, buf):
            c = "0" if cz["zero"] else f"v[{C}:{C+15}]"
            e(f"v_mfma_f32_32x32x16_bf16 v[{S}:{S+15}], v[{KF+4*buf}:{KF+4*buf+3}], v[{Q}:{Q+3}], {c}")
        def body(extra):
            step(SA, PA, lambda: qkz(SB, CB, QB, 0), lambda: pv(OB, PB, 1, 0), lambda: pv(OB, PB, 1, 1), pre=lambda: rdK(1, 1024), extra=extra)
            def preB0():
                rdV(1, 1024); e("s_waitcnt lgkmcnt(2)")
                if self.BALANCE:
                    e("v_mov_b32 v19, s34")
                    e("ds_write_b32 v17, v19")
                    e("ds_read_b32 v24, v18")
            step(SB, PB, lambda: qkz(SA, CA, QA, 1), lambda: pv(OA, PA, 0, 0), lambda: pv(OA, PA, 0, 1), pre=preB0)
            step(SA, PA, lambda: qkz(SB, CB, QB, 1), lambda: pv(OB, PB, 0, 0), lambda: pv(OB, PB, 0, 1), pre=lambda: rdK(0, 2048))
            def preB1():
                rdV(0, 2048); e("s_waitcnt lgkmcnt(2)")
                if self.BALANCE:
                    e("v_readfirstlane_b32 s20, v24")
                    e("s_cmp_gt_u32 s34, s20"); e("s_cselect_b32 s20, 0, 1")
                    hi = self.lab("att_hi"); dn_ = self.lab("att_pd")
                    e("s_cmp_eq_u32 s20, 1"); e(f"s_cbranch_scc1 {hi}")
                    e("s_setprio 0"); e(f"s_branch {dn_}")
                    self.a.label(hi)
                    e("s_setprio 1")
                    self.a.label(dn_)
            step(SB, PB, lambda: qkz(SA, CA, QA, 0), lambda: pv(OA, PA, 1, 0), lambda: pv(OA, PA, 1, 1), pre=preB1)
            e(f"v_add_u32 v{AK}, 2048, v{AK}"); e(f"v_add_u32 v{AV}, 2048, v{AV}")
            e("s_add_u32 s34, s34, 1")
        lslowloop = self.lab("att_slowloop"); ltail = self.lab("att_tail")
        qk(SA, CA, QA, 0)
        e("s_mov_b32 s34, 0")
        e("s_cmp_lg_u32 s33, 0"); e(f"s_cbranch_scc1 {lslowloop}")
        cz["zero"] = True
        loop = self.lab("att_loop"); nb = self.lab("att_nobar")
        self.a.label(loop)
        if self.PREFETCH:
            pf = self.lab("att_pf")
            e("s_cmp_lg_u32 s34, 4"); e(f"s_cbranch_scc1 {pf}")
            self.l2_prefetch(170, 172)
            self.a.label(pf)
        e("s_cmp_lg_u32 s34, 3"); e(f"s_cbranch_scc1 {nb}")
        e("s_waitcnt vmcnt(0)")
        e("s_barrier")
        if self.MODCRIT < 192: self.mod_late_flag()
        self.a.label(nb)
        def extra_dma():
            sk = self.lab("att_nd")
            e("s_cmp_ge_u32 s34, 3"); e(f"s_cbranch_scc1 {sk}")
            dma_half(0); dma_half(1); next_chunk()
            self.a.label(sk)
        body(extra_dma)
        e("s_cmp_lt_u32 s34, 5"); e(f"s_cbranch_scc1 {loop}")
        lean = self.lab("att_lean")
        self.a.label(lean)
        body(None)
        e("s_cmp_lt_u32 s34, 16"); e(f"s_cbranch_scc1 {lean}")
        e(f"s_branch {ltail}")
        cz["zero"] = False
        self.a.label(lslowloop)
        body(None)
        e("s_cmp_lt_u32 s34, 16"); e(f"s_cbranch_scc1 {lslowloop}")
        self.a.label(ltail)
        if self.BALANCE:
            e("v_mov_b32 v19, 64"); e("ds_write_b32 v17, v19"); e("s_setprio 0")
        self.stamp(9)
        pv(OB, PB, 1, 0); pv(OB, PB, 1, 1)
        SCR = 131072
        e("s_mul_i32 s20, s3, 2560"); e(f"s_add_u32 s20, s20, {SCR}")
        e("v_add_u32 v6, s20, v2"); e("v_lshlrev_b32 v7, 2, v1"); e("v_add_u32 v7, s20, v7")
        lk1 = self.lab("att_k1"); lx = self.lab("att_x")
        e("s_cmp_eq_u32 s7, 0"); e(f"s_cbranch_scc1 {lk1}")
        e(f"ds_write_b128 v6, v[{OA}:{OA+3}]"); e(f"ds_write_b128 v6, v[{OA+4}:{OA+7}] offset:1024"); e(f"ds_write_b32 v7, v{OA+8} offset:2048")
        for r in range(9): e(f"v_mov_b32 v{OA+r}, v{OB+r}")
        e(f"s_branch {lx}")
        self.a.label(lk1)
        e(f"ds_write_b128 v6, v[{OB}:{OB+3}]"); e(f"ds_write_b128 v6, v[{OB+4}:{OB+7}] offset:1024"); e(f"ds_write_b32 v7, v{OB+8} offset:2048")
        self.a.label(lx)
        e("s_xor_b32 s21, s3, 4"); e("s_mul_i32 s21, s21, 2560"); e(f"s_add_u32 s21, s21, {SCR}")
        e("v_add_u32 v6, s21, v2"); e("v_lshlrev_b32 v7, 2, v1"); e("v_add_u32 v7, s21, v7")
        e("s_waitcnt lgkmcnt(0)"); e("s_barrier")
        e(f"ds_read_b128 v[{SA}:{SA+3}], v6"); e(f"ds_read_b128 v[{SA+4}:{SA+7}], v6 offset:1024"); e(f"ds_read_b32 v{SA+8}, v7 offset:2048")
        e(f"v_mov_b32 v20, {fl(2.0**-24)}"); e(f"v_mov_b32 v21, {fl(2.0**40)}"); e(f"v_mov_b32 v22, 0x7f7fffff")
        e("s_waitcnt lgkmcnt(0)")
        for r in range(9): e(f"v_add_f32 v{OA+r}, v{OA+r}, v{SA+r}")
        e(f"v_max3_f32 v23, |v{OA}|, |v{OA+1}|, |v{OA+2}|"); e(f"v_max3_f32 v23, v23, |v{OA+3}|, |v{OA+4}|")
        e(f"v_max3_f32 v23, v23, |v{OA+5}|, |v{OA+6}|"); e(f"v_max_f32 v23, v23, |v{OA+7}|")
        e(f"v_cmp_ge_f32 vcc, v{OA+8}, v20"); e(f"v_cmp_le_f32 s[36:37], v{OA+8}, v21"); e(f"v_cmp_le_f32 s[38:39], v23, v22")
        e("s_and_b64 s[36:37], s[36:37], vcc"); e("s_and_b64 s[36:37], s[36:37], s[38:39]")
        lok = self.lab("att_ok")
        e("s_cmp_eq_u64 s[36:37], -1"); e(f"s_cbranch_scc1 {lok}")
        e(f"v_mov_b32 v3, {FLAG}"); e("v_mov_b32 v20, 1"); e("ds_write_b32 v3, v20"); e("s_waitcnt lgkmcnt(0)")
        self.a.label(lok)
        e(f"v_rcp_f32 v20, v{OA+8}")
        for r in range(8): e(f"v_mul_f32 v{OA+r}, v{OA+r}, v20")
        for q in range(4): e(f"v_cvt_pk_bf16_f32 v{SB+q}, v{OA+2*q}, v{OA+2*q+1}")
        e("s_barrier")
        e(f"v_mov_b32 v3, {FLAG}"); e("ds_read_b32 v20, v3")
        e(f"s_lshl_b32 s20, s{QB_}, 3"); e("s_lshl_b32 s21, s6, 1"); e("s_add_u32 s20, s20, s21"); e("s_add_u32 s20, s20, s7")
        e("s_lshl_b32 s20, s20, 15"); e(f"s_lshl_b32 s21, s{H}, 10"); e("s_add_u32 s22, s20, s21")
        e("s_waitcnt lgkmcnt(0)")
        e("v_readfirstlane_b32 s20, v20")
        lfin = self.lab("att_fin"); lslow = self.lab("att_slow")
        e("s_cmp_lg_u32 s33, 0"); e(f"s_cbranch_scc1 {lfin}")
        e("s_cmp_lg_u32 s20, 0"); e(f"s_cbranch_scc1 {lslow}")
        self.a.label(lfin)
        e(f"buffer_store_dwordx4 v[{SB}:{SB+3}], v2, s[16:19], s22 offen {ST}")
        e(f"s_branch {end}")
        self.a.label(lslow)
        e("s_mov_b32 s33, 8")
        e("s_lshl_b32 s20, s7, 15"); e(f"v_add_u32 v{AK}, s20, v2")
        e("v_mov_b32 v20, 0xff800000"); e("v_mov_b32 v21, 0xff800000")
        e("s_mov_b32 s34, 0")
        sl = self.lab("att_sl")
        self.a.label(sl)
        rdK(0, 0); e("s_waitcnt lgkmcnt(0)")
        e(f"v_mfma_f32_32x32x16_bf16 v[{SA}:{SA+15}], v[{KF}:{KF+3}], v[{QA}:{QA+3}], 0")
        e(f"v_mfma_f32_32x32x16_bf16 v[{SB}:{SB+15}], v[{KF}:{KF+3}], v[{QB}:{QB+3}], 0")
        for r in range(0, 16, 2): e(f"v_max3_f32 v20, v20, v{SA+r}, v{SA+r+1}")
        for r in range(0, 16, 2): e(f"v_max3_f32 v21, v21, v{SB+r}, v{SB+r+1}")
        e(f"v_add_u32 v{AK}, 1024, v{AK}")
        e("s_add_u32 s34, s34, 1"); e("s_cmp_lt_u32 s34, 32"); e(f"s_cbranch_scc1 {sl}")
        for r in (20, 21):
            e(f"v_mov_b32 v22, v{r}"); e(f"v_permlane32_swap_b32 v{r}, v22"); e(f"v_max_f32 v{r}, v{r}, v22")
        e("s_lshl_b32 s20, s3, 9"); e(f"s_add_u32 s20, s20, {SCR}")
        e("v_lshlrev_b32 v6, 2, v1"); e("v_add_u32 v7, s20, v6")
        e("s_barrier")
        e("ds_write_b32 v7, v20"); e("ds_write_b32 v7, v21 offset:256"); e("s_waitcnt lgkmcnt(0)"); e("s_barrier")
        e("s_xor_b32 s20, s3, 4"); e("s_lshl_b32 s20, s20, 9"); e(f"s_add_u32 s20, s20, {SCR}"); e("v_add_u32 v7, s20, v6")
        e("ds_read_b32 v22, v7"); e("ds_read_b32 v23, v7 offset:256"); e("s_waitcnt lgkmcnt(0)")
        e("v_max_f32 v20, v20, v22"); e("v_max_f32 v21, v21, v23")
        for r in range(16):
            e(f"v_sub_f32 v{CA+r}, 0, v20"); e(f"v_sub_f32 v{CB+r}, 0, v21")
        e("s_barrier")
        e(f"s_branch {lrestart}")
        self.a.label(end)
        self.phase_end()
        self.signal(lambda: (e(f"s_lshl_b32 s46, s{QB_}, 7"), e(f"s_lshl_b32 s47, s{H}, 2"), e("s_add_u32 s46, s46, s47"), e(f"s_add_u32 s46, s46, {F2}")))
        self.stamp(10)

    def proj_wvoff(self):
        e = self.e
        e("v_lshlrev_b32 v2, 4, v1")
        e("v_lshrrev_b32 v3, 3, v1"); e("v_and_b32 v4, 7, v1"); e("v_bfe_u32 v5, v3, 1, 1"); e("v_lshlrev_b32 v5, 2, v5")
        e("v_xor_b32 v4, v4, v5"); e("v_lshlrev_b32 v3, 10, v3"); e("v_lshl_add_u32 v3, v4, 4, v3")
        e("s_lshl_b32 s20, s5, 7"); e("v_add_u32 v3, s20, v3")

    def proj_epi_addr(self):
        e = self.e
        e("v_lshrrev_b32 v14, 2, v1"); e("v_and_b32 v15, 3, v1")
        e("s_and_b32 s20, s3, 1"); e("s_lshl_b32 s20, s20, 5"); e("s_lshl_b32 s21, s4, 6"); e("s_add_u32 s20, s20, s21")
        e("s_lshr_b32 s21, s3, 2"); e("s_lshl_b32 s21, s21, 4"); e("s_add_u32 s36, s20, s21")
        e("v_add_u32 v16, s36, v14"); e("v_lshlrev_b32 v16, 10, v16"); e("v_lshl_add_u32 v16, v15, 4, v16")
        e("s_bfe_u32 s20, s3, 0x10001"); e("s_lshl_b32 s20, s20, 6"); e("s_lshl_b32 s21, s5, 7"); e("s_add_u32 s32, s20, s21")
        e("v_lshlrev_b32 v17, 5, v15"); e("s_lshl_b32 s33, s32, 1")

    def proj_gate_loads(self, gate_chunk):
        e = self.e
        for kq in range(4):
            e(f"s_add_u32 s20, s33, {kq*12288 + gate_chunk*2048}")
            for hh in range(2):
                e(f"buffer_load_dwordx4 v[{160+8*kq+4*hh}:{163+8*kq+4*hh}], v17, s[28:31], s20 offen offset:{16*hh}")

    def proj_addr(self, natural, xbase, wbase):
        e = self.e
        e("s_and_b32 s20, s3, 1"); e("s_lshl_b32 s20, s20, 13"); e("s_lshr_b32 s21, s3, 2"); e("s_lshl_b32 s22, s21, 12")
        e("s_add_u32 s20, s20, s22"); e(f"s_add_u32 s20, s20, {xbase}"); e("v_add_u32 v8, s20, v2")
        e("v_lshrrev_b32 v4, 4, v1"); e("v_and_b32 v5, 15, v1"); e("v_lshrrev_b32 v6, 2, v5"); e("v_and_b32 v7, 3, v5")
        e("v_lshrrev_b32 v10, 1, v4"); e("v_and_b32 v11, 1, v4")
        e(f"v_lshl_add_u32 v12, v10, {3 if natural else 2}, v6"); e("v_lshlrev_b32 v12, 7, v12")
        e("v_bfe_u32 v13, v6, 1, 1"); e("s_bfe_u32 s20, s3, 0x10001"); e("v_xor_b32 v13, s20, v13")
        e("v_lshl_add_u32 v12, v13, 6, v12"); e("v_lshl_add_u32 v12, v11, 5, v12"); e("v_lshl_add_u32 v12, v7, 3, v12")
        e("s_lshl_b32 s22, s21, 13"); e(f"s_add_u32 s22, s22, {wbase}"); e("v_add_u32 v9, s22, v12")

    def proj_chunk(self, ACC, xoff, wreg, woff, natural):
        e = self.e
        tstep = (4 if natural else 8) * 128
        for ks in range(4):
            b = 96 + 8*ks
            e(f"ds_read_b128 v[{b}:{b+3}], v8 offset:{xoff + ks*1024}")
            e(f"ds_read_b64_tr_b16 v[{b+4}:{b+5}], v{wreg} offset:{woff + ks*2048}")
            e(f"ds_read_b64_tr_b16 v[{b+6}:{b+7}], v{wreg} offset:{woff + ks*2048 + tstep}")
        for ks in range(4):
            b = 96 + 8*ks
            e(f"s_waitcnt lgkmcnt({3*(3-ks)})")
            e(f"v_mfma_f32_32x32x16_bf16 v[{ACC}:{ACC+15}], v[{b+4}:{b+7}], v[{b}:{b+3}], v[{ACC}:{ACC+15}]")

    def proj_epilogue(self, ACC, srd_out, flags, stats):
        e = self.e
        e("s_barrier")
        e("s_mul_i32 s20, s3, 4608")
        e("v_and_b32 v18, 31, v1"); e("v_mul_u32_u24 v18, 144, v18"); e("v_lshrrev_b32 v19, 5, v1")
        e("v_lshl_add_u32 v18, v19, 4, v18"); e("v_add_u32 v18, s20, v18")
        for g in range(4): e(f"ds_write_b128 v18, v[{ACC+4*g}:{ACC+4*g+3}] offset:{32*g}")
        e("s_waitcnt vmcnt(0)")
        for q in range(4):
            for kq in (1,):
                e(f"v_pk_add_f32 v[{160+2*q}:{161+2*q}], v[{160+2*q}:{161+2*q}], v[{168+2*q}:{169+2*q}]")
                e(f"v_pk_add_f32 v[{176+2*q}:{177+2*q}], v[{176+2*q}:{177+2*q}], v[{184+2*q}:{185+2*q}]")
        for q in range(4):
            e(f"v_pk_add_f32 v[{160+2*q}:{161+2*q}], v[{160+2*q}:{161+2*q}], v[{176+2*q}:{177+2*q}]")
        for q in range(4):
            e(f"v_cvt_pk_bf16_f32 v{168+q}, v{160+2*q}, v{161+2*q}")
        for q in range(4):
            e(f"v_lshlrev_b32 v{160+2*q}, 16, v{168+q}"); e(f"v_and_b32 v{161+2*q}, 0xffff0000, v{168+q}")
        e("s_and_b32 s20, s3, 3"); e("s_mul_i32 s20, s20, 4608"); e("s_lshr_b32 s21, s3, 2"); e(f"s_mul_i32 s21, s21, {16*144}")
        e("s_add_u32 s20, s20, s21")
        e("v_mul_u32_u24 v18, 144, v14"); e("v_lshl_add_u32 v18, v15, 5, v18"); e("v_add_u32 v18, s20, v18")
        e("s_waitcnt lgkmcnt(0)"); e("s_barrier")
        e("ds_read_b128 v[48:51], v18"); e("ds_read_b128 v[52:55], v18 offset:16")
        e(f"ds_read_b128 v[56:59], v18 offset:{4*4608}"); e(f"ds_read_b128 v[60:63], v18 offset:{4*4608+16}")
        e("s_waitcnt lgkmcnt(0)")
        for q in range(4):
            e(f"v_pk_add_f32 v[{48+2*q}:{49+2*q}], v[{48+2*q}:{49+2*q}], v[{56+2*q}:{57+2*q}]")
        for q in range(4):
            e(f"v_lshlrev_b32 v{56+2*q}, 16, v{32+q}"); e(f"v_and_b32 v{57+2*q}, 0xffff0000, v{32+q}")
        for q in range(4):
            e(f"v_pk_fma_f32 v[{56+2*q}:{57+2*q}], v[{160+2*q}:{161+2*q}], v[{48+2*q}:{49+2*q}], v[{56+2*q}:{57+2*q}]")
        for q in range(4):
            e(f"v_cvt_pk_bf16_f32 v{32+q}, v{56+2*q}, v{57+2*q}")
        e(f"buffer_store_dwordx4 v[32:35], v16, {sr(srd_out,4)}, s32 offen {flags}")
        if stats:
            e("v_pk_add_f32 v[48:49], v[56:57], v[58:59]"); e("v_pk_add_f32 v[50:51], v[60:61], v[62:63]")
            e("v_pk_add_f32 v[48:49], v[48:49], v[50:51]"); e("v_add_f32 v48, v48, v49")
            for m in ("quad_perm:[1,0,3,2]", "quad_perm:[2,3,0,1]"):
                e(f"v_add_f32_dpp v48, v48, v48 {m} row_mask:0xf bank_mask:0xf")
            e(f"v_mul_f32 v48, {fl(1.0/32)}, v48")
            e("v_sub_f32 v50, 0, v48"); e("v_mov_b32 v51, v50")
            for q in range(4): e(f"v_pk_add_f32 v[{56+2*q}:{57+2*q}], v[{56+2*q}:{57+2*q}], v[50:51]")
            e("v_pk_mul_f32 v[52:53], v[56:57], v[56:57]")
            for q in range(1, 4): e(f"v_pk_fma_f32 v[52:53], v[{56+2*q}:{57+2*q}], v[{56+2*q}:{57+2*q}], v[52:53]")
            e("v_add_f32 v49, v52, v53")
            for m in ("quad_perm:[1,0,3,2]", "quad_perm:[2,3,0,1]"):
                e(f"v_add_f32_dpp v49, v49, v49 {m} row_mask:0xf bank_mask:0xf")
            self.srd(40, P_WS, WS_STX, 2048*128)
            e("v_add_u32 v18, s36, v14"); e("v_lshlrev_b32 v18, 7, v18")
            e("s_bfe_u32 s20, s3, 0x10001"); e("s_lshl_b32 s21, s5, 1"); e("s_add_u32 s20, s20, s21"); e("s_lshl_b32 s20, s20, 3")
            e("v_cmp_eq_u32 vcc, 0, v15"); e("s_and_saveexec_b64 s[44:45], vcc")
            e(f"buffer_store_dwordx2 v[48:49], v18, s[40:43], s20 offen {ST}")
            e("s_mov_b64 exec, s[44:45]")

    def p3(self):
        e = self.e
        self.srd(8, P_WS, WS_O, 2*MB); self.srd(12, P_WO, 0, 512*512*2)
        self.srd(16, P_X, 0, 2*MB); self.srd(24, P_WS, WS_X1, 2*MB); self.srd(28, P_WS, WS_MOD, 49152)
        self.proj_wvoff()
        self.proj_addr(False, 65536, 0)
        self.proj_epi_addr()
        def pre3():
            for m in range(10):
                sk = None
                if m == 9:
                    sk = self.lab("p3w"); e("s_cmp_lg_u32 s3, 0"); e(f"s_cbranch_scc1 {sk}")
                e(f"s_add_u32 s21, s3, {7*m}"); e("s_lshl_b32 s20, s21, 13"); e("s_lshl_b32 s21, s21, 10")
                self.dma(3, 12, "s20", "s_mov_b32 m0, s21")
                if sk: self.a.label(sk)
        def cO():
            e("s_lshr_b32 s46, s4, 2"); e("s_lshl_b32 s46, s46, 7"); e(f"s_add_u32 s46, s46, {F2}"); e("v_lshlrev_b32 v251, 2, v1")
        def cM(k):
            def f():
                e("s_and_b32 s46, s2, 7"); e("s_lshl_b32 s46, s46, 10"); e(f"s_add_u32 s46, s46, {F0 + 256*k}"); e("v_lshlrev_b32 v251, 2, v1")
            return f
        self.wait_flags([(cM(1), (1 << 64) - 1), (cM(2), (1 << 64) - 1), (cO, 0xffffffff)], pre=pre3, w7_after=False)
        self.stamp(11)
        e(f"s_mul_i32 s6, s4, {2*32*1024}"); e("s_lshl_b32 s21, s3, 10"); e("s_add_u32 s6, s6, s21")
        for c in range(4):
            for tt in range(2):
                e(f"s_add_u32 s20, s6, {tt*32*1024 + c*8*1024}")
                self.dma(2, 8, "s20", f"s_add_u32 m0, s21, {65536 + c*16384 + tt*8192}")
            if c < 3: e("s_barrier")
        e("buffer_load_dwordx4 v[32:35], v16, s[16:19], s32 offen")
        self.proj_gate_loads(2)
        ACC = 64
        for r in range(16): e(f"v_mov_b32 v{ACC+r}, 0")
        for c in range(4):
            e(f"s_waitcnt vmcnt({2*(3-c) + 9})"); e("s_barrier")
            if c == 0: self.stamp(35)
            self.proj_chunk(ACC, c*16384, 9, c*16384, False)
        self.stamp(36)
        self.proj_epilogue(ACC, 24, ST, True)
        self.stamp(37)
        self.phase_end()
        self.signal(lambda: (e("s_lshl_b32 s46, s4, 7"), e("s_lshl_b32 s47, s5, 2"), e("s_add_u32 s46, s46, s47"), e(f"s_add_u32 s46, s46, {F3}")))
        self.stamp(12)

    def p4(self):
        e = self.e
        RING = 65536; SL = 14336; D = 6; MODL = RING + D*SL
        PART = 155648
        Z1L = 135168
        self.srd(8, P_WS, WS_X1, 2*MB)
        self.srd(12, P_WS, WS_MOD, 49152)
        self.srd(16, P_WIN, 0, 512*1792*2)
        self.srd(28, P_WS, WS_Z2, 56*64*1024)
        self.srd(36, P_WS, WS_ST, 32*8*64*16)
        for m in range(2):
            d = 192 + m
            e(f"s_lshl_b32 s20, s3, 6"); e(f"s_add_u32 s20, s20, {512*m}")
            e(f"v_add_u32 v200, s20, v1")
            e(f"v_mul_u32_u24 v201, 4682, v200"); e(f"v_lshrrev_b32 v201, 16, v201")
            e(f"v_mul_u32_u24 v202, 14, v201"); e(f"v_sub_u32 v202, v200, v202")
            e(f"v_lshrrev_b32 v203, 1, v202")
            e(f"v_xor_b32 v204, 4, v203"); e(f"v_cmp_eq_u32 vcc, 3, v203"); e(f"v_cndmask_b32 v204, v204, v203, vcc")
            e(f"v_bfe_u32 v205, v201, 3, 1"); e(f"v_cmp_eq_u32 vcc, 1, v205"); e(f"v_cndmask_b32 v203, v203, v204, vcc")
            e(f"v_and_b32 v202, 1, v202"); e(f"v_lshl_or_b32 v202, v203, 1, v202")
            e(f"v_mul_u32_u24 v201, 3584, v201"); e(f"v_lshl_add_u32 v{d}, v202, 4, v201")
        e("s_lshl_b32 s7, s3, 10"); e(f"s_add_u32 s7, s7, {RING}")
        e("s_cmp_ge_u32 s3, 6"); e("s_cselect_b64 vcc, -1, 0"); e("v_cndmask_b32 v194, v193, v192, vcc")
        e("s_cselect_b32 s35, 0, 8192"); e("s_add_u32 s35, s35, s7")
        e("s_mul_i32 s33, s5, 224"); e("s_add_u32 s34, s33, 1792")
        def src(stage):
            e(f"s_add_u32 s23, s{34 if stage < 8 else 33}, {(stage % 8)*64*3584}")
        def issue(stage, cnt):
            src(stage)
            for m in range(cnt):
                self.dma(192+m, 16, "s23", f"s_add_u32 m0, s7, {(stage % D)*SL + m*8192}")
        def pre4():
            self.mod_issue(12, 3)
            for st in range(D-1):
                src(st)
                self.dma(192, 16, "s23", f"s_add_u32 m0, s7, {st*SL}")
                self.dma(194, 16, "s23", f"s_add_u32 m0, s35, {st*SL}")
            e(f"s_waitcnt vmcnt({2*(D-1)})")
            self.mod_finish(MODL)
        e("v_lshrrev_b32 v3, 4, v1"); e("v_and_b32 v4, 15, v1"); e("v_lshrrev_b32 v5, 2, v4"); e("v_and_b32 v6, 3, v4")
        e("v_lshl_add_u32 v7, v3, 3, v5"); e("v_mul_u32_u24 v7, 224, v7"); e("v_lshl_add_u32 v7, v6, 3, v7"); e(f"v_add_u32 v7, {RING}, v7")
        e("v_and_b32 v8, 1, v3"); e("v_cmp_eq_u32 vcc, 1, v8")
        e("s_lshr_b32 s20, s3, 1")
        for c in range(2):
            e(f"s_lshl_b32 s21, s20, 1"); e(f"s_add_u32 s21, s21, {c}")
            e("s_xor_b32 s22, s21, 4"); e("s_cmp_eq_u32 s21, 3"); e("s_cselect_b32 s22, s21, s22")
            e("v_mov_b32 v9, s21"); e("v_mov_b32 v10, s22"); e("v_cndmask_b32 v9, v9, v10, vcc")
            e(f"v_lshl_add_u32 v{200+c}, v9, 5, v7"); e(f"v_add_u32 v{202+c}, {4*SL}, v{200+c}")
        e("s_and_b32 s21, s3, 1"); e("s_lshl_b32 s21, s21, 5"); e("v_add_u32 v9, s21, v4"); e("v_lshlrev_b32 v9, 10, v9")
        for m in range(4):
            e(f"v_add_u32 v10, {4*m}, v3"); e(f"v_xor_b32 v10, v10, v4"); e(f"v_lshl_add_u32 v{208+m}, v10, 4, v9")
        def cX():
            e("s_lshl_b32 s46, s4, 7"); e(f"s_add_u32 s46, s46, {F3}"); e("v_lshlrev_b32 v251, 2, v1")
        self.wait_flags([(cX, 0xff)], pre=lambda: (pre4(), e("s_waitcnt lgkmcnt(0)")))
        self.stamp(13)
        e("s_lshl_b32 s6, s4, 16")
        self.ln_loads(8, 6)
        self.srd(40, P_WS, WS_STX, 2048*128)
        e("s_lshl_b32 s20, s4, 6"); e("s_lshl_b32 s21, s3, 3"); e("s_add_u32 s20, s20, s21"); e("s_lshl_b32 s20, s20, 7")
        e("v_lshlrev_b32 v6, 7, v3"); e("v_lshl_add_u32 v6, v4, 3, v6")
        e("buffer_load_dwordx2 v[8:9], v6, s[40:43], s20 offen")
        e("buffer_load_dwordx2 v[10:11], v6, s[40:43], s20 offen offset:512")
        e("s_waitcnt vmcnt(0)")
        self.stamp(14)
        self.ln2_prepare()
        e("s_barrier")
        self.ln_finish(MODL)
        ACCA, ACCB = 212, 228
        for r in range(32): e(f"v_mov_b32 v{ACCA+r}, 0")
        e("s_waitcnt lgkmcnt(0)"); e("s_barrier")
        self.stamp(15)
        NS = 16
        c0 = -2.0*math.sqrt(2.0/math.pi)*LOG2E
        c1 = c0*0.044715
        def gelu(accs):
            e(f"s_mov_b32 s20, {fl(c1)}"); e(f"v_mov_b32 v20, {fl(c0)}")
            for i0 in range(0, len(accs), 4):
                grp = accs[i0:i0+4]
                for k, z in enumerate(grp): e(f"v_mul_f32 v{24+k}, v{z}, v{z}")
                for k, z in enumerate(grp): e(f"v_fma_f32 v{24+k}, v{24+k}, s20, v20")
                for k, z in enumerate(grp): e(f"v_mul_f32 v{24+k}, v{24+k}, v{z}")
                for k, z in enumerate(grp): e(f"v_exp_f32 v{24+k}, v{24+k}")
                for k, z in enumerate(grp): e(f"v_add_f32 v{24+k}, 1.0, v{24+k}")
                for k, z in enumerate(grp): e(f"v_rcp_f32 v{24+k}, v{24+k}")
                for k, z in enumerate(grp): e(f"v_mul_f32 v{z}, v{z}, v{24+k}")
        v1l = self.lab("win_v1"); join = self.lab("win_join")
        e("s_cmp_ge_u32 s3, 6"); e(f"s_cbranch_scc1 {v1l}")
        for var in range(2):
            nt = 2 if var == 0 else 1
            cnt = 2 if var == 0 else 1
            if var == 1: self.a.label(v1l)
            def reads(stage, ks):
                n = 2*(stage % 8) + ks; buf = ks; slot = stage % D
                out = []
                if stage < 8:
                    for rt in range(2):
                        b = 64 + 8*n + 4*rt
                        out.append(f"ds_read_b128 v[{b}:{b+3}], v{208 + (n & 3)} offset:{rt*16384 + (n >> 2)*256}")
                for c in range(nt):
                    b = 32 + 16*(stage % 2) + 8*ks + 4*c
                    areg, off = (200 + c, slot*SL) if slot < 4 else (202 + c, (slot-4)*SL)
                    for t in range(2):
                        out.append(f"ds_read_b64_tr_b16 v[{b+2*t}:{b+2*t+1}], v{areg} offset:{off + (32*ks + 4*t)*224}")
                return out
            def mfmas(stage, ks):
                buf = ks; ACC = ACCA if stage < 8 else ACCB
                n = 2*(stage % 8) + ks
                out = []
                for c in range(nt):
                    for rt in range(2):
                        acc = ACC + 4*(rt*2 + c)
                        x = 64 + 8*n + 4*rt; w = 32 + 16*(stage % 2) + 8*ks + 4*c
                        A, B = (x, w) if stage < 8 else (w, x)
                        out.append(f"v_mfma_f32_16x16x32_bf16 v[{acc}:{acc+3}], v[{A}:{A+3}], v[{B}:{B+3}], v[{acc}:{acc+3}]")
                return out
            def inter(ms, rs):
                ri = 0
                for m in ms:
                    e(m)
                    for _ in range(2):
                        if ri < len(rs): e(rs[ri]); ri += 1
                for r in rs[ri:]: e(r)
            for r in reads(0, 0): e(r)
            for r in reads(0, 1): e(r)
            for n in range(NS):
                if n + 1 < NS:
                    if n + 1 >= D - 1:
                        allowed = cnt * len([s_ for s_ in range(max(n+2, D-1), min(n+D-1, NS))])
                        e(f"s_waitcnt vmcnt({allowed})")
                    e("s_barrier")
                if n == 8 and var == 0:
                    nx = self.lab("win_pub")
                    e("s_cmp_lg_u32 s3, 0"); e(f"s_cbranch_scc1 {nx}")
                    e("v_lshlrev_b32 v5, 3, v1"); e(f"v_add_u32 v5, {PART}, v5")
                    for q in range(4): e(f"ds_read_b64 v[{8+2*q}:{9+2*q}], v5 offset:{512*q}")
                    e("s_waitcnt lgkmcnt(0)")
                    e("v_pk_add_f32 v[8:9], v[8:9], v[10:11]"); e("v_pk_add_f32 v[12:13], v[12:13], v[14:15]")
                    e("v_pk_add_f32 v[8:9], v[8:9], v[12:13]")
                    e(f"v_mov_b32 v10, s{S_NONCE}"); e(f"v_mov_b32 v11, s{S_NONCE}")
                    e("v_lshlrev_b32 v6, 4, v1")
                    e("s_lshl_b32 s20, s4, 13"); e("s_lshl_b32 s21, s5, 10"); e("s_add_u32 s21, s21, s20")
                    e(f"buffer_store_dwordx4 v[8:11], v6, s[36:39], s21 offen {ST}")
                    self.a.label(nx)
                full = (n == 8)
                r0 = reads(n + 1, 0) if n + 1 < NS else []
                r1 = reads(n + 1, 1) if n + 1 < NS else []
                e(f"s_waitcnt lgkmcnt({0 if full else len(reads(n, 1))})")
                inter(mfmas(n, 0), r0)
                e(f"s_waitcnt lgkmcnt({len(r0)})")
                inter(mfmas(n, 1), r1)
                st = n + D - 1
                if st < NS: issue(st, cnt)
                if n == 7:
                    self.stamp(31)
                    accs = [ACCA + 4*(rt*2 + c) + r for c in range(nt) for rt in range(2) for r in range(4)]
                    gelu(accs)
                    e("v_lshrrev_b32 v3, 4, v1"); e("v_and_b32 v4, 15, v1")
                    regs = []
                    for rt in range(2):
                        for r in range(4):
                            sreg = (8, 10, 12, 14, 16, 18, 28, 30)[rt*4 + r]
                            a0 = ACCA + 4*(rt*2) + r
                            e(f"v_mov_b32 v{sreg}, v{a0}"); e(f"v_mul_f32 v{sreg+1}, v{a0}, v{a0}")
                            for c in range(1, nt):
                                a_ = ACCA + 4*(rt*2 + c) + r
                                e(f"v_add_f32 v{sreg}, v{sreg}, v{a_}"); e(f"v_fmac_f32 v{sreg+1}, v{a_}, v{a_}")
                            regs += [sreg, sreg+1]
                    self.dpp_reduce16(regs)
                    e("s_and_b32 s20, s3, 1"); e("s_lshl_b32 s20, s20, 8"); e("s_lshr_b32 s21, s3, 1"); e("s_lshl_b32 s21, s21, 9")
                    e("s_add_u32 s20, s20, s21"); e(f"s_add_u32 s20, s20, {PART}")
                    e("v_lshlrev_b32 v5, 5, v3"); e("v_add_u32 v5, s20, v5")
                    e("v_cmp_eq_u32 vcc, 0, v4"); e("s_and_saveexec_b64 s[44:45], vcc")
                    for rt in range(2):
                        for r in range(4):
                            sreg = (8, 10, 12, 14, 16, 18, 28, 30)[rt*4 + r]
                            e(f"ds_write_b64 v5, v[{sreg}:{sreg+1}] offset:{rt*128 + r*8}")
                    e("s_mov_b64 exec, s[44:45]")
                    e("s_waitcnt lgkmcnt(0)") if False else None
                    self.stamp(33)
                if n == 7:
                    e("s_waitcnt lgkmcnt(0)")
            self.stamp(32)
            accs = [ACCB + 4*(rt*2 + c) + r for c in range(nt) for rt in range(2) for r in range(4)]
            gelu(accs)
            e("s_and_b32 s22, s3, 1"); e(f"s_mul_i32 s22, s22, {2*7*512}"); e("s_lshr_b32 s21, s3, 1"); e("s_lshl_b32 s21, s21, 10")
            e("s_add_u32 s22, s22, s21"); e(f"s_add_u32 s22, s22, {Z1L}")
            e("v_lshlrev_b32 v7, 3, v1"); e("v_add_u32 v7, s22, v7")
            for c in range(nt):
                for rt in range(2):
                    acc = ACCB + 4*(rt*2 + c); pk = 32 + 2*(rt + 2*c)
                    e(f"v_cvt_pk_bf16_f32 v{pk}, v{acc}, v{acc+1}"); e(f"v_cvt_pk_bf16_f32 v{pk+1}, v{acc+2}, v{acc+3}")
                    e(f"ds_write_b64 v7, v[{pk}:{pk+1}] offset:{rt*7*512 + c*512}")
            if var == 0:
                nx = self.lab("win_nx")
                e("s_cmp_lg_u32 s3, 0"); e(f"s_cbranch_scc1 {nx}")
                e("v_lshlrev_b32 v5, 3, v1"); e(f"v_add_u32 v5, {PART}, v5")
                e("v_lshlrev_b32 v6, 4, v1"); e("s_lshl_b32 s20, s4, 13")
                e("s_mov_b32 s47, 0")
                lp = self.lab("stp"); dn = self.lab("std")
                self.a.label(lp)
                for jj in range(8):
                    e(f"s_add_u32 s21, s20, {jj*1024}")
                    e(f"buffer_load_dwordx4 v[{96+4*jj}:{99+4*jj}], v6, s[36:39], s21 offen {ST}")
                e("s_add_u32 s47, s47, 1"); e(f"s_cmp_gt_u32 s47, {SPIN_CAP}"); e(f"s_cbranch_scc1 {dn}")
                e("s_waitcnt vmcnt(0)")
                e("s_mov_b64 s[42:43], -1")
                for jj in range(8):
                    e(f"v_cmp_eq_u32 vcc, s{S_NONCE}, v{98+4*jj}"); e("s_and_b64 s[42:43], s[42:43], vcc")
                    e(f"v_cmp_eq_u32 vcc, s{S_NONCE}, v{99+4*jj}"); e("s_and_b64 s[42:43], s[42:43], vcc")
                e("s_cmp_eq_u64 s[42:43], -1")
                if not Gen.NOHOP: e(f"s_cbranch_scc0 {lp}")
                self.a.label(dn)
                self._where = "stat granules"; self.diag(47, 98)
                e("s_waitcnt vmcnt(0)")
                for jj in range(1, 8):
                    e(f"v_add_f32 v96, v96, v{96+4*jj}"); e(f"v_add_f32 v97, v97, v{97+4*jj}")
                e(f"v_mul_f32 v96, {fl(1.0/896)}, v96"); e(f"v_mul_f32 v97, {fl(1.0/896)}, v97")
                e("v_fma_f32 v97, -v96, v96, v97"); e("v_max_f32 v97, 0, v97"); e(f"v_add_f32 v97, {fl(1e-5)}, v97")
                e("v_rsq_f32 v99, v97"); e("v_mul_f32 v98, v96, v99"); e("v_sub_f32 v98, 0, v98")
                e(f"ds_write_b64 v5, v[98:99] offset:2048")
                self.a.label(nx)
            e("s_waitcnt lgkmcnt(0)"); e("s_barrier")
            self.stamp(34)
            e("v_lshrrev_b32 v3, 4, v1"); e("v_and_b32 v4, 15, v1")
            e("s_and_b32 s20, s3, 1"); e("s_lshl_b32 s20, s20, 8"); e(f"s_add_u32 s20, s20, {PART + 2048}")
            e("v_lshlrev_b32 v5, 5, v3"); e("v_add_u32 v5, s20, v5")
            for rt in range(2):
                e(f"ds_read_b128 v[{64+8*rt}:{67+8*rt}], v5 offset:{rt*128}")
                e(f"ds_read_b128 v[{68+8*rt}:{71+8*rt}], v5 offset:{rt*128+16}")
            e("v_and_b32 v6, 1, v3"); e("v_lshlrev_b32 v5, 9, v6"); e("v_lshrrev_b32 v6, 1, v3"); e("v_lshl_add_u32 v5, v6, 8, v5")
            e("v_lshl_add_u32 v5, v4, 4, v5")
            e("s_and_b32 s20, s3, 1"); e("s_lshl_b32 s21, s4, 1"); e("s_add_u32 s20, s20, s21"); e("s_lshl_b32 s20, s20, 10")
            e("s_mul_i32 s21, s5, 7"); e("s_lshr_b32 s22, s3, 1"); e("s_lshl_b32 s22, s22, 1"); e("s_add_u32 s21, s21, s22")
            e("s_lshl_b32 s21, s21, 16"); e("s_add_u32 s20, s20, s21")
            e("s_waitcnt lgkmcnt(0)")
            for c in range(nt):
                e(f"s_add_u32 s21, s20, {c*65536}")
                pk = 32 + 4*c
                for rt in range(2):
                    acc = ACCA + 4*(rt*2 + c)
                    for r in range(4):
                        e(f"v_fma_f32 v{acc+r}, v{acc+r}, v{64+8*rt+2*r+1}, v{64+8*rt+2*r}")
                    e(f"v_cvt_pk_bf16_f32 v{pk+2*rt}, v{acc}, v{acc+1}"); e(f"v_cvt_pk_bf16_f32 v{pk+2*rt+1}, v{acc+2}, v{acc+3}")
                e(f"v_permlane16_swap_b32 v{pk}, v{pk+2}"); e(f"v_permlane16_swap_b32 v{pk+1}, v{pk+3}")
                e(f"buffer_store_dwordx4 v[{pk}:{pk+3}], v5, s[28:31], s21 offen {ST}")
            if var == 0: e(f"s_branch {join}")
        self.a.label(join)
        self.phase_end()
        self.signal(lambda: (e("s_lshl_b32 s46, s5, 7"), e("s_lshl_b32 s47, s4, 2"), e("s_add_u32 s46, s46, s47"), e(f"s_add_u32 s46, s46, {F4}")))
        self.stamp(16)

    def p5(self):
        e = self.e
        end = self.lab("sp_end")
        Z1L = 135168
        self.srd(8, P_WSP, 0, 2048*2048*2)
        self.srd(12, P_WS, WS_Z2, 56*64*1024)
        self.srd(24, P_WS, WS_Y, 64*56*1024)
        self.srd(28, P_BSP, 0, 4096)
        SL = 22528; D = self.SPD; NST = 32
        e(f"s_mov_b32 s44, {(-(D-1)*SL) & 0xffffffff}"); e(f"s_mov_b32 s45, {SL}")
        e("v_lshlrev_b32 v2, 4, v1"); e("v_lshrrev_b32 v3, 4, v1"); e("v_and_b32 v4, 15, v1")
        def cZ():
            e("s_lshl_b32 s46, s5, 7"); e(f"s_add_u32 s46, s46, {F4}"); e("v_lshlrev_b32 v251, 2, v1")
        lp = self.lab("sp_prod")
        e("s_cmp_ge_u32 s3, 4"); e(f"s_cbranch_scc1 {lp}")
        e("s_and_b32 s20, s3, 1"); e("s_lshl_b32 s21, s4, 2"); e("s_lshl_b32 s22, s20, 1"); e("s_add_u32 s21, s21, s22")
        e("v_lshlrev_b32 v5, 1, v4"); e("s_lshl_b32 s22, s21, 5")
        e("buffer_load_ushort v20, v5, s[28:31], s22 offen"); e("buffer_load_ushort v21, v5, s[28:31], s22 offen offset:32")
        e("s_bfe_u32 s23, s3, 0x10001"); e("s_lshl_b32 s23, s23, 2")
        e("v_lshrrev_b32 v7, 1, v3"); e("v_lshlrev_b32 v7, 9, v7"); e("v_lshl_add_u32 v7, v4, 4, v7")
        e("v_and_b32 v8, 1, v3"); e("v_lshl_add_u32 v7, v8, 3, v7")
        e("s_lshl_b32 s21, s4, 1"); e("s_add_u32 s21, s21, s20"); e("s_mul_i32 s21, s21, 56")
        e("s_mul_i32 s6, s5, 7"); e("s_add_u32 s21, s21, s6"); e("s_add_u32 s21, s21, s23"); e("s_lshl_b32 s35, s21, 10")
        e(f"s_mul_i32 s6, s20, {2*7*512}"); e("s_lshl_b32 s21, s23, 9"); e("s_add_u32 s6, s6, s21"); e(f"s_add_u32 s6, s6, {Z1L}")
        e("v_lshlrev_b32 v9, 3, v1"); e("v_add_u32 v9, s6, v9")
        e("s_and_b32 s20, s3, 1"); e("s_lshl_b32 s20, s20, 12"); e("v_lshlrev_b32 v5, 7, v4"); e("v_add_u32 v5, s20, v5")
        e("v_lshrrev_b32 v8, 1, v4")
        for ks in range(2):
            e(f"v_add_u32 v6, {4*ks}, v3"); e(f"v_xor_b32 v6, v6, v8"); e(f"v_lshl_add_u32 v{200+ks}, v6, 4, v5")
        e("s_bfe_u32 s20, s3, 0x10001"); e("s_lshl_b32 s20, s20, 13"); e("s_add_u32 s20, s20, 8192"); e("v_add_u32 v202, s20, v2")
        ZR = 176
        for tt in range(2):
            for f in range(4):
                b = ZR + 2*(tt*4 + f)
                e(f"ds_read_b64 v[{b}:{b+1}], v9 offset:{tt*7*512 + f*512}")
        e("s_waitcnt lgkmcnt(0)")
        ACC = 128
        for r in range(32): e(f"v_mov_b32 v{ACC+r}, 0")
        e("s_barrier")
        LOOK = self.ZLOOK
        if self.ZTOUCH:
            e("s_and_b32 s20, s4, 7"); e("s_mul_i32 s20, s20, 14"); e("v_add_u32 v196, s20, v1")
            e("v_lshrrev_b32 v197, 4, v196"); e("v_lshlrev_b32 v197, 16, v197")
            e("v_bfe_u32 v198, v196, 3, 1"); e("v_lshl_add_u32 v197, v198, 10, v197")
            e("v_and_b32 v198, 7, v196"); e("v_lshl_add_u32 v196, v198, 7, v197")
            e("s_mul_i32 s43, s5, 0x70000"); e(f"s_add_u32 s43, s43, {(D-1)*2048}")
            e("s_cmp_eq_u32 s3, 0"); e("s_cselect_b32 s42, 0x3fff, 0")
            tk = self.lab("sp_tk")
            e("s_cmp_lg_u32 s3, 0"); e(f"s_cbranch_scc1 {tk}")
            e("s_mov_b64 exec, 0x3fff")
            for i in range(LOOK - (D-1)):
                e(f"s_add_u32 s20, s43, {i*2048}")
                e("buffer_load_dword v199, v196, s[12:15], s20 offen")
            e("s_mov_b64 exec, -1")
            self.a.label(tk)
            e(f"s_add_u32 s43, s43, {(LOOK-(D-1))*2048}")
        l3 = self.lab("sp_3"); lepi = self.lab("sp_epi")
        e("s_barrier")
        self.stamp(18)
        e("s_bitcmp1_b32 s3, 1"); e(f"s_cbranch_scc1 {l3}")
        for jj in range(2):
            nf = 4 if jj == 0 else 3
            if jj == 1: self.a.label(l3)
            def reads(ks, buf, nxt):
                b = 32 + 24*buf; ab = 203 if nxt else 200
                for tt in range(2): yield f"ds_read_b128 v[{b+4*tt}:{b+4*tt+3}], v{ab+ks} offset:{tt*2048}"
                for f in range(nf): yield f"ds_read_b128 v[{b+8+4*f}:{b+8+4*f+3}], v{ab+2} offset:{f*2048 + ks*1024}"
            def mf(buf):
                b = 32 + 24*buf
                for f in range(nf):
                    for tt in range(2):
                        acc = ACC + 4*(tt*4 + f)
                        yield f"v_mfma_f32_16x16x32_bf16 v[{acc}:{acc+3}], v[{b+8+4*f}:{b+8+4*f+3}], v[{b+4*tt}:{b+4*tt+3}], v[{acc}:{acc+3}]"
            def interleave(ms, rs):
                ms = list(ms); rs = list(rs)
                if self.X_NOMFMA: ms = []
                if self.X_NOREAD: rs = []
                ri = 0
                for i, m in enumerate(ms):
                    e(m)
                    for _ in range(self.RPG):
                        if ri < len(rs): e(rs[ri]); ri += 1
                for r in rs[ri:]: e(r)
            for r in reads(0, 0, False): e(r)
            e("s_mov_b32 s36, 0"); e(f"s_mov_b32 s37, {SL}"); e("s_mov_b32 s38, 1")
            loop = self.lab("sp_loop")
            self.a.label(loop)
            e("s_barrier")
            for k in range(3): e(f"v_add_u32 v{203+k}, s37, v{200+k}")
            if self.ZTOUCH and jj == 0:
                tk2 = self.lab("sp_tk2")
                e("s_cmp_lg_u32 s3, 0"); e(f"s_cbranch_scc1 {tk2}")
                e(f"s_cmp_ge_u32 s36, {NST} - {LOOK}".replace(f"{NST} - {LOOK}", str(NST - LOOK))); e(f"s_cbranch_scc1 {tk2}")
                e("s_mov_b64 exec, 0x3fff")
                e("buffer_load_dword v199, v196, s[12:15], s43 offen")
                e("s_mov_b64 exec, -1")
                e("s_add_u32 s43, s43, 2048")
                self.a.label(tk2)
            e(f"s_waitcnt lgkmcnt(0)")
            interleave(mf(0), reads(1, 1, False))
            e(f"s_waitcnt lgkmcnt(0)")
            interleave(mf(1), reads(0, 0, True))
            for k in range(3): e(f"v_mov_b32 v{200+k}, v{203+k}")
            e("s_add_u32 s38, s38, 1"); e(f"s_cmp_eq_u32 s38, {D}")
            e(f"s_cselect_b32 s37, s44, s45"); e(f"s_cselect_b32 s38, 0, s38")
            e("s_add_u32 s36, s36, 1"); e(f"s_cmp_lt_u32 s36, {NST}"); e(f"s_cbranch_scc1 {loop}")
            if jj == 0: e(f"s_branch {lepi}")
        self.a.label(lepi)
        self.stamp(19)
        e("s_waitcnt vmcnt(0) lgkmcnt(0)")
        e("v_lshlrev_b32 v20, 16, v20"); e("v_lshlrev_b32 v21, 16, v21")
        for f in range(4):
            if f == 3:
                e("s_bitcmp1_b32 s3, 1"); e(f"s_cbranch_scc1 {end}")
            pk = 32 + 4*f
            for tt in range(2):
                acc = ACC + 4*(tt*4 + f); b = ZR + 2*(tt*4 + f)
                for q in range(2):
                    e(f"v_lshlrev_b32 v22, 16, v{b+q}"); e(f"v_and_b32 v23, 0xffff0000, v{b+q}")
                    e(f"v_add_f32 v24, v{acc+2*q}, v{20+tt}"); e(f"v_add_f32 v25, v{acc+2*q+1}, v{20+tt}")
                    e(f"v_mul_f32 v22, v22, v24"); e(f"v_mul_f32 v23, v23, v25")
                    e(f"v_cvt_pk_bf16_f32 v{pk+2*tt+q}, v22, v23")
            e(f"v_permlane16_swap_b32 v{pk}, v{pk+2}"); e(f"v_permlane16_swap_b32 v{pk+1}, v{pk+3}")
            e(f"buffer_store_dwordx4 v[{pk}:{pk+3}], v2, s[24:27], s35 offen offset:{f*1024} {ST}")
        e(f"s_branch {end}")
        self.a.label(lp)
        e("s_and_b32 s7, s3, 3")
        e("v_lshrrev_b32 v5, 3, v1"); e("v_and_b32 v6, 7, v1")
        for m in range(2):
            e(f"s_lshl_b32 s20, s7, 3"); e(f"s_add_u32 s20, s20, {32*m}")
            e(f"v_add_u32 v8, s20, v5"); e(f"v_bfe_u32 v9, v8, 1, 3"); e(f"v_xor_b32 v9, v9, v6")
            e(f"v_lshlrev_b32 v8, 12, v8"); e(f"v_lshl_add_u32 v{192+m}, v9, 4, v8")
        e("s_lshl_b32 s6, s4, 18")
        e("s_mul_i32 s32, s5, 0x70000"); e("s_lshr_b32 s20, s7, 1"); e("s_lshl_b32 s20, s20, 16"); e("s_add_u32 s32, s32, s20")
        e("s_and_b32 s20, s7, 1"); e("s_lshl_b32 s20, s20, 10"); e("s_add_u32 s32, s32, s20")
        e("s_lshl_b32 s33, s7, 10")
        e("s_mov_b32 s34, s33")
        def pre5():
            for st in range(D-1):
                for m in range(2): self.dma(192+m, 8, "s6", f"s_add_u32 m0, s34, {st*SL + m*4096}")
                e("s_add_u32 s6, s6, 128")
        self.wait_flags([(cZ, 0xffffffff)], pre=pre5)
        self.stamp(17)
        l5 = self.lab("sp_p5")
        e("s_cmp_ge_u32 s7, 2"); e(f"s_cbranch_scc1 {l5}")
        for var in range(2):
            nz = 4 if var == 0 else 3
            cnt = 2 + nz
            if var == 1: self.a.label(l5)
            def issue_z():
                for m in range(nz):
                    e(f"s_add_u32 s23, s32, {2*m*65536}")
                    self.dma(2, 12, "s23", f"s_add_u32 m0, s34, {8192 + m*4096}")
                e("s_add_u32 s32, s32, 2048")
            def issue():
                if self.X_NODMA: return
                for m in range(2): self.dma(192+m, 8, "s6", f"s_add_u32 m0, s34, {m*4096}")
                e("s_add_u32 s6, s6, 128")
                issue_z()
            for st in range(D-1):
                issue_z(); e(f"s_add_u32 s34, s34, {SL}")
            e(f"s_waitcnt vmcnt({nz*(D-2)})"); e("s_barrier")
            e("s_mov_b32 s36, 0"); e(f"s_mov_b32 s38, {D-1}")
            loop = self.lab("sp_ploop"); lni = self.lab("sp_ni"); lw = self.lab("sp_w"); le = self.lab("sp_e"); lb = self.lab("sp_b")
            self.a.label(loop)
            e(f"s_cmp_ge_u32 s36, {NST-D+2}"); e(f"s_cbranch_scc1 {lw}")
            e(f"s_cmp_lt_u32 s36, {D-3}"); e(f"s_cbranch_scc1 {le}")
            e(f"s_waitcnt vmcnt({cnt*(D-3)})"); e(f"s_branch {lb}")
            self.a.label(le)
            e(f"s_waitcnt vmcnt({nz*(D-3)})")
            self.a.label(lb)
            e("s_barrier")
            e(f"s_cmp_ge_u32 s36, {NST-D+1}"); e(f"s_cbranch_scc1 {lni}")
            issue()
            e("s_add_u32 s38, s38, 1"); e(f"s_cmp_eq_u32 s38, {D}"); e(f"s_cselect_b32 s39, s44, s45"); e(f"s_cselect_b32 s38, 0, s38")
            e("s_add_u32 s34, s34, s39"); e(f"s_branch {lni}")
            self.a.label(lw)
            e("s_waitcnt vmcnt(0)"); e("s_barrier")
            self.a.label(lni)
            e("s_add_u32 s36, s36, 1"); e(f"s_cmp_lt_u32 s36, {NST}"); e(f"s_cbranch_scc1 {loop}")
            if var == 0: e(f"s_branch {end}")
        self.a.label(end)
        self.phase_end()
        self.signal(lambda: (e("s_lshl_b32 s46, s4, 7"), e("s_lshl_b32 s47, s5, 2"), e("s_add_u32 s46, s46, s47"), e(f"s_add_u32 s46, s46, {F5}")))
        self.stamp(20)

    def p6(self):
        e = self.e
        self.srd(8, P_WS, WS_Y, 64*56*1024); self.srd(12, P_WOUT, 0, 896*512*2)
        self.srd(16, P_WS, WS_X1, 2*MB); self.srd(24, P_OUT, 0, 2*MB); self.srd(28, P_WS, WS_MOD, 49152)
        XR = 114688; XS = 16384; NCH = 7; NSLOT = 3
        self.proj_wvoff()
        self.proj_addr(True, XR, 0)
        e("v_add_u32 v10, 0x10000, v9")
        self.proj_epi_addr()
        def pre6():
            for m in range(16):
                e(f"s_add_u32 s21, s3, {7*m}"); e("s_lshl_b32 s20, s21, 13"); e("s_lshl_b32 s21, s21, 10")
                self.dma(3, 12, "s20", "s_mov_b32 m0, s21")
        def cY():
            e("s_lshl_b32 s46, s4, 7"); e(f"s_add_u32 s46, s46, {F5}"); e("v_lshlrev_b32 v251, 2, v1")
        self.wait_flags([(cY, 0xff)], pre=pre6, w7_after=False)
        self.stamp(21)
        e(f"s_mul_i32 s6, s4, {2*56*1024}"); e("s_lshl_b32 s21, s3, 10"); e("s_add_u32 s6, s6, s21")
        def issue_x(ch):
            for tt in range(2):
                e(f"s_add_u32 s20, s6, {tt*56*1024 + ch*8*1024}")
                self.dma(2, 8, "s20", f"s_add_u32 m0, s21, {XR + (ch % NSLOT)*XS + tt*8192}")
        issue_x(0); e("s_barrier"); issue_x(1); e("s_barrier"); issue_x(2)
        e("buffer_load_dwordx4 v[32:35], v16, s[16:19], s32 offen")
        self.proj_gate_loads(5)
        ACC = 64
        for r in range(16): e(f"v_mov_b32 v{ACC+r}, 0")
        for ch in range(NCH):
            w = {0: 4 + 9, 1: 2 + 9, 2: 9 + 2}.get(ch, 2*(min(NCH - 1, ch + 1) - ch))
            e(f"s_waitcnt vmcnt({w})")
            e("s_barrier")
            if ch == 0: self.stamp(38)
            if ch >= 1 and ch + 2 < NCH: issue_x(ch + 2)
            wreg, woff = (9, ch*16384) if ch < 3 else (10, ch*16384 - 65536) if ch >= 4 else (9, ch*16384)
            self.proj_chunk(ACC, (ch % NSLOT)*XS, wreg, woff, True)
        self.stamp(39)
        self.proj_epilogue(ACC, 24, "", False)
        self.stamp(22)


HEADER = open('cdna_kernels/' + NAME + '.s.ref').read().split('; Override launch geometry')[0]

DOC = """; ---------------------------------------------------------------------------------------------------------
; ---------------------------------------------------------------------------------------------------------
"""

def build(stamps=False, hstamp=-1):
    Gen.STAMPS = stamps
    g = Gen()
    endl = "L_exit"
    g.prologue(endl)
    g.p01(); g.p2(); g.p3(); g.p4(); g.p5(); g.p6()
    if stamps and Gen.GSTAMP:
        e = g.e
        sk = g.lab("stst")
        e(f"s_cmp_lg_u32 s3, {Gen.GSTAMP_W}"); e(f"s_cbranch_scc1 {sk}")
        e("s_waitcnt vmcnt(0)")
        g.stamp(23)
        g.srd(8, P_DBG, 0, 0x20000)
        e("s_lshl_b32 s20, s2, 8"); e("s_add_u32 s20, s20, 4096")
        e("v_lshlrev_b32 v4, 2, v1")
        e("buffer_store_dword v255, v4, s[8:11], s20 offen")
        g.a.label(sk)
    elif stamps:
        e = g.e
        sk = g.lab("stst")
        e(f"s_sub_u32 s46, s2, {Gen.STAMP_WG0}"); e("s_cmp_ge_u32 s46, 4"); e(f"s_cbranch_scc1 {sk}")
        e("s_and_b32 s46, s3, 3"); e(f"s_cmp_lg_u32 s46, {Gen.STAMP_W}"); e(f"s_cbranch_scc1 {sk}")
        e("s_waitcnt vmcnt(0)")
        g.stamp(23)
        if hstamp >= 0: e(f"s_branch {sk}")
        g.srd(8, P_DBG, 0, 4096)
        e(f"s_sub_u32 s20, s2, {Gen.STAMP_WG0}"); e("s_lshl_b32 s20, s20, 1"); e("s_lshr_b32 s21, s3, 2"); e("s_add_u32 s20, s20, s21"); e("s_lshl_b32 s20, s20, 8"); e("s_add_u32 s20, s20, 256")
        e("v_lshlrev_b32 v4, 2, v1")
        e("buffer_store_dword v255, v4, s[8:11], s20 offen")
        g.a.label(sk)
    if hstamp >= 0:
        e = g.e
        sk = g.lab("hst")
        e(f"s_cmp_lg_u32 s2, {hstamp}"); e(f"s_cbranch_scc1 {sk}")
        e("s_cmp_lg_u32 s3, 0"); e(f"s_cbranch_scc1 {sk}")
        e("v_lshrrev_b32 v4, 2, v255")
        e("v_lshlrev_b32 v5, 16, v4")
        e("v_mov_b32_dpp v6, v5 row_shl:1 row_mask:0xf bank_mask:0xf")
        e("v_or_b32 v4, v4, v6")
        g.srd(8, P_DBG, 0, 256)
        e("v_lshrrev_b32 v7, 1, v1"); e("v_lshlrev_b32 v7, 2, v7"); e("v_add_u32 v7, 4, v7")
        e("v_and_b32 v8, 1, v1"); e("v_cmp_eq_u32 vcc, 0, v8"); e("v_cmp_gt_u32 s[40:41], 24, v1"); e("s_and_b64 vcc, vcc, s[40:41]")
        e("s_and_saveexec_b64 s[40:41], vcc")
        e("buffer_store_dword v4, v7, s[8:11], 0 offen")
        g.a.label(sk)
    g.a.label(endl)
    g.e("s_endpgm")
    g.a.fix_hazards()
    out = [HEADER, "; @launch grid=(256,1,1) block=(512,1,1) lds=163840\n", DOC,
           '.amdgcn_target "amdgcn-amd-amdhsa--gfx950"\n.text\n',
           f".globl {KNAME}\n.p2align 8\n.type {KNAME},@function\n{KNAME}:\n", g.a.text(),
           '.section .rodata,"a"\n', f""".p2align 6
.amdhsa_kernel {KNAME}
  .amdhsa_next_free_vgpr 256
  .amdhsa_next_free_sgpr 102
  .amdhsa_accum_offset 256
  .amdhsa_group_segment_fixed_size 0
  .amdhsa_kernarg_size 104
  .amdhsa_user_sgpr_count 2
  .amdhsa_user_sgpr_kernarg_segment_ptr 1
  .amdhsa_system_sgpr_workgroup_id_x 1
.end_amdhsa_kernel
"""]
    txt = ''.join(out)
    import re
    txt = re.sub(r'(buffer_store_\w+ [^\n]*?) sc0 sc1', r'\1 sc1', txt)
    return txt

if __name__ == "__main__":
    for k in ("PREFETCH", "STAMP_WG0", "STAMP_W", "CODEPF", "NOHOP", "BALANCE", "ZTOUCH", "GSTAMP", "GSTAMP_W", "ZLOOK", "DIAG", "MODCRIT", "XLATE", "SPD", "REPACK", "M1", "M2", "RPG", "X_NOMFMA", "X_NOREAD", "X_NODMA"):
        if k in os.environ: setattr(Gen, k, int(os.environ[k]))
    txt = build(stamps=(len(sys.argv) > 2), hstamp=int(os.environ.get("HSTAMP", "-1")))
    path = sys.argv[1] if len(sys.argv) > 1 else 'cdna_kernels/' + NAME + '.s'
    open(path, 'w').write(txt)
    print("wrote", path, len(txt), "bytes")
```
